```python
import torch

def _softmax(x, axis=-1):
    return torch.softmax(x, dim=axis)
def _gelu(x):
    return torch.nn.functional.gelu(x, approximate="tanh")
def _silu(x):
    return torch.nn.functional.silu(x)
def _sigmoid(x):
    return torch.sigmoid(x)
def _layernorm(x, axis=-1, eps=1e-5):
    m = x.mean(dim=axis, keepdim=True)
    v = x.var(dim=axis, keepdim=True, unbiased=False)
    return (x - m) / torch.sqrt(v + eps)
def _scatter_add(tgt, idx, src, axis=0):
    return tgt.clone().index_add_(axis, idx, src)
def _segment_sum(src, seg, n):
    out = torch.zeros((n,) + src.shape[1:], dtype=src.dtype)
    return out.index_add_(0, seg, src)
def _pad(x, pw):
    flat = tuple(v for pair in reversed(pw) for v in pair)
    return torch.nn.functional.pad(x, flat)

kernel_name = 'gated_mix__spectral_gfnet__swiglu_ffn__prompt'

def setup_inputs():

    _w = (lambda a: (lambda t: t.to(torch.bfloat16) if t.is_floating_point() else t)(torch.as_tensor(a)))
    def _A_setup():
        B, S, D = 1, 2048, 576
        Df = D // 2 + 1
        return {
            "x": _w((lambda *s: torch.randn(*s, dtype=torch.bfloat16) * 0.05)(B, S, D)),
            "w_r": _w((lambda *s: torch.randn(*s, dtype=torch.bfloat16) * 1.6)(S, Df) * 0.02),
            "w_i": _w((lambda *s: torch.randn(*s, dtype=torch.bfloat16) * 1.6)(S, Df) * 0.02),
        }
    _A_in = _A_setup()

    def _B_setup():
        B, S, D, F = 1, 2048, 576, 4608
        return {
            "x": _w((lambda *s: torch.randn(*s, dtype=torch.bfloat16) * 0.05)(B, S, D)),
            "w_gate": _w((lambda *s: torch.randn(*s, dtype=torch.bfloat16) * 0.05)(D, F)),
            "w_up": _w((lambda *s: torch.randn(*s, dtype=torch.bfloat16) * 0.05)(D, F)),
            "w_down": _w((lambda *s: torch.randn(*s, dtype=torch.bfloat16) * 0.05)(F, D)),
        }
    _B_in = _B_setup()

    return {
        "A_x": _A_in["x"],
        "A_w_r": _A_in["w_r"],
        "A_w_i": _A_in["w_i"],
        "B_x": _B_in["x"],
        "B_w_gate": _B_in["w_gate"],
        "B_w_up": _B_in["w_up"],
        "B_w_down": _B_in["w_down"],
        "gate_w": _w((lambda *s: torch.randn(*s, dtype=torch.bfloat16) * 0.05)(576) * 16.0),
    }

def reference(A_x, A_w_r, A_w_i, B_x, B_w_gate, B_w_up, B_w_down, gate_w):
    def _A_ref(x, w_r, w_i):
        B, S, D = x.shape
        X = (lambda x, axes=(-2,-1): torch.fft.rfft2(x.float(), dim=axes))(x, axes=(-2, -1))
        W = w_r + 1j * w_i
        X = X * W
        y = (lambda x, s, axes=(-2,-1): torch.fft.irfft2(x, s=s, dim=axes).to(torch.bfloat16))(X, (S, D), axes=(-2, -1))
        return y

    def _B_ref(x, w_gate, w_up, w_down):
        g = _silu(x @ w_gate)
        u = x @ w_up
        return (g * u) @ w_down

    x = A_x
    g = _sigmoid((x * gate_w).sum(-1, keepdims=True))
    a = _A_ref(x, A_w_r, A_w_i)
    b = _B_ref(x, B_w_gate, B_w_up, B_w_down)
    return g * a + (1 - g) * b
```

```python
NAME = "gated_mix__spectral_gfnet__swiglu_ffn__prompt"
WS_BYTES = 268435456
STAMP_OFF = WS_BYTES - (4 << 20)

HEADER_COMMENT = """; Kernarg layout for this problem (88 bytes, ptrs only, base s[0:1]):
"""

class Asm:
    def __init__(self):
        self.lines = []
        self.launches = []
        self.descs = []
        self.nlabel = 0
    def __call__(self, s):
        for l in s.split("\n"):
            l = l.strip()
            if l:
                self.lines.append(("" if l.endswith(":") else "  ") + l)
    def label(self, base="L"):
        self.nlabel += 1
        return "%s_%d" % (base, self.nlabel)
    def launch(self, kernel, grid, block, lds):
        self.launches.append("; @launch kernel=%s grid=(%d,1,1) block=(%d,1,1) lds=%d" % (kernel, grid, block, lds))
    def begin(self, kernel):
        self.lines += [".globl %s" % kernel, ".p2align 8", ".type %s,@function" % kernel, "%s:" % kernel]
    def end(self, kernel, vgpr, sgpr=102, accum=None):
        if accum is None:
            accum = min(256, (vgpr + 3) // 4 * 4)
        self.descs.append(""".p2align 6
.amdhsa_kernel %s
  .amdhsa_next_free_vgpr %d
  .amdhsa_next_free_sgpr %d
  .amdhsa_accum_offset %d
  .amdhsa_group_segment_fixed_size 0
  .amdhsa_kernarg_size 88
  .amdhsa_user_sgpr_count 2
  .amdhsa_user_sgpr_kernarg_segment_ptr 1
  .amdhsa_system_sgpr_workgroup_id_x 1
.end_amdhsa_kernel""" % (kernel, vgpr, sgpr, accum))
    def text(self):
        return (HEADER_COMMENT + "\n".join(self.launches) + "\n" +
                '.amdgcn_target "amdgcn-amd-amdhsa--gfx950"\n.text\n' +
                "\n".join(self.lines) + "\n" + '.section .rodata,"a"\n' + "\n".join(self.descs) + "\n")
    def srd(self, d, b, nbytes):
        self("s_mov_b32 s%d, s%d\ns_and_b32 s%d, s%d, 0xffff\ns_mov_b32 s%d, 0x%x\ns_mov_b32 s%d, 0x20000"
             % (d, b, d + 1, b + 1, d + 2, nbytes, d + 3))
```

```python
import re, sys

def R(kind, lo, n=1):
    return [(kind, lo + i) for i in range(n)]
def V(lo, n=1): return R('v', lo, n)
def A(lo, n=1): return R('a', lo, n)
def S(lo, n=1): return R('s', lo, n)
def rs(regs):
    k, lo = regs[0]
    n = len(regs)
    for i, r in enumerate(regs):
        assert r == (k, lo + i), regs
    return "%s%d" % (k, lo) if n == 1 else "%s[%d:%d]" % (k, lo, lo + n - 1)

TRANS = ("v_exp_f32", "v_rcp_f32", "v_sin_f32", "v_cos_f32", "v_log_f32", "v_rsq_f32", "v_sqrt_f32")

class Ins:
    seq = 0
    def __init__(self, text, kind, rd=(), wr=(), **kw):
        self.text = text; self.kind = kind
        self.rd = list(rd); self.wr = list(wr)
        self.lds_r = kw.get("lds_r")
        self.lds_w = kw.get("lds_w")
        self.priv = kw.get("priv", False)
        self.tag = kw.get("tag")
        self.need_vm = kw.get("need_vm", ())
        self.need_lgkm = kw.get("need_lgkm", ())
        self.opt = kw.get("opt", False)
        self.mC = kw.get("mC", ())
        self.wide = kw.get("wide", False)
        self.passes = kw.get("passes", 4)
        self.op = text.split()[0] if text else ""
        self.trans = self.op.replace("_e32", "").replace("_e64", "") in TRANS
        Ins.seq += 1
        self.id = Ins.seq
    def cost(self):
        if self.kind == 'valu': return 8 if self.trans else 4
        return 4

_reg_re = re.compile(r"\b([vas])(\d+)\b|\b([vas])\[(\d+):(\d+)\]")
def parse_regs(tok):
    out = []
    for m in _reg_re.finditer(tok):
        if m.group(1): out.append((m.group(1), int(m.group(2))))
        else: out += R(m.group(3), int(m.group(4)), int(m.group(5)) - int(m.group(4)) + 1)
    if re.search(r"\bvcc\b", tok): out.append(('s', 'vcc'))
    if re.search(r"\bm0\b", tok): out.append(('s', 'm0'))
    if re.search(r"\bexec\b", tok): out.append(('s', 'exec'))
    return out

def split_ops(s):
    out, depth, cur = [], 0, ""
    for ch in s:
        if ch == "[" or ch == "(": depth += 1
        if ch == "]" or ch == ")": depth -= 1
        if ch == "," and depth == 0:
            out.append(cur.strip()); cur = ""
        else: cur += ch
    if cur.strip(): out.append(cur.strip())
    return out

RMW = ("v_fmac_f32", "v_dot2c_f32_bf16", "v_permlane32_swap_b32", "v_permlane16_swap_b32")
def I(text, **kw):
    text = text.strip()
    op = text.split()[0]
    rest = text[len(op):].strip()
    ops = split_ops(rest)
    rd, wr = [], []
    if op.startswith("v_mfma"):
        wr = parse_regs(ops[0]); rd = parse_regs(ops[1]) + parse_regs(ops[2]) + parse_regs(ops[3])
        return Ins(text, 'mfma', rd, wr, mC=parse_regs(ops[3]), passes=(8 if "32x32x16" in op else 4), **kw)
    if op.startswith("ds_read"):
        return Ins(text, 'ds', parse_regs(ops[1]), parse_regs(ops[0]), **kw)
    if op.startswith("ds_write"):
        return Ins(text, 'ds', parse_regs(rest), [], **kw)
    if op.startswith("ds_bpermute") or op.startswith("ds_swizzle"):
        return Ins(text, 'ds', parse_regs(",".join(ops[1:])), parse_regs(ops[0]), **kw)
    if op.startswith("buffer_load"):
        if rest.endswith(" lds"):
            return Ins(text, 'dma', parse_regs(rest) + [('s', 'm0')], [], **kw)
        w = parse_regs(ops[0])
        r = parse_regs(",".join(ops[1:]))
        if "d16" in op: r = r + w
        return Ins(text, 'vmem', r, w, **kw)
    if op.startswith("buffer_store"):
        return Ins(text, 'vmem', parse_regs(rest), [], wide=("x4" in op or "x3" in op), **kw)
    if op.startswith("buffer_atomic"):
        w = parse_regs(ops[0]) if " sc0" in rest else []
        return Ins(text, 'vmem', parse_regs(rest), w, **kw)
    if op == "s_barrier": return Ins(text, 'bar', **kw)
    if op in ("s_nop", "s_setprio", "s_sleep"): return Ins(text, 'nop', **kw)
    if op == "s_waitcnt": return Ins(text, 'wait', **kw)
    if op.startswith("s_cbranch") or op == "s_branch" or op == "s_endpgm":
        return Ins(text, 'br', [('s', 'scc')] if "scc" in op else ([('s', 'exec')] if "exec" in op else ([('s','vcc')] if "vcc" in op else [])), [], **kw)
    if text.endswith(":"): return Ins(text, 'label', **kw)
    if op.startswith("s_load") or op.startswith("s_mem"):
        return Ins(text, 'smem', parse_regs(",".join(ops[1:])), parse_regs(ops[0]), **kw)
    if op.startswith("s_cmp"):
        return Ins(text, 'salu', parse_regs(rest), [('s', 'scc')], **kw)
    if op.startswith("s_"):
        wr = parse_regs(ops[0]); rd = parse_regs(",".join(ops[1:]))
        if op.startswith("s_cselect") or op.startswith("s_addc"): rd.append(('s', 'scc'))
        if not (op.startswith("s_mov") or op.startswith("s_cselect") or op.startswith("s_mul") or op.startswith("s_getreg")):
            wr.append(('s', 'scc'))
        if "saveexec" in op: wr.append(('s', 'exec')); rd.append(('s', 'exec'))
        return Ins(text, 'salu', rd, wr, **kw)
    if op.startswith("v_"):
        wr = parse_regs(ops[0]); rd = parse_regs(",".join(ops[1:]))
        b = op.replace("_e32", "").replace("_e64", "")
        if b in RMW: rd += wr
        if "permlane" in b and "swap" in b: wr = wr + parse_regs(ops[1])
        return Ins(text, 'valu', rd, wr, **kw)
    raise ValueError(text)

def L(text, **kw):
    return [I(t, **kw) for t in text.strip().split("\n") if t.strip()]

class Sec:
    def __init__(self):
        self.m = []
        self.pre = []
        self.pin = {}
        self.streams = []
    def n(self): return len(self.m)
    def mfma(self, ins): self.m.append(ins); return len(self.m) - 1
    def at(self, idx, ins):
        if not isinstance(ins, list): ins = [ins]
        if idx < 0: self.pre += ins
        else: self.pin.setdefault(idx, []).extend(ins)
    def stream(self, lst, start, end):
        self.streams.append([list(lst), start, end])
    def flatten(self, cap=8):
        out = list(self.pre)
        n = len(self.m)
        st = [dict(ops=s[0], pos=0, start=s[1], end=min(s[2], n - 1), tot=sum(i.cost() for i in s[0]), done=0) for s in self.streams]
        for g in range(n):
            out.append(self.m[g])
            pins = self.pin.get(g, [])
            out += pins
            room = cap - sum(4 for p in pins if p.kind in ('ds', 'dma', 'vmem', 'salu', 'valu', 'bar'))
            act = [s for s in st if s['start'] <= g and s['pos'] < len(s['ops'])]
            while True:
                best = None; bl = -1e9
                for s in act:
                    if s['pos'] >= len(s['ops']): continue
                    span = max(1, s['end'] - s['start'] + 1)
                    target = s['tot'] * min(1.0, (g - s['start'] + 1) / span)
                    lag = target - s['done']
                    c = s['ops'][s['pos']].cost()
                    must = g >= s['end'] or lag >= 3 * 8
                    if (must or (c <= room and lag > 0)) and (lag + (1e6 if must else 0)) > bl:
                        best = s; bl = lag + (1e6 if must else 0)
                if best is None: break
                ins = best['ops'][best['pos']]
                out.append(ins); best['pos'] += 1; best['done'] += ins.cost(); room -= ins.cost()
        for s in st:
            assert s['pos'] == len(s['ops']), "stream not drained"
        return out

def check_order(prog):
    def producers(seq):
        last = {}; res = {}
        for i in seq:
            res[i.id] = {r: last.get(r) for r in i.rd}
            for r in i.wr: last[r] = i.id
        return res
    a = producers(sorted(prog, key=lambda i: i.id)); b = producers(prog)
    byid = {i.id: i for i in prog}
    bad = 0
    for k in a:
        if a[k] != b[k]:
            for r in a[k]:
                if a[k][r] != b[k][r]:
                    bad += 1
                    if bad < 10:
                        f = lambda x: byid[x].text if x else None
                        print("ORDER VIOLATION at '%s' reg %s: logical producer '%s' scheduled producer '%s'" % (byid[k].text, r, f(a[k][r]), f(b[k][r])))
    assert bad == 0, "order violations: %d" % bad

def insert_waits(prog):
    out = []
    vm = []; lg = []
    def need(lst, idx, cur_opt):
        op = lst[idx]
        return sum(1 for y in lst[idx + 1:] if (not y.opt) or (y.opt == cur_opt))
    for i in prog:
        if i.kind == 'wait':
            m = re.search(r"vmcnt\((\d+)\)", i.text)
            if m and int(m.group(1)) == 0 and not i.opt:
                for y in vm: y.done_pos = len(out)
                vm = []
            m = re.search(r"lgkmcnt\((\d+)\)", i.text)
            if m and int(m.group(1)) == 0 and not i.opt:
                for y in lg: y.done_pos = len(out)
                lg = []
            out.append(i); continue
        touched = set(i.rd) | set(i.wr)
        nv = nl = None; iv = il = -1
        for k, y in enumerate(vm):
            if (set(y.wr) & touched) or (y.tag is not None and y.tag in i.need_vm): iv = k
        for k, y in enumerate(lg):
            if (set(y.wr) & touched) or (y.tag is not None and y.tag in i.need_lgkm): il = k
        parts = []
        if iv >= 0:
            nv = min(63, need(vm, iv, i.opt)); parts.append("vmcnt(%d)" % nv)
        if il >= 0:
            nl = min(15, need(lg, il, i.opt))
            if any(y.kind == 'smem' for y in lg): nl = 0; il = len(lg) - 1
            parts.append("lgkmcnt(%d)" % nl)
        if parts:
            w = Ins("s_waitcnt " + " ".join(parts), 'wait'); w.opt = i.opt
            def retire(lst, idx):
                keep = []
                for k, y in enumerate(lst):
                    if k <= idx and (not i.opt or y.opt == i.opt):
                        y.done_pos = len(out)
                    else: keep.append(y)
                return keep
            if iv >= 0: vm = retire(vm, iv)
            if il >= 0: lg = retire(lg, il)
            out.append(w)
        i.pos = len(out)
        out.append(i)
        if i.kind in ('vmem', 'dma'): i.done_pos = None; vm.append(i)
        if i.kind in ('ds', 'smem'): i.done_pos = None; lg.append(i)
    return out

def states(i):
    if i.kind == 'label': return 0
    if i.op == "s_nop": return int(i.text.split()[1]) + 1
    return 1

def insert_nops(prog):
    out = []
    W = 400
    for i in prog:
        need = 0
        dist = 0
        rd = set(i.rd); wr = set(i.wr)
        for p in reversed(out[-W:]):
            req = 0
            pw = set(p.wr)
            if p.kind == 'valu':
                vw = {r for r in pw if r[0] in 'va'}
                sw = {r for r in pw if r[0] == 's'}
                if i.kind == 'mfma' and vw & rd: req = max(req, 2)
                if i.kind == 'valu':
                    if p.trans and not i.trans and vw & rd: req = max(req, 1)
                    if "permlane" in i.op and vw & rd: req = max(req, 2)
                    if ("dpp" in i.text or "row_" in i.text or "quad_perm" in i.text) and vw & rd: req = max(req, 2)
                    if ("readfirstlane" in i.op or "readlane" in i.op) and vw & rd: req = max(req, 1)
                    if sw & rd: req = max(req, 2)
                if i.kind in ('vmem', 'dma') and sw & rd: req = max(req, 5)
                if i.kind in ('salu', 'br') and sw & rd: req = max(req, 2)
            if p.kind == 'mfma':
                big = {4: 8, 8: 12}[p.passes]
                if i.kind == 'mfma':
                    c = set(i.mC); ab = rd - c
                    if pw & ab: req = max(req, big)
                    if pw & c and list(i.mC) != list(p.wr): req = max(req, {4: 6, 8: 10}[p.passes])
                elif i.kind in ('valu', 'vmem', 'ds', 'dma'):
                    if pw & (rd | wr): req = max(req, big)
                    if i.kind == 'valu' and set(p.mC) & wr: req = max(req, {4: 3, 8: 7}[p.passes])
            if p.kind == 'salu' and ('s', 'm0') in pw and i.kind == 'dma': req = max(req, 1)
            if p.kind == 'vmem' and p.wide and not p.wr and wr & {r for r in p.rd if r[0] in 'va'}: req = max(req, 2)
            if req > dist: need = max(need, req - dist)
            if not (p.opt and p.opt != i.opt): dist += states(p)
            if dist >= 20: break
        while need > 0:
            k = min(need, 16)
            n = Ins("s_nop %d" % (k - 1), 'nop'); n.opt = i.opt
            out.append(n); need -= k
        out.append(i)
    return out

def check_lds(prog):
    bars = [i.pos for i in prog if i.kind == 'bar']
    import bisect
    def bar_between(a, b):
        k = bisect.bisect_right(bars, a)
        return k < len(bars) and bars[k] < b
    acc = [i for i in prog if i.lds_r or i.lds_w]
    G = 256
    lastw = {}; lastr = {}
    bad = 0
    def rep(kind, p, i):
        nonlocal bad
        bad += 1
        if bad < 10: print("LDS %s violation: '%s' (pos %d done %s) -> '%s' (pos %d)" % (kind, p.text, p.pos, p.done_pos, i.text, i.pos))
    def ok(p, i, samegroup):
        if p.priv and i.priv:
            if p.kind == 'ds' and i.kind == 'ds': return True
            return p.done_pos is not None and p.done_pos <= i.pos
        return p.done_pos is not None and bar_between(p.done_pos, i.pos)
    for i in acc:
        if i.lds_r:
            for g in range(i.lds_r[0] // G, (i.lds_r[1] + G - 1) // G):
                ws = lastw.get(g)
                assert ws, "read of never-written LDS: %s" % i.text
                for p in ws:
                    if not ok(p, i, False): rep("RAW", p, i)
                lastr.setdefault(g, []).append(i)
        if i.lds_w:
            for g in range(i.lds_w[0] // G, (i.lds_w[1] + G - 1) // G):
                rr = lastr.get(g, [])
                for p in rr:
                    if not ok(p, i, False): rep("WAR", p, i)
                if rr:
                    lastw[g] = [i]; lastr[g] = []
                else:
                    lastw.setdefault(g, []).append(i)
    assert bad == 0, "LDS violations: %d" % bad

def finish(prog, check=True):
    if check: check_order(prog)
    p = insert_waits(prog)
    if check: check_lds(p)
    p = insert_nops(p)
    return p

def stats(p):
    from collections import Counter
    c = Counter(i.kind for i in p)
    return dict(c)
```

```python
import sys, math
from asmlib import *
from fw import *

WS_A = 0x000000
WS_B = 0x300000
WS_G = 0x600000
WS_O = 0x602000
WS_P = 0x800000
KB_STRIDE = 131072
MF = "v_mfma_f32_16x16x32_bf16"
def f2h(x):
    import struct
    return "0x%08x" % struct.unpack("<I", struct.pack("<f", x))[0]
def mf(d, a, b, c):
    return I("%s %s, %s, %s, %s" % (MF, rs(d), rs(a), rs(b), rs(c) if c else "0"))

S_X, S_WG, S_WU, S_WD, S_WS, S_WH, S_WR, S_WI, S_GW, S_OUT = 8, 12, 16, 20, 24, 28, 32, 36, 40, 44
S_KK = 48
S_DK = 66
S_XQ = 75
S_T, S_C, S_W, S_W1K, S_KB, S_T0, S_T1, S_T2, S_RG, S_FH = 79, 80, 81, 82, 83, 84, 85, 86, 87, 88
S_MSK = 90
S_T3, S_T4 = 92, 93

def srd(d, b, n):
    return L("s_mov_b32 s%d, s%d\ns_and_b32 s%d, s%d, 0xffff\ns_mov_b32 s%d, 0x%x\ns_mov_b32 s%d, 0x20000" % (d, b, d + 1, b + 1, d + 2, n, d + 3))

def prologue_common(nwg):
    p = L("s_cmp_ge_u32 s2, %d\ns_cbranch_scc1 L_end_KN" % nwg)
    p += L("s_load_dwordx16 s[52:67], s[0:1], 0\ns_load_dwordx4 s[68:71], s[0:1], 64\ns_load_dwordx2 s[72:73], s[0:1], 80")
    p += L("v_lshrrev_b32 v1, 6, v0\nv_and_b32 v0, 63, v0\nv_readfirstlane_b32 s%d, v1" % S_W)
    p += L("s_waitcnt lgkmcnt(0)")
    p += srd(S_X, 52, 2048 * 1152) + srd(S_WR, 54, 2048 * 578) + srd(S_WI, 56, 2048 * 578) + srd(S_WG, 60, 576 * 9216)
    p += srd(S_WU, 62, 576 * 9216) + srd(S_WD, 64, 4608 * 1152) + srd(S_GW, 66, 1152) + srd(S_OUT, 68, 2048 * 1152) + srd(S_WS, 72, WS_BYTES)
    p += L("s_lshr_b32 s%d, s%d, 1\ns_and_b32 s%d, s%d, 1\ns_lshl_b32 s%d, s%d, 10" % (S_RG, S_W, S_FH, S_W, S_W1K, S_W))
    p += L("v_and_b32 v1, 15, v0\nv_lshrrev_b32 v2, 4, v0")
    return p

def ids_tc():
    return L("""s_and_b32 s%d, s2, 3
s_lshl_b32 s%d, s%d, 2
s_lshr_b32 s%d, s2, 3
s_and_b32 s%d, s%d, 3
s_add_u32 s%d, s%d, s%d
s_lshr_b32 s%d, s2, 5
s_lshl_b32 s%d, s%d, 1
s_lshr_b32 s%d, s2, 2
s_and_b32 s%d, s%d, 1
s_add_u32 s%d, s%d, s%d""" % (S_C, S_C, S_C, S_T0, S_T0, S_T0, S_C, S_C, S_T0, S_T, S_T, S_T, S_T0, S_T0, S_T0, S_T, S_T, S_T0))

def emit(a, name, prog, vg, accum=None, check=True):
    p = finish(prog, check)
    a.begin(name)
    for i in p:
        a(i.text.replace("KN", name))
    a("L_end_%s:\ns_endpgm" % name)
    a.end(name, vg, accum=accum)
    print(name, stats(p), file=sys.stderr)

def XF(mi, kk):
    n = kk * 4 + mi
    return A(4 * n, 4) if n < 64 else V(224 + 4 * (n - 64), 4)

def x_dma_setup(vx, vt):
    p = L("""v_lshrrev_b32 v%d, 3, v0
s_lshl_b32 s%d, s%d, 3
v_add_u32 v%d, s%d, v%d
s_mov_b32 s%d, %d
v_mul_lo_u32 v%d, v%d, s%d
s_lshl_b32 s%d, s%d, 2
v_add_u32 v%d, s%d, v2
v_xor_b32 v%d, v0, v%d
v_and_b32 v%d, 7, v%d
v_lshl_add_u32 v%d, v%d, 4, v%d
s_mul_i32 s%d, s%d, 2304
v_add_u32 v%d, s%d, v%d""" % (vx, S_T0, S_W, vx, S_T0, vx, S_T0, 32 * 1152, vx, vx, S_T0, S_T0, S_FH, vt, S_T0, vt, vt, vt, vt, vx, vt, vx, S_T0, S_T, vx, S_T0, vx))
    for q in range(4):
        p += L("s_mov_b32 s%d, %d" % (S_XQ + q, (1024 * (q & 1) + (q >> 1)) * 1152))
    return p

def x_read_setup(va, vb, vt):
    return L("""v_lshrrev_b32 v%d, 1, v1
v_xor_b32 v%d, v%d, v2
v_lshlrev_b32 v%d, 4, v%d
v_lshl_add_u32 v%d, v1, 7, v%d
s_lshl_b32 s%d, s%d, 13
v_add_u32 v%d, s%d, v%d
v_xor_b32 v%d, 64, v%d""" % (vt, vt, vt, vt, vt, va, vt, S_T0, S_RG, va, S_T0, va, vb, va))

def dma(vo, srdr, soff, page_byte, ioff, tag, nbytes=4096):
    assert page_byte - ioff >= 0
    m = I("s_add_u32 m0, s%d, %d" % (S_W1K, page_byte - ioff))
    d = I("buffer_load_dwordx4 v%d, s[%d:%d], s%d offen%s lds" % (vo, srdr, srdr + 3, soff, (" offset:%d" % ioff) if ioff else ""),
          lds_w=(page_byte, page_byte + nbytes), tag=tag)
    return m, d

def gate_code(T):
    vx, vg, va, vo = T, T + 9, T + 18, T + 19
    t0, t1, t2, t3 = T + 20, T + 21, T + 22, T + 23
    p = L("""v_lshrrev_b32 v%d, 5, v0
s_lshl_b32 s%d, s%d, 3
s_lshl_b32 s%d, s%d, 1
s_add_u32 s%d, s%d, s%d
v_add_u32 v%d, s%d, v%d""" % (vo, S_T0, S_C, S_T1, S_W, S_T0, S_T0, S_T1, vo, S_T0, vo))
    p += L("""v_and_b32 v%d, 63, v%d
v_lshlrev_b32 v%d, 5, v%d
v_lshrrev_b32 v%d, 6, v%d
v_add_u32 v%d, v%d, v%d
s_lshl_b32 s%d, s%d, 1
v_add_u32 v%d, s%d, v%d
v_mul_u32_u24 v%d, 1152, v%d
v_and_b32 v%d, 31, v0
v_lshlrev_b32 v%d, 2, v%d
v_add_u32 v%d, v%d, v%d""" % (t0, vo, t0, t0, t1, vo, t0, t0, t1, S_T0, S_T, t0, S_T0, t0, t0, t0, t1, t1, t1, t0, t0, t1))
    for n in range(9):
        p += L("buffer_load_dword v%d, v%d, s[%d:%d], 0 offen offset:%d" % (vx + n, t0, S_X, S_X + 3, n * 128))
        p += L("buffer_load_dword v%d, v%d, s[%d:%d], 0 offen offset:%d" % (vg + n, t1, S_GW, S_GW + 3, n * 128))
    q = L("v_mov_b32 v%d, 0\ns_mov_b32 s%d, 0x3f803f80" % (va, S_T3))
    for n in range(9):
        q += L("""v_lshlrev_b32 v%d, 16, v%d
v_lshlrev_b32 v%d, 16, v%d
v_and_b32 v%d, 0xffff0000, v%d
v_and_b32 v%d, 0xffff0000, v%d
v_mul_f32 v%d, v%d, v%d
v_mul_f32 v%d, v%d, v%d
v_cvt_pk_bf16_f32 v%d, v%d, v%d
v_lshlrev_b32 v%d, 16, v%d
v_and_b32 v%d, 0xffff0000, v%d
v_add_f32 v%d, v%d, v%d
v_add_f32 v%d, v%d, v%d""" % (t0, vx + n, t1, vg + n, t2, vx + n, t3, vg + n, t0, t0, t1, t2, t2, t3, t0, t0, t2,
                              t1, t0, t0, t0, va, va, t1, va, va, t0))
    for sh in (8, 4, 2, 1):
        q += L("v_add_f32_dpp v%d, v%d, v%d row_ror:%d row_mask:0xf bank_mask:0xf" % (va, va, va, sh))
    q += L("""v_mov_b32 v%d, v%d
v_permlane16_swap_b32 v%d, v%d
v_add_f32 v%d, v%d, v%d
v_cvt_pk_bf16_f32 v%d, v%d, v%d
v_lshlrev_b32 v%d, 16, v%d
v_mul_f32 v%d, %s, v%d
v_exp_f32 v%d, v%d
v_add_f32 v%d, 1.0, v%d
v_rcp_f32 v%d, v%d
v_cvt_pk_bf16_f32 v%d, v%d, v%d
v_lshlrev_b32 v%d, 16, v%d
v_sub_f32 v%d, 1.0, v%d
v_cvt_pk_bf16_f32 v%d, v%d, v%d
v_lshlrev_b32 v%d, 16, v%d
v_lshlrev_b32 v%d, 2, v%d
s_lshl_b32 s%d, s%d, 9
s_add_u32 s%d, s%d, 0x%x
s_mov_b32 s%d, 1
s_mov_b32 s%d, 1
s_mov_b64 exec, s[%d:%d]""" % (t0, va, va, t0, va, va, t0, va, va, va, va, va, va, f2h(-math.log2(math.e)), va, va, va, va, va, va, va,
                               va, va, va, va, va, t0, va, t0, t0, t0, t0, t0, vo, vo, S_T0, S_T, S_T0, S_T0, WS_G, S_MSK, S_MSK + 1, S_MSK, S_MSK + 1))
    q += L("buffer_store_dword v%d, v%d, s[%d:%d], s%d offen sc1" % (va, vo, S_WS, S_WS + 3, S_T0), tag="pub1")
    q += L("s_add_u32 s%d, s%d, 0x%x" % (S_T0, S_T0, WS_O - WS_G))
    q += L("buffer_store_dword v%d, v%d, s[%d:%d], s%d offen sc1" % (t0, vo, S_WS, S_WS + 3, S_T0), tag="pub1")
    q += L("s_mov_b64 exec, -1")
    return p, q

def twiddle_A(TW, T):
    vs, vj, ph = T, T + 8, T + 9
    c0, c1 = T + 10, T + 11
    p = []
    p += L("s_lshl_b32 s%d, s%d, 1\ns_add_u32 s%d, s%d, s%d\nv_lshlrev_b32 v%d, 7, v2\nv_add_u32 v%d, s%d, v%d\nv_cvt_f32_u32 v%d, v%d"
           % (S_T0, S_T, S_T0, S_T0, S_RG, vs, vs, S_T0, vs, vs, vs))
    for j in range(1, 8):
        off = 32 * (j if j < 4 else 16 + j - 4)
        p += L("v_add_f32 v%d, %s, v%d" % (vs + j, f2h(off), vs))
    for e in range(2):
        if e == 1:
            for j in range(8):
                p += L("v_add_f32 v%d, %s, v%d" % (vs + j, f2h(1024.0), vs + j))
        for a in range(4):
            p += L("v_add_u32 v%d, %d, v1\nv_cvt_f32_u32 v%d, v%d\nv_mul_f32 v%d, %s, v%d" % (vj, 16 * a, vj, vj, vj, f2h(1.0 / 2048), vj))
            for jp in range(4):
                dC = TW + ((a * 2 + e) * 2 + 0) * 4 + jp
                dS = TW + ((a * 2 + e) * 2 + 1) * 4 + jp
                p += L("""v_mul_f32 v%d, v%d, v%d
v_mul_f32 v%d, v%d, v%d
v_cos_f32 v%d, v%d
v_cos_f32 v%d, v%d
v_sin_f32 v%d, v%d
v_sin_f32 v%d, v%d
v_cvt_pk_bf16_f32 v%d, v%d, v%d
v_cvt_pk_bf16_f32 v%d, v%d, v%d""" % (ph, vs + 2 * jp, vj, dS, vs + 2 * jp + 1, vj, c0, ph, c1, dS, ph, ph, dS, dS, dC, c0, c1, dS, ph, dS))
    return p

def stage1(TW, ACC, ST, FR, T):
    vk, vphi, vco, vd, vmu, vtmp = T, T + 1, T + 2, T + 3, T + 4, T + 5
    p = []
    p += L("""v_lshrrev_b32 v%d, 2, v1
v_lshlrev_b32 v%d, 1, v%d
v_and_b32 v%d, 1, v1
v_add_u32 v%d, v%d, v%d
s_lshl_b32 s%d, s%d, 4
s_lshl_b32 s%d, s%d, 3
s_add_u32 s%d, s%d, s%d
v_add_u32 v%d, s%d, v%d
v_bfe_u32 v%d, v1, 1, 1
v_cvt_f32_u32 v%d, v%d
v_mul_f32 v%d, 0x3e800000, v%d
v_add_u32 v%d, s%d, v1
v_cmp_eq_u32 vcc, 2, v%d
v_mov_b32 v%d, 0x120
v_cndmask_b32 v%d, v%d, v%d, vcc
v_cndmask_b32 v%d, v%d, 0, vcc
v_cvt_f32_u32 v%d, v%d
v_mul_f32 v%d, %s, v%d
v_mul_f32 v%d, %s, v%d
v_cos_f32 v%d, v%d
v_lshlrev_b32 v%d, 3, v2
v_cvt_f32_u32 v%d, v%d
v_add_f32 v%d, v%d, v%d
v_add_u32 v%d, s%d, v2
v_cmp_eq_u32 vcc, 0, v%d
v_cndmask_b32 v%d, 1.0, 0, vcc""" % (vk, vk, vk, vtmp, vk, vk, vtmp, S_T0, S_KB, S_T1, S_FH, S_T0, S_T0, S_T1, vk, S_T0, vk,
                                      vphi, vphi, vphi, vphi, vphi, vtmp, S_T0, vtmp, vtmp, vk, vk, vtmp, vphi, vphi,
                                      vk, vk, vco, f2h(1.0 / 18), vk, vk, f2h(1.0 / 576), vk, vco, vco, vd, vd, vd, vco, vco, vco,
                                      vtmp, S_T0, vtmp, vmu))
    sec = Sec()
    for kk in range(18):
        cur = ST + 8 * (kk & 1); prv = ST + 8 * ((kk + 1) & 1)
        ops = []
        for j in range(8):
            if kk < 2:
                ops += L("v_add_f32 v%d, %s, v%d\nv_fma_f32 v%d, v%d, v%d, v%d\nv_cos_f32 v%d, v%d" % (vtmp, f2h(32.0 * kk + j), vd, vtmp, vtmp, vk, vphi, cur + j, vtmp))
            else:
                ops += L("v_fma_f32 v%d, v%d, v%d, -v%d" % (cur + j, vco, prv + j, cur + j))
        f = FR + 4 * (kk & 1)
        for jp in range(4):
            ops += L("v_cvt_pk_bf16_f32 v%d, v%d, v%d" % (f + jp, cur + 2 * jp, cur + 2 * jp + 1))
        if kk == 0: sec.at(-1, ops)
        else: sec.stream(ops, 4 * (kk - 1), 4 * (kk - 1) + 3)
        for mi in range(4):
            sec.mfma(mf(V(ACC + 4 * mi, 4), XF(mi, kk), V(f, 4), V(ACC + 4 * mi, 4) if kk else None))
    p += sec.flatten()
    for e in range(2):
        for h in range(2):
            b = ACC + 4 * (2 * e + h)
            p += L("v_cvt_pk_bf16_f32 v%d, v%d, v%d\nv_cvt_pk_bf16_f32 v%d, v%d, v%d" % (FR + 4 * e + 2 * h, b, b + 1, FR + 4 * e + 2 * h + 1, b + 2, b + 3))
    T1 = ACC + 16; T2 = ACC + 32
    for a in range(4):
        for cs, D in ((0, T1), (1, T2)):
            for e in range(2):
                p.append(mf(V(D + 4 * a, 4), V(FR + 4 * e, 4), V(TW + ((a * 2 + e) * 2 + cs) * 4, 4), V(D + 4 * a, 4) if e else None))
    RE = ST; IM = ST + 4; t0, t1 = ST + 8, ST + 9
    for a in range(4):
        x, y = T1 + 4 * a, T2 + 4 * a
        p += L("""v_fma_f32 v%d, v%d, v%d, v%d
v_add_f32 v%d, v%d, v%d
v_cvt_pk_bf16_f32 v%d, v%d, v%d
v_fma_f32 v%d, v%d, v%d, -v%d
v_sub_f32 v%d, v%d, v%d
v_cvt_pk_bf16_f32 v%d, v%d, v%d""" % (t0, vmu, y + 2, x, t1, x + 1, y + 3, RE + a, t0, t1, t0, vmu, x + 2, y, t1, x + 3, y + 1, IM + a, t0, t1))
    for B in (RE, IM):
        p += L("v_permlane32_swap_b32 v%d, v%d\nv_permlane32_swap_b32 v%d, v%d\nv_permlane16_swap_b32 v%d, v%d\nv_permlane16_swap_b32 v%d, v%d"
               % (B, B + 2, B + 1, B + 3, B, B + 1, B + 2, B + 3))
    p += L("""s_lshl_b32 s%d, s%d, 1
s_add_u32 s%d, s%d, s%d
s_lshl_b32 s%d, s%d, 12
s_lshl_b32 s%d, s%d, 17
s_add_u32 s%d, s%d, s%d
s_lshl_b32 s%d, s%d, 4
s_add_u32 s%d, s%d, s%d
v_lshlrev_b32 v%d, 6, v0""" % (S_T0, S_T, S_T0, S_T0, S_RG, S_T0, S_T0, S_T1, S_KB, S_T1, S_T1, S_T0, S_T2, S_FH, S_T1, S_T1, S_T2, vtmp))
    assert WS_A == 0
    p += L("buffer_store_dwordx4 v[%d:%d], v%d, s[%d:%d], s%d offen sc1" % (RE, RE + 3, vtmp, S_WS, S_WS + 3, S_T1), tag="pub1")
    p += L("buffer_store_dwordx4 v[%d:%d], v%d, s[%d:%d], s%d offen offset:32 sc1" % (IM, IM + 3, vtmp, S_WS, S_WS + 3, S_T1), tag="pub1")
    lab = "L_ny%d_KN" % Ins.seq
    p += L("s_or_b32 s%d, s%d, s%d\ns_cmp_lg_u32 s%d, 0\ns_cbranch_scc1 %s" % (S_T2, S_KB, S_FH, S_T2, lab))
    o = "ny%d" % Ins.seq
    q = L("s_add_u32 s%d, s%d, %d\nv_lshlrev_b32 v%d, 1, v1\ns_mov_b64 exec, 0xffff" % (S_T0, S_T0, 18 * KB_STRIDE, vtmp), opt=o)
    for a in range(4):
        q += L("v_cvt_pk_bf16_f32 v%d, v%d, -v%d" % (ST + 10 + a, T1 + 4 * a + 2, T2 + 4 * a + 2), opt=o)
    for a in range(4):
        q += L("buffer_store_short v%d, v%d, s[%d:%d], s%d offen offset:%d sc1" % (ST + 10 + a, vtmp, S_WS, S_WS + 3, S_T0, a * 64), opt=o, tag="pub1")
        q += L("buffer_store_short_d16_hi v%d, v%d, s[%d:%d], s%d offen offset:%d sc1" % (ST + 10 + a, vtmp, S_WS, S_WS + 3, S_T0, a * 64 + 32), opt=o, tag="pub1")
    q += L("s_mov_b64 exec, -1", opt=o)
    p += q + L(lab + ":")
    return p

def kernel_A(a):
    name = "stage1_kernel"
    a.launch(name, 288, 256, 147456 + 4096)
    p = prologue_common(288)
    p += L("s_and_b32 s%d, s2, 15\ns_lshr_b32 s%d, s2, 4\ns_mov_b32 s%d, s%d" % (S_T, S_KB, S_C, S_KB))
    p += x_dma_setup(4, 5) + x_read_setup(6, 7, 5)
    for sg in range(9):
        for q in range(4):
            p += list(dma(4, S_X, S_XQ + q, 4096 + sg * 16384 + q * 4096, sg * 128, "x"))
    p += twiddle_A(32, 8)
    p += L("s_barrier", need_vm=("x",))
    p += L("v_add_u32 v8, 0x10000, v6\nv_add_u32 v9, 0x10000, v7\nv_add_u32 v10, 0x20000, v6\nv_add_u32 v11, 0x20000, v7")
    for kk in range(18):
        for mi in range(4):
            off = 4096 + (kk >> 1) * 16384 + mi * 2048
            base = 6 + (kk & 1) + 2 * (off >> 16)
            p += L("ds_read_b128 %s, v%d offset:%d" % (rs(XF(mi, kk)), base, off & 0xffff), lds_r=(4096 + (kk >> 1) * 16384, 4096 + (kk >> 1) * 16384 + 16384))
    p += stage1(32, 96, 144, 160, 168)
    p += L("s_cmp_ge_u32 s%d, 16\ns_cbranch_scc1 L_end_KN" % S_KB)
    g1, g2 = gate_code(180)
    p += g1 + g2
    emit(a, name, p, 512, accum=256)

def dft32_frags(M, T):
    vi, ph, p2, c0, c1 = T, T + 1, T + 2, T + 3, T + 4
    vg = T + 5
    p = L("v_lshlrev_b32 v%d, 2, v2\nv_cvt_f32_u32 v%d, v%d" % (vg, vg, vg))
    for a in range(2):
        p += L("v_add_u32 v%d, %d, v1\nv_cvt_f32_u32 v%d, v%d\nv_mul_f32 v%d, %s, v%d" % (vi, 16 * a, vi, vi, vi, f2h(1.0 / 32), vi))
        for jp in range(4):
            j = 2 * jp
            o0 = j if j < 4 else 16 + j - 4
            dC, dS, dN = M + (a * 3) * 4 + jp, M + (a * 3 + 1) * 4 + jp, M + (a * 3 + 2) * 4 + jp
            p += L("""v_add_f32 v%d, %s, v%d
v_add_f32 v%d, %s, v%d
v_mul_f32 v%d, v%d, v%d
v_mul_f32 v%d, v%d, v%d
v_cos_f32 v%d, v%d
v_cos_f32 v%d, v%d
v_sin_f32 v%d, v%d
v_sin_f32 v%d, v%d
v_cvt_pk_bf16_f32 v%d, v%d, v%d
v_cvt_pk_bf16_f32 v%d, v%d, v%d
v_xor_b32 v%d, 0x80008000, v%d""" % (ph, f2h(o0), vg, p2, f2h(o0 + 1), vg, ph, ph, vi, p2, p2, vi, c0, ph, c1, p2, ph, ph, p2, p2, dC, c0, c1, dS, ph, p2, dN, dS))
    return p

def stage2(M, D, Z, Wr, T, lds_base, opt=False):
    va, vw, vl, vr, t0, t1 = T, T + 1, T + 2, T + 3, T + 4, T + 5
    kw = dict(opt=opt)
    p = L("""s_lshr_b32 s%d, s%d, 4
s_and_b32 s%d, s%d, 15
s_lshl_b32 s%d, s%d, 2
s_add_u32 s%d, s%d, s%d
s_lshl_b32 s%d, s%d, 17
s_lshl_b32 s%d, s%d, 6
s_add_u32 s%d, s%d, s%d
v_lshrrev_b32 v%d, 2, v0
v_lshlrev_b32 v%d, 12, v%d
v_and_b32 v%d, 3, v0
v_lshl_add_u32 v%d, v%d, 4, v%d
s_add_u32 s%d, s%d, 0x10000""" % (S_T0, S_KB, S_T1, S_KB, S_T1, S_T1, S_T1, S_T1, S_W, S_T3, S_T0, S_T2, S_T1, S_T3, S_T3, S_T2,
                                  va, va, va, t0, va, t0, va, S_T2, S_T3), **kw)
    p += L("buffer_load_dwordx4 v[%d:%d], v%d, s[%d:%d], s%d offen sc1\nbuffer_load_dwordx4 v[%d:%d], v%d, s[%d:%d], s%d offen sc1"
           % (D, D + 3, va, S_WS, S_WS + 3, S_T3, D + 4, D + 7, va, S_WS, S_WS + 3, S_T2), **kw)
    p += L("""s_cmp_eq_u32 s%d, 18
s_cselect_b32 s%d, 578, 2
s_cselect_b32 s%d, %d, 1
s_mul_i32 s%d, s%d, s%d
s_mul_i32 s85, s85, 578
s_lshl_b32 s%d, s%d, 5
s_add_u32 s%d, s%d, s%d
v_mul_lo_u32 v%d, v1, s%d
v_add_u32 v%d, s%d, v%d
s_mov_b32 s%d, %d
v_mul_lo_u32 v%d, v2, s%d
v_add_u32 v%d, v%d, v%d""" % (S_T0, S_T2, S_T4, 16, S_T1, S_T1, S_T4, S_T0, S_T0, S_T1, S_T1, S_T0, vw, S_T2, vw, S_T1, vw, S_T2, 4 * 36992, t0, S_T2, vw, vw, t0), **kw)
    for i in range(16):
        p += L("v_mov_b32 v%d, 0" % (Wr + i), **kw)
    for aa in range(2):
        for r in range(4):
            p += L("s_mov_b32 s%d, %d" % (S_T2, (16 * aa + r) * 36992), **kw)
            p += L("buffer_load_short_d16_hi v%d, v%d, s[%d:%d], s%d offen\nbuffer_load_short_d16_hi v%d, v%d, s[%d:%d], s%d offen"
                   % (Wr + 4 * aa + r, vw, S_WR, S_WR + 3, S_T2, Wr + 8 + 4 * aa + r, vw, S_WI, S_WI + 3, S_T2), **kw)
    q = L("""s_lshl_b32 s%d, s%d, 11
s_add_u32 s%d, s%d, %d
v_lshlrev_b32 v%d, 4, v0
v_add_u32 v%d, s%d, v%d
v_lshrrev_b32 v%d, 2, v1
v_lshl_add_u32 v%d, v2, 2, v%d
v_lshlrev_b32 v%d, 6, v%d
v_and_b32 v%d, 3, v1
v_lshl_add_u32 v%d, v%d, 3, v%d
v_add_u32 v%d, s%d, v%d""" % (S_T0, S_W, S_T0, S_T0, lds_base, vl, vl, S_T0, vl, vr, vr, vr, vr, vr, t0, vr, t0, vr, vr, S_T0, vr), **kw)
    rng = (lds_base, lds_base + 8192)
    q += L("ds_write_b128 v%d, v[%d:%d]\nds_write_b128 v%d, v[%d:%d] offset:1024" % (vl, D, D + 3, vl, D + 4, D + 7), lds_w=rng, priv=True, **kw)
    for pl in range(2):
        q += L("ds_read_b64_tr_b16 v[%d:%d], v%d offset:%d\nds_read_b64_tr_b16 v[%d:%d], v%d offset:%d"
               % (D + 4 * pl, D + 4 * pl + 1, vr, pl * 32, D + 4 * pl + 2, D + 4 * pl + 3, vr, pl * 32 + 1024), lds_r=rng, priv=True, **kw)
    C = lambda a: V(M + (a * 3) * 4, 4)
    Sn = lambda a: V(M + (a * 3 + 1) * 4, 4)
    N = lambda a: V(M + (a * 3 + 2) * 4, 4)
    Ar, Ai = V(D, 4), V(D + 4, 4)
    def m(*x):
        i = mf(*x); i.opt = opt; q.append(i)
    for aa in range(2):
        zr, zi = V(Z + 4 * aa, 4), V(Z + 8 + 4 * aa, 4)
        m(zr, C(aa), Ar, None); m(zr, Sn(aa), Ai, zr); m(zi, C(aa), Ai, None); m(zi, N(aa), Ar, zi)
    for i in range(8):
        zr, zi, wr, wi = Z + i, Z + 8 + i, Wr + i, Wr + 8 + i
        q += L("v_mul_f32 v%d, v%d, v%d\nv_mul_f32 v%d, v%d, v%d\nv_fma_f32 v%d, v%d, v%d, -v%d\nv_fma_f32 v%d, v%d, v%d, v%d"
               % (t0, zi, wi, t1, zr, wi, zr, zr, wr, t0, zi, zi, wr, t1), **kw)
    for pl in range(2):
        for d in range(4):
            q += L("v_cvt_pk_bf16_f32 v%d, v%d, v%d" % (D + 4 * pl + d, Z + 8 * pl + 2 * d, Z + 8 * pl + 2 * d + 1), **kw)
    for aa in range(2):
        br, bi = V(Z + 4 * aa, 4), V(Z + 8 + 4 * aa, 4)
        m(br, Ar, C(aa), None); m(br, Ai, N(aa), br); m(bi, Ai, C(aa), None); m(bi, Ar, Sn(aa), bi)
    for pl in range(2):
        for d in range(4):
            q += L("v_cvt_pk_bf16_f32 v%d, v%d, v%d" % (Wr + 4 * pl + d, Z + 8 * pl + 2 * d, Z + 8 * pl + 2 * d + 1), **kw)
        q += L("v_permlane16_swap_b32 v%d, v%d\nv_permlane16_swap_b32 v%d, v%d" % (Wr + 4 * pl, Wr + 4 * pl + 2, Wr + 4 * pl + 1, Wr + 4 * pl + 3), **kw)
    q += L("""v_and_b32 v%d, 31, v0
v_lshlrev_b32 v%d, 12, v%d
v_lshrrev_b32 v%d, 5, v0
v_lshl_add_u32 v%d, v%d, 4, v%d
s_add_u32 s%d, s%d, 0x%x""" % (va, va, va, t0, va, t0, va, S_T3, S_T3, WS_B), **kw)
    q += L("buffer_store_dwordx4 v[%d:%d], v%d, s[%d:%d], s%d offen sc1\nbuffer_store_dwordx4 v[%d:%d], v%d, s[%d:%d], s%d offen offset:32 sc1"
           % (Wr, Wr + 3, va, S_WS, S_WS + 3, S_T3, Wr + 4, Wr + 7, va, S_WS, S_WS + 3, S_T3), tag="pub2", **kw)
    return p, q

def kernel_B(a):
    name = "stage2_kernel"
    a.launch(name, 289, 256, 8192)
    p = prologue_common(289)
    p += L("s_mov_b32 s%d, s2" % S_KB)
    l, c = stage2(8, 32, 40, 56, 72, 0)
    p += l + dft32_frags(8, 80) + c
    emit(a, name, p, 96, check=False)

def kernel_D(a):
    name = "reduce_kernel"
    a.launch(name, 576, 256, 0)
    p = prologue_common(576)
    p += L("""s_lshl_b32 s%d, s2, 2
s_add_u32 s%d, s%d, s%d
s_lshl_b32 s%d, s%d, 14
s_add_u32 s%d, s%d, 0x%x
v_lshlrev_b32 v3, 4, v0""" % (S_T0, S_T0, S_T0, S_W, S_T1, S_T0, S_T1, S_T1, WS_P))
    for i in range(16):
        if i % 4 == 0 and i: p += L("s_add_u32 s%d, s%d, 4096" % (S_T1, S_T1))
        p += L("buffer_load_dwordx4 v[%d:%d], v3, s[%d:%d], s%d offen offset:%d" % (16 + 4 * i, 19 + 4 * i, S_WS, S_WS + 3, S_T1, (i % 4) * 1024))
    p += L("""s_lshr_b32 s%d, s%d, 4
s_mul_i32 s%d, s%d, 57
s_lshr_b32 s%d, s%d, 9
s_mul_i32 s%d, s%d, 9
s_sub_u32 s%d, s%d, s%d
s_lshl_b32 s%d, s%d, 7
s_lshr_b32 s%d, s%d, 2
s_and_b32 s%d, s%d, 3
s_lshl_b32 s%d, s%d, 5
s_add_u32 s%d, s%d, s%d
s_and_b32 s%d, s%d, 3""" % (S_T2, S_T0, S_T, S_T2, S_T, S_T, S_T3, S_T, S_T2, S_T2, S_T3, S_T2, S_T2, S_T3, S_T0, S_T3, S_T3, S_T3, S_T3, S_T2, S_T2, S_T3, S_T3, S_T0))
    p += L("""s_and_b32 s%d, s%d, 1
s_lshl_b32 s%d, s%d, 10
s_lshr_b32 s%d, s%d, 1
s_add_u32 s%d, s%d, s%d
s_lshl_b32 s%d, s%d, 1
s_add_u32 s%d, s%d, s%d
s_mul_i32 s%d, s%d, 1152
s_add_u32 s%d, s%d, s%d
v_and_b32 v4, 31, v0
v_mul_u32_u24 v4, %d, v4
v_lshrrev_b32 v5, 5, v0
v_lshl_add_u32 v4, v5, 4, v4
s_mov_b32 s%d, 0x3f80
s_mov_b32 s%d, 0x3f800000""" % (S_T4, S_T3, S_T4, S_T4, S_T3, S_T3, S_T4, S_T4, S_T3, S_T3, S_T, S_T4, S_T4, S_T3, S_T4, S_T4, S_T2, S_T2, S_T4, 32 * 1152, S_T0, S_T1))
    for i in range(16):
        for d in range(4):
            r = 16 + 4 * i + d
            if i == 0:
                p += L("v_lshlrev_b32 v%d, 16, v%d\nv_and_b32 v%d, 0xffff0000, v%d" % (6 + 2 * d, r, 7 + 2 * d, r))
            else:
                p += L("v_lshlrev_b32 v14, 16, v%d\nv_and_b32 v15, 0xffff0000, v%d\nv_add_f32 v%d, v%d, v14\nv_add_f32 v%d, v%d, v15" % (r, r, 6 + 2 * d, 6 + 2 * d, 7 + 2 * d, 7 + 2 * d))
    for d in range(4):
        p += L("v_cvt_pk_bf16_f32 v%d, v%d, v%d" % (16 + d, 6 + 2 * d, 7 + 2 * d))
    p += L("v_permlane16_swap_b32 v16, v18\nv_permlane16_swap_b32 v17, v19")
    p += L("buffer_store_dwordx4 v[16:19], v4, s[%d:%d], s%d offen" % (S_OUT, S_OUT + 3, S_T2))
    emit(a, name, p, 80)

def stepD_loads(RAW, NY, T, opt=False):
    kw = dict(opt=opt)
    va, vn = T, T + 1
    p = L("""s_lshl_b32 s%d, s%d, 1
s_add_u32 s%d, s%d, s%d
s_lshl_b32 s%d, s%d, 12
s_add_u32 s%d, s%d, 0x%x
s_lshl_b32 s%d, s%d, 17
s_add_u32 s%d, s%d, s%d
v_lshlrev_b32 v%d, 4, v0
s_add_u32 s%d, s%d, %d
v_lshrrev_b32 v%d, 1, v2
v_lshlrev_b32 v%d, 6, v%d
v_and_b32 v%d, 1, v2
v_lshl_add_u32 v%d, v%d, 4, v%d""" % (S_T0, S_T, S_T0, S_T0, S_RG, S_T0, S_T0, S_T0, S_T0, WS_B, S_T1, S_KB, S_T1, S_T1, S_T0, va,
                                       S_T0, S_T0, 18 * KB_STRIDE, vn, vn, vn, NY, vn, NY, vn), **kw)
    for i in range(4):
        p += L("buffer_load_dwordx4 v[%d:%d], v%d, s[%d:%d], s%d offen offset:%d sc1" % (RAW + 4 * i, RAW + 4 * i + 3, va, S_WS, S_WS + 3, S_T1, i * 1024), **kw)
    for e in range(2):
        for pl in range(2):
            r = NY + (e * 2 + pl) * 4
            p += L("buffer_load_dwordx4 v[%d:%d], v%d, s[%d:%d], s%d offen offset:%d sc1" % (r, r + 3, vn, S_WS, S_WS + 3, S_T0, e * 128 + pl * 32), **kw)
    return p

def stepD(RAW, NY, DER, TW, ACC, VG, T, stage_base, y_base, opt=False):
    kw = dict(opt=opt)
    vl, vr, vs, ph, p2, c0, c1, vj = T, T + 1, T + 2, T + 3, T + 4, T + 5, T + 6, T + 7
    rng = (stage_base, stage_base + 16384)
    p = L("""s_lshl_b32 s%d, s%d, 12
s_add_u32 s%d, s%d, %d
v_lshlrev_b32 v%d, 4, v0
v_add_u32 v%d, s%d, v%d
v_lshrrev_b32 v%d, 2, v1
v_lshl_add_u32 v%d, v2, 3, v%d
v_lshlrev_b32 v%d, 6, v%d
v_and_b32 v%d, 3, v1
v_lshl_add_u32 v%d, v%d, 3, v%d
v_add_u32 v%d, s%d, v%d""" % (S_T0, S_W, S_T0, S_T0, stage_base, vl, vl, S_T0, vl, vr, vr, vr, vr, vr, ph, vr, ph, vr, vr, S_T0, vr), **kw)
    for i in range(4):
        p += L("ds_write_b128 v%d, v[%d:%d] offset:%d" % (vl, RAW + 4 * i, RAW + 4 * i + 3, i * 1024), lds_w=rng, priv=True, tag="lds", **kw)
    for e in range(2):
        for pl in range(2):
            r = RAW + (e * 2 + pl) * 4
            o = e * 2048 + pl * 32
            p += L("ds_read_b64_tr_b16 v[%d:%d], v%d offset:%d\nds_read_b64_tr_b16 v[%d:%d], v%d offset:%d" % (r, r + 1, vr, o, r + 2, r + 3, vr, o + 256),
                   lds_r=rng, priv=True, tag="lds", **kw)
    p += L("v_add_u32 v%d, s%d, v1\nv_cmp_eq_u32 vcc, 0, v%d\nv_lshlrev_b32 v%d, 3, v2\nv_cvt_f32_u32 v%d, v%d" % (ph, S_KB, ph, vj, vj, vj), **kw)
    for e in range(2):
        br, bi = RAW + e * 8, RAW + e * 8 + 4
        x3, x4 = NY + e * 8, NY + e * 8 + 4
        for d in range(4):
            p += L("""v_xor_b32 v%d, 0x80008000, v%d
v_xor_b32 v%d, 0x80008000, v%d
v_cndmask_b32 v%d, v%d, v%d, vcc
v_cndmask_b32 v%d, v%d, v%d, vcc""" % (DER + d, bi + d, x4 + d, x4 + d, x3 + d, bi + d, x3 + d, x4 + d, br + d, x4 + d), **kw)
        for u in range(2):
            p += L("""s_lshl_b32 s%d, s%d, 10
s_lshl_b32 s%d, s%d, 1
s_add_u32 s%d, s%d, s%d
s_add_u32 s%d, s%d, s%d
s_add_u32 s%d, s%d, %d
v_lshlrev_b32 v%d, 5, v1
v_add_u32 v%d, s%d, v%d
v_cvt_f32_u32 v%d, v%d
v_mul_f32 v%d, %s, v%d""" % (S_T0, S_FH, S_T1, S_T, S_T0, S_T0, S_T1, S_T0, S_T0, S_RG, S_T0, S_T0, 512 * u, vs, vs, S_T0, vs, vs, vs, vs, f2h(1.0 / 2048), vs), **kw)
            for jp in range(4):
                p += L("""v_add_f32 v%d, %s, v%d
v_add_f32 v%d, %s, v%d
v_mul_f32 v%d, v%d, v%d
v_mul_f32 v%d, v%d, v%d
v_cos_f32 v%d, v%d
v_cos_f32 v%d, v%d
v_sin_f32 v%d, v%d
v_sin_f32 v%d, v%d
v_cvt_pk_bf16_f32 v%d, v%d, v%d
v_cvt_pk_bf16_f32 v%d, v%d, v%d""" % (ph, f2h(32.0 * e + 2 * jp), vj, p2, f2h(32.0 * e + 2 * jp + 1), vj, ph, ph, vs, p2, p2, vs, c0, ph, c1, p2, ph, ph, p2, p2,
                                       TW + jp, c0, c1, TW + 4 + jp, ph, p2), **kw)
            yr, yi = V(ACC + 8 * u, 4), V(ACC + 8 * u + 4, 4)
            for d, x, t, c in ((yr, br, TW, yr if e else None), (yr, DER, TW + 4, yr), (yi, x3, TW, yi if e else None), (yi, x4, TW + 4, yi)):
                i = mf(d, V(x, 4), V(t, 4), c); i.opt = opt; p.append(i)
    p += L("s_lshl_b32 s%d, s%d, 11\ns_add_u32 s%d, s%d, %d\nv_lshlrev_b32 v%d, 4, v0\nv_add_u32 v%d, s%d, v%d" % (S_T0, S_W, S_T0, S_T0, y_base, vl, vl, S_T0, vl), **kw)
    for u in range(2):
        for r in range(8):
            p += L("v_mul_f32 v%d, v%d, v%d" % (ACC + 8 * u + r, ACC + 8 * u + r, VG + u), **kw)
        for d in range(4):
            p += L("v_cvt_pk_bf16_f32 v%d, v%d, v%d" % (ACC + 8 * u + d, ACC + 8 * u + 2 * d, ACC + 8 * u + 2 * d + 1), **kw)
        p += L("ds_write_b128 v%d, v[%d:%d] offset:%d" % (vl, ACC + 8 * u, ACC + 8 * u + 3, u * 1024), lds_w=(y_base, y_base + 8192), tag="lds", **kw)
    return p

def irfft_setup(KF, T, kb_sreg, opt=False):
    kw = dict(opt=opt)
    p = L("s_lshl_b32 s%d, s%d, 4\nv_lshlrev_b32 v%d, 2, v2\nv_add_u32 v%d, s%d, v%d\nv_cmp_eq_u32 vcc, 0, v%d\nv_cvt_f32_u32 v%d, v%d"
          % (S_T0, kb_sreg, T, T, S_T0, T, T, T, T), **kw)
    for j in range(4):
        p += L("v_add_f32 v%d, %s, v%d\nv_mul_f32 v%d, %s, v%d" % (KF + j, f2h(float(j)), T, KF + j, f2h(1.0 / 576), KF + j), **kw)
    p += L("v_cndmask_b32 v%d, v%d, 0.5, vcc\nv_mov_b32 v%d, 0x3e800000\nv_cndmask_b32 v%d, v%d, 0, vcc\nv_cndmask_b32 v%d, 1.0, 0.5, vcc"
           % (KF + 4, KF, KF + 5, KF + 5, KF + 5, KF + 6), **kw)
    return p

def irfft_frag(F, KF, VD, T, sq, opt=False):
    kw = dict(opt=opt)
    p = []
    for jp in range(4):
        for h in range(2):
            j = 2 * jp + h
            if j < 4: p += L("v_mul_f32 v%d, v%d, v%d" % (T + h, VD, KF + j), **kw)
            elif j == 4: p += L("v_fma_f32 v%d, v%d, v%d, v%d" % (T + h, VD, KF + 4, KF + 5), **kw)
            else: p += L("v_fma_f32 v%d, v%d, v%d, s%d" % (T + h, VD, KF + j - 4, sq), **kw)
        p += L("v_cos_f32 v%d, v%d\nv_cos_f32 v%d, v%d" % (T, T, T + 1, T + 1), **kw)
        if jp in (0, 2): p += L("v_mul_f32 v%d, v%d, v%d" % (T, T, KF + 6), **kw)
        p += L("v_cvt_pk_bf16_f32 v%d, v%d, v%d" % (F + jp, T, T + 1), **kw)
    return p

S_Q, S_KB2, S_NL = 94, 95, 96
KS_ORDER = [0, 1, 2, 3, 4, 5, 8, 6, 7]
def HF(mi, ks):
    n = KS_ORDER.index(ks) * 8 + mi
    return XF(n & 3, n >> 2)
SET = [32, 64, 96, 128]
FB = 160
TMP = 184
V_DX, V_DW, V_DH, V_DD = 3, 4, 5, 6
V_RW = 7
V_RX = 13
V_HW, V_HH, V_L16, V_L16B, V_ST = 19, 20, 21, 22, 23
V_SIL = 24

def kernel_C(a, BI=1, spectral=True):
    name = NAME + "_kernel"
    a.launch(name, 256, 256, 163840)
    p = prologue_common(256) + ids_tc()
    t0, t1 = TMP, TMP + 1
    p += x_dma_setup(V_DX, t0)
    p += L("""v_lshrrev_b32 v%d, 3, v0
s_lshl_b32 s%d, s%d, 3
v_add_u32 v%d, s%d, v%d
v_mul_u32_u24 v%d, 1152, v%d
v_mul_u32_u24 v%d, 9216, v%d
v_bfe_u32 v%d, v0, 1, 2
v_and_b32 v%d, 1, v2
s_lshl_b32 s%d, s%d, 1
v_or_b32 v%d, s%d, v%d
v_xor_b32 v%d, v%d, v%d
v_lshl_add_u32 v%d, v%d, 5, v%d
v_xor_b32 v%d, v%d, v2
v_lshl_add_u32 v%d, v%d, 5, v%d
v_and_b32 v%d, 1, v0
v_lshl_add_u32 v%d, v%d, 4, v%d
v_lshl_add_u32 v%d, v%d, 4, v%d
s_mul_i32 s%d, s%d, 576
s_and_b32 s%d, s%d, 1
s_lshl_b32 s%d, s%d, 6
s_add_u32 s%d, s%d, s%d
v_add_u32 v%d, s%d, v%d""" % (V_DW, S_T0, S_W, V_DW, S_T0, V_DW, V_DD, V_DW, V_DW, V_DW, t0, t1, S_T0, S_FH, t1, S_T0, t1, t1, t1, t0, V_DW, t1, V_DW,
                               t1, t0, V_DD, t1, V_DD, t0, V_DW, t0, V_DW, V_DD, t0, V_DD,
                               S_T0, S_C, S_T1, S_C, S_T2, S_T1, S_T2, S_T2, S_T0, V_DW, S_T2, V_DW))
    for kk in range(18):
        p += L("s_mov_b32 s%d, %d" % (S_KK + kk, kk * 32 * 9216))
    pro_dma_at = len(p)
    late = L("""v_lshrrev_b32 v%d, 2, v0
s_lshl_b32 s%d, s%d, 4
v_add_u32 v%d, s%d, v%d
v_mul_u32_u24 v%d, 9216, v%d
v_bfe_u32 v%d, v0, 1, 1
v_lshrrev_b32 v%d, 5, v0
v_xor_b32 v%d, v%d, v%d
v_lshl_add_u32 v%d, v%d, 5, v%d
v_and_b32 v%d, 1, v0
v_lshl_add_u32 v%d, v%d, 4, v%d
s_cmp_eq_u32 s%d, 0
s_cselect_b32 s%d, 512, 0
s_add_u32 s%d, s%d, s%d
v_add_u32 v%d, s%d, v%d
s_cmp_lt_u32 s%d, 2
s_cselect_b32 s%d, s%d, s%d
s_cselect_b32 s%d, s%d, s%d
s_mov_b32 s%d, %d
s_mov_b32 s%d, 0x20000""" % (V_DH, S_T2, S_FH, V_DH, S_T2, V_DH, V_DH, V_DH, t0, t1, t0, t0, t1, V_DH, t0, V_DH, t0, V_DH, t0, V_DH,
                              S_T1, S_T2, S_T2, S_T2, S_T0, V_DH, S_T2, V_DH, S_W, S_WH, S_WG, S_WU, S_WH + 1, S_WG + 1, S_WU + 1, S_WH + 2, 576 * 9216, S_WH + 3))
    late += L("s_mul_i32 s%d, s%d, %d\ns_mul_i32 s%d, s%d, %d\ns_add_u32 s%d, s%d, s%d" % (S_T0, S_C, 288 * 1152, S_T2, S_T1, 32 * 1152, S_DK, S_T0, S_T2))
    for ks in range(1, 8):
        late += L("s_add_u32 s%d, s%d, %d" % (S_DK + ks, S_DK, ks * 32 * 1152))
    late += L("s_cmp_eq_u32 s%d, 0\ns_cselect_b32 s%d, %d, 0\ns_add_u32 s%d, s%d, s%d" % (S_T1, S_T2, 256 * 1152, S_DK + 8, S_T0, S_T2))
    late += L("""v_lshrrev_b32 v%d, 2, v1
v_lshlrev_b32 v%d, 7, v%d
v_lshl_add_u32 v%d, v2, 10, v%d
v_and_b32 v%d, 3, v1
v_lshl_add_u32 v%d, v%d, 3, v%d
v_bfe_u32 v%d, v1, 3, 1
v_and_b32 v%d, 1, v2
v_lshl_add_u32 v%d, v%d, 1, v%d
s_lshl_b32 s%d, s%d, 1
v_xor_b32 v%d, s%d, v%d
v_lshl_add_u32 v%d, v%d, 5, v%d
v_xor_b32 v%d, 32, v%d""" % (V_RW, V_RW, V_RW, V_RW, V_RW, t0, V_RW, t0, V_RW, t0, t1, t0, t1, t0, S_T0, S_FH, t0, S_T0, t0, V_RW, t0, V_RW, V_RW + 3, V_RW))
    late += x_read_setup(V_RX, V_RX + 3, t0)
    for b in (V_RW, V_RW + 3, V_RX, V_RX + 3):
        late += L("v_add_u32 v%d, 0x10000, v%d\nv_add_u32 v%d, 0x20000, v%d" % (b + 1, b, b + 2, b))
    late += L("""v_lshlrev_b32 v%d, 4, v0
v_add_u32 v%d, 0x10000, v%d
s_lshl_b32 s%d, s%d, 13
s_lshl_b32 s%d, s%d, 12
s_add_u32 s%d, s%d, s%d
v_add_u32 v%d, s%d, v%d
s_lshl_b32 s%d, s%d, 3
s_add_u32 s%d, s%d, s%d
v_add_u32 v%d, s%d, v%d
s_mul_i32 s%d, s%d, %d
s_lshl_b32 s%d, s%d, 16
s_add_u32 s%d, s%d, s%d
s_lshl_b32 s%d, s%d, 10
s_add_u32 s%d, s%d, s%d
v_add_u32 v%d, s%d, v%d
s_mov_b32 s%d, 0x3e800000
s_mov_b32 s%d, %s""" % (V_L16, V_L16B, V_L16, S_T0, S_FH, S_T1, S_RG, S_T0, S_T0, S_T1, V_HW, S_T0, V_L16, S_T0, S_FH, S_T0, S_T0, S_T1, V_HH, S_T0, V_L16B,
                         S_T0, S_T, 9 * 16 * 16384, S_T1, S_W, S_T0, S_T0, S_T1, S_T1, S_C, S_T0, S_T0, S_T1, V_ST, S_T0, V_L16, S_Q, S_NL, f2h(-math.log2(math.e))))
    G = []
    def grp(kind, nm, need, **kw):
        d = dict(kind=kind, nm=nm, need=need, bar=False, xr=[], rate=2); d.update(kw); G.append(d); return d
    for sg in range(9):
        for tau in range(4):
            mat = 'G' if tau < 2 else 'U'
            g = grp('SB', 8, [(mat, 0, 2 * sg), (mat, 0, 2 * sg + 1)], sg=sg, tau=tau, rate=2)
            if tau == 3 or (sg == 0 and tau == 1): g['bar'] = True
            if sg < 8 and tau in (1, 2): g['xr'] = [('x', sg + 1, q) for q in range(4)]
    passes = [('G', 1, 2), ('U', 1, 3), ('H', 0, 0), ('G', 2, 1), ('U', 2, 2), ('G', 3, 3), ('U', 3, 0)]
    pstart = {}
    for pi, (mat, b, st) in enumerate(passes):
        pstart[pi] = len(G)
        for sl in range(6):
            for ap in range(2):
                g = grp('P1', 12, [(mat, b, 3 * sl + e) for e in range(3)], mat=mat, b=b, st=st, sl=sl, ap=ap, pi=pi)
                if ap == 1 and (sl % BI == BI - 1): g['bar'] = True
    p2start = len(G)
    for cb in range(9):
        for gi in range(3):
            g = grp('P2', 24, [('D', cb, KS_ORDER[3 * gi + e]) for e in range(3)], cb=cb, gi=gi, rate=4)
            g['bar'] = True
    G[-1]['bar'] = False
    NG = len(G)
    iv = []; n = 0
    for g in G:
        if g['bar']: n += 1
        iv.append(n)
    first = {}; last = {}; order = []
    def use(key, i):
        if key not in first: first[key] = i; order.append(key)
        last[key] = i
    for q in range(4): use(('x', 0, q), 0)
    for k in G[0]['need']: use(k, 0)
    for gi, g in enumerate(G):
        if gi + 1 < NG:
            for k in G[gi + 1]['need']: use(k, iv[gi])
        for k in g['xr']: use(k, iv[gi])
    order.sort(key=lambda k: first[k])
    fixed = {}
    for sg in range(9):
        s = 8 * (sg % 5)
        for e in range(2):
            fixed[('G', 0, 2 * sg + e)] = s + e; fixed[('U', 0, 2 * sg + e)] = s + 2 + e
        for q in range(4): fixed[('x', sg, q)] = s + 4 + q
    gU3 = pstart[6]
    res = [
        (0, 4, pstart[0], gU3 + 6), (4, 4, pstart[2], gU3 + 9), (8, 4, pstart[5], gU3 + 11), (12, 4, pstart[5] + 10, p2start + 1),
        (16, 2, pstart[3], p2start), (18, 4, pstart[5] + 10, p2start + 2)]
    resv = {pg: [] for pg in range(40)}
    for f, npg, ga, gb in res:
        for pg in range(f, f + npg): resv[pg].append((iv[ga], iv[gb]))
    free_at = [-1] * 40
    phys = {}; issue_grp = {}
    qi = 0
    def ioff(k): return {'x': k[1] * 128, 'G': k[1] * 128, 'U': k[1] * 128, 'H': 0, 'D': k[1] * 128}[k[0]]
    def try_alloc(k, cur):
        cands = [fixed[k]] if k in fixed else list(range(39, -1, -1))
        for pg in cands:
            if free_at[pg] > cur: continue
            if pg == 0 and ioff(k) > 0: continue
            if any(not (last[k] < a_ or cur > b_) for a_, b_ in resv[pg]): continue
            return pg
        return None
    while qi < len(order):
        pg = try_alloc(order[qi], -1)
        if pg is None: break
        phys[order[qi]] = pg; free_at[pg] = last[order[qi]] + 1; issue_grp[order[qi]] = -1; qi += 1
    for gi, g in enumerate(G):
        g['dma'] = []
        while qi < len(order) and len(g['dma']) < g['rate']:
            k = order[qi]
            pg = try_alloc(k, iv[gi])
            if pg is None: break
            assert iv[gi] < first[k], ("late DMA", k, gi)
            phys[k] = pg; free_at[pg] = last[k] + 1; issue_grp[k] = gi; g['dma'].append(k); qi += 1
    assert qi == len(order), order[qi]
    cum = [0]
    for g in G: cum.append(cum[-1] + g['nm'])
    bar_grp = {iv[gi]: gi for gi, g in enumerate(G) if g['bar']}
    sl = sorted((cum[bar_grp[first[k]]] - cum[issue_grp[k] + 1], k) for k in order if issue_grp[k] >= 0)
    print("min DMA slack (mfmas):", sl[:6], file=sys.stderr)
    def mkdma(k):
        tag = "pg%d" % first[k]
        pb = phys[k] * 4096
        if k[0] == 'x': return dma(V_DX, S_X, S_XQ + k[2], pb, k[1] * 128, tag)
        if k[0] == 'G': return dma(V_DW, S_WG, S_KK + k[2], pb, k[1] * 128, tag)
        if k[0] == 'U': return dma(V_DW, S_WU, S_KK + k[2], pb, k[1] * 128, tag)
        if k[0] == 'H': return dma(V_DH, S_WH, S_KK + k[2], pb, 0, tag)
        return dma(V_DD, S_WD, S_DK + k[2], pb, k[1] * 128, tag)
    for k in order:
        if issue_grp[k] < 0:
            assert k[0] in 'xGU'
            p += list(mkdma(k))
    for i in late:
        Ins.seq += 1; i.id = Ins.seq
    p += late
    sec = Sec()
    def frag_reads(gi):
        g = G[gi]; out = []
        fb = FB + 12 * (gi & 1)
        for e, k in enumerate(g['need']):
            pb = phys[k] * 4096
            if k[0] in 'GU':
                ap = g['tau'] & 1 if g['kind'] == 'SB' else g['ap']
                base, o, d2 = V_RW + 3 * ap, pb, 512
            elif k[0] == 'H': base, o, d2 = V_RX, pb + g['ap'] * 2048, 256
            else: base, o, d2 = V_RX + 3, pb, 2048
            r = fb + 4 * e
            for h in range(2):
                out += L("ds_read_b64_tr_b16 v[%d:%d], v%d offset:%d" % (r + 2 * h, r + 2 * h + 1, base + (o >> 16), (o & 0xffff) + h * d2),
                         lds_r=(pb, pb + 4096), tag="f%d" % gi)
        return out
    def x_reads(sg, e):
        kk = 2 * sg + e; out = []
        pb = phys[('x', sg, 0)] * 4096
        for mi in range(4):
            o = pb + mi * 2048
            out += L("ds_read_b128 %s, v%d offset:%d" % (rs(XF(mi, kk)), V_RX + 3 * e + (o >> 16), o & 0xffff), lds_r=(pb, pb + 16384), tag="lds")
        return out
    def h_read(n):
        ks, mi = KS_ORDER[n >> 3], n & 7
        o = ks * 8192 + mi * 1024
        return L("ds_read_b128 %s, v%d offset:%d" % (rs(HF(mi, ks)), V_L16B if o >> 16 else V_L16, o & 0xffff), lds_r=(o, o + 1024), tag="lds")
    def silu_a(regs):
        out = []
        for i in range(0, len(regs), 4):
            T = V_SIL + (i & 4)
            rr = regs[i:i + 4]
            out += [I("v_mul_f32 v%d, s%d, v%d" % (T + j, S_NL, r)) for j, r in enumerate(rr)]
            out += [I("v_exp_f32 v%d, v%d" % (T + j, T + j)) for j in range(4)]
            out += [I("v_add_f32 v%d, 1.0, v%d" % (T + j, T + j)) for j in range(4)]
            out += [I("v_rcp_f32 v%d, v%d" % (T + j, T + j)) for j in range(4)]
            out += [I("v_mul_f32 v%d, v%d, v%d" % (r, r, T + j)) for j, r in enumerate(rr)]
        return out
    def silu_b(sg_, su_, b):
        out = []
        for mi in range(4):
            d = su_ + 4 * mi
            for ap in range(2):
                gq, uq = sg_ + (ap * 4 + mi) * 4, su_ + (ap * 4 + mi) * 4
                out += [I("v_mul_f32 v%d, v%d, v%d" % (gq + r, gq + r, uq + r)) for r in range(4)]
            for ap in range(2):
                gq = sg_ + (ap * 4 + mi) * 4
                out += [I("v_cvt_pk_bf16_f32 v%d, v%d, v%d" % (d + 2 * ap + h, gq + 2 * h, gq + 2 * h + 1)) for h in range(2)]
            out += L("ds_write_b128 v%d, v[%d:%d] offset:%d" % (V_HW, d, d + 3, b * 16384 + mi * 1024), lds_w=(b * 16384, b * 16384 + 16384), tag="lds")
        return out
    def silu_bH(st):
        out = []
        for mi in range(4):
            gq, uq = st + 4 * mi, st + 16 + 4 * mi
            out += [I("v_mul_f32 v%d, v%d, v%d" % (gq + r, gq + r, uq + r)) for r in range(4)]
            out += [I("v_cvt_pk_bf16_f32 v%d, v%d, v%d" % (uq + h, gq + 2 * h, gq + 2 * h + 1)) for h in range(2)]
            out += L("ds_write_b64 v%d, v[%d:%d] offset:%d" % (V_HH, uq, uq + 1, mi * 1024), lds_w=(65536, 65536 + 8192), tag="lds")
        return out
    p += L("s_barrier", need_vm=("pg0",))
    p += x_reads(0, 0) + frag_reads(0) + x_reads(0, 1)
    PACC = [SET[1], SET[2]]
    YR = [SET[3], SET[0]]
    OMG = TMP; VG = TMP + 8; KF = [TMP + 10, TMP + 17]; VD = TMP + 24; SF = TMP + 28; GT = TMP + 26
    def spectral_group(cb):
        acc = PACC[cb & 1]
        for mi in range(8):
            sec.mfma(mf(V(acc + 4 * mi, 4), V(SF, 4), V(YR[0] + 4 * mi, 4), V(acc + 4 * mi, 4)))
        o = "x3_%d" % cb; lab = "L_x3_%d_KN" % cb
        blk = L("s_cmp_lt_u32 s%d, 16\ns_cbranch_scc1 %s" % (S_KB2, lab))
        blk += irfft_frag(SF + 4, KF[1], VD, GT, S_Q, opt=o)
        for mi in range(8):
            i = mf(V(acc + 4 * mi, 4), V(SF + 4, 4), V(YR[1] + 4 * mi, 4), V(acc + 4 * mi, 4)); i.opt = o; blk.append(i)
        blk += L(lab + ":") + L("v_add_f32 v%d, %s, v%d" % (VD, f2h(64.0), VD))
        sec.at(sec.n() - 1, blk)
    def scale_ops(cb):
        acc = PACC[cb & 1]
        return [I("v_mul_f32 v%d, v%d, v%d" % (acc + 4 * mi + r, acc + 4 * mi + r, OMG + mi)) for mi in range(8) for r in range(4)]
    def out_ops(cb):
        acc = PACC[cb & 1]; out = []
        for ip in range(4):
            b = acc + 8 * ip
            out += L("s_mov_b32 s%d, 0x%x" % (S_T4, WS_P + cb * 262144 + ip * 16384))
            out += [I("v_cvt_pk_bf16_f32 v%d, v%d, v%d" % (b + d, b + 2 * d, b + 2 * d + 1)) for d in range(4)]
            out += L("buffer_store_dwordx4 v[%d:%d], v%d, s[%d:%d], s%d offen" % (b, b + 3, V_ST, S_WS, S_WS + 3, S_T4))
        return out
    gpos = {}
    pend = []
    hq = {gU3 + 2 + i: list(range(5 * i, min(48, 5 * i + 5))) for i in range(10)}
    hq[p2start] = list(range(48, 56)); hq[p2start + 1] = list(range(56, 72))
    for gi, g in enumerate(G):
        base = sec.n(); gpos[gi] = base
        fb = FB + 12 * (gi & 1)
        ms = []
        if g['kind'] == 'SB':
            st = SET[0] if g['tau'] < 2 else SET[1]
            for mi in range(4):
                for e in range(2):
                    acc = V(st + ((g['tau'] & 1) * 4 + mi) * 4, 4); kk = 2 * g['sg'] + e
                    ms.append(mf(acc, V(fb + 4 * e, 4), XF(mi, kk), acc if kk else None))
        elif g['kind'] == 'P1':
            for mi in range(4):
                for e in range(3):
                    acc = V(SET[g['st']] + (g['ap'] * 4 + mi) * 4, 4); kk = 3 * g['sl'] + e
                    ms.append(mf(acc, V(fb + 4 * e, 4), XF(mi, kk), acc if kk else None))
        else:
            for mi in range(8):
                for e in range(3):
                    acc = V(PACC[g['cb'] & 1] + 4 * mi, 4)
                    ms.append(mf(acc, V(fb + 4 * e, 4), HF(mi, KS_ORDER[3 * g['gi'] + e]), acc if (g['gi'] or e) else None))
        ms[0].need_lgkm = ("f%d" % gi,)
        for m_ in ms: sec.mfma(m_)
        nm = g['nm']
        gap = 0
        if g['bar']:
            sec.at(base, L("s_barrier", need_vm=("pg%d" % iv[gi],), need_lgkm=("lds",))); gap = 1
        if gi == pstart[0]:
            sw = L("""v_lshrrev_b32 v%d, 2, v1
v_lshl_add_u32 v%d, v2, 3, v%d
v_lshlrev_b32 v%d, 6, v%d
v_and_b32 v%d, 3, v1
v_lshl_add_u32 v%d, v%d, 3, v%d
v_and_b32 v%d, 1, v2
v_xor_b32 v%d, s%d, v%d
v_lshl_add_u32 v%d, v%d, 5, v%d
v_lshrrev_b32 v%d, 2, v1
v_lshl_add_u32 v%d, v2, 2, v%d
v_bfe_u32 v%d, v%d, 1, 2
v_xor_b32 v%d, s%d, v%d
v_lshlrev_b32 v%d, 7, v%d
v_lshl_add_u32 v%d, v%d, 5, v%d
v_lshl_add_u32 v%d, v%d, 3, v%d""" % (V_RX, V_RX, V_RX, V_RX, V_RX, t0, V_RX, t0, V_RX, t1, t1, S_FH, t1, V_RX, t1, V_RX,
                                        V_RX + 3, V_RX + 3, V_RX + 3, t1, V_RX + 3, t1, S_W, t1, V_RX + 3, V_RX + 3, V_RX + 3, t1, V_RX + 3, V_RX + 3, t0, V_RX + 3))
            for b in (V_RX, V_RX + 3):
                sw += L("v_add_u32 v%d, 0x10000, v%d\nv_add_u32 v%d, 0x20000, v%d" % (b + 1, b, b + 2, b))
            sec.stream(sw, base, base + 22)
        rd = frag_reads(gi + 1) if gi + 1 < NG else []
        extra = []
        if g['xr']: extra = x_reads(g['sg'] + 1, g['tau'] - 1)
        for n_ in hq.get(gi, []): extra += h_read(n_)
        if g['kind'] == 'P2' and g['cb'] == 0 and g['gi'] == 2 and spectral:
            for y in range(2):
                for mi in range(8):
                    o = 18 * 4096 + y * 8192 + mi * 1024
                    extra += L("ds_read_b128 v[%d:%d], v%d offset:%d" % (YR[y] + 4 * mi, YR[y] + 4 * mi + 3, V_L16B, o & 0xffff), lds_r=(o, o + 1024), tag="lds")
        slots = list(range(gap, nm))
        if g['kind'] == 'P2' and g['cb'] == 0 and g['gi'] == 1: items = extra + rd
        else: items = rd + extra
        span = max(len(items), min(len(slots), nm // 2))
        per = 1 if len(items) <= len(slots) - 2 else 2
        for k_, it in enumerate(items):
            sec.at(base + slots[min(len(slots) - 1, k_ // per)], it)
        used = (len(items) + per - 1) // per
        rest = slots[min(used, len(slots) - 1):]
        nd = len(g['dma'])
        for k_, key in enumerate(g['dma']):
            m0, d = mkdma(key)
            if len(rest) >= 2 * nd:
                stp = len(rest) // nd
                sec.at(base + rest[k_ * stp], m0); sec.at(base + rest[k_ * stp + 1], d)
            else:
                s_ = slots[max(0, len(slots) - nd + k_)]
                sec.at(base + s_, [m0, d])
        end = sec.n()
        if g['kind'] == 'SB' and gi == pstart[0] - 1:
            sec.stream(silu_a(list(range(SET[0], SET[0] + 32))) + silu_b(SET[0], SET[1], 0), end + 2, end + 230)
        if g['kind'] == 'P1' and g['sl'] == 5 and g['ap'] == 1:
            pi = g['pi']
            if pi == 1: sec.stream(silu_a(list(range(SET[2], SET[2] + 32))) + silu_b(SET[2], SET[3], 1), end - 56, end + 170)
            if pi == 2: sec.stream(silu_a(list(range(SET[0], SET[0] + 16))) + silu_bH(SET[0]), end + 28, end + 142)
            if pi == 3: sec.stream(silu_a(list(range(SET[1], SET[1] + 32))), end + 2, end + 142)
            if pi == 4: sec.stream(silu_b(SET[1], SET[2], 2), end + 2, end + 60)
            if pi == 5:
                sec.stream(silu_a(list(range(SET[3], SET[3] + 32))), end + 2, end + 142)
            if pi == 6: sec.stream(silu_b(SET[3], SET[0], 3), end + 1, end + 22)
        if gi == pstart[5] + 5:
            blk = L("s_lshl_b32 s%d, s%d, 9\ns_add_u32 s%d, s%d, 0x%x\nv_lshlrev_b32 v%d, 2, v1" % (S_T0, S_T, S_T0, S_T0, WS_O, GT))
            for mi in range(8):
                blk += L("buffer_load_dword v%d, v%d, s[%d:%d], s%d offen offset:%d sc1" % (OMG + mi, GT, S_WS, S_WS + 3, S_T0, mi * 64))
            if spectral:
                blk += L("s_lshl_b32 s%d, s%d, 7\ns_add_u32 s%d, s%d, s%d\ns_sub_u32 s%d, s%d, 0x%x" % (S_T1, S_W, S_T0, S_T0, S_T1, S_T0, S_T0, WS_O - WS_G))
                for u in range(2):
                    blk += L("buffer_load_dword v%d, v%d, s[%d:%d], s%d offen offset:%d sc1" % (VG + u, GT, S_WS, S_WS + 3, S_T0, u * 64))
                blk += L("s_mov_b32 s%d, s%d\ns_add_u32 s%d, s%d, 14\ns_cmp_lt_u32 s%d, 18\ns_cselect_b32 s%d, s%d, 0" % (S_KB, S_C, S_KB2, S_C, S_KB2, S_KB2, S_KB2))
                blk += stepD_loads(SET[0], SET[0] + 16, GT)
            sec.at(sec.n() - 1, blk)
        if gi == pstart[5] + 10 and spectral:
            blk = L("v_mul_f32 v%d, %s, v%d\nv_mul_f32 v%d, %s, v%d" % (VG, f2h(2.0 / (2048 * 576)), VG, VG + 1, f2h(2.0 / (2048 * 576)), VG + 1))
            blk += stepD(SET[0], SET[0] + 16, SET[1], SET[1] + 4, SET[1] + 12, VG, SET[2], 12 * 4096, 18 * 4096)
            blk += irfft_setup(KF[0], GT, S_KB)
            blk += L("s_cmp_lt_u32 s%d, 16\ns_cbranch_scc1 L_d2_KN" % S_KB2)
            blk += L("s_mov_b32 s%d, s%d" % (S_KB, S_KB2), opt="d2")
            blk += stepD_loads(SET[0], SET[0] + 16, GT, opt="d2")
            blk += stepD(SET[0], SET[0] + 16, SET[1], SET[1] + 4, SET[1] + 12, VG, SET[2], 12 * 4096, 20 * 4096, opt="d2")
            blk += irfft_setup(KF[1], GT, S_KB2, opt="d2")
            blk += L("s_waitcnt lgkmcnt(0)", opt="d2")
            blk += L("L_d2_KN:")
            blk += L("s_lshl_b32 s%d, s%d, 4\nv_add_u32 v%d, s%d, v1\nv_cvt_f32_u32 v%d, v%d" % (S_T0, S_W, VD, S_T0, VD, VD))
            sec.at(sec.n() - 1, blk)
        if g['kind'] == 'P2':
            cb = g['cb']
            if g['gi'] == 2:
                if cb < 8:
                    ops = scale_ops(cb)
                    sec.stream(ops, end + 1, end + 20)
                    if spectral: sec.stream(irfft_frag(SF, KF[0], VD, GT, S_Q), end - 20, end + 20)
            if g['gi'] == 0 and cb > 0:
                if spectral: spectral_group(cb - 1)
                sec.stream(out_ops(cb - 1), sec.n() + 2, sec.n() + 40)
    p += sec.flatten()
    tail = Sec(); sec = tail
    p += (irfft_frag(SF, KF[0], VD, GT, S_Q) if spectral else []) + scale_ops(8)
    if spectral:
        spectral_group(8); p += tail.flatten()
    p += out_ops(8)
    emit(a, name, p, 512, accum=256)

if __name__ == "__main__":
    a = Asm()
    kernel_A(a); kernel_B(a); kernel_C(a); kernel_D(a)
    out = sys.argv[1] if len(sys.argv) > 1 else "v1.s"
    open(out, "w").write(a.text())
```

```python
import re, sys

def R(kind, lo, n=1):
    return [(kind, lo + i) for i in range(n)]
def V(lo, n=1): return R('v', lo, n)
def A(lo, n=1): return R('a', lo, n)
def S(lo, n=1): return R('s', lo, n)
def rs(regs):
    k, lo = regs[0]
    n = len(regs)
    for i, r in enumerate(regs):
        assert r == (k, lo + i), regs
    return "%s%d" % (k, lo) if n == 1 else "%s[%d:%d]" % (k, lo, lo + n - 1)

TRANS = ("v_exp_f32", "v_rcp_f32", "v_sin_f32", "v_cos_f32", "v_log_f32", "v_rsq_f32", "v_sqrt_f32")

class Ins:
    seq = 0
    def __init__(self, text, kind, rd=(), wr=(), **kw):
        self.text = text; self.kind = kind
        self.rd = list(rd); self.wr = list(wr)
        self.lds_r = kw.get("lds_r")
        self.lds_w = kw.get("lds_w")
        self.priv = kw.get("priv", False)
        self.tag = kw.get("tag")
        self.need_vm = kw.get("need_vm", ())
        self.need_lgkm = kw.get("need_lgkm", ())
        self.opt = kw.get("opt", False)
        self.mC = kw.get("mC", ())
        self.wide = kw.get("wide", False)
        self.passes = kw.get("passes", 4)
        self.op = text.split()[0] if text else ""
        self.trans = self.op.replace("_e32", "").replace("_e64", "") in TRANS
        Ins.seq += 1
        self.id = Ins.seq
    def cost(self):
        if self.kind == 'valu': return 8 if self.trans else 4
        return 4

_reg_re = re.compile(r"\b([vas])(\d+)\b|\b([vas])\[(\d+):(\d+)\]")
def parse_regs(tok):
    out = []
    for m in _reg_re.finditer(tok):
        if m.group(1): out.append((m.group(1), int(m.group(2))))
        else: out += R(m.group(3), int(m.group(4)), int(m.group(5)) - int(m.group(4)) + 1)
    if re.search(r"\bvcc\b", tok): out.append(('s', 'vcc'))
    if re.search(r"\bm0\b", tok): out.append(('s', 'm0'))
    if re.search(r"\bexec\b", tok): out.append(('s', 'exec'))
    return out

def split_ops(s):
    out, depth, cur = [], 0, ""
    for ch in s:
        if ch == "[" or ch == "(": depth += 1
        if ch == "]" or ch == ")": depth -= 1
        if ch == "," and depth == 0:
            out.append(cur.strip()); cur = ""
        else: cur += ch
    if cur.strip(): out.append(cur.strip())
    return out

RMW = ("v_writelane_b32", "v_fmac_f32", "v_dot2c_f32_bf16", "v_permlane32_swap_b32", "v_permlane16_swap_b32")
def I(text, **kw):
    text = text.strip()
    op = text.split()[0]
    rest = text[len(op):].strip()
    ops = split_ops(rest)
    rd, wr = [], []
    if op.startswith("v_mfma"):
        wr = parse_regs(ops[0]); rd = parse_regs(ops[1]) + parse_regs(ops[2]) + parse_regs(ops[3])
        return Ins(text, 'mfma', rd, wr, mC=parse_regs(ops[3]), passes=(8 if "32x32x16" in op else 4), **kw)
    if op.startswith("ds_read"):
        return Ins(text, 'ds', parse_regs(ops[1]), parse_regs(ops[0]), **kw)
    if op.startswith("ds_write"):
        return Ins(text, 'ds', parse_regs(rest), [], **kw)
    if op.startswith("ds_bpermute") or op.startswith("ds_swizzle"):
        return Ins(text, 'ds', parse_regs(",".join(ops[1:])), parse_regs(ops[0]), **kw)
    if op.startswith("buffer_load"):
        if rest.endswith(" lds"):
            return Ins(text, 'dma', parse_regs(rest) + [('s', 'm0')], [], **kw)
        w = parse_regs(ops[0])
        r = parse_regs(",".join(ops[1:]))
        return Ins(text, 'vmem', r, w, **kw)
    if op.startswith("buffer_store"):
        return Ins(text, 'vmem', parse_regs(rest), [], wide=("x4" in op or "x3" in op), **kw)
    if op.startswith("buffer_atomic"):
        w = parse_regs(ops[0]) if " sc0" in rest else []
        return Ins(text, 'vmem', parse_regs(rest), w, **kw)
    if op == "s_barrier": return Ins(text, 'bar', **kw)
    if op in ("s_nop", "s_setprio", "s_sleep"): return Ins(text, 'nop', **kw)
    if op == "s_waitcnt": return Ins(text, 'wait', **kw)
    if op.startswith("s_cbranch") or op == "s_branch" or op == "s_endpgm":
        return Ins(text, 'br', [('s', 'scc')] if "scc" in op else ([('s', 'exec')] if "exec" in op else ([('s','vcc')] if "vcc" in op else [])), [], **kw)
    if text.endswith(":"): return Ins(text, 'label', **kw)
    if op.startswith("s_load") or op.startswith("s_mem"):
        return Ins(text, 'smem', parse_regs(",".join(ops[1:])), parse_regs(ops[0]), **kw)
    if op.startswith("s_cmp"):
        return Ins(text, 'salu', parse_regs(rest), [('s', 'scc')], **kw)
    if op.startswith("s_"):
        wr = parse_regs(ops[0]); rd = parse_regs(",".join(ops[1:]))
        if op.startswith("s_cselect") or op.startswith("s_addc"): rd.append(('s', 'scc'))
        if not (op.startswith("s_mov") or op.startswith("s_cselect") or op.startswith("s_mul") or op.startswith("s_getreg")):
            wr.append(('s', 'scc'))
        if "saveexec" in op: wr.append(('s', 'exec')); rd.append(('s', 'exec'))
        return Ins(text, 'salu', rd, wr, **kw)
    if op.startswith("v_"):
        wr = parse_regs(ops[0]); rd = parse_regs(",".join(ops[1:]))
        b = op.replace("_e32", "").replace("_e64", "")
        if b in RMW: rd += wr
        if "permlane" in b and "swap" in b: wr = wr + parse_regs(ops[1])
        return Ins(text, 'valu', rd, wr, **kw)
    raise ValueError(text)

def L(text, **kw):
    return [I(t, **kw) for t in text.strip().split("\n") if t.strip()]

class Sec:
    def __init__(self):
        self.m = []
        self.pre = []
        self.pin = {}
        self.streams = []
    def n(self): return len(self.m)
    def mfma(self, ins): self.m.append(ins); return len(self.m) - 1
    def at(self, idx, ins):
        if not isinstance(ins, list): ins = [ins]
        if idx < 0: self.pre += ins
        else: self.pin.setdefault(idx, []).extend(ins)
    def stream(self, lst, start, end):
        self.streams.append([list(lst), start, end])
    def flatten(self, cap=8):
        out = list(self.pre)
        n = len(self.m)
        st = [dict(ops=s[0], pos=0, start=s[1], end=min(s[2], n - 1), tot=sum(i.cost() for i in s[0]), done=0) for s in self.streams]
        for g in range(n):
            out.append(self.m[g])
            pins = self.pin.get(g, [])
            out += pins
            room = cap - sum(4 for p in pins if p.kind in ('ds', 'dma', 'vmem', 'salu', 'valu', 'bar'))
            act = [s for s in st if s['start'] <= g and s['pos'] < len(s['ops'])]
            while True:
                best = None; bl = -1e9
                for s in act:
                    if s['pos'] >= len(s['ops']): continue
                    span = max(1, s['end'] - s['start'] + 1)
                    target = s['tot'] * min(1.0, (g - s['start'] + 1) / span)
                    lag = target - s['done']
                    c = s['ops'][s['pos']].cost()
                    must = g >= s['end'] or lag >= 3 * 8
                    if (must or (c <= room and lag > 0)) and (lag + (1e6 if must else 0)) > bl:
                        best = s; bl = lag + (1e6 if must else 0)
                if best is None: break
                ins = best['ops'][best['pos']]
                out.append(ins); best['pos'] += 1; best['done'] += ins.cost(); room -= ins.cost()
        for s in st:
            assert s['pos'] == len(s['ops']), "stream not drained"
        return out

def check_order(prog):
    def producers(seq):
        last = {}; res = {}
        for i in seq:
            res[i.id] = {r: last.get(r) for r in i.rd}
            for r in i.wr: last[r] = i.id
        return res
    a = producers(sorted(prog, key=lambda i: i.id)); b = producers(prog)
    byid = {i.id: i for i in prog}
    bad = 0
    for k in a:
        if a[k] != b[k]:
            for r in a[k]:
                if a[k][r] != b[k][r]:
                    bad += 1
                    if bad < 10:
                        f = lambda x: byid[x].text if x else None
                        print("ORDER VIOLATION at '%s' reg %s: logical producer '%s' scheduled producer '%s'" % (byid[k].text, r, f(a[k][r]), f(b[k][r])))
    assert bad == 0, "order violations: %d" % bad

def insert_waits(prog):
    out = []
    vm = []; lg = []
    def need(lst, idx, cur_opt):
        op = lst[idx]
        return sum(1 for y in lst[idx + 1:] if (not y.opt) or (y.opt == cur_opt))
    for i in prog:
        if i.kind == 'wait':
            m = re.search(r"vmcnt\((\d+)\)", i.text)
            if m and int(m.group(1)) == 0 and not i.opt:
                for y in vm: y.done_pos = len(out)
                vm = []
            m = re.search(r"lgkmcnt\((\d+)\)", i.text)
            if m and int(m.group(1)) == 0 and not i.opt:
                for y in lg: y.done_pos = len(out)
                lg = []
            out.append(i); continue
        touched = set(i.rd) | set(i.wr)
        nv = nl = None; iv = il = -1
        for k, y in enumerate(vm):
            if (set(y.wr) & touched) or (y.tag is not None and y.tag in i.need_vm): iv = k
        for k, y in enumerate(lg):
            if (set(y.wr) & touched) or (y.tag is not None and y.tag in i.need_lgkm): il = k
        parts = []
        if iv >= 0:
            nv = min(63, need(vm, iv, i.opt)); parts.append("vmcnt(%d)" % nv)
        if il >= 0:
            nl = min(15, need(lg, il, i.opt))
            if any(y.kind == 'smem' for y in lg): nl = 0; il = len(lg) - 1
            parts.append("lgkmcnt(%d)" % nl)
        if parts:
            w = Ins("s_waitcnt " + " ".join(parts), 'wait'); w.opt = i.opt
            def retire(lst, idx):
                keep = []
                for k, y in enumerate(lst):
                    if k <= idx and (not i.opt or y.opt == i.opt):
                        y.done_pos = len(out)
                    else: keep.append(y)
                return keep
            if iv >= 0: vm = retire(vm, iv)
            if il >= 0: lg = retire(lg, il)
            out.append(w)
        if i.kind == 'need': continue
        i.pos = len(out)
        out.append(i)
        if i.kind in ('vmem', 'dma'): i.done_pos = None; vm.append(i)
        if i.kind in ('ds', 'smem'): i.done_pos = None; lg.append(i)
    return out

def states(i):
    if i.kind == 'label': return 0
    if i.op == "s_nop": return int(i.text.split()[1]) + 1
    return 1

def insert_nops(prog):
    out = []
    W = 400
    for i in prog:
        need = 0
        dist = 0
        rd = set(i.rd); wr = set(i.wr)
        for p in reversed(out[-W:]):
            req = 0
            pw = set(p.wr)
            if p.kind == 'valu':
                vw = {r for r in pw if r[0] in 'va'}
                sw = {r for r in pw if r[0] == 's'}
                if i.kind == 'mfma' and vw & rd: req = max(req, 2)
                if i.kind == 'valu':
                    if p.trans and not i.trans and vw & rd: req = max(req, 1)
                    if "permlane" in i.op and vw & rd: req = max(req, 2)
                    if ("dpp" in i.text or "row_" in i.text or "quad_perm" in i.text) and vw & rd: req = max(req, 2)
                    if ("readfirstlane" in i.op or "readlane" in i.op) and vw & rd: req = max(req, 1)
                    if sw & rd: req = max(req, 2)
                if i.kind in ('vmem', 'dma') and sw & rd: req = max(req, 5)
                if i.kind in ('salu', 'br') and sw & rd: req = max(req, 2)
            if p.kind == 'mfma':
                big = {4: 8, 8: 12}[p.passes]
                if i.kind == 'mfma':
                    c = set(i.mC); ab = rd - c
                    if pw & ab: req = max(req, big)
                    if pw & c and list(i.mC) != list(p.wr): req = max(req, {4: 6, 8: 10}[p.passes])
                elif i.kind in ('valu', 'vmem', 'ds', 'dma'):
                    if pw & (rd | wr): req = max(req, big)
                    if i.kind == 'valu' and set(p.mC) & wr: req = max(req, {4: 3, 8: 7}[p.passes])
            if p.kind == 'salu' and ('s', 'm0') in pw and i.kind == 'dma': req = max(req, 1)
            if p.kind == 'vmem' and p.wide and not p.wr and wr & {r for r in p.rd if r[0] in 'va'}: req = max(req, 2)
            if req > dist: need = max(need, req - dist)
            if not (p.opt and p.opt != i.opt): dist += states(p)
            if dist >= 20: break
        while need > 0:
            k = min(need, 16)
            n = Ins("s_nop %d" % (k - 1), 'nop'); n.opt = i.opt
            out.append(n); need -= k
        out.append(i)
    return out

def check_lds(prog):
    bars = [i.pos for i in prog if i.kind == 'bar']
    import bisect
    def bar_between(a, b):
        k = bisect.bisect_right(bars, a)
        return k < len(bars) and bars[k] < b
    acc = [i for i in prog if i.lds_r or i.lds_w]
    G = 256
    lastw = {}; lastr = {}
    bad = 0
    def rep(kind, p, i):
        nonlocal bad
        bad += 1
        if bad < 10: print("LDS %s violation: '%s' (pos %d done %s) -> '%s' (pos %d)" % (kind, p.text, p.pos, p.done_pos, i.text, i.pos))
    def ok(p, i, samegroup):
        if p.priv and i.priv:
            if p.kind == 'ds' and i.kind == 'ds': return True
            return p.done_pos is not None and p.done_pos <= i.pos
        return p.done_pos is not None and bar_between(p.done_pos, i.pos)
    for i in acc:
        if i.lds_r:
            for g in range(i.lds_r[0] // G, (i.lds_r[1] + G - 1) // G):
                ws = lastw.get(g)
                assert ws, "read of never-written LDS: %s" % i.text
                for p in ws:
                    if not ok(p, i, False): rep("RAW", p, i)
                lastr.setdefault(g, []).append(i)
        if i.lds_w:
            for g in range(i.lds_w[0] // G, (i.lds_w[1] + G - 1) // G):
                rr = lastr.get(g, [])
                for p in rr:
                    if not ok(p, i, False): rep("WAR", p, i)
                if rr:
                    lastw[g] = [i]; lastr[g] = []
                else:
                    lastw.setdefault(g, []).append(i)
    assert bad == 0, "LDS violations: %d" % bad

def finish(prog, check=True):
    if check: check_order(prog)
    p = insert_waits(prog)
    if check: check_lds(p)
    p = insert_nops(p)
    return p

def stats(p):
    from collections import Counter
    c = Counter(i.kind for i in p)
    return dict(c)


def slots(i):
    k = i.kind
    if k == 'valu':
        return (2 if (i.trans or "permlane" in i.op) else 1, False)
    if k == 'ds':
        if i.op == "ds_write_b128": return (5, True)
        if i.op == "ds_write_b64": return (3, True)
        return (1, False)
    if k == 'dma': return (2, True)
    if k == 'vmem':
        return ((5 if i.wide else 3), True) if not i.wr else (2, True)
    if k == 'bar': return (2, True)
    if k == 'need': return (0, False)
    return (1, False)

def is_scalar(i): return i.kind in ('salu', 'wait', 'nop', 'need')

def Need(vm=(), lgkm=(), regs=()):
    return Ins("", 'need', rd=regs, need_vm=tuple(vm), need_lgkm=tuple(lgkm))

class Sec2:
    def __init__(self):
        self.m = []; self.pre = []
        self.sc = {}
        self.pin = {}
        self.blk = {}
        self.streams = []
    def n(self): return len(self.m)
    def mfma(self, ins): self.m.append(ins); return len(self.m) - 1
    def at(self, g, ins):
        for i in (ins if isinstance(ins, list) else [ins]):
            (self.sc if is_scalar(i) else self.pin).setdefault(g, []).append(i)
    def block(self, g, lst): self.blk.setdefault(g, []).extend(lst)
    def free(self, g):
        return not self.sc.get(g) and not self.pin.get(g)
    def room(self, g):
        r = 2 - sum(slots(i)[0] for i in self.pin.get(g, [])) - max(0, len(self.sc.get(g, [])) - 1)
        return r
    def stream(self, lst, start, end, name="", after=None):
        aft = [s for s in self.streams if after and s['name'] in after.split(",")]
        self.streams.append(dict(ops=list(lst), pos=0, start=start, end=end, name=name, after=aft))
    def flatten(self, verbose=False):
        out = list(self.pre); n = len(self.m)
        over = 0; idle = 0
        self.over_at = {}
        for g in range(n):
            sc = list(self.sc.get(g, [])); vec = list(self.pin.get(g, []))
            room = self.room(g)
            excl = any(slots(i)[1] for i in vec)
            if excl: room = min(room, 0)
            act = sorted([s for s in self.streams if s['start'] <= g and s['pos'] < len(s['ops'])], key=lambda s: s['end'])
            took = set()
            while True:
                prog = False
                for s in act:
                    if s['pos'] >= len(s['ops']): continue
                    if any(t['pos'] < len(t['ops']) for t in s['after']): continue
                    i = s['ops'][s['pos']]
                    c, ex = slots(i)
                    force = g >= min(s['end'], n - 1)
                    if is_scalar(i):
                        if not sc and not excl and not took:
                            sc.append(i)
                        elif room >= 1 or force: vec.append(i); room -= 1
                        else: continue
                    elif ex:
                        if not sc and not vec: vec.append(i); room -= c; excl = True; room = min(room, 0)
                        elif force: vec.append(i); room -= c
                        else: continue
                    else:
                        if room >= c or force: vec.append(i); room -= c
                        else: continue
                    took.add(id(s))
                    s['pos'] += 1; prog = True
                    if s['pos'] == len(s['ops']): s['done_at'] = g
                    break
                if not prog: break
            if room < 0: over -= room; self.over_at[g] = -room
            else: idle += room
            out.append(self.m[g]); out += sc + vec + self.blk.get(g, [])
        for s in self.streams:
            assert s['pos'] == len(s['ops']), "stream not drained " + s['name']
        if verbose:
            print("flatten: mfma %d overflow slots %d idle slots %d" % (n, over, idle), file=sys.stderr)
            reg = {}
            for g, o in self.over_at.items(): reg[g // 72 * 72] = reg.get(g // 72 * 72, 0) + o
            print("   overflow by region:", reg, file=sys.stderr)
            for s in self.streams:
                if s['name']: print("   stream %-10s %4d..%4d done at %d (%d ops)" % (s['name'], s['start'], s['end'], s.get('done_at', -1), len(s['ops'])), file=sys.stderr)
        return out
```

```python
import sys, math, struct
from asmlib import *
from fw import *

WS_A = 0x000000
WS_B = 0x300000
WS_G = 0x600000
WS_O = 0x602000
WS_P = 0x800000
KB_STRIDE = 131072
MF = "v_mfma_f32_16x16x32_bf16"
def f2h(x): return "0x%08x" % struct.unpack("<I", struct.pack("<f", x))[0]
def mf(d, a, b, c, opt=False):
    return I("%s %s, %s, %s, %s" % (MF, rs(d), rs(a), rs(b), rs(c) if c else "0"), opt=opt)
def F(text, opt=False, tag=None, **env):
    e = dict(ENV); e.update(env)
    kw = {}
    for k in ("lds_r", "lds_w", "priv", "need_vm", "need_lgkm"):
        if k in env: kw[k] = env[k]
    return L(text.format(**e), opt=opt, tag=tag, **kw)

ENV = dict(X="s[8:11]", WG="s[12:15]", WU="s[16:19]", WD="s[20:23]", WS="s[24:27]", DBG="s[28:31]", WR="s[32:35]", WI="s[36:39]", GW="s[40:43]", OUT="s[44:47]",
           T="s79", C="s80", W="s81", W1K="s82", KB="s83", RG="s87", FH="s88", S2="s89", a="s84", b="s85", c="s86", d="s92", e="s93",
           Q="s94", KB3="s95", NL="s96", KB1="s97", GA="s98", GB="s99", SA="s100", SB="s101", ST="s90", SP="s91", u="s6", w="s7")
S_KK, S_DK, S_XQ = 48, 66, 75
OPT = dict(stamps=False, BI=2, sc1p=True)
VST = [223]
def stamp(idx):
    if not OPT['stamps']: return []
    return L("s_memrealtime s[4:5]\ns_waitcnt lgkmcnt(0)\nv_writelane_b32 v%d, s4, %d\ns_memtime s[4:5]\ns_waitcnt lgkmcnt(0)\nv_writelane_b32 v%d, s4, %d" % (VST[0], idx, VST[0], 32 + idx))
def stamp_out(kidx):
    if not OPT['stamps']: return []
    p = L("s_waitcnt vmcnt(0)") + stamp(31)
    p += F("s_cmp_lg_u32 {W}, 0\ns_cbranch_scc1 L_end_KN\ns_lshl_b32 s4, s2, 8\ns_add_u32 s4, s4, 0x%x\nv_lshlrev_b32 v0, 2, v0" % (STAMP_OFF + kidx * 262144))
    p += F("buffer_store_dword v%d, v0, {WS}, s4 offen" % VST[0])
    return p
def srd(d, b, n):
    return L("s_mov_b32 s%d, s%d\ns_and_b32 s%d, s%d, 0xffff\ns_mov_b32 s%d, 0x%x\ns_mov_b32 s%d, 0x20000" % (d, b, d + 1, b + 1, d + 2, n, d + 3))
def emit(a, name, prog, vg, accum=None):
    p = finish(prog)
    a.begin(name)
    for i in p: a(i.text.replace("KN", name))
    a("L_end_%s:\ns_endpgm" % name)
    a.end(name, vg, accum=accum)
    print(name, stats(p), file=sys.stderr)

def XF(mi, kk):
    n = kk * 4 + mi
    return A(4 * n, 4) if n < 64 else V(224 + 4 * (n - 64), 4)
def HF(mi, ks):
    n = ks * 8 + mi
    return XF(n & 3, n >> 2)
SET = [32, 64, 96, 128]
FB = 160
TMP = 196
V_DX, V_DW, V_DH, V_DD, V_RW, V_RX = 3, 4, 5, 6, 7, 13
V_HW, V_HH, V_L16, V_L16B, V_ST, V_SIL = 19, 20, 21, 22, 23, 24

def dma(vo, srdn, soff, pb, ioff, tag):
    assert pb - ioff >= 0
    m = F("s_add_u32 m0, {W1K}, %d" % (pb - ioff))[0]
    d = F("buffer_load_dwordx4 v%d, {%s}, s%d offen%s lds" % (vo, srdn, soff, (" offset:%d" % ioff) if ioff else ""), tag=tag, lds_w=(pb, pb + 4096))[0]
    return m, d

def gate_code(T):
    e = dict(vx=T, vg=T + 9, va=T + 18, vo=T + 19, t0=T + 20, t1=T + 21, t2=T + 22, t3=T + 23)
    p = F("""v_lshrrev_b32 v{vo}, 5, v0
s_lshl_b32 {a}, {C}, 3
s_lshl_b32 {b}, {W}, 1
s_add_u32 {a}, {a}, {b}
v_add_u32 v{vo}, {a}, v{vo}
v_and_b32 v{t0}, 63, v{vo}
v_lshlrev_b32 v{t0}, 5, v{t0}
v_lshrrev_b32 v{t1}, 6, v{vo}
v_add_u32 v{t0}, v{t0}, v{t1}
s_lshl_b32 {a}, {T}, 1
v_add_u32 v{t0}, {a}, v{t0}
v_mul_u32_u24 v{t0}, 1152, v{t0}
v_and_b32 v{t1}, 31, v0
v_lshlrev_b32 v{t1}, 2, v{t1}
v_add_u32 v{t0}, v{t0}, v{t1}""", **e)
    for n in range(9):
        p += F("buffer_load_dword v%d, v{t0}, {X}, 0 offen offset:%d\nbuffer_load_dword v%d, v{t1}, {GW}, 0 offen offset:%d" % (T + n, n * 128, T + 9 + n, n * 128), **e)
    q = []
    for n in range(9):
        q += F("""v_lshlrev_b32 v{t0}, 16, v{x}
v_lshlrev_b32 v{t1}, 16, v{g}
v_and_b32 v{t2}, 0xffff0000, v{x}
v_and_b32 v{t3}, 0xffff0000, v{g}
v_mul_f32 v{t0}, v{t0}, v{t1}
v_mul_f32 v{t2}, v{t2}, v{t3}
v_cvt_pk_bf16_f32 v{t0}, v{t0}, v{t2}
v_lshlrev_b32 v{t1}, 16, v{t0}
v_and_b32 v{t0}, 0xffff0000, v{t0}""", x=T + n, g=T + 9 + n, **e)
        q += F("v_add_f32 v{va}, v{t1}, v{t0}" if n == 0 else "v_add_f32 v{va}, v{va}, v{t1}\nv_add_f32 v{va}, v{va}, v{t0}", **e)
    for sh in (8, 4, 2, 1):
        q += F("v_add_f32_dpp v{va}, v{va}, v{va} row_ror:%d row_mask:0xf bank_mask:0xf" % sh, **e)
    q += F("""v_mov_b32 v{t0}, v{va}
v_and_b32 v{t1}, 31, v0
v_cmp_eq_u32 vcc, 0, v{t1}
v_permlane16_swap_b32 v{va}, v{t0}
v_add_f32 v{va}, v{va}, v{t0}
v_cvt_pk_bf16_f32 v{va}, v{va}, v{va}
v_lshlrev_b32 v{va}, 16, v{va}
v_mul_f32 v{va}, {NL}, v{va}
v_exp_f32 v{va}, v{va}
v_lshlrev_b32 v{vo}, 2, v{vo}
v_add_f32 v{va}, 1.0, v{va}
v_rcp_f32 v{va}, v{va}
v_bfrev_b32 v{t1}, 1
v_cvt_pk_bf16_f32 v{va}, v{va}, v{va}
v_lshlrev_b32 v{va}, 16, v{va}
v_sub_f32 v{t0}, 1.0, v{va}
v_cvt_pk_bf16_f32 v{t0}, v{t0}, v{t0}
v_lshlrev_b32 v{t0}, 16, v{t0}
v_cndmask_b32 v{vo}, v{t1}, v{vo}, vcc
s_lshl_b32 {u}, {T}, 9
s_add_u32 {u}, {u}, %d
s_add_u32 {w}, {u}, %d""" % (WS_G, WS_O - WS_G), **e)
    q += F("buffer_store_dword v{va}, v{vo}, {WS}, {u} offen sc1\nbuffer_store_dword v{t0}, v{vo}, {WS}, {w} offen sc1", tag="pub1", **e)
    return p, q

def t_setup(P, kb, opt=False):
    e = dict(vk=P, vphi=P + 1, vco=P + 2, vd=P + 3, vmu=P + 4, vsg=P + 5, t=P + 6, kb=kb)
    return F("""v_lshrrev_b32 v{vk}, 2, v1
v_lshlrev_b32 v{vk}, 1, v{vk}
v_and_b32 v{t}, 1, v1
v_add_u32 v{vk}, v{vk}, v{t}
v_lshlrev_b32 v{vsg}, 31, v{t}
v_or_b32 v{vsg}, 1.0, v{vsg}
s_lshl_b32 {a}, {kb}, 4
s_lshl_b32 {b}, {FH}, 3
s_add_u32 {a}, {a}, {b}
v_add_u32 v{vk}, {a}, v{vk}
v_bfe_u32 v{vphi}, v1, 1, 1
v_cvt_f32_u32 v{vphi}, v{vphi}
v_mul_f32 v{vphi}, 0x3e800000, v{vphi}
v_add_u32 v{t}, {a}, v1
v_cmp_eq_u32 vcc, 2, v{t}
v_mov_b32 v{t}, 0x120
v_lshlrev_b32 v{vd}, 3, v2
v_cndmask_b32 v{vk}, v{vk}, v{t}, vcc
v_cndmask_b32 v{vphi}, v{vphi}, 0, vcc
v_cvt_f32_u32 v{vk}, v{vk}
v_mul_f32 v{vco}, %s, v{vk}
v_mul_f32 v{vk}, %s, v{vk}
v_cos_f32 v{vco}, v{vco}
v_add_u32 v{t}, {a}, v2
v_cmp_eq_u32 vcc, 0, v{t}
v_cvt_f32_u32 v{vd}, v{vd}
v_add_f32 v{vco}, v{vco}, v{vco}
v_cndmask_b32 v{vmu}, 1.0, 0, vcc""" % (f2h(1.0 / 18), f2h(1.0 / 576)), opt=opt, **e)

def t_frag(kk, f, ST, P, opt=False):
    cur = ST + 8 * (kk & 1); prv = ST + 8 * ((kk + 1) & 1); ops = []
    if kk < 2:
        for j in range(8): ops += L("v_add_f32 v%d, %s, v%d" % (cur + j, f2h(32.0 * kk + j), P + 3), opt=opt)
        for j in range(8): ops += L("v_fma_f32 v%d, v%d, v%d, v%d" % (cur + j, cur + j, P, P + 1), opt=opt)
        for j in range(8): ops += L("v_cos_f32 v%d, v%d" % (cur + j, cur + j), opt=opt)
    else:
        for j in range(8): ops += L("v_fma_f32 v%d, v%d, v%d, -v%d" % (cur + j, P + 2, prv + j, cur + j), opt=opt)
    for jp in range(4): ops += L("v_cvt_pk_bf16_f32 v%d, v%d, v%d" % (f + jp, cur + 2 * jp, cur + 2 * jp + 1), opt=opt)
    return ops

def twiddle_A(TW, T):
    vs, vj, p0, p1, c0, c1 = T, T + 4, T + 5, T + 6, T + 7, T + 8
    p = F("v_lshlrev_b32 v{vs}, 7, v2\nv_add_u32 v{vs}, {S2}, v{vs}\nv_cvt_f32_u32 v{vs}, v{vs}", vs=vs)
    for j in range(1, 4): p += L("v_add_f32 v%d, %s, v%d" % (vs + j, f2h(32.0 * j), vs))
    for a in range(4):
        p += L("v_lshl_add_u32 v%d, v1, 2, %d\nv_cvt_f32_u32 v%d, v%d\nv_mul_f32 v%d, %s, v%d" % (vj, a, vj, vj, vj, f2h(1.0 / 2048), vj))
        b = TW(a)
        for jp in range(2):
            p += L("""v_mul_f32 v%d, v%d, v%d
v_mul_f32 v%d, v%d, v%d
v_cos_f32 v%d, v%d
v_cos_f32 v%d, v%d
v_sin_f32 v%d, v%d
v_sin_f32 v%d, v%d
v_cvt_pk_bf16_f32 v%d, v%d, v%d
v_cvt_pk_bf16_f32 v%d, v%d, v%d""" % (p0, vs + 2 * jp, vj, p1, vs + 2 * jp + 1, vj, c0, p0, c1, p1, p0, p0, p1, p1, b + jp, c0, c1, b + 4 + jp, p0, p1))
            C = "v%d, v%d" % (c0, c1); nC = "-v%d, -v%d" % (c0, c1); Sn = "v%d, v%d" % (p0, p1); nS = "-v%d, -v%d" % (p0, p1)
            cc, ss = [(C, Sn), (nS, C), (nC, nS), (Sn, nC)][a]
            p += L("v_cvt_pk_bf16_f32 v%d, %s\nv_cvt_pk_bf16_f32 v%d, %s" % (b + 2 + jp, cc, b + 6 + jp, ss))
    return p

def step_A(ACC, TW, DF, P, kb, fill=None, opt=False):
    k = dict(opt=opt)
    fill = fill or (lambda n: [])
    p = fill(8)
    for i in range(16): p += L("v_fma_f32 v%d, v%d, v%d, v%d" % (ACC + i, P + 5, ACC + 16 + i, ACC + i), **k)
    for i in range(8):
        p += L("v_add_f32 v%d, v%d, v%d\nv_sub_f32 v%d, v%d, v%d" % (ACC + 16 + i, ACC + i, ACC + 8 + i, ACC + 24 + i, ACC + i, ACC + 8 + i), **k)
    for i in range(8): p += L("v_cvt_pk_bf16_f32 v%d, v%d, v%d" % (DF + i, ACC + 16 + 2 * i, ACC + 17 + 2 * i), **k)
    p += F("s_lshl_b32 {a}, {S2}, 12\ns_lshl_b32 {b}, {kb}, 17\ns_add_u32 {b}, {b}, {a}\ns_lshl_b32 {c}, {FH}, 4\ns_add_u32 {b}, {b}, {c}", kb=kb, **k)
    T1, T2 = ACC, ACC + 16
    for a in range(4):
        for cs, D in ((0, T1), (1, T2)):
            p.append(mf(V(D + 4 * a, 4), V(DF + 4 * (a & 1), 4), V(TW(a) + 4 * cs, 4), None, opt))
            p += fill(2)
    RE, IM, t0, t1, va = DF, DF + 4, DF + 8, DF + 9, DF + 10
    p += L("v_lshl_add_u32 v%d, v1, 2, v2\nv_lshlrev_b32 v%d, 6, v%d" % (va, va, va), **k)
    for a in range(4):
        x, y = T1 + 4 * a, T2 + 4 * a
        p += L("""v_fma_f32 v%d, v%d, v%d, v%d
v_add_f32 v%d, v%d, v%d
v_cvt_pk_bf16_f32 v%d, v%d, v%d
v_fma_f32 v%d, v%d, v%d, -v%d
v_sub_f32 v%d, v%d, v%d
v_cvt_pk_bf16_f32 v%d, v%d, v%d""" % (t0, P + 4, y + 2, x, t1, x + 1, y + 3, RE + a, t0, t1, t0, P + 4, x + 2, y, t1, x + 3, y + 1, IM + a, t0, t1), **k)
    p += fill(2)
    p += L("v_permlane32_swap_b32 v%d, v%d\nv_permlane32_swap_b32 v%d, v%d\nv_permlane32_swap_b32 v%d, v%d\nv_permlane32_swap_b32 v%d, v%d"
           % (RE, RE + 2, RE + 1, RE + 3, IM, IM + 2, IM + 1, IM + 3), **k)
    p += L("v_permlane16_swap_b32 v%d, v%d\nv_permlane16_swap_b32 v%d, v%d\nv_permlane16_swap_b32 v%d, v%d\nv_permlane16_swap_b32 v%d, v%d"
           % (RE, RE + 1, RE + 2, RE + 3, IM, IM + 1, IM + 2, IM + 3), **k)
    p += F("buffer_store_dwordx4 v[%d:%d], v%d, {WS}, {b} offen sc1\nbuffer_store_dwordx4 v[%d:%d], v%d, {WS}, {b} offen offset:32 sc1"
           % (RE, RE + 3, va, IM, IM + 3, va), tag="pub1", **k)
    if not opt:
        p += F("s_or_b32 {c}, {kb}, {FH}\ns_cmp_lg_u32 {c}, 0\ns_cbranch_scc1 L_ny_KN", kb=kb)
        o = "ny"
        q = F("""s_add_u32 {a}, {a}, %d
v_lshrrev_b32 v{va}, 2, v1
v_lshlrev_b32 v{va}, 6, v{va}
v_and_b32 v{t0}, 3, v1
v_lshl_add_u32 v{va}, v{t0}, 2, v{va}
v_lshl_add_u32 v{va}, v2, 28, v{va}""" % (18 * KB_STRIDE), opt=o, va=va, t0=t0)
        for par in range(2):
            q += L("v_cvt_pk_bf16_f32 v%d, v%d, v%d\nv_cvt_pk_bf16_f32 v%d, -v%d, -v%d"
                   % (T1 + par, T1 + 4 * par + 2, T1 + 4 * par + 10, T2 + par, T2 + 4 * par + 2, T2 + 4 * par + 10), opt=o)
        for par in range(2):
            q += F("buffer_store_dword v%d, v{va}, {WS}, {a} offen offset:%d sc1\nbuffer_store_dword v%d, v{va}, {WS}, {a} offen offset:%d sc1"
                   % (T1 + par, par * 16, T2 + par, 32 + par * 16), opt=o, tag="pub1", va=va)
        p += q + L("L_ny_KN:")
    return p

def dft32(M, T, opt):
    vi, vg, p0, p1, c0, c1 = T, T + 1, T + 2, T + 3, T + 4, T + 5
    k = dict(opt=opt)
    p = L("v_cvt_f32_u32 v%d, v1\nv_lshlrev_b32 v%d, 2, v2\nv_mul_f32 v%d, %s, v%d\nv_cvt_f32_u32 v%d, v%d" % (vi, vg, vi, f2h(1.0 / 32), vi, vg, vg), **k)
    for jp in range(2):
        p += L("""v_add_f32 v%d, %s, v%d
v_add_f32 v%d, %s, v%d
v_mul_f32 v%d, v%d, v%d
v_mul_f32 v%d, v%d, v%d
v_cos_f32 v%d, v%d
v_cos_f32 v%d, v%d
v_sin_f32 v%d, v%d
v_sin_f32 v%d, v%d
v_cvt_pk_bf16_f32 v%d, v%d, v%d
v_cvt_pk_bf16_f32 v%d, v%d, v%d""" % (p0, f2h(2.0 * jp), vg, p1, f2h(2.0 * jp + 1), vg, p0, p0, vi, p1, p1, vi, c0, p0, c1, p1, p0, p0, p1, p1, M + jp, c0, c1, M + 4 + jp, p0, p1), **k)
    p += L("v_and_b32 v%d, 1, v1\nv_mul_u32_u24 v%d, 0x8000, v%d\nv_lshl_add_u32 v%d, v%d, 16, v%d" % (vi, vi, vi, vi, vi, vi), **k)
    for b in (M, M + 4):
        for jp in range(2): p += L("v_xor_b32 v%d, v%d, v%d" % (b + 2 + jp, vi, b + jp), **k)
    for d in range(4):
        p += L("v_xor_b32 v%d, 0x80008000, v%d\nv_xor_b32 v%d, 0x80000000, v%d\nv_xor_b32 v%d, 0x80000000, v%d\nv_xor_b32 v%d, 0x8000, v%d"
               % (M + 8 + d, M + 4 + d, M + 12 + d, M + d, M + 16 + d, M + 4 + d, M + 20 + d, M + 4 + d), **k)
    return p

def s2_wloads(gam, keep, Wr, T, opt):
    e = dict(gam=gam, keep=keep, vw=T, t0=T + 1, t1=T + 2)
    p = F("""s_lshr_b32 {a}, {gam}, 4
s_and_b32 {b}, {gam}, 15
s_lshl_b32 {b}, {b}, 2
s_add_u32 {b}, {b}, {W}
s_lshl_b32 {keep}, {a}, 17
s_lshl_b32 {c}, {b}, 6
s_add_u32 {keep}, {keep}, {c}
s_cmp_eq_u32 {a}, 18
s_cselect_b32 {c}, 16, 1
s_cselect_b64 vcc, -1, 0
s_mul_i32 {b}, {b}, {c}
s_mul_i32 {b}, {b}, 578
s_lshl_b32 {a}, {a}, 5
s_add_u32 {b}, {b}, {a}
v_and_b32 v{t0}, 7, v1
v_lshrrev_b32 v{t1}, 3, v1
v_lshl_add_u32 v{t0}, v{t0}, 1, v{t1}
v_mul_u32_u24 v{t0}, 578, v{t0}
v_lshlrev_b32 v{t1}, 1, v1
v_cndmask_b32 v{t0}, v{t1}, v{t0}, vcc
v_mul_u32_u24 v{vw}, %d, v2
v_add3_u32 v{vw}, v{vw}, v{t0}, {b}""" % (4 * 36992), opt=opt, **e)
    for aa in range(2):
        for r in range(4):
            p += F("s_mov_b32 {c}, %d\nbuffer_load_short_d16_hi v%d, v{vw}, {WR}, {c} offen\nbuffer_load_short_d16_hi v%d, v{vw}, {WI}, {c} offen"
                   % ((16 * aa + r) * 36992, Wr + 4 * aa + r, Wr + 8 + 4 * aa + r), opt=opt, **e)
    return p

def s2_dloads(keep, D, T, opt):
    e = dict(keep=keep, va=T, t0=T + 1)
    p = F("""v_lshrrev_b32 v{va}, 2, v0
v_lshlrev_b32 v{va}, 12, v{va}
v_and_b32 v{t0}, 3, v0
v_lshl_add_u32 v{va}, v{t0}, 4, v{va}
s_add_u32 {c}, {keep}, 0x10000
buffer_load_dwordx4 v[%d:%d], v{va}, {WS}, {keep} offen sc1
buffer_load_dwordx4 v[%d:%d], v{va}, {WS}, {c} offen sc1""" % (D, D + 3, D + 4, D + 7), opt=opt, **e)
    return p

def s2_compute(keep, M, D, Z, Wr, T, lds_base, opt, pre=None):
    e = dict(keep=keep, vl=V_DX, vr=T, t0=T + 1, t1=T + 2)
    k = dict(opt=opt)
    rng = (lds_base, lds_base + 8192)
    q = F("""s_lshl_b32 {a}, {W}, 11
s_add_u32 {a}, {a}, %d
v_add_u32 v{vl}, {a}, v%d""" % (lds_base, V_L16), **k, **e)
    q += F("ds_write_b128 v{vl}, v[%d:%d]\nds_write_b128 v{vl}, v[%d:%d] offset:1024" % (D, D + 3, D + 4, D + 7), lds_w=rng, priv=True, tag="lds", **k, **e)
    q += F("""v_lshrrev_b32 v{vr}, 2, v1
v_lshl_add_u32 v{vr}, v2, 2, v{vr}
v_lshlrev_b32 v{vr}, 6, v{vr}
v_and_b32 v{t0}, 3, v1
v_lshl_add_u32 v{vr}, v{t0}, 3, v{vr}
v_add_u32 v{vr}, {a}, v{vr}""", **k, **e)
    for pl in range(2):
        q += F("ds_read_b64_tr_b16 v[%d:%d], v{vr} offset:%d\nds_read_b64_tr_b16 v[%d:%d], v{vr} offset:%d"
               % (D + 4 * pl, D + 4 * pl + 1, pl * 32, D + 4 * pl + 2, D + 4 * pl + 3, pl * 32 + 1024), lds_r=rng, priv=True, tag="lds", **k, **e)
    if pre: q += pre()
    C = lambda a: V(M + (a * 3) * 4, 4)
    Sn = lambda a: V(M + (a * 3 + 1) * 4, 4)
    N = lambda a: V(M + (a * 3 + 2) * 4, 4)
    Ar, Ai = V(D, 4), V(D + 4, 4)
    for aa in range(2):
        zr, zi = V(Z + 4 * aa, 4), V(Z + 8 + 4 * aa, 4)
        q += [mf(zr, C(aa), Ar, None, opt), mf(zr, Sn(aa), Ai, zr, opt), mf(zi, C(aa), Ai, None, opt), mf(zi, N(aa), Ar, zi, opt)]
    q += F("""v_and_b32 v{vl}, 31, v0
v_lshlrev_b32 v{vl}, 12, v{vl}
v_lshrrev_b32 v{t0}, 5, v0
v_lshl_add_u32 v{vl}, v{t0}, 4, v{vl}
s_add_u32 {a}, {keep}, %d""" % WS_B, **k, **e)
    for i in range(8):
        q += F("""v_mul_f32 v{t0}, v{zi}, v{wi}
v_mul_f32 v{t1}, v{zr}, v{wi}
v_fma_f32 v{zr}, v{zr}, v{wr}, -v{t0}
v_fma_f32 v{zi}, v{zi}, v{wr}, v{t1}""", zr=Z + i, zi=Z + 8 + i, wr=Wr + i, wi=Wr + 8 + i, **k, **e)
    for pl in range(2):
        for d in range(4): q += L("v_cvt_pk_bf16_f32 v%d, v%d, v%d" % (D + 4 * pl + d, Z + 8 * pl + 2 * d, Z + 8 * pl + 2 * d + 1), **k)
    for aa in range(2):
        br = V(Z + 4 * aa, 4)
        q += [mf(br, Ar, C(aa), None, opt), mf(br, Ai, N(aa), br, opt)]
    for aa in range(2):
        bi = V(Z + 8 + 4 * aa, 4)
        q += [mf(bi, Ai, C(aa), None, opt), mf(bi, Ar, Sn(aa), bi, opt)]
    for pl in range(2):
        for d in range(4): q += L("v_cvt_pk_bf16_f32 v%d, v%d, v%d" % (Wr + 4 * pl + d, Z + 8 * pl + 2 * d, Z + 8 * pl + 2 * d + 1), **k)
    for pl in range(2):
        q += L("v_permlane16_swap_b32 v%d, v%d\nv_permlane16_swap_b32 v%d, v%d" % (Wr + 4 * pl, Wr + 4 * pl + 2, Wr + 4 * pl + 1, Wr + 4 * pl + 3), **k)
    q += F("buffer_store_dwordx4 v[%d:%d], v{vl}, {WS}, {a} offen sc1\nbuffer_store_dwordx4 v[%d:%d], v{vl}, {WS}, {a} offen offset:32 sc1"
           % (Wr, Wr + 3, Wr + 4, Wr + 7), tag="pub2", **k, **e)
    return q

def twiddle_D(TW, T):
    vs, vj, vk, c0, c1, s0, s1 = T, T + 1, T + 2, T + 3, T + 4, T + 5, T + 6
    p = F("""s_lshl_b32 {u}, {FH}, 9
s_add_u32 {u}, {u}, {S2}
v_lshlrev_b32 v{vs}, 5, v1
v_add_u32 v{vs}, {u}, v{vs}
v_cvt_f32_u32 v{vs}, v{vs}
v_mul_f32 v{vs}, %s, v{vs}
v_lshlrev_b32 v{vj}, 4, v2
v_cvt_f32_u32 v{vj}, v{vj}
v_add_f32 v{vk}, v{vs}, v{vs}
v_cos_f32 v{vk}, v{vk}""" % f2h(1.0 / 2048), vs=vs, vj=vj, vk=vk)
    for par in range(2):
        p += L("""v_add_f32 v%d, %s, v%d
v_add_f32 v%d, %s, v%d
v_mul_f32 v%d, v%d, v%d
v_mul_f32 v%d, v%d, v%d
v_cos_f32 v%d, v%d
v_cos_f32 v%d, v%d
v_sin_f32 v%d, v%d
v_sin_f32 v%d, v%d""" % (s0, f2h(float(par)), vj, s1, f2h(par + 2.0), vj, s0, s0, vs, s1, s1, vs, c0, s0, c1, s1, s0, s0, s1, s1))
        if par == 0: p += L("v_add_f32 v%d, v%d, v%d" % (vk, vk, vk))
        for jp in range(4):
            if jp:
                p += L("v_fma_f32 v%d, v%d, v%d, -v%d\nv_fma_f32 v%d, v%d, v%d, -v%d\nv_fma_f32 v%d, v%d, v%d, -v%d\nv_fma_f32 v%d, v%d, v%d, -v%d"
                       % (c0, vk, c1, c0, s0, vk, s1, s0, c1, vk, c0, c1, s1, vk, s0, s1))
            p += L("v_cvt_pk_bf16_f32 v%d, v%d, v%d\nv_cvt_pk_bf16_f32 v%d, v%d, v%d" % (TW + par * 8 + jp, c0, c1, TW + par * 8 + 4 + jp, s0, s1))
    return p

def stepD_loads(kb, RAW, opt=False):
    p = F("s_lshl_b32 {a}, {S2}, 12\ns_add_u32 {a}, {a}, %d\ns_lshl_b32 {b}, {kb}, 17\ns_add_u32 {b}, {b}, {a}" % WS_B, kb=kb, opt=opt)
    for i in range(4):
        p += F("buffer_load_dwordx4 v[%d:%d], v%d, {WS}, {b} offen offset:%d sc1" % (RAW + 4 * i, RAW + 4 * i + 3, V_L16, i * 1024), opt=opt)
    return p
def stepD_nyloads(NY, T, opt):
    p = F("s_add_u32 {a}, {a}, %d\nv_lshlrev_b32 v%d, 6, v2" % (18 * KB_STRIDE, T), opt=opt)
    for par in range(2):
        for pl in range(2):
            r = NY + (par * 2 + pl) * 4
            p += F("buffer_load_dwordx4 v[%d:%d], v%d, {WS}, {a} offen offset:%d sc1" % (r, r + 3, T, pl * 32 + par * 16), opt=opt)
    return p

def stepD(RAW, NY, NB, TW, ACC, VG, T, stage_base, y_base, opt=False, fill=None):
    k = dict(opt=opt); fill = fill or (lambda n: [])
    e = dict(vl=T, vr=T + 1, t0=T + 2)
    rng = (stage_base, stage_base + 16384)
    p = F("s_lshl_b32 {a}, {W}, 12\ns_add_u32 {a}, {a}, %d\nv_add_u32 v{vl}, {a}, v%d" % (stage_base, V_L16), **k, **e)
    for i in range(4):
        p += F("ds_write_b128 v{vl}, v[%d:%d] offset:%d" % (RAW + 4 * i, RAW + 4 * i + 3, i * 1024), lds_w=rng, priv=True, tag="lds", **k, **e)
    p += F("""v_lshrrev_b32 v{vr}, 2, v1
v_lshl_add_u32 v{vr}, v2, 3, v{vr}
v_lshlrev_b32 v{vr}, 7, v{vr}
v_and_b32 v{t0}, 3, v1
v_lshl_add_u32 v{vr}, v{t0}, 3, v{vr}
v_add_u32 v{vr}, {a}, v{vr}""", **k, **e)
    for par in range(2):
        for pl in range(2):
            r = RAW + (par * 2 + pl) * 4; o = par * 64 + pl * 32
            p += F("ds_read_b64_tr_b16 v[%d:%d], v{vr} offset:%d\nds_read_b64_tr_b16 v[%d:%d], v{vr} offset:%d" % (r, r + 1, o, r + 2, r + 3, o + 512),
                   lds_r=rng, priv=True, tag="lds", **k, **e)
    p += F("s_lshl_b32 {a}, {RG}, 12\ns_lshl_b32 {b}, {FH}, 10\ns_add_u32 {a}, {a}, {b}\ns_add_u32 {a}, {a}, %d\nv_add_u32 v{vl}, {a}, v%d" % (y_base, V_L16), **k, **e)
    p += fill(16)
    for par in range(2):
        for d in range(4): p += L("v_xor_b32 v%d, 0x80008000, v%d" % (NB + 4 * par + d, RAW + par * 8 + 4 + d), **k)
    for par in range(2):
        er = V(ACC + 8 * par, 4)
        p += [mf(er, V(RAW + 8 * par, 4), V(TW + 8 * par, 4), None, opt)] + fill(2) + [mf(er, V(NB + 4 * par, 4), V(TW + 8 * par + 4, 4), er, opt)] + fill(2)
    if not opt:
        p += F("s_cmp_lg_u32 {C}, 0\ns_cbranch_scc1 L_nyd_KN")
        q = L("v_cmp_eq_u32 vcc, 0, v1", opt="nyd")
        for par in range(2):
            for d in range(4):
                br, bi, nr, ni = RAW + 8 * par + d, RAW + 8 * par + 4 + d, NY + 8 * par + d, NY + 8 * par + 4 + d
                q += L("v_xor_b32 v%d, 0x80008000, v%d\nv_cndmask_b32 v%d, v%d, v%d, vcc\nv_cndmask_b32 v%d, v%d, v%d, vcc" % (ni, ni, bi, bi, nr, br, br, ni), opt="nyd")
        p += q + L("L_nyd_KN:")
    for par in range(2):
        ei = V(ACC + 8 * par + 4, 4)
        p += [mf(ei, V(RAW + 8 * par + 4, 4), V(TW + 8 * par, 4), None, opt)] + fill(2) + [mf(ei, V(RAW + 8 * par, 4), V(TW + 8 * par + 4, 4), ei, opt)] + fill(2)
    p += fill(4)
    for r in range(8):
        p += L("v_add_f32 v%d, v%d, v%d\nv_sub_f32 v%d, v%d, v%d" % (RAW + r, ACC + r, ACC + 8 + r, RAW + 8 + r, ACC + r, ACC + 8 + r), **k)
    for u in range(2):
        for r in range(8): p += L("v_mul_f32 v%d, v%d, v%d" % (RAW + 8 * u + r, RAW + 8 * u + r, VG + u), **k)
        for d in range(4): p += L("v_cvt_pk_bf16_f32 v%d, v%d, v%d" % (RAW + 8 * u + d, RAW + 8 * u + 2 * d, RAW + 8 * u + 2 * d + 1), **k)
        p += F("ds_write_b128 v{vl}, v[%d:%d] offset:%d" % (RAW + 8 * u, RAW + 8 * u + 3, u * 2048), lds_w=(y_base, y_base + 8192), tag="lds", **k, **e)
    return p

def irfft_setup(KF, T, kb, opt=False):
    p = F("s_lshl_b32 {a}, {kb}, 4\nv_lshlrev_b32 v{t}, 2, v2\nv_add_u32 v{t}, {a}, v{t}\nv_cmp_eq_u32 vcc, 0, v{t}\nv_cvt_f32_u32 v{t}, v{t}", kb=kb, t=T, opt=opt)
    for j in range(4):
        p += L("v_add_f32 v%d, %s, v%d\nv_mul_f32 v%d, %s, v%d" % (KF + j, f2h(float(j)), T, KF + j, f2h(1.0 / 576), KF + j), opt=opt)
    if not opt:
        p += L("v_cndmask_b32 v%d, v%d, 0.5, vcc\nv_mov_b32 v%d, 0x3e800000\nv_cndmask_b32 v%d, v%d, 0, vcc\nv_cndmask_b32 v%d, 1.0, 0.5, vcc"
               % (KF + 4, KF, KF + 5, KF + 5, KF + 5, KF + 6))
    return p
def irfft_frag(Fr, KF, VD, T, opt=False):
    p = []
    for jq in range(2):
        for h in range(4):
            j = 4 * jq + h
            if j < 4: p += L("v_mul_f32 v%d, v%d, v%d" % (T + h, VD, KF + j), opt=opt)
            elif j == 4 and not opt: p += L("v_fma_f32 v%d, v%d, v%d, v%d" % (T + h, VD, KF + 4, KF + 5))
            else: p += F("v_fma_f32 v%d, v%d, v%d, {Q}" % (T + h, VD, KF + j - 4), opt=opt)
        for h in range(4): p += L("v_cos_f32 v%d, v%d" % (T + h, T + h), opt=opt)
        if not opt: p += L("v_mul_f32 v%d, v%d, v%d" % (T, T, KF + 6))
        p += L("v_cvt_pk_bf16_f32 v%d, v%d, v%d\nv_cvt_pk_bf16_f32 v%d, v%d, v%d" % (Fr + 2 * jq, T, T + 1, Fr + 2 * jq + 1, T + 2, T + 3), opt=opt)
    return p

def lanes(v, init, vals, o):
    p = L("v_mov_b32 v%d, %s" % (v, init), opt=o)
    for i, s in enumerate(vals): p += F("v_writelane_b32 v%d, %s, %d" % (v, s, i), opt=o)
    return p
def w0(name, body):
    return F("s_cmp_lg_u32 {W}, 0\ns_cbranch_scc1 L_%s_KN" % name) + body + L("L_%s_KN:" % name)
def arrive(name, calc, VA):
    o = name
    b = F(calc, opt=o) + lanes(VA, "0x1000", ["{a}", "{b}", "{c}"], o) + L("v_mov_b32 v%d, 1" % (VA + 1), opt=o)
    b += F("buffer_atomic_add v%d, v%d, {DBG}, 0 offen sc1" % (VA + 1, VA), opt=o)
    return w0(name, b)
def poll_issue(name, calc, calc2, VP):
    o = name
    b = F(calc, opt=o) + lanes(VP, "0x1000", ["{a}", "{b}", "{c}"], o)
    b += F("buffer_load_dword v%d, v%d, {DBG}, 0 offen sc1" % (VP + 2, VP), opt=o)
    b += F(calc2, opt=o) + lanes(VP + 1, "0", ["{a}", "{b}", "{c}"], o)
    return w0(name, b)
def poll_check(name, VP, sidx=None):
    o = name
    b = F("""v_cmp_lt_u32 vcc, v{r}, v{x}
s_mov_b32 {SP}, 0
s_cbranch_vccz L_{n}_KN
L_{n}s_KN:
s_sleep 4
buffer_load_dword v{r}, v{ad}, {DBG}, 0 offen sc1
s_add_u32 {SP}, {SP}, 1
s_cmp_ge_u32 {SP}, 0x40000
s_cbranch_scc1 L_{n}_KN
s_waitcnt vmcnt(0)
v_cmp_lt_u32 vcc, v{r}, v{x}
s_nop 4
s_cbranch_vccnz L_{n}s_KN""", opt=o, r=VP + 2, x=VP + 1, ad=VP, n=name)
    p = w0(name, b)
    if OPT['stamps'] and sidx is not None: p += F("s_add_u32 {SP}, {SP}, 1\nv_writelane_b32 v%d, {SP}, %d" % (VST[0], sidx))
    return p

def kernel_main(a):
    name = NAME + "_kernel"
    BI = OPT['BI']
    a.launch(name, 256, 256, 163840)
    t0, t1 = TMP, TMP + 1
    e = dict(t0=t0, t1=t1, DX=V_DX, DW=V_DW, DH=V_DH, DD=V_DD, RW=V_RW, RX=V_RX, RW1=V_RW + 3, RX1=V_RX + 3, HW=V_HW, HH=V_HH, L16=V_L16, L16B=V_L16B, VST_=V_ST)
    p = L("s_cmp_ge_u32 s2, 256\ns_cbranch_scc1 L_end_KN")
    if OPT['stamps']: p += L("v_mov_b32 v%d, 0" % VST[0])
    p += stamp(0)
    p += L("s_load_dwordx16 s[52:67], s[0:1], 0\ns_load_dwordx4 s[68:71], s[0:1], 64\ns_load_dwordx2 s[72:73], s[0:1], 80")
    p += F("""v_lshrrev_b32 v1, 6, v0
v_and_b32 v0, 63, v0
v_readfirstlane_b32 {W}, v1
v_and_b32 v1, 15, v0
v_lshrrev_b32 v2, 4, v0""")
    mp = OPT.get('map', 1)
    if mp == 1:
        p += F("""s_and_b32 {C}, s2, 3
s_lshl_b32 {C}, {C}, 2
s_bfe_u32 {a}, s2, 0x20003
s_add_u32 {C}, {C}, {a}
s_lshr_b32 {T}, s2, 5
s_lshl_b32 {T}, {T}, 1
s_bfe_u32 {a}, s2, 0x10002
s_add_u32 {T}, {T}, {a}""")
    elif mp == 0:
        p += F("s_and_b32 {C}, s2, 7\ns_lshl_b32 {C}, {C}, 1\ns_bfe_u32 {a}, s2, 0x10003\ns_add_u32 {C}, {C}, {a}\ns_lshr_b32 {T}, s2, 4")
    else:
        p += F("""s_and_b32 {C}, s2, 1
s_lshl_b32 {C}, {C}, 3
s_bfe_u32 {a}, s2, 0x30003
s_add_u32 {C}, {C}, {a}
s_lshr_b32 {T}, s2, 6
s_lshl_b32 {T}, {T}, 2
s_bfe_u32 {a}, s2, 0x20001
s_add_u32 {T}, {T}, {a}""")
    p += F("""s_lshr_b32 {RG}, {W}, 1
s_and_b32 {FH}, {W}, 1
s_lshl_b32 {W1K}, {W}, 10
s_lshl_b32 {S2}, {T}, 1
s_add_u32 {S2}, {S2}, {RG}
v_lshrrev_b32 v{DW}, 3, v0
s_lshl_b32 {a}, {W}, 3
v_add_u32 v{DW}, {a}, v{DW}
v_mul_u32_u24 v{DX}, %d, v{DW}
s_lshl_b32 {a}, {FH}, 2
v_add_u32 v{t0}, {a}, v2
v_xor_b32 v{t0}, v0, v{t0}
v_and_b32 v{t0}, 7, v{t0}
v_lshl_add_u32 v{DX}, v{t0}, 4, v{DX}
s_mul_i32 {a}, {T}, 2304
v_add_u32 v{DX}, {a}, v{DX}
v_mul_u32_u24 v{DD}, 1152, v{DW}
v_mul_u32_u24 v{DW}, 9216, v{DW}
v_bfe_u32 v{t0}, v0, 1, 2
v_and_b32 v{t1}, 1, v2
s_lshl_b32 {a}, {FH}, 1
v_or_b32 v{t1}, {a}, v{t1}
v_xor_b32 v{t1}, v{t1}, v{t0}
v_lshl_add_u32 v{DW}, v{t1}, 5, v{DW}
v_xor_b32 v{t1}, v{t0}, v2
v_lshl_add_u32 v{DD}, v{t1}, 5, v{DD}
v_and_b32 v{t0}, 1, v0
v_lshl_add_u32 v{DW}, v{t0}, 4, v{DW}
v_lshl_add_u32 v{DD}, v{t0}, 4, v{DD}
s_mul_i32 {d}, {C}, 576
s_and_b32 {e}, {C}, 1
s_lshl_b32 {c}, {e}, 6
s_add_u32 {c}, {c}, {d}
v_add_u32 v{DW}, {c}, v{DW}""" % (32 * 1152), **e)
    for q in range(4): p += L("s_mov_b32 s%d, %d" % (S_XQ + q, (1024 * (q & 1) + (q >> 1)) * 1152))
    p += L("s_waitcnt lgkmcnt(0)")
    p += srd(8, 52, 2048 * 1152) + srd(12, 60, 576 * 9216) + srd(16, 62, 576 * 9216)
    rest_srd = lambda: (srd(32, 54, 2048 * 578) + srd(36, 56, 2048 * 578) + srd(20, 64, 4608 * 1152) + srd(40, 66, 1152) + srd(44, 68, 2048 * 1152)
                        + srd(28, 70, 256) + srd(24, 72, WS_BYTES))
    G = []
    def grp(kind, nm, need, **kw):
        d = dict(kind=kind, nm=nm, need=need, bar=False, xr=None, rate=2); d.update(kw); G.append(d); return d
    for sg in range(9):
        for tau in range(4):
            mat = 'G' if tau < 2 else 'U'
            g = grp('SB', 16 if tau == 3 else 8, [(mat, 0, 2 * sg), (mat, 0, 2 * sg + 1)], sg=sg, tau=tau, rate=(5 if tau == 3 else 2))
            if tau == 2 or (sg == 0 and tau == 0): g['bar'] = True
            if sg < 8 and tau in (2, 3): g['xr'] = (sg + 1, tau - 2)
    passes = [('G', 1, 3), ('U', 1, 2), ('G', 2, 0), ('U', 2, 1), ('G', 3, 3), ('U', 3, 2)]
    PS = {}
    for pi, (mat, b, st) in enumerate(passes):
        PS[mat + str(b)] = len(G)
        for sl in range(6):
            for ap in range(2):
                g = grp('P1', 12, [(mat, b, 3 * sl + e_) for e_ in range(3)], mat=mat, b=b, st=st, sl=sl, ap=ap, ps=mat + str(b))
                if ap == 0 and (sl % BI == BI - 1): g['bar'] = True
    for mi_, mat in enumerate(('HG', 'HU')):
        PS[mat] = len(G)
        for gi in range(6):
            g = grp('PH', 12, [(mat, (3 * gi + e_) >> 1) for e_ in range(3)], mat=mat, gi=gi, ps=mat, half=mi_)
            if gi % 2 == 0: g['bar'] = True
    P2 = len(G)
    for cb in range(9):
        for gi in range(3):
            g = grp('P2', 24, [('D', cb, 3 * gi + e_) for e_ in range(3)], cb=cb, gi=gi, rate=4)
            g['bar'] = True
    NG = len(G)
    G[-1]['bar'] = False
    G[P2 - 1]['bar'] = True
    def rdg(n): return n - 1 if n > P2 else n - 2
    iv = []; n = 0
    for g in G:
        if g['bar']: n += 1
        iv.append(n)
    def free_iv(gr):
        for k in range(gr, NG):
            if G[k]['bar']: return iv[k]
        return 10 ** 6
    first = {}; fre = {}; order = []
    def use(key, rg_, done_g):
        i = iv[rg_] if rg_ >= 0 else 0
        if key not in first: first[key] = i; order.append(key)
        fre[key] = max(fre.get(key, 0), free_iv(done_g))
    for q in range(4): use(('x', 0, q), -1, 1)
    ev = []
    for gi, g in enumerate(G):
        for k in g['need']: ev.append((rdg(gi), 0, k, gi))
        if g['xr']:
            for q in range(4): ev.append((gi, 1, ('x', g['xr'][0], q), 4 * g['xr'][0] + 1))
    ev.sort(key=lambda x: (x[0], x[1]))
    for r_, _, k, d_ in ev: use(k, r_, d_)
    order.sort(key=lambda k: first[k])
    fixed = {}
    for sg in range(9):
        s = 8 * (sg % 5)
        for e_ in range(2):
            fixed[('G', 0, 2 * sg + e_)] = s + e_; fixed[('U', 0, 2 * sg + e_)] = s + 2 + e_
        for q in range(4): fixed[('x', sg, q)] = s + 4 + q
    gS2 = PS['U2'] + OPT.get('s2at', 6)
    gSD = PS['U3'] + OPT.get('sdat', 11)
    HU = PS['HU']
    res = [(0, 4, PS['U1'], HU + 3), (4, 4, PS['G2'], HU + 5), (8, 4, PS['G3'], P2), (12, 2, gS2, gS2 + 1), (12, 4, gSD, P2 + 1),
           (16, 2, P2 - 1, P2 + 1), (18, 4, gSD, P2 + 2)]
    resv = {pg: [] for pg in range(40)}
    for f, npg, ga, gb in res:
        for pg in range(f, f + npg): resv[pg].append((iv[ga], free_iv(gb + 1)))
    free_at = [-1] * 40; phys = {}; issue_grp = {}; qi = 0
    def ioff(k): return 0 if k[0] in ('HG', 'HU') else k[1] * 128
    def try_alloc(k, cur):
        for pg in ([fixed[k]] if k in fixed else range(39, -1, -1)):
            if free_at[pg] > cur or (pg == 0 and ioff(k) > 0): continue
            if any(not (fre[k] <= a_ or cur >= b_) for a_, b_ in resv[pg]): continue
            return pg
        return None
    NPRO = OPT.get('npro', 20)
    while qi < NPRO:
        k = order[qi]; phys[k] = try_alloc(k, -1); free_at[phys[k]] = fre[k]; issue_grp[k] = -1; qi += 1
    for gi, g in enumerate(G):
        g['dma'] = []
        while qi < len(order) and len(g['dma']) < g['rate']:
            k = order[qi]; pg = try_alloc(k, iv[gi])
            if pg is None: break
            assert iv[gi] < first[k], ("late DMA", k, gi)
            phys[k] = pg; free_at[pg] = fre[k]; issue_grp[k] = gi; g['dma'].append(k); qi += 1
    assert qi == len(order), order[qi]
    cum = [0]
    for g in G: cum.append(cum[-1] + g['nm'])
    bar_grp = {iv[gi]: gi for gi, g in enumerate(G) if g['bar']}
    slk = {}
    for k in order:
        if issue_grp[k] >= 0:
            kk_ = k[:2] if k[0] in 'GUD' else k[:1]
            slk[kk_] = min(slk.get(kk_, 9999), cum[bar_grp[first[k]]] - cum[issue_grp[k] + 1])
    print("min DMA slack (mfmas):", slk, file=sys.stderr)
    def mkdma(k):
        tag = "pg%d" % first[k]; pb = phys[k] * 4096
        if k[0] == 'x': return dma(V_DX, 'X', S_XQ + k[2], pb, k[1] * 128, tag)
        if k[0] == 'G': return dma(V_DW, 'WG', S_KK + k[2], pb, k[1] * 128, tag)
        if k[0] == 'U': return dma(V_DW, 'WU', S_KK + k[2], pb, k[1] * 128, tag)
        if k[0] == 'HG': return dma(V_DH, 'WG', S_KK + 2 * k[1], pb, 0, tag)
        if k[0] == 'HU': return dma(V_DH, 'WU', S_KK + 2 * k[1], pb, 0, tag)
        return dma(V_DD, 'WD', S_DK + k[2], pb, k[1] * 128, tag)
    for kk in range(4): p += L("s_mov_b32 s%d, %d" % (S_KK + kk, kk * 32 * 9216))
    pro = [k for k in order if issue_grp[k] < 0]
    for k in pro[:8]: p += list(mkdma(k))
    p += rest_srd()
    for kk in range(4, 18): p += L("s_mov_b32 s%d, %d" % (S_KK + kk, kk * 32 * 9216))
    GT = TMP + 2
    g1, g2f = gate_code(GT)
    p += g1
    for k in pro[8:]: p += list(mkdma(k))
    p += F("""v_lshrrev_b32 v{DH}, 2, v0
s_lshl_b32 {c}, {W}, 4
v_add_u32 v{DH}, {c}, v{DH}
v_mul_u32_u24 v{DH}, 9216, v{DH}
v_bfe_u32 v{t0}, v0, 1, 1
v_lshrrev_b32 v{t1}, 5, v0
v_xor_b32 v{t0}, v{t0}, v{t1}
v_lshl_add_u32 v{DH}, v{t0}, 5, v{DH}
v_and_b32 v{t0}, 1, v0
v_lshl_add_u32 v{DH}, v{t0}, 4, v{DH}
s_cmp_eq_u32 {e}, 0
s_cselect_b32 {c}, 512, 0
s_add_u32 {c}, {c}, {d}
v_add_u32 v{DH}, {c}, v{DH}
s_mul_i32 {a}, {C}, %d
s_mul_i32 {c}, {e}, %d
s_add_u32 s%d, {a}, {c}
s_cmp_eq_u32 {e}, 0
s_cselect_b32 {c}, %d, 0
s_add_u32 s%d, {a}, {c}""" % (288 * 1152, 32 * 1152, S_DK, 256 * 1152, S_DK + 8), **e)
    for ks in range(1, 8): p += L("s_add_u32 s%d, s%d, %d" % (S_DK + ks, S_DK, ks * 32 * 1152))
    p += F("""v_lshrrev_b32 v{RW}, 2, v1
v_lshlrev_b32 v{RW}, 7, v{RW}
v_lshl_add_u32 v{RW}, v2, 10, v{RW}
v_and_b32 v{t0}, 3, v1
v_lshl_add_u32 v{RW}, v{t0}, 3, v{RW}
v_bfe_u32 v{t0}, v1, 3, 1
v_and_b32 v{t1}, 1, v2
v_lshl_add_u32 v{t0}, v{t1}, 1, v{t0}
s_lshl_b32 {a}, {FH}, 1
v_xor_b32 v{t0}, {a}, v{t0}
v_lshl_add_u32 v{RW}, v{t0}, 5, v{RW}
v_xor_b32 v{RW1}, 32, v{RW}
v_lshrrev_b32 v{t0}, 1, v1
v_xor_b32 v{t0}, v{t0}, v2
v_lshlrev_b32 v{t0}, 4, v{t0}
v_lshl_add_u32 v{RX}, v1, 7, v{t0}
s_lshl_b32 {a}, {RG}, 13
v_add_u32 v{RX}, {a}, v{RX}
v_xor_b32 v{RX1}, 64, v{RX}""", **e)
    for b in (V_RW, V_RW + 3, V_RX, V_RX + 3):
        p += L("v_add_u32 v%d, 0x10000, v%d\nv_add_u32 v%d, 0x20000, v%d" % (b + 1, b, b + 2, b))
    p += F("""v_lshlrev_b32 v{L16}, 4, v0
v_add_u32 v{L16B}, 0x10000, v{L16}
s_lshl_b32 {a}, {FH}, 13
s_lshl_b32 {b}, {RG}, 12
s_add_u32 {a}, {a}, {b}
v_add_u32 v{HW}, {a}, v{L16}
s_lshl_b32 {a}, {FH}, 3
s_add_u32 {a}, {a}, {b}
v_add_u32 v{HH}, {a}, v{L16B}
s_mul_i32 {a}, {T}, %d
s_lshl_b32 {b}, {W}, 16
s_add_u32 {a}, {a}, {b}
s_lshl_b32 {b}, {C}, 10
s_add_u32 {a}, {a}, {b}
v_add_u32 v{VST_}, {a}, v{L16}
s_mov_b32 {Q}, 0x3e800000
s_mov_b32 {NL}, %s
s_add_u32 {KB1}, {C}, 2
s_add_u32 {KB3}, {C}, 4
s_cmp_lt_u32 {KB3}, 18
s_cselect_b32 {KB3}, {KB3}, 0
s_mul_i32 {GA}, {T}, 12
s_add_u32 {GA}, {GA}, {C}
s_cmp_lt_u32 {C}, 12
s_cselect_b32 {GA}, {GA}, 0x1000
s_add_u32 {GB}, {GA}, 192""" % (9 * 16 * 16384, f2h(-math.log2(math.e))), **e)
    TP = V_SIL
    TF = lambda kk: (SET[3] + 4 * kk) if kk < 8 else FB + 32
    p += t_setup(TP, ENV['C'])
    for kk in range(9): p += t_frag(kk, TF(kk), SET[2], TP)
    sec = Sec2()
    FBUF = lambda gi: FB + 12 * (gi % 3)
    def frag_reads(gi):
        g = G[gi]; out = []
        for e_, k in enumerate(g['need']):
            pb = phys[k] * 4096
            if k[0] in 'GU':
                ap = g['tau'] & 1 if g['kind'] == 'SB' else g['ap']
                base, o, d2 = V_RW + 3 * ap, pb, 512
            elif k[0] in ('HG', 'HU'): base, o, d2 = V_RX, pb + ((3 * g['gi'] + e_) & 1) * 2048, 256
            else: base, o, d2 = V_RX + 3, pb, 2048
            r = FBUF(gi) + 4 * e_
            out.append(L("ds_read_b64_tr_b16 v[%d:%d], v%d offset:%d\nds_read_b64_tr_b16 v[%d:%d], v%d offset:%d"
                         % (r, r + 1, base + (o >> 16), o & 0xffff, r + 2, r + 3, base + (o >> 16), (o & 0xffff) + d2), lds_r=(pb, pb + 4096), tag="f%d" % gi))
        return out
    def x_reads(sg, e_):
        kk = 2 * sg + e_; out = []; pb = phys[('x', sg, 0)] * 4096
        for mi in range(4):
            o = pb + mi * 2048
            out += L("ds_read_b128 %s, v%d offset:%d" % (rs(XF(mi, kk)), V_RX + 3 * e_ + (o >> 16), o & 0xffff), lds_r=(pb, pb + 16384), tag="x%d" % sg)
        return [out[0:2], out[2:4]]
    def lin_read(regs, o, tag):
        return L("ds_read_b128 %s, v%d offset:%d" % (rs(regs), V_L16B if o >> 16 else V_L16, o & 0xffff), lds_r=(o, o + 1024), tag=tag)[0]
    def silu_a(regs):
        out = []
        for i in range(0, len(regs), 4):
            T = V_SIL + (i & 4); rr = regs[i:i + 4]
            out += [F("v_mul_f32 v%d, {NL}, v%d" % (T + j, r))[0] for j, r in enumerate(rr)]
            out += [I("v_exp_f32 v%d, v%d" % (T + j, T + j)) for j in range(4)]
            out += [I("v_add_f32 v%d, 1.0, v%d" % (T + j, T + j)) for j in range(4)]
            out += [I("v_rcp_f32 v%d, v%d" % (T + j, T + j)) for j in range(4)]
            out += [I("v_mul_f32 v%d, v%d, v%d" % (r, r, T + j)) for j, r in enumerate(rr)]
        return out
    def silu_b(sg_, su_, b):
        out = []
        for mi in range(4):
            d = su_ + 4 * mi
            for ap in range(2):
                gq, uq = sg_ + (ap * 4 + mi) * 4, su_ + (ap * 4 + mi) * 4
                out += [I("v_mul_f32 v%d, v%d, v%d" % (gq + r, gq + r, uq + r)) for r in range(4)]
            for ap in range(2):
                gq = sg_ + (ap * 4 + mi) * 4
                out += [I("v_cvt_pk_bf16_f32 v%d, v%d, v%d" % (d + 2 * ap + h, gq + 2 * h, gq + 2 * h + 1)) for h in range(2)]
            out += L("ds_write_b128 v%d, v[%d:%d] offset:%d" % (V_HW, d, d + 3, b * 16384 + mi * 1024), lds_w=(b * 16384, b * 16384 + 16384), tag="lds")
        return out
    def silu_bH(st):
        out = []
        for mi in range(4):
            gq, uq = st + 4 * mi, st + 16 + 4 * mi
            out += [I("v_mul_f32 v%d, v%d, v%d" % (gq + r, gq + r, uq + r)) for r in range(4)]
            out += [I("v_cvt_pk_bf16_f32 v%d, v%d, v%d" % (uq + h, gq + 2 * h, gq + 2 * h + 1)) for h in range(2)]
            out += L("ds_write_b64 v%d, v[%d:%d] offset:%d" % (V_HH, uq, uq + 1, mi * 1024), lds_w=(65536, 65536 + 8192), tag="lds")
        return out
    allr = lambda st, n=32: list(range(st, st + n))
    p += stamp(1) + L("s_barrier", need_vm=("pg0",)) + stamp(2)
    xa, xb = x_reads(0, 0), x_reads(0, 1)
    pre_reads = {0: frag_reads(0), 1: frag_reads(1)}
    for r_ in [xa[0], xb[0]] + pre_reads[0] + [xa[1], xb[1]] + pre_reads[1]: p += r_
    for i in g2f: Ins.seq += 1; i.id = Ins.seq
    sec.stream(g2f, 16, 278, "gate")
    TWA = lambda a_: (TMP + 2 + 8 * a_) if a_ < 3 else SET[3]
    PACC = [SET[1], SET[2]]; YR = [SET[3], SET[0]]
    OMG, VG, KF, VD, SF, VP = TMP, TMP + 8, [TMP + 10, TMP + 17], TMP + 21, FB + 24, TMP + 22
    GT4 = V_SIL
    def spectral_group(cb):
        acc = PACC[cb & 1]
        for mi in range(8): sec.mfma(mf(V(acc + 4 * mi, 4), V(SF, 4), V(YR[0] + 4 * mi, 4), V(acc + 4 * mi, 4)))
        o = "x3_%d" % cb
        blk = F("s_cmp_lt_u32 {KB3}, 16\ns_cbranch_scc1 L_%s_KN" % o)
        blk += irfft_frag(SF + 4, KF[1], VD, GT4 + 4, opt=o)
        for mi in range(8): blk.append(mf(V(acc + 4 * mi, 4), V(SF + 4, 4), V(YR[1] + 4 * mi, 4), V(acc + 4 * mi, 4), o))
        blk += L("L_%s_KN:" % o) + L("v_add_f32 v%d, %s, v%d" % (VD, f2h(64.0), VD))
        sec.block(sec.n() - 1, blk)
    def scale_ops(cb):
        acc = PACC[cb & 1]
        return [I("v_mul_f32 v%d, v%d, v%d" % (acc + 4 * mi + r, acc + 4 * mi + r, OMG + mi)) for mi in range(8) for r in range(4)]
    def out_ops(cb):
        acc = PACC[cb & 1]; out = []
        for ip in range(4):
            b = acc + 8 * ip
            out += F("s_mov_b32 {ST}, 0x%x" % (WS_P + cb * 262144 + ip * 16384))
            out += [I("v_cvt_pk_bf16_f32 v%d, v%d, v%d" % (b + d, b + 2 * d, b + 2 * d + 1)) for d in range(4)]
            out += F("buffer_store_dwordx4 v[%d:%d], v%d, {WS}, {ST} offen%s" % (b, b + 3, V_ST, OPT.get('pst', " sc1")))
        return out
    hq = {HU + 1: list(range(0, 8)), HU + 2: list(range(8, 16)), HU + 3: list(range(16, 24)), HU + 4: list(range(24, 32)), HU + 5: list(range(32, 40)),
          P2: list(range(40, 64)), P2 + 1: list(range(64, 72))}
    FBUF2 = FBUF
    extra_need = {}
    gp1 = PS['G2'] + OPT.get('p1at', 7)
    gp2 = PS['U3'] + OPT.get('p2at', 2)
    def next_bar(gi):
        while not G[gi]['bar']: gi += 1
        return gi
    gc1 = next_bar(gp1 + 3); gc2 = next_bar(gp2 + 3)
    ga1 = next_bar(PS['G1'] + 3); ga2 = next_bar(gS2 + 4)
    print("groups: arrive1 %d poll1 %d chk1 %d s2 %d arrive2 %d poll2 %d chk2 %d stepD %d  PS %s P2 %d" % (ga1, gp1, gc1, gS2, ga2, gp2, gc2, gSD, PS, P2), file=sys.stderr)
    S2D = [SET[2], SET[2] + 8]; S2W = [SET[3], SET[3] + 16]
    KBX = "s_lshr_b32 {x}, {g}, 4\ns_cmp_eq_u32 {x}, 18\ns_cselect_b32 {x}, 0, {x}\ns_lshl_b32 {x}, {x}, 2\ns_add_u32 {x}, {x}, {o}\ns_cmp_gt_u32 {g}, 288\ns_cselect_b32 {x}, 0x1000, {x}\n"
    kbx = lambda x, g, o: KBX.replace("{x}", "{%s}" % x).replace("{g}", "{%s}" % g).replace("{o}", str(o))
    for gi, g in enumerate(G):
        base = sec.n(); fb = FBUF(gi) if gi <= P2 else FB + 12 * ((gi - P2 + (P2 % 3)) & 1 if (P2 % 3) < 2 else (gi - P2 + 1) & 1)
        if gi > P2: FBUF = lambda n_: FB + 12 * ((n_ - P2 + (P2 % 3)) & 1 if (P2 % 3) < 2 else (n_ - P2 + 1) & 1)
        ms = []
        if g['kind'] == 'SB':
            st = SET[0] if g['tau'] < 2 else SET[1]
            for mi in range(4):
                for e_ in range(2):
                    acc = V(st + ((g['tau'] & 1) * 4 + mi) * 4, 4); kk = 2 * g['sg'] + e_
                    ms.append(mf(acc, V(fb + 4 * e_, 4), XF(mi, kk), acc if kk else None))
            if g['tau'] == 3:
                for mi in range(4):
                    for e_ in range(2):
                        kk = 2 * g['sg'] + e_
                        acc = V(SET[2] + 16 * (kk // 9) + 4 * mi, 4)
                        ms.append(mf(acc, XF(mi, kk), V(TF(kk % 9), 4), acc if kk % 9 else None))
        elif g['kind'] == 'P1':
            for mi in range(4):
                for e_ in range(3):
                    acc = V(SET[g['st']] + (g['ap'] * 4 + mi) * 4, 4); kk = 3 * g['sl'] + e_
                    ms.append(mf(acc, V(fb + 4 * e_, 4), XF(mi, kk), acc if kk else None))
        elif g['kind'] == 'PH':
            for mi in range(4):
                for e_ in range(3):
                    acc = V(SET[0] + (g['half'] * 4 + mi) * 4, 4); kk = 3 * g['gi'] + e_
                    ms.append(mf(acc, V(fb + 4 * e_, 4), XF(mi, kk), acc if kk else None))
        else:
            for mi in range(8):
                for e_ in range(3):
                    acc = V(PACC[g['cb'] & 1] + 4 * mi, 4)
                    ms.append(mf(acc, V(fb + 4 * e_, 4), HF(mi, 3 * g['gi'] + e_), acc if (g['gi'] or e_) else None))
        lg = ["f%d" % gi]; vm = []
        if g['kind'] == 'SB' and g['tau'] == 0: lg.append("x%d" % g['sg'])
        if g['kind'] == 'P2' and g['cb'] == 0: lg.append("h%d" % g['gi'])
        if g['bar']:
            vm.append("pg%d" % iv[gi]); lg.append("lds")
            if gi == ga1: vm.append("pub1")
            if gi == ga2: vm.append("pub2")
        if gi in (gc1, gc2): sec.block(base - 1, poll_check("pc%d" % (1 if gi == gc1 else 2), VP, 28 if gi == gc1 else 29))
        if gi:
            if sec.blk.get(base - 1): sec.block(base - 1, [Need(vm, lg)])
            else: sec.at(base - 1, Need(vm, lg))
        for m_ in ms: sec.mfma(m_)
        nm = g['nm']; end = sec.n()
        sidx = None
        if g['kind'] in ('P1', 'PH') and PS[g['ps']] == gi: sidx = 3 + list(PS).index(g['ps'])
        if g['kind'] == 'P2' and g['gi'] == 0: sidx = 11 + g['cb']
        gap = 0
        if g['bar']:
            sec.at(base, L("s_barrier", need_vm=tuple(vm), need_lgkm=tuple(lg))); gap = 1
        if sidx is not None and OPT['stamps']: sec.block(base, stamp(sidx))
        pairs = []
        for n_ in range(gi + 1, min(NG, gi + 3)):
            if rdg(n_) == gi:
                if n_ > P2: FBUF = lambda q_: FB + 12 * ((q_ - P2 + (P2 % 3)) & 1 if (P2 % 3) < 2 else (q_ - P2 + 1) & 1)
                pairs += frag_reads(n_)
                if n_ > P2 and gi <= P2: FBUF = FBUF2
        if g['xr']: pairs += x_reads(*g['xr'])
        hr = [lin_read(HF(n_ & 7, n_ >> 3), (n_ >> 3) * 8192 + (n_ & 7) * 1024, "h%d" % (n_ // 24)) for n_ in hq.get(gi, [])]
        if g['kind'] == 'P2' and g['cb'] == 0 and g['gi'] == 2:
            hr = [lin_read(V(YR[y] + 4 * mi, 4), 18 * 4096 + y * 8192 + mi * 1024, "lds") for y in range(2) for mi in range(8)]
        hp = [hr[i:i + 2] for i in range(0, len(hr), 2)]
        pairs = hp + pairs if gi == P2 + 1 else pairs + hp
        avail = list(range(gap, nm - 1))
        items = []
        dm = [mkdma(k) for k in g['dma']]
        ip_, id_ = 0, 0
        early = g['kind'] == 'P2'
        while ip_ < len(pairs) or id_ < len(dm):
            if ip_ < len(pairs): items.append(('r', pairs[ip_])); ip_ += 1
            elif not items or items[-1][0] == 'd': items.append(('z', None))
            if id_ < len(dm) and (not early or ip_ >= min(len(pairs), 3)): items.append(('d', dm[id_])); id_ += 1
        assert len(items) <= len(avail), (gi, len(items), len(avail))
        pos = 0; slack = len(avail) - len(items); nd_left = len(dm)
        for kind, it in items:
            if kind == 'r': sec.at(base + avail[pos], it)
            if kind == 'd':
                sec.at(base + avail[pos] - 1, it[0]); sec.at(base + avail[pos], it[1])
                sk = slack // max(1, nd_left); pos += sk; slack -= sk; nd_left -= 1
            pos += 1
        if g['kind'] == 'SB' and g['sg'] == 6 and g['tau'] == 3:
            sec.stream(twiddle_A(TWA, SET[3] + 8), end, end + 78, "twA")
        if gi == PS['G1'] - 1:
            blk = step_A(SET[2], TWA, SET[3] + 8, TP, ENV['C'])
            blk += F("s_cmp_lt_u32 {KB1}, 16\ns_cbranch_scc1 L_x1_KN")
            o = "x1"; s1 = Sec2(); XS = SET[3] + 8; XFr = SET[3] + 24
            s1.pre = t_setup(TP, ENV['KB1'], opt=o) + t_frag(0, XFr, XS, TP, opt=o)
            for kk in range(9):
                if kk < 8: nxt = None
                b0 = s1.n()
                for hh in range(2):
                    for mi in range(4):
                        acc = V(SET[2] + 16 * hh + 4 * mi, 4)
                        s1.mfma(mf(acc, XF(mi, kk + 9 * hh), V(XFr + 4 * (kk & 1), 4), acc if kk else None, o))
                if kk < 8: s1.stream(t_frag(kk + 1, XFr + 4 * ((kk + 1) & 1), XS, TP, opt=o), b0, b0 + 6)
            blk += s1.flatten() + step_A(SET[2], TWA, SET[3] + 8, TP, ENV['KB1'], opt=o) + L("L_x1_KN:")
            sec.block(end - 1, blk)
            sw = F("""v_lshrrev_b32 v{RX}, 2, v1
v_lshl_add_u32 v{RX}, v2, 3, v{RX}
v_lshlrev_b32 v{RX}, 6, v{RX}
v_and_b32 v{t0}, 3, v1
v_lshl_add_u32 v{RX}, v{t0}, 3, v{RX}
v_and_b32 v{t1}, 1, v2
v_xor_b32 v{t1}, {FH}, v{t1}
v_lshl_add_u32 v{RX}, v{t1}, 5, v{RX}
v_lshrrev_b32 v{RX1}, 2, v1
v_lshl_add_u32 v{RX1}, v2, 2, v{RX1}
v_bfe_u32 v{t1}, v{RX1}, 1, 2
v_xor_b32 v{t1}, {W}, v{t1}
v_lshlrev_b32 v{RX1}, 7, v{RX1}
v_lshl_add_u32 v{RX1}, v{t1}, 5, v{RX1}
v_lshl_add_u32 v{RX1}, v{t0}, 3, v{RX1}""", **e)
            for b in (V_RX, V_RX + 3): sw += L("v_add_u32 v%d, 0x10000, v%d\nv_add_u32 v%d, 0x20000, v%d" % (b + 1, b, b + 2, b))
            sec.stream(sw, end - 36, end - 2, "sw")
            sec.stream(silu_a(allr(SET[0])), end, end + 200, "a0")
            sec.stream(silu_b(SET[0], SET[1], 0), end + 145, end + 286, "b0", "a0")
        if g['kind'] == 'P1' and g['sl'] == 5 and g['ap'] == 1:
            ps = g['ps']
            if ps == 'G1': sec.stream(silu_a(allr(SET[3])), end + 2, end + 287 - 30, "a1", "a0")
            if ps == 'U1': sec.stream(silu_b(SET[3], SET[2], 1), end + 2, end + 143, "b1", "a1")
            if ps == 'G2': sec.stream(silu_a(allr(SET[0])), end + 2, end + 230, "a2", "a1")
            if ps == 'U2':
                sec.stream(silu_b(SET[0], SET[1], 2), end + 2, end + 143 + 12 * (gc2 - PS['U3']), "b2", "a2")
            if ps == 'G3':
                sec.stream(silu_a(allr(SET[3])), end + 2, end + 143 + 40, "a3", "a2")
            if ps == 'U3': sec.stream(silu_b(SET[3], SET[2], 3), end + 2, end + 72 + 50, "b3", "a3")
        if g['kind'] == 'PH' and g['gi'] == 5:
            if g['half'] == 0: sec.stream(silu_a(allr(SET[0], 16)), end + 2, end + 72 + 10, "aH", "a3")
            else: sec.stream(silu_bH(SET[0]), end + 2, end + 22, "bH", "aH")
        if gi == ga1:
            sec.block(base, arrive("ar1", "s_lshl_b32 {a}, {C}, 2\ns_lshl_b32 {b}, {T}, 2\ns_add_u32 {b}, {b}, 144\ns_lshl_b32 {c}, {KB1}, 2\ns_cmp_lt_u32 {KB1}, 16\ns_cselect_b32 {c}, 0x1000, {c}", VP))
        if gi == ga2:
            sec.block(base, arrive("ar2", kbx('a', 'GA', 72) + kbx('b', 'GB', 72) + "s_mov_b32 {c}, 0x1000", VP))
        if gi == gp1:
            sec.block(base + 1, poll_issue("pi1", kbx('a', 'GA', 0) + kbx('b', 'GB', 0) + "s_mov_b32 {c}, 0x1000",
                      "s_cmp_gt_u32 {GA}, 288\ns_cselect_b32 {a}, 0, 16\ns_cmp_gt_u32 {GB}, 288\ns_cselect_b32 {b}, 0, 16\ns_mov_b32 {c}, 0", VP))
        if gi == gp2:
            sec.block(base + 1, poll_issue("pi2", "s_lshl_b32 {a}, {C}, 2\ns_add_u32 {a}, {a}, 72\ns_lshl_b32 {b}, {KB3}, 2\ns_add_u32 {b}, {b}, 72\ns_lshl_b32 {c}, {T}, 2\ns_add_u32 {c}, {c}, 144",
                      "s_cmp_eq_u32 {C}, 0\ns_cselect_b32 {a}, 17, 16\ns_cmp_lt_u32 {KB3}, 16\ns_cselect_b32 {b}, 0, 16\ns_mov_b32 {c}, 16", VP))
        if gi == max(gc1, PS['U2']):
            blk = []
            for r_, (gam, keep) in enumerate((('GA', 'SA'), ('GB', 'SB'))):
                o = "s2l%d" % r_
                blk += F("s_cmp_gt_u32 {%s}, 288\ns_cbranch_scc1 L_%s_KN" % (gam, o))
                blk += s2_wloads(ENV[gam], ENV[keep], S2W[r_], TMP, o) + s2_dloads(ENV[keep], S2D[r_], TMP, o) + L("L_%s_KN:" % o)
            sec.block(base + 1, blk)
        if gi == gS2:
            blk = []
            M = TMP; Z = SET[2] + 16
            for r_, (gam, keep) in enumerate((('GA', 'SA'), ('GB', 'SB'))):
                o = "s2c%d" % r_
                blk += F("s_cmp_gt_u32 {%s}, 288\ns_cbranch_scc1 L_%s_KN" % (gam, o))
                blk += s2_compute(ENV[keep], M, S2D[r_], Z, S2W[r_], TMP + 24, 12 * 4096, o, pre=(lambda: dft32(M, Z, o)) if r_ == 0 else None) + L("L_%s_KN:" % o)
            sec.block(end - 1, blk)
        if gi == gc2:
            blk = F("s_lshl_b32 {a}, {T}, 9\ns_add_u32 {a}, {a}, %d\nv_lshlrev_b32 v%d, 2, v1" % (WS_O, VD))
            for mi in range(8): blk += F("buffer_load_dword v%d, v%d, {WS}, {a} offen offset:%d sc1" % (OMG + mi, VD, mi * 64))
            blk += F("s_lshl_b32 {b}, {RG}, 8\ns_add_u32 {a}, {a}, {b}\ns_lshl_b32 {b}, {FH}, 6\ns_add_u32 {a}, {a}, {b}\ns_sub_u32 {a}, {a}, %d" % (WS_O - WS_G))
            for u in range(2): blk += F("buffer_load_dword v%d, v%d, {WS}, {a} offen offset:%d sc1" % (VG + u, VD, u * 128))
            blk += stepD_loads(ENV['C'], SET[0])
            blk += F("s_cmp_lg_u32 {C}, 0\ns_cbranch_scc1 L_nyl_KN") + stepD_nyloads(SET[0] + 16, VD, "nyl") + L("L_nyl_KN:")
            blk += F("s_cmp_lt_u32 {KB3}, 16\ns_cbranch_scc1 L_d2l_KN") + stepD_loads(ENV['KB3'], SET[0] + 16, opt="d2l") + L("L_d2l_KN:")
            sec.block(base + 1, blk)
            sec.stream(twiddle_D(SET[1], SET[1] + 16), base + 2, base + 12 * (gSD - gi) + 10, "twD")
        if gi == gSD:
            sc_ = f2h(2.0 / (2048 * 576))
            blk = L("v_mul_f32 v%d, %s, v%d\nv_mul_f32 v%d, %s, v%d" % (VG, sc_, VG, VG + 1, sc_, VG + 1))
            NB = TMP + 10
            blk += stepD(SET[0], SET[0] + 16, NB, SET[1], SET[1] + 16, VG, VP, 12 * 4096, 18 * 4096)
            blk += F("s_cmp_lt_u32 {KB3}, 16\ns_cbranch_scc1 L_d2_KN")
            blk += stepD(SET[0] + 16, None, NB, SET[1], SET[1] + 16, VG, VP, 12 * 4096, 20 * 4096, opt="d2")
            blk += irfft_setup(KF[1], VP, ENV['KB3'], opt="d2") + L("L_d2_KN:")
            blk += irfft_setup(KF[0], VP, ENV['C'])
            blk += F("s_lshl_b32 {a}, {W}, 4\nv_add_u32 v%d, {a}, v1\nv_cvt_f32_u32 v%d, v%d" % (VD, VD, VD))
            sec.block(end - 1, blk)
        if g['kind'] == 'P2':
            cb = g['cb']
            if g['gi'] == 2:
                sec.stream(irfft_frag(SF, KF[0], VD, GT4), base, end + (21 if cb < 8 else -1))
                if cb < 8: sec.stream(scale_ops(cb), end + 1, end + 22)
            if g['gi'] == 0 and cb > 0:
                spectral_group(cb - 1)
                sec.stream(out_ops(cb - 1), sec.n() + 2, sec.n() + 46)
    p += sec.flatten(verbose=True)
    sec = Sec2()
    p += scale_ops(8)
    spectral_group(8); p += sec.flatten()
    p += out_ops(8) + stamp(20) + stamp_out(2)
    emit(a, name, p, 512, accum=256)

def kernel_reduce(a):
    name = "reduce_kernel"
    VST[0] = 80
    a.launch(name, 576, 256, 0)
    p = L("s_cmp_ge_u32 s2, 576\ns_cbranch_scc1 L_end_KN")
    if OPT['stamps']: p += L("v_mov_b32 v%d, 0" % VST[0])
    p += stamp(0)
    p += L("s_load_dwordx2 s[68:69], s[0:1], 64\ns_load_dwordx2 s[72:73], s[0:1], 80")
    p += F("""v_lshrrev_b32 v1, 6, v0
v_and_b32 v0, 63, v0
v_readfirstlane_b32 {W}, v1
v_lshlrev_b32 v3, 4, v0
s_lshl_b32 {a}, s2, 2
s_add_u32 {a}, {a}, {W}
s_lshl_b32 {b}, {a}, 14
s_add_u32 {b}, {b}, %d
s_waitcnt lgkmcnt(0)""" % WS_P)
    p += srd(24, 72, WS_BYTES)
    for i in range(16):
        if i % 4 == 0 and i: p += F("s_add_u32 {b}, {b}, 4096")
        p += F("buffer_load_dwordx4 v[%d:%d], v3, {WS}, {b} offen offset:%d" % (16 + 4 * i, 19 + 4 * i, (i % 4) * 1024))
    p += srd(44, 68, 2048 * 1152)
    p += F("""s_lshr_b32 {c}, {a}, 4
s_mul_i32 {T}, {c}, 57
s_lshr_b32 {T}, {T}, 9
s_mul_i32 {d}, {T}, 9
s_sub_u32 {c}, {c}, {d}
s_lshl_b32 {c}, {c}, 7
s_bfe_u32 {d}, {a}, 0x20002
s_lshl_b32 {d}, {d}, 5
s_add_u32 {c}, {c}, {d}
s_and_b32 {d}, {a}, 3
s_and_b32 {e}, {d}, 1
s_lshl_b32 {e}, {e}, 10
s_lshr_b32 {d}, {d}, 1
s_add_u32 {e}, {e}, {d}
s_lshl_b32 {d}, {T}, 1
s_add_u32 {e}, {e}, {d}
s_mul_i32 {e}, {e}, 1152
s_add_u32 {c}, {c}, {e}
v_and_b32 v4, 31, v0
v_mul_u32_u24 v4, %d, v4
v_lshrrev_b32 v5, 5, v0
v_lshl_add_u32 v4, v5, 4, v4""" % (32 * 1152))
    for i in range(16):
        for d in range(4):
            r = 16 + 4 * i + d
            if i == 0: p += L("v_lshlrev_b32 v%d, 16, v%d\nv_and_b32 v%d, 0xffff0000, v%d" % (6 + 2 * d, r, 7 + 2 * d, r))
            else: p += L("v_lshlrev_b32 v14, 16, v%d\nv_and_b32 v15, 0xffff0000, v%d\nv_add_f32 v%d, v%d, v14\nv_add_f32 v%d, v%d, v15" % (r, r, 6 + 2 * d, 6 + 2 * d, 7 + 2 * d, 7 + 2 * d))
    for d in range(4): p += L("v_cvt_pk_bf16_f32 v%d, v%d, v%d" % (16 + d, 6 + 2 * d, 7 + 2 * d))
    p += L("v_permlane16_swap_b32 v16, v18\nv_permlane16_swap_b32 v17, v19")
    p += F("buffer_store_dwordx4 v[16:19], v4, {OUT}, {c} offen")
    p += stamp_out(3)
    emit(a, name, p, 88)

if __name__ == "__main__":
    for x in sys.argv[2:]:
        k, v = x.split("=")
        OPT[k] = int(v) if v.lstrip("-").isdigit() else v.replace("_", " ")
    a = Asm()
    kernel_main(a); kernel_reduce(a)
    open(sys.argv[1], "w").write(a.text())
```

```python
import re, sys

def R(kind, lo, n=1):
    return [(kind, lo + i) for i in range(n)]
def V(lo, n=1): return R('v', lo, n)
def A(lo, n=1): return R('a', lo, n)
def S(lo, n=1): return R('s', lo, n)
def rs(regs):
    k, lo = regs[0]
    n = len(regs)
    for i, r in enumerate(regs):
        assert r == (k, lo + i), regs
    return "%s%d" % (k, lo) if n == 1 else "%s[%d:%d]" % (k, lo, lo + n - 1)

TRANS = ("v_exp_f32", "v_rcp_f32", "v_sin_f32", "v_cos_f32", "v_log_f32", "v_rsq_f32", "v_sqrt_f32")

class Ins:
    seq = 0
    def __init__(self, text, kind, rd=(), wr=(), **kw):
        self.text = text; self.kind = kind
        self.rd = list(rd); self.wr = list(wr)
        self.lds_r = kw.get("lds_r")
        self.lds_w = kw.get("lds_w")
        self.priv = kw.get("priv", False)
        self.tag = kw.get("tag")
        self.need_vm = kw.get("need_vm", ())
        self.need_lgkm = kw.get("need_lgkm", ())
        self.opt = kw.get("opt", False)
        self.mC = kw.get("mC", ())
        self.wide = kw.get("wide", False)
        self.passes = kw.get("passes", 4)
        self.op = text.split()[0] if text else ""
        self.trans = self.op.replace("_e32", "").replace("_e64", "") in TRANS
        Ins.seq += 1
        self.id = Ins.seq
    def cost(self):
        if self.kind == 'valu': return 8 if self.trans else 4
        return 4

_reg_re = re.compile(r"\b([vas])(\d+)\b|\b([vas])\[(\d+):(\d+)\]")
def parse_regs(tok):
    out = []
    for m in _reg_re.finditer(tok):
        if m.group(1): out.append((m.group(1), int(m.group(2))))
        else: out += R(m.group(3), int(m.group(4)), int(m.group(5)) - int(m.group(4)) + 1)
    if re.search(r"\bvcc\b", tok): out.append(('s', 'vcc'))
    if re.search(r"\bm0\b", tok): out.append(('s', 'm0'))
    if re.search(r"\bexec\b", tok): out.append(('s', 'exec'))
    return out

def split_ops(s):
    out, depth, cur = [], 0, ""
    for ch in s:
        if ch == "[" or ch == "(": depth += 1
        if ch == "]" or ch == ")": depth -= 1
        if ch == "," and depth == 0:
            out.append(cur.strip()); cur = ""
        else: cur += ch
    if cur.strip(): out.append(cur.strip())
    return out

RMW = ("v_writelane_b32", "v_fmac_f32", "v_dot2c_f32_bf16", "v_permlane32_swap_b32", "v_permlane16_swap_b32")
def I(text, **kw):
    text = text.strip()
    op = text.split()[0]
    rest = text[len(op):].strip()
    ops = split_ops(rest)
    rd, wr = [], []
    if op.startswith("v_mfma"):
        wr = parse_regs(ops[0]); rd = parse_regs(ops[1]) + parse_regs(ops[2]) + parse_regs(ops[3])
        return Ins(text, 'mfma', rd, wr, mC=parse_regs(ops[3]), passes=(8 if "32x32x16" in op else 4), **kw)
    if op.startswith("ds_read"):
        return Ins(text, 'ds', parse_regs(ops[1]), parse_regs(ops[0]), **kw)
    if op.startswith("ds_write"):
        return Ins(text, 'ds', parse_regs(rest), [], **kw)
    if op.startswith("ds_bpermute") or op.startswith("ds_swizzle"):
        return Ins(text, 'ds', parse_regs(",".join(ops[1:])), parse_regs(ops[0]), **kw)
    if op.startswith("buffer_load"):
        if rest.endswith(" lds"):
            return Ins(text, 'dma', parse_regs(rest) + [('s', 'm0')], [], **kw)
        w = parse_regs(ops[0])
        r = parse_regs(",".join(ops[1:]))
        return Ins(text, 'vmem', r, w, **kw)
    if op.startswith("buffer_store"):
        return Ins(text, 'vmem', parse_regs(rest), [], wide=("x4" in op or "x3" in op), **kw)
    if op.startswith("buffer_atomic"):
        w = parse_regs(ops[0]) if " sc0" in rest else []
        return Ins(text, 'vmem', parse_regs(rest), w, **kw)
    if op == "s_barrier": return Ins(text, 'bar', **kw)
    if op in ("s_nop", "s_setprio", "s_sleep"): return Ins(text, 'nop', **kw)
    if op == "s_waitcnt": return Ins(text, 'wait', **kw)
    if op.startswith("s_cbranch") or op == "s_branch" or op == "s_endpgm":
        return Ins(text, 'br', [('s', 'scc')] if "scc" in op else ([('s', 'exec')] if "exec" in op else ([('s','vcc')] if "vcc" in op else [])), [], **kw)
    if text.endswith(":"): return Ins(text, 'label', **kw)
    if op.startswith("s_load") or op.startswith("s_mem"):
        return Ins(text, 'smem', parse_regs(",".join(ops[1:])), parse_regs(ops[0]), **kw)
    if op.startswith("s_cmp"):
        return Ins(text, 'salu', parse_regs(rest), [('s', 'scc')], **kw)
    if op.startswith("s_"):
        wr = parse_regs(ops[0]); rd = parse_regs(",".join(ops[1:]))
        if op.startswith("s_cselect") or op.startswith("s_addc"): rd.append(('s', 'scc'))
        if not (op.startswith("s_mov") or op.startswith("s_cselect") or op.startswith("s_mul") or op.startswith("s_getreg")):
            wr.append(('s', 'scc'))
        if "saveexec" in op: wr.append(('s', 'exec')); rd.append(('s', 'exec'))
        return Ins(text, 'salu', rd, wr, **kw)
    if op.startswith("v_"):
        wr = parse_regs(ops[0]); rd = parse_regs(",".join(ops[1:]))
        b = op.replace("_e32", "").replace("_e64", "")
        if b in RMW: rd += wr
        if "permlane" in b and "swap" in b: wr = wr + parse_regs(ops[1])
        return Ins(text, 'valu', rd, wr, **kw)
    raise ValueError(text)

def L(text, **kw):
    return [I(t, **kw) for t in text.strip().split("\n") if t.strip()]

class Sec:
    def __init__(self):
        self.m = []
        self.pre = []
        self.pin = {}
        self.streams = []
    def n(self): return len(self.m)
    def mfma(self, ins): self.m.append(ins); return len(self.m) - 1
    def at(self, idx, ins):
        if not isinstance(ins, list): ins = [ins]
        if idx < 0: self.pre += ins
        else: self.pin.setdefault(idx, []).extend(ins)
    def stream(self, lst, start, end):
        self.streams.append([list(lst), start, end])
    def flatten(self, cap=8):
        out = list(self.pre)
        n = len(self.m)
        st = [dict(ops=s[0], pos=0, start=s[1], end=min(s[2], n - 1), tot=sum(i.cost() for i in s[0]), done=0) for s in self.streams]
        for g in range(n):
            out.append(self.m[g])
            pins = self.pin.get(g, [])
            out += pins
            room = cap - sum(4 for p in pins if p.kind in ('ds', 'dma', 'vmem', 'salu', 'valu', 'bar'))
            act = [s for s in st if s['start'] <= g and s['pos'] < len(s['ops'])]
            while True:
                best = None; bl = -1e9
                for s in act:
                    if s['pos'] >= len(s['ops']): continue
                    span = max(1, s['end'] - s['start'] + 1)
                    target = s['tot'] * min(1.0, (g - s['start'] + 1) / span)
                    lag = target - s['done']
                    c = s['ops'][s['pos']].cost()
                    must = g >= s['end'] or lag >= 3 * 8
                    if (must or (c <= room and lag > 0)) and (lag + (1e6 if must else 0)) > bl:
                        best = s; bl = lag + (1e6 if must else 0)
                if best is None: break
                ins = best['ops'][best['pos']]
                out.append(ins); best['pos'] += 1; best['done'] += ins.cost(); room -= ins.cost()
        for s in st:
            assert s['pos'] == len(s['ops']), "stream not drained"
        return out

def check_order(prog):
    def producers(seq):
        last = {}; res = {}
        for i in seq:
            res[i.id] = {r: last.get(r) for r in i.rd}
            for r in i.wr: last[r] = i.id
        return res
    a = producers(sorted(prog, key=lambda i: i.id)); b = producers(prog)
    byid = {i.id: i for i in prog}
    bad = 0
    for k in a:
        if a[k] != b[k]:
            for r in a[k]:
                if a[k][r] != b[k][r]:
                    bad += 1
                    if bad < 10:
                        f = lambda x: byid[x].text if x else None
                        print("ORDER VIOLATION at '%s' reg %s: logical producer '%s' scheduled producer '%s'" % (byid[k].text, r, f(a[k][r]), f(b[k][r])))
    assert bad == 0, "order violations: %d" % bad

def insert_waits(prog):
    out = []
    vm = []; lg = []
    def need(lst, idx, cur_opt):
        op = lst[idx]
        return sum(1 for y in lst[idx + 1:] if (not y.opt) or (y.opt == cur_opt))
    for i in prog:
        if i.kind == 'wait':
            m = re.search(r"vmcnt\((\d+)\)", i.text)
            if m and int(m.group(1)) == 0 and not i.opt:
                for y in vm: y.done_pos = len(out)
                vm = []
            m = re.search(r"lgkmcnt\((\d+)\)", i.text)
            if m and int(m.group(1)) == 0 and not i.opt:
                for y in lg: y.done_pos = len(out)
                lg = []
            out.append(i); continue
        touched = set(i.rd) | (set() if getattr(i, 'nowaw', False) else set(i.wr))
        nv = nl = None; iv = il = -1
        for k, y in enumerate(vm):
            if (set(y.wr) & touched) or (y.tag is not None and y.tag in i.need_vm): iv = k
        for k, y in enumerate(lg):
            if (set(y.wr) & touched) or (y.tag is not None and y.tag in i.need_lgkm): il = k
        parts = []
        if iv >= 0:
            nv = min(63, need(vm, iv, i.opt)); parts.append("vmcnt(%d)" % nv)
        if il >= 0:
            nl = min(15, need(lg, il, i.opt))
            if any(y.kind == 'smem' for y in lg): nl = 0; il = len(lg) - 1
            parts.append("lgkmcnt(%d)" % nl)
        if parts:
            w = Ins("s_waitcnt " + " ".join(parts), 'wait'); w.opt = i.opt
            def retire(lst, idx):
                keep = []
                for k, y in enumerate(lst):
                    if k <= idx and (not i.opt or y.opt == i.opt):
                        y.done_pos = len(out)
                    else: keep.append(y)
                return keep
            if iv >= 0: vm = retire(vm, iv)
            if il >= 0: lg = retire(lg, il)
            out.append(w)
        if i.kind == 'need': continue
        i.pos = len(out)
        out.append(i)
        if i.kind in ('vmem', 'dma'): i.done_pos = None; vm.append(i)
        if i.kind in ('ds', 'smem'): i.done_pos = None; lg.append(i)
    return out

def states(i):
    if i.kind == 'label': return 0
    if i.op == "s_nop": return int(i.text.split()[1]) + 1
    return 1

def insert_nops(prog):
    out = []
    W = 400
    for i in prog:
        need = 0
        dist = 0
        rd = set(i.rd); wr = set(i.wr)
        for p in reversed(out[-W:]):
            req = 0
            pw = set(p.wr)
            if p.kind == 'valu':
                vw = {r for r in pw if r[0] in 'va'}
                sw = {r for r in pw if r[0] == 's'}
                if i.kind == 'mfma' and vw & rd: req = max(req, 2)
                if i.kind == 'valu':
                    if p.trans and not i.trans and vw & rd: req = max(req, 1)
                    if "permlane" in i.op and vw & rd: req = max(req, 2)
                    if ("dpp" in i.text or "row_" in i.text or "quad_perm" in i.text) and vw & rd: req = max(req, 2)
                    if ("readfirstlane" in i.op or "readlane" in i.op) and vw & rd: req = max(req, 1)
                    if sw & rd: req = max(req, 2)
                if i.kind in ('vmem', 'dma') and sw & rd: req = max(req, 5)
                if i.kind in ('salu', 'br') and sw & rd: req = max(req, 2)
            if p.kind == 'mfma':
                big = {4: 8, 8: 12}[p.passes]
                if i.kind == 'mfma':
                    c = set(i.mC); ab = rd - c
                    if pw & ab: req = max(req, big)
                    if pw & c and list(i.mC) != list(p.wr): req = max(req, {4: 6, 8: 10}[p.passes])
                elif i.kind in ('valu', 'vmem', 'ds', 'dma'):
                    if pw & (rd | wr): req = max(req, big)
                    if i.kind == 'valu' and set(p.mC) & wr: req = max(req, {4: 3, 8: 7}[p.passes])
            if p.kind == 'salu' and ('s', 'm0') in pw and i.kind == 'dma': req = max(req, 1)
            if p.kind == 'vmem' and p.wide and not p.wr and wr & {r for r in p.rd if r[0] in 'va'}: req = max(req, 2)
            if req > dist: need = max(need, req - dist)
            if not (p.opt and p.opt != i.opt): dist += states(p)
            if dist >= 20: break
        while need > 0:
            k = min(need, 16)
            n = Ins("s_nop %d" % (k - 1), 'nop'); n.opt = i.opt
            out.append(n); need -= k
        out.append(i)
    return out

def check_lds(prog):
    bars = [i.pos for i in prog if i.kind == 'bar' and not i.opt]
    obars = [(i.pos, i.opt) for i in prog if i.kind == 'bar' and i.opt]
    import bisect
    def bar_between(a, b, o1=False, o2=False):
        k = bisect.bisect_right(bars, a)
        if k < len(bars) and bars[k] < b: return True
        return any(a < q < b and (o == o1 or o == o2) for q, o in obars)
    acc = [i for i in prog if i.lds_r or i.lds_w]
    G = 256
    lastw = {}; lastr = {}
    bad = 0
    def rep(kind, p, i):
        nonlocal bad
        bad += 1
        if bad < 10: print("LDS %s violation: '%s' (pos %d done %s) -> '%s' (pos %d)" % (kind, p.text, p.pos, p.done_pos, i.text, i.pos))
    def ok(p, i, samegroup):
        if p.priv and i.priv:
            if p.kind == 'ds' and i.kind == 'ds': return True
            return p.done_pos is not None and p.done_pos <= i.pos
        return p.done_pos is not None and bar_between(p.done_pos, i.pos, p.opt, i.opt)
    for i in acc:
        if i.lds_r:
            for g in range(i.lds_r[0] // G, (i.lds_r[1] + G - 1) // G):
                ws = lastw.get(g)
                assert ws, "read of never-written LDS: %s" % i.text
                for p in ws:
                    if not ok(p, i, False): rep("RAW", p, i)
                lastr.setdefault(g, []).append(i)
        if i.lds_w:
            for g in range(i.lds_w[0] // G, (i.lds_w[1] + G - 1) // G):
                rr = lastr.get(g, [])
                for p in rr:
                    if not ok(p, i, False): rep("WAR", p, i)
                if rr:
                    lastw[g] = [i]; lastr[g] = []
                else:
                    lastw.setdefault(g, []).append(i)
    assert bad == 0, "LDS violations: %d" % bad

def finish(prog, check=True):
    if check: check_order(prog)
    p = insert_waits(prog)
    if check: check_lds(p)
    p = insert_nops(p)
    return p

def stats(p):
    from collections import Counter
    c = Counter(i.kind for i in p)
    return dict(c)


def slots(i):
    k = i.kind
    if k == 'valu':
        return (2 if (i.trans or "permlane" in i.op) else 1, False)
    if k == 'ds':
        if i.op == "ds_write_b128": return (5, True)
        if i.op == "ds_write_b64": return (3, True)
        if i.op == "ds_write_b32": return (2, False)
        return (1, False)
    if k == 'dma': return (2, True)
    if k == 'vmem':
        return ((5 if i.wide else 3), True) if 'store' in i.op else (2, True)
    if k == 'bar': return (2, True)
    if k == 'need': return (0, False)
    return (1, False)

def is_scalar(i): return i.kind in ('salu', 'wait', 'nop', 'need')

def Need(vm=(), lgkm=(), regs=()):
    return Ins("", 'need', rd=regs, need_vm=tuple(vm), need_lgkm=tuple(lgkm))

class Sec2:
    def __init__(self):
        self.m = []; self.pre = []
        self.sc = {}
        self.pin = {}
        self.blk = {}
        self.streams = []
    def n(self): return len(self.m)
    def mfma(self, ins): self.m.append(ins); return len(self.m) - 1
    def at(self, g, ins):
        for i in (ins if isinstance(ins, list) else [ins]):
            (self.sc if is_scalar(i) else self.pin).setdefault(g, []).append(i)
    def block(self, g, lst): self.blk.setdefault(g, []).extend(lst)
    def free(self, g):
        return not self.sc.get(g) and not self.pin.get(g)
    def room(self, g):
        r = 2 - sum(slots(i)[0] for i in self.pin.get(g, [])) - max(0, len(self.sc.get(g, [])) - 1)
        return r
    def stream(self, lst, start, end, name="", after=None):
        aft = [s for s in self.streams if after and s['name'] in after.split(",")]
        self.streams.append(dict(ops=list(lst), pos=0, start=start, end=end, name=name, after=aft))
    def flatten(self, verbose=False):
        out = list(self.pre); n = len(self.m)
        over = 0; idle = 0
        self.over_at = {}
        for g in range(n):
            sc = list(self.sc.get(g, [])); vec = list(self.pin.get(g, []))
            room = self.room(g)
            excl = any(slots(i)[1] for i in vec)
            if excl: room = min(room, 0)
            act = sorted([s for s in self.streams if s['start'] <= g and s['pos'] < len(s['ops'])], key=lambda s: s['end'])
            took = set()
            while True:
                prog = False
                for s in act:
                    if s['pos'] >= len(s['ops']): continue
                    if any(t['pos'] < len(t['ops']) for t in s['after']): continue
                    i = s['ops'][s['pos']]
                    c, ex = slots(i)
                    force = g >= min(s['end'], n - 1)
                    if is_scalar(i):
                        if not sc and not excl and not took:
                            sc.append(i)
                        elif room >= 1 or force: vec.append(i); room -= 1
                        else: continue
                    elif ex:
                        if not sc and not vec: vec.append(i); room -= c; excl = True; room = min(room, 0)
                        elif force: vec.append(i); room -= c
                        else: continue
                    else:
                        if room >= c or force: vec.append(i); room -= c
                        else: continue
                    took.add(id(s))
                    s['pos'] += 1; prog = True
                    if s['pos'] == len(s['ops']): s['done_at'] = g
                    break
                if not prog: break
            if room < 0: over -= room; self.over_at[g] = -room
            else: idle += room
            out.append(self.m[g]); out += sc + vec + self.blk.get(g, [])
        for s in self.streams:
            assert s['pos'] == len(s['ops']), "stream not drained " + s['name']
        if verbose:
            print("flatten: mfma %d overflow slots %d idle slots %d" % (n, over, idle), file=sys.stderr)
            reg = {}
            for g, o in self.over_at.items(): reg[g // 72 * 72] = reg.get(g // 72 * 72, 0) + o
            print("   overflow by region:", reg, file=sys.stderr)
            for s in self.streams:
                if s['name']: print("   stream %-10s %4d..%4d done at %d (%d ops)" % (s['name'], s['start'], s['end'], s.get('done_at', -1), len(s['ops'])), file=sys.stderr)
        return out
```

```python
import sys, math, struct
from asmlib import *
from fw import *

WS_A = 0x000000
WS_B = 0x300000
WS_Y = 0x3000000
WS_G = 0x600000
WS_O = 0x602000
WS_P = 0x800000
WS_N = 0x610000
KB_STRIDE = 131072
MF = "v_mfma_f32_16x16x32_bf16"
def f2h(x): return "0x%08x" % struct.unpack("<I", struct.pack("<f", x))[0]
def mf(d, a, b, c, opt=False):
    return I("%s %s, %s, %s, %s" % (MF, rs(d), rs(a), rs(b), rs(c) if c else "0"), opt=opt)
def F(text, opt=False, tag=None, **env):
    e = dict(ENV); e.update(env)
    kw = {}
    for k in ("lds_r", "lds_w", "priv", "need_vm", "need_lgkm"):
        if k in env: kw[k] = env[k]
    return L(text.format(**e), opt=opt, tag=tag, **kw)

ENV = dict(X="s[8:11]", WG="s[12:15]", WU="s[16:19]", WD="s[20:23]", WS="s[24:27]", DBG="s[28:31]", WR="s[32:35]", WI="s[36:39]", GW="s[40:43]", OUT="s[44:47]",
           T="s79", C="s80", W="s81", W1K="s82", KB="s83", RG="s87", FH="s88", S2="s89", a="s84", b="s85", c="s86", d="s92", e="s93",
           Q="s94", KB3="s95", NL="s96", KB1="s97", GA="s98", GB="s99", SA="s100", SB="s101", ST="s90", SP="s91", u="s6", w="s7", ROT="s3")
S_KK, S_DK, S_XQ = 48, 66, 75
OPT = dict(stamps=False, BI=2, sc1p=True)
VST = [223]
def stamp(idx):
    if not OPT['stamps']: return []
    return L("s_memrealtime s[4:5]\ns_waitcnt lgkmcnt(0)\nv_writelane_b32 v%d, s4, %d\ns_memtime s[4:5]\ns_waitcnt lgkmcnt(0)\nv_writelane_b32 v%d, s4, %d" % (VST[0], idx, VST[0], 32 + idx))
def diag(n, idx):
    if OPT.get('diag', 0) != n: return []
    return L("s_waitcnt vmcnt(0)") + stamp(idx)
def stamp_out(kidx):
    if not OPT['stamps']: return []
    p = L("s_waitcnt vmcnt(0)") + stamp(31)
    p += F("s_cmp_lg_u32 {W}, 0\ns_cbranch_scc1 L_end_KN\ns_lshl_b32 s4, s2, 8\ns_add_u32 s4, s4, 0x%x\nv_lshlrev_b32 v0, 2, v0" % (STAMP_OFF + kidx * 262144))
    p += F("buffer_store_dword v%d, v0, {WS}, s4 offen" % VST[0])
    return p
def srd(d, b, n):
    return L("s_mov_b32 s%d, s%d\ns_and_b32 s%d, s%d, 0xffff\ns_mov_b32 s%d, 0x%x\ns_mov_b32 s%d, 0x20000" % (d, b, d + 1, b + 1, d + 2, n, d + 3))
def emit(a, name, prog, vg, accum=None):
    p = finish(prog)
    dr = OPT.get('drop', "")
    if 'd' in dr: p = [i for i in p if i.kind != 'dma']
    if 'b' in dr: p = [i for i in p if i.kind != 'bar']
    if 't' in dr: p = [i for i in p if not (i.kind == 'ds' and i.tag and i.tag.startswith('f'))]
    if 'v' in dr: p = [i for i in p if not getattr(i, 'silu', False)]
    if 's' in dr: p = [i for i in p if not (i.kind == 'vmem' and 's90' in i.text)]
    a.begin(name)
    for i in p: a(i.text.replace("KN", name))
    a("L_end_%s:\ns_endpgm" % name)
    a.end(name, vg, accum=accum)
    print(name, stats(p), file=sys.stderr)

def flat(t):
    o = []
    for x in t: o += x if isinstance(x, list) else [x]
    return o
def XF(mi, kk):
    n = kk * 4 + mi
    return A(4 * n, 4) if n < 64 else V(224 + 4 * (n - 64), 4)
def HF(mi, ks):
    n = ks * 8 + mi
    return XF(n & 3, n >> 2)
SET = [32, 64, 96, 128]
FB = 160
TMP = 196
V_DX, V_DW, V_DH, V_DD, V_RW, V_RX = 3, 4, 5, 6, 7, 13
V_HW, V_HH, V_L16, V_L16B, V_ST, V_SIL = 19, 20, 21, 22, 23, 24

def dma(vo, srdn, soff, pb, ioff, tag):
    assert pb - ioff >= 0
    m = F("s_add_u32 m0, {W1K}, %d" % (pb - ioff))[0]
    d = F("buffer_load_dwordx4 v%d, {%s}, s%d offen%s%s lds" % (vo, srdn, soff, (" offset:%d" % ioff) if ioff else "", OPT.get('xfl', "") if srdn == 'X' else OPT.get('wfl', "")), tag=tag, lds_w=(pb, pb + 4096))[0]
    return m, d

def gate_code(T):
    e = dict(va=T + 9, vo=T + 19, t0=T + 20, t1=T + 21, t2=T + 22, t3=T + 23)
    p = F("""v_lshrrev_b32 v{vo}, 5, v0
s_lshl_b32 {a}, {C}, 3
s_lshl_b32 {b}, {W}, 1
s_add_u32 {a}, {a}, {b}
v_add_u32 v{vo}, {a}, v{vo}
v_and_b32 v{t0}, 63, v{vo}
v_lshlrev_b32 v{t0}, 5, v{t0}
v_lshrrev_b32 v{t1}, 6, v{vo}
v_add_u32 v{t0}, v{t0}, v{t1}
s_lshl_b32 {a}, {T}, 1
v_add_u32 v{t0}, {a}, v{t0}
v_mul_u32_u24 v{t0}, 1152, v{t0}
v_and_b32 v{t1}, 31, v0
v_mul_u32_u24 v{t1}, 36, v{t1}
v_add_u32 v{t0}, v{t0}, v{t1}""", **e)
    for b_, ad, sr in ((T, "t0", "X"), (T + 10, "t1", "GW")):
        p += F("buffer_load_dwordx4 v[%d:%d], v{%s}, {%s}, 0 offen\nbuffer_load_dwordx4 v[%d:%d], v{%s}, {%s}, 0 offen offset:16\nbuffer_load_dword v%d, v{%s}, {%s}, 0 offen offset:32"
               % (b_, b_ + 3, ad, sr, b_ + 4, b_ + 7, ad, sr, b_ + 8, ad, sr), **e)
    q = []
    for n in range(9):
        q += F("""v_lshlrev_b32 v{t0}, 16, v{x}
v_lshlrev_b32 v{t1}, 16, v{g}
v_and_b32 v{t2}, 0xffff0000, v{x}
v_and_b32 v{t3}, 0xffff0000, v{g}
v_mul_f32 v{t0}, v{t0}, v{t1}
v_mul_f32 v{t2}, v{t2}, v{t3}
v_cvt_pk_bf16_f32 v{t0}, v{t0}, v{t2}
v_lshlrev_b32 v{t1}, 16, v{t0}
v_and_b32 v{t0}, 0xffff0000, v{t0}""", x=T + n, g=T + 10 + n, **e)
        q += F("v_add_f32 v{va}, v{t1}, v{t0}" if n == 0 else "v_add_f32 v{va}, v{va}, v{t1}\nv_add_f32 v{va}, v{va}, v{t0}", **e)
    for sh in (8, 4, 2, 1):
        q += F("v_add_f32_dpp v{va}, v{va}, v{va} row_ror:%d row_mask:0xf bank_mask:0xf" % sh, **e)
    q += F("""v_mov_b32 v{t0}, v{va}
v_and_b32 v{t1}, 31, v0
v_cmp_eq_u32 vcc, 0, v{t1}
v_permlane16_swap_b32 v{va}, v{t0}
v_add_f32 v{va}, v{va}, v{t0}
v_cvt_pk_bf16_f32 v{va}, v{va}, v{va}
v_lshlrev_b32 v{va}, 16, v{va}
v_mul_f32 v{va}, {NL}, v{va}
v_exp_f32 v{va}, v{va}
v_lshlrev_b32 v{vo}, 2, v{vo}
v_add_f32 v{va}, 1.0, v{va}
v_rcp_f32 v{va}, v{va}
v_bfrev_b32 v{t1}, 1
v_cvt_pk_bf16_f32 v{va}, v{va}, v{va}
v_lshlrev_b32 v{va}, 16, v{va}
v_sub_f32 v{t0}, 1.0, v{va}
v_cvt_pk_bf16_f32 v{t0}, v{t0}, v{t0}
v_lshlrev_b32 v{t0}, 16, v{t0}
v_cndmask_b32 v{vo}, v{t1}, v{vo}, vcc
s_lshl_b32 {u}, {T}, 9
s_add_u32 {u}, {u}, %d
s_add_u32 {w}, {u}, %d""" % (WS_G, WS_O - WS_G), **e)
    q += F("buffer_store_dword v{va}, v{vo}, {WS}, {u} offen sc1\nbuffer_store_dword v{t0}, v{vo}, {WS}, {w} offen sc1", tag="pub1", **e)
    return p, q

def t_setup(P, kb, opt=False):
    e = dict(vk=P, vphi=P + 1, vco=P + 2, vd=P + 3, vmu=P + 4, vsg=P + 5, t=P + 6, kb=kb)
    return F("""v_lshrrev_b32 v{vk}, 2, v1
v_lshlrev_b32 v{vk}, 1, v{vk}
v_and_b32 v{t}, 1, v1
v_add_u32 v{vk}, v{vk}, v{t}
v_lshlrev_b32 v{vsg}, 31, v{t}
v_or_b32 v{vsg}, 1.0, v{vsg}
s_lshl_b32 {a}, {kb}, 4
s_lshl_b32 {b}, {FH}, 3
s_add_u32 {a}, {a}, {b}
v_add_u32 v{vk}, {a}, v{vk}
v_bfe_u32 v{vphi}, v1, 1, 1
v_cvt_f32_u32 v{vphi}, v{vphi}
v_mul_f32 v{vphi}, 0x3e800000, v{vphi}
v_add_u32 v{t}, {a}, v1
v_cmp_eq_u32 vcc, 2, v{t}
v_mov_b32 v{t}, 0x120
v_lshlrev_b32 v{vd}, 3, v2
v_cndmask_b32 v{vk}, v{vk}, v{t}, vcc
v_cndmask_b32 v{vphi}, v{vphi}, 0, vcc
v_mul_u32_u24 v{t}, {ROT}, v{vk}
v_mul_u32_u24 v{vco}, 7282, v{t}
v_lshrrev_b32 v{vco}, 16, v{vco}
v_mul_u32_u24 v{vco}, 9, v{vco}
v_sub_u32 v{t}, v{t}, v{vco}
v_cvt_f32_u32 v{t}, v{t}
v_fmac_f32 v{vphi}, 0x3de38e39, v{t}
v_cvt_f32_u32 v{vk}, v{vk}
v_mul_f32 v{vco}, %s, v{vk}
v_mul_f32 v{vk}, %s, v{vk}
v_cos_f32 v{vco}, v{vco}
v_add_u32 v{t}, {a}, v2
v_cmp_eq_u32 vcc, 0, v{t}
v_cvt_f32_u32 v{vd}, v{vd}
v_add_f32 v{vco}, v{vco}, v{vco}
v_cndmask_b32 v{vmu}, 1.0, 0, vcc""" % (f2h(1.0 / 18), f2h(1.0 / 576)), opt=opt, **e)

def t_frag(kk, f, ST, P, opt=False):
    cur = ST + 8 * (kk & 1); prv = ST + 8 * ((kk + 1) & 1); ops = []
    if kk < 2:
        for j in range(8): ops += L("v_add_f32 v%d, %s, v%d" % (cur + j, f2h(32.0 * kk + j), P + 3), opt=opt)
        for j in range(8): ops += L("v_fma_f32 v%d, v%d, v%d, v%d" % (cur + j, cur + j, P, P + 1), opt=opt)
        for j in range(8): ops += L("v_cos_f32 v%d, v%d" % (cur + j, cur + j), opt=opt)
    else:
        for j in range(8): ops += L("v_fma_f32 v%d, v%d, v%d, -v%d" % (cur + j, P + 2, prv + j, cur + j), opt=opt)
    for jp in range(4): ops += L("v_cvt_pk_bf16_f32 v%d, v%d, v%d" % (f + jp, cur + 2 * jp, cur + 2 * jp + 1), opt=opt)
    return ops

def twiddle_A(TW, T):
    vs, vj, p0, p1, c0, c1 = T, T + 4, T + 5, T + 6, T + 7, T + 8
    p = F("v_lshlrev_b32 v{vs}, 7, v2\nv_add_u32 v{vs}, {S2}, v{vs}\nv_cvt_f32_u32 v{vs}, v{vs}", vs=vs)
    for j in range(1, 4): p += L("v_add_f32 v%d, %s, v%d" % (vs + j, f2h(32.0 * j), vs))
    for a in range(4):
        p += L("v_lshl_add_u32 v%d, v1, 2, %d\nv_cvt_f32_u32 v%d, v%d\nv_mul_f32 v%d, %s, v%d" % (vj, a, vj, vj, vj, f2h(1.0 / 2048), vj))
        b = TW(a)
        for jp in range(2):
            p += L("""v_mul_f32 v%d, v%d, v%d
v_mul_f32 v%d, v%d, v%d
v_cos_f32 v%d, v%d
v_cos_f32 v%d, v%d
v_sin_f32 v%d, v%d
v_sin_f32 v%d, v%d
v_cvt_pk_bf16_f32 v%d, v%d, v%d
v_cvt_pk_bf16_f32 v%d, v%d, v%d""" % (p0, vs + 2 * jp, vj, p1, vs + 2 * jp + 1, vj, c0, p0, c1, p1, p0, p0, p1, p1, b + jp, c0, c1, b + 4 + jp, p0, p1))
            C = "v%d, v%d" % (c0, c1); nC = "-v%d, -v%d" % (c0, c1); Sn = "v%d, v%d" % (p0, p1); nS = "-v%d, -v%d" % (p0, p1)
            cc, ss = [(C, Sn), (nS, C), (nC, nS), (Sn, nC)][a]
            p += L("v_cvt_pk_bf16_f32 v%d, %s\nv_cvt_pk_bf16_f32 v%d, %s" % (b + 2 + jp, cc, b + 6 + jp, ss))
    return p

def step_A(ACC, TW, DF, P, kb, stg, fill=None, opt=False):
    k = dict(opt=opt)
    fill = fill or (lambda n: [])
    t0, t1, va, vb = DF + 8, DF + 9, DF + 10, DF + 11
    e = dict(va=va, vb=vb, t0=t0, kb=kb, L16=V_L16)
    p = F("""s_mul_i32 {a}, {RG}, 4352
s_lshl_b32 {b}, {FH}, 4
s_add_u32 {a}, {a}, {b}
s_add_u32 {a}, {a}, %d
v_mul_u32_u24 v{va}, 272, v1
v_lshl_add_u32 v{va}, v2, 2, v{va}
v_add_u32 v{va}, {a}, v{va}
s_mul_i32 {a}, {W}, 2176
s_add_u32 {a}, {a}, %d
v_lshl_add_u32 v{vb}, v2, 4, v{L16}
v_add_u32 v{vb}, {a}, v{vb}
s_lshl_b32 {c}, {W}, 11
s_lshl_b32 {a}, {T}, 13
s_lshl_b32 {b}, {kb}, 17
s_add_u32 {b}, {b}, {a}
s_add_u32 {b}, {b}, {c}""" % (stg, stg), **k, **e)
    for i in range(16): p += L("v_fma_f32 v%d, v%d, v%d, v%d" % (ACC + i, P + 5, ACC + 16 + i, ACC + i), **k)
    for i in range(8):
        p += L("v_add_f32 v%d, v%d, v%d\nv_sub_f32 v%d, v%d, v%d" % (ACC + 16 + i, ACC + i, ACC + 8 + i, ACC + 24 + i, ACC + i, ACC + 8 + i), **k)
    for i in range(8): p += L("v_cvt_pk_bf16_f32 v%d, v%d, v%d" % (DF + i, ACC + 16 + 2 * i, ACC + 17 + 2 * i), **k)
    T1, T2 = ACC, ACC + 16
    for a in range(4):
        for cs, D in ((0, T1), (1, T2)):
            p.append(mf(V(D + 4 * a, 4), V(DF + 4 * (a & 1), 4), V(TW(a) + 4 * cs, 4), None, opt))
            p += fill(2)
    rng = (stg, stg + 8704)
    for a in range(4):
        x, y = T1 + 4 * a, T2 + 4 * a
        p += L("""v_fma_f32 v%d, v%d, v%d, v%d
v_add_f32 v%d, v%d, v%d
v_cvt_pk_bf16_f32 v%d, v%d, v%d
v_fma_f32 v%d, v%d, v%d, -v%d
v_sub_f32 v%d, v%d, v%d
v_cvt_pk_bf16_f32 v%d, v%d, v%d""" % (t0, P + 4, y + 2, x, t1, x + 1, y + 3, DF + 2 * a, t0, t1, t0, P + 4, x + 2, y, t1, x + 3, y + 1, DF + 2 * a + 1, t0, t1), **k)
        p += L("ds_write2_b32 v%d, v%d, v%d offset0:%d offset1:%d" % (va, DF + 2 * a, DF + 2 * a + 1, 16 * a, 16 * a + 8), lds_w=rng, tag="sa", **k)
    if not opt:
        p += F("s_or_b32 {c}, {kb}, {FH}\ns_cmp_lg_u32 {c}, 0\ns_cbranch_scc1 L_ny_KN", kb=kb)
        o = "ny"
        q = F("""s_lshl_b32 {a}, {S2}, 12
s_add_u32 {a}, {a}, %d
v_bfe_u32 v{va}, v1, 2, 1
v_lshlrev_b32 v{va}, 6, v{va}
v_lshrrev_b32 v{t0}, 3, v1
v_lshl_add_u32 v{va}, v{t0}, 17, v{va}
v_and_b32 v{t0}, 3, v1
v_lshl_add_u32 v{va}, v{t0}, 2, v{va}
v_lshl_add_u32 v{va}, v2, 28, v{va}""" % (18 * KB_STRIDE), opt=o, va=va, t0=t0)
        for par in range(2):
            q += L("v_cvt_pk_bf16_f32 v%d, v%d, v%d\nv_cvt_pk_bf16_f32 v%d, -v%d, -v%d"
                   % (T1 + par, T1 + 4 * par + 2, T1 + 4 * par + 10, T2 + par, T2 + 4 * par + 2, T2 + 4 * par + 10), opt=o)
        for par in range(2):
            q += F("buffer_store_dword v%d, v{va}, {WS}, {a} offen offset:%d sc1\nbuffer_store_dword v%d, v{va}, {WS}, {a} offen offset:%d sc1"
                   % (T1 + par, par * 16, T2 + par, 32 + par * 16), opt=o, tag="pub1", va=va)
        p += q + L("L_ny_KN:")
    p += L("s_barrier", need_lgkm=("sa",), **k)
    p += L("ds_read_b128 v[%d:%d], v%d\nds_read_b128 v[%d:%d], v%d offset:1088" % (DF, DF + 3, vb, DF + 4, DF + 7, vb), lds_r=rng, tag="lds", **k)
    p += fill(16)
    p += F("buffer_store_dwordx4 v[%d:%d], v{L16}, {WS}, {b} offen sc1\nbuffer_store_dwordx4 v[%d:%d], v{L16}, {WS}, {b} offen offset:1024 sc1"
           % (DF, DF + 3, DF + 4, DF + 7), tag="pub1", **k, **e)
    return p

def dft32(M, T, opt):
    vi, vg, p0, p1, c0, c1 = T, T + 1, T + 2, T + 3, T + 4, T + 5
    k = dict(opt=opt)
    p = L("v_cvt_f32_u32 v%d, v1\nv_lshlrev_b32 v%d, 2, v2\nv_mul_f32 v%d, %s, v%d\nv_cvt_f32_u32 v%d, v%d" % (vi, vg, vi, f2h(1.0 / 32), vi, vg, vg), **k)
    for jp in range(2):
        p += L("""v_add_f32 v%d, %s, v%d
v_add_f32 v%d, %s, v%d
v_mul_f32 v%d, v%d, v%d
v_mul_f32 v%d, v%d, v%d
v_cos_f32 v%d, v%d
v_cos_f32 v%d, v%d
v_sin_f32 v%d, v%d
v_sin_f32 v%d, v%d
v_cvt_pk_bf16_f32 v%d, v%d, v%d
v_cvt_pk_bf16_f32 v%d, v%d, v%d""" % (p0, f2h(2.0 * jp), vg, p1, f2h(2.0 * jp + 1), vg, p0, p0, vi, p1, p1, vi, c0, p0, c1, p1, p0, p0, p1, p1, M + jp, c0, c1, M + 4 + jp, p0, p1), **k)
    p += L("v_and_b32 v%d, 1, v1\nv_mul_u32_u24 v%d, 0x8000, v%d\nv_lshl_add_u32 v%d, v%d, 16, v%d" % (vi, vi, vi, vi, vi, vi), **k)
    for b in (M, M + 4):
        for jp in range(2): p += L("v_xor_b32 v%d, v%d, v%d" % (b + 2 + jp, vi, b + jp), **k)
    for d in range(4):
        p += L("v_xor_b32 v%d, 0x80008000, v%d\nv_xor_b32 v%d, 0x80000000, v%d\nv_xor_b32 v%d, 0x80000000, v%d\nv_xor_b32 v%d, 0x8000, v%d"
               % (M + 8 + d, M + 4 + d, M + 12 + d, M + d, M + 16 + d, M + 4 + d, M + 20 + d, M + 4 + d), **k)
    return p

def nyw_load(T, o):
    return F("""s_lshl_b32 {a}, {T}, 7
s_lshl_b32 {b}, {FH}, 6
s_add_u32 {a}, {a}, {b}
v_add_u32 v{j}, {a}, v0
v_mul_u32_u24 v{r}, 578, v{j}
s_cmp_eq_u32 {RG}, 0
s_cselect_b32 s44, s32, s36
s_cselect_b32 s45, s33, s37
s_mov_b32 s46, %d
s_mov_b32 s47, 0x20000
buffer_load_ushort v{r}, v{r}, s[44:47], 0 offen offset:576""" % (2048 * 578), opt=o, j=T, r=T + 1)
def nyw_store(T, o):
    return F("""s_lshl_b32 {a}, {RG}, 12
s_lshl_b32 {b}, {T}, 8
s_add_u32 {a}, {a}, {b}
s_lshl_b32 {b}, {FH}, 7
s_add_u32 {a}, {a}, {b}
s_add_u32 {a}, {a}, %d
v_and_b32 v{j}, 14, v0
v_and_b32 v{t}, 1, v0
v_lshl_add_u32 v{j}, v{t}, 4, v{j}
v_and_b32 v{t}, 1, v2
v_lshl_add_u32 v{j}, v{t}, 6, v{j}
v_lshrrev_b32 v{t}, 1, v2
v_lshl_add_u32 v{j}, v{t}, 5, v{j}""" % WS_N, opt=o, j=T, t=T + 2) + F("buffer_store_short v%d, v%d, {WS}, {a} offen sc1" % (T + 1, T), opt=o, tag="pub1")

def s2_wloads(gam, Wr, T, opt, special):
    e = dict(gam=gam, vw=T, t0=T + 1)
    if special:
        p = F("""s_lshl_b32 {a}, {RG}, 12
s_lshl_b32 {b}, {FH}, 6
s_add_u32 {a}, {a}, {b}
s_add_u32 {a}, {a}, %d
v_lshrrev_b32 v{vw}, 2, v0
v_lshlrev_b32 v{vw}, 7, v{vw}
v_and_b32 v{t0}, 3, v0
v_lshl_add_u32 v{vw}, v{t0}, 4, v{vw}
buffer_load_dwordx4 v[%d:%d], v{vw}, {WS}, {a} offen sc1
buffer_load_dwordx4 v[%d:%d], v{vw}, {WS}, {a} offen offset:2048 sc1""" % (WS_N, Wr, Wr + 3, Wr + 4, Wr + 7), opt=opt, **e)
        return p
    fl = OPT.get('s2fl', "")
    return F("""s_and_b32 {b}, {gam}, 31
s_lshl_b32 {b}, {b}, 1
s_add_u32 {b}, {b}, {FH}
s_mul_i32 {b}, {b}, 578
s_lshr_b32 {a}, {gam}, 5
s_lshl_b32 {a}, {a}, 6
s_add_u32 {a}, {a}, {b}
s_add_u32 {b}, {a}, %d
s_cmp_eq_u32 {RG}, 0
s_cselect_b32 s44, s32, s36
s_cselect_b32 s45, s33, s37
s_mov_b32 s46, %d
s_mov_b32 s47, 0x20000
v_lshrrev_b32 v{vw}, 2, v0
v_mul_u32_u24 v{vw}, 36992, v{vw}
v_and_b32 v{t0}, 3, v0
v_lshl_add_u32 v{vw}, v{t0}, 4, v{vw}
buffer_load_dwordx4 v[%d:%d], v{vw}, s[44:47], {a} offen%s
buffer_load_dwordx4 v[%d:%d], v{vw}, s[44:47], {b} offen%s""" % (16 * 36992, 2048 * 578, Wr, Wr + 3, fl, Wr + 4, Wr + 7, fl), opt=opt, **e)

def s2_gaddr(va, t0, opt):
    return F("v_lshrrev_b32 v{va}, 3, v0\nv_lshlrev_b32 v{va}, 12, v{va}\nv_and_b32 v{t0}, 7, v0\nv_lshl_add_u32 v{va}, v{t0}, 4, v{va}", opt=opt, va=va, t0=t0)
def s2_dloads(gam, keep, D, T, opt):
    p = s2_gaddr(T, T + 1, opt)
    p += F("""s_lshr_b32 {a}, {gam}, 5
s_lshl_b32 {a}, {a}, 1
s_add_u32 {a}, {a}, {RG}
s_lshl_b32 {keep}, {a}, 17
s_and_b32 {b}, {gam}, 31
s_lshl_b32 {b}, {b}, 7
s_add_u32 {keep}, {keep}, {b}
s_lshl_b32 {b}, {FH}, 16
s_add_u32 {keep}, {keep}, {b}
s_add_u32 {c}, {keep}, 0x8000
buffer_load_dwordx4 v[%d:%d], v%d, {WS}, {keep} offen sc1
buffer_load_dwordx4 v[%d:%d], v%d, {WS}, {c} offen sc1""" % (D, D + 3, T, D + 4, D + 7, T), opt=opt, keep=keep, gam=gam)
    return p

def s2_addr(T, lds_base, opt):
    e = dict(vl=T, vr=T + 1, vw=T + 2, vo=T + 3, vp=T + 4, vb=T + 5, t0=T + 7, L16=V_L16)
    return F("""s_lshl_b32 {a}, {W}, 11
s_add_u32 {a}, {a}, %d
v_add_u32 v{vl}, {a}, v{L16}
v_lshrrev_b32 v{t0}, 3, v0
v_lshlrev_b32 v{t0}, 4, v{t0}
v_xor_b32 v{vb}, v{vl}, v{t0}
v_lshrrev_b32 v{vr}, 2, v1
v_lshl_add_u32 v{vr}, v2, 2, v{vr}
v_lshlrev_b32 v{vw}, 6, v{vr}
v_lshlrev_b32 v{vr}, 7, v{vr}
v_and_b32 v{t0}, 3, v1
v_lshl_add_u32 v{vr}, v{t0}, 3, v{vr}
v_lshl_add_u32 v{vw}, v{t0}, 3, v{vw}
s_lshl_b32 {a}, {RG}, 12
s_lshl_b32 {b}, {FH}, 6
s_add_u32 {a}, {a}, {b}
s_add_u32 {a}, {a}, %d
v_add_u32 v{vr}, {a}, v{vr}
v_lshlrev_b32 v{vo}, 7, v1
v_lshl_add_u32 v{vo}, v2, 3, v{vo}
v_add_u32 v{vo}, {a}, v{vo}
v_and_b32 v{t0}, 7, v1
v_lshlrev_b32 v{t0}, 4, v{t0}
v_xor_b32 v{vo}, v{vo}, v{t0}
v_xor_b32 v{vp}, 32, v{vo}
s_lshl_b32 {a}, {FH}, 11
s_lshl_b32 {b}, {RG}, 5
s_add_u32 {a}, {a}, {b}
s_add_u32 {a}, {a}, %d
v_add_u32 v{vw}, {a}, v{vw}""" % (lds_base, lds_base, lds_base + 8192), opt=opt, **e) + s2_gaddr(T + 6, T + 7, opt)

def s2_compute(keep, M, D, Z, Wr, T, X, lds_base, opt):
    e = dict(keep=keep, vl=T, vr=T + 1, vw=T + 2, vb=T + 5, va=T + 6, t0=X, t1=X + 1, t2=X + 2, t3=X + 3)
    k = dict(opt=opt)
    rng = (lds_base, lds_base + 16384); rn2 = (lds_base + 16384, lds_base + 24576)
    q = F("ds_write_b128 v{vl}, v[%d:%d]\nds_write_b128 v{vl}, v[%d:%d] offset:1024\nds_write_b128 v{vl}, v[%d:%d] offset:8192\nds_write_b128 v{vl}, v[%d:%d] offset:9216"
          % (D, D + 3, D + 4, D + 7, Wr, Wr + 3, Wr + 4, Wr + 7), lds_w=rng, tag="s2", **k, **e)
    q += F("s_add_u32 {a}, {keep}, %d\ns_add_u32 {b}, {a}, 0x8000" % WS_B, **k, **e)
    q += L("s_barrier", need_lgkm=("s2",), **k)
    for pl in range(2):
        q += F("ds_read_b64_tr_b16 v[%d:%d], v{vr} offset:%d\nds_read_b64_tr_b16 v[%d:%d], v{vr} offset:%d"
               % (D + 4 * pl, D + 4 * pl + 1, pl * 32, D + 4 * pl + 2, D + 4 * pl + 3, pl * 32 + 2048), lds_r=rng, tag="lds", **k, **e)
    for pl in range(2):
        q += F("ds_read_b64_tr_b16 v[%d:%d], v{vw} offset:%d\nds_read_b64_tr_b16 v[%d:%d], v{vw} offset:%d"
               % (Wr + 4 * pl, Wr + 4 * pl + 1, pl * 4096, Wr + 4 * pl + 2, Wr + 4 * pl + 3, pl * 4096 + 1024), lds_r=rng, tag="lds", **k, **e)
    C = lambda a: V(M + (a * 3) * 4, 4)
    Sn = lambda a: V(M + (a * 3 + 1) * 4, 4)
    N = lambda a: V(M + (a * 3 + 2) * 4, 4)
    Ar, Ai = V(D, 4), V(D + 4, 4)
    for aa in range(2):
        zr, zi = V(Z + 4 * aa, 4), V(Z + 8 + 4 * aa, 4)
        q += [mf(zr, C(aa), Ar, None, opt), mf(zr, Sn(aa), Ai, zr, opt), mf(zi, C(aa), Ai, None, opt), mf(zi, N(aa), Ar, zi, opt)]
    for i in range(8):
        un = "v_lshlrev_b32 v{t2}, 16, v{wr}\nv_lshlrev_b32 v{t3}, 16, v{wi}\n" if i % 2 == 0 else "v_and_b32 v{t2}, 0xffff0000, v{wr}\nv_and_b32 v{t3}, 0xffff0000, v{wi}\n"
        q += F(un + """v_mul_f32 v{t0}, v{zi}, v{t3}
v_mul_f32 v{t1}, v{zr}, v{t3}
v_fma_f32 v{zr}, v{zr}, v{t2}, -v{t0}
v_fma_f32 v{zi}, v{zi}, v{t2}, v{t1}""", zr=Z + i, zi=Z + 8 + i, wr=Wr + i // 2, wi=Wr + 4 + i // 2, **k, **e)
    for pl in range(2):
        for d in range(4): q += L("v_cvt_pk_bf16_f32 v%d, v%d, v%d" % (D + 4 * pl + d, Z + 8 * pl + 2 * d, Z + 8 * pl + 2 * d + 1), **k)
    for aa in range(2):
        br = V(Z + 4 * aa, 4)
        q += [mf(br, Ar, C(aa), None, opt), mf(br, Ai, N(aa), br, opt)]
    for aa in range(2):
        bi = V(Z + 8 + 4 * aa, 4)
        q += [mf(bi, Ai, C(aa), None, opt), mf(bi, Ar, Sn(aa), bi, opt)]
    for pl in range(2):
        for aa in range(2):
            r = Wr + 4 * pl + 2 * aa; z = Z + 8 * pl + 4 * aa
            q += L("v_cvt_pk_bf16_f32 v%d, v%d, v%d\nv_cvt_pk_bf16_f32 v%d, v%d, v%d" % (r, z, z + 1, r + 1, z + 2, z + 3), **k)
            q += L("ds_write_b64 v%d, v[%d:%d] offset:%d" % (T + 3 + pl, r, r + 1, 16384 + aa * 2048), lds_w=rn2, tag="s2", **k)
    q += L("s_barrier", need_lgkm=("s2", "lds"), **k)
    q += F("ds_read_b128 v[%d:%d], v{vb} offset:16384\nds_read_b128 v[%d:%d], v{vb} offset:17408" % (D, D + 3, D + 4, D + 7), lds_r=rn2, tag="lds", **k, **e)
    q += F("buffer_store_dwordx4 v[%d:%d], v{va}, {WS}, {a} offen sc1\nbuffer_store_dwordx4 v[%d:%d], v{va}, {WS}, {b} offen sc1"
           % (D, D + 3, D + 4, D + 7), tag="pub2", **k, **e)
    return q

def twiddle_D(TW, T):
    vs, vj, vk, c0, c1, s0, s1 = T, T + 1, T + 2, T + 3, T + 4, T + 5, T + 6
    p = F("""s_lshl_b32 {u}, {FH}, 9
s_add_u32 {u}, {u}, {S2}
v_lshlrev_b32 v{vs}, 5, v1
v_add_u32 v{vs}, {u}, v{vs}
v_cvt_f32_u32 v{vs}, v{vs}
v_mul_f32 v{vs}, %s, v{vs}
v_lshlrev_b32 v{vj}, 4, v2
v_cvt_f32_u32 v{vj}, v{vj}
v_add_f32 v{vk}, v{vs}, v{vs}
v_cos_f32 v{vk}, v{vk}""" % f2h(1.0 / 2048), vs=vs, vj=vj, vk=vk)
    for par in range(2):
        p += L("""v_add_f32 v%d, %s, v%d
v_add_f32 v%d, %s, v%d
v_mul_f32 v%d, v%d, v%d
v_mul_f32 v%d, v%d, v%d
v_cos_f32 v%d, v%d
v_cos_f32 v%d, v%d
v_sin_f32 v%d, v%d
v_sin_f32 v%d, v%d""" % (s0, f2h(float(par)), vj, s1, f2h(par + 2.0), vj, s0, s0, vs, s1, s1, vs, c0, s0, c1, s1, s0, s0, s1, s1))
        if par == 0: p += L("v_add_f32 v%d, v%d, v%d" % (vk, vk, vk))
        for jp in range(4):
            if jp:
                p += L("v_fma_f32 v%d, v%d, v%d, -v%d\nv_fma_f32 v%d, v%d, v%d, -v%d\nv_fma_f32 v%d, v%d, v%d, -v%d\nv_fma_f32 v%d, v%d, v%d, -v%d"
                       % (c0, vk, c1, c0, s0, vk, s1, s0, c1, vk, c0, c1, s1, vk, s0, s1))
            p += L("v_cvt_pk_bf16_f32 v%d, v%d, v%d\nv_cvt_pk_bf16_f32 v%d, v%d, v%d" % (TW + par * 8 + jp, c0, c1, TW + par * 8 + 4 + jp, s0, s1))
    return p

def stepD_loads(kb, RAW, opt=False):
    p = F("s_lshl_b32 {a}, {S2}, 12\ns_add_u32 {a}, {a}, %d\ns_lshl_b32 {b}, {kb}, 17\ns_add_u32 {b}, {b}, {a}" % WS_B, kb=kb, opt=opt)
    for i in range(4):
        p += F("buffer_load_dwordx4 v[%d:%d], v%d, {WS}, {b} offen offset:%d sc1" % (RAW + 4 * i, RAW + 4 * i + 3, V_L16, i * 1024), opt=opt)
    return p
def stepD_nyloads(NY, T, opt):
    p = F("s_add_u32 {a}, {a}, %d\nv_and_b32 v{t}, 1, v2\nv_lshlrev_b32 v{t}, 6, v{t}\nv_lshrrev_b32 v{n}, 1, v2\nv_lshl_add_u32 v{t}, v{n}, 17, v{t}" % (18 * KB_STRIDE), opt=opt, t=T, n=NY)
    for par in range(2):
        for pl in range(2):
            r = NY + (par * 2 + pl) * 4
            p += F("buffer_load_dwordx4 v[%d:%d], v%d, {WS}, {a} offen offset:%d sc1" % (r, r + 3, T, pl * 32 + par * 16), opt=opt)
    return p

def stepD_parts(RAW, NY, NB, TW, ACC, T, stage_base, kb, so, opt=False):
    k = dict(opt=opt)
    e = dict(vl=T, vr=T + 1, t0=T + 2, so=so, kb=kb)
    rng = (stage_base, stage_base + 16384)
    p = F("s_lshl_b32 {so}, {W}, 12\ns_add_u32 {so}, {so}, %d\nv_add_u32 v{vl}, {so}, v%d" % (stage_base, V_L16), **k, **e)
    p += F("""v_lshrrev_b32 v{vr}, 2, v1
v_lshl_add_u32 v{vr}, v2, 3, v{vr}
v_lshlrev_b32 v{vr}, 7, v{vr}
v_and_b32 v{t0}, 3, v1
v_lshl_add_u32 v{vr}, v{t0}, 3, v{vr}
v_add_u32 v{vr}, {so}, v{vr}""", **k, **e)
    for i in range(4):
        p += F("ds_write_b128 v{vl}, v[%d:%d] offset:%d" % (RAW + 4 * i, RAW + 4 * i + 3, i * 1024), lds_w=rng, priv=True, tag="lds", **k, **e)
    for par in range(2):
        for pl in range(2):
            r = RAW + (par * 2 + pl) * 4; o = par * 64 + pl * 32
            p += F("ds_read_b64_tr_b16 v[%d:%d], v{vr} offset:%d\nds_read_b64_tr_b16 v[%d:%d], v{vr} offset:%d" % (r, r + 1, o, r + 2, r + 3, o + 512),
                   lds_r=rng, priv=True, tag="lds", **k, **e)
    p += F("s_mul_i32 {so}, {T}, 18\ns_add_u32 {so}, {so}, {kb}\ns_lshl_b32 {so}, {so}, 1\ns_add_u32 {so}, {so}, {RG}\ns_lshl_b32 {so}, {so}, 2\ns_add_u32 {so}, {so}, {FH}\ns_lshl_b32 {so}, {so}, 10\ns_add_u32 {so}, {so}, %d" % WS_Y, **k, **e)
    ng = []
    for par in range(2):
        for d in range(4): ng += L("v_xor_b32 v%d, 0x80008000, v%d" % (NB + 4 * par + d, RAW + par * 8 + 4 + d), **k)
    mr = []
    for par in range(2):
        er = V(ACC + 8 * par, 4)
        mr += [mf(er, V(RAW + 8 * par, 4), V(TW + 8 * par, 4), None, opt), mf(er, V(NB + 4 * par, 4), V(TW + 8 * par + 4, 4), er, opt)]
    pt = []
    if not opt:
        pt = F("s_cmp_lg_u32 {C}, 0\ns_cbranch_scc1 L_nyd_KN") + L("v_cmp_eq_u32 vcc, 0, v1", opt="nyd")
        for par in range(2):
            for d in range(4):
                br, bi, nr, ni = RAW + 8 * par + d, RAW + 8 * par + 4 + d, NY + 8 * par + d, NY + 8 * par + 4 + d
                pt += L("v_xor_b32 v%d, 0x80008000, v%d\nv_cndmask_b32 v%d, v%d, v%d, vcc\nv_cndmask_b32 v%d, v%d, v%d, vcc" % (ni, ni, bi, bi, nr, br, br, ni), opt="nyd")
        pt += L("L_nyd_KN:")
    mi_ = []
    for par in range(2):
        ei = V(ACC + 8 * par + 4, 4)
        mi_ += [mf(ei, V(RAW + 8 * par + 4, 4), V(TW + 8 * par, 4), None, opt), mf(ei, V(RAW + 8 * par, 4), V(TW + 8 * par + 4, 4), ei, opt)]
    f = []
    for r in range(8):
        f += L("v_add_f32 v%d, v%d, v%d\nv_sub_f32 v%d, v%d, v%d" % (RAW + r, ACC + r, ACC + 8 + r, RAW + 8 + r, ACC + r, ACC + 8 + r), **k)
    for u in range(2):
        for d in range(4): f += L("v_cvt_pk_bf16_f32 v%d, v%d, v%d" % (RAW + 8 * u + d, RAW + 8 * u + 2 * d, RAW + 8 * u + 2 * d + 1), **k)
        f += F("buffer_store_dwordx4 v[%d:%d], v%d, {WS}, {so} offen offset:%d sc1" % (RAW + 8 * u, RAW + 8 * u + 3, V_L16, u * 2048), **k, **e)
    return p, ng, mr, pt, mi_, f

def lanes(v, init, vals, o):
    p = L("v_mov_b32 v%d, %s" % (v, init), opt=o)
    for i, s in enumerate(vals): p += F("v_writelane_b32 v%d, %s, %d" % (v, s, i), opt=o)
    return p
def w0(name, body):
    return F("s_cmp_lg_u32 {W}, 0\ns_cbranch_scc1 L_%s_KN" % name) + body + L("L_%s_KN:" % name)
def arrive(name, calc, VA):
    o = name
    b = F(calc, opt=o) + lanes(VA, "0x1000", ["{a}", "{b}", "{c}"], o) + L("v_mov_b32 v%d, 1" % (VA + 1), opt=o)
    b += F("buffer_atomic_add v%d, v%d, {DBG}, 0 offen sc1" % (VA + 1, VA), opt=o)
    return w0(name, b)
def poll_issue(name, calc, calc2, VP):
    o = name
    b = F(calc, opt=o) + lanes(VP, "0x1000", ["{a}", "{b}", "{c}"], o)
    b += F("buffer_load_dword v%d, v%d, {DBG}, 0 offen sc1" % (VP + 2, VP), opt=o)
    b += F(calc2, opt=o) + lanes(VP + 1, "0", ["{a}", "{b}", "{c}"], o)
    return w0(name, b)
def poll_check(name, VP, sidx=None):
    o = name
    b = F("""v_cmp_lt_u32 vcc, v{r}, v{x}
s_mov_b32 {SP}, 0
s_cbranch_vccz L_{n}_KN
L_{n}s_KN:
s_sleep 4
buffer_load_dword v{r}, v{ad}, {DBG}, 0 offen sc1
s_add_u32 {SP}, {SP}, 1
s_cmp_ge_u32 {SP}, 0x40000
s_cbranch_scc1 L_{n}_KN
s_waitcnt vmcnt(0)
v_cmp_lt_u32 vcc, v{r}, v{x}
s_nop 4
s_cbranch_vccnz L_{n}s_KN""", opt=o, r=VP + 2, x=VP + 1, ad=VP, n=name)
    p = w0(name, b)
    if OPT['stamps'] and sidx is not None: p += F("s_add_u32 {SP}, {SP}, 1\nv_writelane_b32 v%d, {SP}, %d" % (VST[0], sidx))
    return p

def kernel_main(a):
    name = NAME + "_kernel"
    BI = OPT['BI']
    a.launch(name, 256, 256, 163840)
    t0, t1 = TMP, TMP + 1
    e = dict(t0=t0, t1=t1, DX=V_DX, DW=V_DW, DH=V_DH, DD=V_DD, RW=V_RW, RX=V_RX, RW1=V_RW + 3, RX1=V_RX + 3, HW=V_HW, HH=V_HH, L16=V_L16, L16B=V_L16B, VST_=V_ST)
    p = L("s_cmp_ge_u32 s2, 256\ns_cbranch_scc1 L_end_KN")
    if OPT['stamps']: p += L("v_mov_b32 v%d, 0" % VST[0])
    p += stamp(0)
    p += L("s_load_dwordx16 s[52:67], s[0:1], 0\ns_load_dwordx4 s[68:71], s[0:1], 64\ns_load_dwordx2 s[72:73], s[0:1], 80")
    p += F("""v_lshrrev_b32 v1, 6, v0
v_and_b32 v0, 63, v0
v_readfirstlane_b32 {W}, v1
v_and_b32 v1, 15, v0
v_lshrrev_b32 v2, 4, v0""")
    mp = OPT.get('map', 1)
    if mp == 1:
        p += F("""s_and_b32 {C}, s2, 3
s_lshl_b32 {C}, {C}, 2
s_bfe_u32 {a}, s2, 0x20003
s_add_u32 {C}, {C}, {a}
s_lshr_b32 {T}, s2, 5
s_lshl_b32 {T}, {T}, 1
s_bfe_u32 {a}, s2, 0x10002
s_add_u32 {T}, {T}, {a}""")
    elif mp == 0:
        p += F("s_and_b32 {C}, s2, 7\ns_lshl_b32 {C}, {C}, 1\ns_bfe_u32 {a}, s2, 0x10003\ns_add_u32 {C}, {C}, {a}\ns_lshr_b32 {T}, s2, 4")
    else:
        p += F("""s_and_b32 {C}, s2, 1
s_lshl_b32 {C}, {C}, 3
s_bfe_u32 {a}, s2, 0x30003
s_add_u32 {C}, {C}, {a}
s_lshr_b32 {T}, s2, 6
s_lshl_b32 {T}, {T}, 2
s_bfe_u32 {a}, s2, 0x20001
s_add_u32 {T}, {T}, {a}""")
    p += F("""s_lshr_b32 {RG}, {W}, 1
s_and_b32 {FH}, {W}, 1
s_lshl_b32 {W1K}, {W}, 10
s_lshl_b32 {S2}, {T}, 1
s_add_u32 {S2}, {S2}, {RG}
v_lshrrev_b32 v{DW}, 3, v0
s_lshl_b32 {a}, {W}, 3
v_add_u32 v{DW}, {a}, v{DW}
v_mul_u32_u24 v{DX}, %d, v{DW}
s_lshl_b32 {a}, {FH}, 2
v_add_u32 v{t0}, {a}, v2
v_xor_b32 v{t0}, v0, v{t0}
v_and_b32 v{t0}, 7, v{t0}
v_lshl_add_u32 v{DX}, v{t0}, 4, v{DX}
s_lshr_b32 {ROT}, {T}, 1
s_and_b32 {a}, {C}, 3
s_lshl_b32 {a}, {a}, 1
s_add_u32 {ROT}, {ROT}, {a}
s_cmp_ge_u32 {ROT}, 9
s_cselect_b32 {a}, 9, 0
s_sub_u32 {ROT}, {ROT}, {a}
s_mul_i32 {ROT}, {ROT}, ROTON
s_mul_i32 {a}, {T}, 2304
s_lshl_b32 {b}, {ROT}, 7
s_add_u32 {a}, {a}, {b}
v_add_u32 v{DX}, {a}, v{DX}
v_mul_u32_u24 v{DD}, 1152, v{DW}
v_mul_u32_u24 v{DW}, 9216, v{DW}
v_bfe_u32 v{t0}, v0, 1, 2
v_and_b32 v{t1}, 1, v2
s_lshl_b32 {a}, {FH}, 1
v_or_b32 v{t1}, {a}, v{t1}
v_xor_b32 v{t1}, v{t1}, v{t0}
v_lshl_add_u32 v{DW}, v{t1}, 5, v{DW}
v_xor_b32 v{t1}, v{t0}, v2
v_lshl_add_u32 v{DD}, v{t1}, 5, v{DD}
v_and_b32 v{t0}, 1, v0
v_lshl_add_u32 v{DW}, v{t0}, 4, v{DW}
v_lshl_add_u32 v{DD}, v{t0}, 4, v{DD}
s_mul_i32 {d}, {C}, 576
s_and_b32 {e}, {C}, 1
s_lshl_b32 {c}, {e}, 6
s_add_u32 {c}, {c}, {d}
v_add_u32 v{DW}, {c}, v{DW}""".replace("ROTON", str(OPT.get('rot', 1))) % (32 * 1152), **e)
    for q in range(4): p += L("s_mov_b32 s%d, %d" % (S_XQ + q, (1024 * (q & 1) + (q >> 1)) * 1152))
    p += L("s_waitcnt lgkmcnt(0)")
    p += srd(8, 52, 2048 * 1152) + srd(12, 60, 576 * 9216) + srd(16, 62, 576 * 9216)
    rest_srd = lambda: (srd(32, 54, 2048 * 578) + srd(36, 56, 2048 * 578) + srd(20, 64, 4608 * 1152) + srd(40, 66, 1152)
                        + srd(28, 70, 256) + srd(24, 72, WS_BYTES))
    G = []
    def grp(kind, nm, need, **kw):
        d = dict(kind=kind, nm=nm, need=need, bar=False, xr=None, rate=2); d.update(kw); G.append(d); return d
    for sg in range(9):
        for tau in range(4):
            mat = 'G' if tau < 2 else 'U'
            g = grp('SB', 16 if tau == 3 else 8, [(mat, 0, 2 * sg), (mat, 0, 2 * sg + 1)], sg=sg, tau=tau, rate=(5 if tau == 3 else 2))
            if tau == 2 or (sg == 0 and tau == 0): g['bar'] = True
            if sg < 8 and tau in (2, 3): g['xr'] = (sg + 1, tau - 2)
    passes = [('G', 1, 3), ('U', 1, 2), ('G', 2, 0), ('U', 2, 1), ('G', 3, 3), ('U', 3, 2)]
    PS = {}
    for pi, (mat, b, st) in enumerate(passes):
        PS[mat + str(b)] = len(G)
        for sl in range(6):
            for ap in range(2):
                g = grp('P1', 12, [(mat, b, 3 * sl + e_) for e_ in range(3)], mat=mat, b=b, st=st, sl=sl, ap=ap, ps=mat + str(b))
                if ap == 0 and (sl % BI == BI - 1): g['bar'] = True
    for mi_, mat in enumerate(('HG', 'HU')):
        PS[mat] = len(G)
        for gi in range(6):
            g = grp('PH', 12, [(mat, (3 * gi + e_) >> 1) for e_ in range(3)], mat=mat, gi=gi, ps=mat, half=mi_)
            if gi % 2 == 0: g['bar'] = True
    P2 = len(G)
    for cb in range(9):
        for gi in range(3):
            g = grp('P2', 24, [('D', cb, 3 * gi + e_) for e_ in range(3)], cb=cb, gi=gi, rate=4)
            g['bar'] = True
    NG = len(G)
    G[-1]['bar'] = False
    G[P2 - 1]['bar'] = True
    def rdg(n): return n - 1 if n > P2 else n - 2
    iv = []; n = 0
    for g in G:
        if g['bar']: n += 1
        iv.append(n)
    def free_iv(gr):
        for k in range(gr, NG):
            if G[k]['bar']: return iv[k]
        return 10 ** 6
    first = {}; fre = {}; order = []
    def use(key, rg_, done_g):
        i = iv[rg_] if rg_ >= 0 else 0
        if key not in first: first[key] = i; order.append(key)
        fre[key] = max(fre.get(key, 0), free_iv(done_g))
    for q in range(4): use(('x', 0, q), -1, 1)
    ev = []
    for gi, g in enumerate(G):
        for k in g['need']: ev.append((rdg(gi), 0, k, gi))
        if g['xr']:
            for q in range(4): ev.append((gi, 1, ('x', g['xr'][0], q), 4 * g['xr'][0] + 1))
    ev.sort(key=lambda x: (x[0], x[1]))
    for r_, _, k, d_ in ev: use(k, r_, d_)
    order.sort(key=lambda k: first[k])
    fixed = {}
    for sg in range(9):
        s = 8 * (sg % 5)
        for e_ in range(2):
            fixed[('G', 0, 2 * sg + e_)] = s + e_; fixed[('U', 0, 2 * sg + e_)] = s + 2 + e_
        for q in range(4): fixed[('x', sg, q)] = s + 4 + q
    gS2 = PS['U3'] + 11
    gSD = P2 + OPT.get('sdat', 18)
    HU = PS['HU']
    res = [(0, 4, PS['G1'] - 1, HU + 3), (4, 1, PS['G1'] - 1, PS['G1']), (16, 2, gS2, gS2 + 1), (4, 4, PS['G2'], HU + 5), (8, 4, PS['G3'], P2), (12, 4, gS2, P2 + 1),
           (16, 2, P2 - 1, P2 + 1), (0, 4, gSD, NG - 2)]
    resv = {pg: [] for pg in range(40)}
    for f, npg, ga, gb in res:
        for pg in range(f, f + npg): resv[pg].append((iv[ga], free_iv(gb + 1)))
    free_at = [-1] * 40; phys = {}; issue_grp = {}; qi = 0
    def ioff(k): return 0 if k[0] in ('HG', 'HU', 'x') else k[1] * 128
    def try_alloc(k, cur):
        for pg in ([fixed[k]] if k in fixed else range(39, -1, -1)):
            if free_at[pg] > cur or (pg == 0 and ioff(k) > 0): continue
            if any(not (fre[k] <= a_ or cur >= b_) for a_, b_ in resv[pg]): continue
            return pg
        return None
    cum = [0]
    for g in G: cum.append(cum[-1] + g['nm'])
    bar_grp = {iv[gi]: gi for gi, g in enumerate(G) if g['bar']}
    bar_grp[0] = 0
    vt = {}; cnt_iv = {}
    for k in order:
        n_ = cnt_iv.get(first[k], 0); cnt_iv[first[k]] = n_ + 1
        vt[k] = cum[bar_grp[first[k]]] + n_ * (5 if k in fixed else 8)
    def LA(k):
        if k in fixed: return OPT.get('la0', 120)
        if k[0] == 'D': return OPT.get('la2', 400)
        return OPT.get('la1', 400)
    NPRO = OPT.get('npro', 16)
    while qi < NPRO:
        k = order[qi]; phys[k] = try_alloc(k, -1); free_at[phys[k]] = fre[k]; issue_grp[k] = -1; qi += 1
    for gi, g in enumerate(G):
        g['dma'] = []
        while qi < len(order) and len(g['dma']) < g['rate']:
            k = order[qi]
            if vt[k] - cum[gi] > LA(k): break
            pg = try_alloc(k, iv[gi])
            if pg is None: break
            assert iv[gi] < first[k], ("late DMA", k, gi)
            phys[k] = pg; free_at[pg] = fre[k]; issue_grp[k] = gi; g['dma'].append(k); qi += 1
    assert qi == len(order), order[qi]
    print("dma per group:", "".join(str(len(g['dma'])) for g in G), file=sys.stderr)
    slk = {}
    for k in order:
        if issue_grp[k] >= 0:
            kk_ = k[:2] if k[0] in 'GUD' else k[:1]
            slk[kk_] = min(slk.get(kk_, 9999), cum[bar_grp[first[k]]] - cum[issue_grp[k] + 1])
    print("min DMA slack (mfmas):", slk, file=sys.stderr)
    def mkdma(k):
        tag = "pg%d" % first[k]; pb = phys[k] * 4096
        if k[0] == 'x':
            pre = []
            if k[2] == 0 and k[1] > 0:
                pre = F("s_cmp_eq_u32 {ROT}, %d\ns_cselect_b32 {SP}, -8, 1\nv_lshl_add_u32 v%d, {SP}, 7, v%d" % (9 - k[1], V_DX, V_DX))
            m_, d_ = dma(V_DX, 'X', S_XQ + k[2], pb, 0, tag)
            return (pre + [m_], d_) if pre else (m_, d_)
        if k[0] == 'G': return dma(V_DW, 'WG', S_KK + k[2], pb, k[1] * 128, tag)
        if k[0] == 'U': return dma(V_DW, 'WU', S_KK + k[2], pb, k[1] * 128, tag)
        if k[0] == 'HG': return dma(V_DH, 'WG', S_KK + 2 * k[1], pb, 0, tag)
        if k[0] == 'HU': return dma(V_DH, 'WU', S_KK + 2 * k[1], pb, 0, tag)
        return dma(V_DD, 'WD', S_DK + k[2], pb, k[1] * 128, tag)
    PFL = OPT.get('pfl', "")
    VPF, VDM, VPX = V_HH, V_ST, V_HW
    def pf(srdn, mask, soff, off, va=VPF, real=False):
        lo, hi = mask & 0xffffffff, mask >> 32
        q = L("s_mov_b32 exec_lo, 0x%x\ns_mov_b32 exec_hi, 0x%x" % (lo, hi))
        for i in q: i.wr = [('s', 'exec')]; i.rd = [('s', 'exec')]
        for sn in srdn:
            i = F("buffer_load_dword v%d, v%d, {%s}, %s offen offset:%d%s" % (VDM, va, sn, soff, off, PFL))[0]
            if not real: i.wr = []
            i.rd.append(('s', 'exec'))
            q.append(i)
        q += L("s_mov_b64 exec, -1")
        return q
    lm = lambda a_, b_: ((1 << b_) - 1) ^ ((1 << a_) - 1)
    assert mp == 1
    def skk(m):
        KS = 32 * 9216
        if m == 0: q = F("s_mul_i32 s%d, {ROT}, %d" % (S_KK, 2 * KS))
        else: q = F("s_add_u32 s%d, s%d, %d\ns_cmp_eq_u32 {ROT}, %d\ns_cselect_b32 s%d, 0, s%d" % (S_KK + 2 * m, S_KK + 2 * m - 2, 2 * KS, 9 - m, S_KK + 2 * m, S_KK + 2 * m))
        return q + L("s_add_u32 s%d, s%d, %d" % (S_KK + 2 * m + 1, S_KK + 2 * m, KS))
    p += skk(0) + skk(1)
    pro = [k for k in order if issue_grp[k] < 0]
    PF0 = OPT.get('pf0', 0)
    NP0 = OPT.get('np0', 0)
    for k in pro[:NP0]: p += flat(mkdma(k))
    pfs = F("""s_and_b32 {a}, {C}, 1
s_lshl_b32 {a}, {a}, 5
s_lshl_b32 {b}, {W}, 3
s_add_u32 {a}, {a}, {b}
v_lshrrev_b32 v{t0}, 3, v0
v_add_u32 v{t0}, {a}, v{t0}
v_mul_u32_u24 v{t0}, %d, v{t0}
v_and_b32 v{t1}, 7, v0
v_lshl_add_u32 v%d, v{t1}, 7, v{t0}
s_bfe_u32 {u}, {C}, 0x10001
s_lshl_b32 {a}, {T}, 1
s_add_u32 {u}, {u}, {a}
s_mul_i32 {u}, {u}, 1152
s_lshr_b32 {a}, {T}, 1
s_add_u32 {a}, {a}, {b}
v_lshl_add_u32 v{t1}, v0, 5, {a}
v_mul_u32_u24 v%d, 9216, v{t1}
s_lshl_b32 {SB}, {e}, 6
s_add_u32 {SB}, {SB}, {d}
s_cmp_eq_u32 {e}, 0
s_cselect_b32 {SA}, 512, 0
s_add_u32 {SA}, {SA}, {d}""" % (32 * 1152, VPX, VPF), **e)
    wi = [i for i, x in enumerate(p) if x.text == "s_waitcnt lgkmcnt(0)"][-1]
    for i in pfs: i.id = p[wi].id - 0.5 + 0.001 * pfs.index(i)
    p[wi:wi] = pfs
    R1S = OPT.get('r1s', 5)
    def R1(): return pf(['X'], 0x0101010101010101 * ((1 << R1S) - 1), ENV['u'], 0, va=VPX) + pf(['WG', 'WU'], lm(0, 2 * R1S), ENV['SB'], 0)
    def R2(): return pf(['X'], 0x0101010101010101 * ((1 << (9 - R1S)) - 1), ENV['u'], 128 * R1S, va=VPX) + pf(['WG', 'WU'], lm(2 * R1S, 18), ENV['SB'], 0)
    if PF0: p += R1()
    for k in pro[NP0:8]: p += flat(mkdma(k))
    p += rest_srd()
    for m in range(2, 9): p += skk(m)
    GT = TMP + 2
    g1, g2f = gate_code(GT)
    p += g1
    p += F("s_cmp_lg_u32 {C}, 0\ns_cbranch_scc1 L_nw_KN") + nyw_load(FB + 8, "nw") + L("L_nw_KN:")
    p += F("""v_lshrrev_b32 v{RW}, 2, v1
v_lshlrev_b32 v{RW}, 7, v{RW}
v_lshl_add_u32 v{RW}, v2, 10, v{RW}
v_and_b32 v{t0}, 3, v1
v_lshl_add_u32 v{RW}, v{t0}, 3, v{RW}
v_bfe_u32 v{t0}, v1, 3, 1
v_and_b32 v{t1}, 1, v2
v_lshl_add_u32 v{t0}, v{t1}, 1, v{t0}
s_lshl_b32 {a}, {FH}, 1
v_xor_b32 v{t0}, {a}, v{t0}
v_lshl_add_u32 v{RW}, v{t0}, 5, v{RW}
v_xor_b32 v{RW1}, 32, v{RW}
v_lshrrev_b32 v{t0}, 1, v1
v_xor_b32 v{t0}, v{t0}, v2
v_lshlrev_b32 v{t0}, 4, v{t0}
v_lshl_add_u32 v{RX}, v1, 7, v{t0}
s_lshl_b32 {a}, {RG}, 13
v_add_u32 v{RX}, {a}, v{RX}
v_xor_b32 v{RX1}, 64, v{RX}""", **e)
    for b in (V_RW, V_RW + 3, V_RX, V_RX + 3):
        p += L("v_add_u32 v%d, 0x10000, v%d\nv_add_u32 v%d, 0x20000, v%d" % (b + 1, b, b + 2, b))
    p += F("""s_mov_b32 {Q}, 0x3e800000
s_mov_b32 {NL}, %s
s_add_u32 {KB1}, {C}, 2
s_add_u32 {KB3}, {C}, 4
s_cmp_lt_u32 {KB3}, 18
s_cselect_b32 {KB3}, {KB3}, 0
s_mul_i32 {GA}, {T}, 12
s_add_u32 {GA}, {GA}, {C}
s_cmp_lt_u32 {C}, 12
s_cselect_b32 {GA}, {GA}, 0x1000
s_add_u32 {GB}, {GA}, 192
s_mul_i32 {a}, {C}, %d
s_mul_i32 {c}, {e}, %d
s_add_u32 s%d, {a}, {c}
s_cmp_eq_u32 {e}, 0
s_cselect_b32 {c}, %d, 0
s_add_u32 s%d, {a}, {c}""" % (f2h(-math.log2(math.e)), 288 * 1152, 32 * 1152, S_DK, 256 * 1152, S_DK + 8), **e)
    for ks in range(1, 8): p += L("s_add_u32 s%d, s%d, %d" % (S_DK + ks, S_DK, ks * 32 * 1152))
    TP = V_SIL
    TF = lambda kk: (SET[3] + 4 * kk) if kk < 8 else FB + 32
    p += t_setup(TP, ENV['C'])
    NTP = OPT.get('ntp', 4)
    for kk in range(NTP): p += t_frag(kk, TF(kk), SET[2] + 16, TP)
    for k in pro[8:]: p += flat(mkdma(k))
    r2 = R2() if PF0 else []
    if OPT.get('r2at', -1) < 0: p += r2
    def late_setup():
        return F("""v_lshrrev_b32 v{DH}, 2, v0
s_lshl_b32 {w}, {W}, 4
v_add_u32 v{DH}, {w}, v{DH}
v_mul_u32_u24 v{DH}, 9216, v{DH}
v_bfe_u32 v{t0}, v0, 1, 1
v_lshrrev_b32 v{t1}, 5, v0
v_xor_b32 v{t0}, v{t0}, v{t1}
v_lshl_add_u32 v{DH}, v{t0}, 5, v{DH}
v_and_b32 v{t0}, 1, v0
v_lshl_add_u32 v{DH}, v{t0}, 4, v{DH}
v_add_u32 v{DH}, {SA}, v{DH}
v_lshlrev_b32 v{L16}, 4, v0
v_add_u32 v{L16B}, 0x10000, v{L16}
s_lshl_b32 {u}, {FH}, 13
s_lshl_b32 {w}, {RG}, 12
s_add_u32 {u}, {u}, {w}
v_add_u32 v{HW}, {u}, v{L16}""", **e)
    def late_setup2():
        return F("""s_lshl_b32 {a}, {FH}, 3
s_lshl_b32 {b}, {RG}, 12
s_add_u32 {a}, {a}, {b}
v_add_u32 v{HH}, {a}, v{L16B}
s_mul_i32 {a}, {T}, %d
s_lshl_b32 {b}, {W}, 16
s_add_u32 {a}, {a}, {b}
s_lshl_b32 {b}, {C}, 10
s_add_u32 {a}, {a}, {b}
v_add_u32 v{VST_}, {a}, v{L16}""" % (9 * 16 * 16384), **e)
    def pf_wd_setup():
        return F("""s_lshr_b32 {a}, {T}, 1
s_mul_i32 {a}, {a}, %d
s_mul_i32 {b}, {C}, %d
s_add_u32 {a}, {a}, {b}
s_mul_i32 {b}, {W}, %d
s_add_u32 {a}, {a}, {b}
v_lshlrev_b32 v%d, 7, v0
v_add_u32 v%d, {a}, v%d""" % (36 * 1152, 288 * 1152, 9 * 1152, VPF, VPF, VPF))
    sec = Sec2()
    FBUF = lambda gi: FB + 12 * (gi % 3)
    def frag_reads(gi):
        g = G[gi]; out = []
        for e_, k in enumerate(g['need']):
            pb = phys[k] * 4096
            if k[0] in 'GU':
                ap = g['tau'] & 1 if g['kind'] == 'SB' else g['ap']
                base, o, d2 = V_RW + 3 * ap, pb, 512
            elif k[0] in ('HG', 'HU'): base, o, d2 = V_RX, pb + ((3 * g['gi'] + e_) & 1) * 2048, 256
            else: base, o, d2 = V_RX + 3, pb, 2048
            r = FBUF(gi) + 4 * e_
            out.append(L("ds_read_b64_tr_b16 v[%d:%d], v%d offset:%d\nds_read_b64_tr_b16 v[%d:%d], v%d offset:%d"
                         % (r, r + 1, base + (o >> 16), o & 0xffff, r + 2, r + 3, base + (o >> 16), (o & 0xffff) + d2), lds_r=(pb, pb + 4096), tag="f%d" % gi))
        return out
    def x_reads(sg, e_):
        kk = 2 * sg + e_; out = []; pb = phys[('x', sg, 0)] * 4096
        for mi in range(4):
            o = pb + mi * 2048
            out += L("ds_read_b128 %s, v%d offset:%d" % (rs(XF(mi, kk)), V_RX + 3 * e_ + (o >> 16), o & 0xffff), lds_r=(pb, pb + 16384), tag="x%d" % sg)
        return [out[0:2], out[2:4]]
    def lin_read(regs, o, tag):
        return L("ds_read_b128 %s, v%d offset:%d" % (rs(regs), V_L16B if o >> 16 else V_L16, o & 0xffff), lds_r=(o, o + 1024), tag=tag)[0]
    def silu_a(regs):
        out = []
        for i in range(0, len(regs), 4):
            T = V_SIL + (i & 4); rr = regs[i:i + 4]
            out += [F("v_mul_f32 v%d, {NL}, v%d" % (T + j, r))[0] for j, r in enumerate(rr)]
            out += [I("v_exp_f32 v%d, v%d" % (T + j, T + j)) for j in range(4)]
            out += [I("v_add_f32 v%d, 1.0, v%d" % (T + j, T + j)) for j in range(4)]
            out += [I("v_rcp_f32 v%d, v%d" % (T + j, T + j)) for j in range(4)]
            out += [I("v_mul_f32 v%d, v%d, v%d" % (r, r, T + j)) for j, r in enumerate(rr)]
        for i in out: i.silu = True
        return out
    def silu_b(sg_, su_, b):
        out = []
        for mi in range(4):
            d = su_ + 4 * mi
            for ap in range(2):
                gq, uq = sg_ + (ap * 4 + mi) * 4, su_ + (ap * 4 + mi) * 4
                out += [I("v_mul_f32 v%d, v%d, v%d" % (gq + r, gq + r, uq + r)) for r in range(4)]
            for ap in range(2):
                gq = sg_ + (ap * 4 + mi) * 4
                out += [I("v_cvt_pk_bf16_f32 v%d, v%d, v%d" % (d + 2 * ap + h, gq + 2 * h, gq + 2 * h + 1)) for h in range(2)]
            out += L("ds_write_b128 v%d, v[%d:%d] offset:%d" % (V_HW, d, d + 3, b * 16384 + mi * 1024), lds_w=(b * 16384, b * 16384 + 16384), tag="lds")
        return out
    def silu_bH(st):
        out = []
        for mi in range(4):
            gq, uq = st + 4 * mi, st + 16 + 4 * mi
            out += [I("v_mul_f32 v%d, v%d, v%d" % (gq + r, gq + r, uq + r)) for r in range(4)]
            out += [I("v_cvt_pk_bf16_f32 v%d, v%d, v%d" % (uq + h, gq + 2 * h, gq + 2 * h + 1)) for h in range(2)]
            out += L("ds_write_b64 v%d, v[%d:%d] offset:%d" % (V_HH, uq, uq + 1, mi * 1024), lds_w=(65536, 65536 + 8192), tag="lds")
        return out
    allr = lambda st, n=32: list(range(st, st + n))
    p += stamp(1) + L("s_barrier", need_vm=("pg0",)) + stamp(2)
    xa, xb = x_reads(0, 0), x_reads(0, 1)
    pre_reads = {0: frag_reads(0), 1: frag_reads(1)}
    for r_ in [xa[0], xb[0]] + pre_reads[0] + [xa[1], xb[1]] + pre_reads[1]: p += r_
    for kk in range(NTP, 9): sec.stream(t_frag(kk, TF(kk), SET[2] + 16, TP), 0, 40 * (kk // 2) + 29, "tf%d" % kk, "tf%d" % (kk - 1))
    sec.stream(late_setup(), 40, 200, "late")
    for i in g2f: Ins.seq += 1; i.id = Ins.seq
    sec.stream(g2f, 40, 278, "gate", "late")
    TWA = lambda a_: (TMP + 2 + 8 * a_) if a_ < 3 else SET[3]
    PACC = [SET[1], SET[2]]
    VP = TMP + 22
    def out_ops(cb):
        acc = PACC[cb & 1]; out = []
        for ip in range(4):
            b = acc + 8 * ip
            out += F("s_mov_b32 {ST}, 0x%x" % (WS_P + cb * 262144 + ip * 16384))
            out += [I("v_cvt_pk_bf16_f32 v%d, v%d, v%d" % (b + d, b + 2 * d, b + 2 * d + 1)) for d in range(4)]
            out += F("buffer_store_dwordx4 v[%d:%d], v%d, {WS}, {ST} offen%s" % (b, b + 3, V_ST, OPT.get('pst', " sc1")))
        return out
    hq = {HU + 1: list(range(0, 8)), HU + 2: list(range(8, 16)), HU + 3: list(range(16, 24)), HU + 4: list(range(24, 32)), HU + 5: list(range(32, 40)),
          P2: list(range(40, 64)), P2 + 1: list(range(64, 72))}
    FBUF2 = FBUF
    extra_need = {}
    gp1 = PS['G3'] + OPT.get('p1at', 5)
    gp2 = P2 + OPT.get('p2at', 13)
    def next_bar(gi):
        while not G[gi]['bar']: gi += 1
        return gi
    gc1 = next_bar(gp1 + 3); gc2 = next_bar(gp2 + 2)
    ga1 = next_bar(PS['G1'] + OPT.get('a1at', 9)); ga2 = next_bar(gS2 + OPT.get('a2at', 7))
    print("groups: arrive1 %d poll1 %d chk1 %d s2 %d arrive2 %d poll2 %d chk2 %d stepD %d  PS %s P2 %d" % (ga1, gp1, gc1, gS2, ga2, gp2, gc2, gSD, PS, P2), file=sys.stderr)
    S2D = [SET[0], SET[0] + 8]; S2W = [TMP, TMP + 8]
    KBX = "s_lshr_b32 {x}, {g}, 5\ns_cmp_eq_u32 {x}, 9\ns_cselect_b32 {x}, 0, {x}\ns_lshl_b32 {x}, {x}, 2\ns_add_u32 {x}, {x}, {o}\ns_cmp_gt_u32 {g}, 288\ns_cselect_b32 {x}, 0x1000, {x}\n"
    kbx = lambda x, g, o: KBX.replace("{x}", "{%s}" % x).replace("{g}", "{%s}" % g).replace("{o}", str(o))
    SD = {}
    for gi, g in enumerate(G):
        base = sec.n(); fb = FBUF(gi) if gi <= P2 else FB + 12 * ((gi - P2 + (P2 % 3)) & 1 if (P2 % 3) < 2 else (gi - P2 + 1) & 1)
        if gi > P2: FBUF = lambda n_: FB + 12 * ((n_ - P2 + (P2 % 3)) & 1 if (P2 % 3) < 2 else (n_ - P2 + 1) & 1)
        ms = []
        if g['kind'] == 'SB':
            st = SET[0] if g['tau'] < 2 else SET[1]
            for mi in range(4):
                for e_ in range(2):
                    acc = V(st + ((g['tau'] & 1) * 4 + mi) * 4, 4); kk = 2 * g['sg'] + e_
                    ms.append(mf(acc, V(fb + 4 * e_, 4), XF(mi, kk), acc if kk else None))
            if g['tau'] == 3:
                for mi in range(4):
                    for e_ in range(2):
                        kk = 2 * g['sg'] + e_
                        acc = V(SET[2] + 16 * (kk // 9) + 4 * mi, 4)
                        ms.append(mf(acc, XF(mi, kk), V(TF(kk % 9), 4), acc if kk % 9 else None))
        elif g['kind'] == 'P1':
            for mi in range(4):
                for e_ in range(3):
                    acc = V(SET[g['st']] + (g['ap'] * 4 + mi) * 4, 4); kk = 3 * g['sl'] + e_
                    ms.append(mf(acc, V(fb + 4 * e_, 4), XF(mi, kk), acc if kk else None))
        elif g['kind'] == 'PH':
            for mi in range(4):
                for e_ in range(3):
                    acc = V(SET[0] + (g['half'] * 4 + mi) * 4, 4); kk = 3 * g['gi'] + e_
                    ms.append(mf(acc, V(fb + 4 * e_, 4), XF(mi, kk), acc if kk else None))
        else:
            for mi in range(8):
                for e_ in range(3):
                    acc = V(PACC[g['cb'] & 1] + 4 * mi, 4)
                    ms.append(mf(acc, V(fb + 4 * e_, 4), HF(mi, 3 * g['gi'] + e_), acc if (g['gi'] or e_) else None))
        lg = ["f%d" % gi]; vm = []
        if g['kind'] == 'SB' and g['tau'] == 0: lg.append("x%d" % g['sg'])
        if g['kind'] == 'P2' and g['cb'] == 0: lg.append("h%d" % g['gi'])
        if g['bar']:
            vm.append("pg%d" % iv[gi]); lg.append("lds")
            if gi == ga1: vm.append("pub1")
            if gi == ga2: vm.append("pub2")
        if gi in (gc1, gc2): sec.block(base - 1, poll_check("pc%d" % (1 if gi == gc1 else 2), VP, 28 if gi == gc1 else 29))
        if gi:
            if sec.blk.get(base - 1): sec.block(base - 1, [Need(vm, lg)])
            else: sec.at(base - 1, Need(vm, lg))
        for m_ in ms: sec.mfma(m_)
        nm = g['nm']; end = sec.n()
        sidx = None
        if g['kind'] in ('P1', 'PH') and PS[g['ps']] == gi: sidx = 3 + list(PS).index(g['ps'])
        if g['kind'] == 'P2' and g['gi'] == 0: sidx = 11 + g['cb']
        gap = 0
        if g['bar']:
            sec.at(base, L("s_barrier", need_vm=tuple(vm), need_lgkm=tuple(lg))); gap = 1
        if OPT.get('diag') == 6:
            sidx = None
            if g['kind'] == 'SB' and g['tau'] == 0: sidx = 3 + g['sg']
            if gi == PS['G1']: sidx = 13
            if gi == PS['G1'] - 1: sec.block(end - 1, stamp(12))
        if OPT.get('diag') == 7:
            sidx = None
            g0 = PS['G1']
            if g0 <= gi < g0 + 68 and (gi - g0) % 4 == 0: sidx = 3 + (gi - g0) // 4
        if sidx is not None and OPT['stamps']: sec.block(base, stamp(sidx))
        pairs = []
        for n_ in range(gi + 1, min(NG, gi + 3)):
            if rdg(n_) == gi:
                if n_ > P2: FBUF = lambda q_: FB + 12 * ((q_ - P2 + (P2 % 3)) & 1 if (P2 % 3) < 2 else (q_ - P2 + 1) & 1)
                pairs += frag_reads(n_)
                if n_ > P2 and gi <= P2: FBUF = FBUF2
        if g['xr']: pairs += x_reads(*g['xr'])
        hr = [lin_read(HF(n_ & 7, n_ >> 3), (n_ >> 3) * 8192 + (n_ & 7) * 1024, "h%d" % (n_ // 24)) for n_ in hq.get(gi, [])]
        hp = [hr[i:i + 2] for i in range(0, len(hr), 2)]
        pairs = hp + pairs if gi == P2 + 1 else pairs + hp
        avail = list(range(gap, nm - 1))
        items = []
        dm = [mkdma(k) for k in g['dma']]
        ip_, id_ = 0, 0
        early = g['kind'] == 'P2'
        while ip_ < len(pairs) or id_ < len(dm):
            if ip_ < len(pairs): items.append(('r', pairs[ip_])); ip_ += 1
            elif not items or items[-1][0] == 'd': items.append(('z', None))
            if id_ < len(dm) and (not early or ip_ >= min(len(pairs), 3)): items.append(('d', dm[id_])); id_ += 1
        assert len(items) <= len(avail), (gi, len(items), len(avail))
        pos = 0; slack = len(avail) - len(items); nd_left = len(dm)
        for kind, it in items:
            if kind == 'r': sec.at(base + avail[pos], it)
            if kind == 'd':
                if isinstance(it[0], list): sec.block(base + avail[pos] - 1, it[0])
                else: sec.at(base + avail[pos] - 1, it[0])
                sec.at(base + avail[pos], it[1])
                sk = slack // max(1, nd_left); pos += sk; slack -= sk; nd_left -= 1
            pos += 1
        if gi == 19: sec.block(end - 1, F("s_cmp_lg_u32 {C}, 0\ns_cbranch_scc1 L_nw2_KN") + nyw_store(FB + 8, "nw2") + L("L_nw2_KN:"))
        if PF0 and gi == OPT.get('r2at', -1): sec.block(base + 1, r2)
        if gi == OPT.get('pf1', -1): sec.block(base + 1, pf(['WG', 'WU'], lm(0, 18), ENV['SB'], 128))
        if OPT.get('pfd', 1):
            for it in range(3):
                if gi == PS['G1'] + OPT.get('pfd0', 6) + it * OPT.get('pfdi', 12):
                    sec.block(base + 1, (pf_wd_setup() if it == 0 else []) + pf(['WD'], lm(0, 27), "0", 0, real=(it == 2))
                              + L("v_add_u32 v%d, %d, v%d" % (VPF, 27 * 128, VPF)))
        if g['kind'] == 'SB' and g['sg'] == 6 and g['tau'] == 3:
            sec.stream(twiddle_A(TWA, SET[3] + 8), end, end + 78, "twA")
        if gi == PS['G1'] - 1:
            blk = diag(1, 21) + step_A(SET[2], TWA, SET[3] + 8, TP, ENV['C'], 0) + (stamp(22) if OPT.get('diag') == 1 else []) + diag(1, 23)
            blk += F("s_cmp_lt_u32 {KB1}, 16\ns_cbranch_scc1 L_x1_KN")
            o = "x1"; s1 = Sec2(); XS = SET[3] + 8; XFr = SET[3] + 24
            s1.pre = t_setup(TP, ENV['KB1'], opt=o) + t_frag(0, XFr, XS, TP, opt=o)
            for kk in range(9):
                if kk < 8: nxt = None
                b0 = s1.n()
                for hh in range(2):
                    for mi in range(4):
                        acc = V(SET[2] + 16 * hh + 4 * mi, 4)
                        s1.mfma(mf(acc, XF(mi, kk + 9 * hh), V(XFr + 4 * (kk & 1), 4), acc if kk else None, o))
                if kk < 8: s1.stream(t_frag(kk + 1, XFr + 4 * ((kk + 1) & 1), XS, TP, opt=o), b0, b0 + 6)
            blk += s1.flatten() + step_A(SET[2], TWA, SET[3] + 8, TP, ENV['KB1'], 8704, opt=o) + L("L_x1_KN:")
            sec.block(end - 1, blk)
            sw = F("""v_lshrrev_b32 v{RX}, 2, v1
v_lshl_add_u32 v{RX}, v2, 3, v{RX}
v_lshlrev_b32 v{RX}, 6, v{RX}
v_and_b32 v{t0}, 3, v1
v_lshl_add_u32 v{RX}, v{t0}, 3, v{RX}
v_and_b32 v{t1}, 1, v2
v_xor_b32 v{t1}, {FH}, v{t1}
v_lshl_add_u32 v{RX}, v{t1}, 5, v{RX}
v_lshrrev_b32 v{RX1}, 2, v1
v_lshl_add_u32 v{RX1}, v2, 2, v{RX1}
v_bfe_u32 v{t1}, v{RX1}, 1, 2
v_xor_b32 v{t1}, {W}, v{t1}
v_lshlrev_b32 v{RX1}, 7, v{RX1}
v_lshl_add_u32 v{RX1}, v{t1}, 5, v{RX1}
v_lshl_add_u32 v{RX1}, v{t0}, 3, v{RX1}""", **e)
            for b in (V_RX, V_RX + 3): sw += L("v_add_u32 v%d, 0x10000, v%d\nv_add_u32 v%d, 0x20000, v%d" % (b + 1, b, b + 2, b))
            sec.stream(sw, end - 36, end - 2, "sw")
            sec.stream(silu_a(allr(SET[0])), end, end + 200, "a0")
            sec.stream(silu_b(SET[0], SET[1], 0), end + 145, end + 286, "b0", "a0")
        if g['kind'] == 'P1' and g['sl'] == 5 and g['ap'] == 1:
            ps = g['ps']
            if ps == 'G1': sec.stream(silu_a(allr(SET[3])), end + 2, end + 380, "a1", "a0")
            if ps == 'U1': sec.stream(silu_b(SET[3], SET[2], 1), end + 2, end + 286, "b1", "a1")
            if ps == 'G2': sec.stream(silu_a(allr(SET[0])), end + 2, end + 143 + 12 * (gc1 - PS['G3']) - 30, "a2", "a1")
            if ps == 'U2':
                sec.stream(silu_b(SET[0], SET[1], 2), end + 2, end + 12 * (gc1 - PS['G3']), "b2", "a2")
            if ps == 'G3':
                sec.stream(silu_a(allr(SET[3])), end + 2, end + 143 + 40, "a3", "a2")
            if ps == 'U3': sec.stream(silu_b(SET[3], SET[2], 3), end + 2, end + 72 + 50, "b3", "a3")
        if g['kind'] == 'PH' and g['gi'] == 5:
            if g['half'] == 0: sec.stream(silu_a(allr(SET[0], 16)), end + 2, end + 72 + 10, "aH", "a3")
            else: sec.stream(silu_bH(SET[0]), end + 2, end + 22, "bH", "aH")
        if gi == ga1:
            sec.block(base, diag(5, 21))
            sec.block(base + 1, diag(5, 22))
            sec.block(base, arrive("ar1", "s_lshr_b32 {a}, {C}, 1\ns_lshl_b32 {a}, {a}, 2\ns_cmp_lt_u32 {KB1}, 16\ns_cselect_b32 {b}, 0x1000, 32\ns_mov_b32 {c}, 0x1000", VP))
        if gi == ga2:
            sec.block(base, diag(5, 23))
            sec.block(base + 1, diag(5, 24))
            sec.block(base, arrive("ar2", kbx('a', 'GA', 128) + kbx('b', 'GB', 128) + "s_mov_b32 {c}, 0x1000", VP))
        if gi == gp1:
            sec.block(base + 1, poll_issue("pi1", kbx('a', 'GA', 0) + kbx('b', 'GB', 0) + "s_mov_b32 {c}, 0x1000",
                      "s_cmp_gt_u32 {GA}, 288\ns_cselect_b32 {a}, 0, 32\ns_cmp_gt_u32 {GB}, 288\ns_cselect_b32 {b}, 0, 32\ns_mov_b32 {c}, 0", VP))
        if gi == gp2:
            sec.block(base + 1, poll_issue("pi2", "s_lshr_b32 {a}, {C}, 1\ns_lshl_b32 {a}, {a}, 2\ns_add_u32 {a}, {a}, 128\ns_movk_i32 {b}, 160\ns_mov_b32 {c}, 0x1000",
                      "s_cmp_lt_u32 {C}, 2\ns_cselect_b32 {a}, 33, 32\ns_cmp_lt_u32 {KB3}, 16\ns_cselect_b32 {b}, 0, 32\ns_mov_b32 {c}, 0", VP))
        for r_, gam in enumerate(('GA', 'GB')):
            if gi == PS['G2'] + OPT.get('w%dat' % r_, 1 + 12 * r_):
                o = "s2w%d" % r_
                sec.block(base + 1, F("s_cmp_ge_u32 {%s}, 288\ns_cbranch_scc1 L_%s_KN" % (gam, o)) + s2_wloads(ENV[gam], S2W[r_], TMP + 16, o, False) + L("L_%s_KN:" % o))
        if gi == gc1:
            blk = []
            for r_, (gam, keep) in enumerate((('GA', 'SA'), ('GB', 'SB'))):
                o = "s2l%d" % r_
                blk += F("s_cmp_gt_u32 {%s}, 288\ns_cbranch_scc1 L_%s_KN" % (gam, o)) + s2_dloads(ENV[gam], ENV[keep], S2D[r_], TMP + 16, o) + L("L_%s_KN:" % o)
            blk += F("s_cmp_lg_u32 {GB}, 288\ns_cbranch_scc1 L_s2n_KN") + s2_wloads(ENV['GB'], S2W[1], TMP + 16, "s2n", True) + L("L_s2n_KN:")
            if OPT.get('diag') == 3: blk = stamp(21) + blk + stamp(22) + diag(3, 23)
            sec.block(base + 1, blk)
            M = SET[1]; Z = SET[0] + 16; S2T = SET[1] + 24
            pre = dft32(M, Z, False) + s2_addr(S2T, 12 * 4096, False)
            for i in pre:
                i.text = i.text.replace(ENV['a'], ENV['u']).replace(ENV['b'], ENV['w'])
                fx = lambda lst: [('s', 6) if r == ('s', 84) else ('s', 7) if r == ('s', 85) else r for r in lst]
                i.rd = fx(i.rd); i.wr = fx(i.wr)
            sec.stream(pre, base + 2, base + 12 * (gS2 - gi) + 10, "s2pre")
        if gi == gS2:
            blk = diag(3, 24)
            for r_, (gam, keep) in enumerate((('GA', 'SA'), ('GB', 'SB'))):
                o = "s2c%d" % r_
                blk += F("s_cmp_gt_u32 {%s}, 288\ns_cbranch_scc1 L_%s_KN" % (gam, o))
                blk += s2_compute(ENV[keep], M, S2D[r_], Z, S2W[r_], S2T, TMP + 16, 12 * 4096, o) + L("L_%s_KN:" % o)
                if OPT.get('diag') == 3 and r_ == 0: blk += stamp(25)
            sec.block(end - 1, blk + (stamp(26) if OPT.get('diag') == 3 else []) + diag(3, 27) + late_setup2())
        if gi == P2 + 3: sec.stream(twiddle_D(SET[3], SET[3] + 16), base, base + 200, "twD")
        if gi == gc2:
            blk = stepD_loads(ENV['C'], SET[0])
            blk += F("s_cmp_lg_u32 {C}, 0\ns_cbranch_scc1 L_nyl_KN") + stepD_nyloads(SET[0] + 16, VP, "nyl") + L("L_nyl_KN:")
            blk += F("s_cmp_lt_u32 {KB3}, 16\ns_cbranch_scc1 L_d2l_KN") + stepD_loads(ENV['KB3'], SET[0] + 16, opt="d2l") + L("L_d2l_KN:")
            sec.block(base + 1, blk)
        if gi == gSD:
            SD['p'] = stepD_parts(SET[0], SET[0] + 16, TMP, SET[3], SET[3] + 16, TMP + 8, 0, ENV['C'], ENV['SA'])
            sec.stream(SD['p'][0], base + 1, base + 30, "sd0")
            sec.stream(SD['p'][1], base + 36, base + 45, "sd1", "sd0")
        if gi == gSD + 1:
            for m_ in SD['p'][2]: sec.mfma(m_)
            sec.block(sec.n() - 1, SD['p'][3])
            for m_ in SD['p'][4]: sec.mfma(m_)
            sec.stream(SD['p'][5], sec.n() + 2, sec.n() + 44, "sd5")
        if gi == gSD + 3:
            blk = F("s_cmp_lt_u32 {KB3}, 16\ns_cbranch_scc1 L_d2_KN")
            for part in stepD_parts(SET[0] + 16, None, TMP, SET[3], SET[3] + 16, TMP + 8, 0, ENV['KB3'], ENV['SA'], opt="d2"): blk += part
            sec.block(end - 1, blk + L("L_d2_KN:"))
        if g['kind'] == 'P2' and g['gi'] == 2 and g['cb'] < 8:
            sec.stream(out_ops(g['cb']), sec.n() + 2, sec.n() + 60)
    p += sec.flatten(verbose=True)
    p += out_ops(8) + stamp(20) + stamp_out(2)
    emit(a, name, p, 512, accum=256)

def kernel_reduce(a):
    name = "reduce_kernel"
    VST[0] = 60
    a.launch(name, 256, 576, 36864)
    p = L("s_cmp_ge_u32 s2, 256\ns_cbranch_scc1 L_end_KN")
    if OPT['stamps']: p += L("v_mov_b32 v%d, 0" % VST[0])
    p += stamp(0)
    p += L("s_load_dwordx2 s[68:69], s[0:1], 64\ns_load_dwordx2 s[72:73], s[0:1], 80")
    p += F("""v_lshrrev_b32 v1, 6, v0
v_and_b32 v0, 63, v0
v_readfirstlane_b32 {W}, v1
v_lshlrev_b32 v3, 4, v0
v_and_b32 v1, 15, v0
v_lshrrev_b32 v2, 4, v0
s_and_b32 {T}, s2, 7
s_lshl_b32 {T}, {T}, 1
s_bfe_u32 {a}, s2, 0x10003
s_add_u32 {T}, {T}, {a}
s_lshr_b32 {C}, s2, 4
s_mul_i32 {b}, {T}, 9
s_add_u32 {b}, {b}, {W}
s_lshl_b32 {b}, {b}, 4
s_add_u32 {b}, {b}, {C}
s_lshl_b32 {b}, {b}, 14
s_add_u32 {b}, {b}, %d
s_and_b32 {FH}, {C}, 3
s_mul_i32 {c}, {T}, 18
s_lshl_b32 {d}, {W}, 1
s_add_u32 {c}, {c}, {d}
s_lshl_b32 {c}, {c}, 13
s_lshl_b32 {d}, {FH}, 11
s_add_u32 {c}, {c}, {d}
s_add_u32 {c}, {c}, %d
s_add_u32 {d}, {c}, %d
s_lshl_b32 m0, {W}, 12
s_waitcnt lgkmcnt(0)""" % (WS_P, WS_Y, 8192 - 2048))
    p += srd(24, 72, WS_BYTES)
    for i in range(4):
        p += F("buffer_load_dwordx4 v3, {WS}, {%s} offen offset:%d lds" % ("c" if i < 2 else "d", i * 1024), tag="y", lds_w=(0, 36864))
    p += F("""s_lshl_b32 {c}, {T}, 9
s_lshl_b32 {d}, {FH}, 7
s_add_u32 {c}, {c}, {d}
s_add_u32 {c}, {c}, %d
s_add_u32 {d}, {c}, %d
v_lshlrev_b32 v4, 2, v1
buffer_load_dword v6, v4, {WS}, {c} offen
buffer_load_dword v7, v4, {WS}, {c} offen offset:64
buffer_load_dword v8, v4, {WS}, {d} offen
buffer_load_dword v9, v4, {WS}, {d} offen offset:64""" % (WS_G, WS_O - WS_G))
    PB = 64
    def pload(i):
        q = F("s_add_u32 {b}, {b}, 4096") if (i % 4 == 0 and i) else []
        return q + F("buffer_load_dwordx4 v[%d:%d], v3, {WS}, {b} offen offset:%d%s" % (PB + 4 * i, PB + 3 + 4 * i, (i % 4) * 1024, OPT.get('rfl', "")))
    NPRE = OPT.get('npre', 2)
    for i in range(NPRE): p += pload(i)
    p += srd(44, 68, 2048 * 1152)
    ST, FR, YF, AC, SM, SEL = 12, 28, 36, 52, 36, 28
    p += F("""s_lshl_b32 {c}, {W}, 6
s_lshr_b32 {d}, {C}, 2
s_lshl_b32 {d}, {d}, 4
s_add_u32 {c}, {c}, {d}
v_add_u32 v5, {c}, v1
v_and_b32 v11, 1, v5
v_cvt_f32_u32 v5, v5
v_mul_f32 v10, %s, v5
v_mul_f32 v5, %s, v5
v_cos_f32 v10, v10
v_lshlrev_b32 v4, 2, v2
v_cvt_f32_u32 v4, v4
v_add_f32 v10, v10, v10
v_lshlrev_b32 v11, 31, v11
v_or_b32 v11, 0.5, v11
v_cmp_eq_u32 vcc, 0, v2
s_mov_b32 {Q}, 0x3e800000
s_lshl_b32 {c}, {c}, 1
s_and_b32 {e}, {FH}, 1
s_lshl_b32 {e}, {e}, 10
s_lshr_b32 {d}, {FH}, 1
s_add_u32 {e}, {e}, {d}
s_lshl_b32 {d}, {T}, 1
s_add_u32 {e}, {e}, {d}
s_mul_i32 {e}, {e}, 1152
s_add_u32 {c}, {c}, {e}""" % (f2h(1.0 / 36), f2h(1.0 / 576)))
    def frag(kb):
        cur = ST + 8 * (kb & 1); prv = ST + 8 * ((kb + 1) & 1); f = FR + 4 * (kb & 1); q = []
        if kb < 2:
            for j in range(4): q += L("v_add_f32 v%d, %s, v4" % (cur + j, f2h(16.0 * kb + j)))
            for j in range(4): q += F("v_fma_f32 v%d, v%d, v5, {Q}\nv_mul_f32 v%d, v%d, v5" % (cur + 4 + j, cur + j, cur + j, cur + j))
            for j in range(8): q += L("v_cos_f32 v%d, v%d" % (cur + j, cur + j))
        else:
            for j in range(8): q += L("v_fma_f32 v%d, v10, v%d, -v%d" % (cur + j, prv + j, cur + j))
        if kb == 0:
            q += L("v_cndmask_b32 v%d, v%d, 0.5, vcc\nv_cndmask_b32 v%d, v%d, v11, vcc" % (f, cur, f + 2, cur + 4))
            q += L("v_cvt_pk_bf16_f32 v%d, v%d, v%d\nv_cvt_pk_bf16_f32 v%d, v%d, v%d" % (f, f, cur + 1, f + 2, f + 2, cur + 5))
            q += L("v_cvt_pk_bf16_f32 v%d, v%d, v%d\nv_cvt_pk_bf16_f32 v%d, v%d, v%d" % (f + 1, cur + 2, cur + 3, f + 3, cur + 6, cur + 7))
        else:
            for jp in range(4): q += L("v_cvt_pk_bf16_f32 v%d, v%d, v%d" % (f + jp, cur + 2 * jp, cur + 2 * jp + 1))
        return q
    def yrd(kb):
        r = YF + 8 * (kb & 1)
        return L("ds_read_b128 v[%d:%d], v3 offset:%d\nds_read_b128 v[%d:%d], v3 offset:%d" % (r, r + 3, kb * 2048, r + 4, r + 7, kb * 2048 + 1024), lds_r=(0, 36864))
    p += frag(0) + frag(1)
    p += stamp(1) + L("s_barrier", need_vm=("y",)) + stamp(2)
    p += yrd(0)
    for kb in range(18):
        if kb + 1 < 18: p += yrd(kb + 1)
        for h in range(2):
            acc = V(AC + 4 * h, 4)
            p.append(mf(acc, V(FR + 4 * (kb & 1), 4), V(YF + 8 * (kb & 1) + 4 * h, 4), acc if kb else None))
        if NPRE + kb < 16: p += pload(NPRE + kb)
        if kb + 2 < 18: p += frag(kb + 2)
    p += F("v_and_b32 v4, 31, v0\nv_mul_u32_u24 v4, %d, v4\nv_lshrrev_b32 v5, 5, v0\nv_lshl_add_u32 v4, v5, 4, v4" % (32 * 1152))
    sc_ = f2h(2.0 / (2048 * 576))
    p += stamp(3)
    p += L("v_mul_f32 v6, %s, v6\nv_mul_f32 v7, %s, v7" % (sc_, sc_))
    p += L("""v_lshrrev_b32 v12, 2, v1
v_cmp_eq_u32 vcc, v12, v2
v_and_b32 v13, 1, v1
v_lshlrev_b32 v13, 4, v13
v_mov_b32 v14, 0x3f80
v_lshlrev_b32 v13, v13, v14
v_cndmask_b32 v13, 0, v13, vcc
v_and_b32 v12, 2, v1
v_cmp_eq_u32 vcc, 0, v12
v_mov_b32 v%d, 0
v_mov_b32 v%d, 0
v_mov_b32 v%d, 0
v_mov_b32 v%d, 0
v_cndmask_b32 v%d, 0, v13, vcc
v_cndmask_b32 v%d, v13, 0, vcc""" % (SEL, SEL + 1, SEL + 4, SEL + 5, SEL + 2, SEL + 3))
    for r in range(8): p += L("v_mul_f32 v%d, v%d, v%d" % (AC + r, AC + r, 6 + (r >> 2)))
    for i in range(16):
        for h in range(2):
            acc = V(SM + 4 * h, 4)
            p.append(mf(acc, V(SEL + 2 - 2 * h, 4), V(PB + 4 * i, 4), acc if i else None))
    for r in range(8): p += L("v_fma_f32 v%d, v%d, v%d, v%d" % (SM + r, SM + r, 8 + (r >> 2), AC + r))
    for d in range(4): p += L("v_cvt_pk_bf16_f32 v%d, v%d, v%d" % (16 + d, SM + 2 * d, SM + 1 + 2 * d))
    p += L("v_permlane16_swap_b32 v16, v18\nv_permlane16_swap_b32 v17, v19")
    p += stamp(4)
    p += F("buffer_store_dwordx4 v[16:19], v4, {OUT}, {c} offen%s" % OPT.get('ofl', ""))
    p += stamp_out(3)
    emit(a, name, p, 128)

if __name__ == "__main__":
    for x in sys.argv[2:]:
        k, v = x.split("=")
        OPT[k] = int(v) if v.lstrip("-").isdigit() else v.replace("_", " ")
    a = Asm()
    kernel_main(a); kernel_reduce(a)
    open(sys.argv[1], "w").write(a.text())
```

```python
import sys, math, struct
from asmlib import *
from fw import *

WS_A = 0x000000
WS_B = 0x300000
WS_Y = 0x3000000
WS_G = 0x600000
WS_O = 0x602000
WS_P = 0x800000
WS_N = 0x610000
KB_STRIDE = 131072
MF = "v_mfma_f32_16x16x32_bf16"
def f2h(x): return "0x%08x" % struct.unpack("<I", struct.pack("<f", x))[0]
def mf(d, a, b, c, opt=False):
    return I("%s %s, %s, %s, %s" % (MF, rs(d), rs(a), rs(b), rs(c) if c else "0"), opt=opt)
def F(text, opt=False, tag=None, **env):
    e = dict(ENV); e.update(env)
    kw = {}
    for k in ("lds_r", "lds_w", "priv", "need_vm", "need_lgkm"):
        if k in env: kw[k] = env[k]
    return L(text.format(**e), opt=opt, tag=tag, **kw)

ENV = dict(X="s[8:11]", WG="s[12:15]", WU="s[16:19]", WD="s[20:23]", WS="s[24:27]", DBG="s[28:31]", WR="s[32:35]", WI="s[36:39]", GW="s[40:43]", OUT="s[44:47]",
           T="s79", C="s80", W="s81", W1K="s82", KB="s83", RG="s87", FH="s88", S2="s89", a="s84", b="s85", c="s86", d="s92", e="s93",
           Q="s94", KB3="s95", NL="s96", KB1="s97", GA="s98", GB="s99", SA="s100", SB="s101", ST="s90", SP="s91", u="s6", w="s7", ROT="s3")
S_KK, S_DK, S_XQ = 48, 66, 75
OPT = dict(stamps=False, BI=2, sc1p=True)
VST = [223]
def stamp(idx):
    if not OPT['stamps']: return []
    return L("s_memrealtime s[4:5]\ns_waitcnt lgkmcnt(0)\nv_writelane_b32 v%d, s4, %d\ns_memtime s[4:5]\ns_waitcnt lgkmcnt(0)\nv_writelane_b32 v%d, s4, %d" % (VST[0], idx, VST[0], 32 + idx))
def diag(n, idx):
    if OPT.get('diag', 0) != n: return []
    return L("s_waitcnt vmcnt(0)") + stamp(idx)
def stamp_out(kidx):
    if not OPT['stamps']: return []
    p = L("s_waitcnt vmcnt(0)") + stamp(31)
    p += F("s_cmp_lg_u32 {W}, 0\ns_cbranch_scc1 L_end_KN\ns_lshl_b32 s4, s2, 8\ns_add_u32 s4, s4, 0x%x\nv_lshlrev_b32 v0, 2, v0" % (STAMP_OFF + kidx * 262144))
    p += F("buffer_store_dword v%d, v0, {WS}, s4 offen" % VST[0])
    return p
def srd(d, b, n):
    return L("s_mov_b32 s%d, s%d\ns_and_b32 s%d, s%d, 0xffff\ns_mov_b32 s%d, 0x%x\ns_mov_b32 s%d, 0x20000" % (d, b, d + 1, b + 1, d + 2, n, d + 3))
def emit(a, name, prog, vg, accum=None):
    p = finish(prog)
    dr = OPT.get('drop', "")
    if 'd' in dr: p = [i for i in p if i.kind != 'dma']
    if 'b' in dr: p = [i for i in p if i.kind != 'bar']
    if 't' in dr: p = [i for i in p if not (i.kind == 'ds' and i.tag and i.tag.startswith('f'))]
    if 'v' in dr: p = [i for i in p if not getattr(i, 'silu', False)]
    if 's' in dr: p = [i for i in p if not (i.kind == 'vmem' and 's90' in i.text)]
    a.begin(name)
    for i in p: a(i.text.replace("KN", name))
    a("L_end_%s:\ns_endpgm" % name)
    a.end(name, vg, accum=accum)
    print(name, stats(p), file=sys.stderr)

def flat(t):
    o = []
    for x in t: o += x if isinstance(x, list) else [x]
    return o
def XF(mi, kk):
    n = kk * 4 + mi
    return A(4 * n, 4) if n < 64 else V(224 + 4 * (n - 64), 4)
def HF(mi, ks):
    n = ks * 8 + mi
    return XF(n & 3, n >> 2)
SET = [32, 64, 96, 128]
FB = 160
TMP = 196
V_DX, V_DW, V_DH, V_DD, V_RW, V_RX = 3, 4, 5, 6, 7, 13
V_HW, V_HH, V_L16, V_L16B, V_ST, V_SIL = 19, 20, 21, 22, 23, 24

def dma(vo, srdn, soff, pb, ioff, tag):
    assert pb - ioff >= 0
    m = F("s_add_u32 m0, {W1K}, %d" % (pb - ioff))[0]
    d = F("buffer_load_dwordx4 v%d, {%s}, s%d offen%s%s lds" % (vo, srdn, soff, (" offset:%d" % ioff) if ioff else "", OPT.get('xfl', "") if srdn == 'X' else OPT.get('wfl', "")), tag=tag, lds_w=(pb, pb + 4096))[0]
    return m, d

def gate_code(T):
    e = dict(va=T + 9, vo=T + 19, t0=T + 20, t1=T + 21, t2=T + 22, t3=T + 23)
    p = F("""v_lshrrev_b32 v{vo}, 5, v0
s_lshl_b32 {a}, {C}, 3
s_lshl_b32 {b}, {W}, 1
s_add_u32 {a}, {a}, {b}
v_add_u32 v{vo}, {a}, v{vo}
v_and_b32 v{t0}, 63, v{vo}
v_lshlrev_b32 v{t0}, 5, v{t0}
v_lshrrev_b32 v{t1}, 6, v{vo}
v_add_u32 v{t0}, v{t0}, v{t1}
s_lshl_b32 {a}, {T}, 1
v_add_u32 v{t0}, {a}, v{t0}
v_mul_u32_u24 v{t0}, 1152, v{t0}
v_and_b32 v{t1}, 31, v0
v_mul_u32_u24 v{t1}, 36, v{t1}
v_add_u32 v{t0}, v{t0}, v{t1}""", **e)
    for b_, ad, sr in ((T, "t0", "X"), (T + 10, "t1", "GW")):
        p += F("buffer_load_dwordx4 v[%d:%d], v{%s}, {%s}, 0 offen\nbuffer_load_dwordx4 v[%d:%d], v{%s}, {%s}, 0 offen offset:16\nbuffer_load_dword v%d, v{%s}, {%s}, 0 offen offset:32"
               % (b_, b_ + 3, ad, sr, b_ + 4, b_ + 7, ad, sr, b_ + 8, ad, sr), **e)
    q = []
    for n in range(9):
        q += F("""v_lshlrev_b32 v{t0}, 16, v{x}
v_lshlrev_b32 v{t1}, 16, v{g}
v_and_b32 v{t2}, 0xffff0000, v{x}
v_and_b32 v{t3}, 0xffff0000, v{g}
v_mul_f32 v{t0}, v{t0}, v{t1}
v_mul_f32 v{t2}, v{t2}, v{t3}
v_cvt_pk_bf16_f32 v{t0}, v{t0}, v{t2}
v_lshlrev_b32 v{t1}, 16, v{t0}
v_and_b32 v{t0}, 0xffff0000, v{t0}""", x=T + n, g=T + 10 + n, **e)
        q += F("v_add_f32 v{va}, v{t1}, v{t0}" if n == 0 else "v_add_f32 v{va}, v{va}, v{t1}\nv_add_f32 v{va}, v{va}, v{t0}", **e)
    for sh in (8, 4, 2, 1):
        q += F("v_add_f32_dpp v{va}, v{va}, v{va} row_ror:%d row_mask:0xf bank_mask:0xf" % sh, **e)
    q += F("""v_mov_b32 v{t0}, v{va}
v_and_b32 v{t1}, 31, v0
v_cmp_eq_u32 vcc, 0, v{t1}
v_permlane16_swap_b32 v{va}, v{t0}
v_add_f32 v{va}, v{va}, v{t0}
v_cvt_pk_bf16_f32 v{va}, v{va}, v{va}
v_lshlrev_b32 v{va}, 16, v{va}
v_mul_f32 v{va}, {NL}, v{va}
v_exp_f32 v{va}, v{va}
v_lshlrev_b32 v{vo}, 2, v{vo}
v_add_f32 v{va}, 1.0, v{va}
v_rcp_f32 v{va}, v{va}
v_bfrev_b32 v{t1}, 1
v_cvt_pk_bf16_f32 v{va}, v{va}, v{va}
v_lshlrev_b32 v{va}, 16, v{va}
v_sub_f32 v{t0}, 1.0, v{va}
v_cvt_pk_bf16_f32 v{t0}, v{t0}, v{t0}
v_lshlrev_b32 v{t0}, 16, v{t0}
v_cndmask_b32 v{vo}, v{t1}, v{vo}, vcc
s_lshl_b32 {u}, {T}, 9
s_add_u32 {u}, {u}, %d
s_add_u32 {w}, {u}, %d""" % (WS_G, WS_O - WS_G), **e)
    q += F("buffer_store_dword v{va}, v{vo}, {WS}, {u} offen sc1\nbuffer_store_dword v{t0}, v{vo}, {WS}, {w} offen sc1", tag="pub1", **e)
    return p, q

def t_setup(P, kb, opt=False):
    e = dict(vk=P, vphi=P + 1, vco=P + 2, vd=P + 3, vmu=P + 4, vsg=P + 5, t=P + 6, kb=kb)
    return F("""v_lshrrev_b32 v{vk}, 2, v1
v_lshlrev_b32 v{vk}, 1, v{vk}
v_and_b32 v{t}, 1, v1
v_add_u32 v{vk}, v{vk}, v{t}
v_lshlrev_b32 v{vsg}, 31, v{t}
v_or_b32 v{vsg}, 1.0, v{vsg}
s_lshl_b32 {a}, {kb}, 4
s_lshl_b32 {b}, {FH}, 3
s_add_u32 {a}, {a}, {b}
v_add_u32 v{vk}, {a}, v{vk}
v_bfe_u32 v{vphi}, v1, 1, 1
v_cvt_f32_u32 v{vphi}, v{vphi}
v_mul_f32 v{vphi}, 0x3e800000, v{vphi}
v_add_u32 v{t}, {a}, v1
v_cmp_eq_u32 vcc, 2, v{t}
v_mov_b32 v{t}, 0x120
v_lshlrev_b32 v{vd}, 3, v2
v_cndmask_b32 v{vk}, v{vk}, v{t}, vcc
v_cndmask_b32 v{vphi}, v{vphi}, 0, vcc
v_mul_u32_u24 v{t}, {ROT}, v{vk}
v_mul_u32_u24 v{vco}, 7282, v{t}
v_lshrrev_b32 v{vco}, 16, v{vco}
v_mul_u32_u24 v{vco}, 9, v{vco}
v_sub_u32 v{t}, v{t}, v{vco}
v_cvt_f32_u32 v{t}, v{t}
v_fmac_f32 v{vphi}, 0x3de38e39, v{t}
v_cvt_f32_u32 v{vk}, v{vk}
v_mul_f32 v{vco}, %s, v{vk}
v_mul_f32 v{vk}, %s, v{vk}
v_cos_f32 v{vco}, v{vco}
v_add_u32 v{t}, {a}, v2
v_cmp_eq_u32 vcc, 0, v{t}
v_cvt_f32_u32 v{vd}, v{vd}
v_add_f32 v{vco}, v{vco}, v{vco}
v_cndmask_b32 v{vmu}, 1.0, 0, vcc""" % (f2h(1.0 / 18), f2h(1.0 / 576)), opt=opt, **e)

def t_frag(kk, f, ST, P, opt=False):
    cur = ST + 8 * (kk & 1); prv = ST + 8 * ((kk + 1) & 1); ops = []
    if kk < 2:
        for j in range(8): ops += L("v_add_f32 v%d, %s, v%d" % (cur + j, f2h(32.0 * kk + j), P + 3), opt=opt)
        for j in range(8): ops += L("v_fma_f32 v%d, v%d, v%d, v%d" % (cur + j, cur + j, P, P + 1), opt=opt)
        for j in range(8): ops += L("v_cos_f32 v%d, v%d" % (cur + j, cur + j), opt=opt)
    else:
        for j in range(8): ops += L("v_fma_f32 v%d, v%d, v%d, -v%d" % (cur + j, P + 2, prv + j, cur + j), opt=opt)
    for jp in range(4): ops += L("v_cvt_pk_bf16_f32 v%d, v%d, v%d" % (f + jp, cur + 2 * jp, cur + 2 * jp + 1), opt=opt)
    return ops

def twiddle_A(TW, T):
    vs, vj, p0, p1, c0, c1 = T, T + 4, T + 5, T + 6, T + 7, T + 8
    p = F("v_lshlrev_b32 v{vs}, 7, v2\nv_add_u32 v{vs}, {S2}, v{vs}\nv_cvt_f32_u32 v{vs}, v{vs}", vs=vs)
    for j in range(1, 4): p += L("v_add_f32 v%d, %s, v%d" % (vs + j, f2h(32.0 * j), vs))
    for a in range(4):
        p += L("v_lshl_add_u32 v%d, v1, 2, %d\nv_cvt_f32_u32 v%d, v%d\nv_mul_f32 v%d, %s, v%d" % (vj, a, vj, vj, vj, f2h(1.0 / 2048), vj))
        b = TW(a)
        for jp in range(2):
            p += L("""v_mul_f32 v%d, v%d, v%d
v_mul_f32 v%d, v%d, v%d
v_cos_f32 v%d, v%d
v_cos_f32 v%d, v%d
v_sin_f32 v%d, v%d
v_sin_f32 v%d, v%d
v_cvt_pk_bf16_f32 v%d, v%d, v%d
v_cvt_pk_bf16_f32 v%d, v%d, v%d""" % (p0, vs + 2 * jp, vj, p1, vs + 2 * jp + 1, vj, c0, p0, c1, p1, p0, p0, p1, p1, b + jp, c0, c1, b + 4 + jp, p0, p1))
            C = "v%d, v%d" % (c0, c1); nC = "-v%d, -v%d" % (c0, c1); Sn = "v%d, v%d" % (p0, p1); nS = "-v%d, -v%d" % (p0, p1)
            cc, ss = [(C, Sn), (nS, C), (nC, nS), (Sn, nC)][a]
            p += L("v_cvt_pk_bf16_f32 v%d, %s\nv_cvt_pk_bf16_f32 v%d, %s" % (b + 2 + jp, cc, b + 6 + jp, ss))
    return p

def step_A(ACC, TW, DF, P, kb, stg, fill=None, opt=False):
    k = dict(opt=opt)
    fill = fill or (lambda n: [])
    t0, t1, va, vb = DF + 8, DF + 9, DF + 10, DF + 11
    e = dict(va=va, vb=vb, t0=t0, kb=kb, L16=V_L16)
    p = F("""s_mul_i32 {a}, {RG}, 4352
s_lshl_b32 {b}, {FH}, 4
s_add_u32 {a}, {a}, {b}
s_add_u32 {a}, {a}, %d
v_mul_u32_u24 v{va}, 272, v1
v_lshl_add_u32 v{va}, v2, 2, v{va}
v_add_u32 v{va}, {a}, v{va}
s_mul_i32 {a}, {W}, 2176
s_add_u32 {a}, {a}, %d
v_lshl_add_u32 v{vb}, v2, 4, v{L16}
v_add_u32 v{vb}, {a}, v{vb}
s_lshl_b32 {c}, {W}, 11
s_lshl_b32 {a}, {T}, 13
s_lshl_b32 {b}, {kb}, 17
s_add_u32 {b}, {b}, {a}
s_add_u32 {b}, {b}, {c}""" % (stg, stg), **k, **e)
    for i in range(16): p += L("v_fma_f32 v%d, v%d, v%d, v%d" % (ACC + i, P + 5, ACC + 16 + i, ACC + i), **k)
    for i in range(8):
        p += L("v_add_f32 v%d, v%d, v%d\nv_sub_f32 v%d, v%d, v%d" % (ACC + 16 + i, ACC + i, ACC + 8 + i, ACC + 24 + i, ACC + i, ACC + 8 + i), **k)
    for i in range(8): p += L("v_cvt_pk_bf16_f32 v%d, v%d, v%d" % (DF + i, ACC + 16 + 2 * i, ACC + 17 + 2 * i), **k)
    T1, T2 = ACC, ACC + 16
    for a in range(4):
        for cs, D in ((0, T1), (1, T2)):
            p.append(mf(V(D + 4 * a, 4), V(DF + 4 * (a & 1), 4), V(TW(a) + 4 * cs, 4), None, opt))
            p += fill(2)
    rng = (stg, stg + 8704)
    for a in range(4):
        x, y = T1 + 4 * a, T2 + 4 * a
        p += L("""v_fma_f32 v%d, v%d, v%d, v%d
v_add_f32 v%d, v%d, v%d
v_cvt_pk_bf16_f32 v%d, v%d, v%d
v_fma_f32 v%d, v%d, v%d, -v%d
v_sub_f32 v%d, v%d, v%d
v_cvt_pk_bf16_f32 v%d, v%d, v%d""" % (t0, P + 4, y + 2, x, t1, x + 1, y + 3, DF + 2 * a, t0, t1, t0, P + 4, x + 2, y, t1, x + 3, y + 1, DF + 2 * a + 1, t0, t1), **k)
        p += L("ds_write2_b32 v%d, v%d, v%d offset0:%d offset1:%d" % (va, DF + 2 * a, DF + 2 * a + 1, 16 * a, 16 * a + 8), lds_w=rng, tag="sa", **k)
    if not opt:
        p += F("s_or_b32 {c}, {kb}, {FH}\ns_cmp_lg_u32 {c}, 0\ns_cbranch_scc1 L_ny_KN", kb=kb)
        o = "ny"
        q = F("""s_lshl_b32 {a}, {S2}, 12
s_add_u32 {a}, {a}, %d
v_bfe_u32 v{va}, v1, 2, 1
v_lshlrev_b32 v{va}, 6, v{va}
v_lshrrev_b32 v{t0}, 3, v1
v_lshl_add_u32 v{va}, v{t0}, 17, v{va}
v_and_b32 v{t0}, 3, v1
v_lshl_add_u32 v{va}, v{t0}, 2, v{va}
v_lshl_add_u32 v{va}, v2, 28, v{va}""" % (18 * KB_STRIDE), opt=o, va=va, t0=t0)
        for par in range(2):
            q += L("v_cvt_pk_bf16_f32 v%d, v%d, v%d\nv_cvt_pk_bf16_f32 v%d, -v%d, -v%d"
                   % (T1 + par, T1 + 4 * par + 2, T1 + 4 * par + 10, T2 + par, T2 + 4 * par + 2, T2 + 4 * par + 10), opt=o)
        for par in range(2):
            q += F("buffer_store_dword v%d, v{va}, {WS}, {a} offen offset:%d sc1\nbuffer_store_dword v%d, v{va}, {WS}, {a} offen offset:%d sc1"
                   % (T1 + par, par * 16, T2 + par, 32 + par * 16), opt=o, tag="pub1", va=va)
        p += q + L("L_ny_KN:")
    p += L("s_barrier", need_lgkm=("sa",), **k)
    p += L("ds_read_b128 v[%d:%d], v%d\nds_read_b128 v[%d:%d], v%d offset:1088" % (DF, DF + 3, vb, DF + 4, DF + 7, vb), lds_r=rng, tag="lds", **k)
    p += fill(16)
    p += F("buffer_store_dwordx4 v[%d:%d], v{L16}, {WS}, {b} offen sc1\nbuffer_store_dwordx4 v[%d:%d], v{L16}, {WS}, {b} offen offset:1024 sc1"
           % (DF, DF + 3, DF + 4, DF + 7), tag="pub1", **k, **e)
    return p

def dft32(M, T, opt):
    vi, vg, p0, p1, c0, c1 = T, T + 1, T + 2, T + 3, T + 4, T + 5
    k = dict(opt=opt)
    p = L("v_cvt_f32_u32 v%d, v1\nv_lshlrev_b32 v%d, 2, v2\nv_mul_f32 v%d, %s, v%d\nv_cvt_f32_u32 v%d, v%d" % (vi, vg, vi, f2h(1.0 / 32), vi, vg, vg), **k)
    for jp in range(2):
        p += L("""v_add_f32 v%d, %s, v%d
v_add_f32 v%d, %s, v%d
v_mul_f32 v%d, v%d, v%d
v_mul_f32 v%d, v%d, v%d
v_cos_f32 v%d, v%d
v_cos_f32 v%d, v%d
v_sin_f32 v%d, v%d
v_sin_f32 v%d, v%d
v_cvt_pk_bf16_f32 v%d, v%d, v%d
v_cvt_pk_bf16_f32 v%d, v%d, v%d""" % (p0, f2h(2.0 * jp), vg, p1, f2h(2.0 * jp + 1), vg, p0, p0, vi, p1, p1, vi, c0, p0, c1, p1, p0, p0, p1, p1, M + jp, c0, c1, M + 4 + jp, p0, p1), **k)
    p += L("v_and_b32 v%d, 1, v1\nv_mul_u32_u24 v%d, 0x8000, v%d\nv_lshl_add_u32 v%d, v%d, 16, v%d" % (vi, vi, vi, vi, vi, vi), **k)
    for b in (M, M + 4):
        for jp in range(2): p += L("v_xor_b32 v%d, v%d, v%d" % (b + 2 + jp, vi, b + jp), **k)
    for d in range(4):
        p += L("v_xor_b32 v%d, 0x80008000, v%d\nv_xor_b32 v%d, 0x80000000, v%d\nv_xor_b32 v%d, 0x80000000, v%d\nv_xor_b32 v%d, 0x8000, v%d"
               % (M + 8 + d, M + 4 + d, M + 12 + d, M + d, M + 16 + d, M + 4 + d, M + 20 + d, M + 4 + d), **k)
    return p

def nyw_load(T, o):
    return F("""s_lshl_b32 {a}, {T}, 7
s_lshl_b32 {b}, {FH}, 6
s_add_u32 {a}, {a}, {b}
v_add_u32 v{j}, {a}, v0
v_mul_u32_u24 v{r}, 578, v{j}
s_cmp_eq_u32 {RG}, 0
s_cselect_b32 s44, s32, s36
s_cselect_b32 s45, s33, s37
s_mov_b32 s46, %d
s_mov_b32 s47, 0x20000
buffer_load_ushort v{r}, v{r}, s[44:47], 0 offen offset:576""" % (2048 * 578), opt=o, j=T, r=T + 1)
def nyw_store(T, o):
    return F("""s_lshl_b32 {a}, {RG}, 12
s_lshl_b32 {b}, {T}, 8
s_add_u32 {a}, {a}, {b}
s_lshl_b32 {b}, {FH}, 7
s_add_u32 {a}, {a}, {b}
s_add_u32 {a}, {a}, %d
v_and_b32 v{j}, 14, v0
v_and_b32 v{t}, 1, v0
v_lshl_add_u32 v{j}, v{t}, 4, v{j}
v_and_b32 v{t}, 1, v2
v_lshl_add_u32 v{j}, v{t}, 6, v{j}
v_lshrrev_b32 v{t}, 1, v2
v_lshl_add_u32 v{j}, v{t}, 5, v{j}""" % WS_N, opt=o, j=T, t=T + 2) + F("buffer_store_short v%d, v%d, {WS}, {a} offen sc1" % (T + 1, T), opt=o, tag="pub1")

def s2_wloads(gam, Wr, T, opt, special):
    e = dict(gam=gam, vw=T, t0=T + 1)
    if special:
        p = F("""s_lshl_b32 {a}, {RG}, 12
s_lshl_b32 {b}, {FH}, 6
s_add_u32 {a}, {a}, {b}
s_add_u32 {a}, {a}, %d
v_lshrrev_b32 v{vw}, 2, v0
v_lshlrev_b32 v{vw}, 7, v{vw}
v_and_b32 v{t0}, 3, v0
v_lshl_add_u32 v{vw}, v{t0}, 4, v{vw}
buffer_load_dwordx4 v[%d:%d], v{vw}, {WS}, {a} offen sc1
buffer_load_dwordx4 v[%d:%d], v{vw}, {WS}, {a} offen offset:2048 sc1""" % (WS_N, Wr, Wr + 3, Wr + 4, Wr + 7), opt=opt, **e)
        return p
    fl = OPT.get('s2fl', "")
    return F("""s_and_b32 {b}, {gam}, 31
s_lshl_b32 {b}, {b}, 1
s_add_u32 {b}, {b}, {FH}
s_mul_i32 {b}, {b}, 578
s_lshr_b32 {a}, {gam}, 5
s_lshl_b32 {a}, {a}, 6
s_add_u32 {a}, {a}, {b}
s_add_u32 {b}, {a}, %d
s_cmp_eq_u32 {RG}, 0
s_cselect_b32 s44, s32, s36
s_cselect_b32 s45, s33, s37
s_mov_b32 s46, %d
s_mov_b32 s47, 0x20000
v_lshrrev_b32 v{vw}, 2, v0
v_mul_u32_u24 v{vw}, 36992, v{vw}
v_and_b32 v{t0}, 3, v0
v_lshl_add_u32 v{vw}, v{t0}, 4, v{vw}
buffer_load_dwordx4 v[%d:%d], v{vw}, s[44:47], {a} offen%s
buffer_load_dwordx4 v[%d:%d], v{vw}, s[44:47], {b} offen%s""" % (16 * 36992, 2048 * 578, Wr, Wr + 3, fl, Wr + 4, Wr + 7, fl), opt=opt, **e)

def s2_gaddr(va, t0, opt):
    return F("v_lshrrev_b32 v{va}, 3, v0\nv_lshlrev_b32 v{va}, 12, v{va}\nv_and_b32 v{t0}, 7, v0\nv_lshl_add_u32 v{va}, v{t0}, 4, v{va}", opt=opt, va=va, t0=t0)
def s2_dloads(gam, keep, D, T, opt):
    p = s2_gaddr(T, T + 1, opt)
    p += F("""s_lshr_b32 {a}, {gam}, 5
s_lshl_b32 {a}, {a}, 1
s_add_u32 {a}, {a}, {RG}
s_lshl_b32 {keep}, {a}, 17
s_and_b32 {b}, {gam}, 31
s_lshl_b32 {b}, {b}, 7
s_add_u32 {keep}, {keep}, {b}
s_lshl_b32 {b}, {FH}, 16
s_add_u32 {keep}, {keep}, {b}
s_add_u32 {c}, {keep}, 0x8000
buffer_load_dwordx4 v[%d:%d], v%d, {WS}, {keep} offen sc1
buffer_load_dwordx4 v[%d:%d], v%d, {WS}, {c} offen sc1""" % (D, D + 3, T, D + 4, D + 7, T), opt=opt, keep=keep, gam=gam)
    return p

def s2_addr(T, lds_base, opt):
    e = dict(vl=T, vr=T + 1, vw=T + 2, vo=T + 3, vp=T + 4, vb=T + 5, t0=T + 7, L16=V_L16)
    return F("""s_lshl_b32 {a}, {W}, 11
s_add_u32 {a}, {a}, %d
v_add_u32 v{vl}, {a}, v{L16}
v_lshrrev_b32 v{t0}, 3, v0
v_lshlrev_b32 v{t0}, 4, v{t0}
v_xor_b32 v{vb}, v{vl}, v{t0}
v_lshrrev_b32 v{vr}, 2, v1
v_lshl_add_u32 v{vr}, v2, 2, v{vr}
v_lshlrev_b32 v{vw}, 6, v{vr}
v_lshlrev_b32 v{vr}, 7, v{vr}
v_and_b32 v{t0}, 3, v1
v_lshl_add_u32 v{vr}, v{t0}, 3, v{vr}
v_lshl_add_u32 v{vw}, v{t0}, 3, v{vw}
s_lshl_b32 {a}, {RG}, 12
s_lshl_b32 {b}, {FH}, 6
s_add_u32 {a}, {a}, {b}
s_add_u32 {a}, {a}, %d
v_add_u32 v{vr}, {a}, v{vr}
v_lshlrev_b32 v{vo}, 7, v1
v_lshl_add_u32 v{vo}, v2, 3, v{vo}
v_add_u32 v{vo}, {a}, v{vo}
v_and_b32 v{t0}, 7, v1
v_lshlrev_b32 v{t0}, 4, v{t0}
v_xor_b32 v{vo}, v{vo}, v{t0}
v_xor_b32 v{vp}, 32, v{vo}
s_lshl_b32 {a}, {FH}, 11
s_lshl_b32 {b}, {RG}, 5
s_add_u32 {a}, {a}, {b}
s_add_u32 {a}, {a}, %d
v_add_u32 v{vw}, {a}, v{vw}""" % (lds_base, lds_base, lds_base + 8192), opt=opt, **e) + s2_gaddr(T + 6, T + 7, opt)

def s2_compute(keep, M, D, Z, Wr, T, X, lds_base, opt):
    e = dict(keep=keep, vl=T, vr=T + 1, vw=T + 2, vb=T + 5, va=T + 6, t0=X, t1=X + 1, t2=X + 2, t3=X + 3)
    k = dict(opt=opt)
    rng = (lds_base, lds_base + 16384); rn2 = (lds_base + 16384, lds_base + 24576)
    q = F("ds_write_b128 v{vl}, v[%d:%d]\nds_write_b128 v{vl}, v[%d:%d] offset:1024\nds_write_b128 v{vl}, v[%d:%d] offset:8192\nds_write_b128 v{vl}, v[%d:%d] offset:9216"
          % (D, D + 3, D + 4, D + 7, Wr, Wr + 3, Wr + 4, Wr + 7), lds_w=rng, tag="s2", **k, **e)
    q += F("s_add_u32 {a}, {keep}, %d\ns_add_u32 {b}, {a}, 0x8000" % WS_B, **k, **e)
    q += L("s_barrier", need_lgkm=("s2",), **k)
    for pl in range(2):
        q += F("ds_read_b64_tr_b16 v[%d:%d], v{vr} offset:%d\nds_read_b64_tr_b16 v[%d:%d], v{vr} offset:%d"
               % (D + 4 * pl, D + 4 * pl + 1, pl * 32, D + 4 * pl + 2, D + 4 * pl + 3, pl * 32 + 2048), lds_r=rng, tag="lds", **k, **e)
    for pl in range(2):
        q += F("ds_read_b64_tr_b16 v[%d:%d], v{vw} offset:%d\nds_read_b64_tr_b16 v[%d:%d], v{vw} offset:%d"
               % (Wr + 4 * pl, Wr + 4 * pl + 1, pl * 4096, Wr + 4 * pl + 2, Wr + 4 * pl + 3, pl * 4096 + 1024), lds_r=rng, tag="lds", **k, **e)
    C = lambda a: V(M + (a * 3) * 4, 4)
    Sn = lambda a: V(M + (a * 3 + 1) * 4, 4)
    N = lambda a: V(M + (a * 3 + 2) * 4, 4)
    Ar, Ai = V(D, 4), V(D + 4, 4)
    for aa in range(2):
        zr, zi = V(Z + 4 * aa, 4), V(Z + 8 + 4 * aa, 4)
        q += [mf(zr, C(aa), Ar, None, opt), mf(zr, Sn(aa), Ai, zr, opt), mf(zi, C(aa), Ai, None, opt), mf(zi, N(aa), Ar, zi, opt)]
    for i in range(8):
        un = "v_lshlrev_b32 v{t2}, 16, v{wr}\nv_lshlrev_b32 v{t3}, 16, v{wi}\n" if i % 2 == 0 else "v_and_b32 v{t2}, 0xffff0000, v{wr}\nv_and_b32 v{t3}, 0xffff0000, v{wi}\n"
        q += F(un + """v_mul_f32 v{t0}, v{zi}, v{t3}
v_mul_f32 v{t1}, v{zr}, v{t3}
v_fma_f32 v{zr}, v{zr}, v{t2}, -v{t0}
v_fma_f32 v{zi}, v{zi}, v{t2}, v{t1}""", zr=Z + i, zi=Z + 8 + i, wr=Wr + i // 2, wi=Wr + 4 + i // 2, **k, **e)
    for pl in range(2):
        for d in range(4): q += L("v_cvt_pk_bf16_f32 v%d, v%d, v%d" % (D + 4 * pl + d, Z + 8 * pl + 2 * d, Z + 8 * pl + 2 * d + 1), **k)
    for aa in range(2):
        br = V(Z + 4 * aa, 4)
        q += [mf(br, Ar, C(aa), None, opt), mf(br, Ai, N(aa), br, opt)]
    for aa in range(2):
        bi = V(Z + 8 + 4 * aa, 4)
        q += [mf(bi, Ai, C(aa), None, opt), mf(bi, Ar, Sn(aa), bi, opt)]
    for pl in range(2):
        for aa in range(2):
            r = Wr + 4 * pl + 2 * aa; z = Z + 8 * pl + 4 * aa
            q += L("v_cvt_pk_bf16_f32 v%d, v%d, v%d\nv_cvt_pk_bf16_f32 v%d, v%d, v%d" % (r, z, z + 1, r + 1, z + 2, z + 3), **k)
            q += L("ds_write_b64 v%d, v[%d:%d] offset:%d" % (T + 3 + pl, r, r + 1, 16384 + aa * 2048), lds_w=rn2, tag="s2", **k)
    q += L("s_barrier", need_lgkm=("s2", "lds"), **k)
    q += F("ds_read_b128 v[%d:%d], v{vb} offset:16384\nds_read_b128 v[%d:%d], v{vb} offset:17408" % (D, D + 3, D + 4, D + 7), lds_r=rn2, tag="lds", **k, **e)
    q += F("buffer_store_dwordx4 v[%d:%d], v{va}, {WS}, {a} offen sc1\nbuffer_store_dwordx4 v[%d:%d], v{va}, {WS}, {b} offen sc1"
           % (D, D + 3, D + 4, D + 7), tag="pub2", **k, **e)
    return q

def twiddle_D(TW, T):
    vs, vj, vk, c0, c1, s0, s1 = T, T + 1, T + 2, T + 3, T + 4, T + 5, T + 6
    p = F("""s_lshl_b32 {u}, {FH}, 9
s_add_u32 {u}, {u}, {S2}
v_lshlrev_b32 v{vs}, 5, v1
v_add_u32 v{vs}, {u}, v{vs}
v_cvt_f32_u32 v{vs}, v{vs}
v_mul_f32 v{vs}, %s, v{vs}
v_lshlrev_b32 v{vj}, 4, v2
v_cvt_f32_u32 v{vj}, v{vj}
v_add_f32 v{vk}, v{vs}, v{vs}
v_cos_f32 v{vk}, v{vk}""" % f2h(1.0 / 2048), vs=vs, vj=vj, vk=vk)
    for par in range(2):
        p += L("""v_add_f32 v%d, %s, v%d
v_add_f32 v%d, %s, v%d
v_mul_f32 v%d, v%d, v%d
v_mul_f32 v%d, v%d, v%d
v_cos_f32 v%d, v%d
v_cos_f32 v%d, v%d
v_sin_f32 v%d, v%d
v_sin_f32 v%d, v%d""" % (s0, f2h(float(par)), vj, s1, f2h(par + 2.0), vj, s0, s0, vs, s1, s1, vs, c0, s0, c1, s1, s0, s0, s1, s1))
        if par == 0: p += L("v_add_f32 v%d, v%d, v%d" % (vk, vk, vk))
        for jp in range(4):
            if jp:
                p += L("v_fma_f32 v%d, v%d, v%d, -v%d\nv_fma_f32 v%d, v%d, v%d, -v%d\nv_fma_f32 v%d, v%d, v%d, -v%d\nv_fma_f32 v%d, v%d, v%d, -v%d"
                       % (c0, vk, c1, c0, s0, vk, s1, s0, c1, vk, c0, c1, s1, vk, s0, s1))
            p += L("v_cvt_pk_bf16_f32 v%d, v%d, v%d\nv_cvt_pk_bf16_f32 v%d, v%d, v%d" % (TW + par * 8 + jp, c0, c1, TW + par * 8 + 4 + jp, s0, s1))
    return p

def stepD_loads(kb, RAW, opt=False):
    p = F("s_lshl_b32 {a}, {S2}, 12\ns_add_u32 {a}, {a}, %d\ns_lshl_b32 {b}, {kb}, 17\ns_add_u32 {b}, {b}, {a}" % WS_B, kb=kb, opt=opt)
    for i in range(4):
        p += F("buffer_load_dwordx4 v[%d:%d], v%d, {WS}, {b} offen offset:%d sc1" % (RAW + 4 * i, RAW + 4 * i + 3, V_L16, i * 1024), opt=opt)
    return p
def stepD_nyloads(NY, T, opt):
    p = F("s_add_u32 {a}, {a}, %d\nv_and_b32 v{t}, 1, v2\nv_lshlrev_b32 v{t}, 6, v{t}\nv_lshrrev_b32 v{n}, 1, v2\nv_lshl_add_u32 v{t}, v{n}, 17, v{t}" % (18 * KB_STRIDE), opt=opt, t=T, n=NY)
    for par in range(2):
        for pl in range(2):
            r = NY + (par * 2 + pl) * 4
            p += F("buffer_load_dwordx4 v[%d:%d], v%d, {WS}, {a} offen offset:%d sc1" % (r, r + 3, T, pl * 32 + par * 16), opt=opt)
    return p

def stepD_parts(RAW, NY, NB, TW, ACC, T, stage_base, kb, so, opt=False):
    k = dict(opt=opt)
    e = dict(vl=T, vr=T + 1, t0=T + 2, so=so, kb=kb)
    rng = (stage_base, stage_base + 16384)
    p = F("s_lshl_b32 {so}, {W}, 12\ns_add_u32 {so}, {so}, %d\nv_add_u32 v{vl}, {so}, v%d" % (stage_base, V_L16), **k, **e)
    p += F("""v_lshrrev_b32 v{vr}, 2, v1
v_lshl_add_u32 v{vr}, v2, 3, v{vr}
v_lshlrev_b32 v{vr}, 7, v{vr}
v_and_b32 v{t0}, 3, v1
v_lshl_add_u32 v{vr}, v{t0}, 3, v{vr}
v_add_u32 v{vr}, {so}, v{vr}""", **k, **e)
    for i in range(4):
        p += F("ds_write_b128 v{vl}, v[%d:%d] offset:%d" % (RAW + 4 * i, RAW + 4 * i + 3, i * 1024), lds_w=rng, priv=True, tag="lds", **k, **e)
    for par in range(2):
        for pl in range(2):
            r = RAW + (par * 2 + pl) * 4; o = par * 64 + pl * 32
            p += F("ds_read_b64_tr_b16 v[%d:%d], v{vr} offset:%d\nds_read_b64_tr_b16 v[%d:%d], v{vr} offset:%d" % (r, r + 1, o, r + 2, r + 3, o + 512),
                   lds_r=rng, priv=True, tag="lds", **k, **e)
    p += F("s_mul_i32 {so}, {T}, 18\ns_add_u32 {so}, {so}, {kb}\ns_lshl_b32 {so}, {so}, 1\ns_add_u32 {so}, {so}, {RG}\ns_lshl_b32 {so}, {so}, 2\ns_add_u32 {so}, {so}, {FH}\ns_lshl_b32 {so}, {so}, 10\ns_add_u32 {so}, {so}, %d" % WS_Y, **k, **e)
    ng = []
    for par in range(2):
        for d in range(4): ng += L("v_xor_b32 v%d, 0x80008000, v%d" % (NB + 4 * par + d, RAW + par * 8 + 4 + d), **k)
    mr = []
    for par in range(2):
        er = V(ACC + 8 * par, 4)
        mr += [mf(er, V(RAW + 8 * par, 4), V(TW + 8 * par, 4), None, opt), mf(er, V(NB + 4 * par, 4), V(TW + 8 * par + 4, 4), er, opt)]
    pt = []
    if not opt:
        pt = F("s_cmp_lg_u32 {C}, 0\ns_cbranch_scc1 L_nyd_KN") + L("v_cmp_eq_u32 vcc, 0, v1", opt="nyd")
        for par in range(2):
            for d in range(4):
                br, bi, nr, ni = RAW + 8 * par + d, RAW + 8 * par + 4 + d, NY + 8 * par + d, NY + 8 * par + 4 + d
                pt += L("v_xor_b32 v%d, 0x80008000, v%d\nv_cndmask_b32 v%d, v%d, v%d, vcc\nv_cndmask_b32 v%d, v%d, v%d, vcc" % (ni, ni, bi, bi, nr, br, br, ni), opt="nyd")
        pt += L("L_nyd_KN:")
    mi_ = []
    for par in range(2):
        ei = V(ACC + 8 * par + 4, 4)
        mi_ += [mf(ei, V(RAW + 8 * par + 4, 4), V(TW + 8 * par, 4), None, opt), mf(ei, V(RAW + 8 * par, 4), V(TW + 8 * par + 4, 4), ei, opt)]
    f = []
    for r in range(8):
        f += L("v_add_f32 v%d, v%d, v%d\nv_sub_f32 v%d, v%d, v%d" % (RAW + r, ACC + r, ACC + 8 + r, RAW + 8 + r, ACC + r, ACC + 8 + r), **k)
    for u in range(2):
        for d in range(4): f += L("v_cvt_pk_bf16_f32 v%d, v%d, v%d" % (RAW + 8 * u + d, RAW + 8 * u + 2 * d, RAW + 8 * u + 2 * d + 1), **k)
        f += F("buffer_store_dwordx4 v[%d:%d], v%d, {WS}, {so} offen offset:%d sc1" % (RAW + 8 * u, RAW + 8 * u + 3, V_L16, u * 2048), **k, **e)
    return p, ng, mr, pt, mi_, f

def lanes(v, init, vals, o):
    p = L("v_mov_b32 v%d, %s" % (v, init), opt=o)
    for i, s in enumerate(vals): p += F("v_writelane_b32 v%d, %s, %d" % (v, s, i), opt=o)
    return p
def w0(name, body):
    return F("s_cmp_lg_u32 {W}, 0\ns_cbranch_scc1 L_%s_KN" % name) + body + L("L_%s_KN:" % name)
def arrive(name, calc, VA):
    o = name
    b = F(calc, opt=o) + lanes(VA, "0x1000", ["{a}", "{b}", "{c}"], o) + L("v_mov_b32 v%d, 1" % (VA + 1), opt=o)
    b += F("buffer_atomic_add v%d, v%d, {DBG}, 0 offen sc1" % (VA + 1, VA), opt=o)
    return w0(name, b)
def poll_issue(name, calc, calc2, VP):
    o = name
    b = F(calc, opt=o) + lanes(VP, "0x1000", ["{a}", "{b}", "{c}"], o)
    b += F("buffer_load_dword v%d, v%d, {DBG}, 0 offen sc1" % (VP + 2, VP), opt=o)
    b += F(calc2, opt=o) + lanes(VP + 1, "0", ["{a}", "{b}", "{c}"], o)
    return w0(name, b)
def poll_check(name, VP, sidx=None):
    o = name
    b = F("""v_cmp_lt_u32 vcc, v{r}, v{x}
s_mov_b32 {SP}, 0
s_cbranch_vccz L_{n}_KN
L_{n}s_KN:
s_sleep 4
buffer_load_dword v{r}, v{ad}, {DBG}, 0 offen sc1
s_add_u32 {SP}, {SP}, 1
s_cmp_ge_u32 {SP}, 0x40000
s_cbranch_scc1 L_{n}_KN
s_waitcnt vmcnt(0)
v_cmp_lt_u32 vcc, v{r}, v{x}
s_nop 4
s_cbranch_vccnz L_{n}s_KN""", opt=o, r=VP + 2, x=VP + 1, ad=VP, n=name)
    p = w0(name, b)
    if OPT['stamps'] and sidx is not None: p += F("s_add_u32 {SP}, {SP}, 1\nv_writelane_b32 v%d, {SP}, %d" % (VST[0], sidx))
    return p

def kernel_main(a):
    name = NAME + "_kernel"
    BI = OPT['BI']
    a.launch(name, 256, 256, 163840)
    t0, t1 = TMP, TMP + 1
    e = dict(t0=t0, t1=t1, DX=V_DX, DW=V_DW, DH=V_DH, DD=V_DD, RW=V_RW, RX=V_RX, RW1=V_RW + 3, RX1=V_RX + 3, HW=V_HW, HH=V_HH, L16=V_L16, L16B=V_L16B, VST_=V_ST)
    p = L("s_cmp_ge_u32 s2, 256\ns_cbranch_scc1 L_end_KN")
    if OPT['stamps']: p += L("v_mov_b32 v%d, 0" % VST[0])
    p += stamp(0)
    p += L("s_load_dwordx16 s[52:67], s[0:1], 0\ns_load_dwordx4 s[68:71], s[0:1], 64\ns_load_dwordx2 s[72:73], s[0:1], 80")
    p += F("""v_lshrrev_b32 v1, 6, v0
v_and_b32 v0, 63, v0
v_readfirstlane_b32 {W}, v1
v_and_b32 v1, 15, v0
v_lshrrev_b32 v2, 4, v0""")
    mp = OPT.get('map', 1)
    if mp == 1:
        p += F("""s_and_b32 {C}, s2, 3
s_lshl_b32 {C}, {C}, 2
s_bfe_u32 {a}, s2, 0x20003
s_add_u32 {C}, {C}, {a}
s_lshr_b32 {T}, s2, 5
s_lshl_b32 {T}, {T}, 1
s_bfe_u32 {a}, s2, 0x10002
s_add_u32 {T}, {T}, {a}""")
    elif mp == 0:
        p += F("s_and_b32 {C}, s2, 7\ns_lshl_b32 {C}, {C}, 1\ns_bfe_u32 {a}, s2, 0x10003\ns_add_u32 {C}, {C}, {a}\ns_lshr_b32 {T}, s2, 4")
    else:
        p += F("""s_and_b32 {C}, s2, 1
s_lshl_b32 {C}, {C}, 3
s_bfe_u32 {a}, s2, 0x30003
s_add_u32 {C}, {C}, {a}
s_lshr_b32 {T}, s2, 6
s_lshl_b32 {T}, {T}, 2
s_bfe_u32 {a}, s2, 0x20001
s_add_u32 {T}, {T}, {a}""")
    p += F("""s_lshr_b32 {RG}, {W}, 1
s_and_b32 {FH}, {W}, 1
s_lshl_b32 {W1K}, {W}, 10
s_lshl_b32 {S2}, {T}, 1
s_add_u32 {S2}, {S2}, {RG}
v_lshrrev_b32 v{DW}, 3, v0
s_lshl_b32 {a}, {W}, 3
v_add_u32 v{DW}, {a}, v{DW}
v_mul_u32_u24 v{DX}, %d, v{DW}
s_lshl_b32 {a}, {FH}, 2
v_add_u32 v{t0}, {a}, v2
v_xor_b32 v{t0}, v0, v{t0}
v_and_b32 v{t0}, 7, v{t0}
v_lshl_add_u32 v{DX}, v{t0}, 4, v{DX}
s_lshr_b32 {ROT}, {T}, 1
s_and_b32 {a}, {C}, 3
s_lshl_b32 {a}, {a}, 1
s_add_u32 {ROT}, {ROT}, {a}
s_cmp_ge_u32 {ROT}, 9
s_cselect_b32 {a}, 9, 0
s_sub_u32 {ROT}, {ROT}, {a}
s_mul_i32 {ROT}, {ROT}, ROTON
s_mul_i32 {a}, {T}, 2304
s_lshl_b32 {b}, {ROT}, 7
s_add_u32 {a}, {a}, {b}
v_add_u32 v{DX}, {a}, v{DX}
v_mul_u32_u24 v{DD}, 1152, v{DW}
v_mul_u32_u24 v{DW}, 9216, v{DW}
v_bfe_u32 v{t0}, v0, 1, 2
v_and_b32 v{t1}, 1, v2
s_lshl_b32 {a}, {FH}, 1
v_or_b32 v{t1}, {a}, v{t1}
v_xor_b32 v{t1}, v{t1}, v{t0}
v_lshl_add_u32 v{DW}, v{t1}, 5, v{DW}
v_xor_b32 v{t1}, v{t0}, v2
v_lshl_add_u32 v{DD}, v{t1}, 5, v{DD}
v_and_b32 v{t0}, 1, v0
v_lshl_add_u32 v{DW}, v{t0}, 4, v{DW}
v_lshl_add_u32 v{DD}, v{t0}, 4, v{DD}
s_mul_i32 {d}, {C}, 576
s_and_b32 {e}, {C}, 1
s_lshl_b32 {c}, {e}, 6
s_add_u32 {c}, {c}, {d}
v_add_u32 v{DW}, {c}, v{DW}""".replace("ROTON", str(OPT.get('rot', 1))) % (32 * 1152), **e)
    for q in range(4): p += L("s_mov_b32 s%d, %d" % (S_XQ + q, (1024 * (q & 1) + (q >> 1)) * 1152))
    p += L("s_waitcnt lgkmcnt(0)")
    p += srd(8, 52, 2048 * 1152) + srd(12, 60, 576 * 9216) + srd(16, 62, 576 * 9216)
    rest_srd = lambda: (srd(32, 54, 2048 * 578) + srd(36, 56, 2048 * 578) + srd(20, 64, 4608 * 1152) + srd(40, 66, 1152)
                        + srd(28, 70, 256) + srd(24, 72, WS_BYTES))
    G = []
    def grp(kind, nm, need, **kw):
        d = dict(kind=kind, nm=nm, need=need, bar=False, xr=None, rate=2); d.update(kw); G.append(d); return d
    for sg in range(9):
        for tau in range(4):
            mat = 'G' if tau < 2 else 'U'
            g = grp('SB', 16 if tau == 3 else 8, [(mat, 0, 2 * sg), (mat, 0, 2 * sg + 1)], sg=sg, tau=tau, rate=(5 if tau == 3 else 2))
            if tau == 2 or (sg == 0 and tau == 0): g['bar'] = True
            if sg < 8 and tau in (2, 3): g['xr'] = (sg + 1, tau - 2)
    passes = [('G', 1, 3), ('U', 1, 2), ('G', 2, 0), ('U', 2, 1), ('G', 3, 3), ('U', 3, 2)]
    PS = {}
    for pi, (mat, b, st) in enumerate(passes):
        PS[mat + str(b)] = len(G)
        for sl in range(6):
            for ap in range(2):
                g = grp('P1', 12, [(mat, b, 3 * sl + e_) for e_ in range(3)], mat=mat, b=b, st=st, sl=sl, ap=ap, ps=mat + str(b))
                if ap == 0 and (sl % BI == BI - 1): g['bar'] = True
    for mi_, mat in enumerate(('HG', 'HU')):
        PS[mat] = len(G)
        for gi in range(6):
            g = grp('PH', 12, [(mat, (3 * gi + e_) >> 1) for e_ in range(3)], mat=mat, gi=gi, ps=mat, half=mi_)
            if gi % 2 == 0: g['bar'] = True
    P2 = len(G)
    for cb in range(9):
        for gi in range(3):
            g = grp('P2', 24, [('D', cb, 3 * gi + e_) for e_ in range(3)], cb=cb, gi=gi, rate=4)
            g['bar'] = True
    NG = len(G)
    G[-1]['bar'] = False
    G[P2 - 1]['bar'] = True
    def rdg(n): return n - 1 if n > P2 else n - 2
    iv = []; n = 0
    for g in G:
        if g['bar']: n += 1
        iv.append(n)
    def free_iv(gr):
        for k in range(gr, NG):
            if G[k]['bar']: return iv[k]
        return 10 ** 6
    first = {}; fre = {}; order = []
    def use(key, rg_, done_g):
        i = iv[rg_] if rg_ >= 0 else 0
        if key not in first: first[key] = i; order.append(key)
        fre[key] = max(fre.get(key, 0), free_iv(done_g))
    for q in range(4): use(('x', 0, q), -1, 1)
    ev = []
    for gi, g in enumerate(G):
        for k in g['need']: ev.append((rdg(gi), 0, k, gi))
        if g['xr']:
            for q in range(4): ev.append((gi, 1, ('x', g['xr'][0], q), 4 * g['xr'][0] + 1))
    ev.sort(key=lambda x: (x[0], x[1]))
    for r_, _, k, d_ in ev: use(k, r_, d_)
    order.sort(key=lambda k: first[k])
    fixed = {}
    for sg in range(9):
        s = 8 * (sg % 5)
        for e_ in range(2):
            fixed[('G', 0, 2 * sg + e_)] = s + e_; fixed[('U', 0, 2 * sg + e_)] = s + 2 + e_
        for q in range(4): fixed[('x', sg, q)] = s + 4 + q
    gS2 = PS['U3'] + 11
    gSD = P2 + OPT.get('sdat', 18)
    HU = PS['HU']
    res = [(0, 4, PS['G1'] - 1, HU + 3), (4, 1, PS['G1'] - 1, PS['G1']), (16, 2, gS2, gS2 + 1), (4, 4, PS['G2'], HU + 5), (8, 4, PS['G3'], P2), (12, 4, gS2, P2 + 1),
           (16, 2, P2 - 1, P2 + 1), (0, 4, gSD, NG - 2)]
    resv = {pg: [] for pg in range(40)}
    for f, npg, ga, gb in res:
        for pg in range(f, f + npg): resv[pg].append((iv[ga], free_iv(gb + 1)))
    free_at = [-1] * 40; phys = {}; issue_grp = {}; qi = 0
    def ioff(k): return 0 if k[0] in ('HG', 'HU', 'x') else k[1] * 128
    def try_alloc(k, cur):
        for pg in ([fixed[k]] if k in fixed else range(39, -1, -1)):
            if free_at[pg] > cur or (pg == 0 and ioff(k) > 0): continue
            if any(not (fre[k] <= a_ or cur >= b_) for a_, b_ in resv[pg]): continue
            return pg
        return None
    cum = [0]
    for g in G: cum.append(cum[-1] + g['nm'])
    bar_grp = {iv[gi]: gi for gi, g in enumerate(G) if g['bar']}
    bar_grp[0] = 0
    vt = {}; cnt_iv = {}
    for k in order:
        n_ = cnt_iv.get(first[k], 0); cnt_iv[first[k]] = n_ + 1
        vt[k] = cum[bar_grp[first[k]]] + n_ * (5 if k in fixed else 8)
    def LA(k):
        if k in fixed: return OPT.get('la0', 120)
        if k[0] == 'D': return OPT.get('la2', 400)
        return OPT.get('la1', 400)
    NPRO = OPT.get('npro', 16)
    while qi < NPRO:
        k = order[qi]; phys[k] = try_alloc(k, -1); free_at[phys[k]] = fre[k]; issue_grp[k] = -1; qi += 1
    for gi, g in enumerate(G):
        g['dma'] = []
        while qi < len(order) and len(g['dma']) < g['rate']:
            k = order[qi]
            if vt[k] - cum[gi] > LA(k): break
            pg = try_alloc(k, iv[gi])
            if pg is None: break
            assert iv[gi] < first[k], ("late DMA", k, gi)
            phys[k] = pg; free_at[pg] = fre[k]; issue_grp[k] = gi; g['dma'].append(k); qi += 1
    assert qi == len(order), order[qi]
    print("dma per group:", "".join(str(len(g['dma'])) for g in G), file=sys.stderr)
    slk = {}
    for k in order:
        if issue_grp[k] >= 0:
            kk_ = k[:2] if k[0] in 'GUD' else k[:1]
            slk[kk_] = min(slk.get(kk_, 9999), cum[bar_grp[first[k]]] - cum[issue_grp[k] + 1])
    print("min DMA slack (mfmas):", slk, file=sys.stderr)
    def mkdma(k):
        tag = "pg%d" % first[k]; pb = phys[k] * 4096
        if k[0] == 'x':
            pre = []
            if k[2] == 0 and k[1] > 0:
                pre = F("s_cmp_eq_u32 {ROT}, %d\ns_cselect_b32 {SP}, -8, 1\nv_lshl_add_u32 v%d, {SP}, 7, v%d" % (9 - k[1], V_DX, V_DX))
            m_, d_ = dma(V_DX, 'X', S_XQ + k[2], pb, 0, tag)
            return (pre + [m_], d_) if pre else (m_, d_)
        if k[0] == 'G': return dma(V_DW, 'WG', S_KK + k[2], pb, k[1] * 128, tag)
        if k[0] == 'U': return dma(V_DW, 'WU', S_KK + k[2], pb, k[1] * 128, tag)
        if k[0] == 'HG': return dma(V_DH, 'WG', S_KK + 2 * k[1], pb, 0, tag)
        if k[0] == 'HU': return dma(V_DH, 'WU', S_KK + 2 * k[1], pb, 0, tag)
        return dma(V_DD, 'WD', S_DK + k[2], pb, k[1] * 128, tag)
    PFL = OPT.get('pfl', "")
    VPF, VDM, VPX = V_HH, V_ST, V_HW
    def pf(srdn, mask, soff, off, va=VPF, real=False):
        lo, hi = mask & 0xffffffff, mask >> 32
        q = L("s_mov_b32 exec_lo, 0x%x\ns_mov_b32 exec_hi, 0x%x" % (lo, hi))
        for i in q: i.wr = [('s', 'exec')]; i.rd = [('s', 'exec')]
        for sn in srdn:
            i = F("buffer_load_dword v%d, v%d, {%s}, %s offen offset:%d%s" % (VDM, va, sn, soff, off, PFL))[0]
            if not real: i.wr = []
            i.rd.append(('s', 'exec'))
            q.append(i)
        q += L("s_mov_b64 exec, -1")
        return q
    lm = lambda a_, b_: ((1 << b_) - 1) ^ ((1 << a_) - 1)
    assert mp == 1
    def skk(m):
        KS = 32 * 9216
        if m == 0: q = F("s_mul_i32 s%d, {ROT}, %d" % (S_KK, 2 * KS))
        else: q = F("s_add_u32 s%d, s%d, %d\ns_cmp_eq_u32 {ROT}, %d\ns_cselect_b32 s%d, 0, s%d" % (S_KK + 2 * m, S_KK + 2 * m - 2, 2 * KS, 9 - m, S_KK + 2 * m, S_KK + 2 * m))
        return q + L("s_add_u32 s%d, s%d, %d" % (S_KK + 2 * m + 1, S_KK + 2 * m, KS))
    p += skk(0) + skk(1)
    pro = [k for k in order if issue_grp[k] < 0]
    PF0 = OPT.get('pf0', 0)
    NP0 = OPT.get('np0', 0)
    for k in pro[:NP0]: p += flat(mkdma(k))
    pfs = F("""s_and_b32 {a}, {C}, 1
s_lshl_b32 {a}, {a}, 5
s_lshl_b32 {b}, {W}, 3
s_add_u32 {a}, {a}, {b}
v_lshrrev_b32 v{t0}, 3, v0
v_add_u32 v{t0}, {a}, v{t0}
v_mul_u32_u24 v{t0}, %d, v{t0}
v_and_b32 v{t1}, 7, v0
v_lshl_add_u32 v%d, v{t1}, 7, v{t0}
s_bfe_u32 {u}, {C}, 0x10001
s_lshl_b32 {a}, {T}, 1
s_add_u32 {u}, {u}, {a}
s_mul_i32 {u}, {u}, 1152
s_lshr_b32 {a}, {T}, 1
s_add_u32 {a}, {a}, {b}
v_lshl_add_u32 v{t1}, v0, 5, {a}
v_mul_u32_u24 v%d, 9216, v{t1}
s_lshl_b32 {SB}, {e}, 6
s_add_u32 {SB}, {SB}, {d}
s_cmp_eq_u32 {e}, 0
s_cselect_b32 {SA}, 512, 0
s_add_u32 {SA}, {SA}, {d}""" % (32 * 1152, VPX, VPF), **e)
    wi = [i for i, x in enumerate(p) if x.text == "s_waitcnt lgkmcnt(0)"][-1]
    for i in pfs: i.id = p[wi].id - 0.5 + 0.001 * pfs.index(i)
    p[wi:wi] = pfs
    R1S = OPT.get('r1s', 5)
    def R1(): return pf(['X'], 0x0101010101010101 * ((1 << R1S) - 1), ENV['u'], 0, va=VPX) + pf(['WG', 'WU'], lm(0, 2 * R1S), ENV['SB'], 0)
    def R2(): return pf(['X'], 0x0101010101010101 * ((1 << (9 - R1S)) - 1), ENV['u'], 128 * R1S, va=VPX) + pf(['WG', 'WU'], lm(2 * R1S, 18), ENV['SB'], 0)
    if PF0: p += R1()
    for k in pro[NP0:8]: p += flat(mkdma(k))
    p += rest_srd()
    for m in range(2, 9): p += skk(m)
    GT = TMP + 2
    g1, g2f = gate_code(GT)
    p += g1
    p += F("s_cmp_lg_u32 {C}, 0\ns_cbranch_scc1 L_nw_KN") + nyw_load(FB + 8, "nw") + L("L_nw_KN:")
    p += F("""v_lshrrev_b32 v{RW}, 2, v1
v_lshlrev_b32 v{RW}, 7, v{RW}
v_lshl_add_u32 v{RW}, v2, 10, v{RW}
v_and_b32 v{t0}, 3, v1
v_lshl_add_u32 v{RW}, v{t0}, 3, v{RW}
v_bfe_u32 v{t0}, v1, 3, 1
v_and_b32 v{t1}, 1, v2
v_lshl_add_u32 v{t0}, v{t1}, 1, v{t0}
s_lshl_b32 {a}, {FH}, 1
v_xor_b32 v{t0}, {a}, v{t0}
v_lshl_add_u32 v{RW}, v{t0}, 5, v{RW}
v_xor_b32 v{RW1}, 32, v{RW}
v_lshrrev_b32 v{t0}, 1, v1
v_xor_b32 v{t0}, v{t0}, v2
v_lshlrev_b32 v{t0}, 4, v{t0}
v_lshl_add_u32 v{RX}, v1, 7, v{t0}
s_lshl_b32 {a}, {RG}, 13
v_add_u32 v{RX}, {a}, v{RX}
v_xor_b32 v{RX1}, 64, v{RX}""", **e)
    for b in (V_RW, V_RW + 3, V_RX, V_RX + 3):
        p += L("v_add_u32 v%d, 0x10000, v%d\nv_add_u32 v%d, 0x20000, v%d" % (b + 1, b, b + 2, b))
    p += F("""s_mov_b32 {Q}, 0x3e800000
s_mov_b32 {NL}, %s
s_add_u32 {KB1}, {C}, 2
s_add_u32 {KB3}, {C}, 4
s_cmp_lt_u32 {KB3}, 18
s_cselect_b32 {KB3}, {KB3}, 0
s_mul_i32 {GA}, {T}, 12
s_add_u32 {GA}, {GA}, {C}
s_cmp_lt_u32 {C}, 12
s_cselect_b32 {GA}, {GA}, 0x1000
s_add_u32 {GB}, {GA}, 192
s_mul_i32 {a}, {C}, %d
s_mul_i32 {c}, {e}, %d
s_add_u32 s%d, {a}, {c}
s_cmp_eq_u32 {e}, 0
s_cselect_b32 {c}, %d, 0
s_add_u32 s%d, {a}, {c}""" % (f2h(-math.log2(math.e)), 288 * 1152, 32 * 1152, S_DK, 256 * 1152, S_DK + 8), **e)
    for ks in range(1, 8): p += L("s_add_u32 s%d, s%d, %d" % (S_DK + ks, S_DK, ks * 32 * 1152))
    TP = V_SIL
    TF = lambda kk: (SET[3] + 4 * kk) if kk < 8 else FB + 32
    p += t_setup(TP, ENV['C'])
    NTP = OPT.get('ntp', 4)
    for kk in range(NTP): p += t_frag(kk, TF(kk), SET[2] + 16, TP)
    for k in pro[8:]: p += flat(mkdma(k))
    r2 = R2() if PF0 else []
    if OPT.get('r2at', -1) < 0: p += r2
    def late_setup():
        return F("""v_lshrrev_b32 v{DH}, 2, v0
s_lshl_b32 {w}, {W}, 4
v_add_u32 v{DH}, {w}, v{DH}
v_mul_u32_u24 v{DH}, 9216, v{DH}
v_bfe_u32 v{t0}, v0, 1, 1
v_lshrrev_b32 v{t1}, 5, v0
v_xor_b32 v{t0}, v{t0}, v{t1}
v_lshl_add_u32 v{DH}, v{t0}, 5, v{DH}
v_and_b32 v{t0}, 1, v0
v_lshl_add_u32 v{DH}, v{t0}, 4, v{DH}
v_add_u32 v{DH}, {SA}, v{DH}
v_lshlrev_b32 v{L16}, 4, v0
v_add_u32 v{L16B}, 0x10000, v{L16}
s_lshl_b32 {u}, {FH}, 13
s_lshl_b32 {w}, {RG}, 12
s_add_u32 {u}, {u}, {w}
v_add_u32 v{HW}, {u}, v{L16}""", **e)
    def late_setup2():
        return F("""s_lshl_b32 {a}, {FH}, 3
s_lshl_b32 {b}, {RG}, 12
s_add_u32 {a}, {a}, {b}
v_add_u32 v{HH}, {a}, v{L16B}
s_mul_i32 {a}, {T}, %d
s_lshl_b32 {b}, {W}, 16
s_add_u32 {a}, {a}, {b}
s_lshl_b32 {b}, {C}, 10
s_add_u32 {a}, {a}, {b}
v_add_u32 v{VST_}, {a}, v{L16}""" % (9 * 16 * 16384), **e)
    def pf_wd_setup():
        return F("""s_lshr_b32 {a}, {T}, 1
s_mul_i32 {a}, {a}, %d
s_mul_i32 {b}, {C}, %d
s_add_u32 {a}, {a}, {b}
s_mul_i32 {b}, {W}, %d
s_add_u32 {a}, {a}, {b}
v_lshlrev_b32 v%d, 7, v0
v_add_u32 v%d, {a}, v%d""" % (36 * 1152, 288 * 1152, 9 * 1152, VPF, VPF, VPF))
    sec = Sec2()
    FBUF = lambda gi: FB + 12 * (gi % 3)
    def frag_reads(gi):
        g = G[gi]; out = []
        for e_, k in enumerate(g['need']):
            pb = phys[k] * 4096
            if k[0] in 'GU':
                ap = g['tau'] & 1 if g['kind'] == 'SB' else g['ap']
                base, o, d2 = V_RW + 3 * ap, pb, 512
            elif k[0] in ('HG', 'HU'): base, o, d2 = V_RX, pb + ((3 * g['gi'] + e_) & 1) * 2048, 256
            else: base, o, d2 = V_RX + 3, pb, 2048
            r = FBUF(gi) + 4 * e_
            out.append(L("ds_read_b64_tr_b16 v[%d:%d], v%d offset:%d\nds_read_b64_tr_b16 v[%d:%d], v%d offset:%d"
                         % (r, r + 1, base + (o >> 16), o & 0xffff, r + 2, r + 3, base + (o >> 16), (o & 0xffff) + d2), lds_r=(pb, pb + 4096), tag="f%d" % gi))
        return out
    def x_reads(sg, e_):
        kk = 2 * sg + e_; out = []; pb = phys[('x', sg, 0)] * 4096
        for mi in range(4):
            o = pb + mi * 2048
            out += L("ds_read_b128 %s, v%d offset:%d" % (rs(XF(mi, kk)), V_RX + 3 * e_ + (o >> 16), o & 0xffff), lds_r=(pb, pb + 16384), tag="x%d" % sg)
        return [out[0:2], out[2:4]]
    def lin_read(regs, o, tag):
        return L("ds_read_b128 %s, v%d offset:%d" % (rs(regs), V_L16B if o >> 16 else V_L16, o & 0xffff), lds_r=(o, o + 1024), tag=tag)[0]
    def silu_a(regs):
        out = []
        for i in range(0, len(regs), 4):
            T = V_SIL + (i & 4); rr = regs[i:i + 4]
            out += [F("v_mul_f32 v%d, {NL}, v%d" % (T + j, r))[0] for j, r in enumerate(rr)]
            out += [I("v_exp_f32 v%d, v%d" % (T + j, T + j)) for j in range(4)]
            out += [I("v_add_f32 v%d, 1.0, v%d" % (T + j, T + j)) for j in range(4)]
            out += [I("v_rcp_f32 v%d, v%d" % (T + j, T + j)) for j in range(4)]
            out += [I("v_mul_f32 v%d, v%d, v%d" % (r, r, T + j)) for j, r in enumerate(rr)]
        for i in out: i.silu = True
        return out
    def silu_b(sg_, su_, b):
        out = []
        for mi in range(4):
            d = su_ + 4 * mi
            for ap in range(2):
                gq, uq = sg_ + (ap * 4 + mi) * 4, su_ + (ap * 4 + mi) * 4
                out += [I("v_mul_f32 v%d, v%d, v%d" % (gq + r, gq + r, uq + r)) for r in range(4)]
            for ap in range(2):
                gq = sg_ + (ap * 4 + mi) * 4
                out += [I("v_cvt_pk_bf16_f32 v%d, v%d, v%d" % (d + 2 * ap + h, gq + 2 * h, gq + 2 * h + 1)) for h in range(2)]
            out += L("ds_write_b128 v%d, v[%d:%d] offset:%d" % (V_HW, d, d + 3, b * 16384 + mi * 1024), lds_w=(b * 16384, b * 16384 + 16384), tag="lds")
        return out
    def silu_bH(st):
        out = []
        for mi in range(4):
            gq, uq = st + 4 * mi, st + 16 + 4 * mi
            out += [I("v_mul_f32 v%d, v%d, v%d" % (gq + r, gq + r, uq + r)) for r in range(4)]
            out += [I("v_cvt_pk_bf16_f32 v%d, v%d, v%d" % (uq + h, gq + 2 * h, gq + 2 * h + 1)) for h in range(2)]
            out += L("ds_write_b64 v%d, v[%d:%d] offset:%d" % (V_HH, uq, uq + 1, mi * 1024), lds_w=(65536, 65536 + 8192), tag="lds")
        return out
    allr = lambda st, n=32: list(range(st, st + n))
    p += stamp(1) + L("s_barrier", need_vm=("pg0",)) + stamp(2)
    xa, xb = x_reads(0, 0), x_reads(0, 1)
    pre_reads = {0: frag_reads(0), 1: frag_reads(1)}
    for r_ in [xa[0], xb[0]] + pre_reads[0] + [xa[1], xb[1]] + pre_reads[1]: p += r_
    for kk in range(NTP, 9): sec.stream(t_frag(kk, TF(kk), SET[2] + 16, TP), 0, 40 * (kk // 2) + 29, "tf%d" % kk, "tf%d" % (kk - 1))
    sec.stream(late_setup(), 40, 200, "late")
    for i in g2f: Ins.seq += 1; i.id = Ins.seq
    sec.stream(g2f, 40, 278, "gate", "late")
    TWA = lambda a_: (TMP + 2 + 8 * a_) if a_ < 3 else SET[3]
    PACC = [SET[1], SET[2]]
    VP = TMP + 22
    def out_ops(cb):
        acc = PACC[cb & 1]; out = []
        for ip in range(4):
            b = acc + 8 * ip
            out += F("s_mov_b32 {ST}, 0x%x" % (WS_P + cb * 262144 + ip * 16384))
            out += [I("v_cvt_pk_bf16_f32 v%d, v%d, v%d" % (b + d, b + 2 * d, b + 2 * d + 1)) for d in range(4)]
            out += F("buffer_store_dwordx4 v[%d:%d], v%d, {WS}, {ST} offen%s" % (b, b + 3, V_ST, OPT.get('pst', " sc1")))
        return out
    hq = {HU + 1: list(range(0, 8)), HU + 2: list(range(8, 16)), HU + 3: list(range(16, 24)), HU + 4: list(range(24, 32)), HU + 5: list(range(32, 40)),
          P2: list(range(40, 64)), P2 + 1: list(range(64, 72))}
    FBUF2 = FBUF
    extra_need = {}
    gp1 = PS['G3'] + OPT.get('p1at', 5)
    gp2 = P2 + OPT.get('p2at', 13)
    def next_bar(gi):
        while not G[gi]['bar']: gi += 1
        return gi
    gc1 = next_bar(gp1 + 3); gc2 = next_bar(gp2 + 2)
    ga1 = next_bar(PS['G1'] + OPT.get('a1at', 9)); ga2 = next_bar(gS2 + OPT.get('a2at', 7))
    print("groups: arrive1 %d poll1 %d chk1 %d s2 %d arrive2 %d poll2 %d chk2 %d stepD %d  PS %s P2 %d" % (ga1, gp1, gc1, gS2, ga2, gp2, gc2, gSD, PS, P2), file=sys.stderr)
    S2D = [SET[0], SET[0] + 8]; S2W = [TMP, TMP + 8]
    KBX = "s_lshr_b32 {x}, {g}, 5\ns_cmp_eq_u32 {x}, 9\ns_cselect_b32 {x}, 0, {x}\ns_lshl_b32 {x}, {x}, 2\ns_add_u32 {x}, {x}, {o}\ns_cmp_gt_u32 {g}, 288\ns_cselect_b32 {x}, 0x1000, {x}\n"
    kbx = lambda x, g, o: KBX.replace("{x}", "{%s}" % x).replace("{g}", "{%s}" % g).replace("{o}", str(o))
    SD = {}
    for gi, g in enumerate(G):
        base = sec.n(); fb = FBUF(gi) if gi <= P2 else FB + 12 * ((gi - P2 + (P2 % 3)) & 1 if (P2 % 3) < 2 else (gi - P2 + 1) & 1)
        if gi > P2: FBUF = lambda n_: FB + 12 * ((n_ - P2 + (P2 % 3)) & 1 if (P2 % 3) < 2 else (n_ - P2 + 1) & 1)
        ms = []
        if g['kind'] == 'SB':
            st = SET[0] if g['tau'] < 2 else SET[1]
            for mi in range(4):
                for e_ in range(2):
                    acc = V(st + ((g['tau'] & 1) * 4 + mi) * 4, 4); kk = 2 * g['sg'] + e_
                    ms.append(mf(acc, V(fb + 4 * e_, 4), XF(mi, kk), acc if kk else None))
            if g['tau'] == 3:
                for mi in range(4):
                    for e_ in range(2):
                        kk = 2 * g['sg'] + e_
                        acc = V(SET[2] + 16 * (kk // 9) + 4 * mi, 4)
                        ms.append(mf(acc, XF(mi, kk), V(TF(kk % 9), 4), acc if kk % 9 else None))
        elif g['kind'] == 'P1':
            for mi in range(4):
                for e_ in range(3):
                    acc = V(SET[g['st']] + (g['ap'] * 4 + mi) * 4, 4); kk = 3 * g['sl'] + e_
                    ms.append(mf(acc, V(fb + 4 * e_, 4), XF(mi, kk), acc if kk else None))
        elif g['kind'] == 'PH':
            for mi in range(4):
                for e_ in range(3):
                    acc = V(SET[0] + (g['half'] * 4 + mi) * 4, 4); kk = 3 * g['gi'] + e_
                    ms.append(mf(acc, V(fb + 4 * e_, 4), XF(mi, kk), acc if kk else None))
        else:
            for mi in range(8):
                for e_ in range(3):
                    acc = V(PACC[g['cb'] & 1] + 4 * mi, 4)
                    ms.append(mf(acc, V(fb + 4 * e_, 4), HF(mi, 3 * g['gi'] + e_), acc if (g['gi'] or e_) else None))
        lg = ["f%d" % gi]; vm = []
        if g['kind'] == 'SB' and g['tau'] == 0: lg.append("x%d" % g['sg'])
        if g['kind'] == 'P2' and g['cb'] == 0: lg.append("h%d" % g['gi'])
        if g['bar']:
            vm.append("pg%d" % iv[gi]); lg.append("lds")
            if gi == ga1: vm.append("pub1")
            if gi == ga2: vm.append("pub2")
        if gi in (gc1, gc2): sec.block(base - 1, poll_check("pc%d" % (1 if gi == gc1 else 2), VP, 28 if gi == gc1 else 29))
        if gi:
            if sec.blk.get(base - 1): sec.block(base - 1, [Need(vm, lg)])
            else: sec.at(base - 1, Need(vm, lg))
        for m_ in ms: sec.mfma(m_)
        nm = g['nm']; end = sec.n()
        sidx = None
        if g['kind'] in ('P1', 'PH') and PS[g['ps']] == gi: sidx = 3 + list(PS).index(g['ps'])
        if g['kind'] == 'P2' and g['gi'] == 0: sidx = 11 + g['cb']
        gap = 0
        if g['bar']:
            sec.at(base, L("s_barrier", need_vm=tuple(vm), need_lgkm=tuple(lg))); gap = 1
        if OPT.get('diag') == 6:
            sidx = None
            if g['kind'] == 'SB' and g['tau'] == 0: sidx = 3 + g['sg']
            if gi == PS['G1']: sidx = 13
            if gi == PS['G1'] - 1: sec.block(end - 1, stamp(12))
        if OPT.get('diag') == 7:
            sidx = None
            g0 = PS['G1']
            if g0 <= gi < g0 + 68 and (gi - g0) % 4 == 0: sidx = 3 + (gi - g0) // 4
        if sidx is not None and OPT['stamps']: sec.block(base, stamp(sidx))
        pairs = []
        for n_ in range(gi + 1, min(NG, gi + 3)):
            if rdg(n_) == gi:
                if n_ > P2: FBUF = lambda q_: FB + 12 * ((q_ - P2 + (P2 % 3)) & 1 if (P2 % 3) < 2 else (q_ - P2 + 1) & 1)
                pairs += frag_reads(n_)
                if n_ > P2 and gi <= P2: FBUF = FBUF2
        if g['xr']: pairs += x_reads(*g['xr'])
        hr = [lin_read(HF(n_ & 7, n_ >> 3), (n_ >> 3) * 8192 + (n_ & 7) * 1024, "h%d" % (n_ // 24)) for n_ in hq.get(gi, [])]
        hp = [hr[i:i + 2] for i in range(0, len(hr), 2)]
        pairs = hp + pairs if gi == P2 + 1 else pairs + hp
        avail = list(range(gap, nm - 1))
        items = []
        dm = [mkdma(k) for k in g['dma']]
        ip_, id_ = 0, 0
        early = g['kind'] == 'P2'
        while ip_ < len(pairs) or id_ < len(dm):
            if ip_ < len(pairs): items.append(('r', pairs[ip_])); ip_ += 1
            elif not items or items[-1][0] == 'd': items.append(('z', None))
            if id_ < len(dm) and (not early or ip_ >= min(len(pairs), 3)): items.append(('d', dm[id_])); id_ += 1
        assert len(items) <= len(avail), (gi, len(items), len(avail))
        pos = 0; slack = len(avail) - len(items); nd_left = len(dm)
        for kind, it in items:
            if kind == 'r': sec.at(base + avail[pos], it)
            if kind == 'd':
                if isinstance(it[0], list): sec.block(base + avail[pos] - 1, it[0])
                else: sec.at(base + avail[pos] - 1, it[0])
                sec.at(base + avail[pos], it[1])
                sk = slack // max(1, nd_left); pos += sk; slack -= sk; nd_left -= 1
            pos += 1
        if gi == 19: sec.block(end - 1, F("s_cmp_lg_u32 {C}, 0\ns_cbranch_scc1 L_nw2_KN") + nyw_store(FB + 8, "nw2") + L("L_nw2_KN:"))
        if PF0 and gi == OPT.get('r2at', -1): sec.block(base + 1, r2)
        if gi == OPT.get('pf1', -1): sec.block(base + 1, pf(['WG', 'WU'], lm(0, 18), ENV['SB'], 128))
        if OPT.get('pfd', 1):
            for it in range(3):
                if gi == PS['G1'] + OPT.get('pfd0', 6) + it * OPT.get('pfdi', 12):
                    sec.block(base + 1, (pf_wd_setup() if it == 0 else []) + pf(['WD'], lm(0, 27), "0", 0, real=(it == 2))
                              + L("v_add_u32 v%d, %d, v%d" % (VPF, 27 * 128, VPF)))
        if g['kind'] == 'SB' and g['sg'] == 6 and g['tau'] == 3:
            sec.stream(twiddle_A(TWA, SET[3] + 8), end, end + 78, "twA")
        if gi == PS['G1'] - 1:
            blk = diag(1, 21) + step_A(SET[2], TWA, SET[3] + 8, TP, ENV['C'], 0) + (stamp(22) if OPT.get('diag') == 1 else []) + diag(1, 23)
            blk += F("s_cmp_lt_u32 {KB1}, 16\ns_cbranch_scc1 L_x1_KN")
            o = "x1"; s1 = Sec2(); XS = SET[3] + 8; XFr = SET[3] + 24
            s1.pre = t_setup(TP, ENV['KB1'], opt=o) + t_frag(0, XFr, XS, TP, opt=o)
            for kk in range(9):
                if kk < 8: nxt = None
                b0 = s1.n()
                for hh in range(2):
                    for mi in range(4):
                        acc = V(SET[2] + 16 * hh + 4 * mi, 4)
                        s1.mfma(mf(acc, XF(mi, kk + 9 * hh), V(XFr + 4 * (kk & 1), 4), acc if kk else None, o))
                if kk < 8: s1.stream(t_frag(kk + 1, XFr + 4 * ((kk + 1) & 1), XS, TP, opt=o), b0, b0 + 6)
            blk += s1.flatten() + step_A(SET[2], TWA, SET[3] + 8, TP, ENV['KB1'], 8704, opt=o) + L("L_x1_KN:")
            sec.block(end - 1, blk)
            sw = F("""v_lshrrev_b32 v{RX}, 2, v1
v_lshl_add_u32 v{RX}, v2, 3, v{RX}
v_lshlrev_b32 v{RX}, 6, v{RX}
v_and_b32 v{t0}, 3, v1
v_lshl_add_u32 v{RX}, v{t0}, 3, v{RX}
v_and_b32 v{t1}, 1, v2
v_xor_b32 v{t1}, {FH}, v{t1}
v_lshl_add_u32 v{RX}, v{t1}, 5, v{RX}
v_lshrrev_b32 v{RX1}, 2, v1
v_lshl_add_u32 v{RX1}, v2, 2, v{RX1}
v_bfe_u32 v{t1}, v{RX1}, 1, 2
v_xor_b32 v{t1}, {W}, v{t1}
v_lshlrev_b32 v{RX1}, 7, v{RX1}
v_lshl_add_u32 v{RX1}, v{t1}, 5, v{RX1}
v_lshl_add_u32 v{RX1}, v{t0}, 3, v{RX1}""", **e)
            for b in (V_RX, V_RX + 3): sw += L("v_add_u32 v%d, 0x10000, v%d\nv_add_u32 v%d, 0x20000, v%d" % (b + 1, b, b + 2, b))
            sec.stream(sw, end - 36, end - 2, "sw")
            sec.stream(silu_a(allr(SET[0])), end, end + 200, "a0")
            sec.stream(silu_b(SET[0], SET[1], 0), end + 145, end + 286, "b0", "a0")
        if g['kind'] == 'P1' and g['sl'] == 5 and g['ap'] == 1:
            ps = g['ps']
            if ps == 'G1': sec.stream(silu_a(allr(SET[3])), end + 2, end + 380, "a1", "a0")
            if ps == 'U1': sec.stream(silu_b(SET[3], SET[2], 1), end + 2, end + 286, "b1", "a1")
            if ps == 'G2': sec.stream(silu_a(allr(SET[0])), end + 2, end + 143 + 12 * (gc1 - PS['G3']) - 30, "a2", "a1")
            if ps == 'U2':
                sec.stream(silu_b(SET[0], SET[1], 2), end + 2, end + 12 * (gc1 - PS['G3']), "b2", "a2")
            if ps == 'G3':
                sec.stream(silu_a(allr(SET[3])), end + 2, end + 143 + 40, "a3", "a2")
            if ps == 'U3': sec.stream(silu_b(SET[3], SET[2], 3), end + 2, end + 72 + 50, "b3", "a3")
        if g['kind'] == 'PH' and g['gi'] == 5:
            if g['half'] == 0: sec.stream(silu_a(allr(SET[0], 16)), end + 2, end + 72 + 10, "aH", "a3")
            else: sec.stream(silu_bH(SET[0]), end + 2, end + 22, "bH", "aH")
        if gi == ga1:
            sec.block(base, diag(5, 21))
            sec.block(base + 1, diag(5, 22))
            sec.block(base, arrive("ar1", "s_lshr_b32 {a}, {C}, 1\ns_lshl_b32 {a}, {a}, 2\ns_cmp_lt_u32 {KB1}, 16\ns_cselect_b32 {b}, 0x1000, 32\ns_mov_b32 {c}, 0x1000", VP))
        if gi == ga2:
            sec.block(base, diag(5, 23))
            sec.block(base + 1, diag(5, 24))
            sec.block(base, arrive("ar2", kbx('a', 'GA', 128) + kbx('b', 'GB', 128) + "s_mov_b32 {c}, 0x1000", VP))
        if gi == gp1:
            sec.block(base + 1, poll_issue("pi1", kbx('a', 'GA', 0) + kbx('b', 'GB', 0) + "s_mov_b32 {c}, 0x1000",
                      "s_cmp_gt_u32 {GA}, 288\ns_cselect_b32 {a}, 0, 32\ns_cmp_gt_u32 {GB}, 288\ns_cselect_b32 {b}, 0, 32\ns_mov_b32 {c}, 0", VP))
        if gi == gp2:
            sec.block(base + 1, poll_issue("pi2", "s_lshr_b32 {a}, {C}, 1\ns_lshl_b32 {a}, {a}, 2\ns_add_u32 {a}, {a}, 128\ns_movk_i32 {b}, 160\ns_mov_b32 {c}, 0x1000",
                      "s_cmp_lt_u32 {C}, 2\ns_cselect_b32 {a}, 33, 32\ns_cmp_lt_u32 {KB3}, 16\ns_cselect_b32 {b}, 0, 32\ns_mov_b32 {c}, 0", VP))
        for r_, gam in enumerate(('GA', 'GB')):
            if gi == PS['G2'] + OPT.get('w%dat' % r_, 1 + 12 * r_):
                o = "s2w%d" % r_
                sec.block(base + 1, F("s_cmp_ge_u32 {%s}, 288\ns_cbranch_scc1 L_%s_KN" % (gam, o)) + s2_wloads(ENV[gam], S2W[r_], TMP + 16, o, False) + L("L_%s_KN:" % o))
        if gi == gc1:
            blk = []
            for r_, (gam, keep) in enumerate((('GA', 'SA'), ('GB', 'SB'))):
                o = "s2l%d" % r_
                blk += F("s_cmp_gt_u32 {%s}, 288\ns_cbranch_scc1 L_%s_KN" % (gam, o)) + s2_dloads(ENV[gam], ENV[keep], S2D[r_], TMP + 16, o) + L("L_%s_KN:" % o)
            blk += F("s_cmp_lg_u32 {GB}, 288\ns_cbranch_scc1 L_s2n_KN") + s2_wloads(ENV['GB'], S2W[1], TMP + 16, "s2n", True) + L("L_s2n_KN:")
            if OPT.get('diag') == 3: blk = stamp(21) + blk + stamp(22) + diag(3, 23)
            sec.block(base + 1, blk)
            M = SET[1]; Z = SET[0] + 16; S2T = SET[1] + 24
            pre = dft32(M, Z, False) + s2_addr(S2T, 12 * 4096, False)
            for i in pre:
                i.text = i.text.replace(ENV['a'], ENV['u']).replace(ENV['b'], ENV['w'])
                fx = lambda lst: [('s', 6) if r == ('s', 84) else ('s', 7) if r == ('s', 85) else r for r in lst]
                i.rd = fx(i.rd); i.wr = fx(i.wr)
            sec.stream(pre, base + 2, base + 12 * (gS2 - gi) + 10, "s2pre")
        if gi == gS2:
            blk = diag(3, 24)
            for r_, (gam, keep) in enumerate((('GA', 'SA'), ('GB', 'SB'))):
                o = "s2c%d" % r_
                blk += F("s_cmp_gt_u32 {%s}, 288\ns_cbranch_scc1 L_%s_KN" % (gam, o))
                blk += s2_compute(ENV[keep], M, S2D[r_], Z, S2W[r_], S2T, TMP + 16, 12 * 4096, o) + L("L_%s_KN:" % o)
                if OPT.get('diag') == 3 and r_ == 0: blk += stamp(25)
            sec.block(end - 1, blk + (stamp(26) if OPT.get('diag') == 3 else []) + diag(3, 27) + late_setup2())
        if gi == P2 + 3: sec.stream(twiddle_D(SET[3], SET[3] + 16), base, base + 200, "twD")
        if gi == gc2:
            blk = stepD_loads(ENV['C'], SET[0])
            blk += F("s_cmp_lg_u32 {C}, 0\ns_cbranch_scc1 L_nyl_KN") + stepD_nyloads(SET[0] + 16, VP, "nyl") + L("L_nyl_KN:")
            blk += F("s_cmp_lt_u32 {KB3}, 16\ns_cbranch_scc1 L_d2l_KN") + stepD_loads(ENV['KB3'], SET[0] + 16, opt="d2l") + L("L_d2l_KN:")
            sec.block(base + 1, blk)
        if gi == gSD:
            SD['p'] = stepD_parts(SET[0], SET[0] + 16, TMP, SET[3], SET[3] + 16, TMP + 8, 0, ENV['C'], ENV['SA'])
            sec.stream(SD['p'][0], base + 1, base + 30, "sd0")
            sec.stream(SD['p'][1], base + 36, base + 45, "sd1", "sd0")
        if gi == gSD + 1:
            for m_ in SD['p'][2]: sec.mfma(m_)
            sec.block(sec.n() - 1, SD['p'][3])
            for m_ in SD['p'][4]: sec.mfma(m_)
            sec.stream(SD['p'][5], sec.n() + 2, sec.n() + 44, "sd5")
        if gi == gSD + 3:
            blk = F("s_cmp_lt_u32 {KB3}, 16\ns_cbranch_scc1 L_d2_KN")
            for part in stepD_parts(SET[0] + 16, None, TMP, SET[3], SET[3] + 16, TMP + 8, 0, ENV['KB3'], ENV['SA'], opt="d2"): blk += part
            sec.block(end - 1, blk + L("L_d2_KN:"))
        if g['kind'] == 'P2' and g['gi'] == 2 and g['cb'] < 8:
            sec.stream(out_ops(g['cb']), sec.n() + 2, sec.n() + 60)
    p += sec.flatten(verbose=True)
    p += out_ops(8) + stamp(20) + stamp_out(2)
    emit(a, name, p, 512, accum=256)

def kernel_reduce(a):
    name = "reduce_kernel"
    VST[0] = 60
    a.launch(name, 256, 576, 36864)
    p = L("s_cmp_ge_u32 s2, 256\ns_cbranch_scc1 L_end_KN")
    if OPT['stamps']: p += L("v_mov_b32 v%d, 0" % VST[0])
    p += stamp(0)
    p += L("s_load_dwordx2 s[68:69], s[0:1], 64\ns_load_dwordx2 s[72:73], s[0:1], 80")
    p += F("""v_lshrrev_b32 v1, 6, v0
v_and_b32 v0, 63, v0
v_readfirstlane_b32 {W}, v1
v_lshlrev_b32 v3, 4, v0
v_and_b32 v1, 15, v0
v_lshrrev_b32 v2, 4, v0
s_and_b32 {T}, s2, 7
s_lshl_b32 {T}, {T}, 1
s_bfe_u32 {a}, s2, 0x10003
s_add_u32 {T}, {T}, {a}
s_lshr_b32 {C}, s2, 4
s_mul_i32 {b}, {T}, 9
s_add_u32 {b}, {b}, {W}
s_lshl_b32 {b}, {b}, 4
s_add_u32 {b}, {b}, {C}
s_lshl_b32 {b}, {b}, 14
s_add_u32 {b}, {b}, %d
s_and_b32 {FH}, {C}, 3
s_mul_i32 {c}, {T}, 18
s_lshl_b32 {d}, {W}, 1
s_add_u32 {c}, {c}, {d}
s_lshl_b32 {c}, {c}, 13
s_lshl_b32 {d}, {FH}, 11
s_add_u32 {c}, {c}, {d}
s_add_u32 {c}, {c}, %d
s_add_u32 {d}, {c}, %d
s_lshl_b32 m0, {W}, 12
s_waitcnt lgkmcnt(0)""" % (WS_P, WS_Y, 8192 - 2048))
    p += srd(24, 72, WS_BYTES)
    for i in range(4):
        p += F("buffer_load_dwordx4 v3, {WS}, {%s} offen offset:%d lds" % ("c" if i < 2 else "d", i * 1024), tag="y", lds_w=(0, 36864))
    p += F("""s_lshl_b32 {c}, {T}, 9
s_lshl_b32 {d}, {FH}, 7
s_add_u32 {c}, {c}, {d}
s_add_u32 {c}, {c}, %d
s_add_u32 {d}, {c}, %d
v_lshlrev_b32 v4, 2, v1
buffer_load_dword v6, v4, {WS}, {c} offen
buffer_load_dword v7, v4, {WS}, {c} offen offset:64
buffer_load_dword v8, v4, {WS}, {d} offen
buffer_load_dword v9, v4, {WS}, {d} offen offset:64""" % (WS_G, WS_O - WS_G))
    PB = 64
    def pload(i):
        q = F("s_add_u32 {b}, {b}, 4096") if (i % 4 == 0 and i) else []
        return q + F("buffer_load_dwordx4 v[%d:%d], v3, {WS}, {b} offen offset:%d%s" % (PB + 4 * i, PB + 3 + 4 * i, (i % 4) * 1024, OPT.get('rfl', "")))
    NPRE = OPT.get('npre', 2)
    for i in range(NPRE): p += pload(i)
    p += srd(44, 68, 2048 * 1152)
    ST, FR, YF, AC, SM, SEL = 12, 28, 36, 52, 36, 28
    p += F("""s_lshl_b32 {c}, {W}, 6
s_lshr_b32 {d}, {C}, 2
s_lshl_b32 {d}, {d}, 4
s_add_u32 {c}, {c}, {d}
v_add_u32 v5, {c}, v1
v_and_b32 v11, 1, v5
v_cvt_f32_u32 v5, v5
v_mul_f32 v10, %s, v5
v_mul_f32 v5, %s, v5
v_cos_f32 v10, v10
v_lshlrev_b32 v4, 2, v2
v_cvt_f32_u32 v4, v4
v_add_f32 v10, v10, v10
v_lshlrev_b32 v11, 31, v11
v_or_b32 v11, 0.5, v11
v_cmp_eq_u32 vcc, 0, v2
s_mov_b32 {Q}, 0x3e800000
s_lshl_b32 {c}, {c}, 1
s_and_b32 {e}, {FH}, 1
s_lshl_b32 {e}, {e}, 10
s_lshr_b32 {d}, {FH}, 1
s_add_u32 {e}, {e}, {d}
s_lshl_b32 {d}, {T}, 1
s_add_u32 {e}, {e}, {d}
s_mul_i32 {e}, {e}, 1152
s_add_u32 {c}, {c}, {e}""" % (f2h(1.0 / 36), f2h(1.0 / 576)))
    def frag(kb):
        cur = ST + 8 * (kb & 1); prv = ST + 8 * ((kb + 1) & 1); f = FR + 4 * (kb & 1); q = []
        if kb < 2:
            for j in range(4): q += L("v_add_f32 v%d, %s, v4" % (cur + j, f2h(16.0 * kb + j)))
            for j in range(4): q += F("v_fma_f32 v%d, v%d, v5, {Q}\nv_mul_f32 v%d, v%d, v5" % (cur + 4 + j, cur + j, cur + j, cur + j))
            for j in range(8): q += L("v_cos_f32 v%d, v%d" % (cur + j, cur + j))
        else:
            for j in range(8): q += L("v_fma_f32 v%d, v10, v%d, -v%d" % (cur + j, prv + j, cur + j))
        if kb == 0:
            q += L("v_cndmask_b32 v%d, v%d, 0.5, vcc\nv_cndmask_b32 v%d, v%d, v11, vcc" % (f, cur, f + 2, cur + 4))
            q += L("v_cvt_pk_bf16_f32 v%d, v%d, v%d\nv_cvt_pk_bf16_f32 v%d, v%d, v%d" % (f, f, cur + 1, f + 2, f + 2, cur + 5))
            q += L("v_cvt_pk_bf16_f32 v%d, v%d, v%d\nv_cvt_pk_bf16_f32 v%d, v%d, v%d" % (f + 1, cur + 2, cur + 3, f + 3, cur + 6, cur + 7))
        else:
            for jp in range(4): q += L("v_cvt_pk_bf16_f32 v%d, v%d, v%d" % (f + jp, cur + 2 * jp, cur + 2 * jp + 1))
        return q
    def yrd(kb):
        r = YF + 8 * (kb & 1)
        return L("ds_read_b128 v[%d:%d], v3 offset:%d\nds_read_b128 v[%d:%d], v3 offset:%d" % (r, r + 3, kb * 2048, r + 4, r + 7, kb * 2048 + 1024), lds_r=(0, 36864))
    p += frag(0) + frag(1)
    p += stamp(1) + L("s_barrier", need_vm=("y",)) + stamp(2)
    p += yrd(0)
    for kb in range(18):
        if kb + 1 < 18: p += yrd(kb + 1)
        for h in range(2):
            acc = V(AC + 4 * h, 4)
            p.append(mf(acc, V(FR + 4 * (kb & 1), 4), V(YF + 8 * (kb & 1) + 4 * h, 4), acc if kb else None))
        if NPRE + kb < 16: p += pload(NPRE + kb)
        if kb + 2 < 18: p += frag(kb + 2)
    p += F("v_and_b32 v4, 31, v0\nv_mul_u32_u24 v4, %d, v4\nv_lshrrev_b32 v5, 5, v0\nv_lshl_add_u32 v4, v5, 4, v4" % (32 * 1152))
    sc_ = f2h(2.0 / (2048 * 576))
    p += stamp(3)
    p += L("v_mul_f32 v6, %s, v6\nv_mul_f32 v7, %s, v7" % (sc_, sc_))
    p += L("""v_lshrrev_b32 v12, 2, v1
v_cmp_eq_u32 vcc, v12, v2
v_and_b32 v13, 1, v1
v_lshlrev_b32 v13, 4, v13
v_mov_b32 v14, 0x3f80
v_lshlrev_b32 v13, v13, v14
v_cndmask_b32 v13, 0, v13, vcc
v_and_b32 v12, 2, v1
v_cmp_eq_u32 vcc, 0, v12
v_mov_b32 v%d, 0
v_mov_b32 v%d, 0
v_mov_b32 v%d, 0
v_mov_b32 v%d, 0
v_cndmask_b32 v%d, 0, v13, vcc
v_cndmask_b32 v%d, v13, 0, vcc""" % (SEL, SEL + 1, SEL + 4, SEL + 5, SEL + 2, SEL + 3))
    for r in range(8): p += L("v_mul_f32 v%d, v%d, v%d" % (AC + r, AC + r, 6 + (r >> 2)))
    for i in range(16):
        for h in range(2):
            acc = V(SM + 4 * h, 4)
            p.append(mf(acc, V(SEL + 2 - 2 * h, 4), V(PB + 4 * i, 4), acc if i else None))
    for r in range(8): p += L("v_fma_f32 v%d, v%d, v%d, v%d" % (SM + r, SM + r, 8 + (r >> 2), AC + r))
    for d in range(4): p += L("v_cvt_pk_bf16_f32 v%d, v%d, v%d" % (16 + d, SM + 2 * d, SM + 1 + 2 * d))
    p += L("v_permlane16_swap_b32 v16, v18\nv_permlane16_swap_b32 v17, v19")
    p += stamp(4)
    p += F("buffer_store_dwordx4 v[16:19], v4, {OUT}, {c} offen%s" % OPT.get('ofl', ""))
    if OPT.get('dbg') is not None:
        p += L("s_waitcnt vmcnt(0)") + stamp(31)
        p += F("s_or_b32 {a}, s2, {W}\ns_cmp_lg_u32 {a}, 0\ns_cbranch_scc1 L_end_KN\ns_load_dwordx2 s[70:71], s[0:1], 72\ns_waitcnt lgkmcnt(0)")
        p += srd(28, 70, 256)
        p += F("v_lshlrev_b32 v0, 2, v0\ns_mov_b32 {a}, 0x%x\nbuffer_load_dword v5, v0, {WS}, {a} offen\ns_waitcnt vmcnt(0)" % (STAMP_OFF + 2 * 262144 + OPT['dbg'] * 256 + OPT.get('dbgo', 0) * 4))
        p += F("v_readlane_b32 {a}, v60, 0\nv_readlane_b32 {b}, v60, 31\nv_readlane_b32 {c}, v5, 31\nv_readlane_b32 {d}, v5, 20\ns_nop 4\nv_writelane_b32 v5, {a}, 14\nv_writelane_b32 v5, {b}, 15\nv_writelane_b32 v5, {c}, 13\nv_writelane_b32 v5, {d}, 12")
        p += F("buffer_store_dword v5, v0, {DBG}, 0 offen")
    else:
        p += stamp_out(3)
    emit(a, name, p, 128)

if __name__ == "__main__":
    for x in sys.argv[2:]:
        k, v = x.split("=")
        OPT[k] = int(v) if v.lstrip("-").isdigit() else v.replace("_", " ")
    a = Asm()
    kernel_main(a); kernel_reduce(a)
    open(sys.argv[1], "w").write(a.text())
```

```python
import sys, math, struct
from asmlib import *
from fw import *

WS_A = 0x000000
WS_B = 0x300000
WS_Y = 0x3000000
WS_G = 0x600000
WS_O = 0x602000
WS_P = 0x800000
WS_N = 0x610000
KB_STRIDE = 131072
MF = "v_mfma_f32_16x16x32_bf16"
def f2h(x): return "0x%08x" % struct.unpack("<I", struct.pack("<f", x))[0]
def mf(d, a, b, c, opt=False):
    return I("%s %s, %s, %s, %s" % (MF, rs(d), rs(a), rs(b), rs(c) if c else "0"), opt=opt)
def F(text, opt=False, tag=None, **env):
    e = dict(ENV); e.update(env)
    kw = {}
    for k in ("lds_r", "lds_w", "priv", "need_vm", "need_lgkm"):
        if k in env: kw[k] = env[k]
    return L(text.format(**e), opt=opt, tag=tag, **kw)

ENV = dict(X="s[8:11]", WG="s[12:15]", WU="s[16:19]", WD="s[20:23]", WS="s[24:27]", DBG="s[28:31]", WR="s[32:35]", WI="s[36:39]", GW="s[40:43]", OUT="s[44:47]",
           T="s79", C="s80", W="s81", W1K="s82", KB="s83", RG="s87", FH="s88", S2="s89", a="s84", b="s85", c="s86", d="s92", e="s93",
           Q="s94", KB3="s95", NL="s96", KB1="s97", GA="s98", GB="s99", SA="s100", SB="s101", ST="s90", SP="s91", u="s6", w="s7", ROT="s3")
S_KK, S_DK, S_XQ = 48, 66, 75
OPT = dict(stamps=False, BI=2, sc1p=True)
VST = [223]
def stamp(idx):
    if not OPT['stamps']: return []
    return L("s_memrealtime s[4:5]\ns_waitcnt lgkmcnt(0)\nv_writelane_b32 v%d, s4, %d\ns_memtime s[4:5]\ns_waitcnt lgkmcnt(0)\nv_writelane_b32 v%d, s4, %d" % (VST[0], idx, VST[0], 32 + idx))
def diag(n, idx):
    if OPT.get('diag', 0) != n: return []
    return L("s_waitcnt vmcnt(0)") + stamp(idx)
def stamp_out(kidx):
    if not OPT['stamps']: return []
    p = L("s_waitcnt vmcnt(0)") + stamp(31)
    p += F("s_cmp_lg_u32 {W}, 0\ns_cbranch_scc1 L_end_KN\ns_lshl_b32 s4, s2, 8\ns_add_u32 s4, s4, 0x%x\nv_lshlrev_b32 v0, 2, v0" % (STAMP_OFF + kidx * 262144))
    p += F("buffer_store_dword v%d, v0, {WS}, s4 offen" % VST[0])
    return p
def srd(d, b, n):
    return L("s_mov_b32 s%d, s%d\ns_and_b32 s%d, s%d, 0xffff\ns_mov_b32 s%d, 0x%x\ns_mov_b32 s%d, 0x20000" % (d, b, d + 1, b + 1, d + 2, n, d + 3))
def emit(a, name, prog, vg, accum=None):
    p = finish(prog)
    dr = OPT.get('drop', "")
    if 'd' in dr: p = [i for i in p if i.kind != 'dma']
    if 'b' in dr: p = [i for i in p if i.kind != 'bar']
    if 't' in dr: p = [i for i in p if not (i.kind == 'ds' and i.tag and i.tag.startswith('f'))]
    if 'v' in dr: p = [i for i in p if not getattr(i, 'silu', False)]
    if 's' in dr: p = [i for i in p if not (i.kind == 'vmem' and 's90' in i.text)]
    a.begin(name)
    for i in p: a(i.text.replace("KN", name))
    a("L_end_%s:\ns_endpgm" % name)
    a.end(name, vg, accum=accum)
    print(name, stats(p), file=sys.stderr)

def flat(t):
    o = []
    for x in t: o += x if isinstance(x, list) else [x]
    return o
def XF(mi, kk):
    n = kk * 4 + mi
    return A(4 * n, 4) if n < 64 else V(224 + 4 * (n - 64), 4)
def HF(mi, ks):
    n = ks * 8 + mi
    return XF(n & 3, n >> 2)
SET = [32, 64, 96, 128]
FB = 160
TMP = 196
V_DX, V_DW, V_DH, V_DD, V_RW, V_RX = 3, 4, 5, 6, 7, 13
V_HW, V_HH, V_L16, V_L16B, V_ST, V_SIL = 19, 20, 21, 22, 23, 24

def dma(vo, srdn, soff, pb, ioff, tag):
    assert pb - ioff >= 0
    m = F("s_add_u32 m0, {W1K}, %d" % (pb - ioff))[0]
    d = F("buffer_load_dwordx4 v%d, {%s}, s%d offen%s%s lds" % (vo, srdn, soff, (" offset:%d" % ioff) if ioff else "", OPT.get('xfl', "") if srdn == 'X' else OPT.get('wfl', "")), tag=tag, lds_w=(pb, pb + 4096))[0]
    return m, d

def gate_code(T):
    e = dict(va=T + 9, vo=T + 19, t0=T + 20, t1=T + 21, t2=T + 22, t3=T + 23)
    p = F("""v_lshrrev_b32 v{vo}, 5, v0
s_lshl_b32 {a}, {C}, 3
s_lshl_b32 {b}, {W}, 1
s_add_u32 {a}, {a}, {b}
v_add_u32 v{vo}, {a}, v{vo}
v_and_b32 v{t0}, 63, v{vo}
v_lshlrev_b32 v{t0}, 5, v{t0}
v_lshrrev_b32 v{t1}, 6, v{vo}
v_add_u32 v{t0}, v{t0}, v{t1}
s_lshl_b32 {a}, {T}, 1
v_add_u32 v{t0}, {a}, v{t0}
v_mul_u32_u24 v{t0}, 1152, v{t0}
v_and_b32 v{t1}, 31, v0
v_mul_u32_u24 v{t1}, 36, v{t1}
v_add_u32 v{t0}, v{t0}, v{t1}""", **e)
    for b_, ad, sr in ((T, "t0", "X"), (T + 10, "t1", "GW")):
        p += F("buffer_load_dwordx4 v[%d:%d], v{%s}, {%s}, 0 offen\nbuffer_load_dwordx4 v[%d:%d], v{%s}, {%s}, 0 offen offset:16\nbuffer_load_dword v%d, v{%s}, {%s}, 0 offen offset:32"
               % (b_, b_ + 3, ad, sr, b_ + 4, b_ + 7, ad, sr, b_ + 8, ad, sr), **e)
    q = []
    for n in range(9):
        q += F("""v_lshlrev_b32 v{t0}, 16, v{x}
v_lshlrev_b32 v{t1}, 16, v{g}
v_and_b32 v{t2}, 0xffff0000, v{x}
v_and_b32 v{t3}, 0xffff0000, v{g}
v_mul_f32 v{t0}, v{t0}, v{t1}
v_mul_f32 v{t2}, v{t2}, v{t3}
v_cvt_pk_bf16_f32 v{t0}, v{t0}, v{t2}
v_lshlrev_b32 v{t1}, 16, v{t0}
v_and_b32 v{t0}, 0xffff0000, v{t0}""", x=T + n, g=T + 10 + n, **e)
        q += F("v_add_f32 v{va}, v{t1}, v{t0}" if n == 0 else "v_add_f32 v{va}, v{va}, v{t1}\nv_add_f32 v{va}, v{va}, v{t0}", **e)
    for sh in (8, 4, 2, 1):
        q += F("v_add_f32_dpp v{va}, v{va}, v{va} row_ror:%d row_mask:0xf bank_mask:0xf" % sh, **e)
    q += F("""v_mov_b32 v{t0}, v{va}
v_and_b32 v{t1}, 31, v0
v_cmp_eq_u32 vcc, 0, v{t1}
v_permlane16_swap_b32 v{va}, v{t0}
v_add_f32 v{va}, v{va}, v{t0}
v_cvt_pk_bf16_f32 v{va}, v{va}, v{va}
v_lshlrev_b32 v{va}, 16, v{va}
v_mul_f32 v{va}, {NL}, v{va}
v_exp_f32 v{va}, v{va}
v_lshlrev_b32 v{vo}, 2, v{vo}
v_add_f32 v{va}, 1.0, v{va}
v_rcp_f32 v{va}, v{va}
v_bfrev_b32 v{t1}, 1
v_cvt_pk_bf16_f32 v{va}, v{va}, v{va}
v_lshlrev_b32 v{va}, 16, v{va}
v_sub_f32 v{t0}, 1.0, v{va}
v_cvt_pk_bf16_f32 v{t0}, v{t0}, v{t0}
v_lshlrev_b32 v{t0}, 16, v{t0}
v_cndmask_b32 v{vo}, v{t1}, v{vo}, vcc
s_lshl_b32 {u}, {T}, 9
s_add_u32 {u}, {u}, %d
s_add_u32 {w}, {u}, %d""" % (WS_G, WS_O - WS_G), **e)
    q += F("buffer_store_dword v{va}, v{vo}, {WS}, {u} offen sc1\nbuffer_store_dword v{t0}, v{vo}, {WS}, {w} offen sc1", tag="pub1", **e)
    return p, q

def t_setup(P, kb, opt=False):
    e = dict(vk=P, vphi=P + 1, vco=P + 2, vd=P + 3, vmu=P + 4, vsg=P + 5, t=P + 6, kb=kb)
    return F("""v_lshrrev_b32 v{vk}, 2, v1
v_lshlrev_b32 v{vk}, 1, v{vk}
v_and_b32 v{t}, 1, v1
v_add_u32 v{vk}, v{vk}, v{t}
v_lshlrev_b32 v{vsg}, 31, v{t}
v_or_b32 v{vsg}, 1.0, v{vsg}
s_lshl_b32 {a}, {kb}, 4
s_lshl_b32 {b}, {FH}, 3
s_add_u32 {a}, {a}, {b}
v_add_u32 v{vk}, {a}, v{vk}
v_bfe_u32 v{vphi}, v1, 1, 1
v_cvt_f32_u32 v{vphi}, v{vphi}
v_mul_f32 v{vphi}, 0x3e800000, v{vphi}
v_add_u32 v{t}, {a}, v1
v_cmp_eq_u32 vcc, 2, v{t}
v_mov_b32 v{t}, 0x120
v_lshlrev_b32 v{vd}, 3, v2
v_cndmask_b32 v{vk}, v{vk}, v{t}, vcc
v_cndmask_b32 v{vphi}, v{vphi}, 0, vcc
v_mul_u32_u24 v{t}, {ROT}, v{vk}
v_mul_u32_u24 v{vco}, 7282, v{t}
v_lshrrev_b32 v{vco}, 16, v{vco}
v_mul_u32_u24 v{vco}, 9, v{vco}
v_sub_u32 v{t}, v{t}, v{vco}
v_cvt_f32_u32 v{t}, v{t}
v_fmac_f32 v{vphi}, 0x3de38e39, v{t}
v_cvt_f32_u32 v{vk}, v{vk}
v_mul_f32 v{vco}, %s, v{vk}
v_mul_f32 v{vk}, %s, v{vk}
v_cos_f32 v{vco}, v{vco}
v_add_u32 v{t}, {a}, v2
v_cmp_eq_u32 vcc, 0, v{t}
v_cvt_f32_u32 v{vd}, v{vd}
v_add_f32 v{vco}, v{vco}, v{vco}
v_cndmask_b32 v{vmu}, 1.0, 0, vcc""" % (f2h(1.0 / 18), f2h(1.0 / 576)), opt=opt, **e)

def t_frag(kk, f, ST, P, opt=False):
    cur = ST + 8 * (kk & 1); prv = ST + 8 * ((kk + 1) & 1); ops = []
    if kk < 2:
        for j in range(8): ops += L("v_add_f32 v%d, %s, v%d" % (cur + j, f2h(32.0 * kk + j), P + 3), opt=opt)
        for j in range(8): ops += L("v_fma_f32 v%d, v%d, v%d, v%d" % (cur + j, cur + j, P, P + 1), opt=opt)
        for j in range(8): ops += L("v_cos_f32 v%d, v%d" % (cur + j, cur + j), opt=opt)
    else:
        for j in range(8): ops += L("v_fma_f32 v%d, v%d, v%d, -v%d" % (cur + j, P + 2, prv + j, cur + j), opt=opt)
    for jp in range(4): ops += L("v_cvt_pk_bf16_f32 v%d, v%d, v%d" % (f + jp, cur + 2 * jp, cur + 2 * jp + 1), opt=opt)
    return ops

def twiddle_A(TW, T):
    vs, vj, p0, p1, c0, c1 = T, T + 4, T + 5, T + 6, T + 7, T + 8
    p = F("v_lshlrev_b32 v{vs}, 7, v2\nv_add_u32 v{vs}, {S2}, v{vs}\nv_cvt_f32_u32 v{vs}, v{vs}", vs=vs)
    for j in range(1, 4): p += L("v_add_f32 v%d, %s, v%d" % (vs + j, f2h(32.0 * j), vs))
    for a in range(4):
        p += L("v_lshl_add_u32 v%d, v1, 2, %d\nv_cvt_f32_u32 v%d, v%d\nv_mul_f32 v%d, %s, v%d" % (vj, a, vj, vj, vj, f2h(1.0 / 2048), vj))
        b = TW(a)
        for jp in range(2):
            p += L("""v_mul_f32 v%d, v%d, v%d
v_mul_f32 v%d, v%d, v%d
v_cos_f32 v%d, v%d
v_cos_f32 v%d, v%d
v_sin_f32 v%d, v%d
v_sin_f32 v%d, v%d
v_cvt_pk_bf16_f32 v%d, v%d, v%d
v_cvt_pk_bf16_f32 v%d, v%d, v%d""" % (p0, vs + 2 * jp, vj, p1, vs + 2 * jp + 1, vj, c0, p0, c1, p1, p0, p0, p1, p1, b + jp, c0, c1, b + 4 + jp, p0, p1))
            C = "v%d, v%d" % (c0, c1); nC = "-v%d, -v%d" % (c0, c1); Sn = "v%d, v%d" % (p0, p1); nS = "-v%d, -v%d" % (p0, p1)
            cc, ss = [(C, Sn), (nS, C), (nC, nS), (Sn, nC)][a]
            p += L("v_cvt_pk_bf16_f32 v%d, %s\nv_cvt_pk_bf16_f32 v%d, %s" % (b + 2 + jp, cc, b + 6 + jp, ss))
    return p

def step_A(ACC, TW, DF, P, kb, stg, fill=None, opt=False):
    k = dict(opt=opt)
    fill = fill or (lambda n: [])
    t0, t1, va, vb = DF + 8, DF + 9, DF + 10, DF + 11
    e = dict(va=va, vb=vb, t0=t0, kb=kb, L16=V_L16)
    p = F("""s_mul_i32 {a}, {RG}, 4352
s_lshl_b32 {b}, {FH}, 4
s_add_u32 {a}, {a}, {b}
s_add_u32 {a}, {a}, %d
v_mul_u32_u24 v{va}, 272, v1
v_lshl_add_u32 v{va}, v2, 2, v{va}
v_add_u32 v{va}, {a}, v{va}
s_mul_i32 {a}, {W}, 2176
s_add_u32 {a}, {a}, %d
v_lshl_add_u32 v{vb}, v2, 4, v{L16}
v_add_u32 v{vb}, {a}, v{vb}
s_lshl_b32 {c}, {W}, 11
s_lshl_b32 {a}, {T}, 13
s_lshl_b32 {b}, {kb}, 17
s_add_u32 {b}, {b}, {a}
s_add_u32 {b}, {b}, {c}""" % (stg, stg), **k, **e)
    for i in range(16): p += L("v_fma_f32 v%d, v%d, v%d, v%d" % (ACC + i, P + 5, ACC + 16 + i, ACC + i), **k)
    for i in range(8):
        p += L("v_add_f32 v%d, v%d, v%d\nv_sub_f32 v%d, v%d, v%d" % (ACC + 16 + i, ACC + i, ACC + 8 + i, ACC + 24 + i, ACC + i, ACC + 8 + i), **k)
    for i in range(8): p += L("v_cvt_pk_bf16_f32 v%d, v%d, v%d" % (DF + i, ACC + 16 + 2 * i, ACC + 17 + 2 * i), **k)
    T1, T2 = ACC, ACC + 16
    for a in range(4):
        for cs, D in ((0, T1), (1, T2)):
            p.append(mf(V(D + 4 * a, 4), V(DF + 4 * (a & 1), 4), V(TW(a) + 4 * cs, 4), None, opt))
            p += fill(2)
    rng = (stg, stg + 8704)
    for a in range(4):
        x, y = T1 + 4 * a, T2 + 4 * a
        p += L("""v_fma_f32 v%d, v%d, v%d, v%d
v_add_f32 v%d, v%d, v%d
v_cvt_pk_bf16_f32 v%d, v%d, v%d
v_fma_f32 v%d, v%d, v%d, -v%d
v_sub_f32 v%d, v%d, v%d
v_cvt_pk_bf16_f32 v%d, v%d, v%d""" % (t0, P + 4, y + 2, x, t1, x + 1, y + 3, DF + 2 * a, t0, t1, t0, P + 4, x + 2, y, t1, x + 3, y + 1, DF + 2 * a + 1, t0, t1), **k)
        p += L("ds_write2_b32 v%d, v%d, v%d offset0:%d offset1:%d" % (va, DF + 2 * a, DF + 2 * a + 1, 16 * a, 16 * a + 8), lds_w=rng, tag="sa", **k)
    if not opt:
        p += F("s_or_b32 {c}, {kb}, {FH}\ns_cmp_lg_u32 {c}, 0\ns_cbranch_scc1 L_ny_KN", kb=kb)
        o = "ny"
        q = F("""s_lshl_b32 {a}, {S2}, 12
s_add_u32 {a}, {a}, %d
v_bfe_u32 v{va}, v1, 2, 1
v_lshlrev_b32 v{va}, 6, v{va}
v_lshrrev_b32 v{t0}, 3, v1
v_lshl_add_u32 v{va}, v{t0}, 17, v{va}
v_and_b32 v{t0}, 3, v1
v_lshl_add_u32 v{va}, v{t0}, 2, v{va}
v_lshl_add_u32 v{va}, v2, 28, v{va}""" % (18 * KB_STRIDE), opt=o, va=va, t0=t0)
        for par in range(2):
            q += L("v_cvt_pk_bf16_f32 v%d, v%d, v%d\nv_cvt_pk_bf16_f32 v%d, -v%d, -v%d"
                   % (T1 + par, T1 + 4 * par + 2, T1 + 4 * par + 10, T2 + par, T2 + 4 * par + 2, T2 + 4 * par + 10), opt=o)
        for par in range(2):
            q += F("buffer_store_dword v%d, v{va}, {WS}, {a} offen offset:%d sc1\nbuffer_store_dword v%d, v{va}, {WS}, {a} offen offset:%d sc1"
                   % (T1 + par, par * 16, T2 + par, 32 + par * 16), opt=o, tag="pub1", va=va)
        p += q + L("L_ny_KN:")
    p += L("s_barrier", need_lgkm=("sa",), **k)
    p += L("ds_read_b128 v[%d:%d], v%d\nds_read_b128 v[%d:%d], v%d offset:1088" % (DF, DF + 3, vb, DF + 4, DF + 7, vb), lds_r=rng, tag="lds", **k)
    p += fill(16)
    p += F("buffer_store_dwordx4 v[%d:%d], v{L16}, {WS}, {b} offen sc1\nbuffer_store_dwordx4 v[%d:%d], v{L16}, {WS}, {b} offen offset:1024 sc1"
           % (DF, DF + 3, DF + 4, DF + 7), tag="pub1", **k, **e)
    return p

def dft32(M, T, opt):
    vi, vg, p0, p1, c0, c1 = T, T + 1, T + 2, T + 3, T + 4, T + 5
    k = dict(opt=opt)
    p = L("v_cvt_f32_u32 v%d, v1\nv_lshlrev_b32 v%d, 2, v2\nv_mul_f32 v%d, %s, v%d\nv_cvt_f32_u32 v%d, v%d" % (vi, vg, vi, f2h(1.0 / 32), vi, vg, vg), **k)
    for jp in range(2):
        p += L("""v_add_f32 v%d, %s, v%d
v_add_f32 v%d, %s, v%d
v_mul_f32 v%d, v%d, v%d
v_mul_f32 v%d, v%d, v%d
v_cos_f32 v%d, v%d
v_cos_f32 v%d, v%d
v_sin_f32 v%d, v%d
v_sin_f32 v%d, v%d
v_cvt_pk_bf16_f32 v%d, v%d, v%d
v_cvt_pk_bf16_f32 v%d, v%d, v%d""" % (p0, f2h(2.0 * jp), vg, p1, f2h(2.0 * jp + 1), vg, p0, p0, vi, p1, p1, vi, c0, p0, c1, p1, p0, p0, p1, p1, M + jp, c0, c1, M + 4 + jp, p0, p1), **k)
    p += L("v_and_b32 v%d, 1, v1\nv_mul_u32_u24 v%d, 0x8000, v%d\nv_lshl_add_u32 v%d, v%d, 16, v%d" % (vi, vi, vi, vi, vi, vi), **k)
    for b in (M, M + 4):
        for jp in range(2): p += L("v_xor_b32 v%d, v%d, v%d" % (b + 2 + jp, vi, b + jp), **k)
    for d in range(4):
        p += L("v_xor_b32 v%d, 0x80008000, v%d\nv_xor_b32 v%d, 0x80000000, v%d\nv_xor_b32 v%d, 0x80000000, v%d\nv_xor_b32 v%d, 0x8000, v%d"
               % (M + 8 + d, M + 4 + d, M + 12 + d, M + d, M + 16 + d, M + 4 + d, M + 20 + d, M + 4 + d), **k)
    return p

def nyw_load(T, o):
    return F("""s_lshl_b32 {a}, {T}, 7
s_lshl_b32 {b}, {FH}, 6
s_add_u32 {a}, {a}, {b}
v_add_u32 v{j}, {a}, v0
v_mul_u32_u24 v{r}, 578, v{j}
s_cmp_eq_u32 {RG}, 0
s_cselect_b32 s44, s32, s36
s_cselect_b32 s45, s33, s37
s_mov_b32 s46, %d
s_mov_b32 s47, 0x20000
buffer_load_ushort v{r}, v{r}, s[44:47], 0 offen offset:576""" % (2048 * 578), opt=o, j=T, r=T + 1)
def nyw_store(T, o):
    return F("""s_lshl_b32 {a}, {RG}, 12
s_lshl_b32 {b}, {T}, 8
s_add_u32 {a}, {a}, {b}
s_lshl_b32 {b}, {FH}, 7
s_add_u32 {a}, {a}, {b}
s_add_u32 {a}, {a}, %d
v_and_b32 v{j}, 14, v0
v_and_b32 v{t}, 1, v0
v_lshl_add_u32 v{j}, v{t}, 4, v{j}
v_and_b32 v{t}, 1, v2
v_lshl_add_u32 v{j}, v{t}, 6, v{j}
v_lshrrev_b32 v{t}, 1, v2
v_lshl_add_u32 v{j}, v{t}, 5, v{j}""" % WS_N, opt=o, j=T, t=T + 2) + F("buffer_store_short v%d, v%d, {WS}, {a} offen sc1" % (T + 1, T), opt=o, tag="pub1")

def s2_wloads(gam, Wr, T, opt, special):
    e = dict(gam=gam, vw=T, t0=T + 1)
    if special:
        p = F("""s_lshl_b32 {a}, {RG}, 12
s_lshl_b32 {b}, {FH}, 6
s_add_u32 {a}, {a}, {b}
s_add_u32 {a}, {a}, %d
v_lshrrev_b32 v{vw}, 2, v0
v_lshlrev_b32 v{vw}, 7, v{vw}
v_and_b32 v{t0}, 3, v0
v_lshl_add_u32 v{vw}, v{t0}, 4, v{vw}
buffer_load_dwordx4 v[%d:%d], v{vw}, {WS}, {a} offen sc1
buffer_load_dwordx4 v[%d:%d], v{vw}, {WS}, {a} offen offset:2048 sc1""" % (WS_N, Wr, Wr + 3, Wr + 4, Wr + 7), opt=opt, **e)
        return p
    fl = OPT.get('s2fl', "")
    return F("""s_and_b32 {b}, {gam}, 31
s_lshl_b32 {b}, {b}, 1
s_add_u32 {b}, {b}, {FH}
s_mul_i32 {b}, {b}, 578
s_lshr_b32 {a}, {gam}, 5
s_lshl_b32 {a}, {a}, 6
s_add_u32 {a}, {a}, {b}
s_add_u32 {b}, {a}, %d
s_cmp_eq_u32 {RG}, 0
s_cselect_b32 s44, s32, s36
s_cselect_b32 s45, s33, s37
s_mov_b32 s46, %d
s_mov_b32 s47, 0x20000
v_lshrrev_b32 v{vw}, 2, v0
v_mul_u32_u24 v{vw}, 36992, v{vw}
v_and_b32 v{t0}, 3, v0
v_lshl_add_u32 v{vw}, v{t0}, 4, v{vw}
buffer_load_dwordx4 v[%d:%d], v{vw}, s[44:47], {a} offen%s
buffer_load_dwordx4 v[%d:%d], v{vw}, s[44:47], {b} offen%s""" % (16 * 36992, 2048 * 578, Wr, Wr + 3, fl, Wr + 4, Wr + 7, fl), opt=opt, **e)

def s2_gaddr(va, t0, opt):
    return F("v_lshrrev_b32 v{va}, 3, v0\nv_lshlrev_b32 v{va}, 12, v{va}\nv_and_b32 v{t0}, 7, v0\nv_lshl_add_u32 v{va}, v{t0}, 4, v{va}", opt=opt, va=va, t0=t0)
def s2_dloads(gam, keep, D, T, opt):
    p = s2_gaddr(T, T + 1, opt)
    p += F("""s_lshr_b32 {a}, {gam}, 5
s_lshl_b32 {a}, {a}, 1
s_add_u32 {a}, {a}, {RG}
s_lshl_b32 {keep}, {a}, 17
s_and_b32 {b}, {gam}, 31
s_lshl_b32 {b}, {b}, 7
s_add_u32 {keep}, {keep}, {b}
s_lshl_b32 {b}, {FH}, 16
s_add_u32 {keep}, {keep}, {b}
s_add_u32 {c}, {keep}, 0x8000
buffer_load_dwordx4 v[%d:%d], v%d, {WS}, {keep} offen sc1
buffer_load_dwordx4 v[%d:%d], v%d, {WS}, {c} offen sc1""" % (D, D + 3, T, D + 4, D + 7, T), opt=opt, keep=keep, gam=gam)
    return p

def s2_addr(T, lds_base, opt):
    e = dict(vl=T, vr=T + 1, vw=T + 2, vo=T + 3, vp=T + 4, vb=T + 5, t0=T + 7, L16=V_L16)
    return F("""s_lshl_b32 {a}, {W}, 11
s_add_u32 {a}, {a}, %d
v_add_u32 v{vl}, {a}, v{L16}
v_lshrrev_b32 v{t0}, 3, v0
v_lshlrev_b32 v{t0}, 4, v{t0}
v_xor_b32 v{vb}, v{vl}, v{t0}
v_lshrrev_b32 v{vr}, 2, v1
v_lshl_add_u32 v{vr}, v2, 2, v{vr}
v_lshlrev_b32 v{vw}, 6, v{vr}
v_lshlrev_b32 v{vr}, 7, v{vr}
v_and_b32 v{t0}, 3, v1
v_lshl_add_u32 v{vr}, v{t0}, 3, v{vr}
v_lshl_add_u32 v{vw}, v{t0}, 3, v{vw}
s_lshl_b32 {a}, {RG}, 12
s_lshl_b32 {b}, {FH}, 6
s_add_u32 {a}, {a}, {b}
s_add_u32 {a}, {a}, %d
v_add_u32 v{vr}, {a}, v{vr}
v_lshlrev_b32 v{vo}, 7, v1
v_lshl_add_u32 v{vo}, v2, 3, v{vo}
v_add_u32 v{vo}, {a}, v{vo}
v_and_b32 v{t0}, 7, v1
v_lshlrev_b32 v{t0}, 4, v{t0}
v_xor_b32 v{vo}, v{vo}, v{t0}
v_xor_b32 v{vp}, 32, v{vo}
s_lshl_b32 {a}, {FH}, 11
s_lshl_b32 {b}, {RG}, 5
s_add_u32 {a}, {a}, {b}
s_add_u32 {a}, {a}, %d
v_add_u32 v{vw}, {a}, v{vw}""" % (lds_base, lds_base, lds_base + 8192), opt=opt, **e) + s2_gaddr(T + 6, T + 7, opt)

def s2_compute(keep, M, D, Z, Wr, T, X, lds_base, opt):
    e = dict(keep=keep, vl=T, vr=T + 1, vw=T + 2, vb=T + 5, va=T + 6, t0=X, t1=X + 1, t2=X + 2, t3=X + 3)
    k = dict(opt=opt)
    rng = (lds_base, lds_base + 16384); rn2 = (lds_base + 16384, lds_base + 24576)
    q = F("ds_write_b128 v{vl}, v[%d:%d]\nds_write_b128 v{vl}, v[%d:%d] offset:1024\nds_write_b128 v{vl}, v[%d:%d] offset:8192\nds_write_b128 v{vl}, v[%d:%d] offset:9216"
          % (D, D + 3, D + 4, D + 7, Wr, Wr + 3, Wr + 4, Wr + 7), lds_w=rng, tag="s2", **k, **e)
    q += F("s_add_u32 {a}, {keep}, %d\ns_add_u32 {b}, {a}, 0x8000" % WS_B, **k, **e)
    q += L("s_barrier", need_lgkm=("s2",), **k)
    for pl in range(2):
        q += F("ds_read_b64_tr_b16 v[%d:%d], v{vr} offset:%d\nds_read_b64_tr_b16 v[%d:%d], v{vr} offset:%d"
               % (D + 4 * pl, D + 4 * pl + 1, pl * 32, D + 4 * pl + 2, D + 4 * pl + 3, pl * 32 + 2048), lds_r=rng, tag="lds", **k, **e)
    for pl in range(2):
        q += F("ds_read_b64_tr_b16 v[%d:%d], v{vw} offset:%d\nds_read_b64_tr_b16 v[%d:%d], v{vw} offset:%d"
               % (Wr + 4 * pl, Wr + 4 * pl + 1, pl * 4096, Wr + 4 * pl + 2, Wr + 4 * pl + 3, pl * 4096 + 1024), lds_r=rng, tag="lds", **k, **e)
    C = lambda a: V(M + (a * 3) * 4, 4)
    Sn = lambda a: V(M + (a * 3 + 1) * 4, 4)
    N = lambda a: V(M + (a * 3 + 2) * 4, 4)
    Ar, Ai = V(D, 4), V(D + 4, 4)
    for aa in range(2):
        zr, zi = V(Z + 4 * aa, 4), V(Z + 8 + 4 * aa, 4)
        q += [mf(zr, C(aa), Ar, None, opt), mf(zr, Sn(aa), Ai, zr, opt), mf(zi, C(aa), Ai, None, opt), mf(zi, N(aa), Ar, zi, opt)]
    for i in range(8):
        un = "v_lshlrev_b32 v{t2}, 16, v{wr}\nv_lshlrev_b32 v{t3}, 16, v{wi}\n" if i % 2 == 0 else "v_and_b32 v{t2}, 0xffff0000, v{wr}\nv_and_b32 v{t3}, 0xffff0000, v{wi}\n"
        q += F(un + """v_mul_f32 v{t0}, v{zi}, v{t3}
v_mul_f32 v{t1}, v{zr}, v{t3}
v_fma_f32 v{zr}, v{zr}, v{t2}, -v{t0}
v_fma_f32 v{zi}, v{zi}, v{t2}, v{t1}""", zr=Z + i, zi=Z + 8 + i, wr=Wr + i // 2, wi=Wr + 4 + i // 2, **k, **e)
    for pl in range(2):
        for d in range(4): q += L("v_cvt_pk_bf16_f32 v%d, v%d, v%d" % (D + 4 * pl + d, Z + 8 * pl + 2 * d, Z + 8 * pl + 2 * d + 1), **k)
    for aa in range(2):
        br = V(Z + 4 * aa, 4)
        q += [mf(br, Ar, C(aa), None, opt), mf(br, Ai, N(aa), br, opt)]
    for aa in range(2):
        bi = V(Z + 8 + 4 * aa, 4)
        q += [mf(bi, Ai, C(aa), None, opt), mf(bi, Ar, Sn(aa), bi, opt)]
    for pl in range(2):
        for aa in range(2):
            r = Wr + 4 * pl + 2 * aa; z = Z + 8 * pl + 4 * aa
            q += L("v_cvt_pk_bf16_f32 v%d, v%d, v%d\nv_cvt_pk_bf16_f32 v%d, v%d, v%d" % (r, z, z + 1, r + 1, z + 2, z + 3), **k)
            q += L("ds_write_b64 v%d, v[%d:%d] offset:%d" % (T + 3 + pl, r, r + 1, 16384 + aa * 2048), lds_w=rn2, tag="s2", **k)
    q += L("s_barrier", need_lgkm=("s2", "lds"), **k)
    q += F("ds_read_b128 v[%d:%d], v{vb} offset:16384\nds_read_b128 v[%d:%d], v{vb} offset:17408" % (D, D + 3, D + 4, D + 7), lds_r=rn2, tag="lds", **k, **e)
    q += F("buffer_store_dwordx4 v[%d:%d], v{va}, {WS}, {a} offen sc1\nbuffer_store_dwordx4 v[%d:%d], v{va}, {WS}, {b} offen sc1"
           % (D, D + 3, D + 4, D + 7), tag="pub2", **k, **e)
    return q

def twiddle_D(TW, T):
    vs, vj, vk, c0, c1, s0, s1 = T, T + 1, T + 2, T + 3, T + 4, T + 5, T + 6
    p = F("""s_lshl_b32 {u}, {FH}, 9
s_add_u32 {u}, {u}, {S2}
v_lshlrev_b32 v{vs}, 5, v1
v_add_u32 v{vs}, {u}, v{vs}
v_cvt_f32_u32 v{vs}, v{vs}
v_mul_f32 v{vs}, %s, v{vs}
v_lshlrev_b32 v{vj}, 4, v2
v_cvt_f32_u32 v{vj}, v{vj}
v_add_f32 v{vk}, v{vs}, v{vs}
v_cos_f32 v{vk}, v{vk}""" % f2h(1.0 / 2048), vs=vs, vj=vj, vk=vk)
    for par in range(2):
        p += L("""v_add_f32 v%d, %s, v%d
v_add_f32 v%d, %s, v%d
v_mul_f32 v%d, v%d, v%d
v_mul_f32 v%d, v%d, v%d
v_cos_f32 v%d, v%d
v_cos_f32 v%d, v%d
v_sin_f32 v%d, v%d
v_sin_f32 v%d, v%d""" % (s0, f2h(float(par)), vj, s1, f2h(par + 2.0), vj, s0, s0, vs, s1, s1, vs, c0, s0, c1, s1, s0, s0, s1, s1))
        if par == 0: p += L("v_add_f32 v%d, v%d, v%d" % (vk, vk, vk))
        for jp in range(4):
            if jp:
                p += L("v_fma_f32 v%d, v%d, v%d, -v%d\nv_fma_f32 v%d, v%d, v%d, -v%d\nv_fma_f32 v%d, v%d, v%d, -v%d\nv_fma_f32 v%d, v%d, v%d, -v%d"
                       % (c0, vk, c1, c0, s0, vk, s1, s0, c1, vk, c0, c1, s1, vk, s0, s1))
            p += L("v_cvt_pk_bf16_f32 v%d, v%d, v%d\nv_cvt_pk_bf16_f32 v%d, v%d, v%d" % (TW + par * 8 + jp, c0, c1, TW + par * 8 + 4 + jp, s0, s1))
    return p

def stepD_loads(kb, RAW, opt=False):
    p = F("s_lshl_b32 {a}, {S2}, 12\ns_add_u32 {a}, {a}, %d\ns_lshl_b32 {b}, {kb}, 17\ns_add_u32 {b}, {b}, {a}" % WS_B, kb=kb, opt=opt)
    for i in range(4):
        p += F("buffer_load_dwordx4 v[%d:%d], v%d, {WS}, {b} offen offset:%d sc1" % (RAW + 4 * i, RAW + 4 * i + 3, V_L16, i * 1024), opt=opt)
    return p
def stepD_nyloads(NY, T, opt):
    p = F("s_add_u32 {a}, {a}, %d\nv_and_b32 v{t}, 1, v2\nv_lshlrev_b32 v{t}, 6, v{t}\nv_lshrrev_b32 v{n}, 1, v2\nv_lshl_add_u32 v{t}, v{n}, 17, v{t}" % (18 * KB_STRIDE), opt=opt, t=T, n=NY)
    for par in range(2):
        for pl in range(2):
            r = NY + (par * 2 + pl) * 4
            p += F("buffer_load_dwordx4 v[%d:%d], v%d, {WS}, {a} offen offset:%d sc1" % (r, r + 3, T, pl * 32 + par * 16), opt=opt)
    return p

def stepD_parts(RAW, NY, NB, TW, ACC, T, stage_base, kb, so, opt=False):
    k = dict(opt=opt)
    e = dict(vl=T, vr=T + 1, t0=T + 2, so=so, kb=kb)
    rng = (stage_base, stage_base + 16384)
    p = F("s_lshl_b32 {so}, {W}, 12\ns_add_u32 {so}, {so}, %d\nv_add_u32 v{vl}, {so}, v%d" % (stage_base, V_L16), **k, **e)
    p += F("""v_lshrrev_b32 v{vr}, 2, v1
v_lshl_add_u32 v{vr}, v2, 3, v{vr}
v_lshlrev_b32 v{vr}, 7, v{vr}
v_and_b32 v{t0}, 3, v1
v_lshl_add_u32 v{vr}, v{t0}, 3, v{vr}
v_add_u32 v{vr}, {so}, v{vr}""", **k, **e)
    for i in range(4):
        p += F("ds_write_b128 v{vl}, v[%d:%d] offset:%d" % (RAW + 4 * i, RAW + 4 * i + 3, i * 1024), lds_w=rng, priv=True, tag="lds", **k, **e)
    for par in range(2):
        for pl in range(2):
            r = RAW + (par * 2 + pl) * 4; o = par * 64 + pl * 32
            p += F("ds_read_b64_tr_b16 v[%d:%d], v{vr} offset:%d\nds_read_b64_tr_b16 v[%d:%d], v{vr} offset:%d" % (r, r + 1, o, r + 2, r + 3, o + 512),
                   lds_r=rng, priv=True, tag="lds", **k, **e)
    p += F("s_mul_i32 {so}, {T}, 18\ns_add_u32 {so}, {so}, {kb}\ns_lshl_b32 {so}, {so}, 1\ns_add_u32 {so}, {so}, {RG}\ns_lshl_b32 {so}, {so}, 2\ns_add_u32 {so}, {so}, {FH}\ns_lshl_b32 {so}, {so}, 10\ns_add_u32 {so}, {so}, %d" % WS_Y, **k, **e)
    ng = []
    for par in range(2):
        for d in range(4): ng += L("v_xor_b32 v%d, 0x80008000, v%d" % (NB + 4 * par + d, RAW + par * 8 + 4 + d), **k)
    mr = []
    for par in range(2):
        er = V(ACC + 8 * par, 4)
        mr += [mf(er, V(RAW + 8 * par, 4), V(TW + 8 * par, 4), None, opt), mf(er, V(NB + 4 * par, 4), V(TW + 8 * par + 4, 4), er, opt)]
    pt = []
    if not opt:
        pt = F("s_cmp_lg_u32 {C}, 0\ns_cbranch_scc1 L_nyd_KN") + L("v_cmp_eq_u32 vcc, 0, v1", opt="nyd")
        for par in range(2):
            for d in range(4):
                br, bi, nr, ni = RAW + 8 * par + d, RAW + 8 * par + 4 + d, NY + 8 * par + d, NY + 8 * par + 4 + d
                pt += L("v_xor_b32 v%d, 0x80008000, v%d\nv_cndmask_b32 v%d, v%d, v%d, vcc\nv_cndmask_b32 v%d, v%d, v%d, vcc" % (ni, ni, bi, bi, nr, br, br, ni), opt="nyd")
        pt += L("L_nyd_KN:")
    mi_ = []
    for par in range(2):
        ei = V(ACC + 8 * par + 4, 4)
        mi_ += [mf(ei, V(RAW + 8 * par + 4, 4), V(TW + 8 * par, 4), None, opt), mf(ei, V(RAW + 8 * par, 4), V(TW + 8 * par + 4, 4), ei, opt)]
    f = []
    for r in range(8):
        f += L("v_add_f32 v%d, v%d, v%d\nv_sub_f32 v%d, v%d, v%d" % (RAW + r, ACC + r, ACC + 8 + r, RAW + 8 + r, ACC + r, ACC + 8 + r), **k)
    for u in range(2):
        for d in range(4): f += L("v_cvt_pk_bf16_f32 v%d, v%d, v%d" % (RAW + 8 * u + d, RAW + 8 * u + 2 * d, RAW + 8 * u + 2 * d + 1), **k)
        f += F("buffer_store_dwordx4 v[%d:%d], v%d, {WS}, {so} offen offset:%d sc1" % (RAW + 8 * u, RAW + 8 * u + 3, V_L16, u * 2048), **k, **e)
    return p, ng, mr, pt, mi_, f

def lanes(v, init, vals, o):
    p = L("v_mov_b32 v%d, %s" % (v, init), opt=o)
    for i, s in enumerate(vals): p += F("v_writelane_b32 v%d, %s, %d" % (v, s, i), opt=o)
    return p
def w0(name, body):
    return F("s_cmp_lg_u32 {W}, 0\ns_cbranch_scc1 L_%s_KN" % name) + body + L("L_%s_KN:" % name)
def arrive(name, calc, VA):
    o = name
    b = F(calc, opt=o) + lanes(VA, "0x1000", ["{a}", "{b}", "{c}"], o) + L("v_mov_b32 v%d, 1" % (VA + 1), opt=o)
    b += F("buffer_atomic_add v%d, v%d, {DBG}, 0 offen sc1" % (VA + 1, VA), opt=o)
    return w0(name, b)
def poll_issue(name, calc, calc2, VP):
    o = name
    b = F(calc, opt=o) + lanes(VP, "0x1000", ["{a}", "{b}", "{c}"], o)
    b += F("buffer_load_dword v%d, v%d, {DBG}, 0 offen sc1" % (VP + 2, VP), opt=o)
    b += F(calc2, opt=o) + lanes(VP + 1, "0", ["{a}", "{b}", "{c}"], o)
    return w0(name, b)
def poll_check(name, VP, sidx=None):
    o = name
    b = F("""v_cmp_lt_u32 vcc, v{r}, v{x}
s_mov_b32 {SP}, 0
s_cbranch_vccz L_{n}_KN
L_{n}s_KN:
s_sleep 4
buffer_load_dword v{r}, v{ad}, {DBG}, 0 offen sc1
s_add_u32 {SP}, {SP}, 1
s_cmp_ge_u32 {SP}, 0x40000
s_cbranch_scc1 L_{n}_KN
s_waitcnt vmcnt(0)
v_cmp_lt_u32 vcc, v{r}, v{x}
s_nop 4
s_cbranch_vccnz L_{n}s_KN""", opt=o, r=VP + 2, x=VP + 1, ad=VP, n=name)
    p = w0(name, b)
    if OPT['stamps'] and sidx is not None: p += F("s_add_u32 {SP}, {SP}, 1\nv_writelane_b32 v%d, {SP}, %d" % (VST[0], sidx))
    return p

def kernel_main(a):
    name = NAME + "_kernel"
    BI = OPT['BI']
    a.launch(name, 256, 256, 163840)
    t0, t1 = TMP, TMP + 1
    e = dict(t0=t0, t1=t1, DX=V_DX, DW=V_DW, DH=V_DH, DD=V_DD, RW=V_RW, RX=V_RX, RW1=V_RW + 3, RX1=V_RX + 3, HW=V_HW, HH=V_HH, L16=V_L16, L16B=V_L16B, VST_=V_ST)
    p = L("s_cmp_ge_u32 s2, 256\ns_cbranch_scc1 L_end_KN")
    if OPT['stamps']: p += L("v_mov_b32 v%d, 0" % VST[0])
    p += stamp(0)
    p += L("s_load_dwordx16 s[52:67], s[0:1], 0\ns_load_dwordx4 s[68:71], s[0:1], 64\ns_load_dwordx2 s[72:73], s[0:1], 80")
    p += F("""v_lshrrev_b32 v1, 6, v0
v_and_b32 v0, 63, v0
v_readfirstlane_b32 {W}, v1
v_and_b32 v1, 15, v0
v_lshrrev_b32 v2, 4, v0""")
    mp = OPT.get('map', 1)
    if mp == 1:
        p += F("""s_and_b32 {C}, s2, 3
s_lshl_b32 {C}, {C}, 2
s_bfe_u32 {a}, s2, 0x20003
s_add_u32 {C}, {C}, {a}
s_lshr_b32 {T}, s2, 5
s_lshl_b32 {T}, {T}, 1
s_bfe_u32 {a}, s2, 0x10002
s_add_u32 {T}, {T}, {a}""")
    elif mp == 0:
        p += F("s_and_b32 {C}, s2, 7\ns_lshl_b32 {C}, {C}, 1\ns_bfe_u32 {a}, s2, 0x10003\ns_add_u32 {C}, {C}, {a}\ns_lshr_b32 {T}, s2, 4")
    else:
        p += F("""s_and_b32 {C}, s2, 1
s_lshl_b32 {C}, {C}, 3
s_bfe_u32 {a}, s2, 0x30003
s_add_u32 {C}, {C}, {a}
s_lshr_b32 {T}, s2, 6
s_lshl_b32 {T}, {T}, 2
s_bfe_u32 {a}, s2, 0x20001
s_add_u32 {T}, {T}, {a}""")
    p += F("""s_lshr_b32 {RG}, {W}, 1
s_and_b32 {FH}, {W}, 1
s_lshl_b32 {W1K}, {W}, 10
s_lshl_b32 {S2}, {T}, 1
s_add_u32 {S2}, {S2}, {RG}
v_lshrrev_b32 v{DW}, 3, v0
s_lshl_b32 {a}, {W}, 3
v_add_u32 v{DW}, {a}, v{DW}
v_mul_u32_u24 v{DX}, %d, v{DW}
s_lshl_b32 {a}, {FH}, 2
v_add_u32 v{t0}, {a}, v2
v_xor_b32 v{t0}, v0, v{t0}
v_and_b32 v{t0}, 7, v{t0}
v_lshl_add_u32 v{DX}, v{t0}, 4, v{DX}
s_lshr_b32 {ROT}, {T}, 1
s_and_b32 {a}, {C}, 3
s_lshl_b32 {a}, {a}, 1
s_add_u32 {ROT}, {ROT}, {a}
s_cmp_ge_u32 {ROT}, 9
s_cselect_b32 {a}, 9, 0
s_sub_u32 {ROT}, {ROT}, {a}
s_mul_i32 {ROT}, {ROT}, ROTON
s_mul_i32 {a}, {T}, 2304
s_lshl_b32 {b}, {ROT}, 7
s_add_u32 {a}, {a}, {b}
v_add_u32 v{DX}, {a}, v{DX}
v_mul_u32_u24 v{DD}, 1152, v{DW}
v_mul_u32_u24 v{DW}, 9216, v{DW}
v_bfe_u32 v{t0}, v0, 1, 2
v_and_b32 v{t1}, 1, v2
s_lshl_b32 {a}, {FH}, 1
v_or_b32 v{t1}, {a}, v{t1}
v_xor_b32 v{t1}, v{t1}, v{t0}
v_lshl_add_u32 v{DW}, v{t1}, 5, v{DW}
v_xor_b32 v{t1}, v{t0}, v2
v_lshl_add_u32 v{DD}, v{t1}, 5, v{DD}
v_and_b32 v{t0}, 1, v0
v_lshl_add_u32 v{DW}, v{t0}, 4, v{DW}
v_lshl_add_u32 v{DD}, v{t0}, 4, v{DD}
s_mul_i32 {d}, {C}, 576
s_and_b32 {e}, {C}, 1
s_lshl_b32 {c}, {e}, 6
s_add_u32 {c}, {c}, {d}
v_add_u32 v{DW}, {c}, v{DW}""".replace("ROTON", str(OPT.get('rot', 1))) % (32 * 1152), **e)
    for q in range(4): p += L("s_mov_b32 s%d, %d" % (S_XQ + q, (1024 * (q & 1) + (q >> 1)) * 1152))
    p += L("s_waitcnt lgkmcnt(0)")
    p += srd(8, 52, 2048 * 1152) + srd(12, 60, 576 * 9216) + srd(16, 62, 576 * 9216)
    rest_srd = lambda: (srd(32, 54, 2048 * 578) + srd(36, 56, 2048 * 578) + srd(20, 64, 4608 * 1152) + srd(40, 66, 1152)
                        + srd(28, 70, 256) + srd(24, 72, WS_BYTES))
    G = []
    def grp(kind, nm, need, **kw):
        d = dict(kind=kind, nm=nm, need=need, bar=False, xr=None, rate=2); d.update(kw); G.append(d); return d
    for sg in range(9):
        for tau in range(4):
            mat = 'G' if tau < 2 else 'U'
            g = grp('SB', 16 if tau == 3 else 8, [(mat, 0, 2 * sg), (mat, 0, 2 * sg + 1)], sg=sg, tau=tau, rate=(5 if tau == 3 else 2))
            if tau == 2 or (sg == 0 and tau == 0): g['bar'] = True
            if sg < 8 and tau in (2, 3): g['xr'] = (sg + 1, tau - 2)
    passes = [('G', 1, 3), ('U', 1, 2), ('G', 2, 0), ('U', 2, 1), ('G', 3, 3), ('U', 3, 2)]
    PS = {}
    for pi, (mat, b, st) in enumerate(passes):
        PS[mat + str(b)] = len(G)
        for sl in range(6):
            for ap in range(2):
                g = grp('P1', 12, [(mat, b, 3 * sl + e_) for e_ in range(3)], mat=mat, b=b, st=st, sl=sl, ap=ap, ps=mat + str(b))
                if ap == 0 and (sl % BI == BI - 1): g['bar'] = True
    for mi_, mat in enumerate(('HG', 'HU')):
        PS[mat] = len(G)
        for gi in range(6):
            g = grp('PH', 12, [(mat, (3 * gi + e_) >> 1) for e_ in range(3)], mat=mat, gi=gi, ps=mat, half=mi_)
            if gi % 2 == 0: g['bar'] = True
    P2 = len(G)
    for cb in range(9):
        for gi in range(3):
            g = grp('P2', 24, [('D', cb, 3 * gi + e_) for e_ in range(3)], cb=cb, gi=gi, rate=4)
            g['bar'] = True
    NG = len(G)
    G[-1]['bar'] = False
    G[P2 - 1]['bar'] = True
    def rdg(n): return n - 1 if n > P2 else n - 2
    iv = []; n = 0
    for g in G:
        if g['bar']: n += 1
        iv.append(n)
    def free_iv(gr):
        for k in range(gr, NG):
            if G[k]['bar']: return iv[k]
        return 10 ** 6
    first = {}; fre = {}; order = []
    def use(key, rg_, done_g):
        i = iv[rg_] if rg_ >= 0 else 0
        if key not in first: first[key] = i; order.append(key)
        fre[key] = max(fre.get(key, 0), free_iv(done_g))
    for q in range(4): use(('x', 0, q), -1, 1)
    ev = []
    for gi, g in enumerate(G):
        for k in g['need']: ev.append((rdg(gi), 0, k, gi))
        if g['xr']:
            for q in range(4): ev.append((gi, 1, ('x', g['xr'][0], q), 4 * g['xr'][0] + 1))
    ev.sort(key=lambda x: (x[0], x[1]))
    for r_, _, k, d_ in ev: use(k, r_, d_)
    order.sort(key=lambda k: first[k])
    fixed = {}
    for sg in range(9):
        s = 8 * (sg % 5)
        for e_ in range(2):
            fixed[('G', 0, 2 * sg + e_)] = s + e_; fixed[('U', 0, 2 * sg + e_)] = s + 2 + e_
        for q in range(4): fixed[('x', sg, q)] = s + 4 + q
    gS2 = PS['U3'] + 11
    gSD = P2 + OPT.get('sdat', 18)
    HU = PS['HU']
    res = [(0, 4, PS['G1'] - 1, HU + 3), (4, 1, PS['G1'] - 1, PS['G1']), (16, 2, gS2, gS2 + 1), (4, 4, PS['G2'], HU + 5), (8, 4, PS['G3'], P2), (12, 4, gS2, P2 + 1),
           (16, 2, P2 - 1, P2 + 1), (0, 4, gSD, NG - 2)]
    resv = {pg: [] for pg in range(40)}
    for f, npg, ga, gb in res:
        for pg in range(f, f + npg): resv[pg].append((iv[ga], free_iv(gb + 1)))
    free_at = [-1] * 40; phys = {}; issue_grp = {}; qi = 0
    def ioff(k): return 0 if k[0] in ('HG', 'HU', 'x') else k[1] * 128
    def try_alloc(k, cur):
        for pg in ([fixed[k]] if k in fixed else range(39, -1, -1)):
            if free_at[pg] > cur or (pg == 0 and ioff(k) > 0): continue
            if any(not (fre[k] <= a_ or cur >= b_) for a_, b_ in resv[pg]): continue
            return pg
        return None
    cum = [0]
    for g in G: cum.append(cum[-1] + g['nm'])
    bar_grp = {iv[gi]: gi for gi, g in enumerate(G) if g['bar']}
    bar_grp[0] = 0
    vt = {}; cnt_iv = {}
    for k in order:
        n_ = cnt_iv.get(first[k], 0); cnt_iv[first[k]] = n_ + 1
        vt[k] = cum[bar_grp[first[k]]] + n_ * (5 if k in fixed else 8)
    def LA(k):
        if k in fixed: return OPT.get('la0', 120)
        if k[0] == 'D': return OPT.get('la2', 400)
        return OPT.get('la1', 400)
    NPRO = OPT.get('npro', 16)
    while qi < NPRO:
        k = order[qi]; phys[k] = try_alloc(k, -1); free_at[phys[k]] = fre[k]; issue_grp[k] = -1; qi += 1
    for gi, g in enumerate(G):
        g['dma'] = []
        while qi < len(order) and len(g['dma']) < g['rate']:
            k = order[qi]
            if vt[k] - cum[gi] > LA(k): break
            pg = try_alloc(k, iv[gi])
            if pg is None: break
            assert iv[gi] < first[k], ("late DMA", k, gi)
            phys[k] = pg; free_at[pg] = fre[k]; issue_grp[k] = gi; g['dma'].append(k); qi += 1
    assert qi == len(order), order[qi]
    print("dma per group:", "".join(str(len(g['dma'])) for g in G), file=sys.stderr)
    slk = {}
    for k in order:
        if issue_grp[k] >= 0:
            kk_ = k[:2] if k[0] in 'GUD' else k[:1]
            slk[kk_] = min(slk.get(kk_, 9999), cum[bar_grp[first[k]]] - cum[issue_grp[k] + 1])
    print("min DMA slack (mfmas):", slk, file=sys.stderr)
    def mkdma(k):
        tag = "pg%d" % first[k]; pb = phys[k] * 4096
        if k[0] == 'x':
            pre = []
            if k[2] == 0 and k[1] > 0:
                pre = F("s_cmp_eq_u32 {ROT}, %d\ns_cselect_b32 {SP}, -8, 1\nv_lshl_add_u32 v%d, {SP}, 7, v%d" % (9 - k[1], V_DX, V_DX))
            m_, d_ = dma(V_DX, 'X', S_XQ + k[2], pb, 0, tag)
            return (pre + [m_], d_) if pre else (m_, d_)
        if k[0] == 'G': return dma(V_DW, 'WG', S_KK + k[2], pb, k[1] * 128, tag)
        if k[0] == 'U': return dma(V_DW, 'WU', S_KK + k[2], pb, k[1] * 128, tag)
        if k[0] == 'HG': return dma(V_DH, 'WG', S_KK + 2 * k[1], pb, 0, tag)
        if k[0] == 'HU': return dma(V_DH, 'WU', S_KK + 2 * k[1], pb, 0, tag)
        return dma(V_DD, 'WD', S_DK + k[2], pb, k[1] * 128, tag)
    PFL = OPT.get('pfl', "")
    VPF, VDM, VPX = V_HH, V_ST, V_HW
    def pf(srdn, mask, soff, off, va=VPF, real=False):
        lo, hi = mask & 0xffffffff, mask >> 32
        q = L("s_mov_b32 exec_lo, 0x%x\ns_mov_b32 exec_hi, 0x%x" % (lo, hi))
        for i in q: i.wr = [('s', 'exec')]; i.rd = [('s', 'exec')]
        for sn in srdn:
            i = F("buffer_load_dword v%d, v%d, {%s}, %s offen offset:%d%s" % (VDM, va, sn, soff, off, PFL))[0]
            if not real: i.wr = []
            i.rd.append(('s', 'exec'))
            q.append(i)
        q += L("s_mov_b64 exec, -1")
        return q
    lm = lambda a_, b_: ((1 << b_) - 1) ^ ((1 << a_) - 1)
    assert mp == 1
    def skk(m):
        KS = 32 * 9216
        if m == 0: q = F("s_mul_i32 s%d, {ROT}, %d" % (S_KK, 2 * KS))
        else: q = F("s_add_u32 s%d, s%d, %d\ns_cmp_eq_u32 {ROT}, %d\ns_cselect_b32 s%d, 0, s%d" % (S_KK + 2 * m, S_KK + 2 * m - 2, 2 * KS, 9 - m, S_KK + 2 * m, S_KK + 2 * m))
        return q + L("s_add_u32 s%d, s%d, %d" % (S_KK + 2 * m + 1, S_KK + 2 * m, KS))
    p += skk(0) + skk(1)
    pro = [k for k in order if issue_grp[k] < 0]
    PF0 = OPT.get('pf0', 0)
    NP0 = OPT.get('np0', 0)
    for k in pro[:NP0]: p += flat(mkdma(k))
    pfs = F("""s_and_b32 {a}, {C}, 1
s_lshl_b32 {a}, {a}, 5
s_lshl_b32 {b}, {W}, 3
s_add_u32 {a}, {a}, {b}
v_lshrrev_b32 v{t0}, 3, v0
v_add_u32 v{t0}, {a}, v{t0}
v_mul_u32_u24 v{t0}, %d, v{t0}
v_and_b32 v{t1}, 7, v0
v_lshl_add_u32 v%d, v{t1}, 7, v{t0}
s_bfe_u32 {u}, {C}, 0x10001
s_lshl_b32 {a}, {T}, 1
s_add_u32 {u}, {u}, {a}
s_mul_i32 {u}, {u}, 1152
s_lshr_b32 {a}, {T}, 1
s_add_u32 {a}, {a}, {b}
v_lshl_add_u32 v{t1}, v0, 5, {a}
v_mul_u32_u24 v%d, 9216, v{t1}
s_lshl_b32 {SB}, {e}, 6
s_add_u32 {SB}, {SB}, {d}
s_cmp_eq_u32 {e}, 0
s_cselect_b32 {SA}, 512, 0
s_add_u32 {SA}, {SA}, {d}""" % (32 * 1152, VPX, VPF), **e)
    wi = [i for i, x in enumerate(p) if x.text == "s_waitcnt lgkmcnt(0)"][-1]
    for i in pfs: i.id = p[wi].id - 0.5 + 0.001 * pfs.index(i)
    p[wi:wi] = pfs
    R1S = OPT.get('r1s', 5)
    def R1(): return pf(['X'], 0x0101010101010101 * ((1 << R1S) - 1), ENV['u'], 0, va=VPX) + pf(['WG', 'WU'], lm(0, 2 * R1S), ENV['SB'], 0)
    def R2(): return pf(['X'], 0x0101010101010101 * ((1 << (9 - R1S)) - 1), ENV['u'], 128 * R1S, va=VPX) + pf(['WG', 'WU'], lm(2 * R1S, 18), ENV['SB'], 0)
    if PF0: p += R1()
    for k in pro[NP0:8]: p += flat(mkdma(k))
    p += rest_srd()
    for m in range(2, 9): p += skk(m)
    GT = TMP + 2
    g1, g2f = gate_code(GT)
    p += g1
    p += F("s_cmp_lg_u32 {C}, 0\ns_cbranch_scc1 L_nw_KN") + nyw_load(FB + 8, "nw") + L("L_nw_KN:")
    p += F("""v_lshrrev_b32 v{RW}, 2, v1
v_lshlrev_b32 v{RW}, 7, v{RW}
v_lshl_add_u32 v{RW}, v2, 10, v{RW}
v_and_b32 v{t0}, 3, v1
v_lshl_add_u32 v{RW}, v{t0}, 3, v{RW}
v_bfe_u32 v{t0}, v1, 3, 1
v_and_b32 v{t1}, 1, v2
v_lshl_add_u32 v{t0}, v{t1}, 1, v{t0}
s_lshl_b32 {a}, {FH}, 1
v_xor_b32 v{t0}, {a}, v{t0}
v_lshl_add_u32 v{RW}, v{t0}, 5, v{RW}
v_xor_b32 v{RW1}, 32, v{RW}
v_lshrrev_b32 v{t0}, 1, v1
v_xor_b32 v{t0}, v{t0}, v2
v_lshlrev_b32 v{t0}, 4, v{t0}
v_lshl_add_u32 v{RX}, v1, 7, v{t0}
s_lshl_b32 {a}, {RG}, 13
v_add_u32 v{RX}, {a}, v{RX}
v_xor_b32 v{RX1}, 64, v{RX}""", **e)
    for b in (V_RW, V_RW + 3, V_RX, V_RX + 3):
        p += L("v_add_u32 v%d, 0x10000, v%d\nv_add_u32 v%d, 0x20000, v%d" % (b + 1, b, b + 2, b))
    p += F("""s_mov_b32 {Q}, 0x3e800000
s_mov_b32 {NL}, %s
s_add_u32 {KB1}, {C}, 2
s_add_u32 {KB3}, {C}, 4
s_cmp_lt_u32 {KB3}, 18
s_cselect_b32 {KB3}, {KB3}, 0
s_mul_i32 {GA}, {T}, 12
s_add_u32 {GA}, {GA}, {C}
s_cmp_lt_u32 {C}, 12
s_cselect_b32 {GA}, {GA}, 0x1000
s_add_u32 {GB}, {GA}, 192
s_mul_i32 {a}, {C}, %d
s_mul_i32 {c}, {e}, %d
s_add_u32 s%d, {a}, {c}
s_cmp_eq_u32 {e}, 0
s_cselect_b32 {c}, %d, 0
s_add_u32 s%d, {a}, {c}""" % (f2h(-math.log2(math.e)), 288 * 1152, 32 * 1152, S_DK, 256 * 1152, S_DK + 8), **e)
    for ks in range(1, 8): p += L("s_add_u32 s%d, s%d, %d" % (S_DK + ks, S_DK, ks * 32 * 1152))
    TP = V_SIL
    TF = lambda kk: (SET[3] + 4 * kk) if kk < 8 else FB + 32
    p += t_setup(TP, ENV['C'])
    NTP = OPT.get('ntp', 4)
    for kk in range(NTP): p += t_frag(kk, TF(kk), SET[2] + 16, TP)
    for k in pro[8:]: p += flat(mkdma(k))
    r2 = R2() if PF0 else []
    if OPT.get('r2at', -1) < 0: p += r2
    def late_setup():
        return F("""v_lshrrev_b32 v{DH}, 2, v0
s_lshl_b32 {w}, {W}, 4
v_add_u32 v{DH}, {w}, v{DH}
v_mul_u32_u24 v{DH}, 9216, v{DH}
v_bfe_u32 v{t0}, v0, 1, 1
v_lshrrev_b32 v{t1}, 5, v0
v_xor_b32 v{t0}, v{t0}, v{t1}
v_lshl_add_u32 v{DH}, v{t0}, 5, v{DH}
v_and_b32 v{t0}, 1, v0
v_lshl_add_u32 v{DH}, v{t0}, 4, v{DH}
v_add_u32 v{DH}, {SA}, v{DH}
v_lshlrev_b32 v{L16}, 4, v0
v_add_u32 v{L16B}, 0x10000, v{L16}
s_lshl_b32 {u}, {FH}, 13
s_lshl_b32 {w}, {RG}, 12
s_add_u32 {u}, {u}, {w}
v_add_u32 v{HW}, {u}, v{L16}""", **e)
    def late_setup2():
        return F("""s_lshl_b32 {a}, {FH}, 3
s_lshl_b32 {b}, {RG}, 12
s_add_u32 {a}, {a}, {b}
v_add_u32 v{HH}, {a}, v{L16B}
s_mul_i32 {a}, {T}, %d
s_lshl_b32 {b}, {W}, 16
s_add_u32 {a}, {a}, {b}
s_lshl_b32 {b}, {C}, 10
s_add_u32 {a}, {a}, {b}
v_add_u32 v{VST_}, {a}, v{L16}""" % (9 * 16 * 16384), **e)
    def pf_wd_setup():
        return F("""s_lshr_b32 {a}, {T}, 1
s_mul_i32 {a}, {a}, %d
s_mul_i32 {b}, {C}, %d
s_add_u32 {a}, {a}, {b}
s_mul_i32 {b}, {W}, %d
s_add_u32 {a}, {a}, {b}
v_lshlrev_b32 v%d, 7, v0
v_add_u32 v%d, {a}, v%d""" % (36 * 1152, 288 * 1152, 9 * 1152, VPF, VPF, VPF))
    sec = Sec2()
    FBUF = lambda gi: FB + 12 * (gi % 3)
    def frag_reads(gi):
        g = G[gi]; out = []
        for e_, k in enumerate(g['need']):
            pb = phys[k] * 4096
            if k[0] in 'GU':
                ap = g['tau'] & 1 if g['kind'] == 'SB' else g['ap']
                base, o, d2 = V_RW + 3 * ap, pb, 512
            elif k[0] in ('HG', 'HU'): base, o, d2 = V_RX, pb + ((3 * g['gi'] + e_) & 1) * 2048, 256
            else: base, o, d2 = V_RX + 3, pb, 2048
            r = FBUF(gi) + 4 * e_
            out.append(L("ds_read_b64_tr_b16 v[%d:%d], v%d offset:%d\nds_read_b64_tr_b16 v[%d:%d], v%d offset:%d"
                         % (r, r + 1, base + (o >> 16), o & 0xffff, r + 2, r + 3, base + (o >> 16), (o & 0xffff) + d2), lds_r=(pb, pb + 4096), tag="f%d" % gi))
        return out
    def x_reads(sg, e_):
        kk = 2 * sg + e_; out = []; pb = phys[('x', sg, 0)] * 4096
        for mi in range(4):
            o = pb + mi * 2048
            out += L("ds_read_b128 %s, v%d offset:%d" % (rs(XF(mi, kk)), V_RX + 3 * e_ + (o >> 16), o & 0xffff), lds_r=(pb, pb + 16384), tag="x%d" % sg)
        return [out[0:2], out[2:4]]
    def lin_read(regs, o, tag):
        return L("ds_read_b128 %s, v%d offset:%d" % (rs(regs), V_L16B if o >> 16 else V_L16, o & 0xffff), lds_r=(o, o + 1024), tag=tag)[0]
    def silu_a(regs):
        out = []
        for i in range(0, len(regs), 4):
            T = V_SIL + (i & 4); rr = regs[i:i + 4]
            out += [F("v_mul_f32 v%d, {NL}, v%d" % (T + j, r))[0] for j, r in enumerate(rr)]
            out += [I("v_exp_f32 v%d, v%d" % (T + j, T + j)) for j in range(4)]
            out += [I("v_add_f32 v%d, 1.0, v%d" % (T + j, T + j)) for j in range(4)]
            out += [I("v_rcp_f32 v%d, v%d" % (T + j, T + j)) for j in range(4)]
            out += [I("v_mul_f32 v%d, v%d, v%d" % (r, r, T + j)) for j, r in enumerate(rr)]
        for i in out: i.silu = True
        return out
    def silu_b(sg_, su_, b):
        out = []
        for mi in range(4):
            d = su_ + 4 * mi
            for ap in range(2):
                gq, uq = sg_ + (ap * 4 + mi) * 4, su_ + (ap * 4 + mi) * 4
                out += [I("v_mul_f32 v%d, v%d, v%d" % (gq + r, gq + r, uq + r)) for r in range(4)]
            for ap in range(2):
                gq = sg_ + (ap * 4 + mi) * 4
                out += [I("v_cvt_pk_bf16_f32 v%d, v%d, v%d" % (d + 2 * ap + h, gq + 2 * h, gq + 2 * h + 1)) for h in range(2)]
            out += L("ds_write_b128 v%d, v[%d:%d] offset:%d" % (V_HW, d, d + 3, b * 16384 + mi * 1024), lds_w=(b * 16384, b * 16384 + 16384), tag="lds")
        return out
    def silu_bH(st):
        out = []
        for mi in range(4):
            gq, uq = st + 4 * mi, st + 16 + 4 * mi
            out += [I("v_mul_f32 v%d, v%d, v%d" % (gq + r, gq + r, uq + r)) for r in range(4)]
            out += [I("v_cvt_pk_bf16_f32 v%d, v%d, v%d" % (uq + h, gq + 2 * h, gq + 2 * h + 1)) for h in range(2)]
            out += L("ds_write_b64 v%d, v[%d:%d] offset:%d" % (V_HH, uq, uq + 1, mi * 1024), lds_w=(65536, 65536 + 8192), tag="lds")
        return out
    allr = lambda st, n=32: list(range(st, st + n))
    p += stamp(1) + L("s_barrier", need_vm=("pg0",)) + stamp(2)
    xa, xb = x_reads(0, 0), x_reads(0, 1)
    pre_reads = {0: frag_reads(0), 1: frag_reads(1)}
    for r_ in [xa[0], xb[0]] + pre_reads[0] + [xa[1], xb[1]] + pre_reads[1]: p += r_
    for kk in range(NTP, 9): sec.stream(t_frag(kk, TF(kk), SET[2] + 16, TP), 0, 40 * (kk // 2) + 29, "tf%d" % kk, "tf%d" % (kk - 1))
    sec.stream(late_setup(), 40, 200, "late")
    for i in g2f: Ins.seq += 1; i.id = Ins.seq
    sec.stream(g2f, 40, 278, "gate", "late")
    TWA = lambda a_: (TMP + 2 + 8 * a_) if a_ < 3 else SET[3]
    PACC = [SET[1], SET[2]]
    VP = TMP + 22
    def out_ops(cb):
        acc = PACC[cb & 1]; out = []
        for ip in range(4):
            b = acc + 8 * ip
            out += F("s_mov_b32 {ST}, 0x%x" % (WS_P + cb * 262144 + ip * 16384))
            out += [I("v_cvt_pk_bf16_f32 v%d, v%d, v%d" % (b + d, b + 2 * d, b + 2 * d + 1)) for d in range(4)]
            out += F("buffer_store_dwordx4 v[%d:%d], v%d, {WS}, {ST} offen%s" % (b, b + 3, V_ST, OPT.get('pst', " sc1")))
        return out
    hq = {HU + 1: list(range(0, 8)), HU + 2: list(range(8, 16)), HU + 3: list(range(16, 24)), HU + 4: list(range(24, 32)), HU + 5: list(range(32, 40)),
          P2: list(range(40, 64)), P2 + 1: list(range(64, 72))}
    FBUF2 = FBUF
    extra_need = {}
    gp1 = PS['G3'] + OPT.get('p1at', 5)
    gp2 = P2 + OPT.get('p2at', 13)
    def next_bar(gi):
        while not G[gi]['bar']: gi += 1
        return gi
    gc1 = next_bar(gp1 + 3); gc2 = next_bar(gp2 + 2)
    ga1 = next_bar(PS['G1'] + OPT.get('a1at', 9)); ga2 = next_bar(gS2 + OPT.get('a2at', 7))
    print("groups: arrive1 %d poll1 %d chk1 %d s2 %d arrive2 %d poll2 %d chk2 %d stepD %d  PS %s P2 %d" % (ga1, gp1, gc1, gS2, ga2, gp2, gc2, gSD, PS, P2), file=sys.stderr)
    S2D = [SET[0], SET[0] + 8]; S2W = [TMP, TMP + 8]
    KBX = "s_lshr_b32 {x}, {g}, 5\ns_cmp_eq_u32 {x}, 9\ns_cselect_b32 {x}, 0, {x}\ns_lshl_b32 {x}, {x}, 2\ns_add_u32 {x}, {x}, {o}\ns_cmp_gt_u32 {g}, 288\ns_cselect_b32 {x}, 0x1000, {x}\n"
    kbx = lambda x, g, o: KBX.replace("{x}", "{%s}" % x).replace("{g}", "{%s}" % g).replace("{o}", str(o))
    SD = {}
    for gi, g in enumerate(G):
        base = sec.n(); fb = FBUF(gi) if gi <= P2 else FB + 12 * ((gi - P2 + (P2 % 3)) & 1 if (P2 % 3) < 2 else (gi - P2 + 1) & 1)
        if gi > P2: FBUF = lambda n_: FB + 12 * ((n_ - P2 + (P2 % 3)) & 1 if (P2 % 3) < 2 else (n_ - P2 + 1) & 1)
        ms = []
        if g['kind'] == 'SB':
            st = SET[0] if g['tau'] < 2 else SET[1]
            for mi in range(4):
                for e_ in range(2):
                    acc = V(st + ((g['tau'] & 1) * 4 + mi) * 4, 4); kk = 2 * g['sg'] + e_
                    ms.append(mf(acc, V(fb + 4 * e_, 4), XF(mi, kk), acc if kk else None))
            if g['tau'] == 3:
                for mi in range(4):
                    for e_ in range(2):
                        kk = 2 * g['sg'] + e_
                        acc = V(SET[2] + 16 * (kk // 9) + 4 * mi, 4)
                        ms.append(mf(acc, XF(mi, kk), V(TF(kk % 9), 4), acc if kk % 9 else None))
        elif g['kind'] == 'P1':
            for mi in range(4):
                for e_ in range(3):
                    acc = V(SET[g['st']] + (g['ap'] * 4 + mi) * 4, 4); kk = 3 * g['sl'] + e_
                    ms.append(mf(acc, V(fb + 4 * e_, 4), XF(mi, kk), acc if kk else None))
        elif g['kind'] == 'PH':
            for mi in range(4):
                for e_ in range(3):
                    acc = V(SET[0] + (g['half'] * 4 + mi) * 4, 4); kk = 3 * g['gi'] + e_
                    ms.append(mf(acc, V(fb + 4 * e_, 4), XF(mi, kk), acc if kk else None))
        else:
            for mi in range(8):
                for e_ in range(3):
                    acc = V(PACC[g['cb'] & 1] + 4 * mi, 4)
                    ms.append(mf(acc, V(fb + 4 * e_, 4), HF(mi, 3 * g['gi'] + e_), acc if (g['gi'] or e_) else None))
        lg = ["f%d" % gi]; vm = []
        if g['kind'] == 'SB' and g['tau'] == 0: lg.append("x%d" % g['sg'])
        if g['kind'] == 'P2' and g['cb'] == 0: lg.append("h%d" % g['gi'])
        if g['bar']:
            vm.append("pg%d" % iv[gi]); lg.append("lds")
            if gi == ga1: vm.append("pub1")
            if gi == ga2: vm.append("pub2")
        if gi in (gc1, gc2): sec.block(base - 1, poll_check("pc%d" % (1 if gi == gc1 else 2), VP, 28 if gi == gc1 else 29))
        if gi:
            if sec.blk.get(base - 1): sec.block(base - 1, [Need(vm, lg)])
            else: sec.at(base - 1, Need(vm, lg))
        for m_ in ms: sec.mfma(m_)
        nm = g['nm']; end = sec.n()
        sidx = None
        if g['kind'] in ('P1', 'PH') and PS[g['ps']] == gi: sidx = 3 + list(PS).index(g['ps'])
        if g['kind'] == 'P2' and g['gi'] == 0: sidx = 11 + g['cb']
        gap = 0
        if g['bar']:
            sec.at(base, L("s_barrier", need_vm=tuple(vm), need_lgkm=tuple(lg))); gap = 1
        if OPT.get('diag') == 6:
            sidx = None
            if g['kind'] == 'SB' and g['tau'] == 0: sidx = 3 + g['sg']
            if gi == PS['G1']: sidx = 13
            if gi == PS['G1'] - 1: sec.block(end - 1, stamp(12))
        if OPT.get('diag') == 7:
            sidx = None
            g0 = PS['G1']
            if g0 <= gi < g0 + 68 and (gi - g0) % 4 == 0: sidx = 3 + (gi - g0) // 4
        if sidx is not None and OPT['stamps']: sec.block(base, stamp(sidx))
        pairs = []
        for n_ in range(gi + 1, min(NG, gi + 3)):
            if rdg(n_) == gi:
                if n_ > P2: FBUF = lambda q_: FB + 12 * ((q_ - P2 + (P2 % 3)) & 1 if (P2 % 3) < 2 else (q_ - P2 + 1) & 1)
                pairs += frag_reads(n_)
                if n_ > P2 and gi <= P2: FBUF = FBUF2
        if g['xr']: pairs += x_reads(*g['xr'])
        hr = [lin_read(HF(n_ & 7, n_ >> 3), (n_ >> 3) * 8192 + (n_ & 7) * 1024, "h%d" % (n_ // 24)) for n_ in hq.get(gi, [])]
        hp = [hr[i:i + 2] for i in range(0, len(hr), 2)]
        pairs = hp + pairs if gi == P2 + 1 else pairs + hp
        avail = list(range(gap, nm - 1))
        items = []
        dm = [mkdma(k) for k in g['dma']]
        ip_, id_ = 0, 0
        early = g['kind'] == 'P2'
        while ip_ < len(pairs) or id_ < len(dm):
            if ip_ < len(pairs): items.append(('r', pairs[ip_])); ip_ += 1
            elif not items or items[-1][0] == 'd': items.append(('z', None))
            if id_ < len(dm) and (not early or ip_ >= min(len(pairs), 3)): items.append(('d', dm[id_])); id_ += 1
        assert len(items) <= len(avail), (gi, len(items), len(avail))
        pos = 0; slack = len(avail) - len(items); nd_left = len(dm)
        for kind, it in items:
            if kind == 'r': sec.at(base + avail[pos], it)
            if kind == 'd':
                if isinstance(it[0], list): sec.block(base + avail[pos] - 1, it[0])
                else: sec.at(base + avail[pos] - 1, it[0])
                sec.at(base + avail[pos], it[1])
                sk = slack // max(1, nd_left); pos += sk; slack -= sk; nd_left -= 1
            pos += 1
        if gi == 19: sec.block(end - 1, F("s_cmp_lg_u32 {C}, 0\ns_cbranch_scc1 L_nw2_KN") + nyw_store(FB + 8, "nw2") + L("L_nw2_KN:"))
        if PF0 and gi == OPT.get('r2at', -1): sec.block(base + 1, r2)
        if gi == OPT.get('pf1', -1): sec.block(base + 1, pf(['WG', 'WU'], lm(0, 18), ENV['SB'], 128))
        if OPT.get('pfd', 1):
            for it in range(3):
                if gi == PS['G1'] + OPT.get('pfd0', 6) + it * OPT.get('pfdi', 12):
                    sec.block(base + 1, (pf_wd_setup() if it == 0 else []) + pf(['WD'], lm(0, 27), "0", 0, real=(it == 2))
                              + L("v_add_u32 v%d, %d, v%d" % (VPF, 27 * 128, VPF)))
        if g['kind'] == 'SB' and g['sg'] == 6 and g['tau'] == 3:
            sec.stream(twiddle_A(TWA, SET[3] + 8), end, end + 78, "twA")
        if gi == PS['G1'] - 1:
            blk = diag(1, 21) + step_A(SET[2], TWA, SET[3] + 8, TP, ENV['C'], 0) + (stamp(22) if OPT.get('diag') == 1 else []) + diag(1, 23)
            blk += F("s_cmp_lt_u32 {KB1}, 16\ns_cbranch_scc1 L_x1_KN")
            o = "x1"; s1 = Sec2(); XS = SET[3] + 8; XFr = SET[3] + 24
            s1.pre = t_setup(TP, ENV['KB1'], opt=o) + t_frag(0, XFr, XS, TP, opt=o)
            for kk in range(9):
                if kk < 8: nxt = None
                b0 = s1.n()
                for hh in range(2):
                    for mi in range(4):
                        acc = V(SET[2] + 16 * hh + 4 * mi, 4)
                        s1.mfma(mf(acc, XF(mi, kk + 9 * hh), V(XFr + 4 * (kk & 1), 4), acc if kk else None, o))
                if kk < 8: s1.stream(t_frag(kk + 1, XFr + 4 * ((kk + 1) & 1), XS, TP, opt=o), b0, b0 + 6)
            blk += s1.flatten() + step_A(SET[2], TWA, SET[3] + 8, TP, ENV['KB1'], 8704, opt=o) + L("L_x1_KN:")
            sec.block(end - 1, blk)
            sw = F("""v_lshrrev_b32 v{RX}, 2, v1
v_lshl_add_u32 v{RX}, v2, 3, v{RX}
v_lshlrev_b32 v{RX}, 6, v{RX}
v_and_b32 v{t0}, 3, v1
v_lshl_add_u32 v{RX}, v{t0}, 3, v{RX}
v_and_b32 v{t1}, 1, v2
v_xor_b32 v{t1}, {FH}, v{t1}
v_lshl_add_u32 v{RX}, v{t1}, 5, v{RX}
v_lshrrev_b32 v{RX1}, 2, v1
v_lshl_add_u32 v{RX1}, v2, 2, v{RX1}
v_bfe_u32 v{t1}, v{RX1}, 1, 2
v_xor_b32 v{t1}, {W}, v{t1}
v_lshlrev_b32 v{RX1}, 7, v{RX1}
v_lshl_add_u32 v{RX1}, v{t1}, 5, v{RX1}
v_lshl_add_u32 v{RX1}, v{t0}, 3, v{RX1}""", **e)
            for b in (V_RX, V_RX + 3): sw += L("v_add_u32 v%d, 0x10000, v%d\nv_add_u32 v%d, 0x20000, v%d" % (b + 1, b, b + 2, b))
            sec.stream(sw, end - 36, end - 2, "sw")
            sec.stream(silu_a(allr(SET[0])), end, end + 200, "a0")
            sec.stream(silu_b(SET[0], SET[1], 0), end + 145, end + 286, "b0", "a0")
        if g['kind'] == 'P1' and g['sl'] == 5 and g['ap'] == 1:
            ps = g['ps']
            if ps == 'G1': sec.stream(silu_a(allr(SET[3])), end + 2, end + 380, "a1", "a0")
            if ps == 'U1': sec.stream(silu_b(SET[3], SET[2], 1), end + 2, end + 286, "b1", "a1")
            if ps == 'G2': sec.stream(silu_a(allr(SET[0])), end + 2, end + 143 + 12 * (gc1 - PS['G3']) - 30, "a2", "a1")
            if ps == 'U2':
                sec.stream(silu_b(SET[0], SET[1], 2), end + 2, end + 12 * (gc1 - PS['G3']), "b2", "a2")
            if ps == 'G3':
                sec.stream(silu_a(allr(SET[3])), end + 2, end + 143 + 40, "a3", "a2")
            if ps == 'U3': sec.stream(silu_b(SET[3], SET[2], 3), end + 2, end + 72 + 50, "b3", "a3")
        if g['kind'] == 'PH' and g['gi'] == 5:
            if g['half'] == 0: sec.stream(silu_a(allr(SET[0], 16)), end + 2, end + 72 + 10, "aH", "a3")
            else: sec.stream(silu_bH(SET[0]), end + 2, end + 22, "bH", "aH")
        if gi == ga1:
            sec.block(base, diag(5, 21))
            sec.block(base + 1, diag(5, 22))
            sec.block(base, arrive("ar1", "s_lshr_b32 {a}, {C}, 1\ns_lshl_b32 {a}, {a}, 2\ns_cmp_lt_u32 {KB1}, 16\ns_cselect_b32 {b}, 0x1000, 32\ns_mov_b32 {c}, 0x1000", VP))
        if gi == ga2:
            sec.block(base, diag(5, 23))
            sec.block(base + 1, diag(5, 24))
            sec.block(base, arrive("ar2", kbx('a', 'GA', 128) + kbx('b', 'GB', 128) + "s_mov_b32 {c}, 0x1000", VP))
        if gi == gp1:
            sec.block(base + 1, poll_issue("pi1", kbx('a', 'GA', 0) + kbx('b', 'GB', 0) + "s_mov_b32 {c}, 0x1000",
                      "s_cmp_gt_u32 {GA}, 288\ns_cselect_b32 {a}, 0, 32\ns_cmp_gt_u32 {GB}, 288\ns_cselect_b32 {b}, 0, 32\ns_mov_b32 {c}, 0", VP))
        if gi == gp2:
            sec.block(base + 1, poll_issue("pi2", "s_lshr_b32 {a}, {C}, 1\ns_lshl_b32 {a}, {a}, 2\ns_add_u32 {a}, {a}, 128\ns_movk_i32 {b}, 160\ns_mov_b32 {c}, 0x1000",
                      "s_cmp_lt_u32 {C}, 2\ns_cselect_b32 {a}, 33, 32\ns_cmp_lt_u32 {KB3}, 16\ns_cselect_b32 {b}, 0, 32\ns_mov_b32 {c}, 0", VP))
        for r_, gam in enumerate(('GA', 'GB')):
            if gi == PS['G2'] + OPT.get('w%dat' % r_, 1 + 12 * r_):
                o = "s2w%d" % r_
                sec.block(base + 1, F("s_cmp_ge_u32 {%s}, 288\ns_cbranch_scc1 L_%s_KN" % (gam, o)) + s2_wloads(ENV[gam], S2W[r_], TMP + 16, o, False) + L("L_%s_KN:" % o))
        if gi == gc1:
            blk = []
            for r_, (gam, keep) in enumerate((('GA', 'SA'), ('GB', 'SB'))):
                o = "s2l%d" % r_
                blk += F("s_cmp_gt_u32 {%s}, 288\ns_cbranch_scc1 L_%s_KN" % (gam, o)) + s2_dloads(ENV[gam], ENV[keep], S2D[r_], TMP + 16, o) + L("L_%s_KN:" % o)
            blk += F("s_cmp_lg_u32 {GB}, 288\ns_cbranch_scc1 L_s2n_KN") + s2_wloads(ENV['GB'], S2W[1], TMP + 16, "s2n", True) + L("L_s2n_KN:")
            if OPT.get('diag') == 3: blk = stamp(21) + blk + stamp(22) + diag(3, 23)
            sec.block(base + 1, blk)
            M = SET[1]; Z = SET[0] + 16; S2T = SET[1] + 24
            pre = dft32(M, Z, False) + s2_addr(S2T, 12 * 4096, False)
            for i in pre:
                i.text = i.text.replace(ENV['a'], ENV['u']).replace(ENV['b'], ENV['w'])
                fx = lambda lst: [('s', 6) if r == ('s', 84) else ('s', 7) if r == ('s', 85) else r for r in lst]
                i.rd = fx(i.rd); i.wr = fx(i.wr)
            sec.stream(pre, base + 2, base + 12 * (gS2 - gi) + 10, "s2pre")
        if gi == gS2:
            blk = diag(3, 24)
            for r_, (gam, keep) in enumerate((('GA', 'SA'), ('GB', 'SB'))):
                o = "s2c%d" % r_
                blk += F("s_cmp_gt_u32 {%s}, 288\ns_cbranch_scc1 L_%s_KN" % (gam, o))
                blk += s2_compute(ENV[keep], M, S2D[r_], Z, S2W[r_], S2T, TMP + 16, 12 * 4096, o) + L("L_%s_KN:" % o)
                if OPT.get('diag') == 3 and r_ == 0: blk += stamp(25)
            sec.block(end - 1, blk + (stamp(26) if OPT.get('diag') == 3 else []) + diag(3, 27) + late_setup2())
        if gi == P2 + 3: sec.stream(twiddle_D(SET[3], SET[3] + 16), base, base + 200, "twD")
        if gi == gc2:
            blk = stepD_loads(ENV['C'], SET[0])
            blk += F("s_cmp_lg_u32 {C}, 0\ns_cbranch_scc1 L_nyl_KN") + stepD_nyloads(SET[0] + 16, VP, "nyl") + L("L_nyl_KN:")
            blk += F("s_cmp_lt_u32 {KB3}, 16\ns_cbranch_scc1 L_d2l_KN") + stepD_loads(ENV['KB3'], SET[0] + 16, opt="d2l") + L("L_d2l_KN:")
            sec.block(base + 1, blk)
        if gi == gSD:
            SD['p'] = stepD_parts(SET[0], SET[0] + 16, TMP, SET[3], SET[3] + 16, TMP + 8, 0, ENV['C'], ENV['SA'])
            sec.stream(SD['p'][0], base + 1, base + 30, "sd0")
            sec.stream(SD['p'][1], base + 36, base + 45, "sd1", "sd0")
        if gi == gSD + 1:
            for m_ in SD['p'][2]: sec.mfma(m_)
            sec.block(sec.n() - 1, SD['p'][3])
            for m_ in SD['p'][4]: sec.mfma(m_)
            sec.stream(SD['p'][5], sec.n() + 2, sec.n() + 44, "sd5")
        if gi == gSD + 3:
            blk = F("s_cmp_lt_u32 {KB3}, 16\ns_cbranch_scc1 L_d2_KN")
            for part in stepD_parts(SET[0] + 16, None, TMP, SET[3], SET[3] + 16, TMP + 8, 0, ENV['KB3'], ENV['SA'], opt="d2"): blk += part
            sec.block(end - 1, blk + L("L_d2_KN:"))
        if g['kind'] == 'P2' and g['gi'] == 2 and g['cb'] < 8:
            sec.stream(out_ops(g['cb']), sec.n() + 2, sec.n() + 60)
    p += sec.flatten(verbose=True)
    p += out_ops(8) + stamp(20) + stamp_out(2)
    emit(a, name, p, 512, accum=256)

def kernel_reduce(a):
    name = "reduce_kernel"
    VST[0] = 60
    a.launch(name, 256, 576, 36864)
    p = L("s_cmp_ge_u32 s2, 256\ns_cbranch_scc1 L_end_KN")
    if OPT['stamps']: p += L("v_mov_b32 v%d, 0" % VST[0])
    p += stamp(0)
    p += L("s_load_dwordx2 s[68:69], s[0:1], 64\ns_load_dwordx2 s[72:73], s[0:1], 80")
    p += F("""v_lshrrev_b32 v1, 6, v0
v_and_b32 v0, 63, v0
v_readfirstlane_b32 {W}, v1
v_lshlrev_b32 v3, 4, v0
v_and_b32 v1, 15, v0
v_lshrrev_b32 v2, 4, v0
s_and_b32 {T}, s2, 7
s_lshl_b32 {T}, {T}, 1
s_bfe_u32 {a}, s2, 0x10003
s_add_u32 {T}, {T}, {a}
s_lshr_b32 {C}, s2, 4
s_mul_i32 {b}, {T}, 9
s_add_u32 {b}, {b}, {W}
s_lshl_b32 {b}, {b}, 4
s_add_u32 {b}, {b}, {C}
s_lshl_b32 {b}, {b}, 14
s_add_u32 {b}, {b}, %d
s_and_b32 {FH}, {C}, 3
s_mul_i32 {c}, {T}, 18
s_lshl_b32 {d}, {W}, 1
s_add_u32 {c}, {c}, {d}
s_lshl_b32 {c}, {c}, 13
s_lshl_b32 {d}, {FH}, 11
s_add_u32 {c}, {c}, {d}
s_add_u32 {c}, {c}, %d
s_add_u32 {d}, {c}, %d
s_lshl_b32 m0, {W}, 12
s_waitcnt lgkmcnt(0)""" % (WS_P, WS_Y, 8192 - 2048))
    p += srd(24, 72, WS_BYTES)
    for i in range(4):
        p += F("buffer_load_dwordx4 v3, {WS}, {%s} offen offset:%d lds" % ("c" if i < 2 else "d", i * 1024), tag="y", lds_w=(0, 36864))
    p += F("""s_lshl_b32 {c}, {T}, 9
s_lshl_b32 {d}, {FH}, 7
s_add_u32 {c}, {c}, {d}
s_add_u32 {c}, {c}, %d
s_add_u32 {d}, {c}, %d
v_lshlrev_b32 v4, 2, v1
buffer_load_dword v6, v4, {WS}, {c} offen
buffer_load_dword v7, v4, {WS}, {c} offen offset:64
buffer_load_dword v8, v4, {WS}, {d} offen
buffer_load_dword v9, v4, {WS}, {d} offen offset:64""" % (WS_G, WS_O - WS_G))
    PB = 64
    def pload(i):
        q = F("s_add_u32 {b}, {b}, 4096") if (i % 4 == 0 and i) else []
        return q + F("buffer_load_dwordx4 v[%d:%d], v3, {WS}, {b} offen offset:%d%s" % (PB + 4 * i, PB + 3 + 4 * i, (i % 4) * 1024, OPT.get('rfl', "")))
    NPRE = OPT.get('npre', 2)
    for i in range(NPRE): p += pload(i)
    p += srd(44, 68, 2048 * 1152)
    ST, FR, YF, AC, SM, SEL = 12, 28, 36, 52, 36, 28
    p += F("""s_lshl_b32 {c}, {W}, 6
s_lshr_b32 {d}, {C}, 2
s_lshl_b32 {d}, {d}, 4
s_add_u32 {c}, {c}, {d}
v_add_u32 v5, {c}, v1
v_and_b32 v11, 1, v5
v_cvt_f32_u32 v5, v5
v_mul_f32 v10, %s, v5
v_mul_f32 v5, %s, v5
v_cos_f32 v10, v10
v_lshlrev_b32 v4, 2, v2
v_cvt_f32_u32 v4, v4
v_add_f32 v10, v10, v10
v_lshlrev_b32 v11, 31, v11
v_or_b32 v11, 0.5, v11
v_cmp_eq_u32 vcc, 0, v2
s_mov_b32 {Q}, 0x3e800000
s_lshl_b32 {c}, {c}, 1
s_and_b32 {e}, {FH}, 1
s_lshl_b32 {e}, {e}, 10
s_lshr_b32 {d}, {FH}, 1
s_add_u32 {e}, {e}, {d}
s_lshl_b32 {d}, {T}, 1
s_add_u32 {e}, {e}, {d}
s_mul_i32 {e}, {e}, 1152
s_add_u32 {c}, {c}, {e}""" % (f2h(1.0 / 36), f2h(1.0 / 576)))
    def frag(kb):
        cur = ST + 8 * (kb & 1); prv = ST + 8 * ((kb + 1) & 1); f = FR + 4 * (kb & 1); q = []
        if kb < 2:
            for j in range(4): q += L("v_add_f32 v%d, %s, v4" % (cur + j, f2h(16.0 * kb + j)))
            for j in range(4): q += F("v_fma_f32 v%d, v%d, v5, {Q}\nv_mul_f32 v%d, v%d, v5" % (cur + 4 + j, cur + j, cur + j, cur + j))
            for j in range(8): q += L("v_cos_f32 v%d, v%d" % (cur + j, cur + j))
        else:
            for j in range(8): q += L("v_fma_f32 v%d, v10, v%d, -v%d" % (cur + j, prv + j, cur + j))
        if kb == 0:
            q += L("v_cndmask_b32 v%d, v%d, 0.5, vcc\nv_cndmask_b32 v%d, v%d, v11, vcc" % (f, cur, f + 2, cur + 4))
            q += L("v_cvt_pk_bf16_f32 v%d, v%d, v%d\nv_cvt_pk_bf16_f32 v%d, v%d, v%d" % (f, f, cur + 1, f + 2, f + 2, cur + 5))
            q += L("v_cvt_pk_bf16_f32 v%d, v%d, v%d\nv_cvt_pk_bf16_f32 v%d, v%d, v%d" % (f + 1, cur + 2, cur + 3, f + 3, cur + 6, cur + 7))
        else:
            for jp in range(4): q += L("v_cvt_pk_bf16_f32 v%d, v%d, v%d" % (f + jp, cur + 2 * jp, cur + 2 * jp + 1))
        return q
    def yrd(kb):
        r = YF + 8 * (kb & 1)
        return L("ds_read_b128 v[%d:%d], v3 offset:%d\nds_read_b128 v[%d:%d], v3 offset:%d" % (r, r + 3, kb * 2048, r + 4, r + 7, kb * 2048 + 1024), lds_r=(0, 36864))
    p += frag(0) + frag(1)
    p += stamp(1) + L("s_barrier", need_vm=("y",)) + stamp(2)
    p += yrd(0)
    for kb in range(18):
        if kb + 1 < 18: p += yrd(kb + 1)
        for h in range(2):
            acc = V(AC + 4 * h, 4)
            p.append(mf(acc, V(FR + 4 * (kb & 1), 4), V(YF + 8 * (kb & 1) + 4 * h, 4), acc if kb else None))
        if NPRE + kb < 16: p += pload(NPRE + kb)
        if kb + 2 < 18: p += frag(kb + 2)
    p += F("v_and_b32 v4, 31, v0\nv_mul_u32_u24 v4, %d, v4\nv_lshrrev_b32 v5, 5, v0\nv_lshl_add_u32 v4, v5, 4, v4" % (32 * 1152))
    sc_ = f2h(2.0 / (2048 * 576))
    p += stamp(3)
    p += L("v_mul_f32 v6, %s, v6\nv_mul_f32 v7, %s, v7" % (sc_, sc_))
    p += L("""v_lshrrev_b32 v12, 2, v1
v_cmp_eq_u32 vcc, v12, v2
v_and_b32 v13, 1, v1
v_lshlrev_b32 v13, 4, v13
v_mov_b32 v14, 0x3f80
v_lshlrev_b32 v13, v13, v14
v_cndmask_b32 v13, 0, v13, vcc
v_and_b32 v12, 2, v1
v_cmp_eq_u32 vcc, 0, v12
v_mov_b32 v%d, 0
v_mov_b32 v%d, 0
v_mov_b32 v%d, 0
v_mov_b32 v%d, 0
v_cndmask_b32 v%d, 0, v13, vcc
v_cndmask_b32 v%d, v13, 0, vcc""" % (SEL, SEL + 1, SEL + 4, SEL + 5, SEL + 2, SEL + 3))
    for r in range(8): p += L("v_mul_f32 v%d, v%d, v%d" % (AC + r, AC + r, 6 + (r >> 2)))
    for i in range(16):
        for h in range(2):
            acc = V(SM + 4 * h, 4)
            p.append(mf(acc, V(SEL + 2 - 2 * h, 4), V(PB + 4 * i, 4), acc if i else None))
    for r in range(8): p += L("v_fma_f32 v%d, v%d, v%d, v%d" % (SM + r, SM + r, 8 + (r >> 2), AC + r))
    for d in range(4): p += L("v_cvt_pk_bf16_f32 v%d, v%d, v%d" % (16 + d, SM + 2 * d, SM + 1 + 2 * d))
    p += L("v_permlane16_swap_b32 v16, v18\nv_permlane16_swap_b32 v17, v19")
    p += stamp(4)
    p += F("buffer_store_dwordx4 v[16:19], v4, {OUT}, {c} offen%s" % OPT.get('ofl', ""))
    if OPT.get('dbg') is not None:
        p += L("s_waitcnt vmcnt(0)") + stamp(31)
        p += F("s_or_b32 {a}, s2, {W}\ns_cmp_lg_u32 {a}, 0\ns_cbranch_scc1 L_end_KN\ns_load_dwordx2 s[70:71], s[0:1], 72\ns_waitcnt lgkmcnt(0)")
        p += srd(28, 70, 256)
        p += F("v_lshlrev_b32 v0, 2, v0\ns_mov_b32 {a}, 0x%x\nbuffer_load_dword v5, v0, {WS}, {a} offen\ns_waitcnt vmcnt(0)" % (STAMP_OFF + 2 * 262144 + OPT['dbg'] * 256 + OPT.get('dbgo', 0) * 4))
        if not OPT.get('raw'): p += F("v_readlane_b32 {a}, v60, 0\nv_readlane_b32 {b}, v60, 31\nv_readlane_b32 {c}, v5, 31\nv_readlane_b32 {d}, v5, 20\ns_nop 4\nv_writelane_b32 v5, {a}, 14\nv_writelane_b32 v5, {b}, 15\nv_writelane_b32 v5, {c}, 13\nv_writelane_b32 v5, {d}, 12")
        p += F("buffer_store_dword v5, v0, {DBG}, 0 offen")
        if OPT.get('lb') is not None:
            p += F("""v_readlane_b32 {a}, v5, %d
v_readlane_b32 {b}, v5, %d
s_nop 4
s_sub_u32 {a}, {b}, {a}
s_mul_i32 {a}, {a}, %d
s_lshr_b32 {a}, {a}, %d
s_min_u32 {a}, {a}, 200000
s_memrealtime s[4:5]
s_waitcnt lgkmcnt(0)
s_mov_b32 {b}, s4
L_leak_KN:
s_memrealtime s[4:5]
s_waitcnt lgkmcnt(0)
s_sub_u32 {c}, s4, {b}
s_cmp_lt_u32 {c}, {a}
s_cbranch_scc1 L_leak_KN""" % (OPT['la'], OPT['lb'], OPT.get('lm', 10), OPT.get('ls', 0)))
    else:
        p += stamp_out(3)
    emit(a, name, p, 128)

if __name__ == "__main__":
    for x in sys.argv[2:]:
        k, v = x.split("=")
        OPT[k] = int(v) if v.lstrip("-").isdigit() else v.replace("_", " ")
    a = Asm()
    kernel_main(a); kernel_reduce(a)
    open(sys.argv[1], "w").write(a.text())
```

```python
import sys, math, struct
from asmlib import *
from fw import *

WS_A = 0x000000
WS_B = 0x300000
WS_Y = 0x3000000
WS_G = 0x600000
WS_O = 0x602000
WS_P = 0x800000
WS_N = 0x610000
KB_STRIDE = 131072
MF = "v_mfma_f32_16x16x32_bf16"
def f2h(x): return "0x%08x" % struct.unpack("<I", struct.pack("<f", x))[0]
def mf(d, a, b, c, opt=False):
    return I("%s %s, %s, %s, %s" % (MF, rs(d), rs(a), rs(b), rs(c) if c else "0"), opt=opt)
def F(text, opt=False, tag=None, **env):
    e = dict(ENV); e.update(env)
    kw = {}
    for k in ("lds_r", "lds_w", "priv", "need_vm", "need_lgkm"):
        if k in env: kw[k] = env[k]
    return L(text.format(**e), opt=opt, tag=tag, **kw)

ENV = dict(X="s[8:11]", WG="s[12:15]", WU="s[16:19]", WD="s[20:23]", WS="s[24:27]", DBG="s[28:31]", WR="s[32:35]", WI="s[36:39]", GW="s[40:43]", OUT="s[44:47]",
           T="s79", C="s80", W="s81", W1K="s82", KB="s83", RG="s87", FH="s88", S2="s89", a="s84", b="s85", c="s86", d="s92", e="s93",
           Q="s94", KB3="s95", NL="s96", KB1="s97", GA="s98", GB="s99", SA="s100", SB="s101", ST="s90", SP="s91", u="s6", w="s7", ROT="s3")
S_KK, S_DK, S_XQ = 48, 66, 75
OPT = dict(stamps=False, BI=2, sc1p=True)
VST = [223]
def stamp(idx):
    if not OPT['stamps']: return []
    return L("s_memrealtime s[4:5]\ns_waitcnt lgkmcnt(0)\nv_writelane_b32 v%d, s4, %d\ns_memtime s[4:5]\ns_waitcnt lgkmcnt(0)\nv_writelane_b32 v%d, s4, %d" % (VST[0], idx, VST[0], 32 + idx))
def diag(n, idx):
    if OPT.get('diag', 0) != n: return []
    return L("s_waitcnt vmcnt(0)") + stamp(idx)
def stamp_out(kidx):
    if not OPT['stamps']: return []
    p = L("s_waitcnt vmcnt(0)") + stamp(31)
    p += F("s_cmp_lg_u32 {W}, 0\ns_cbranch_scc1 L_end_KN\ns_lshl_b32 s4, s2, 8\ns_add_u32 s4, s4, 0x%x\nv_lshlrev_b32 v0, 2, v0" % (STAMP_OFF + kidx * 262144))
    p += F("buffer_store_dword v%d, v0, {WS}, s4 offen" % VST[0])
    return p
def srd(d, b, n):
    return L("s_mov_b32 s%d, s%d\ns_and_b32 s%d, s%d, 0xffff\ns_mov_b32 s%d, 0x%x\ns_mov_b32 s%d, 0x20000" % (d, b, d + 1, b + 1, d + 2, n, d + 3))
def emit(a, name, prog, vg, accum=None):
    p = finish(prog)
    dr = OPT.get('drop', "")
    if 'd' in dr: p = [i for i in p if i.kind != 'dma']
    if 'b' in dr: p = [i for i in p if i.kind != 'bar']
    if 't' in dr: p = [i for i in p if not (i.kind == 'ds' and i.tag and i.tag.startswith('f'))]
    if 'v' in dr: p = [i for i in p if not getattr(i, 'silu', False)]
    if 's' in dr: p = [i for i in p if not (i.kind == 'vmem' and 's90' in i.text)]
    a.begin(name)
    for i in p: a(i.text.replace("KN", name))
    a("L_end_%s:\ns_endpgm" % name)
    a.end(name, vg, accum=accum)
    print(name, stats(p), file=sys.stderr)

def PL(): return (16384, 1024, 147456) if OPT.get('lay', 0) else (262144, 16384, 1024)
def WSP(): return OPT.get('wsp', WS_P)
def flat(t):
    o = []
    for x in t: o += x if isinstance(x, list) else [x]
    return o
def XF(mi, kk):
    n = kk * 4 + mi
    return A(4 * n, 4) if n < 64 else V(224 + 4 * (n - 64), 4)
def HF(mi, ks):
    n = ks * 8 + mi
    return XF(n & 3, n >> 2)
SET = [32, 64, 96, 128]
FB = 160
TMP = 196
V_DX, V_DW, V_DH, V_DD, V_RW, V_RX = 3, 4, 5, 6, 7, 13
V_HW, V_HH, V_L16, V_L16B, V_ST, V_SIL = 19, 20, 21, 22, 23, 24

def dma(vo, srdn, soff, pb, ioff, tag):
    assert pb - ioff >= 0
    m = F("s_add_u32 m0, {W1K}, %d" % (pb - ioff))[0]
    d = F("buffer_load_dwordx4 v%d, {%s}, s%d offen%s%s lds" % (vo, srdn, soff, (" offset:%d" % ioff) if ioff else "", OPT.get('xfl', "") if srdn == 'X' else OPT.get('wfl', "")), tag=tag, lds_w=(pb, pb + 4096))[0]
    return m, d

def gate_code(T):
    e = dict(va=T + 9, vo=T + 19, t0=T + 20, t1=T + 21, t2=T + 22, t3=T + 23)
    p = F("""v_lshrrev_b32 v{vo}, 5, v0
s_lshl_b32 {a}, {C}, 3
s_lshl_b32 {b}, {W}, 1
s_add_u32 {a}, {a}, {b}
v_add_u32 v{vo}, {a}, v{vo}
v_and_b32 v{t0}, 63, v{vo}
v_lshlrev_b32 v{t0}, 5, v{t0}
v_lshrrev_b32 v{t1}, 6, v{vo}
v_add_u32 v{t0}, v{t0}, v{t1}
s_lshl_b32 {a}, {T}, 1
v_add_u32 v{t0}, {a}, v{t0}
v_mul_u32_u24 v{t0}, 1152, v{t0}
v_and_b32 v{t1}, 31, v0
v_mul_u32_u24 v{t1}, 36, v{t1}
v_add_u32 v{t0}, v{t0}, v{t1}""", **e)
    for b_, ad, sr in ((T, "t0", "X"), (T + 10, "t1", "GW")):
        p += F("buffer_load_dwordx4 v[%d:%d], v{%s}, {%s}, 0 offen\nbuffer_load_dwordx4 v[%d:%d], v{%s}, {%s}, 0 offen offset:16\nbuffer_load_dword v%d, v{%s}, {%s}, 0 offen offset:32"
               % (b_, b_ + 3, ad, sr, b_ + 4, b_ + 7, ad, sr, b_ + 8, ad, sr), **e)
    q = []
    for n in range(9):
        q += F("""v_lshlrev_b32 v{t0}, 16, v{x}
v_lshlrev_b32 v{t1}, 16, v{g}
v_and_b32 v{t2}, 0xffff0000, v{x}
v_and_b32 v{t3}, 0xffff0000, v{g}
v_mul_f32 v{t0}, v{t0}, v{t1}
v_mul_f32 v{t2}, v{t2}, v{t3}
v_cvt_pk_bf16_f32 v{t0}, v{t0}, v{t2}
v_lshlrev_b32 v{t1}, 16, v{t0}
v_and_b32 v{t0}, 0xffff0000, v{t0}""", x=T + n, g=T + 10 + n, **e)
        q += F("v_add_f32 v{va}, v{t1}, v{t0}" if n == 0 else "v_add_f32 v{va}, v{va}, v{t1}\nv_add_f32 v{va}, v{va}, v{t0}", **e)
    for sh in (8, 4, 2, 1):
        q += F("v_add_f32_dpp v{va}, v{va}, v{va} row_ror:%d row_mask:0xf bank_mask:0xf" % sh, **e)
    q += F("""v_mov_b32 v{t0}, v{va}
v_and_b32 v{t1}, 31, v0
v_cmp_eq_u32 vcc, 0, v{t1}
v_permlane16_swap_b32 v{va}, v{t0}
v_add_f32 v{va}, v{va}, v{t0}
v_cvt_pk_bf16_f32 v{va}, v{va}, v{va}
v_lshlrev_b32 v{va}, 16, v{va}
v_mul_f32 v{va}, {NL}, v{va}
v_exp_f32 v{va}, v{va}
v_lshlrev_b32 v{vo}, 2, v{vo}
v_add_f32 v{va}, 1.0, v{va}
v_rcp_f32 v{va}, v{va}
v_bfrev_b32 v{t1}, 1
v_cvt_pk_bf16_f32 v{va}, v{va}, v{va}
v_lshlrev_b32 v{va}, 16, v{va}
v_sub_f32 v{t0}, 1.0, v{va}
v_cvt_pk_bf16_f32 v{t0}, v{t0}, v{t0}
v_lshlrev_b32 v{t0}, 16, v{t0}
v_cndmask_b32 v{vo}, v{t1}, v{vo}, vcc
s_lshl_b32 {u}, {T}, 9
s_add_u32 {u}, {u}, %d
s_add_u32 {w}, {u}, %d""" % (WS_G, WS_O - WS_G), **e)
    q += F("buffer_store_dword v{va}, v{vo}, {WS}, {u} offen sc1\nbuffer_store_dword v{t0}, v{vo}, {WS}, {w} offen sc1", tag="pub1", **e)
    return p, q

def t_setup(P, kb, opt=False):
    e = dict(vk=P, vphi=P + 1, vco=P + 2, vd=P + 3, vmu=P + 4, vsg=P + 5, t=P + 6, kb=kb)
    return F("""v_lshrrev_b32 v{vk}, 2, v1
v_lshlrev_b32 v{vk}, 1, v{vk}
v_and_b32 v{t}, 1, v1
v_add_u32 v{vk}, v{vk}, v{t}
v_lshlrev_b32 v{vsg}, 31, v{t}
v_or_b32 v{vsg}, 1.0, v{vsg}
s_lshl_b32 {a}, {kb}, 4
s_lshl_b32 {b}, {FH}, 3
s_add_u32 {a}, {a}, {b}
v_add_u32 v{vk}, {a}, v{vk}
v_bfe_u32 v{vphi}, v1, 1, 1
v_cvt_f32_u32 v{vphi}, v{vphi}
v_mul_f32 v{vphi}, 0x3e800000, v{vphi}
v_add_u32 v{t}, {a}, v1
v_cmp_eq_u32 vcc, 2, v{t}
v_mov_b32 v{t}, 0x120
v_lshlrev_b32 v{vd}, 3, v2
v_cndmask_b32 v{vk}, v{vk}, v{t}, vcc
v_cndmask_b32 v{vphi}, v{vphi}, 0, vcc
v_mul_u32_u24 v{t}, {ROT}, v{vk}
v_mul_u32_u24 v{vco}, 7282, v{t}
v_lshrrev_b32 v{vco}, 16, v{vco}
v_mul_u32_u24 v{vco}, 9, v{vco}
v_sub_u32 v{t}, v{t}, v{vco}
v_cvt_f32_u32 v{t}, v{t}
v_fmac_f32 v{vphi}, 0x3de38e39, v{t}
v_cvt_f32_u32 v{vk}, v{vk}
v_mul_f32 v{vco}, %s, v{vk}
v_mul_f32 v{vk}, %s, v{vk}
v_cos_f32 v{vco}, v{vco}
v_add_u32 v{t}, {a}, v2
v_cmp_eq_u32 vcc, 0, v{t}
v_cvt_f32_u32 v{vd}, v{vd}
v_add_f32 v{vco}, v{vco}, v{vco}
v_cndmask_b32 v{vmu}, 1.0, 0, vcc""" % (f2h(1.0 / 18), f2h(1.0 / 576)), opt=opt, **e)

def t_frag(kk, f, ST, P, opt=False):
    cur = ST + 8 * (kk & 1); prv = ST + 8 * ((kk + 1) & 1); ops = []
    if kk < 2:
        for j in range(8): ops += L("v_add_f32 v%d, %s, v%d" % (cur + j, f2h(32.0 * kk + j), P + 3), opt=opt)
        for j in range(8): ops += L("v_fma_f32 v%d, v%d, v%d, v%d" % (cur + j, cur + j, P, P + 1), opt=opt)
        for j in range(8): ops += L("v_cos_f32 v%d, v%d" % (cur + j, cur + j), opt=opt)
    else:
        for j in range(8): ops += L("v_fma_f32 v%d, v%d, v%d, -v%d" % (cur + j, P + 2, prv + j, cur + j), opt=opt)
    for jp in range(4): ops += L("v_cvt_pk_bf16_f32 v%d, v%d, v%d" % (f + jp, cur + 2 * jp, cur + 2 * jp + 1), opt=opt)
    return ops

def twiddle_A(TW, T):
    vs, vj, p0, p1, c0, c1 = T, T + 4, T + 5, T + 6, T + 7, T + 8
    p = F("v_lshlrev_b32 v{vs}, 7, v2\nv_add_u32 v{vs}, {S2}, v{vs}\nv_cvt_f32_u32 v{vs}, v{vs}", vs=vs)
    for j in range(1, 4): p += L("v_add_f32 v%d, %s, v%d" % (vs + j, f2h(32.0 * j), vs))
    for a in range(4):
        p += L("v_lshl_add_u32 v%d, v1, 2, %d\nv_cvt_f32_u32 v%d, v%d\nv_mul_f32 v%d, %s, v%d" % (vj, a, vj, vj, vj, f2h(1.0 / 2048), vj))
        b = TW(a)
        for jp in range(2):
            p += L("""v_mul_f32 v%d, v%d, v%d
v_mul_f32 v%d, v%d, v%d
v_cos_f32 v%d, v%d
v_cos_f32 v%d, v%d
v_sin_f32 v%d, v%d
v_sin_f32 v%d, v%d
v_cvt_pk_bf16_f32 v%d, v%d, v%d
v_cvt_pk_bf16_f32 v%d, v%d, v%d""" % (p0, vs + 2 * jp, vj, p1, vs + 2 * jp + 1, vj, c0, p0, c1, p1, p0, p0, p1, p1, b + jp, c0, c1, b + 4 + jp, p0, p1))
            C = "v%d, v%d" % (c0, c1); nC = "-v%d, -v%d" % (c0, c1); Sn = "v%d, v%d" % (p0, p1); nS = "-v%d, -v%d" % (p0, p1)
            cc, ss = [(C, Sn), (nS, C), (nC, nS), (Sn, nC)][a]
            p += L("v_cvt_pk_bf16_f32 v%d, %s\nv_cvt_pk_bf16_f32 v%d, %s" % (b + 2 + jp, cc, b + 6 + jp, ss))
    return p

def step_A(ACC, TW, DF, P, kb, stg, fill=None, opt=False):
    k = dict(opt=opt)
    fill = fill or (lambda n: [])
    t0, t1, va, vb = DF + 8, DF + 9, DF + 10, DF + 11
    e = dict(va=va, vb=vb, t0=t0, kb=kb, L16=V_L16)
    p = F("""s_mul_i32 {a}, {RG}, 4352
s_lshl_b32 {b}, {FH}, 4
s_add_u32 {a}, {a}, {b}
s_add_u32 {a}, {a}, %d
v_mul_u32_u24 v{va}, 272, v1
v_lshl_add_u32 v{va}, v2, 2, v{va}
v_add_u32 v{va}, {a}, v{va}
s_mul_i32 {a}, {W}, 2176
s_add_u32 {a}, {a}, %d
v_lshl_add_u32 v{vb}, v2, 4, v{L16}
v_add_u32 v{vb}, {a}, v{vb}
s_lshl_b32 {c}, {W}, 11
s_lshl_b32 {a}, {T}, 13
s_lshl_b32 {b}, {kb}, 17
s_add_u32 {b}, {b}, {a}
s_add_u32 {b}, {b}, {c}""" % (stg, stg), **k, **e)
    for i in range(16): p += L("v_fma_f32 v%d, v%d, v%d, v%d" % (ACC + i, P + 5, ACC + 16 + i, ACC + i), **k)
    for i in range(8):
        p += L("v_add_f32 v%d, v%d, v%d\nv_sub_f32 v%d, v%d, v%d" % (ACC + 16 + i, ACC + i, ACC + 8 + i, ACC + 24 + i, ACC + i, ACC + 8 + i), **k)
    for i in range(8): p += L("v_cvt_pk_bf16_f32 v%d, v%d, v%d" % (DF + i, ACC + 16 + 2 * i, ACC + 17 + 2 * i), **k)
    T1, T2 = ACC, ACC + 16
    for a in range(4):
        for cs, D in ((0, T1), (1, T2)):
            p.append(mf(V(D + 4 * a, 4), V(DF + 4 * (a & 1), 4), V(TW(a) + 4 * cs, 4), None, opt))
            p += fill(2)
    rng = (stg, stg + 8704)
    for a in range(4):
        x, y = T1 + 4 * a, T2 + 4 * a
        p += L("""v_fma_f32 v%d, v%d, v%d, v%d
v_add_f32 v%d, v%d, v%d
v_cvt_pk_bf16_f32 v%d, v%d, v%d
v_fma_f32 v%d, v%d, v%d, -v%d
v_sub_f32 v%d, v%d, v%d
v_cvt_pk_bf16_f32 v%d, v%d, v%d""" % (t0, P + 4, y + 2, x, t1, x + 1, y + 3, DF + 2 * a, t0, t1, t0, P + 4, x + 2, y, t1, x + 3, y + 1, DF + 2 * a + 1, t0, t1), **k)
        p += L("ds_write2_b32 v%d, v%d, v%d offset0:%d offset1:%d" % (va, DF + 2 * a, DF + 2 * a + 1, 16 * a, 16 * a + 8), lds_w=rng, tag="sa", **k)
    if not opt:
        p += F("s_or_b32 {c}, {kb}, {FH}\ns_cmp_lg_u32 {c}, 0\ns_cbranch_scc1 L_ny_KN", kb=kb)
        o = "ny"
        q = F("""s_lshl_b32 {a}, {S2}, 12
s_add_u32 {a}, {a}, %d
v_bfe_u32 v{va}, v1, 2, 1
v_lshlrev_b32 v{va}, 6, v{va}
v_lshrrev_b32 v{t0}, 3, v1
v_lshl_add_u32 v{va}, v{t0}, 17, v{va}
v_and_b32 v{t0}, 3, v1
v_lshl_add_u32 v{va}, v{t0}, 2, v{va}
v_lshl_add_u32 v{va}, v2, 28, v{va}""" % (18 * KB_STRIDE), opt=o, va=va, t0=t0)
        for par in range(2):
            q += L("v_cvt_pk_bf16_f32 v%d, v%d, v%d\nv_cvt_pk_bf16_f32 v%d, -v%d, -v%d"
                   % (T1 + par, T1 + 4 * par + 2, T1 + 4 * par + 10, T2 + par, T2 + 4 * par + 2, T2 + 4 * par + 10), opt=o)
        for par in range(2):
            q += F("buffer_store_dword v%d, v{va}, {WS}, {a} offen offset:%d sc1\nbuffer_store_dword v%d, v{va}, {WS}, {a} offen offset:%d sc1"
                   % (T1 + par, par * 16, T2 + par, 32 + par * 16), opt=o, tag="pub1", va=va)
        p += q + L("L_ny_KN:")
    p += L("s_barrier", need_lgkm=("sa",), **k)
    p += L("ds_read_b128 v[%d:%d], v%d\nds_read_b128 v[%d:%d], v%d offset:1088" % (DF, DF + 3, vb, DF + 4, DF + 7, vb), lds_r=rng, tag="lds", **k)
    p += fill(16)
    p += F("buffer_store_dwordx4 v[%d:%d], v{L16}, {WS}, {b} offen sc1\nbuffer_store_dwordx4 v[%d:%d], v{L16}, {WS}, {b} offen offset:1024 sc1"
           % (DF, DF + 3, DF + 4, DF + 7), tag="pub1", **k, **e)
    return p

def dft32(M, T, opt):
    vi, vg, p0, p1, c0, c1 = T, T + 1, T + 2, T + 3, T + 4, T + 5
    k = dict(opt=opt)
    p = L("v_cvt_f32_u32 v%d, v1\nv_lshlrev_b32 v%d, 2, v2\nv_mul_f32 v%d, %s, v%d\nv_cvt_f32_u32 v%d, v%d" % (vi, vg, vi, f2h(1.0 / 32), vi, vg, vg), **k)
    for jp in range(2):
        p += L("""v_add_f32 v%d, %s, v%d
v_add_f32 v%d, %s, v%d
v_mul_f32 v%d, v%d, v%d
v_mul_f32 v%d, v%d, v%d
v_cos_f32 v%d, v%d
v_cos_f32 v%d, v%d
v_sin_f32 v%d, v%d
v_sin_f32 v%d, v%d
v_cvt_pk_bf16_f32 v%d, v%d, v%d
v_cvt_pk_bf16_f32 v%d, v%d, v%d""" % (p0, f2h(2.0 * jp), vg, p1, f2h(2.0 * jp + 1), vg, p0, p0, vi, p1, p1, vi, c0, p0, c1, p1, p0, p0, p1, p1, M + jp, c0, c1, M + 4 + jp, p0, p1), **k)
    p += L("v_and_b32 v%d, 1, v1\nv_mul_u32_u24 v%d, 0x8000, v%d\nv_lshl_add_u32 v%d, v%d, 16, v%d" % (vi, vi, vi, vi, vi, vi), **k)
    for b in (M, M + 4):
        for jp in range(2): p += L("v_xor_b32 v%d, v%d, v%d" % (b + 2 + jp, vi, b + jp), **k)
    for d in range(4):
        p += L("v_xor_b32 v%d, 0x80008000, v%d\nv_xor_b32 v%d, 0x80000000, v%d\nv_xor_b32 v%d, 0x80000000, v%d\nv_xor_b32 v%d, 0x8000, v%d"
               % (M + 8 + d, M + 4 + d, M + 12 + d, M + d, M + 16 + d, M + 4 + d, M + 20 + d, M + 4 + d), **k)
    return p

def nyw_load(T, o):
    return F("""s_lshl_b32 {a}, {T}, 7
s_lshl_b32 {b}, {FH}, 6
s_add_u32 {a}, {a}, {b}
v_add_u32 v{j}, {a}, v0
v_mul_u32_u24 v{r}, 578, v{j}
s_cmp_eq_u32 {RG}, 0
s_cselect_b32 s44, s32, s36
s_cselect_b32 s45, s33, s37
s_mov_b32 s46, %d
s_mov_b32 s47, 0x20000
buffer_load_ushort v{r}, v{r}, s[44:47], 0 offen offset:576""" % (2048 * 578), opt=o, j=T, r=T + 1)
def nyw_store(T, o):
    return F("""s_lshl_b32 {a}, {RG}, 12
s_lshl_b32 {b}, {T}, 8
s_add_u32 {a}, {a}, {b}
s_lshl_b32 {b}, {FH}, 7
s_add_u32 {a}, {a}, {b}
s_add_u32 {a}, {a}, %d
v_and_b32 v{j}, 14, v0
v_and_b32 v{t}, 1, v0
v_lshl_add_u32 v{j}, v{t}, 4, v{j}
v_and_b32 v{t}, 1, v2
v_lshl_add_u32 v{j}, v{t}, 6, v{j}
v_lshrrev_b32 v{t}, 1, v2
v_lshl_add_u32 v{j}, v{t}, 5, v{j}""" % WS_N, opt=o, j=T, t=T + 2) + F("buffer_store_short v%d, v%d, {WS}, {a} offen sc1" % (T + 1, T), opt=o, tag="pub1")

def s2_wloads(gam, Wr, T, opt, special):
    e = dict(gam=gam, vw=T, t0=T + 1)
    if special:
        p = F("""s_lshl_b32 {a}, {RG}, 12
s_lshl_b32 {b}, {FH}, 6
s_add_u32 {a}, {a}, {b}
s_add_u32 {a}, {a}, %d
v_lshrrev_b32 v{vw}, 2, v0
v_lshlrev_b32 v{vw}, 7, v{vw}
v_and_b32 v{t0}, 3, v0
v_lshl_add_u32 v{vw}, v{t0}, 4, v{vw}
buffer_load_dwordx4 v[%d:%d], v{vw}, {WS}, {a} offen sc1
buffer_load_dwordx4 v[%d:%d], v{vw}, {WS}, {a} offen offset:2048 sc1""" % (WS_N, Wr, Wr + 3, Wr + 4, Wr + 7), opt=opt, **e)
        return p
    fl = OPT.get('s2fl', "")
    return F("""s_and_b32 {b}, {gam}, 31
s_lshl_b32 {b}, {b}, 1
s_add_u32 {b}, {b}, {FH}
s_mul_i32 {b}, {b}, 578
s_lshr_b32 {a}, {gam}, 5
s_lshl_b32 {a}, {a}, 6
s_add_u32 {a}, {a}, {b}
s_add_u32 {b}, {a}, %d
s_cmp_eq_u32 {RG}, 0
s_cselect_b32 s44, s32, s36
s_cselect_b32 s45, s33, s37
s_mov_b32 s46, %d
s_mov_b32 s47, 0x20000
v_lshrrev_b32 v{vw}, 2, v0
v_mul_u32_u24 v{vw}, 36992, v{vw}
v_and_b32 v{t0}, 3, v0
v_lshl_add_u32 v{vw}, v{t0}, 4, v{vw}
buffer_load_dwordx4 v[%d:%d], v{vw}, s[44:47], {a} offen%s
buffer_load_dwordx4 v[%d:%d], v{vw}, s[44:47], {b} offen%s""" % (16 * 36992, 2048 * 578, Wr, Wr + 3, fl, Wr + 4, Wr + 7, fl), opt=opt, **e)

def s2_gaddr(va, t0, opt):
    return F("v_lshrrev_b32 v{va}, 3, v0\nv_lshlrev_b32 v{va}, 12, v{va}\nv_and_b32 v{t0}, 7, v0\nv_lshl_add_u32 v{va}, v{t0}, 4, v{va}", opt=opt, va=va, t0=t0)
def s2_dloads(gam, keep, D, T, opt):
    p = s2_gaddr(T, T + 1, opt)
    p += F("""s_lshr_b32 {a}, {gam}, 5
s_lshl_b32 {a}, {a}, 1
s_add_u32 {a}, {a}, {RG}
s_lshl_b32 {keep}, {a}, 17
s_and_b32 {b}, {gam}, 31
s_lshl_b32 {b}, {b}, 7
s_add_u32 {keep}, {keep}, {b}
s_lshl_b32 {b}, {FH}, 16
s_add_u32 {keep}, {keep}, {b}
s_add_u32 {c}, {keep}, 0x8000
buffer_load_dwordx4 v[%d:%d], v%d, {WS}, {keep} offen sc1
buffer_load_dwordx4 v[%d:%d], v%d, {WS}, {c} offen sc1""" % (D, D + 3, T, D + 4, D + 7, T), opt=opt, keep=keep, gam=gam)
    return p

def s2_addr(T, lds_base, opt):
    e = dict(vl=T, vr=T + 1, vw=T + 2, vo=T + 3, vp=T + 4, vb=T + 5, t0=T + 7, L16=V_L16)
    return F("""s_lshl_b32 {a}, {W}, 11
s_add_u32 {a}, {a}, %d
v_add_u32 v{vl}, {a}, v{L16}
v_lshrrev_b32 v{t0}, 3, v0
v_lshlrev_b32 v{t0}, 4, v{t0}
v_xor_b32 v{vb}, v{vl}, v{t0}
v_lshrrev_b32 v{vr}, 2, v1
v_lshl_add_u32 v{vr}, v2, 2, v{vr}
v_lshlrev_b32 v{vw}, 6, v{vr}
v_lshlrev_b32 v{vr}, 7, v{vr}
v_and_b32 v{t0}, 3, v1
v_lshl_add_u32 v{vr}, v{t0}, 3, v{vr}
v_lshl_add_u32 v{vw}, v{t0}, 3, v{vw}
s_lshl_b32 {a}, {RG}, 12
s_lshl_b32 {b}, {FH}, 6
s_add_u32 {a}, {a}, {b}
s_add_u32 {a}, {a}, %d
v_add_u32 v{vr}, {a}, v{vr}
v_lshlrev_b32 v{vo}, 7, v1
v_lshl_add_u32 v{vo}, v2, 3, v{vo}
v_add_u32 v{vo}, {a}, v{vo}
v_and_b32 v{t0}, 7, v1
v_lshlrev_b32 v{t0}, 4, v{t0}
v_xor_b32 v{vo}, v{vo}, v{t0}
v_xor_b32 v{vp}, 32, v{vo}
s_lshl_b32 {a}, {FH}, 11
s_lshl_b32 {b}, {RG}, 5
s_add_u32 {a}, {a}, {b}
s_add_u32 {a}, {a}, %d
v_add_u32 v{vw}, {a}, v{vw}""" % (lds_base, lds_base, lds_base + 8192), opt=opt, **e) + s2_gaddr(T + 6, T + 7, opt)

def s2_compute(keep, M, D, Z, Wr, T, X, lds_base, opt):
    e = dict(keep=keep, vl=T, vr=T + 1, vw=T + 2, vb=T + 5, va=T + 6, t0=X, t1=X + 1, t2=X + 2, t3=X + 3)
    k = dict(opt=opt)
    rng = (lds_base, lds_base + 16384); rn2 = (lds_base + 16384, lds_base + 24576)
    q = F("ds_write_b128 v{vl}, v[%d:%d]\nds_write_b128 v{vl}, v[%d:%d] offset:1024\nds_write_b128 v{vl}, v[%d:%d] offset:8192\nds_write_b128 v{vl}, v[%d:%d] offset:9216"
          % (D, D + 3, D + 4, D + 7, Wr, Wr + 3, Wr + 4, Wr + 7), lds_w=rng, tag="s2", **k, **e)
    q += F("s_add_u32 {a}, {keep}, %d\ns_add_u32 {b}, {a}, 0x8000" % WS_B, **k, **e)
    q += L("s_barrier", need_lgkm=("s2",), **k)
    for pl in range(2):
        q += F("ds_read_b64_tr_b16 v[%d:%d], v{vr} offset:%d\nds_read_b64_tr_b16 v[%d:%d], v{vr} offset:%d"
               % (D + 4 * pl, D + 4 * pl + 1, pl * 32, D + 4 * pl + 2, D + 4 * pl + 3, pl * 32 + 2048), lds_r=rng, tag="lds", **k, **e)
    for pl in range(2):
        q += F("ds_read_b64_tr_b16 v[%d:%d], v{vw} offset:%d\nds_read_b64_tr_b16 v[%d:%d], v{vw} offset:%d"
               % (Wr + 4 * pl, Wr + 4 * pl + 1, pl * 4096, Wr + 4 * pl + 2, Wr + 4 * pl + 3, pl * 4096 + 1024), lds_r=rng, tag="lds", **k, **e)
    C = lambda a: V(M + (a * 3) * 4, 4)
    Sn = lambda a: V(M + (a * 3 + 1) * 4, 4)
    N = lambda a: V(M + (a * 3 + 2) * 4, 4)
    Ar, Ai = V(D, 4), V(D + 4, 4)
    for aa in range(2):
        zr, zi = V(Z + 4 * aa, 4), V(Z + 8 + 4 * aa, 4)
        q += [mf(zr, C(aa), Ar, None, opt), mf(zr, Sn(aa), Ai, zr, opt), mf(zi, C(aa), Ai, None, opt), mf(zi, N(aa), Ar, zi, opt)]
    for i in range(8):
        un = "v_lshlrev_b32 v{t2}, 16, v{wr}\nv_lshlrev_b32 v{t3}, 16, v{wi}\n" if i % 2 == 0 else "v_and_b32 v{t2}, 0xffff0000, v{wr}\nv_and_b32 v{t3}, 0xffff0000, v{wi}\n"
        q += F(un + """v_mul_f32 v{t0}, v{zi}, v{t3}
v_mul_f32 v{t1}, v{zr}, v{t3}
v_fma_f32 v{zr}, v{zr}, v{t2}, -v{t0}
v_fma_f32 v{zi}, v{zi}, v{t2}, v{t1}""", zr=Z + i, zi=Z + 8 + i, wr=Wr + i // 2, wi=Wr + 4 + i // 2, **k, **e)
    for pl in range(2):
        for d in range(4): q += L("v_cvt_pk_bf16_f32 v%d, v%d, v%d" % (D + 4 * pl + d, Z + 8 * pl + 2 * d, Z + 8 * pl + 2 * d + 1), **k)
    for aa in range(2):
        br = V(Z + 4 * aa, 4)
        q += [mf(br, Ar, C(aa), None, opt), mf(br, Ai, N(aa), br, opt)]
    for aa in range(2):
        bi = V(Z + 8 + 4 * aa, 4)
        q += [mf(bi, Ai, C(aa), None, opt), mf(bi, Ar, Sn(aa), bi, opt)]
    for pl in range(2):
        for aa in range(2):
            r = Wr + 4 * pl + 2 * aa; z = Z + 8 * pl + 4 * aa
            q += L("v_cvt_pk_bf16_f32 v%d, v%d, v%d\nv_cvt_pk_bf16_f32 v%d, v%d, v%d" % (r, z, z + 1, r + 1, z + 2, z + 3), **k)
            q += L("ds_write_b64 v%d, v[%d:%d] offset:%d" % (T + 3 + pl, r, r + 1, 16384 + aa * 2048), lds_w=rn2, tag="s2", **k)
    q += L("s_barrier", need_lgkm=("s2", "lds"), **k)
    q += F("ds_read_b128 v[%d:%d], v{vb} offset:16384\nds_read_b128 v[%d:%d], v{vb} offset:17408" % (D, D + 3, D + 4, D + 7), lds_r=rn2, tag="lds", **k, **e)
    q += F("buffer_store_dwordx4 v[%d:%d], v{va}, {WS}, {a} offen sc1\nbuffer_store_dwordx4 v[%d:%d], v{va}, {WS}, {b} offen sc1"
           % (D, D + 3, D + 4, D + 7), tag="pub2", **k, **e)
    return q

def twiddle_D(TW, T):
    vs, vj, vk, c0, c1, s0, s1 = T, T + 1, T + 2, T + 3, T + 4, T + 5, T + 6
    p = F("""s_lshl_b32 {u}, {FH}, 9
s_add_u32 {u}, {u}, {S2}
v_lshlrev_b32 v{vs}, 5, v1
v_add_u32 v{vs}, {u}, v{vs}
v_cvt_f32_u32 v{vs}, v{vs}
v_mul_f32 v{vs}, %s, v{vs}
v_lshlrev_b32 v{vj}, 4, v2
v_cvt_f32_u32 v{vj}, v{vj}
v_add_f32 v{vk}, v{vs}, v{vs}
v_cos_f32 v{vk}, v{vk}""" % f2h(1.0 / 2048), vs=vs, vj=vj, vk=vk)
    for par in range(2):
        p += L("""v_add_f32 v%d, %s, v%d
v_add_f32 v%d, %s, v%d
v_mul_f32 v%d, v%d, v%d
v_mul_f32 v%d, v%d, v%d
v_cos_f32 v%d, v%d
v_cos_f32 v%d, v%d
v_sin_f32 v%d, v%d
v_sin_f32 v%d, v%d""" % (s0, f2h(float(par)), vj, s1, f2h(par + 2.0), vj, s0, s0, vs, s1, s1, vs, c0, s0, c1, s1, s0, s0, s1, s1))
        if par == 0: p += L("v_add_f32 v%d, v%d, v%d" % (vk, vk, vk))
        for jp in range(4):
            if jp:
                p += L("v_fma_f32 v%d, v%d, v%d, -v%d\nv_fma_f32 v%d, v%d, v%d, -v%d\nv_fma_f32 v%d, v%d, v%d, -v%d\nv_fma_f32 v%d, v%d, v%d, -v%d"
                       % (c0, vk, c1, c0, s0, vk, s1, s0, c1, vk, c0, c1, s1, vk, s0, s1))
            p += L("v_cvt_pk_bf16_f32 v%d, v%d, v%d\nv_cvt_pk_bf16_f32 v%d, v%d, v%d" % (TW + par * 8 + jp, c0, c1, TW + par * 8 + 4 + jp, s0, s1))
    return p

def stepD_loads(kb, RAW, opt=False):
    p = F("s_lshl_b32 {a}, {S2}, 12\ns_add_u32 {a}, {a}, %d\ns_lshl_b32 {b}, {kb}, 17\ns_add_u32 {b}, {b}, {a}" % WS_B, kb=kb, opt=opt)
    for i in range(4):
        p += F("buffer_load_dwordx4 v[%d:%d], v%d, {WS}, {b} offen offset:%d sc1" % (RAW + 4 * i, RAW + 4 * i + 3, V_L16, i * 1024), opt=opt)
    return p
def stepD_nyloads(NY, T, opt):
    p = F("s_add_u32 {a}, {a}, %d\nv_and_b32 v{t}, 1, v2\nv_lshlrev_b32 v{t}, 6, v{t}\nv_lshrrev_b32 v{n}, 1, v2\nv_lshl_add_u32 v{t}, v{n}, 17, v{t}" % (18 * KB_STRIDE), opt=opt, t=T, n=NY)
    for par in range(2):
        for pl in range(2):
            r = NY + (par * 2 + pl) * 4
            p += F("buffer_load_dwordx4 v[%d:%d], v%d, {WS}, {a} offen offset:%d sc1" % (r, r + 3, T, pl * 32 + par * 16), opt=opt)
    return p

def stepD_parts(RAW, NY, NB, TW, ACC, T, stage_base, kb, so, opt=False):
    k = dict(opt=opt)
    e = dict(vl=T, vr=T + 1, t0=T + 2, so=so, kb=kb)
    rng = (stage_base, stage_base + 16384)
    p = F("s_lshl_b32 {so}, {W}, 12\ns_add_u32 {so}, {so}, %d\nv_add_u32 v{vl}, {so}, v%d" % (stage_base, V_L16), **k, **e)
    p += F("""v_lshrrev_b32 v{vr}, 2, v1
v_lshl_add_u32 v{vr}, v2, 3, v{vr}
v_lshlrev_b32 v{vr}, 7, v{vr}
v_and_b32 v{t0}, 3, v1
v_lshl_add_u32 v{vr}, v{t0}, 3, v{vr}
v_add_u32 v{vr}, {so}, v{vr}""", **k, **e)
    for i in range(4):
        p += F("ds_write_b128 v{vl}, v[%d:%d] offset:%d" % (RAW + 4 * i, RAW + 4 * i + 3, i * 1024), lds_w=rng, priv=True, tag="lds", **k, **e)
    for par in range(2):
        for pl in range(2):
            r = RAW + (par * 2 + pl) * 4; o = par * 64 + pl * 32
            p += F("ds_read_b64_tr_b16 v[%d:%d], v{vr} offset:%d\nds_read_b64_tr_b16 v[%d:%d], v{vr} offset:%d" % (r, r + 1, o, r + 2, r + 3, o + 512),
                   lds_r=rng, priv=True, tag="lds", **k, **e)
    p += F("s_mul_i32 {so}, {T}, 18\ns_add_u32 {so}, {so}, {kb}\ns_lshl_b32 {so}, {so}, 1\ns_add_u32 {so}, {so}, {RG}\ns_lshl_b32 {so}, {so}, 2\ns_add_u32 {so}, {so}, {FH}\ns_lshl_b32 {so}, {so}, 10\ns_add_u32 {so}, {so}, %d" % WS_Y, **k, **e)
    ng = []
    for par in range(2):
        for d in range(4): ng += L("v_xor_b32 v%d, 0x80008000, v%d" % (NB + 4 * par + d, RAW + par * 8 + 4 + d), **k)
    mr = []
    for par in range(2):
        er = V(ACC + 8 * par, 4)
        mr += [mf(er, V(RAW + 8 * par, 4), V(TW + 8 * par, 4), None, opt), mf(er, V(NB + 4 * par, 4), V(TW + 8 * par + 4, 4), er, opt)]
    pt = []
    if not opt:
        pt = F("s_cmp_lg_u32 {C}, 0\ns_cbranch_scc1 L_nyd_KN") + L("v_cmp_eq_u32 vcc, 0, v1", opt="nyd")
        for par in range(2):
            for d in range(4):
                br, bi, nr, ni = RAW + 8 * par + d, RAW + 8 * par + 4 + d, NY + 8 * par + d, NY + 8 * par + 4 + d
                pt += L("v_xor_b32 v%d, 0x80008000, v%d\nv_cndmask_b32 v%d, v%d, v%d, vcc\nv_cndmask_b32 v%d, v%d, v%d, vcc" % (ni, ni, bi, bi, nr, br, br, ni), opt="nyd")
        pt += L("L_nyd_KN:")
    mi_ = []
    for par in range(2):
        ei = V(ACC + 8 * par + 4, 4)
        mi_ += [mf(ei, V(RAW + 8 * par + 4, 4), V(TW + 8 * par, 4), None, opt), mf(ei, V(RAW + 8 * par, 4), V(TW + 8 * par + 4, 4), ei, opt)]
    f = []
    for r in range(8):
        f += L("v_add_f32 v%d, v%d, v%d\nv_sub_f32 v%d, v%d, v%d" % (RAW + r, ACC + r, ACC + 8 + r, RAW + 8 + r, ACC + r, ACC + 8 + r), **k)
    for u in range(2):
        for d in range(4): f += L("v_cvt_pk_bf16_f32 v%d, v%d, v%d" % (RAW + 8 * u + d, RAW + 8 * u + 2 * d, RAW + 8 * u + 2 * d + 1), **k)
        f += F("buffer_store_dwordx4 v[%d:%d], v%d, {WS}, {so} offen offset:%d sc1" % (RAW + 8 * u, RAW + 8 * u + 3, V_L16, u * 2048), **k, **e)
    return p, ng, mr, pt, mi_, f

def lanes(v, init, vals, o):
    p = L("v_mov_b32 v%d, %s" % (v, init), opt=o)
    for i, s in enumerate(vals): p += F("v_writelane_b32 v%d, %s, %d" % (v, s, i), opt=o)
    return p
def w0(name, body):
    return F("s_cmp_lg_u32 {W}, 0\ns_cbranch_scc1 L_%s_KN" % name) + body + L("L_%s_KN:" % name)
def arrive(name, calc, VA):
    o = name
    b = F(calc, opt=o) + lanes(VA, "0x1000", ["{a}", "{b}", "{c}"], o) + L("v_mov_b32 v%d, 1" % (VA + 1), opt=o)
    b += F("buffer_atomic_add v%d, v%d, {DBG}, 0 offen sc1" % (VA + 1, VA), opt=o)
    return w0(name, b)
def poll_issue(name, calc, calc2, VP):
    o = name
    b = F(calc, opt=o) + lanes(VP, "0x1000", ["{a}", "{b}", "{c}"], o)
    b += F("buffer_load_dword v%d, v%d, {DBG}, 0 offen sc1" % (VP + 2, VP), opt=o)
    b += F(calc2, opt=o) + lanes(VP + 1, "0", ["{a}", "{b}", "{c}"], o)
    return w0(name, b)
def poll_check(name, VP, sidx=None):
    o = name
    b = F("""v_cmp_lt_u32 vcc, v{r}, v{x}
s_mov_b32 {SP}, 0
s_cbranch_vccz L_{n}_KN
L_{n}s_KN:
s_sleep 4
buffer_load_dword v{r}, v{ad}, {DBG}, 0 offen sc1
s_add_u32 {SP}, {SP}, 1
s_cmp_ge_u32 {SP}, 0x40000
s_cbranch_scc1 L_{n}_KN
s_waitcnt vmcnt(0)
v_cmp_lt_u32 vcc, v{r}, v{x}
s_nop 4
s_cbranch_vccnz L_{n}s_KN""", opt=o, r=VP + 2, x=VP + 1, ad=VP, n=name)
    p = w0(name, b)
    if OPT['stamps'] and sidx is not None: p += F("s_add_u32 {SP}, {SP}, 1\nv_writelane_b32 v%d, {SP}, %d" % (VST[0], sidx))
    return p

def kernel_main(a):
    name = NAME + "_kernel"
    BI = OPT['BI']
    a.launch(name, 256, 256, 163840)
    t0, t1 = TMP, TMP + 1
    e = dict(t0=t0, t1=t1, DX=V_DX, DW=V_DW, DH=V_DH, DD=V_DD, RW=V_RW, RX=V_RX, RW1=V_RW + 3, RX1=V_RX + 3, HW=V_HW, HH=V_HH, L16=V_L16, L16B=V_L16B, VST_=V_ST)
    p = L("s_cmp_ge_u32 s2, 256\ns_cbranch_scc1 L_end_KN")
    if OPT['stamps']: p += L("v_mov_b32 v%d, 0" % VST[0])
    p += stamp(0)
    p += L("s_load_dwordx16 s[52:67], s[0:1], 0\ns_load_dwordx4 s[68:71], s[0:1], 64\ns_load_dwordx2 s[72:73], s[0:1], 80")
    p += F("""v_lshrrev_b32 v1, 6, v0
v_and_b32 v0, 63, v0
v_readfirstlane_b32 {W}, v1
v_and_b32 v1, 15, v0
v_lshrrev_b32 v2, 4, v0""")
    mp = OPT.get('map', 1)
    if mp == 1:
        p += F("""s_and_b32 {C}, s2, 3
s_lshl_b32 {C}, {C}, 2
s_bfe_u32 {a}, s2, 0x20003
s_add_u32 {C}, {C}, {a}
s_lshr_b32 {T}, s2, 5
s_lshl_b32 {T}, {T}, 1
s_bfe_u32 {a}, s2, 0x10002
s_add_u32 {T}, {T}, {a}""")
    elif mp == 0:
        p += F("s_and_b32 {C}, s2, 7\ns_lshl_b32 {C}, {C}, 1\ns_bfe_u32 {a}, s2, 0x10003\ns_add_u32 {C}, {C}, {a}\ns_lshr_b32 {T}, s2, 4")
    else:
        p += F("""s_and_b32 {C}, s2, 1
s_lshl_b32 {C}, {C}, 3
s_bfe_u32 {a}, s2, 0x30003
s_add_u32 {C}, {C}, {a}
s_lshr_b32 {T}, s2, 6
s_lshl_b32 {T}, {T}, 2
s_bfe_u32 {a}, s2, 0x20001
s_add_u32 {T}, {T}, {a}""")
    p += F("""s_lshr_b32 {RG}, {W}, 1
s_and_b32 {FH}, {W}, 1
s_lshl_b32 {W1K}, {W}, 10
s_lshl_b32 {S2}, {T}, 1
s_add_u32 {S2}, {S2}, {RG}
v_lshrrev_b32 v{DW}, 3, v0
s_lshl_b32 {a}, {W}, 3
v_add_u32 v{DW}, {a}, v{DW}
v_mul_u32_u24 v{DX}, %d, v{DW}
s_lshl_b32 {a}, {FH}, 2
v_add_u32 v{t0}, {a}, v2
v_xor_b32 v{t0}, v0, v{t0}
v_and_b32 v{t0}, 7, v{t0}
v_lshl_add_u32 v{DX}, v{t0}, 4, v{DX}
s_lshr_b32 {ROT}, {T}, 1
s_and_b32 {a}, {C}, 3
s_lshl_b32 {a}, {a}, 1
s_add_u32 {ROT}, {ROT}, {a}
s_cmp_ge_u32 {ROT}, 9
s_cselect_b32 {a}, 9, 0
s_sub_u32 {ROT}, {ROT}, {a}
s_mul_i32 {ROT}, {ROT}, ROTON
s_mul_i32 {a}, {T}, 2304
s_lshl_b32 {b}, {ROT}, 7
s_add_u32 {a}, {a}, {b}
v_add_u32 v{DX}, {a}, v{DX}
v_mul_u32_u24 v{DD}, 1152, v{DW}
v_mul_u32_u24 v{DW}, 9216, v{DW}
v_bfe_u32 v{t0}, v0, 1, 2
v_and_b32 v{t1}, 1, v2
s_lshl_b32 {a}, {FH}, 1
v_or_b32 v{t1}, {a}, v{t1}
v_xor_b32 v{t1}, v{t1}, v{t0}
v_lshl_add_u32 v{DW}, v{t1}, 5, v{DW}
v_xor_b32 v{t1}, v{t0}, v2
v_lshl_add_u32 v{DD}, v{t1}, 5, v{DD}
v_and_b32 v{t0}, 1, v0
v_lshl_add_u32 v{DW}, v{t0}, 4, v{DW}
v_lshl_add_u32 v{DD}, v{t0}, 4, v{DD}
s_mul_i32 {d}, {C}, 576
s_and_b32 {e}, {C}, 1
s_lshl_b32 {c}, {e}, 6
s_add_u32 {c}, {c}, {d}
v_add_u32 v{DW}, {c}, v{DW}""".replace("ROTON", str(OPT.get('rot', 1))) % (32 * 1152), **e)
    for q in range(4): p += L("s_mov_b32 s%d, %d" % (S_XQ + q, (1024 * (q & 1) + (q >> 1)) * 1152))
    p += L("s_waitcnt lgkmcnt(0)")
    p += srd(8, 52, 2048 * 1152) + srd(12, 60, 576 * 9216) + srd(16, 62, 576 * 9216)
    rest_srd = lambda: (srd(32, 54, 2048 * 578) + srd(36, 56, 2048 * 578) + srd(20, 64, 4608 * 1152) + srd(40, 66, 1152)
                        + srd(28, 70, 256) + srd(24, 72, WS_BYTES))
    G = []
    def grp(kind, nm, need, **kw):
        d = dict(kind=kind, nm=nm, need=need, bar=False, xr=None, rate=2); d.update(kw); G.append(d); return d
    for sg in range(9):
        for tau in range(4):
            mat = 'G' if tau < 2 else 'U'
            g = grp('SB', 16 if tau == 3 else 8, [(mat, 0, 2 * sg), (mat, 0, 2 * sg + 1)], sg=sg, tau=tau, rate=(5 if tau == 3 else 2))
            if tau == 2 or (sg == 0 and tau == 0): g['bar'] = True
            if sg < 8 and tau in (2, 3): g['xr'] = (sg + 1, tau - 2)
    passes = [('G', 1, 3), ('U', 1, 2), ('G', 2, 0), ('U', 2, 1), ('G', 3, 3), ('U', 3, 2)]
    PS = {}
    for pi, (mat, b, st) in enumerate(passes):
        PS[mat + str(b)] = len(G)
        for sl in range(6):
            for ap in range(2):
                g = grp('P1', 12, [(mat, b, 3 * sl + e_) for e_ in range(3)], mat=mat, b=b, st=st, sl=sl, ap=ap, ps=mat + str(b))
                if ap == 0 and (sl % BI == BI - 1): g['bar'] = True
    for mi_, mat in enumerate(('HG', 'HU')):
        PS[mat] = len(G)
        for gi in range(6):
            g = grp('PH', 12, [(mat, (3 * gi + e_) >> 1) for e_ in range(3)], mat=mat, gi=gi, ps=mat, half=mi_)
            if gi % 2 == 0: g['bar'] = True
    P2 = len(G)
    for cb in range(9):
        for gi in range(3):
            g = grp('P2', 24, [('D', cb, 3 * gi + e_) for e_ in range(3)], cb=cb, gi=gi, rate=4)
            g['bar'] = True
    NG = len(G)
    G[-1]['bar'] = False
    G[P2 - 1]['bar'] = True
    def rdg(n): return n - 1 if n > P2 else n - 2
    iv = []; n = 0
    for g in G:
        if g['bar']: n += 1
        iv.append(n)
    def free_iv(gr):
        for k in range(gr, NG):
            if G[k]['bar']: return iv[k]
        return 10 ** 6
    first = {}; fre = {}; order = []
    def use(key, rg_, done_g):
        i = iv[rg_] if rg_ >= 0 else 0
        if key not in first: first[key] = i; order.append(key)
        fre[key] = max(fre.get(key, 0), free_iv(done_g))
    for q in range(4): use(('x', 0, q), -1, 1)
    ev = []
    for gi, g in enumerate(G):
        for k in g['need']: ev.append((rdg(gi), 0, k, gi))
        if g['xr']:
            for q in range(4): ev.append((gi, 1, ('x', g['xr'][0], q), 4 * g['xr'][0] + 1))
    ev.sort(key=lambda x: (x[0], x[1]))
    for r_, _, k, d_ in ev: use(k, r_, d_)
    order.sort(key=lambda k: first[k])
    fixed = {}
    for sg in range(9):
        s = 8 * (sg % 5)
        for e_ in range(2):
            fixed[('G', 0, 2 * sg + e_)] = s + e_; fixed[('U', 0, 2 * sg + e_)] = s + 2 + e_
        for q in range(4): fixed[('x', sg, q)] = s + 4 + q
    gS2 = PS['U3'] + 11
    gSD = P2 + OPT.get('sdat', 18)
    HU = PS['HU']
    res = [(0, 4, PS['G1'] - 1, HU + 3), (4, 1, PS['G1'] - 1, PS['G1']), (16, 2, gS2, gS2 + 1), (4, 4, PS['G2'], HU + 5), (8, 4, PS['G3'], P2), (12, 4, gS2, P2 + 1),
           (16, 2, P2 - 1, P2 + 1), (0, 4, gSD, NG - 2)]
    resv = {pg: [] for pg in range(40)}
    for f, npg, ga, gb in res:
        for pg in range(f, f + npg): resv[pg].append((iv[ga], free_iv(gb + 1)))
    free_at = [-1] * 40; phys = {}; issue_grp = {}; qi = 0
    def ioff(k): return 0 if k[0] in ('HG', 'HU', 'x') else k[1] * 128
    def try_alloc(k, cur):
        for pg in ([fixed[k]] if k in fixed else range(39, -1, -1)):
            if free_at[pg] > cur or (pg == 0 and ioff(k) > 0): continue
            if any(not (fre[k] <= a_ or cur >= b_) for a_, b_ in resv[pg]): continue
            return pg
        return None
    cum = [0]
    for g in G: cum.append(cum[-1] + g['nm'])
    bar_grp = {iv[gi]: gi for gi, g in enumerate(G) if g['bar']}
    bar_grp[0] = 0
    vt = {}; cnt_iv = {}
    for k in order:
        n_ = cnt_iv.get(first[k], 0); cnt_iv[first[k]] = n_ + 1
        vt[k] = cum[bar_grp[first[k]]] + n_ * (5 if k in fixed else 8)
    def LA(k):
        if k in fixed: return OPT.get('la0', 120)
        if k[0] == 'D': return OPT.get('la2', 400)
        return OPT.get('la1', 400)
    NPRO = OPT.get('npro', 16)
    while qi < NPRO:
        k = order[qi]; phys[k] = try_alloc(k, -1); free_at[phys[k]] = fre[k]; issue_grp[k] = -1; qi += 1
    for gi, g in enumerate(G):
        g['dma'] = []
        while qi < len(order) and len(g['dma']) < g['rate']:
            k = order[qi]
            if vt[k] - cum[gi] > LA(k): break
            pg = try_alloc(k, iv[gi])
            if pg is None: break
            assert iv[gi] < first[k], ("late DMA", k, gi)
            phys[k] = pg; free_at[pg] = fre[k]; issue_grp[k] = gi; g['dma'].append(k); qi += 1
    assert qi == len(order), order[qi]
    print("dma per group:", "".join(str(len(g['dma'])) for g in G), file=sys.stderr)
    slk = {}
    for k in order:
        if issue_grp[k] >= 0:
            kk_ = k[:2] if k[0] in 'GUD' else k[:1]
            slk[kk_] = min(slk.get(kk_, 9999), cum[bar_grp[first[k]]] - cum[issue_grp[k] + 1])
    print("min DMA slack (mfmas):", slk, file=sys.stderr)
    def mkdma(k):
        tag = "pg%d" % first[k]; pb = phys[k] * 4096
        if k[0] == 'x':
            pre = []
            if k[2] == 0 and k[1] > 0:
                pre = F("s_cmp_eq_u32 {ROT}, %d\ns_cselect_b32 {SP}, -8, 1\nv_lshl_add_u32 v%d, {SP}, 7, v%d" % (9 - k[1], V_DX, V_DX))
            m_, d_ = dma(V_DX, 'X', S_XQ + k[2], pb, 0, tag)
            return (pre + [m_], d_) if pre else (m_, d_)
        if k[0] == 'G': return dma(V_DW, 'WG', S_KK + k[2], pb, k[1] * 128, tag)
        if k[0] == 'U': return dma(V_DW, 'WU', S_KK + k[2], pb, k[1] * 128, tag)
        if k[0] == 'HG': return dma(V_DH, 'WG', S_KK + 2 * k[1], pb, 0, tag)
        if k[0] == 'HU': return dma(V_DH, 'WU', S_KK + 2 * k[1], pb, 0, tag)
        return dma(V_DD, 'WD', S_DK + k[2], pb, k[1] * 128, tag)
    PFL = OPT.get('pfl', "")
    VPF, VDM, VPX = V_HH, V_ST, V_HW
    def pf(srdn, mask, soff, off, va=VPF, real=False):
        lo, hi = mask & 0xffffffff, mask >> 32
        q = L("s_mov_b32 exec_lo, 0x%x\ns_mov_b32 exec_hi, 0x%x" % (lo, hi))
        for i in q: i.wr = [('s', 'exec')]; i.rd = [('s', 'exec')]
        for sn in srdn:
            i = F("buffer_load_dword v%d, v%d, {%s}, %s offen offset:%d%s" % (VDM, va, sn, soff, off, PFL))[0]
            if not real: i.wr = []
            i.rd.append(('s', 'exec'))
            q.append(i)
        q += L("s_mov_b64 exec, -1")
        return q
    lm = lambda a_, b_: ((1 << b_) - 1) ^ ((1 << a_) - 1)
    assert mp == 1
    def skk(m):
        KS = 32 * 9216
        if m == 0: q = F("s_mul_i32 s%d, {ROT}, %d" % (S_KK, 2 * KS))
        else: q = F("s_add_u32 s%d, s%d, %d\ns_cmp_eq_u32 {ROT}, %d\ns_cselect_b32 s%d, 0, s%d" % (S_KK + 2 * m, S_KK + 2 * m - 2, 2 * KS, 9 - m, S_KK + 2 * m, S_KK + 2 * m))
        return q + L("s_add_u32 s%d, s%d, %d" % (S_KK + 2 * m + 1, S_KK + 2 * m, KS))
    p += skk(0) + skk(1)
    pro = [k for k in order if issue_grp[k] < 0]
    PF0 = OPT.get('pf0', 0)
    NP0 = OPT.get('np0', 0)
    for k in pro[:NP0]: p += flat(mkdma(k))
    pfs = F("""s_and_b32 {a}, {C}, 1
s_lshl_b32 {a}, {a}, 5
s_lshl_b32 {b}, {W}, 3
s_add_u32 {a}, {a}, {b}
v_lshrrev_b32 v{t0}, 3, v0
v_add_u32 v{t0}, {a}, v{t0}
v_mul_u32_u24 v{t0}, %d, v{t0}
v_and_b32 v{t1}, 7, v0
v_lshl_add_u32 v%d, v{t1}, 7, v{t0}
s_bfe_u32 {u}, {C}, 0x10001
s_lshl_b32 {a}, {T}, 1
s_add_u32 {u}, {u}, {a}
s_mul_i32 {u}, {u}, 1152
s_lshr_b32 {a}, {T}, 1
s_add_u32 {a}, {a}, {b}
v_lshl_add_u32 v{t1}, v0, 5, {a}
v_mul_u32_u24 v%d, 9216, v{t1}
s_lshl_b32 {SB}, {e}, 6
s_add_u32 {SB}, {SB}, {d}
s_cmp_eq_u32 {e}, 0
s_cselect_b32 {SA}, 512, 0
s_add_u32 {SA}, {SA}, {d}""" % (32 * 1152, VPX, VPF), **e)
    wi = [i for i, x in enumerate(p) if x.text == "s_waitcnt lgkmcnt(0)"][-1]
    for i in pfs: i.id = p[wi].id - 0.5 + 0.001 * pfs.index(i)
    p[wi:wi] = pfs
    R1S = OPT.get('r1s', 5)
    def R1(): return pf(['X'], 0x0101010101010101 * ((1 << R1S) - 1), ENV['u'], 0, va=VPX) + pf(['WG', 'WU'], lm(0, 2 * R1S), ENV['SB'], 0)
    def R2(): return pf(['X'], 0x0101010101010101 * ((1 << (9 - R1S)) - 1), ENV['u'], 128 * R1S, va=VPX) + pf(['WG', 'WU'], lm(2 * R1S, 18), ENV['SB'], 0)
    if PF0: p += R1()
    for k in pro[NP0:8]: p += flat(mkdma(k))
    p += rest_srd()
    for m in range(2, 9): p += skk(m)
    GT = TMP + 2
    g1, g2f = gate_code(GT)
    p += g1
    p += F("s_cmp_lg_u32 {C}, 0\ns_cbranch_scc1 L_nw_KN") + nyw_load(FB + 8, "nw") + L("L_nw_KN:")
    p += F("""v_lshrrev_b32 v{RW}, 2, v1
v_lshlrev_b32 v{RW}, 7, v{RW}
v_lshl_add_u32 v{RW}, v2, 10, v{RW}
v_and_b32 v{t0}, 3, v1
v_lshl_add_u32 v{RW}, v{t0}, 3, v{RW}
v_bfe_u32 v{t0}, v1, 3, 1
v_and_b32 v{t1}, 1, v2
v_lshl_add_u32 v{t0}, v{t1}, 1, v{t0}
s_lshl_b32 {a}, {FH}, 1
v_xor_b32 v{t0}, {a}, v{t0}
v_lshl_add_u32 v{RW}, v{t0}, 5, v{RW}
v_xor_b32 v{RW1}, 32, v{RW}
v_lshrrev_b32 v{t0}, 1, v1
v_xor_b32 v{t0}, v{t0}, v2
v_lshlrev_b32 v{t0}, 4, v{t0}
v_lshl_add_u32 v{RX}, v1, 7, v{t0}
s_lshl_b32 {a}, {RG}, 13
v_add_u32 v{RX}, {a}, v{RX}
v_xor_b32 v{RX1}, 64, v{RX}""", **e)
    for b in (V_RW, V_RW + 3, V_RX, V_RX + 3):
        p += L("v_add_u32 v%d, 0x10000, v%d\nv_add_u32 v%d, 0x20000, v%d" % (b + 1, b, b + 2, b))
    p += F("""s_mov_b32 {Q}, 0x3e800000
s_mov_b32 {NL}, %s
s_add_u32 {KB1}, {C}, 2
s_add_u32 {KB3}, {C}, 4
s_cmp_lt_u32 {KB3}, 18
s_cselect_b32 {KB3}, {KB3}, 0
s_mul_i32 {GA}, {T}, 12
s_add_u32 {GA}, {GA}, {C}
s_cmp_lt_u32 {C}, 12
s_cselect_b32 {GA}, {GA}, 0x1000
s_add_u32 {GB}, {GA}, 192
s_mul_i32 {a}, {C}, %d
s_mul_i32 {c}, {e}, %d
s_add_u32 s%d, {a}, {c}
s_cmp_eq_u32 {e}, 0
s_cselect_b32 {c}, %d, 0
s_add_u32 s%d, {a}, {c}""" % (f2h(-math.log2(math.e)), 288 * 1152, 32 * 1152, S_DK, 256 * 1152, S_DK + 8), **e)
    for ks in range(1, 8): p += L("s_add_u32 s%d, s%d, %d" % (S_DK + ks, S_DK, ks * 32 * 1152))
    TP = V_SIL
    TF = lambda kk: (SET[3] + 4 * kk) if kk < 8 else FB + 32
    p += t_setup(TP, ENV['C'])
    NTP = OPT.get('ntp', 4)
    for kk in range(NTP): p += t_frag(kk, TF(kk), SET[2] + 16, TP)
    for k in pro[8:]: p += flat(mkdma(k))
    r2 = R2() if PF0 else []
    if OPT.get('r2at', -1) < 0: p += r2
    def late_setup():
        return F("""v_lshrrev_b32 v{DH}, 2, v0
s_lshl_b32 {w}, {W}, 4
v_add_u32 v{DH}, {w}, v{DH}
v_mul_u32_u24 v{DH}, 9216, v{DH}
v_bfe_u32 v{t0}, v0, 1, 1
v_lshrrev_b32 v{t1}, 5, v0
v_xor_b32 v{t0}, v{t0}, v{t1}
v_lshl_add_u32 v{DH}, v{t0}, 5, v{DH}
v_and_b32 v{t0}, 1, v0
v_lshl_add_u32 v{DH}, v{t0}, 4, v{DH}
v_add_u32 v{DH}, {SA}, v{DH}
v_lshlrev_b32 v{L16}, 4, v0
v_add_u32 v{L16B}, 0x10000, v{L16}
s_lshl_b32 {u}, {FH}, 13
s_lshl_b32 {w}, {RG}, 12
s_add_u32 {u}, {u}, {w}
v_add_u32 v{HW}, {u}, v{L16}""", **e)
    def late_setup2():
        return F("""s_lshl_b32 {a}, {FH}, 3
s_lshl_b32 {b}, {RG}, 12
s_add_u32 {a}, {a}, {b}
v_add_u32 v{HH}, {a}, v{L16B}
s_mul_i32 {a}, {T}, %d
s_mul_i32 {b}, {W}, %d
s_add_u32 {a}, {a}, {b}
s_mul_i32 {b}, {C}, %d
s_add_u32 {a}, {a}, {b}
v_add_u32 v{VST_}, {a}, v{L16}""" % (9 * 16 * 16384, 4 * PL()[1], PL()[2]), **e)
    def pf_wd_setup():
        return F("""s_lshr_b32 {a}, {T}, 1
s_mul_i32 {a}, {a}, %d
s_mul_i32 {b}, {C}, %d
s_add_u32 {a}, {a}, {b}
s_mul_i32 {b}, {W}, %d
s_add_u32 {a}, {a}, {b}
v_lshlrev_b32 v%d, 7, v0
v_add_u32 v%d, {a}, v%d""" % (36 * 1152, 288 * 1152, 9 * 1152, VPF, VPF, VPF))
    sec = Sec2()
    FBUF = lambda gi: FB + 12 * (gi % 3)
    def frag_reads(gi):
        g = G[gi]; out = []
        for e_, k in enumerate(g['need']):
            pb = phys[k] * 4096
            if k[0] in 'GU':
                ap = g['tau'] & 1 if g['kind'] == 'SB' else g['ap']
                base, o, d2 = V_RW + 3 * ap, pb, 512
            elif k[0] in ('HG', 'HU'): base, o, d2 = V_RX, pb + ((3 * g['gi'] + e_) & 1) * 2048, 256
            else: base, o, d2 = V_RX + 3, pb, 2048
            r = FBUF(gi) + 4 * e_
            out.append(L("ds_read_b64_tr_b16 v[%d:%d], v%d offset:%d\nds_read_b64_tr_b16 v[%d:%d], v%d offset:%d"
                         % (r, r + 1, base + (o >> 16), o & 0xffff, r + 2, r + 3, base + (o >> 16), (o & 0xffff) + d2), lds_r=(pb, pb + 4096), tag="f%d" % gi))
        return out
    def x_reads(sg, e_):
        kk = 2 * sg + e_; out = []; pb = phys[('x', sg, 0)] * 4096
        for mi in range(4):
            o = pb + mi * 2048
            out += L("ds_read_b128 %s, v%d offset:%d" % (rs(XF(mi, kk)), V_RX + 3 * e_ + (o >> 16), o & 0xffff), lds_r=(pb, pb + 16384), tag="x%d" % sg)
        return [out[0:2], out[2:4]]
    def lin_read(regs, o, tag):
        return L("ds_read_b128 %s, v%d offset:%d" % (rs(regs), V_L16B if o >> 16 else V_L16, o & 0xffff), lds_r=(o, o + 1024), tag=tag)[0]
    def silu_a(regs):
        out = []
        for i in range(0, len(regs), 4):
            T = V_SIL + (i & 4); rr = regs[i:i + 4]
            out += [F("v_mul_f32 v%d, {NL}, v%d" % (T + j, r))[0] for j, r in enumerate(rr)]
            out += [I("v_exp_f32 v%d, v%d" % (T + j, T + j)) for j in range(4)]
            out += [I("v_add_f32 v%d, 1.0, v%d" % (T + j, T + j)) for j in range(4)]
            out += [I("v_rcp_f32 v%d, v%d" % (T + j, T + j)) for j in range(4)]
            out += [I("v_mul_f32 v%d, v%d, v%d" % (r, r, T + j)) for j, r in enumerate(rr)]
        for i in out: i.silu = True
        return out
    def silu_b(sg_, su_, b):
        out = []
        for mi in range(4):
            d = su_ + 4 * mi
            for ap in range(2):
                gq, uq = sg_ + (ap * 4 + mi) * 4, su_ + (ap * 4 + mi) * 4
                out += [I("v_mul_f32 v%d, v%d, v%d" % (gq + r, gq + r, uq + r)) for r in range(4)]
            for ap in range(2):
                gq = sg_ + (ap * 4 + mi) * 4
                out += [I("v_cvt_pk_bf16_f32 v%d, v%d, v%d" % (d + 2 * ap + h, gq + 2 * h, gq + 2 * h + 1)) for h in range(2)]
            out += L("ds_write_b128 v%d, v[%d:%d] offset:%d" % (V_HW, d, d + 3, b * 16384 + mi * 1024), lds_w=(b * 16384, b * 16384 + 16384), tag="lds")
        return out
    def silu_bH(st):
        out = []
        for mi in range(4):
            gq, uq = st + 4 * mi, st + 16 + 4 * mi
            out += [I("v_mul_f32 v%d, v%d, v%d" % (gq + r, gq + r, uq + r)) for r in range(4)]
            out += [I("v_cvt_pk_bf16_f32 v%d, v%d, v%d" % (uq + h, gq + 2 * h, gq + 2 * h + 1)) for h in range(2)]
            out += L("ds_write_b64 v%d, v[%d:%d] offset:%d" % (V_HH, uq, uq + 1, mi * 1024), lds_w=(65536, 65536 + 8192), tag="lds")
        return out
    allr = lambda st, n=32: list(range(st, st + n))
    p += stamp(1) + L("s_barrier", need_vm=("pg0",)) + stamp(2)
    xa, xb = x_reads(0, 0), x_reads(0, 1)
    pre_reads = {0: frag_reads(0), 1: frag_reads(1)}
    for r_ in [xa[0], xb[0]] + pre_reads[0] + [xa[1], xb[1]] + pre_reads[1]: p += r_
    for kk in range(NTP, 9): sec.stream(t_frag(kk, TF(kk), SET[2] + 16, TP), 0, 40 * (kk // 2) + 29, "tf%d" % kk, "tf%d" % (kk - 1))
    sec.stream(late_setup(), 40, 200, "late")
    for i in g2f: Ins.seq += 1; i.id = Ins.seq
    sec.stream(g2f, 40, 278, "gate", "late")
    TWA = lambda a_: (TMP + 2 + 8 * a_) if a_ < 3 else SET[3]
    PACC = [SET[1], SET[2]]
    VP = TMP + 22
    def out_ops(cb):
        acc = PACC[cb & 1]; out = []
        for ip in range(4):
            b = acc + 8 * ip
            out += F("s_mov_b32 {ST}, 0x%x" % (WSP() + cb * PL()[0] + ip * PL()[1]))
            out += [I("v_cvt_pk_bf16_f32 v%d, v%d, v%d" % (b + d, b + 2 * d, b + 2 * d + 1)) for d in range(4)]
            out += F("buffer_store_dwordx4 v[%d:%d], v%d, {WS}, {ST} offen%s" % (b, b + 3, V_ST, OPT.get('pst', " sc1")))
        return out
    hq = {HU + 1: list(range(0, 8)), HU + 2: list(range(8, 16)), HU + 3: list(range(16, 24)), HU + 4: list(range(24, 32)), HU + 5: list(range(32, 40)),
          P2: list(range(40, 64)), P2 + 1: list(range(64, 72))}
    FBUF2 = FBUF
    extra_need = {}
    gp1 = PS['G3'] + OPT.get('p1at', 5)
    gp2 = P2 + OPT.get('p2at', 13)
    def next_bar(gi):
        while not G[gi]['bar']: gi += 1
        return gi
    gc1 = next_bar(gp1 + 3); gc2 = next_bar(gp2 + 2)
    ga1 = next_bar(PS['G1'] + OPT.get('a1at', 9)); ga2 = next_bar(gS2 + OPT.get('a2at', 7))
    print("groups: arrive1 %d poll1 %d chk1 %d s2 %d arrive2 %d poll2 %d chk2 %d stepD %d  PS %s P2 %d" % (ga1, gp1, gc1, gS2, ga2, gp2, gc2, gSD, PS, P2), file=sys.stderr)
    S2D = [SET[0], SET[0] + 8]; S2W = [TMP, TMP + 8]
    KBX = "s_lshr_b32 {x}, {g}, 5\ns_cmp_eq_u32 {x}, 9\ns_cselect_b32 {x}, 0, {x}\ns_lshl_b32 {x}, {x}, 2\ns_add_u32 {x}, {x}, {o}\ns_cmp_gt_u32 {g}, 288\ns_cselect_b32 {x}, 0x1000, {x}\n"
    kbx = lambda x, g, o: KBX.replace("{x}", "{%s}" % x).replace("{g}", "{%s}" % g).replace("{o}", str(o))
    SD = {}
    for gi, g in enumerate(G):
        base = sec.n(); fb = FBUF(gi) if gi <= P2 else FB + 12 * ((gi - P2 + (P2 % 3)) & 1 if (P2 % 3) < 2 else (gi - P2 + 1) & 1)
        if gi > P2: FBUF = lambda n_: FB + 12 * ((n_ - P2 + (P2 % 3)) & 1 if (P2 % 3) < 2 else (n_ - P2 + 1) & 1)
        ms = []
        if g['kind'] == 'SB':
            st = SET[0] if g['tau'] < 2 else SET[1]
            for mi in range(4):
                for e_ in range(2):
                    acc = V(st + ((g['tau'] & 1) * 4 + mi) * 4, 4); kk = 2 * g['sg'] + e_
                    ms.append(mf(acc, V(fb + 4 * e_, 4), XF(mi, kk), acc if kk else None))
            if g['tau'] == 3:
                for mi in range(4):
                    for e_ in range(2):
                        kk = 2 * g['sg'] + e_
                        acc = V(SET[2] + 16 * (kk // 9) + 4 * mi, 4)
                        ms.append(mf(acc, XF(mi, kk), V(TF(kk % 9), 4), acc if kk % 9 else None))
        elif g['kind'] == 'P1':
            for mi in range(4):
                for e_ in range(3):
                    acc = V(SET[g['st']] + (g['ap'] * 4 + mi) * 4, 4); kk = 3 * g['sl'] + e_
                    ms.append(mf(acc, V(fb + 4 * e_, 4), XF(mi, kk), acc if kk else None))
        elif g['kind'] == 'PH':
            for mi in range(4):
                for e_ in range(3):
                    acc = V(SET[0] + (g['half'] * 4 + mi) * 4, 4); kk = 3 * g['gi'] + e_
                    ms.append(mf(acc, V(fb + 4 * e_, 4), XF(mi, kk), acc if kk else None))
        else:
            for mi in range(8):
                for e_ in range(3):
                    acc = V(PACC[g['cb'] & 1] + 4 * mi, 4)
                    ms.append(mf(acc, V(fb + 4 * e_, 4), HF(mi, 3 * g['gi'] + e_), acc if (g['gi'] or e_) else None))
        lg = ["f%d" % gi]; vm = []
        if g['kind'] == 'SB' and g['tau'] == 0: lg.append("x%d" % g['sg'])
        if g['kind'] == 'P2' and g['cb'] == 0: lg.append("h%d" % g['gi'])
        if g['bar']:
            vm.append("pg%d" % iv[gi]); lg.append("lds")
            if gi == ga1: vm.append("pub1")
            if gi == ga2: vm.append("pub2")
        if gi in (gc1, gc2): sec.block(base - 1, poll_check("pc%d" % (1 if gi == gc1 else 2), VP, 28 if gi == gc1 else 29))
        if gi:
            if sec.blk.get(base - 1): sec.block(base - 1, [Need(vm, lg)])
            else: sec.at(base - 1, Need(vm, lg))
        for m_ in ms: sec.mfma(m_)
        nm = g['nm']; end = sec.n()
        sidx = None
        if g['kind'] in ('P1', 'PH') and PS[g['ps']] == gi: sidx = 3 + list(PS).index(g['ps'])
        if g['kind'] == 'P2' and g['gi'] == 0: sidx = 11 + g['cb']
        gap = 0
        if g['bar']:
            sec.at(base, L("s_barrier", need_vm=tuple(vm), need_lgkm=tuple(lg))); gap = 1
        if OPT.get('diag') == 6:
            sidx = None
            if g['kind'] == 'SB' and g['tau'] == 0: sidx = 3 + g['sg']
            if gi == PS['G1']: sidx = 13
            if gi == PS['G1'] - 1: sec.block(end - 1, stamp(12))
        if OPT.get('diag') == 7:
            sidx = None
            g0 = PS['G1']
            if g0 <= gi < g0 + 68 and (gi - g0) % 4 == 0: sidx = 3 + (gi - g0) // 4
        if sidx is not None and OPT['stamps']: sec.block(base, stamp(sidx))
        pairs = []
        for n_ in range(gi + 1, min(NG, gi + 3)):
            if rdg(n_) == gi:
                if n_ > P2: FBUF = lambda q_: FB + 12 * ((q_ - P2 + (P2 % 3)) & 1 if (P2 % 3) < 2 else (q_ - P2 + 1) & 1)
                pairs += frag_reads(n_)
                if n_ > P2 and gi <= P2: FBUF = FBUF2
        if g['xr']: pairs += x_reads(*g['xr'])
        hr = [lin_read(HF(n_ & 7, n_ >> 3), (n_ >> 3) * 8192 + (n_ & 7) * 1024, "h%d" % (n_ // 24)) for n_ in hq.get(gi, [])]
        hp = [hr[i:i + 2] for i in range(0, len(hr), 2)]
        pairs = hp + pairs if gi == P2 + 1 else pairs + hp
        avail = list(range(gap, nm - 1))
        items = []
        dm = [mkdma(k) for k in g['dma']]
        ip_, id_ = 0, 0
        early = g['kind'] == 'P2'
        while ip_ < len(pairs) or id_ < len(dm):
            if ip_ < len(pairs): items.append(('r', pairs[ip_])); ip_ += 1
            elif not items or items[-1][0] == 'd': items.append(('z', None))
            if id_ < len(dm) and (not early or ip_ >= min(len(pairs), 3)): items.append(('d', dm[id_])); id_ += 1
        assert len(items) <= len(avail), (gi, len(items), len(avail))
        pos = 0; slack = len(avail) - len(items); nd_left = len(dm)
        for kind, it in items:
            if kind == 'r': sec.at(base + avail[pos], it)
            if kind == 'd':
                if isinstance(it[0], list): sec.block(base + avail[pos] - 1, it[0])
                else: sec.at(base + avail[pos] - 1, it[0])
                sec.at(base + avail[pos], it[1])
                sk = slack // max(1, nd_left); pos += sk; slack -= sk; nd_left -= 1
            pos += 1
        if gi == 19: sec.block(end - 1, F("s_cmp_lg_u32 {C}, 0\ns_cbranch_scc1 L_nw2_KN") + nyw_store(FB + 8, "nw2") + L("L_nw2_KN:"))
        if PF0 and gi == OPT.get('r2at', -1): sec.block(base + 1, r2)
        if gi == OPT.get('pf1', -1): sec.block(base + 1, pf(['WG', 'WU'], lm(0, 18), ENV['SB'], 128))
        if OPT.get('pfd', 1):
            for it in range(3):
                if gi == PS['G1'] + OPT.get('pfd0', 6) + it * OPT.get('pfdi', 12):
                    sec.block(base + 1, (pf_wd_setup() if it == 0 else []) + pf(['WD'], lm(0, 27), "0", 0, real=(it == 2))
                              + L("v_add_u32 v%d, %d, v%d" % (VPF, 27 * 128, VPF)))
        if g['kind'] == 'SB' and g['sg'] == 6 and g['tau'] == 3:
            sec.stream(twiddle_A(TWA, SET[3] + 8), end, end + 78, "twA")
        if gi == PS['G1'] - 1:
            blk = diag(1, 21) + step_A(SET[2], TWA, SET[3] + 8, TP, ENV['C'], 0) + (stamp(22) if OPT.get('diag') == 1 else []) + diag(1, 23)
            blk += F("s_cmp_lt_u32 {KB1}, 16\ns_cbranch_scc1 L_x1_KN")
            o = "x1"; s1 = Sec2(); XS = SET[3] + 8; XFr = SET[3] + 24
            s1.pre = t_setup(TP, ENV['KB1'], opt=o) + t_frag(0, XFr, XS, TP, opt=o)
            for kk in range(9):
                if kk < 8: nxt = None
                b0 = s1.n()
                for hh in range(2):
                    for mi in range(4):
                        acc = V(SET[2] + 16 * hh + 4 * mi, 4)
                        s1.mfma(mf(acc, XF(mi, kk + 9 * hh), V(XFr + 4 * (kk & 1), 4), acc if kk else None, o))
                if kk < 8: s1.stream(t_frag(kk + 1, XFr + 4 * ((kk + 1) & 1), XS, TP, opt=o), b0, b0 + 6)
            blk += s1.flatten() + step_A(SET[2], TWA, SET[3] + 8, TP, ENV['KB1'], 8704, opt=o) + L("L_x1_KN:")
            sec.block(end - 1, blk)
            sw = F("""v_lshrrev_b32 v{RX}, 2, v1
v_lshl_add_u32 v{RX}, v2, 3, v{RX}
v_lshlrev_b32 v{RX}, 6, v{RX}
v_and_b32 v{t0}, 3, v1
v_lshl_add_u32 v{RX}, v{t0}, 3, v{RX}
v_and_b32 v{t1}, 1, v2
v_xor_b32 v{t1}, {FH}, v{t1}
v_lshl_add_u32 v{RX}, v{t1}, 5, v{RX}
v_lshrrev_b32 v{RX1}, 2, v1
v_lshl_add_u32 v{RX1}, v2, 2, v{RX1}
v_bfe_u32 v{t1}, v{RX1}, 1, 2
v_xor_b32 v{t1}, {W}, v{t1}
v_lshlrev_b32 v{RX1}, 7, v{RX1}
v_lshl_add_u32 v{RX1}, v{t1}, 5, v{RX1}
v_lshl_add_u32 v{RX1}, v{t0}, 3, v{RX1}""", **e)
            for b in (V_RX, V_RX + 3): sw += L("v_add_u32 v%d, 0x10000, v%d\nv_add_u32 v%d, 0x20000, v%d" % (b + 1, b, b + 2, b))
            sec.stream(sw, end - 36, end - 2, "sw")
            sec.stream(silu_a(allr(SET[0])), end, end + 200, "a0")
            sec.stream(silu_b(SET[0], SET[1], 0), end + 145, end + 286, "b0", "a0")
        if g['kind'] == 'P1' and g['sl'] == 5 and g['ap'] == 1:
            ps = g['ps']
            if ps == 'G1': sec.stream(silu_a(allr(SET[3])), end + 2, end + 380, "a1", "a0")
            if ps == 'U1': sec.stream(silu_b(SET[3], SET[2], 1), end + 2, end + 286, "b1", "a1")
            if ps == 'G2': sec.stream(silu_a(allr(SET[0])), end + 2, end + 143 + 12 * (gc1 - PS['G3']) - 30, "a2", "a1")
            if ps == 'U2':
                sec.stream(silu_b(SET[0], SET[1], 2), end + 2, end + 12 * (gc1 - PS['G3']), "b2", "a2")
            if ps == 'G3':
                sec.stream(silu_a(allr(SET[3])), end + 2, end + 143 + 40, "a3", "a2")
            if ps == 'U3': sec.stream(silu_b(SET[3], SET[2], 3), end + 2, end + 72 + 50, "b3", "a3")
        if g['kind'] == 'PH' and g['gi'] == 5:
            if g['half'] == 0: sec.stream(silu_a(allr(SET[0], 16)), end + 2, end + 72 + 10, "aH", "a3")
            else: sec.stream(silu_bH(SET[0]), end + 2, end + 22, "bH", "aH")
        if gi == ga1:
            sec.block(base, diag(5, 21))
            sec.block(base + 1, diag(5, 22))
            sec.block(base, arrive("ar1", "s_lshr_b32 {a}, {C}, 1\ns_lshl_b32 {a}, {a}, 2\ns_cmp_lt_u32 {KB1}, 16\ns_cselect_b32 {b}, 0x1000, 32\ns_mov_b32 {c}, 0x1000", VP))
        if gi == ga2:
            sec.block(base, diag(5, 23))
            sec.block(base + 1, diag(5, 24))
            sec.block(base, arrive("ar2", kbx('a', 'GA', 128) + kbx('b', 'GB', 128) + "s_mov_b32 {c}, 0x1000", VP))
        if gi == gp1:
            sec.block(base + 1, poll_issue("pi1", kbx('a', 'GA', 0) + kbx('b', 'GB', 0) + "s_mov_b32 {c}, 0x1000",
                      "s_cmp_gt_u32 {GA}, 288\ns_cselect_b32 {a}, 0, 32\ns_cmp_gt_u32 {GB}, 288\ns_cselect_b32 {b}, 0, 32\ns_mov_b32 {c}, 0", VP))
        if gi == gp2:
            sec.block(base + 1, poll_issue("pi2", "s_lshr_b32 {a}, {C}, 1\ns_lshl_b32 {a}, {a}, 2\ns_add_u32 {a}, {a}, 128\ns_movk_i32 {b}, 160\ns_mov_b32 {c}, 0x1000",
                      "s_cmp_lt_u32 {C}, 2\ns_cselect_b32 {a}, 33, 32\ns_cmp_lt_u32 {KB3}, 16\ns_cselect_b32 {b}, 0, 32\ns_mov_b32 {c}, 0", VP))
        for r_, gam in enumerate(('GA', 'GB')):
            if gi == PS['G2'] + OPT.get('w%dat' % r_, 1 + 12 * r_):
                o = "s2w%d" % r_
                sec.block(base + 1, F("s_cmp_ge_u32 {%s}, 288\ns_cbranch_scc1 L_%s_KN" % (gam, o)) + s2_wloads(ENV[gam], S2W[r_], TMP + 16, o, False) + L("L_%s_KN:" % o))
        if gi == gc1:
            blk = []
            for r_, (gam, keep) in enumerate((('GA', 'SA'), ('GB', 'SB'))):
                o = "s2l%d" % r_
                blk += F("s_cmp_gt_u32 {%s}, 288\ns_cbranch_scc1 L_%s_KN" % (gam, o)) + s2_dloads(ENV[gam], ENV[keep], S2D[r_], TMP + 16, o) + L("L_%s_KN:" % o)
            blk += F("s_cmp_lg_u32 {GB}, 288\ns_cbranch_scc1 L_s2n_KN") + s2_wloads(ENV['GB'], S2W[1], TMP + 16, "s2n", True) + L("L_s2n_KN:")
            if OPT.get('diag') == 3: blk = stamp(21) + blk + stamp(22) + diag(3, 23)
            sec.block(base + 1, blk)
            M = SET[1]; Z = SET[0] + 16; S2T = SET[1] + 24
            pre = dft32(M, Z, False) + s2_addr(S2T, 12 * 4096, False)
            for i in pre:
                i.text = i.text.replace(ENV['a'], ENV['u']).replace(ENV['b'], ENV['w'])
                fx = lambda lst: [('s', 6) if r == ('s', 84) else ('s', 7) if r == ('s', 85) else r for r in lst]
                i.rd = fx(i.rd); i.wr = fx(i.wr)
            sec.stream(pre, base + 2, base + 12 * (gS2 - gi) + 10, "s2pre")
        if gi == gS2:
            blk = diag(3, 24)
            for r_, (gam, keep) in enumerate((('GA', 'SA'), ('GB', 'SB'))):
                o = "s2c%d" % r_
                blk += F("s_cmp_gt_u32 {%s}, 288\ns_cbranch_scc1 L_%s_KN" % (gam, o))
                blk += s2_compute(ENV[keep], M, S2D[r_], Z, S2W[r_], S2T, TMP + 16, 12 * 4096, o) + L("L_%s_KN:" % o)
                if OPT.get('diag') == 3 and r_ == 0: blk += stamp(25)
            sec.block(end - 1, blk + (stamp(26) if OPT.get('diag') == 3 else []) + diag(3, 27) + late_setup2())
        if gi == P2 + 3: sec.stream(twiddle_D(SET[3], SET[3] + 16), base, base + 200, "twD")
        if gi == gc2:
            blk = stepD_loads(ENV['C'], SET[0])
            blk += F("s_cmp_lg_u32 {C}, 0\ns_cbranch_scc1 L_nyl_KN") + stepD_nyloads(SET[0] + 16, VP, "nyl") + L("L_nyl_KN:")
            blk += F("s_cmp_lt_u32 {KB3}, 16\ns_cbranch_scc1 L_d2l_KN") + stepD_loads(ENV['KB3'], SET[0] + 16, opt="d2l") + L("L_d2l_KN:")
            sec.block(base + 1, blk)
        if gi == gSD:
            SD['p'] = stepD_parts(SET[0], SET[0] + 16, TMP, SET[3], SET[3] + 16, TMP + 8, 0, ENV['C'], ENV['SA'])
            sec.stream(SD['p'][0], base + 1, base + 30, "sd0")
            sec.stream(SD['p'][1], base + 36, base + 45, "sd1", "sd0")
        if gi == gSD + 1:
            for m_ in SD['p'][2]: sec.mfma(m_)
            sec.block(sec.n() - 1, SD['p'][3])
            for m_ in SD['p'][4]: sec.mfma(m_)
            sec.stream(SD['p'][5], sec.n() + 2, sec.n() + 44, "sd5")
        if gi == gSD + 3:
            blk = F("s_cmp_lt_u32 {KB3}, 16\ns_cbranch_scc1 L_d2_KN")
            for part in stepD_parts(SET[0] + 16, None, TMP, SET[3], SET[3] + 16, TMP + 8, 0, ENV['KB3'], ENV['SA'], opt="d2"): blk += part
            sec.block(end - 1, blk + L("L_d2_KN:"))
        if g['kind'] == 'P2' and g['gi'] == 2 and g['cb'] < 8:
            sec.stream(out_ops(g['cb']), sec.n() + 2, sec.n() + 60)
    p += sec.flatten(verbose=True)
    p += out_ops(8) + stamp(20) + stamp_out(2)
    emit(a, name, p, 512, accum=256)

def kernel_reduce(a):
    name = "reduce_kernel"
    VST[0] = 60
    a.launch(name, 256, 576, 36864)
    p = L("s_cmp_ge_u32 s2, 256\ns_cbranch_scc1 L_end_KN")
    if OPT['stamps']: p += L("v_mov_b32 v%d, 0" % VST[0])
    p += stamp(0)
    p += L("s_load_dwordx2 s[68:69], s[0:1], 64\ns_load_dwordx2 s[72:73], s[0:1], 80")
    p += F("""v_lshrrev_b32 v1, 6, v0
v_and_b32 v0, 63, v0
v_readfirstlane_b32 {W}, v1
v_lshlrev_b32 v3, 4, v0
v_and_b32 v1, 15, v0
v_lshrrev_b32 v2, 4, v0
s_and_b32 {T}, s2, 7
s_lshl_b32 {T}, {T}, 1
s_bfe_u32 {a}, s2, 0x10003
s_add_u32 {T}, {T}, {a}
s_lshr_b32 {C}, s2, 4
s_mul_i32 {b}, {T}, 2359296
s_mul_i32 {c}, {W}, %d
s_add_u32 {b}, {b}, {c}
s_mul_i32 {c}, {C}, %d
s_add_u32 {b}, {b}, {c}
s_add_u32 {b}, {b}, %d
s_and_b32 {FH}, {C}, 3
s_mul_i32 {c}, {T}, 18
s_lshl_b32 {d}, {W}, 1
s_add_u32 {c}, {c}, {d}
s_lshl_b32 {c}, {c}, 13
s_lshl_b32 {d}, {FH}, 11
s_add_u32 {c}, {c}, {d}
s_add_u32 {c}, {c}, %d
s_add_u32 {d}, {c}, %d
s_lshl_b32 m0, {W}, 12
s_waitcnt lgkmcnt(0)""" % (PL()[0], PL()[1], WSP(), WS_Y, 8192 - 2048))
    p += srd(24, 72, WS_BYTES)
    for i in range(4):
        p += F("buffer_load_dwordx4 v3, {WS}, {%s} offen offset:%d lds" % ("c" if i < 2 else "d", i * 1024), tag="y", lds_w=(0, 36864))
    p += F("""s_lshl_b32 {c}, {T}, 9
s_lshl_b32 {d}, {FH}, 7
s_add_u32 {c}, {c}, {d}
s_add_u32 {c}, {c}, %d
s_add_u32 {d}, {c}, %d
v_lshlrev_b32 v4, 2, v1
buffer_load_dword v6, v4, {WS}, {c} offen
buffer_load_dword v7, v4, {WS}, {c} offen offset:64
buffer_load_dword v8, v4, {WS}, {d} offen
buffer_load_dword v9, v4, {WS}, {d} offen offset:64""" % (WS_G, WS_O - WS_G))
    PB = 64
    def pload(i):
        q = F("s_add_u32 {b}, {b}, %d" % PL()[2]) if i else []
        return q + F("buffer_load_dwordx4 v[%d:%d], v3, {WS}, {b} offen%s" % (PB + 4 * i, PB + 3 + 4 * i, OPT.get('rfl', "")))
    NPRE = OPT.get('npre', 2)
    for i in range(NPRE): p += pload(i)
    p += srd(44, 68, 2048 * 1152)
    ST, FR, YF, AC, SM, SEL = 12, 28, 36, 52, 36, 28
    p += F("""s_lshl_b32 {c}, {W}, 6
s_lshr_b32 {d}, {C}, 2
s_lshl_b32 {d}, {d}, 4
s_add_u32 {c}, {c}, {d}
v_add_u32 v5, {c}, v1
v_and_b32 v11, 1, v5
v_cvt_f32_u32 v5, v5
v_mul_f32 v10, %s, v5
v_mul_f32 v5, %s, v5
v_cos_f32 v10, v10
v_lshlrev_b32 v4, 2, v2
v_cvt_f32_u32 v4, v4
v_add_f32 v10, v10, v10
v_lshlrev_b32 v11, 31, v11
v_or_b32 v11, 0.5, v11
v_cmp_eq_u32 vcc, 0, v2
s_mov_b32 {Q}, 0x3e800000
s_lshl_b32 {c}, {c}, 1
s_and_b32 {e}, {FH}, 1
s_lshl_b32 {e}, {e}, 10
s_lshr_b32 {d}, {FH}, 1
s_add_u32 {e}, {e}, {d}
s_lshl_b32 {d}, {T}, 1
s_add_u32 {e}, {e}, {d}
s_mul_i32 {e}, {e}, 1152
s_add_u32 {c}, {c}, {e}""" % (f2h(1.0 / 36), f2h(1.0 / 576)))
    def frag(kb):
        cur = ST + 8 * (kb & 1); prv = ST + 8 * ((kb + 1) & 1); f = FR + 4 * (kb & 1); q = []
        if kb < 2:
            for j in range(4): q += L("v_add_f32 v%d, %s, v4" % (cur + j, f2h(16.0 * kb + j)))
            for j in range(4): q += F("v_fma_f32 v%d, v%d, v5, {Q}\nv_mul_f32 v%d, v%d, v5" % (cur + 4 + j, cur + j, cur + j, cur + j))
            for j in range(8): q += L("v_cos_f32 v%d, v%d" % (cur + j, cur + j))
        else:
            for j in range(8): q += L("v_fma_f32 v%d, v10, v%d, -v%d" % (cur + j, prv + j, cur + j))
        if kb == 0:
            q += L("v_cndmask_b32 v%d, v%d, 0.5, vcc\nv_cndmask_b32 v%d, v%d, v11, vcc" % (f, cur, f + 2, cur + 4))
            q += L("v_cvt_pk_bf16_f32 v%d, v%d, v%d\nv_cvt_pk_bf16_f32 v%d, v%d, v%d" % (f, f, cur + 1, f + 2, f + 2, cur + 5))
            q += L("v_cvt_pk_bf16_f32 v%d, v%d, v%d\nv_cvt_pk_bf16_f32 v%d, v%d, v%d" % (f + 1, cur + 2, cur + 3, f + 3, cur + 6, cur + 7))
        else:
            for jp in range(4): q += L("v_cvt_pk_bf16_f32 v%d, v%d, v%d" % (f + jp, cur + 2 * jp, cur + 2 * jp + 1))
        return q
    def yrd(kb):
        r = YF + 8 * (kb & 1)
        return L("ds_read_b128 v[%d:%d], v3 offset:%d\nds_read_b128 v[%d:%d], v3 offset:%d" % (r, r + 3, kb * 2048, r + 4, r + 7, kb * 2048 + 1024), lds_r=(0, 36864))
    p += frag(0) + frag(1)
    p += stamp(1) + L("s_barrier", need_vm=("y",)) + stamp(2)
    p += yrd(0)
    for kb in range(18):
        if kb + 1 < 18: p += yrd(kb + 1)
        for h in range(2):
            acc = V(AC + 4 * h, 4)
            p.append(mf(acc, V(FR + 4 * (kb & 1), 4), V(YF + 8 * (kb & 1) + 4 * h, 4), acc if kb else None))
        if NPRE + kb < 16: p += pload(NPRE + kb)
        if kb + 2 < 18: p += frag(kb + 2)
    p += F("v_and_b32 v4, 31, v0\nv_mul_u32_u24 v4, %d, v4\nv_lshrrev_b32 v5, 5, v0\nv_lshl_add_u32 v4, v5, 4, v4" % (32 * 1152))
    sc_ = f2h(2.0 / (2048 * 576))
    p += stamp(3)
    p += L("v_mul_f32 v6, %s, v6\nv_mul_f32 v7, %s, v7" % (sc_, sc_))
    p += L("""v_lshrrev_b32 v12, 2, v1
v_cmp_eq_u32 vcc, v12, v2
v_and_b32 v13, 1, v1
v_lshlrev_b32 v13, 4, v13
v_mov_b32 v14, 0x3f80
v_lshlrev_b32 v13, v13, v14
v_cndmask_b32 v13, 0, v13, vcc
v_and_b32 v12, 2, v1
v_cmp_eq_u32 vcc, 0, v12
v_mov_b32 v%d, 0
v_mov_b32 v%d, 0
v_mov_b32 v%d, 0
v_mov_b32 v%d, 0
v_cndmask_b32 v%d, 0, v13, vcc
v_cndmask_b32 v%d, v13, 0, vcc""" % (SEL, SEL + 1, SEL + 4, SEL + 5, SEL + 2, SEL + 3))
    for r in range(8): p += L("v_mul_f32 v%d, v%d, v%d" % (AC + r, AC + r, 6 + (r >> 2)))
    for i in range(16):
        for h in range(2):
            acc = V(SM + 4 * h, 4)
            p.append(mf(acc, V(SEL + 2 - 2 * h, 4), V(PB + 4 * i, 4), acc if i else None))
    for r in range(8): p += L("v_fma_f32 v%d, v%d, v%d, v%d" % (SM + r, SM + r, 8 + (r >> 2), AC + r))
    for d in range(4): p += L("v_cvt_pk_bf16_f32 v%d, v%d, v%d" % (16 + d, SM + 2 * d, SM + 1 + 2 * d))
    p += L("v_permlane16_swap_b32 v16, v18\nv_permlane16_swap_b32 v17, v19")
    p += stamp(4)
    p += F("buffer_store_dwordx4 v[16:19], v4, {OUT}, {c} offen%s" % OPT.get('ofl', ""))
    if OPT.get('dbg') is not None:
        p += L("s_waitcnt vmcnt(0)") + stamp(31)
        p += F("s_or_b32 {a}, s2, {W}\ns_cmp_lg_u32 {a}, 0\ns_cbranch_scc1 L_end_KN\ns_load_dwordx2 s[70:71], s[0:1], 72\ns_waitcnt lgkmcnt(0)")
        p += srd(28, 70, 256)
        p += F("v_lshlrev_b32 v0, 2, v0\ns_mov_b32 {a}, 0x%x\nbuffer_load_dword v5, v0, {WS}, {a} offen\ns_waitcnt vmcnt(0)" % (STAMP_OFF + 2 * 262144 + OPT['dbg'] * 256 + OPT.get('dbgo', 0) * 4))
        if not OPT.get('raw'): p += F("v_readlane_b32 {a}, v60, 0\nv_readlane_b32 {b}, v60, 31\nv_readlane_b32 {c}, v5, 31\nv_readlane_b32 {d}, v5, 20\ns_nop 4\nv_writelane_b32 v5, {a}, 14\nv_writelane_b32 v5, {b}, 15\nv_writelane_b32 v5, {c}, 13\nv_writelane_b32 v5, {d}, 12")
        p += F("buffer_store_dword v5, v0, {DBG}, 0 offen")
        if OPT.get('lb') is not None:
            p += F("""v_readlane_b32 {a}, v5, %d
v_readlane_b32 {b}, v5, %d
s_nop 4
s_sub_u32 {a}, {b}, {a}
s_mul_i32 {a}, {a}, %d
s_lshr_b32 {a}, {a}, %d
s_min_u32 {a}, {a}, 200000
s_memrealtime s[4:5]
s_waitcnt lgkmcnt(0)
s_mov_b32 {b}, s4
L_leak_KN:
s_memrealtime s[4:5]
s_waitcnt lgkmcnt(0)
s_sub_u32 {c}, s4, {b}
s_cmp_lt_u32 {c}, {a}
s_cbranch_scc1 L_leak_KN""" % (OPT['la'], OPT['lb'], OPT.get('lm', 10), OPT.get('ls', 0)))
    else:
        p += stamp_out(3)
    emit(a, name, p, 128)

if __name__ == "__main__":
    for x in sys.argv[2:]:
        k, v = x.split("=")
        OPT[k] = int(v) if v.lstrip("-").isdigit() else v.replace("_", " ")
    a = Asm()
    kernel_main(a); kernel_reduce(a)
    open(sys.argv[1], "w").write(a.text())
```

```python
import sys, math, struct
from asmlib import *
from fw import *

WS_A = 0x000000
WS_B = 0x300000
WS_Y = 0x3000000
WS_G = 0x600000
WS_O = 0x602000
WS_P = 0x800000
WS_N = 0x610000
KB_STRIDE = 131072
MF = "v_mfma_f32_16x16x32_bf16"
def f2h(x): return "0x%08x" % struct.unpack("<I", struct.pack("<f", x))[0]
def mf(d, a, b, c, opt=False):
    return I("%s %s, %s, %s, %s" % (MF, rs(d), rs(a), rs(b), rs(c) if c else "0"), opt=opt)
def F(text, opt=False, tag=None, **env):
    e = dict(ENV); e.update(env)
    kw = {}
    for k in ("lds_r", "lds_w", "priv", "need_vm", "need_lgkm"):
        if k in env: kw[k] = env[k]
    return L(text.format(**e), opt=opt, tag=tag, **kw)

ENV = dict(X="s[8:11]", WG="s[12:15]", WU="s[16:19]", WD="s[20:23]", WS="s[24:27]", DBG="s[28:31]", WR="s[32:35]", WI="s[36:39]", GW="s[40:43]", OUT="s[44:47]",
           T="s79", C="s80", W="s81", W1K="s82", KB="s83", RG="s87", FH="s88", S2="s89", a="s84", b="s85", c="s86", d="s92", e="s93",
           Q="s94", KB3="s95", NL="s96", KB1="s97", GA="s98", GB="s99", SA="s100", SB="s101", ST="s90", SP="s91", u="s6", w="s7", ROT="s3")
S_KK, S_DK, S_XQ = 48, 66, 75
OPT = dict(stamps=False, BI=2, sc1p=True)
VST = [223]
def stamp(idx):
    if not OPT['stamps']: return []
    return L("s_memrealtime s[4:5]\ns_waitcnt lgkmcnt(0)\nv_writelane_b32 v%d, s4, %d\ns_memtime s[4:5]\ns_waitcnt lgkmcnt(0)\nv_writelane_b32 v%d, s4, %d" % (VST[0], idx, VST[0], 32 + idx))
def diag(n, idx):
    if OPT.get('diag', 0) != n: return []
    return L("s_waitcnt vmcnt(0)") + stamp(idx)
def stamp_out(kidx):
    if not OPT['stamps']: return []
    p = L("s_waitcnt vmcnt(0)") + stamp(31)
    p += F("s_cmp_lg_u32 {W}, 0\ns_cbranch_scc1 L_end_KN\ns_lshl_b32 s4, s2, 8\ns_add_u32 s4, s4, 0x%x\nv_lshlrev_b32 v0, 2, v0" % (STAMP_OFF + kidx * 262144))
    p += F("buffer_store_dword v%d, v0, {WS}, s4 offen" % VST[0])
    return p
def srd(d, b, n):
    return L("s_mov_b32 s%d, s%d\ns_and_b32 s%d, s%d, 0xffff\ns_mov_b32 s%d, 0x%x\ns_mov_b32 s%d, 0x20000" % (d, b, d + 1, b + 1, d + 2, n, d + 3))
def emit(a, name, prog, vg, accum=None):
    p = finish(prog)
    dr = OPT.get('drop', "")
    if 'd' in dr: p = [i for i in p if i.kind != 'dma']
    if 'b' in dr: p = [i for i in p if i.kind != 'bar']
    if 't' in dr: p = [i for i in p if not (i.kind == 'ds' and i.tag and i.tag.startswith('f'))]
    if 'v' in dr: p = [i for i in p if not getattr(i, 'silu', False)]
    if 's' in dr: p = [i for i in p if not (i.kind == 'vmem' and 's90' in i.text)]
    a.begin(name)
    for i in p: a(i.text.replace("KN", name))
    a("L_end_%s:\ns_endpgm" % name)
    a.end(name, vg, accum=accum)
    print(name, stats(p), file=sys.stderr)

def PL(): return (16384, 1024, 147456) if OPT.get('lay', 0) else (262144, 16384, 1024)
def WSP(): return OPT.get('wsp', WS_P)
def flat(t):
    o = []
    for x in t: o += x if isinstance(x, list) else [x]
    return o
def XF(mi, kk):
    n = kk * 4 + mi
    return A(4 * n, 4) if n < 64 else V(224 + 4 * (n - 64), 4)
def HF(mi, ks):
    n = ks * 8 + mi
    return XF(n & 3, n >> 2)
SET = [32, 64, 96, 128]
FB = 160
TMP = 196
V_DX, V_DW, V_DH, V_DD, V_RW, V_RX = 3, 4, 5, 6, 7, 13
V_HW, V_HH, V_L16, V_L16B, V_ST, V_SIL = 19, 20, 21, 22, 23, 24

def dma(vo, srdn, soff, pb, ioff, tag):
    assert pb - ioff >= 0
    m = F("s_add_u32 m0, {W1K}, %d" % (pb - ioff))[0]
    d = F("buffer_load_dwordx4 v%d, {%s}, s%d offen%s%s lds" % (vo, srdn, soff, (" offset:%d" % ioff) if ioff else "", OPT.get('xfl', "") if srdn == 'X' else OPT.get('wfl', "")), tag=tag, lds_w=(pb, pb + 4096))[0]
    return m, d

def gate_code(T):
    e = dict(va=T + 9, vo=T + 19, t0=T + 20, t1=T + 21, t2=T + 22, t3=T + 23)
    p = F("""v_lshrrev_b32 v{vo}, 5, v0
s_lshl_b32 {a}, {C}, 3
s_lshl_b32 {b}, {W}, 1
s_add_u32 {a}, {a}, {b}
v_add_u32 v{vo}, {a}, v{vo}
v_and_b32 v{t0}, 63, v{vo}
v_lshlrev_b32 v{t0}, 5, v{t0}
v_lshrrev_b32 v{t1}, 6, v{vo}
v_add_u32 v{t0}, v{t0}, v{t1}
s_lshl_b32 {a}, {T}, 1
v_add_u32 v{t0}, {a}, v{t0}
v_mul_u32_u24 v{t0}, 1152, v{t0}
v_and_b32 v{t1}, 31, v0
v_mul_u32_u24 v{t1}, 36, v{t1}
v_add_u32 v{t0}, v{t0}, v{t1}""", **e)
    for b_, ad, sr in ((T, "t0", "X"), (T + 10, "t1", "GW")):
        p += F("buffer_load_dwordx4 v[%d:%d], v{%s}, {%s}, 0 offen\nbuffer_load_dwordx4 v[%d:%d], v{%s}, {%s}, 0 offen offset:16\nbuffer_load_dword v%d, v{%s}, {%s}, 0 offen offset:32"
               % (b_, b_ + 3, ad, sr, b_ + 4, b_ + 7, ad, sr, b_ + 8, ad, sr), **e)
    q = []
    for n in range(9):
        q += F("""v_lshlrev_b32 v{t0}, 16, v{x}
v_lshlrev_b32 v{t1}, 16, v{g}
v_and_b32 v{t2}, 0xffff0000, v{x}
v_and_b32 v{t3}, 0xffff0000, v{g}
v_mul_f32 v{t0}, v{t0}, v{t1}
v_mul_f32 v{t2}, v{t2}, v{t3}
v_cvt_pk_bf16_f32 v{t0}, v{t0}, v{t2}
v_lshlrev_b32 v{t1}, 16, v{t0}
v_and_b32 v{t0}, 0xffff0000, v{t0}""", x=T + n, g=T + 10 + n, **e)
        q += F("v_add_f32 v{va}, v{t1}, v{t0}" if n == 0 else "v_add_f32 v{va}, v{va}, v{t1}\nv_add_f32 v{va}, v{va}, v{t0}", **e)
    for sh in (8, 4, 2, 1):
        q += F("v_add_f32_dpp v{va}, v{va}, v{va} row_ror:%d row_mask:0xf bank_mask:0xf" % sh, **e)
    q += F("""v_mov_b32 v{t0}, v{va}
v_and_b32 v{t1}, 31, v0
v_cmp_eq_u32 vcc, 0, v{t1}
v_permlane16_swap_b32 v{va}, v{t0}
v_add_f32 v{va}, v{va}, v{t0}
v_cvt_pk_bf16_f32 v{va}, v{va}, v{va}
v_lshlrev_b32 v{va}, 16, v{va}
v_mul_f32 v{va}, {NL}, v{va}
v_exp_f32 v{va}, v{va}
v_lshlrev_b32 v{vo}, 2, v{vo}
v_add_f32 v{va}, 1.0, v{va}
v_rcp_f32 v{va}, v{va}
v_bfrev_b32 v{t1}, 1
v_cvt_pk_bf16_f32 v{va}, v{va}, v{va}
v_lshlrev_b32 v{va}, 16, v{va}
v_sub_f32 v{t0}, 1.0, v{va}
v_cvt_pk_bf16_f32 v{t0}, v{t0}, v{t0}
v_lshlrev_b32 v{t0}, 16, v{t0}
v_cndmask_b32 v{vo}, v{t1}, v{vo}, vcc
s_lshl_b32 {u}, {T}, 9
s_add_u32 {u}, {u}, %d
s_add_u32 {w}, {u}, %d""" % (WS_G, WS_O - WS_G), **e)
    q += F("buffer_store_dword v{va}, v{vo}, {WS}, {u} offen sc1\nbuffer_store_dword v{t0}, v{vo}, {WS}, {w} offen sc1", tag="pub1", **e)
    return p, q

def t_setup(P, kb, opt=False):
    e = dict(vk=P, vphi=P + 1, vco=P + 2, vd=P + 3, vmu=P + 4, vsg=P + 5, t=P + 6, kb=kb)
    return F("""v_lshrrev_b32 v{vk}, 2, v1
v_lshlrev_b32 v{vk}, 1, v{vk}
v_and_b32 v{t}, 1, v1
v_add_u32 v{vk}, v{vk}, v{t}
v_lshlrev_b32 v{vsg}, 31, v{t}
v_or_b32 v{vsg}, 1.0, v{vsg}
s_lshl_b32 {a}, {kb}, 4
s_lshl_b32 {b}, {FH}, 3
s_add_u32 {a}, {a}, {b}
v_add_u32 v{vk}, {a}, v{vk}
v_bfe_u32 v{vphi}, v1, 1, 1
v_cvt_f32_u32 v{vphi}, v{vphi}
v_mul_f32 v{vphi}, 0x3e800000, v{vphi}
v_add_u32 v{t}, {a}, v1
v_cmp_eq_u32 vcc, 2, v{t}
v_mov_b32 v{t}, 0x120
v_lshlrev_b32 v{vd}, 3, v2
v_cndmask_b32 v{vk}, v{vk}, v{t}, vcc
v_cndmask_b32 v{vphi}, v{vphi}, 0, vcc
v_mul_u32_u24 v{t}, {ROT}, v{vk}
v_mul_u32_u24 v{vco}, 7282, v{t}
v_lshrrev_b32 v{vco}, 16, v{vco}
v_mul_u32_u24 v{vco}, 9, v{vco}
v_sub_u32 v{t}, v{t}, v{vco}
v_cvt_f32_u32 v{t}, v{t}
v_fmac_f32 v{vphi}, 0x3de38e39, v{t}
v_cvt_f32_u32 v{vk}, v{vk}
v_mul_f32 v{vco}, %s, v{vk}
v_mul_f32 v{vk}, %s, v{vk}
v_cos_f32 v{vco}, v{vco}
v_add_u32 v{t}, {a}, v2
v_cmp_eq_u32 vcc, 0, v{t}
v_cvt_f32_u32 v{vd}, v{vd}
v_add_f32 v{vco}, v{vco}, v{vco}
v_cndmask_b32 v{vmu}, 1.0, 0, vcc""" % (f2h(1.0 / 18), f2h(1.0 / 576)), opt=opt, **e)

def t_frag(kk, f, ST, P, opt=False):
    cur = ST + 8 * (kk & 1); prv = ST + 8 * ((kk + 1) & 1); ops = []
    if kk < 2:
        for j in range(8): ops += L("v_add_f32 v%d, %s, v%d" % (cur + j, f2h(32.0 * kk + j), P + 3), opt=opt)
        for j in range(8): ops += L("v_fma_f32 v%d, v%d, v%d, v%d" % (cur + j, cur + j, P, P + 1), opt=opt)
        for j in range(8): ops += L("v_cos_f32 v%d, v%d" % (cur + j, cur + j), opt=opt)
    else:
        for j in range(8): ops += L("v_fma_f32 v%d, v%d, v%d, -v%d" % (cur + j, P + 2, prv + j, cur + j), opt=opt)
    for jp in range(4): ops += L("v_cvt_pk_bf16_f32 v%d, v%d, v%d" % (f + jp, cur + 2 * jp, cur + 2 * jp + 1), opt=opt)
    return ops

def twiddle_A(TW, T):
    vs, vj, p0, p1, c0, c1 = T, T + 4, T + 5, T + 6, T + 7, T + 8
    p = F("v_lshlrev_b32 v{vs}, 7, v2\nv_add_u32 v{vs}, {S2}, v{vs}\nv_cvt_f32_u32 v{vs}, v{vs}", vs=vs)
    for j in range(1, 4): p += L("v_add_f32 v%d, %s, v%d" % (vs + j, f2h(32.0 * j), vs))
    for a in range(4):
        p += L("v_lshl_add_u32 v%d, v1, 2, %d\nv_cvt_f32_u32 v%d, v%d\nv_mul_f32 v%d, %s, v%d" % (vj, a, vj, vj, vj, f2h(1.0 / 2048), vj))
        b = TW(a)
        for jp in range(2):
            p += L("""v_mul_f32 v%d, v%d, v%d
v_mul_f32 v%d, v%d, v%d
v_cos_f32 v%d, v%d
v_cos_f32 v%d, v%d
v_sin_f32 v%d, v%d
v_sin_f32 v%d, v%d
v_cvt_pk_bf16_f32 v%d, v%d, v%d
v_cvt_pk_bf16_f32 v%d, v%d, v%d""" % (p0, vs + 2 * jp, vj, p1, vs + 2 * jp + 1, vj, c0, p0, c1, p1, p0, p0, p1, p1, b + jp, c0, c1, b + 4 + jp, p0, p1))
            C = "v%d, v%d" % (c0, c1); nC = "-v%d, -v%d" % (c0, c1); Sn = "v%d, v%d" % (p0, p1); nS = "-v%d, -v%d" % (p0, p1)
            cc, ss = [(C, Sn), (nS, C), (nC, nS), (Sn, nC)][a]
            p += L("v_cvt_pk_bf16_f32 v%d, %s\nv_cvt_pk_bf16_f32 v%d, %s" % (b + 2 + jp, cc, b + 6 + jp, ss))
    return p

def step_A(ACC, TW, DF, P, kb, stg, fill=None, opt=False):
    k = dict(opt=opt)
    fill = fill or (lambda n: [])
    t0, t1, va, vb = DF + 8, DF + 9, DF + 10, DF + 11
    e = dict(va=va, vb=vb, t0=t0, kb=kb, L16=V_L16)
    p = F("""s_mul_i32 {a}, {RG}, 4352
s_lshl_b32 {b}, {FH}, 4
s_add_u32 {a}, {a}, {b}
s_add_u32 {a}, {a}, %d
v_mul_u32_u24 v{va}, 272, v1
v_lshl_add_u32 v{va}, v2, 2, v{va}
v_add_u32 v{va}, {a}, v{va}
s_mul_i32 {a}, {W}, 2176
s_add_u32 {a}, {a}, %d
v_lshl_add_u32 v{vb}, v2, 4, v{L16}
v_add_u32 v{vb}, {a}, v{vb}
s_lshl_b32 {c}, {W}, 11
s_lshl_b32 {a}, {T}, 13
s_lshl_b32 {b}, {kb}, 17
s_add_u32 {b}, {b}, {a}
s_add_u32 {b}, {b}, {c}""" % (stg, stg), **k, **e)
    for i in range(16): p += L("v_fma_f32 v%d, v%d, v%d, v%d" % (ACC + i, P + 5, ACC + 16 + i, ACC + i), **k)
    for i in range(8):
        p += L("v_add_f32 v%d, v%d, v%d\nv_sub_f32 v%d, v%d, v%d" % (ACC + 16 + i, ACC + i, ACC + 8 + i, ACC + 24 + i, ACC + i, ACC + 8 + i), **k)
    for i in range(8): p += L("v_cvt_pk_bf16_f32 v%d, v%d, v%d" % (DF + i, ACC + 16 + 2 * i, ACC + 17 + 2 * i), **k)
    T1, T2 = ACC, ACC + 16
    for a in range(4):
        for cs, D in ((0, T1), (1, T2)):
            p.append(mf(V(D + 4 * a, 4), V(DF + 4 * (a & 1), 4), V(TW(a) + 4 * cs, 4), None, opt))
            p += fill(2)
    rng = (stg, stg + 8704)
    for a in range(4):
        x, y = T1 + 4 * a, T2 + 4 * a
        p += L("""v_fma_f32 v%d, v%d, v%d, v%d
v_add_f32 v%d, v%d, v%d
v_cvt_pk_bf16_f32 v%d, v%d, v%d
v_fma_f32 v%d, v%d, v%d, -v%d
v_sub_f32 v%d, v%d, v%d
v_cvt_pk_bf16_f32 v%d, v%d, v%d""" % (t0, P + 4, y + 2, x, t1, x + 1, y + 3, DF + 2 * a, t0, t1, t0, P + 4, x + 2, y, t1, x + 3, y + 1, DF + 2 * a + 1, t0, t1), **k)
        p += L("ds_write2_b32 v%d, v%d, v%d offset0:%d offset1:%d" % (va, DF + 2 * a, DF + 2 * a + 1, 16 * a, 16 * a + 8), lds_w=rng, tag="sa", **k)
    if not opt:
        p += F("s_or_b32 {c}, {kb}, {FH}\ns_cmp_lg_u32 {c}, 0\ns_cbranch_scc1 L_ny_KN", kb=kb)
        o = "ny"
        q = F("""s_lshl_b32 {a}, {S2}, 12
s_add_u32 {a}, {a}, %d
v_bfe_u32 v{va}, v1, 2, 1
v_lshlrev_b32 v{va}, 6, v{va}
v_lshrrev_b32 v{t0}, 3, v1
v_lshl_add_u32 v{va}, v{t0}, 17, v{va}
v_and_b32 v{t0}, 3, v1
v_lshl_add_u32 v{va}, v{t0}, 2, v{va}
v_lshl_add_u32 v{va}, v2, 28, v{va}""" % (18 * KB_STRIDE), opt=o, va=va, t0=t0)
        for par in range(2):
            q += L("v_cvt_pk_bf16_f32 v%d, v%d, v%d\nv_cvt_pk_bf16_f32 v%d, -v%d, -v%d"
                   % (T1 + par, T1 + 4 * par + 2, T1 + 4 * par + 10, T2 + par, T2 + 4 * par + 2, T2 + 4 * par + 10), opt=o)
        for par in range(2):
            q += F("buffer_store_dword v%d, v{va}, {WS}, {a} offen offset:%d sc1\nbuffer_store_dword v%d, v{va}, {WS}, {a} offen offset:%d sc1"
                   % (T1 + par, par * 16, T2 + par, 32 + par * 16), opt=o, tag="pub1", va=va)
        p += q + L("L_ny_KN:")
    p += L("s_barrier", need_lgkm=("sa",), **k)
    p += L("ds_read_b128 v[%d:%d], v%d\nds_read_b128 v[%d:%d], v%d offset:1088" % (DF, DF + 3, vb, DF + 4, DF + 7, vb), lds_r=rng, tag="lds", **k)
    p += fill(16)
    p += F("buffer_store_dwordx4 v[%d:%d], v{L16}, {WS}, {b} offen sc1\nbuffer_store_dwordx4 v[%d:%d], v{L16}, {WS}, {b} offen offset:1024 sc1"
           % (DF, DF + 3, DF + 4, DF + 7), tag="pub1", **k, **e)
    return p

def dft32(M, T, opt):
    vi, vg, p0, p1, c0, c1 = T, T + 1, T + 2, T + 3, T + 4, T + 5
    k = dict(opt=opt)
    p = L("v_cvt_f32_u32 v%d, v1\nv_lshlrev_b32 v%d, 2, v2\nv_mul_f32 v%d, %s, v%d\nv_cvt_f32_u32 v%d, v%d" % (vi, vg, vi, f2h(1.0 / 32), vi, vg, vg), **k)
    for jp in range(2):
        p += L("""v_add_f32 v%d, %s, v%d
v_add_f32 v%d, %s, v%d
v_mul_f32 v%d, v%d, v%d
v_mul_f32 v%d, v%d, v%d
v_cos_f32 v%d, v%d
v_cos_f32 v%d, v%d
v_sin_f32 v%d, v%d
v_sin_f32 v%d, v%d
v_cvt_pk_bf16_f32 v%d, v%d, v%d
v_cvt_pk_bf16_f32 v%d, v%d, v%d""" % (p0, f2h(2.0 * jp), vg, p1, f2h(2.0 * jp + 1), vg, p0, p0, vi, p1, p1, vi, c0, p0, c1, p1, p0, p0, p1, p1, M + jp, c0, c1, M + 4 + jp, p0, p1), **k)
    p += L("v_and_b32 v%d, 1, v1\nv_mul_u32_u24 v%d, 0x8000, v%d\nv_lshl_add_u32 v%d, v%d, 16, v%d" % (vi, vi, vi, vi, vi, vi), **k)
    for b in (M, M + 4):
        for jp in range(2): p += L("v_xor_b32 v%d, v%d, v%d" % (b + 2 + jp, vi, b + jp), **k)
    for d in range(4):
        p += L("v_xor_b32 v%d, 0x80008000, v%d\nv_xor_b32 v%d, 0x80000000, v%d\nv_xor_b32 v%d, 0x80000000, v%d\nv_xor_b32 v%d, 0x8000, v%d"
               % (M + 8 + d, M + 4 + d, M + 12 + d, M + d, M + 16 + d, M + 4 + d, M + 20 + d, M + 4 + d), **k)
    return p

def nyw_load(T, o):
    return F("""s_lshl_b32 {a}, {T}, 7
s_lshl_b32 {b}, {FH}, 6
s_add_u32 {a}, {a}, {b}
v_add_u32 v{j}, {a}, v0
v_mul_u32_u24 v{r}, 578, v{j}
s_cmp_eq_u32 {RG}, 0
s_cselect_b32 s44, s32, s36
s_cselect_b32 s45, s33, s37
s_mov_b32 s46, %d
s_mov_b32 s47, 0x20000
buffer_load_ushort v{r}, v{r}, s[44:47], 0 offen offset:576""" % (2048 * 578), opt=o, j=T, r=T + 1)
def nyw_store(T, o):
    return F("""s_lshl_b32 {a}, {RG}, 12
s_lshl_b32 {b}, {T}, 8
s_add_u32 {a}, {a}, {b}
s_lshl_b32 {b}, {FH}, 7
s_add_u32 {a}, {a}, {b}
s_add_u32 {a}, {a}, %d
v_and_b32 v{j}, 14, v0
v_and_b32 v{t}, 1, v0
v_lshl_add_u32 v{j}, v{t}, 4, v{j}
v_and_b32 v{t}, 1, v2
v_lshl_add_u32 v{j}, v{t}, 6, v{j}
v_lshrrev_b32 v{t}, 1, v2
v_lshl_add_u32 v{j}, v{t}, 5, v{j}""" % WS_N, opt=o, j=T, t=T + 2) + F("buffer_store_short v%d, v%d, {WS}, {a} offen sc1" % (T + 1, T), opt=o, tag="pub1")

def s2_wloads(gam, Wr, T, opt, special):
    e = dict(gam=gam, vw=T, t0=T + 1)
    if special:
        p = F("""s_lshl_b32 {a}, {RG}, 12
s_lshl_b32 {b}, {FH}, 6
s_add_u32 {a}, {a}, {b}
s_add_u32 {a}, {a}, %d
v_lshrrev_b32 v{vw}, 2, v0
v_lshlrev_b32 v{vw}, 7, v{vw}
v_and_b32 v{t0}, 3, v0
v_lshl_add_u32 v{vw}, v{t0}, 4, v{vw}
buffer_load_dwordx4 v[%d:%d], v{vw}, {WS}, {a} offen sc1
buffer_load_dwordx4 v[%d:%d], v{vw}, {WS}, {a} offen offset:2048 sc1""" % (WS_N, Wr, Wr + 3, Wr + 4, Wr + 7), opt=opt, **e)
        return p
    fl = OPT.get('s2fl', "")
    return F("""s_and_b32 {b}, {gam}, 31
s_lshl_b32 {b}, {b}, 1
s_add_u32 {b}, {b}, {FH}
s_mul_i32 {b}, {b}, 578
s_lshr_b32 {a}, {gam}, 5
s_lshl_b32 {a}, {a}, 6
s_add_u32 {a}, {a}, {b}
s_add_u32 {b}, {a}, %d
s_cmp_eq_u32 {RG}, 0
s_cselect_b32 s44, s32, s36
s_cselect_b32 s45, s33, s37
s_mov_b32 s46, %d
s_mov_b32 s47, 0x20000
v_lshrrev_b32 v{vw}, 2, v0
v_mul_u32_u24 v{vw}, 36992, v{vw}
v_and_b32 v{t0}, 3, v0
v_lshl_add_u32 v{vw}, v{t0}, 4, v{vw}
buffer_load_dwordx4 v[%d:%d], v{vw}, s[44:47], {a} offen%s
buffer_load_dwordx4 v[%d:%d], v{vw}, s[44:47], {b} offen%s""" % (16 * 36992, 2048 * 578, Wr, Wr + 3, fl, Wr + 4, Wr + 7, fl), opt=opt, **e)

def s2_gaddr(va, t0, opt):
    return F("v_lshrrev_b32 v{va}, 3, v0\nv_lshlrev_b32 v{va}, 12, v{va}\nv_and_b32 v{t0}, 7, v0\nv_lshl_add_u32 v{va}, v{t0}, 4, v{va}", opt=opt, va=va, t0=t0)
def s2_dloads(gam, keep, D, T, opt):
    p = s2_gaddr(T, T + 1, opt)
    p += F("""s_lshr_b32 {a}, {gam}, 5
s_lshl_b32 {a}, {a}, 1
s_add_u32 {a}, {a}, {RG}
s_lshl_b32 {keep}, {a}, 17
s_and_b32 {b}, {gam}, 31
s_lshl_b32 {b}, {b}, 7
s_add_u32 {keep}, {keep}, {b}
s_lshl_b32 {b}, {FH}, 16
s_add_u32 {keep}, {keep}, {b}
s_add_u32 {c}, {keep}, 0x8000
buffer_load_dwordx4 v[%d:%d], v%d, {WS}, {keep} offen sc1
buffer_load_dwordx4 v[%d:%d], v%d, {WS}, {c} offen sc1""" % (D, D + 3, T, D + 4, D + 7, T), opt=opt, keep=keep, gam=gam)
    return p

def s2_addr(T, lds_base, opt):
    e = dict(vl=T, vr=T + 1, vw=T + 2, vo=T + 3, vp=T + 4, vb=T + 5, t0=T + 7, L16=V_L16)
    return F("""s_lshl_b32 {a}, {W}, 11
s_add_u32 {a}, {a}, %d
v_add_u32 v{vl}, {a}, v{L16}
v_lshrrev_b32 v{t0}, 3, v0
v_lshlrev_b32 v{t0}, 4, v{t0}
v_xor_b32 v{vb}, v{vl}, v{t0}
v_lshrrev_b32 v{vr}, 2, v1
v_lshl_add_u32 v{vr}, v2, 2, v{vr}
v_lshlrev_b32 v{vw}, 6, v{vr}
v_lshlrev_b32 v{vr}, 7, v{vr}
v_and_b32 v{t0}, 3, v1
v_lshl_add_u32 v{vr}, v{t0}, 3, v{vr}
v_lshl_add_u32 v{vw}, v{t0}, 3, v{vw}
s_lshl_b32 {a}, {RG}, 12
s_lshl_b32 {b}, {FH}, 6
s_add_u32 {a}, {a}, {b}
s_add_u32 {a}, {a}, %d
v_add_u32 v{vr}, {a}, v{vr}
v_lshlrev_b32 v{vo}, 7, v1
v_lshl_add_u32 v{vo}, v2, 3, v{vo}
v_add_u32 v{vo}, {a}, v{vo}
v_and_b32 v{t0}, 7, v1
v_lshlrev_b32 v{t0}, 4, v{t0}
v_xor_b32 v{vo}, v{vo}, v{t0}
v_xor_b32 v{vp}, 32, v{vo}
s_lshl_b32 {a}, {FH}, 11
s_lshl_b32 {b}, {RG}, 5
s_add_u32 {a}, {a}, {b}
s_add_u32 {a}, {a}, %d
v_add_u32 v{vw}, {a}, v{vw}""" % (lds_base, lds_base, lds_base + 8192), opt=opt, **e) + s2_gaddr(T + 6, T + 7, opt)

def s2_compute(keep, M, D, Z, Wr, T, X, lds_base, opt):
    e = dict(keep=keep, vl=T, vr=T + 1, vw=T + 2, vb=T + 5, va=T + 6, t0=X, t1=X + 1, t2=X + 2, t3=X + 3)
    k = dict(opt=opt)
    rng = (lds_base, lds_base + 16384); rn2 = (lds_base + 16384, lds_base + 24576)
    q = F("ds_write_b128 v{vl}, v[%d:%d]\nds_write_b128 v{vl}, v[%d:%d] offset:1024\nds_write_b128 v{vl}, v[%d:%d] offset:8192\nds_write_b128 v{vl}, v[%d:%d] offset:9216"
          % (D, D + 3, D + 4, D + 7, Wr, Wr + 3, Wr + 4, Wr + 7), lds_w=rng, tag="s2", **k, **e)
    q += F("s_add_u32 {a}, {keep}, %d\ns_add_u32 {b}, {a}, 0x8000" % WS_B, **k, **e)
    q += L("s_barrier", need_lgkm=("s2",), **k)
    for pl in range(2):
        q += F("ds_read_b64_tr_b16 v[%d:%d], v{vr} offset:%d\nds_read_b64_tr_b16 v[%d:%d], v{vr} offset:%d"
               % (D + 4 * pl, D + 4 * pl + 1, pl * 32, D + 4 * pl + 2, D + 4 * pl + 3, pl * 32 + 2048), lds_r=rng, tag="lds", **k, **e)
    for pl in range(2):
        q += F("ds_read_b64_tr_b16 v[%d:%d], v{vw} offset:%d\nds_read_b64_tr_b16 v[%d:%d], v{vw} offset:%d"
               % (Wr + 4 * pl, Wr + 4 * pl + 1, pl * 4096, Wr + 4 * pl + 2, Wr + 4 * pl + 3, pl * 4096 + 1024), lds_r=rng, tag="lds", **k, **e)
    C = lambda a: V(M + (a * 3) * 4, 4)
    Sn = lambda a: V(M + (a * 3 + 1) * 4, 4)
    N = lambda a: V(M + (a * 3 + 2) * 4, 4)
    Ar, Ai = V(D, 4), V(D + 4, 4)
    for aa in range(2):
        zr, zi = V(Z + 4 * aa, 4), V(Z + 8 + 4 * aa, 4)
        q += [mf(zr, C(aa), Ar, None, opt), mf(zr, Sn(aa), Ai, zr, opt), mf(zi, C(aa), Ai, None, opt), mf(zi, N(aa), Ar, zi, opt)]
    for i in range(8):
        un = "v_lshlrev_b32 v{t2}, 16, v{wr}\nv_lshlrev_b32 v{t3}, 16, v{wi}\n" if i % 2 == 0 else "v_and_b32 v{t2}, 0xffff0000, v{wr}\nv_and_b32 v{t3}, 0xffff0000, v{wi}\n"
        q += F(un + """v_mul_f32 v{t0}, v{zi}, v{t3}
v_mul_f32 v{t1}, v{zr}, v{t3}
v_fma_f32 v{zr}, v{zr}, v{t2}, -v{t0}
v_fma_f32 v{zi}, v{zi}, v{t2}, v{t1}""", zr=Z + i, zi=Z + 8 + i, wr=Wr + i // 2, wi=Wr + 4 + i // 2, **k, **e)
    for pl in range(2):
        for d in range(4): q += L("v_cvt_pk_bf16_f32 v%d, v%d, v%d" % (D + 4 * pl + d, Z + 8 * pl + 2 * d, Z + 8 * pl + 2 * d + 1), **k)
    for aa in range(2):
        br = V(Z + 4 * aa, 4)
        q += [mf(br, Ar, C(aa), None, opt), mf(br, Ai, N(aa), br, opt)]
    for aa in range(2):
        bi = V(Z + 8 + 4 * aa, 4)
        q += [mf(bi, Ai, C(aa), None, opt), mf(bi, Ar, Sn(aa), bi, opt)]
    for pl in range(2):
        for aa in range(2):
            r = Wr + 4 * pl + 2 * aa; z = Z + 8 * pl + 4 * aa
            q += L("v_cvt_pk_bf16_f32 v%d, v%d, v%d\nv_cvt_pk_bf16_f32 v%d, v%d, v%d" % (r, z, z + 1, r + 1, z + 2, z + 3), **k)
            q += L("ds_write_b64 v%d, v[%d:%d] offset:%d" % (T + 3 + pl, r, r + 1, 16384 + aa * 2048), lds_w=rn2, tag="s2", **k)
    q += L("s_barrier", need_lgkm=("s2", "lds"), **k)
    q += F("ds_read_b128 v[%d:%d], v{vb} offset:16384\nds_read_b128 v[%d:%d], v{vb} offset:17408" % (D, D + 3, D + 4, D + 7), lds_r=rn2, tag="lds", **k, **e)
    q += F("buffer_store_dwordx4 v[%d:%d], v{va}, {WS}, {a} offen sc1\nbuffer_store_dwordx4 v[%d:%d], v{va}, {WS}, {b} offen sc1"
           % (D, D + 3, D + 4, D + 7), tag="pub2", **k, **e)
    return q

def twiddle_D(TW, T):
    vs, vj, vk, c0, c1, s0, s1 = T, T + 1, T + 2, T + 3, T + 4, T + 5, T + 6
    p = F("""s_lshl_b32 {u}, {FH}, 9
s_add_u32 {u}, {u}, {S2}
v_lshlrev_b32 v{vs}, 5, v1
v_add_u32 v{vs}, {u}, v{vs}
v_cvt_f32_u32 v{vs}, v{vs}
v_mul_f32 v{vs}, %s, v{vs}
v_lshlrev_b32 v{vj}, 4, v2
v_cvt_f32_u32 v{vj}, v{vj}
v_add_f32 v{vk}, v{vs}, v{vs}
v_cos_f32 v{vk}, v{vk}""" % f2h(1.0 / 2048), vs=vs, vj=vj, vk=vk)
    for par in range(2):
        p += L("""v_add_f32 v%d, %s, v%d
v_add_f32 v%d, %s, v%d
v_mul_f32 v%d, v%d, v%d
v_mul_f32 v%d, v%d, v%d
v_cos_f32 v%d, v%d
v_cos_f32 v%d, v%d
v_sin_f32 v%d, v%d
v_sin_f32 v%d, v%d""" % (s0, f2h(float(par)), vj, s1, f2h(par + 2.0), vj, s0, s0, vs, s1, s1, vs, c0, s0, c1, s1, s0, s0, s1, s1))
        if par == 0: p += L("v_add_f32 v%d, v%d, v%d" % (vk, vk, vk))
        for jp in range(4):
            if jp:
                p += L("v_fma_f32 v%d, v%d, v%d, -v%d\nv_fma_f32 v%d, v%d, v%d, -v%d\nv_fma_f32 v%d, v%d, v%d, -v%d\nv_fma_f32 v%d, v%d, v%d, -v%d"
                       % (c0, vk, c1, c0, s0, vk, s1, s0, c1, vk, c0, c1, s1, vk, s0, s1))
            p += L("v_cvt_pk_bf16_f32 v%d, v%d, v%d\nv_cvt_pk_bf16_f32 v%d, v%d, v%d" % (TW + par * 8 + jp, c0, c1, TW + par * 8 + 4 + jp, s0, s1))
    return p

def stepD_loads(kb, RAW, opt=False):
    p = F("s_lshl_b32 {a}, {S2}, 12\ns_add_u32 {a}, {a}, %d\ns_lshl_b32 {b}, {kb}, 17\ns_add_u32 {b}, {b}, {a}" % WS_B, kb=kb, opt=opt)
    for i in range(4):
        p += F("buffer_load_dwordx4 v[%d:%d], v%d, {WS}, {b} offen offset:%d sc1" % (RAW + 4 * i, RAW + 4 * i + 3, V_L16, i * 1024), opt=opt)
    return p
def stepD_nyloads(NY, T, opt):
    p = F("s_add_u32 {a}, {a}, %d\nv_and_b32 v{t}, 1, v2\nv_lshlrev_b32 v{t}, 6, v{t}\nv_lshrrev_b32 v{n}, 1, v2\nv_lshl_add_u32 v{t}, v{n}, 17, v{t}" % (18 * KB_STRIDE), opt=opt, t=T, n=NY)
    for par in range(2):
        for pl in range(2):
            r = NY + (par * 2 + pl) * 4
            p += F("buffer_load_dwordx4 v[%d:%d], v%d, {WS}, {a} offen offset:%d sc1" % (r, r + 3, T, pl * 32 + par * 16), opt=opt)
    return p

def stepD_parts(RAW, NY, NB, TW, ACC, T, stage_base, kb, so, opt=False):
    k = dict(opt=opt)
    e = dict(vl=T, vr=T + 1, t0=T + 2, so=so, kb=kb)
    rng = (stage_base, stage_base + 16384)
    p = F("s_lshl_b32 {so}, {W}, 12\ns_add_u32 {so}, {so}, %d\nv_add_u32 v{vl}, {so}, v%d" % (stage_base, V_L16), **k, **e)
    p += F("""v_lshrrev_b32 v{vr}, 2, v1
v_lshl_add_u32 v{vr}, v2, 3, v{vr}
v_lshlrev_b32 v{vr}, 7, v{vr}
v_and_b32 v{t0}, 3, v1
v_lshl_add_u32 v{vr}, v{t0}, 3, v{vr}
v_add_u32 v{vr}, {so}, v{vr}""", **k, **e)
    for i in range(4):
        p += F("ds_write_b128 v{vl}, v[%d:%d] offset:%d" % (RAW + 4 * i, RAW + 4 * i + 3, i * 1024), lds_w=rng, priv=True, tag="lds", **k, **e)
    for par in range(2):
        for pl in range(2):
            r = RAW + (par * 2 + pl) * 4; o = par * 64 + pl * 32
            p += F("ds_read_b64_tr_b16 v[%d:%d], v{vr} offset:%d\nds_read_b64_tr_b16 v[%d:%d], v{vr} offset:%d" % (r, r + 1, o, r + 2, r + 3, o + 512),
                   lds_r=rng, priv=True, tag="lds", **k, **e)
    p += F("s_mul_i32 {so}, {T}, 18\ns_add_u32 {so}, {so}, {kb}\ns_lshl_b32 {so}, {so}, 1\ns_add_u32 {so}, {so}, {RG}\ns_lshl_b32 {so}, {so}, 2\ns_add_u32 {so}, {so}, {FH}\ns_lshl_b32 {so}, {so}, 10\ns_add_u32 {so}, {so}, %d" % WS_Y, **k, **e)
    ng = []
    for par in range(2):
        for d in range(4): ng += L("v_xor_b32 v%d, 0x80008000, v%d" % (NB + 4 * par + d, RAW + par * 8 + 4 + d), **k)
    mr = []
    for par in range(2):
        er = V(ACC + 8 * par, 4)
        mr += [mf(er, V(RAW + 8 * par, 4), V(TW + 8 * par, 4), None, opt), mf(er, V(NB + 4 * par, 4), V(TW + 8 * par + 4, 4), er, opt)]
    pt = []
    if not opt:
        pt = F("s_cmp_lg_u32 {C}, 0\ns_cbranch_scc1 L_nyd_KN") + L("v_cmp_eq_u32 vcc, 0, v1", opt="nyd")
        for par in range(2):
            for d in range(4):
                br, bi, nr, ni = RAW + 8 * par + d, RAW + 8 * par + 4 + d, NY + 8 * par + d, NY + 8 * par + 4 + d
                pt += L("v_xor_b32 v%d, 0x80008000, v%d\nv_cndmask_b32 v%d, v%d, v%d, vcc\nv_cndmask_b32 v%d, v%d, v%d, vcc" % (ni, ni, bi, bi, nr, br, br, ni), opt="nyd")
        pt += L("L_nyd_KN:")
    mi_ = []
    for par in range(2):
        ei = V(ACC + 8 * par + 4, 4)
        mi_ += [mf(ei, V(RAW + 8 * par + 4, 4), V(TW + 8 * par, 4), None, opt), mf(ei, V(RAW + 8 * par, 4), V(TW + 8 * par + 4, 4), ei, opt)]
    f = []
    for r in range(8):
        f += L("v_add_f32 v%d, v%d, v%d\nv_sub_f32 v%d, v%d, v%d" % (RAW + r, ACC + r, ACC + 8 + r, RAW + 8 + r, ACC + r, ACC + 8 + r), **k)
    for u in range(2):
        for d in range(4): f += L("v_cvt_pk_bf16_f32 v%d, v%d, v%d" % (RAW + 8 * u + d, RAW + 8 * u + 2 * d, RAW + 8 * u + 2 * d + 1), **k)
        f += F("buffer_store_dwordx4 v[%d:%d], v%d, {WS}, {so} offen offset:%d sc1" % (RAW + 8 * u, RAW + 8 * u + 3, V_L16, u * 2048), **k, **e)
    return p, ng, mr, pt, mi_, f

def lanes(v, init, vals, o):
    p = L("v_mov_b32 v%d, %s" % (v, init), opt=o)
    for i, s in enumerate(vals): p += F("v_writelane_b32 v%d, %s, %d" % (v, s, i), opt=o)
    return p
def w0(name, body):
    return F("s_cmp_lg_u32 {W}, 0\ns_cbranch_scc1 L_%s_KN" % name) + body + L("L_%s_KN:" % name)
def arrive(name, calc, VA):
    o = name
    b = F(calc, opt=o) + lanes(VA, "0x1000", ["{a}", "{b}", "{c}"], o) + L("v_mov_b32 v%d, 1" % (VA + 1), opt=o)
    b += F("buffer_atomic_add v%d, v%d, {DBG}, 0 offen sc1" % (VA + 1, VA), opt=o)
    return w0(name, b)
def poll_issue(name, calc, calc2, VP):
    o = name
    b = F(calc, opt=o) + lanes(VP, "0x1000", ["{a}", "{b}", "{c}"], o)
    b += F("buffer_load_dword v%d, v%d, {DBG}, 0 offen sc1" % (VP + 2, VP), opt=o)
    b += F(calc2, opt=o) + lanes(VP + 1, "0", ["{a}", "{b}", "{c}"], o)
    return w0(name, b)
def poll_check(name, VP, sidx=None):
    o = name
    b = F("""v_cmp_lt_u32 vcc, v{r}, v{x}
s_mov_b32 {SP}, 0
s_cbranch_vccz L_{n}_KN
L_{n}s_KN:
s_sleep 4
buffer_load_dword v{r}, v{ad}, {DBG}, 0 offen sc1
s_add_u32 {SP}, {SP}, 1
s_cmp_ge_u32 {SP}, 0x40000
s_cbranch_scc1 L_{n}_KN
s_waitcnt vmcnt(0)
v_cmp_lt_u32 vcc, v{r}, v{x}
s_nop 4
s_cbranch_vccnz L_{n}s_KN""", opt=o, r=VP + 2, x=VP + 1, ad=VP, n=name)
    p = w0(name, b)
    if OPT['stamps'] and sidx is not None: p += F("s_add_u32 {SP}, {SP}, 1\nv_writelane_b32 v%d, {SP}, %d" % (VST[0], sidx))
    return p

def kernel_main(a):
    name = NAME + "_kernel"
    BI = OPT['BI']
    a.launch(name, 256, 256, 163840)
    t0, t1 = TMP, TMP + 1
    e = dict(t0=t0, t1=t1, DX=V_DX, DW=V_DW, DH=V_DH, DD=V_DD, RW=V_RW, RX=V_RX, RW1=V_RW + 3, RX1=V_RX + 3, HW=V_HW, HH=V_HH, L16=V_L16, L16B=V_L16B, VST_=V_ST)
    p = L("s_cmp_ge_u32 s2, 256\ns_cbranch_scc1 L_end_KN")
    if OPT['stamps']: p += L("v_mov_b32 v%d, 0" % VST[0])
    p += stamp(0)
    p += L("s_load_dwordx16 s[52:67], s[0:1], 0\ns_load_dwordx4 s[68:71], s[0:1], 64\ns_load_dwordx2 s[72:73], s[0:1], 80")
    p += F("""v_lshrrev_b32 v1, 6, v0
v_and_b32 v0, 63, v0
v_readfirstlane_b32 {W}, v1
v_and_b32 v1, 15, v0
v_lshrrev_b32 v2, 4, v0""")
    mp = OPT.get('map', 1)
    if mp == 1:
        p += F("""s_and_b32 {C}, s2, 3
s_lshl_b32 {C}, {C}, 2
s_bfe_u32 {a}, s2, 0x20003
s_add_u32 {C}, {C}, {a}
s_lshr_b32 {T}, s2, 5
s_lshl_b32 {T}, {T}, 1
s_bfe_u32 {a}, s2, 0x10002
s_add_u32 {T}, {T}, {a}""")
    elif mp == 0:
        p += F("s_and_b32 {C}, s2, 7\ns_lshl_b32 {C}, {C}, 1\ns_bfe_u32 {a}, s2, 0x10003\ns_add_u32 {C}, {C}, {a}\ns_lshr_b32 {T}, s2, 4")
    else:
        p += F("""s_and_b32 {C}, s2, 1
s_lshl_b32 {C}, {C}, 3
s_bfe_u32 {a}, s2, 0x30003
s_add_u32 {C}, {C}, {a}
s_lshr_b32 {T}, s2, 6
s_lshl_b32 {T}, {T}, 2
s_bfe_u32 {a}, s2, 0x20001
s_add_u32 {T}, {T}, {a}""")
    p += F("""s_lshr_b32 {RG}, {W}, 1
s_and_b32 {FH}, {W}, 1
s_lshl_b32 {W1K}, {W}, 10
s_lshl_b32 {S2}, {T}, 1
s_add_u32 {S2}, {S2}, {RG}
v_lshrrev_b32 v{DW}, 3, v0
s_lshl_b32 {a}, {W}, 3
v_add_u32 v{DW}, {a}, v{DW}
v_mul_u32_u24 v{DX}, %d, v{DW}
s_lshl_b32 {a}, {FH}, 2
v_add_u32 v{t0}, {a}, v2
v_xor_b32 v{t0}, v0, v{t0}
v_and_b32 v{t0}, 7, v{t0}
v_lshl_add_u32 v{DX}, v{t0}, 4, v{DX}
s_lshr_b32 {ROT}, {T}, 1
s_and_b32 {a}, {C}, 3
s_lshl_b32 {a}, {a}, 1
s_add_u32 {ROT}, {ROT}, {a}
s_cmp_ge_u32 {ROT}, 9
s_cselect_b32 {a}, 9, 0
s_sub_u32 {ROT}, {ROT}, {a}
s_mul_i32 {ROT}, {ROT}, ROTON
s_mul_i32 {a}, {T}, 2304
s_lshl_b32 {b}, {ROT}, 7
s_add_u32 {a}, {a}, {b}
v_add_u32 v{DX}, {a}, v{DX}
v_mul_u32_u24 v{DD}, 1152, v{DW}
v_mul_u32_u24 v{DW}, 9216, v{DW}
v_bfe_u32 v{t0}, v0, 1, 2
v_and_b32 v{t1}, 1, v2
s_lshl_b32 {a}, {FH}, 1
v_or_b32 v{t1}, {a}, v{t1}
v_xor_b32 v{t1}, v{t1}, v{t0}
v_lshl_add_u32 v{DW}, v{t1}, 5, v{DW}
v_xor_b32 v{t1}, v{t0}, v2
v_lshl_add_u32 v{DD}, v{t1}, 5, v{DD}
v_and_b32 v{t0}, 1, v0
v_lshl_add_u32 v{DW}, v{t0}, 4, v{DW}
v_lshl_add_u32 v{DD}, v{t0}, 4, v{DD}
s_mul_i32 {d}, {C}, 576
s_and_b32 {e}, {C}, 1
s_lshl_b32 {c}, {e}, 6
s_add_u32 {c}, {c}, {d}
v_add_u32 v{DW}, {c}, v{DW}""".replace("ROTON", str(OPT.get('rot', 1))) % (32 * 1152), **e)
    for q in range(4): p += L("s_mov_b32 s%d, %d" % (S_XQ + q, (1024 * (q & 1) + (q >> 1)) * 1152))
    p += L("s_waitcnt lgkmcnt(0)")
    p += srd(8, 52, 2048 * 1152) + srd(12, 60, 576 * 9216) + srd(16, 62, 576 * 9216)
    rest_srd = lambda: (srd(32, 54, 2048 * 578) + srd(36, 56, 2048 * 578) + srd(20, 64, 4608 * 1152) + srd(40, 66, 1152)
                        + srd(28, 70, 256) + srd(24, 72, WS_BYTES))
    G = []
    def grp(kind, nm, need, **kw):
        d = dict(kind=kind, nm=nm, need=need, bar=False, xr=None, rate=2); d.update(kw); G.append(d); return d
    for sg in range(9):
        for tau in range(4):
            mat = 'G' if tau < 2 else 'U'
            g = grp('SB', 16 if tau == 3 else 8, [(mat, 0, 2 * sg), (mat, 0, 2 * sg + 1)], sg=sg, tau=tau, rate=(5 if tau == 3 else 2))
            if tau == 2 or (sg == 0 and tau == 0): g['bar'] = True
            if sg < 8 and tau in (2, 3): g['xr'] = (sg + 1, tau - 2)
    passes = [('G', 1, 3), ('U', 1, 2), ('G', 2, 0), ('U', 2, 1), ('G', 3, 3), ('U', 3, 2)]
    PS = {}
    for pi, (mat, b, st) in enumerate(passes):
        PS[mat + str(b)] = len(G)
        for sl in range(6):
            for ap in range(2):
                g = grp('P1', 12, [(mat, b, 3 * sl + e_) for e_ in range(3)], mat=mat, b=b, st=st, sl=sl, ap=ap, ps=mat + str(b))
                if ap == 0 and (sl % BI == BI - 1): g['bar'] = True
    for mi_, mat in enumerate(('HG', 'HU')):
        PS[mat] = len(G)
        for gi in range(6):
            g = grp('PH', 12, [(mat, (3 * gi + e_) >> 1) for e_ in range(3)], mat=mat, gi=gi, ps=mat, half=mi_)
            if gi % 2 == 0: g['bar'] = True
    P2 = len(G)
    for cb in range(9):
        for gi in range(3):
            g = grp('P2', 24, [('D', cb, 3 * gi + e_) for e_ in range(3)], cb=cb, gi=gi, rate=4)
            g['bar'] = True
    NG = len(G)
    G[-1]['bar'] = False
    G[P2 - 1]['bar'] = True
    def rdg(n): return n - 1 if n > P2 else n - 2
    iv = []; n = 0
    for g in G:
        if g['bar']: n += 1
        iv.append(n)
    def free_iv(gr):
        for k in range(gr, NG):
            if G[k]['bar']: return iv[k]
        return 10 ** 6
    first = {}; fre = {}; order = []
    def use(key, rg_, done_g):
        i = iv[rg_] if rg_ >= 0 else 0
        if key not in first: first[key] = i; order.append(key)
        fre[key] = max(fre.get(key, 0), free_iv(done_g))
    for q in range(4): use(('x', 0, q), -1, 1)
    ev = []
    for gi, g in enumerate(G):
        for k in g['need']: ev.append((rdg(gi), 0, k, gi))
        if g['xr']:
            for q in range(4): ev.append((gi, 1, ('x', g['xr'][0], q), 4 * g['xr'][0] + 1))
    ev.sort(key=lambda x: (x[0], x[1]))
    for r_, _, k, d_ in ev: use(k, r_, d_)
    order.sort(key=lambda k: first[k])
    fixed = {}
    for sg in range(9):
        s = 8 * (sg % 5)
        for e_ in range(2):
            fixed[('G', 0, 2 * sg + e_)] = s + e_; fixed[('U', 0, 2 * sg + e_)] = s + 2 + e_
        for q in range(4): fixed[('x', sg, q)] = s + 4 + q
    gS2 = PS['U3'] + 11
    gSD = P2 + OPT.get('sdat', 18)
    HU = PS['HU']
    res = [(0, 4, PS['G1'] - 1, HU + 3), (4, 1, PS['G1'] - 1, PS['G1']), (16, 2, gS2, gS2 + 1), (4, 4, PS['G2'], HU + 5), (8, 4, PS['G3'], P2), (12, 4, gS2, P2 + 1),
           (16, 2, P2 - 1, P2 + 1), (0, 4, gSD, NG - 2)]
    resv = {pg: [] for pg in range(40)}
    for f, npg, ga, gb in res:
        for pg in range(f, f + npg): resv[pg].append((iv[ga], free_iv(gb + 1)))
    free_at = [-1] * 40; phys = {}; issue_grp = {}; qi = 0
    def ioff(k): return 0 if k[0] in ('HG', 'HU', 'x') else k[1] * 128
    def try_alloc(k, cur):
        for pg in ([fixed[k]] if k in fixed else range(39, -1, -1)):
            if free_at[pg] > cur or (pg == 0 and ioff(k) > 0): continue
            if any(not (fre[k] <= a_ or cur >= b_) for a_, b_ in resv[pg]): continue
            return pg
        return None
    cum = [0]
    for g in G: cum.append(cum[-1] + g['nm'])
    bar_grp = {iv[gi]: gi for gi, g in enumerate(G) if g['bar']}
    bar_grp[0] = 0
    vt = {}; cnt_iv = {}
    for k in order:
        n_ = cnt_iv.get(first[k], 0); cnt_iv[first[k]] = n_ + 1
        vt[k] = cum[bar_grp[first[k]]] + n_ * (5 if k in fixed else 8)
    def LA(k):
        if k in fixed: return OPT.get('la0', 120)
        if k[0] == 'D': return OPT.get('la2', 400)
        return OPT.get('la1', 400)
    NPRO = OPT.get('npro', 16)
    while qi < NPRO:
        k = order[qi]; phys[k] = try_alloc(k, -1); free_at[phys[k]] = fre[k]; issue_grp[k] = -1; qi += 1
    for gi, g in enumerate(G):
        g['dma'] = []
        while qi < len(order) and len(g['dma']) < g['rate']:
            k = order[qi]
            if vt[k] - cum[gi] > LA(k): break
            pg = try_alloc(k, iv[gi])
            if pg is None: break
            assert iv[gi] < first[k], ("late DMA", k, gi)
            phys[k] = pg; free_at[pg] = fre[k]; issue_grp[k] = gi; g['dma'].append(k); qi += 1
    assert qi == len(order), order[qi]
    print("dma per group:", "".join(str(len(g['dma'])) for g in G), file=sys.stderr)
    slk = {}
    for k in order:
        if issue_grp[k] >= 0:
            kk_ = k[:2] if k[0] in 'GUD' else k[:1]
            slk[kk_] = min(slk.get(kk_, 9999), cum[bar_grp[first[k]]] - cum[issue_grp[k] + 1])
    print("min DMA slack (mfmas):", slk, file=sys.stderr)
    def mkdma(k):
        tag = "pg%d" % first[k]; pb = phys[k] * 4096
        if k[0] == 'x':
            pre = []
            if k[2] == 0 and k[1] > 0:
                pre = F("s_cmp_eq_u32 {ROT}, %d\ns_cselect_b32 {SP}, -8, 1\nv_lshl_add_u32 v%d, {SP}, 7, v%d" % (9 - k[1], V_DX, V_DX))
            m_, d_ = dma(V_DX, 'X', S_XQ + k[2], pb, 0, tag)
            return (pre + [m_], d_) if pre else (m_, d_)
        if k[0] == 'G': return dma(V_DW, 'WG', S_KK + k[2], pb, k[1] * 128, tag)
        if k[0] == 'U': return dma(V_DW, 'WU', S_KK + k[2], pb, k[1] * 128, tag)
        if k[0] == 'HG': return dma(V_DH, 'WG', S_KK + 2 * k[1], pb, 0, tag)
        if k[0] == 'HU': return dma(V_DH, 'WU', S_KK + 2 * k[1], pb, 0, tag)
        return dma(V_DD, 'WD', S_DK + k[2], pb, k[1] * 128, tag)
    PFL = OPT.get('pfl', "")
    VPF, VDM, VPX = V_HH, V_ST, V_HW
    def pf(srdn, mask, soff, off, va=VPF, real=False):
        lo, hi = mask & 0xffffffff, mask >> 32
        q = L("s_mov_b32 exec_lo, 0x%x\ns_mov_b32 exec_hi, 0x%x" % (lo, hi))
        for i in q: i.wr = [('s', 'exec')]; i.rd = [('s', 'exec')]
        for sn in srdn:
            i = F("buffer_load_dword v%d, v%d, {%s}, %s offen offset:%d%s" % (VDM, va, sn, soff, off, PFL))[0]
            if not real: i.wr = []
            i.rd.append(('s', 'exec'))
            q.append(i)
        q += L("s_mov_b64 exec, -1")
        return q
    lm = lambda a_, b_: ((1 << b_) - 1) ^ ((1 << a_) - 1)
    assert mp == 1
    def skk(m):
        KS = 32 * 9216
        if m == 0: q = F("s_mul_i32 s%d, {ROT}, %d" % (S_KK, 2 * KS))
        else: q = F("s_add_u32 s%d, s%d, %d\ns_cmp_eq_u32 {ROT}, %d\ns_cselect_b32 s%d, 0, s%d" % (S_KK + 2 * m, S_KK + 2 * m - 2, 2 * KS, 9 - m, S_KK + 2 * m, S_KK + 2 * m))
        return q + L("s_add_u32 s%d, s%d, %d" % (S_KK + 2 * m + 1, S_KK + 2 * m, KS))
    p += skk(0) + skk(1)
    pro = [k for k in order if issue_grp[k] < 0]
    PF0 = OPT.get('pf0', 0)
    NP0 = OPT.get('np0', 0)
    for k in pro[:NP0]: p += flat(mkdma(k))
    pfs = F("""s_and_b32 {a}, {C}, 1
s_lshl_b32 {a}, {a}, 5
s_lshl_b32 {b}, {W}, 3
s_add_u32 {a}, {a}, {b}
v_lshrrev_b32 v{t0}, 3, v0
v_add_u32 v{t0}, {a}, v{t0}
v_mul_u32_u24 v{t0}, %d, v{t0}
v_and_b32 v{t1}, 7, v0
v_lshl_add_u32 v%d, v{t1}, 7, v{t0}
s_bfe_u32 {u}, {C}, 0x10001
s_lshl_b32 {a}, {T}, 1
s_add_u32 {u}, {u}, {a}
s_mul_i32 {u}, {u}, 1152
s_lshr_b32 {a}, {T}, 1
s_add_u32 {a}, {a}, {b}
v_lshl_add_u32 v{t1}, v0, 5, {a}
v_mul_u32_u24 v%d, 9216, v{t1}
s_lshl_b32 {SB}, {e}, 6
s_add_u32 {SB}, {SB}, {d}
s_cmp_eq_u32 {e}, 0
s_cselect_b32 {SA}, 512, 0
s_add_u32 {SA}, {SA}, {d}""" % (32 * 1152, VPX, VPF), **e)
    wi = [i for i, x in enumerate(p) if x.text == "s_waitcnt lgkmcnt(0)"][-1]
    for i in pfs: i.id = p[wi].id - 0.5 + 0.001 * pfs.index(i)
    p[wi:wi] = pfs
    R1S = OPT.get('r1s', 5)
    def R1(): return pf(['X'], 0x0101010101010101 * ((1 << R1S) - 1), ENV['u'], 0, va=VPX) + pf(['WG', 'WU'], lm(0, 2 * R1S), ENV['SB'], 0)
    def R2(): return pf(['X'], 0x0101010101010101 * ((1 << (9 - R1S)) - 1), ENV['u'], 128 * R1S, va=VPX) + pf(['WG', 'WU'], lm(2 * R1S, 18), ENV['SB'], 0)
    if PF0: p += R1()
    for k in pro[NP0:8]: p += flat(mkdma(k))
    p += rest_srd()
    for m in range(2, 9): p += skk(m)
    def code_pf(tag, lo, nl, va):
        q = F("""s_getpc_b64 s[4:5]
L_pc%s_KN:
s_lshr_b32 {a}, s2, 3
s_lshl_b32 {a}, {a}, 2
s_add_u32 {a}, {a}, {W}
s_mul_i32 {a}, {a}, %d
s_add_u32 {a}, {a}, %d
s_sub_u32 s4, s4, L_pc%s_KN-KN
s_subb_u32 s5, s5, 0
s_add_u32 s4, s4, {a}
s_addc_u32 s5, s5, 0
v_lshlrev_b32 v%d, 7, v0
v_mov_b32 v%d, s5
v_add_co_u32 v%d, vcc, s4, v%d
v_addc_co_u32 v%d, vcc, 0, v%d, vcc
s_mov_b64 exec, 0x%x""" % (tag, nl * 128, lo * 128, tag, va, va + 1, va, va, va + 1, va + 1, (1 << nl) - 1))
        for i in q:
            if i.op == "v_add_co_u32": i.wr.append(('s', 'vcc')); i.rd = [r for r in i.rd if r != ('s', 'vcc')]
            if i.op == "v_addc_co_u32": i.wr.append(('s', 'vcc'))
            if i.op == "s_subb_u32": i.rd.append(('s', 'scc'))
        q.append(Ins("global_load_dword v%d, v[%d:%d], off" % (VDM, va, va + 1), 'vmem', V(va, 2) + [('s', 'exec')], []))
        return q + L("s_mov_b64 exec, -1")
    if OPT.get('cpf', 1): p += code_pf("a", 0, 4, TMP)
    GT = TMP + 2
    g1, g2f = gate_code(GT)
    p += g1
    p += F("s_cmp_lg_u32 {C}, 0\ns_cbranch_scc1 L_nw_KN") + nyw_load(FB + 8, "nw") + L("L_nw_KN:")
    p += F("""v_lshrrev_b32 v{RW}, 2, v1
v_lshlrev_b32 v{RW}, 7, v{RW}
v_lshl_add_u32 v{RW}, v2, 10, v{RW}
v_and_b32 v{t0}, 3, v1
v_lshl_add_u32 v{RW}, v{t0}, 3, v{RW}
v_bfe_u32 v{t0}, v1, 3, 1
v_and_b32 v{t1}, 1, v2
v_lshl_add_u32 v{t0}, v{t1}, 1, v{t0}
s_lshl_b32 {a}, {FH}, 1
v_xor_b32 v{t0}, {a}, v{t0}
v_lshl_add_u32 v{RW}, v{t0}, 5, v{RW}
v_xor_b32 v{RW1}, 32, v{RW}
v_lshrrev_b32 v{t0}, 1, v1
v_xor_b32 v{t0}, v{t0}, v2
v_lshlrev_b32 v{t0}, 4, v{t0}
v_lshl_add_u32 v{RX}, v1, 7, v{t0}
s_lshl_b32 {a}, {RG}, 13
v_add_u32 v{RX}, {a}, v{RX}
v_xor_b32 v{RX1}, 64, v{RX}""", **e)
    for b in (V_RW, V_RW + 3, V_RX, V_RX + 3):
        p += L("v_add_u32 v%d, 0x10000, v%d\nv_add_u32 v%d, 0x20000, v%d" % (b + 1, b, b + 2, b))
    p += F("""s_mov_b32 {Q}, 0x3e800000
s_mov_b32 {NL}, %s
s_add_u32 {KB1}, {C}, 2
s_add_u32 {KB3}, {C}, 4
s_cmp_lt_u32 {KB3}, 18
s_cselect_b32 {KB3}, {KB3}, 0
s_mul_i32 {GA}, {T}, 12
s_add_u32 {GA}, {GA}, {C}
s_cmp_lt_u32 {C}, 12
s_cselect_b32 {GA}, {GA}, 0x1000
s_add_u32 {GB}, {GA}, 192
s_mul_i32 {a}, {C}, %d
s_mul_i32 {c}, {e}, %d
s_add_u32 s%d, {a}, {c}
s_cmp_eq_u32 {e}, 0
s_cselect_b32 {c}, %d, 0
s_add_u32 s%d, {a}, {c}""" % (f2h(-math.log2(math.e)), 288 * 1152, 32 * 1152, S_DK, 256 * 1152, S_DK + 8), **e)
    for ks in range(1, 8): p += L("s_add_u32 s%d, s%d, %d" % (S_DK + ks, S_DK, ks * 32 * 1152))
    TP = V_SIL
    TF = lambda kk: (SET[3] + 4 * kk) if kk < 8 else FB + 32
    p += t_setup(TP, ENV['C'])
    NTP = OPT.get('ntp', 4)
    for kk in range(NTP): p += t_frag(kk, TF(kk), SET[2] + 16, TP)
    for k in pro[8:]: p += flat(mkdma(k))
    r2 = R2() if PF0 else []
    if OPT.get('r2at', -1) < 0: p += r2
    def late_setup():
        return F("""v_lshrrev_b32 v{DH}, 2, v0
s_lshl_b32 {w}, {W}, 4
v_add_u32 v{DH}, {w}, v{DH}
v_mul_u32_u24 v{DH}, 9216, v{DH}
v_bfe_u32 v{t0}, v0, 1, 1
v_lshrrev_b32 v{t1}, 5, v0
v_xor_b32 v{t0}, v{t0}, v{t1}
v_lshl_add_u32 v{DH}, v{t0}, 5, v{DH}
v_and_b32 v{t0}, 1, v0
v_lshl_add_u32 v{DH}, v{t0}, 4, v{DH}
v_add_u32 v{DH}, {SA}, v{DH}
v_lshlrev_b32 v{L16}, 4, v0
v_add_u32 v{L16B}, 0x10000, v{L16}
s_lshl_b32 {u}, {FH}, 13
s_lshl_b32 {w}, {RG}, 12
s_add_u32 {u}, {u}, {w}
v_add_u32 v{HW}, {u}, v{L16}""", **e)
    def late_setup2():
        return F("""s_lshl_b32 {a}, {FH}, 3
s_lshl_b32 {b}, {RG}, 12
s_add_u32 {a}, {a}, {b}
v_add_u32 v{HH}, {a}, v{L16B}
s_mul_i32 {a}, {T}, %d
s_mul_i32 {b}, {W}, %d
s_add_u32 {a}, {a}, {b}
s_mul_i32 {b}, {C}, %d
s_add_u32 {a}, {a}, {b}
v_add_u32 v{VST_}, {a}, v{L16}""" % (9 * 16 * 16384, 4 * PL()[1], PL()[2]), **e)
    def pf_wd_setup():
        return F("""s_lshr_b32 {a}, {T}, 1
s_mul_i32 {a}, {a}, %d
s_mul_i32 {b}, {C}, %d
s_add_u32 {a}, {a}, {b}
s_mul_i32 {b}, {W}, %d
s_add_u32 {a}, {a}, {b}
v_lshlrev_b32 v%d, 7, v0
v_add_u32 v%d, {a}, v%d""" % (36 * 1152, 288 * 1152, 9 * 1152, VPF, VPF, VPF))
    sec = Sec2()
    FBUF = lambda gi: FB + 12 * (gi % 3)
    def frag_reads(gi):
        g = G[gi]; out = []
        for e_, k in enumerate(g['need']):
            pb = phys[k] * 4096
            if k[0] in 'GU':
                ap = g['tau'] & 1 if g['kind'] == 'SB' else g['ap']
                base, o, d2 = V_RW + 3 * ap, pb, 512
            elif k[0] in ('HG', 'HU'): base, o, d2 = V_RX, pb + ((3 * g['gi'] + e_) & 1) * 2048, 256
            else: base, o, d2 = V_RX + 3, pb, 2048
            r = FBUF(gi) + 4 * e_
            out.append(L("ds_read_b64_tr_b16 v[%d:%d], v%d offset:%d\nds_read_b64_tr_b16 v[%d:%d], v%d offset:%d"
                         % (r, r + 1, base + (o >> 16), o & 0xffff, r + 2, r + 3, base + (o >> 16), (o & 0xffff) + d2), lds_r=(pb, pb + 4096), tag="f%d" % gi))
        return out
    def x_reads(sg, e_):
        kk = 2 * sg + e_; out = []; pb = phys[('x', sg, 0)] * 4096
        for mi in range(4):
            o = pb + mi * 2048
            out += L("ds_read_b128 %s, v%d offset:%d" % (rs(XF(mi, kk)), V_RX + 3 * e_ + (o >> 16), o & 0xffff), lds_r=(pb, pb + 16384), tag="x%d" % sg)
        return [out[0:2], out[2:4]]
    def lin_read(regs, o, tag):
        return L("ds_read_b128 %s, v%d offset:%d" % (rs(regs), V_L16B if o >> 16 else V_L16, o & 0xffff), lds_r=(o, o + 1024), tag=tag)[0]
    def silu_a(regs):
        out = []
        for i in range(0, len(regs), 4):
            T = V_SIL + (i & 4); rr = regs[i:i + 4]
            out += [F("v_mul_f32 v%d, {NL}, v%d" % (T + j, r))[0] for j, r in enumerate(rr)]
            out += [I("v_exp_f32 v%d, v%d" % (T + j, T + j)) for j in range(4)]
            out += [I("v_add_f32 v%d, 1.0, v%d" % (T + j, T + j)) for j in range(4)]
            out += [I("v_rcp_f32 v%d, v%d" % (T + j, T + j)) for j in range(4)]
            out += [I("v_mul_f32 v%d, v%d, v%d" % (r, r, T + j)) for j, r in enumerate(rr)]
        for i in out: i.silu = True
        return out
    def silu_b(sg_, su_, b):
        out = []
        for mi in range(4):
            d = su_ + 4 * mi
            for ap in range(2):
                gq, uq = sg_ + (ap * 4 + mi) * 4, su_ + (ap * 4 + mi) * 4
                out += [I("v_mul_f32 v%d, v%d, v%d" % (gq + r, gq + r, uq + r)) for r in range(4)]
            for ap in range(2):
                gq = sg_ + (ap * 4 + mi) * 4
                out += [I("v_cvt_pk_bf16_f32 v%d, v%d, v%d" % (d + 2 * ap + h, gq + 2 * h, gq + 2 * h + 1)) for h in range(2)]
            out += L("ds_write_b128 v%d, v[%d:%d] offset:%d" % (V_HW, d, d + 3, b * 16384 + mi * 1024), lds_w=(b * 16384, b * 16384 + 16384), tag="lds")
        return out
    def silu_bH(st):
        out = []
        for mi in range(4):
            gq, uq = st + 4 * mi, st + 16 + 4 * mi
            out += [I("v_mul_f32 v%d, v%d, v%d" % (gq + r, gq + r, uq + r)) for r in range(4)]
            out += [I("v_cvt_pk_bf16_f32 v%d, v%d, v%d" % (uq + h, gq + 2 * h, gq + 2 * h + 1)) for h in range(2)]
            out += L("ds_write_b64 v%d, v[%d:%d] offset:%d" % (V_HH, uq, uq + 1, mi * 1024), lds_w=(65536, 65536 + 8192), tag="lds")
        return out
    allr = lambda st, n=32: list(range(st, st + n))
    p += stamp(1) + L("s_barrier", need_vm=("pg0",)) + stamp(2)
    xa, xb = x_reads(0, 0), x_reads(0, 1)
    pre_reads = {0: frag_reads(0), 1: frag_reads(1)}
    for r_ in [xa[0], xb[0]] + pre_reads[0] + [xa[1], xb[1]] + pre_reads[1]: p += r_
    for kk in range(NTP, 9): sec.stream(t_frag(kk, TF(kk), SET[2] + 16, TP), 0, 40 * (kk // 2) + 29, "tf%d" % kk, "tf%d" % (kk - 1))
    sec.stream(late_setup(), 40, 200, "late")
    for i in g2f: Ins.seq += 1; i.id = Ins.seq
    sec.stream(g2f, 40, 278, "gate", "late")
    TWA = lambda a_: (TMP + 2 + 8 * a_) if a_ < 3 else SET[3]
    PACC = [SET[1], SET[2]]
    VP = TMP + 22
    def out_ops(cb):
        acc = PACC[cb & 1]; out = []
        for ip in range(4):
            b = acc + 8 * ip
            out += F("s_mov_b32 {ST}, 0x%x" % (WSP() + cb * PL()[0] + ip * PL()[1]))
            out += [I("v_cvt_pk_bf16_f32 v%d, v%d, v%d" % (b + d, b + 2 * d, b + 2 * d + 1)) for d in range(4)]
            out += F("buffer_store_dwordx4 v[%d:%d], v%d, {WS}, {ST} offen%s" % (b, b + 3, V_ST, OPT.get('pst', " sc1")))
        return out
    hq = {HU + 1: list(range(0, 8)), HU + 2: list(range(8, 16)), HU + 3: list(range(16, 24)), HU + 4: list(range(24, 32)), HU + 5: list(range(32, 40)),
          P2: list(range(40, 64)), P2 + 1: list(range(64, 72))}
    FBUF2 = FBUF
    extra_need = {}
    gp1 = PS['G3'] + OPT.get('p1at', 5)
    gp2 = P2 + OPT.get('p2at', 13)
    def next_bar(gi):
        while not G[gi]['bar']: gi += 1
        return gi
    gc1 = next_bar(gp1 + 3); gc2 = next_bar(gp2 + 2)
    ga1 = next_bar(PS['G1'] + OPT.get('a1at', 9)); ga2 = next_bar(gS2 + OPT.get('a2at', 7))
    print("groups: arrive1 %d poll1 %d chk1 %d s2 %d arrive2 %d poll2 %d chk2 %d stepD %d  PS %s P2 %d" % (ga1, gp1, gc1, gS2, ga2, gp2, gc2, gSD, PS, P2), file=sys.stderr)
    S2D = [SET[0], SET[0] + 8]; S2W = [TMP, TMP + 8]
    KBX = "s_lshr_b32 {x}, {g}, 5\ns_cmp_eq_u32 {x}, 9\ns_cselect_b32 {x}, 0, {x}\ns_lshl_b32 {x}, {x}, 2\ns_add_u32 {x}, {x}, {o}\ns_cmp_gt_u32 {g}, 288\ns_cselect_b32 {x}, 0x1000, {x}\n"
    kbx = lambda x, g, o: KBX.replace("{x}", "{%s}" % x).replace("{g}", "{%s}" % g).replace("{o}", str(o))
    SD = {}
    for gi, g in enumerate(G):
        base = sec.n(); fb = FBUF(gi) if gi <= P2 else FB + 12 * ((gi - P2 + (P2 % 3)) & 1 if (P2 % 3) < 2 else (gi - P2 + 1) & 1)
        if gi > P2: FBUF = lambda n_: FB + 12 * ((n_ - P2 + (P2 % 3)) & 1 if (P2 % 3) < 2 else (n_ - P2 + 1) & 1)
        ms = []
        if g['kind'] == 'SB':
            st = SET[0] if g['tau'] < 2 else SET[1]
            for mi in range(4):
                for e_ in range(2):
                    acc = V(st + ((g['tau'] & 1) * 4 + mi) * 4, 4); kk = 2 * g['sg'] + e_
                    ms.append(mf(acc, V(fb + 4 * e_, 4), XF(mi, kk), acc if kk else None))
            if g['tau'] == 3:
                for mi in range(4):
                    for e_ in range(2):
                        kk = 2 * g['sg'] + e_
                        acc = V(SET[2] + 16 * (kk // 9) + 4 * mi, 4)
                        ms.append(mf(acc, XF(mi, kk), V(TF(kk % 9), 4), acc if kk % 9 else None))
        elif g['kind'] == 'P1':
            for mi in range(4):
                for e_ in range(3):
                    acc = V(SET[g['st']] + (g['ap'] * 4 + mi) * 4, 4); kk = 3 * g['sl'] + e_
                    ms.append(mf(acc, V(fb + 4 * e_, 4), XF(mi, kk), acc if kk else None))
        elif g['kind'] == 'PH':
            for mi in range(4):
                for e_ in range(3):
                    acc = V(SET[0] + (g['half'] * 4 + mi) * 4, 4); kk = 3 * g['gi'] + e_
                    ms.append(mf(acc, V(fb + 4 * e_, 4), XF(mi, kk), acc if kk else None))
        else:
            for mi in range(8):
                for e_ in range(3):
                    acc = V(PACC[g['cb'] & 1] + 4 * mi, 4)
                    ms.append(mf(acc, V(fb + 4 * e_, 4), HF(mi, 3 * g['gi'] + e_), acc if (g['gi'] or e_) else None))
        lg = ["f%d" % gi]; vm = []
        if g['kind'] == 'SB' and g['tau'] == 0: lg.append("x%d" % g['sg'])
        if g['kind'] == 'P2' and g['cb'] == 0: lg.append("h%d" % g['gi'])
        if g['bar']:
            vm.append("pg%d" % iv[gi]); lg.append("lds")
            if gi == ga1: vm.append("pub1")
            if gi == ga2: vm.append("pub2")
        if gi in (gc1, gc2): sec.block(base - 1, poll_check("pc%d" % (1 if gi == gc1 else 2), VP, 28 if gi == gc1 else 29))
        if gi:
            if sec.blk.get(base - 1): sec.block(base - 1, [Need(vm, lg)])
            else: sec.at(base - 1, Need(vm, lg))
        for m_ in ms: sec.mfma(m_)
        nm = g['nm']; end = sec.n()
        sidx = None
        if g['kind'] in ('P1', 'PH') and PS[g['ps']] == gi: sidx = 3 + list(PS).index(g['ps'])
        if g['kind'] == 'P2' and g['gi'] == 0: sidx = 11 + g['cb']
        gap = 0
        if g['bar']:
            sec.at(base, L("s_barrier", need_vm=tuple(vm), need_lgkm=tuple(lg))); gap = 1
        if OPT.get('diag') == 6:
            sidx = None
            if g['kind'] == 'SB' and g['tau'] == 0: sidx = 3 + g['sg']
            if gi == PS['G1']: sidx = 13
            if gi == PS['G1'] - 1: sec.block(end - 1, stamp(12))
        if OPT.get('diag') == 7:
            sidx = None
            g0 = PS['G1']
            if g0 <= gi < g0 + 68 and (gi - g0) % 4 == 0: sidx = 3 + (gi - g0) // 4
        if sidx is not None and OPT['stamps']: sec.block(base, stamp(sidx))
        pairs = []
        for n_ in range(gi + 1, min(NG, gi + 3)):
            if rdg(n_) == gi:
                if n_ > P2: FBUF = lambda q_: FB + 12 * ((q_ - P2 + (P2 % 3)) & 1 if (P2 % 3) < 2 else (q_ - P2 + 1) & 1)
                pairs += frag_reads(n_)
                if n_ > P2 and gi <= P2: FBUF = FBUF2
        if g['xr']: pairs += x_reads(*g['xr'])
        hr = [lin_read(HF(n_ & 7, n_ >> 3), (n_ >> 3) * 8192 + (n_ & 7) * 1024, "h%d" % (n_ // 24)) for n_ in hq.get(gi, [])]
        hp = [hr[i:i + 2] for i in range(0, len(hr), 2)]
        pairs = hp + pairs if gi == P2 + 1 else pairs + hp
        avail = list(range(gap, nm - 1))
        items = []
        dm = [mkdma(k) for k in g['dma']]
        ip_, id_ = 0, 0
        early = g['kind'] == 'P2'
        while ip_ < len(pairs) or id_ < len(dm):
            if ip_ < len(pairs): items.append(('r', pairs[ip_])); ip_ += 1
            elif not items or items[-1][0] == 'd': items.append(('z', None))
            if id_ < len(dm) and (not early or ip_ >= min(len(pairs), 3)): items.append(('d', dm[id_])); id_ += 1
        assert len(items) <= len(avail), (gi, len(items), len(avail))
        pos = 0; slack = len(avail) - len(items); nd_left = len(dm)
        for kind, it in items:
            if kind == 'r': sec.at(base + avail[pos], it)
            if kind == 'd':
                if isinstance(it[0], list): sec.block(base + avail[pos] - 1, it[0])
                else: sec.at(base + avail[pos] - 1, it[0])
                sec.at(base + avail[pos], it[1])
                sk = slack // max(1, nd_left); pos += sk; slack -= sk; nd_left -= 1
            pos += 1
        if gi == 19: sec.block(end - 1, F("s_cmp_lg_u32 {C}, 0\ns_cbranch_scc1 L_nw2_KN") + nyw_store(FB + 8, "nw2") + L("L_nw2_KN:"))
        if gi == OPT.get('cpf2', -1): sec.block(base + 1, code_pf("b", 256, 2, TMP + 16))
        if PF0 and gi == OPT.get('r2at', -1): sec.block(base + 1, r2)
        if gi == OPT.get('pf1', -1): sec.block(base + 1, pf(['WG', 'WU'], lm(0, 18), ENV['SB'], 128))
        if OPT.get('pfd', 1):
            for it in range(3):
                if gi == PS['G1'] + OPT.get('pfd0', 6) + it * OPT.get('pfdi', 12):
                    sec.block(base + 1, (pf_wd_setup() if it == 0 else []) + pf(['WD'], lm(0, 27), "0", 0, real=(it == 2))
                              + L("v_add_u32 v%d, %d, v%d" % (VPF, 27 * 128, VPF)))
        if g['kind'] == 'SB' and g['sg'] == 6 and g['tau'] == 3:
            sec.stream(twiddle_A(TWA, SET[3] + 8), end, end + 78, "twA")
        if gi == PS['G1'] - 1:
            blk = diag(1, 21) + step_A(SET[2], TWA, SET[3] + 8, TP, ENV['C'], 0) + (stamp(22) if OPT.get('diag') == 1 else []) + diag(1, 23)
            blk += F("s_cmp_lt_u32 {KB1}, 16\ns_cbranch_scc1 L_x1_KN")
            o = "x1"; s1 = Sec2(); XS = SET[3] + 8; XFr = SET[3] + 24
            s1.pre = t_setup(TP, ENV['KB1'], opt=o) + t_frag(0, XFr, XS, TP, opt=o)
            for kk in range(9):
                if kk < 8: nxt = None
                b0 = s1.n()
                for hh in range(2):
                    for mi in range(4):
                        acc = V(SET[2] + 16 * hh + 4 * mi, 4)
                        s1.mfma(mf(acc, XF(mi, kk + 9 * hh), V(XFr + 4 * (kk & 1), 4), acc if kk else None, o))
                if kk < 8: s1.stream(t_frag(kk + 1, XFr + 4 * ((kk + 1) & 1), XS, TP, opt=o), b0, b0 + 6)
            blk += s1.flatten() + step_A(SET[2], TWA, SET[3] + 8, TP, ENV['KB1'], 8704, opt=o) + L("L_x1_KN:")
            sec.block(end - 1, blk)
            sw = F("""v_lshrrev_b32 v{RX}, 2, v1
v_lshl_add_u32 v{RX}, v2, 3, v{RX}
v_lshlrev_b32 v{RX}, 6, v{RX}
v_and_b32 v{t0}, 3, v1
v_lshl_add_u32 v{RX}, v{t0}, 3, v{RX}
v_and_b32 v{t1}, 1, v2
v_xor_b32 v{t1}, {FH}, v{t1}
v_lshl_add_u32 v{RX}, v{t1}, 5, v{RX}
v_lshrrev_b32 v{RX1}, 2, v1
v_lshl_add_u32 v{RX1}, v2, 2, v{RX1}
v_bfe_u32 v{t1}, v{RX1}, 1, 2
v_xor_b32 v{t1}, {W}, v{t1}
v_lshlrev_b32 v{RX1}, 7, v{RX1}
v_lshl_add_u32 v{RX1}, v{t1}, 5, v{RX1}
v_lshl_add_u32 v{RX1}, v{t0}, 3, v{RX1}""", **e)
            for b in (V_RX, V_RX + 3): sw += L("v_add_u32 v%d, 0x10000, v%d\nv_add_u32 v%d, 0x20000, v%d" % (b + 1, b, b + 2, b))
            sec.stream(sw, end - 36, end - 2, "sw")
            sec.stream(silu_a(allr(SET[0])), end, end + 200, "a0")
            sec.stream(silu_b(SET[0], SET[1], 0), end + 145, end + 286, "b0", "a0")
        if g['kind'] == 'P1' and g['sl'] == 5 and g['ap'] == 1:
            ps = g['ps']
            if ps == 'G1': sec.stream(silu_a(allr(SET[3])), end + 2, end + 380, "a1", "a0")
            if ps == 'U1': sec.stream(silu_b(SET[3], SET[2], 1), end + 2, end + 286, "b1", "a1")
            if ps == 'G2': sec.stream(silu_a(allr(SET[0])), end + 2, end + 143 + 12 * (gc1 - PS['G3']) - 30, "a2", "a1")
            if ps == 'U2':
                sec.stream(silu_b(SET[0], SET[1], 2), end + 2, end + 12 * (gc1 - PS['G3']), "b2", "a2")
            if ps == 'G3':
                sec.stream(silu_a(allr(SET[3])), end + 2, end + 143 + 40, "a3", "a2")
            if ps == 'U3': sec.stream(silu_b(SET[3], SET[2], 3), end + 2, end + 72 + 50, "b3", "a3")
        if g['kind'] == 'PH' and g['gi'] == 5:
            if g['half'] == 0: sec.stream(silu_a(allr(SET[0], 16)), end + 2, end + 72 + 10, "aH", "a3")
            else: sec.stream(silu_bH(SET[0]), end + 2, end + 22, "bH", "aH")
        if gi == ga1:
            sec.block(base, diag(5, 21))
            sec.block(base + 1, diag(5, 22))
            sec.block(base, arrive("ar1", "s_lshr_b32 {a}, {C}, 1\ns_lshl_b32 {a}, {a}, 2\ns_cmp_lt_u32 {KB1}, 16\ns_cselect_b32 {b}, 0x1000, 32\ns_mov_b32 {c}, 0x1000", VP))
        if gi == ga2:
            sec.block(base, diag(5, 23))
            sec.block(base + 1, diag(5, 24))
            sec.block(base, arrive("ar2", kbx('a', 'GA', 128) + kbx('b', 'GB', 128) + "s_mov_b32 {c}, 0x1000", VP))
        if gi == gp1:
            sec.block(base + 1, poll_issue("pi1", kbx('a', 'GA', 0) + kbx('b', 'GB', 0) + "s_mov_b32 {c}, 0x1000",
                      "s_cmp_gt_u32 {GA}, 288\ns_cselect_b32 {a}, 0, 32\ns_cmp_gt_u32 {GB}, 288\ns_cselect_b32 {b}, 0, 32\ns_mov_b32 {c}, 0", VP))
        if gi == gp2:
            sec.block(base + 1, poll_issue("pi2", "s_lshr_b32 {a}, {C}, 1\ns_lshl_b32 {a}, {a}, 2\ns_add_u32 {a}, {a}, 128\ns_movk_i32 {b}, 160\ns_mov_b32 {c}, 0x1000",
                      "s_cmp_lt_u32 {C}, 2\ns_cselect_b32 {a}, 33, 32\ns_cmp_lt_u32 {KB3}, 16\ns_cselect_b32 {b}, 0, 32\ns_mov_b32 {c}, 0", VP))
        for r_, gam in enumerate(('GA', 'GB')):
            if gi == PS['G2'] + OPT.get('w%dat' % r_, 1 + 12 * r_):
                o = "s2w%d" % r_
                sec.block(base + 1, F("s_cmp_ge_u32 {%s}, 288\ns_cbranch_scc1 L_%s_KN" % (gam, o)) + s2_wloads(ENV[gam], S2W[r_], TMP + 16, o, False) + L("L_%s_KN:" % o))
        if gi == gc1:
            blk = []
            for r_, (gam, keep) in enumerate((('GA', 'SA'), ('GB', 'SB'))):
                o = "s2l%d" % r_
                blk += F("s_cmp_gt_u32 {%s}, 288\ns_cbranch_scc1 L_%s_KN" % (gam, o)) + s2_dloads(ENV[gam], ENV[keep], S2D[r_], TMP + 16, o) + L("L_%s_KN:" % o)
            blk += F("s_cmp_lg_u32 {GB}, 288\ns_cbranch_scc1 L_s2n_KN") + s2_wloads(ENV['GB'], S2W[1], TMP + 16, "s2n", True) + L("L_s2n_KN:")
            if OPT.get('diag') == 3: blk = stamp(21) + blk + stamp(22) + diag(3, 23)
            sec.block(base + 1, blk)
            M = SET[1]; Z = SET[0] + 16; S2T = SET[1] + 24
            pre = dft32(M, Z, False) + s2_addr(S2T, 12 * 4096, False)
            for i in pre:
                i.text = i.text.replace(ENV['a'], ENV['u']).replace(ENV['b'], ENV['w'])
                fx = lambda lst: [('s', 6) if r == ('s', 84) else ('s', 7) if r == ('s', 85) else r for r in lst]
                i.rd = fx(i.rd); i.wr = fx(i.wr)
            sec.stream(pre, base + 2, base + 12 * (gS2 - gi) + 10, "s2pre")
        if gi == gS2:
            blk = diag(3, 24)
            for r_, (gam, keep) in enumerate((('GA', 'SA'), ('GB', 'SB'))):
                o = "s2c%d" % r_
                blk += F("s_cmp_gt_u32 {%s}, 288\ns_cbranch_scc1 L_%s_KN" % (gam, o))
                blk += s2_compute(ENV[keep], M, S2D[r_], Z, S2W[r_], S2T, TMP + 16, 12 * 4096, o) + L("L_%s_KN:" % o)
                if OPT.get('diag') == 3 and r_ == 0: blk += stamp(25)
            sec.block(end - 1, blk + (stamp(26) if OPT.get('diag') == 3 else []) + diag(3, 27) + late_setup2())
        if gi == P2 + 3: sec.stream(twiddle_D(SET[3], SET[3] + 16), base, base + 200, "twD")
        if gi == gc2:
            blk = stepD_loads(ENV['C'], SET[0])
            blk += F("s_cmp_lg_u32 {C}, 0\ns_cbranch_scc1 L_nyl_KN") + stepD_nyloads(SET[0] + 16, VP, "nyl") + L("L_nyl_KN:")
            blk += F("s_cmp_lt_u32 {KB3}, 16\ns_cbranch_scc1 L_d2l_KN") + stepD_loads(ENV['KB3'], SET[0] + 16, opt="d2l") + L("L_d2l_KN:")
            sec.block(base + 1, blk)
        if gi == gSD:
            SD['p'] = stepD_parts(SET[0], SET[0] + 16, TMP, SET[3], SET[3] + 16, TMP + 8, 0, ENV['C'], ENV['SA'])
            sec.stream(SD['p'][0], base + 1, base + 30, "sd0")
            sec.stream(SD['p'][1], base + 36, base + 45, "sd1", "sd0")
        if gi == gSD + 1:
            for m_ in SD['p'][2]: sec.mfma(m_)
            sec.block(sec.n() - 1, SD['p'][3])
            for m_ in SD['p'][4]: sec.mfma(m_)
            sec.stream(SD['p'][5], sec.n() + 2, sec.n() + 44, "sd5")
        if gi == gSD + 3:
            blk = F("s_cmp_lt_u32 {KB3}, 16\ns_cbranch_scc1 L_d2_KN")
            for part in stepD_parts(SET[0] + 16, None, TMP, SET[3], SET[3] + 16, TMP + 8, 0, ENV['KB3'], ENV['SA'], opt="d2"): blk += part
            sec.block(end - 1, blk + L("L_d2_KN:"))
        if g['kind'] == 'P2' and g['gi'] == 2 and g['cb'] < 8:
            sec.stream(out_ops(g['cb']), sec.n() + 2, sec.n() + 60)
    p += sec.flatten(verbose=True)
    p += out_ops(8) + stamp(20) + stamp_out(2)
    emit(a, name, p, 512, accum=256)

def kernel_reduce(a):
    name = "reduce_kernel"
    VST[0] = 60
    a.launch(name, 256, 576, 36864)
    p = L("s_cmp_ge_u32 s2, 256\ns_cbranch_scc1 L_end_KN")
    if OPT['stamps']: p += L("v_mov_b32 v%d, 0" % VST[0])
    p += stamp(0)
    p += L("s_load_dwordx2 s[68:69], s[0:1], 64\ns_load_dwordx2 s[72:73], s[0:1], 80")
    p += F("""v_lshrrev_b32 v1, 6, v0
v_and_b32 v0, 63, v0
v_readfirstlane_b32 {W}, v1
v_lshlrev_b32 v3, 4, v0
v_and_b32 v1, 15, v0
v_lshrrev_b32 v2, 4, v0
s_and_b32 {T}, s2, 7
s_lshl_b32 {T}, {T}, 1
s_bfe_u32 {a}, s2, 0x10003
s_add_u32 {T}, {T}, {a}
s_lshr_b32 {C}, s2, 4
s_mul_i32 {b}, {T}, 2359296
s_mul_i32 {c}, {W}, %d
s_add_u32 {b}, {b}, {c}
s_mul_i32 {c}, {C}, %d
s_add_u32 {b}, {b}, {c}
s_add_u32 {b}, {b}, %d
s_and_b32 {FH}, {C}, 3
s_mul_i32 {c}, {T}, 18
s_lshl_b32 {d}, {W}, 1
s_add_u32 {c}, {c}, {d}
s_lshl_b32 {c}, {c}, 13
s_lshl_b32 {d}, {FH}, 11
s_add_u32 {c}, {c}, {d}
s_add_u32 {c}, {c}, %d
s_add_u32 {d}, {c}, %d
s_lshl_b32 m0, {W}, 12
s_waitcnt lgkmcnt(0)""" % (PL()[0], PL()[1], WSP(), WS_Y, 8192 - 2048))
    p += srd(24, 72, WS_BYTES)
    for i in range(4):
        p += F("buffer_load_dwordx4 v3, {WS}, {%s} offen offset:%d lds" % ("c" if i < 2 else "d", i * 1024), tag="y", lds_w=(0, 36864))
    p += F("""s_lshl_b32 {c}, {T}, 9
s_lshl_b32 {d}, {FH}, 7
s_add_u32 {c}, {c}, {d}
s_add_u32 {c}, {c}, %d
s_add_u32 {d}, {c}, %d
v_lshlrev_b32 v4, 2, v1
buffer_load_dword v6, v4, {WS}, {c} offen
buffer_load_dword v7, v4, {WS}, {c} offen offset:64
buffer_load_dword v8, v4, {WS}, {d} offen
buffer_load_dword v9, v4, {WS}, {d} offen offset:64""" % (WS_G, WS_O - WS_G))
    PB = 64
    def pload(i):
        q = F("s_add_u32 {b}, {b}, %d" % PL()[2]) if i else []
        return q + F("buffer_load_dwordx4 v[%d:%d], v3, {WS}, {b} offen%s" % (PB + 4 * i, PB + 3 + 4 * i, OPT.get('rfl', "")))
    NPRE = OPT.get('npre', 2)
    for i in range(NPRE): p += pload(i)
    p += srd(44, 68, 2048 * 1152)
    ST, FR, YF, AC, SM, SEL = 12, 28, 36, 52, 36, 28
    p += F("""s_lshl_b32 {c}, {W}, 6
s_lshr_b32 {d}, {C}, 2
s_lshl_b32 {d}, {d}, 4
s_add_u32 {c}, {c}, {d}
v_add_u32 v5, {c}, v1
v_and_b32 v11, 1, v5
v_cvt_f32_u32 v5, v5
v_mul_f32 v10, %s, v5
v_mul_f32 v5, %s, v5
v_cos_f32 v10, v10
v_lshlrev_b32 v4, 2, v2
v_cvt_f32_u32 v4, v4
v_add_f32 v10, v10, v10
v_lshlrev_b32 v11, 31, v11
v_or_b32 v11, 0.5, v11
v_cmp_eq_u32 vcc, 0, v2
s_mov_b32 {Q}, 0x3e800000
s_lshl_b32 {c}, {c}, 1
s_and_b32 {e}, {FH}, 1
s_lshl_b32 {e}, {e}, 10
s_lshr_b32 {d}, {FH}, 1
s_add_u32 {e}, {e}, {d}
s_lshl_b32 {d}, {T}, 1
s_add_u32 {e}, {e}, {d}
s_mul_i32 {e}, {e}, 1152
s_add_u32 {c}, {c}, {e}""" % (f2h(1.0 / 36), f2h(1.0 / 576)))
    def frag(kb):
        cur = ST + 8 * (kb & 1); prv = ST + 8 * ((kb + 1) & 1); f = FR + 4 * (kb & 1); q = []
        if kb < 2:
            for j in range(4): q += L("v_add_f32 v%d, %s, v4" % (cur + j, f2h(16.0 * kb + j)))
            for j in range(4): q += F("v_fma_f32 v%d, v%d, v5, {Q}\nv_mul_f32 v%d, v%d, v5" % (cur + 4 + j, cur + j, cur + j, cur + j))
            for j in range(8): q += L("v_cos_f32 v%d, v%d" % (cur + j, cur + j))
        else:
            for j in range(8): q += L("v_fma_f32 v%d, v10, v%d, -v%d" % (cur + j, prv + j, cur + j))
        if kb == 0:
            q += L("v_cndmask_b32 v%d, v%d, 0.5, vcc\nv_cndmask_b32 v%d, v%d, v11, vcc" % (f, cur, f + 2, cur + 4))
            q += L("v_cvt_pk_bf16_f32 v%d, v%d, v%d\nv_cvt_pk_bf16_f32 v%d, v%d, v%d" % (f, f, cur + 1, f + 2, f + 2, cur + 5))
            q += L("v_cvt_pk_bf16_f32 v%d, v%d, v%d\nv_cvt_pk_bf16_f32 v%d, v%d, v%d" % (f + 1, cur + 2, cur + 3, f + 3, cur + 6, cur + 7))
        else:
            for jp in range(4): q += L("v_cvt_pk_bf16_f32 v%d, v%d, v%d" % (f + jp, cur + 2 * jp, cur + 2 * jp + 1))
        return q
    def yrd(kb):
        r = YF + 8 * (kb & 1)
        return L("ds_read_b128 v[%d:%d], v3 offset:%d\nds_read_b128 v[%d:%d], v3 offset:%d" % (r, r + 3, kb * 2048, r + 4, r + 7, kb * 2048 + 1024), lds_r=(0, 36864))
    p += frag(0) + frag(1)
    p += stamp(1) + L("s_barrier", need_vm=("y",)) + stamp(2)
    p += yrd(0)
    for kb in range(18):
        if kb + 1 < 18: p += yrd(kb + 1)
        for h in range(2):
            acc = V(AC + 4 * h, 4)
            p.append(mf(acc, V(FR + 4 * (kb & 1), 4), V(YF + 8 * (kb & 1) + 4 * h, 4), acc if kb else None))
        if NPRE + kb < 16: p += pload(NPRE + kb)
        if kb + 2 < 18: p += frag(kb + 2)
    p += F("v_and_b32 v4, 31, v0\nv_mul_u32_u24 v4, %d, v4\nv_lshrrev_b32 v5, 5, v0\nv_lshl_add_u32 v4, v5, 4, v4" % (32 * 1152))
    sc_ = f2h(2.0 / (2048 * 576))
    p += stamp(3)
    p += L("v_mul_f32 v6, %s, v6\nv_mul_f32 v7, %s, v7" % (sc_, sc_))
    p += L("""v_lshrrev_b32 v12, 2, v1
v_cmp_eq_u32 vcc, v12, v2
v_and_b32 v13, 1, v1
v_lshlrev_b32 v13, 4, v13
v_mov_b32 v14, 0x3f80
v_lshlrev_b32 v13, v13, v14
v_cndmask_b32 v13, 0, v13, vcc
v_and_b32 v12, 2, v1
v_cmp_eq_u32 vcc, 0, v12
v_mov_b32 v%d, 0
v_mov_b32 v%d, 0
v_mov_b32 v%d, 0
v_mov_b32 v%d, 0
v_cndmask_b32 v%d, 0, v13, vcc
v_cndmask_b32 v%d, v13, 0, vcc""" % (SEL, SEL + 1, SEL + 4, SEL + 5, SEL + 2, SEL + 3))
    for r in range(8): p += L("v_mul_f32 v%d, v%d, v%d" % (AC + r, AC + r, 6 + (r >> 2)))
    for i in range(16):
        for h in range(2):
            acc = V(SM + 4 * h, 4)
            p.append(mf(acc, V(SEL + 2 - 2 * h, 4), V(PB + 4 * i, 4), acc if i else None))
    for r in range(8): p += L("v_fma_f32 v%d, v%d, v%d, v%d" % (SM + r, SM + r, 8 + (r >> 2), AC + r))
    for d in range(4): p += L("v_cvt_pk_bf16_f32 v%d, v%d, v%d" % (16 + d, SM + 2 * d, SM + 1 + 2 * d))
    p += L("v_permlane16_swap_b32 v16, v18\nv_permlane16_swap_b32 v17, v19")
    p += stamp(4)
    p += F("buffer_store_dwordx4 v[16:19], v4, {OUT}, {c} offen%s" % OPT.get('ofl', ""))
    if OPT.get('dbg') is not None:
        p += L("s_waitcnt vmcnt(0)") + stamp(31)
        p += F("s_or_b32 {a}, s2, {W}\ns_cmp_lg_u32 {a}, 0\ns_cbranch_scc1 L_end_KN\ns_load_dwordx2 s[70:71], s[0:1], 72\ns_waitcnt lgkmcnt(0)")
        p += srd(28, 70, 256)
        p += F("v_lshlrev_b32 v0, 2, v0\ns_mov_b32 {a}, 0x%x\nbuffer_load_dword v5, v0, {WS}, {a} offen\ns_waitcnt vmcnt(0)" % (STAMP_OFF + 2 * 262144 + OPT['dbg'] * 256 + OPT.get('dbgo', 0) * 4))
        if not OPT.get('raw'): p += F("v_readlane_b32 {a}, v60, 0\nv_readlane_b32 {b}, v60, 31\nv_readlane_b32 {c}, v5, 31\nv_readlane_b32 {d}, v5, 20\ns_nop 4\nv_writelane_b32 v5, {a}, 14\nv_writelane_b32 v5, {b}, 15\nv_writelane_b32 v5, {c}, 13\nv_writelane_b32 v5, {d}, 12")
        p += F("buffer_store_dword v5, v0, {DBG}, 0 offen")
        if OPT.get('lb') is not None:
            p += F("""v_readlane_b32 {a}, v5, %d
v_readlane_b32 {b}, v5, %d
s_nop 4
s_sub_u32 {a}, {b}, {a}
s_mul_i32 {a}, {a}, %d
s_lshr_b32 {a}, {a}, %d
s_min_u32 {a}, {a}, 200000
s_memrealtime s[4:5]
s_waitcnt lgkmcnt(0)
s_mov_b32 {b}, s4
L_leak_KN:
s_memrealtime s[4:5]
s_waitcnt lgkmcnt(0)
s_sub_u32 {c}, s4, {b}
s_cmp_lt_u32 {c}, {a}
s_cbranch_scc1 L_leak_KN""" % (OPT['la'], OPT['lb'], OPT.get('lm', 10), OPT.get('ls', 0)))
    else:
        p += stamp_out(3)
    emit(a, name, p, 128)

if __name__ == "__main__":
    for x in sys.argv[2:]:
        k, v = x.split("=")
        OPT[k] = int(v) if v.lstrip("-").isdigit() else v.replace("_", " ")
    a = Asm()
    kernel_main(a); kernel_reduce(a)
    a(".fill 4096, 4, 0xbf800000")
    open(sys.argv[1], "w").write(a.text())
```

```python
import re, sys

def R(kind, lo, n=1):
    return [(kind, lo + i) for i in range(n)]
def V(lo, n=1): return R('v', lo, n)
def A(lo, n=1): return R('a', lo, n)
def S(lo, n=1): return R('s', lo, n)
def rs(regs):
    k, lo = regs[0]
    n = len(regs)
    for i, r in enumerate(regs):
        assert r == (k, lo + i), regs
    return "%s%d" % (k, lo) if n == 1 else "%s[%d:%d]" % (k, lo, lo + n - 1)

TRANS = ("v_exp_f32", "v_rcp_f32", "v_sin_f32", "v_cos_f32", "v_log_f32", "v_rsq_f32", "v_sqrt_f32")

class Ins:
    seq = 0
    def __init__(self, text, kind, rd=(), wr=(), **kw):
        self.text = text; self.kind = kind
        self.rd = list(rd); self.wr = list(wr)
        self.lds_r = kw.get("lds_r")
        self.lds_w = kw.get("lds_w")
        self.priv = kw.get("priv", False)
        self.tag = kw.get("tag")
        self.need_vm = kw.get("need_vm", ())
        self.need_lgkm = kw.get("need_lgkm", ())
        self.opt = kw.get("opt", False)
        self.mC = kw.get("mC", ())
        self.wide = kw.get("wide", False)
        self.passes = kw.get("passes", 4)
        self.op = text.split()[0] if text else ""
        self.trans = self.op.replace("_e32", "").replace("_e64", "") in TRANS
        Ins.seq += 1
        self.id = Ins.seq
    def cost(self):
        if self.kind == 'valu': return 8 if self.trans else 4
        return 4

_reg_re = re.compile(r"\b([vas])(\d+)\b|\b([vas])\[(\d+):(\d+)\]")
def parse_regs(tok):
    out = []
    for m in _reg_re.finditer(tok):
        if m.group(1): out.append((m.group(1), int(m.group(2))))
        else: out += R(m.group(3), int(m.group(4)), int(m.group(5)) - int(m.group(4)) + 1)
    if re.search(r"\bvcc\b", tok): out.append(('s', 'vcc'))
    if re.search(r"\bm0\b", tok): out.append(('s', 'm0'))
    if re.search(r"\bexec\b", tok): out.append(('s', 'exec'))
    return out

def split_ops(s):
    out, depth, cur = [], 0, ""
    for ch in s:
        if ch == "[" or ch == "(": depth += 1
        if ch == "]" or ch == ")": depth -= 1
        if ch == "," and depth == 0:
            out.append(cur.strip()); cur = ""
        else: cur += ch
    if cur.strip(): out.append(cur.strip())
    return out

RMW = ("v_writelane_b32", "v_fmac_f32", "v_dot2c_f32_bf16", "v_permlane32_swap_b32", "v_permlane16_swap_b32")
def I(text, **kw):
    text = text.strip()
    op = text.split()[0]
    rest = text[len(op):].strip()
    ops = split_ops(rest)
    rd, wr = [], []
    if op.startswith("v_mfma"):
        wr = parse_regs(ops[0]); rd = parse_regs(ops[1]) + parse_regs(ops[2]) + parse_regs(ops[3])
        return Ins(text, 'mfma', rd, wr, mC=parse_regs(ops[3]), passes=(8 if "32x32x16" in op else 4), **kw)
    if op.startswith("ds_read"):
        return Ins(text, 'ds', parse_regs(ops[1]), parse_regs(ops[0]), **kw)
    if op.startswith("ds_write"):
        return Ins(text, 'ds', parse_regs(rest), [], **kw)
    if op.startswith("ds_bpermute") or op.startswith("ds_swizzle"):
        return Ins(text, 'ds', parse_regs(",".join(ops[1:])), parse_regs(ops[0]), **kw)
    if op.startswith("buffer_load"):
        if rest.endswith(" lds"):
            return Ins(text, 'dma', parse_regs(rest) + [('s', 'm0')], [], **kw)
        w = parse_regs(ops[0])
        r = parse_regs(",".join(ops[1:]))
        return Ins(text, 'vmem', r, w, **kw)
    if op.startswith("buffer_store"):
        return Ins(text, 'vmem', parse_regs(rest), [], wide=("x4" in op or "x3" in op), **kw)
    if op.startswith("buffer_atomic"):
        w = parse_regs(ops[0]) if " sc0" in rest else []
        return Ins(text, 'vmem', parse_regs(rest), w, **kw)
    if op == "s_barrier": return Ins(text, 'bar', **kw)
    if op in ("s_nop", "s_setprio", "s_sleep"): return Ins(text, 'nop', **kw)
    if op == "s_waitcnt": return Ins(text, 'wait', **kw)
    if op.startswith("s_cbranch") or op == "s_branch" or op == "s_endpgm":
        return Ins(text, 'br', [('s', 'scc')] if "scc" in op else ([('s', 'exec')] if "exec" in op else ([('s','vcc')] if "vcc" in op else [])), [], **kw)
    if text.endswith(":"): return Ins(text, 'label', **kw)
    if op.startswith("s_load") or op.startswith("s_mem"):
        return Ins(text, 'smem', parse_regs(",".join(ops[1:])), parse_regs(ops[0]), **kw)
    if op.startswith("s_cmp"):
        return Ins(text, 'salu', parse_regs(rest), [('s', 'scc')], **kw)
    if op.startswith("s_"):
        wr = parse_regs(ops[0]); rd = parse_regs(",".join(ops[1:]))
        if op.startswith("s_cselect") or op.startswith("s_addc"): rd.append(('s', 'scc'))
        if not (op.startswith("s_mov") or op.startswith("s_cselect") or op.startswith("s_mul") or op.startswith("s_getreg")):
            wr.append(('s', 'scc'))
        if "saveexec" in op: wr.append(('s', 'exec')); rd.append(('s', 'exec'))
        return Ins(text, 'salu', rd, wr, **kw)
    if op.startswith("v_"):
        wr = parse_regs(ops[0]); rd = parse_regs(",".join(ops[1:]))
        b = op.replace("_e32", "").replace("_e64", "")
        if b in RMW: rd += wr
        if "permlane" in b and "swap" in b: wr = wr + parse_regs(ops[1])
        return Ins(text, 'valu', rd, wr, **kw)
    raise ValueError(text)

def L(text, **kw):
    return [I(t, **kw) for t in text.strip().split("\n") if t.strip()]

class Sec:
    def __init__(self):
        self.m = []
        self.pre = []
        self.pin = {}
        self.streams = []
    def n(self): return len(self.m)
    def mfma(self, ins): self.m.append(ins); return len(self.m) - 1
    def at(self, idx, ins):
        if not isinstance(ins, list): ins = [ins]
        if idx < 0: self.pre += ins
        else: self.pin.setdefault(idx, []).extend(ins)
    def stream(self, lst, start, end):
        self.streams.append([list(lst), start, end])
    def flatten(self, cap=8):
        out = list(self.pre)
        n = len(self.m)
        st = [dict(ops=s[0], pos=0, start=s[1], end=min(s[2], n - 1), tot=sum(i.cost() for i in s[0]), done=0) for s in self.streams]
        for g in range(n):
            out.append(self.m[g])
            pins = self.pin.get(g, [])
            out += pins
            room = cap - sum(4 for p in pins if p.kind in ('ds', 'dma', 'vmem', 'salu', 'valu', 'bar'))
            act = [s for s in st if s['start'] <= g and s['pos'] < len(s['ops'])]
            while True:
                best = None; bl = -1e9
                for s in act:
                    if s['pos'] >= len(s['ops']): continue
                    span = max(1, s['end'] - s['start'] + 1)
                    target = s['tot'] * min(1.0, (g - s['start'] + 1) / span)
                    lag = target - s['done']
                    c = s['ops'][s['pos']].cost()
                    must = g >= s['end'] or lag >= 3 * 8
                    if (must or (c <= room and lag > 0)) and (lag + (1e6 if must else 0)) > bl:
                        best = s; bl = lag + (1e6 if must else 0)
                if best is None: break
                ins = best['ops'][best['pos']]
                out.append(ins); best['pos'] += 1; best['done'] += ins.cost(); room -= ins.cost()
        for s in st:
            assert s['pos'] == len(s['ops']), "stream not drained"
        return out

def check_order(prog):
    def producers(seq):
        last = {}; res = {}
        for i in seq:
            res[i.id] = {r: last.get(r) for r in i.rd}
            for r in i.wr: last[r] = i.id
        return res
    a = producers(sorted(prog, key=lambda i: i.id)); b = producers(prog)
    byid = {i.id: i for i in prog}
    bad = 0
    for k in a:
        if a[k] != b[k]:
            for r in a[k]:
                if a[k][r] != b[k][r]:
                    bad += 1
                    if bad < 10:
                        f = lambda x: byid[x].text if x else None
                        print("ORDER VIOLATION at '%s' reg %s: logical producer '%s' scheduled producer '%s'" % (byid[k].text, r, f(a[k][r]), f(b[k][r])))
    assert bad == 0, "order violations: %d" % bad

def insert_waits(prog):
    out = []
    vm = []; lg = []
    def need(lst, idx, cur_opt):
        op = lst[idx]
        return sum(1 for y in lst[idx + 1:] if (not y.opt) or (y.opt == cur_opt))
    for i in prog:
        if i.kind == 'wait':
            m = re.search(r"vmcnt\((\d+)\)", i.text)
            if m and int(m.group(1)) == 0 and not i.opt:
                for y in vm: y.done_pos = len(out)
                vm = []
            m = re.search(r"lgkmcnt\((\d+)\)", i.text)
            if m and int(m.group(1)) == 0 and not i.opt:
                for y in lg: y.done_pos = len(out)
                lg = []
            out.append(i); continue
        touched = set(i.rd) | (set() if getattr(i, 'nowaw', False) else set(i.wr))
        nv = nl = None; iv = il = -1
        for k, y in enumerate(vm):
            if (set(y.wr) & touched) or (y.tag is not None and y.tag in i.need_vm): iv = k
        for k, y in enumerate(lg):
            if (set(y.wr) & touched) or (y.tag is not None and y.tag in i.need_lgkm): il = k
        parts = []
        if iv >= 0:
            nv = min(63, need(vm, iv, i.opt)); parts.append("vmcnt(%d)" % nv)
        if il >= 0:
            nl = min(15, need(lg, il, i.opt))
            if any(y.kind == 'smem' for y in lg): nl = 0; il = len(lg) - 1
            parts.append("lgkmcnt(%d)" % nl)
        if parts:
            w = Ins("s_waitcnt " + " ".join(parts), 'wait'); w.opt = i.opt
            def retire(lst, idx):
                keep = []
                for k, y in enumerate(lst):
                    if k <= idx and (not i.opt or y.opt == i.opt):
                        y.done_pos = len(out)
                    else: keep.append(y)
                return keep
            if iv >= 0: vm = retire(vm, iv)
            if il >= 0: lg = retire(lg, il)
            out.append(w)
        if i.kind == 'need': continue
        i.pos = len(out)
        out.append(i)
        if i.kind in ('vmem', 'dma'): i.done_pos = None; vm.append(i)
        if i.kind in ('ds', 'smem'): i.done_pos = None; lg.append(i)
    return out

def states(i):
    if i.kind == 'label': return 0
    if i.op == "s_nop": return int(i.text.split()[1]) + 1
    return 1

def insert_nops(prog):
    out = []
    W = 400
    for i in prog:
        need = 0
        dist = 0
        rd = set(i.rd); wr = set(i.wr)
        for p in reversed(out[-W:]):
            req = 0
            pw = set(p.wr)
            if p.kind == 'valu':
                vw = {r for r in pw if r[0] in 'va'}
                sw = {r for r in pw if r[0] == 's'}
                if i.kind == 'mfma' and vw & rd: req = max(req, 2)
                if i.kind == 'valu':
                    if p.trans and not i.trans and vw & rd: req = max(req, 1)
                    if "permlane" in i.op and vw & rd: req = max(req, 2)
                    if ("dpp" in i.text or "row_" in i.text or "quad_perm" in i.text) and vw & rd: req = max(req, 2)
                    if ("readfirstlane" in i.op or "readlane" in i.op) and vw & rd: req = max(req, 1)
                    if sw & rd: req = max(req, 2)
                if i.kind in ('vmem', 'dma') and sw & rd: req = max(req, 5)
                if i.kind in ('salu', 'br') and sw & rd: req = max(req, 2)
            if p.kind == 'mfma':
                big = {4: 8, 8: 12}[p.passes]
                if i.kind == 'mfma':
                    c = set(i.mC); ab = rd - c
                    if pw & ab: req = max(req, big)
                    if pw & c and list(i.mC) != list(p.wr): req = max(req, {4: 6, 8: 10}[p.passes])
                elif i.kind in ('valu', 'vmem', 'ds', 'dma'):
                    if pw & (rd | wr): req = max(req, big)
                    if i.kind == 'valu' and set(p.mC) & wr: req = max(req, {4: 3, 8: 7}[p.passes])
            if p.kind == 'salu' and ('s', 'm0') in pw and i.kind == 'dma': req = max(req, 1)
            if p.kind == 'vmem' and p.wide and not p.wr and wr & {r for r in p.rd if r[0] in 'va'}: req = max(req, 2)
            if req > dist: need = max(need, req - dist)
            if not (p.opt and p.opt != i.opt): dist += states(p)
            if dist >= 20: break
        while need > 0:
            k = min(need, 16)
            n = Ins("s_nop %d" % (k - 1), 'nop'); n.opt = i.opt
            out.append(n); need -= k
        out.append(i)
    return out

def check_lds(prog):
    bars = [i.pos for i in prog if i.kind == 'bar' and not i.opt]
    obars = [(i.pos, i.opt) for i in prog if i.kind == 'bar' and i.opt]
    import bisect
    def bar_between(a, b, o1=False, o2=False):
        k = bisect.bisect_right(bars, a)
        if k < len(bars) and bars[k] < b: return True
        return any(a < q < b and (o == o1 or o == o2) for q, o in obars)
    acc = [i for i in prog if i.lds_r or i.lds_w]
    G = 256
    lastw = {}; lastr = {}
    bad = 0
    def rep(kind, p, i):
        nonlocal bad
        bad += 1
        if bad < 10: print("LDS %s violation: '%s' (pos %d done %s) -> '%s' (pos %d)" % (kind, p.text, p.pos, p.done_pos, i.text, i.pos))
    def ok(p, i, samegroup):
        if p.priv and i.priv:
            if p.kind == 'ds' and i.kind == 'ds': return True
            return p.done_pos is not None and p.done_pos <= i.pos
        return p.done_pos is not None and bar_between(p.done_pos, i.pos, p.opt, i.opt)
    for i in acc:
        if i.lds_r:
            for g in range(i.lds_r[0] // G, (i.lds_r[1] + G - 1) // G):
                ws = lastw.get(g)
                assert ws, "read of never-written LDS: %s" % i.text
                for p in ws:
                    if not ok(p, i, False): rep("RAW", p, i)
                lastr.setdefault(g, []).append(i)
        if i.lds_w:
            for g in range(i.lds_w[0] // G, (i.lds_w[1] + G - 1) // G):
                rr = lastr.get(g, [])
                for p in rr:
                    if not ok(p, i, False): rep("WAR", p, i)
                if rr:
                    lastw[g] = [i]; lastr[g] = []
                else:
                    lastw.setdefault(g, []).append(i)
    assert bad == 0, "LDS violations: %d" % bad

def finish(prog, check=True):
    if check: check_order(prog)
    p = insert_waits(prog)
    if check: check_lds(p)
    p = insert_nops(p)
    return p

def stats(p):
    from collections import Counter
    c = Counter(i.kind for i in p)
    return dict(c)


def slots(i):
    k = i.kind
    if k == 'valu':
        return (2 if (i.trans or "permlane" in i.op) else 1, False)
    if k == 'ds':
        if i.op == "ds_write_b128": return (5, True)
        if i.op == "ds_write_b64": return (3, True)
        if i.op == "ds_write_b32": return (2, False)
        return (1, False)
    if k == 'dma': return (2, True)
    if k == 'vmem':
        return ((5 if i.wide else 3), True) if 'store' in i.op else (2, True)
    if k == 'bar': return (2, True)
    if k == 'need': return (0, False)
    return (1, False)

def is_scalar(i): return i.kind in ('salu', 'wait', 'nop', 'need')

def Need(vm=(), lgkm=(), regs=()):
    return Ins("", 'need', rd=regs, need_vm=tuple(vm), need_lgkm=tuple(lgkm))

class Sec2:
    def __init__(self):
        self.m = []; self.pre = []
        self.sc = {}
        self.pin = {}
        self.blk = {}
        self.streams = []
    def n(self): return len(self.m)
    def mfma(self, ins): self.m.append(ins); return len(self.m) - 1
    def at(self, g, ins):
        for i in (ins if isinstance(ins, list) else [ins]):
            (self.sc if is_scalar(i) else self.pin).setdefault(g, []).append(i)
    def block(self, g, lst): self.blk.setdefault(g, []).extend(lst)
    def free(self, g):
        return not self.sc.get(g) and not self.pin.get(g)
    def room(self, g):
        r = 2 - sum(slots(i)[0] for i in self.pin.get(g, [])) - max(0, len(self.sc.get(g, [])) - 1)
        return r
    def stream(self, lst, start, end, name="", after=None, spacing=0):
        aft = [s for s in self.streams if after and s['name'] in after.split(",")]
        self.streams.append(dict(ops=list(lst), pos=0, start=start, end=end, name=name, after=aft, spacing=spacing, nb=0))
    def flatten(self, verbose=False):
        out = list(self.pre); n = len(self.m)
        over = 0; idle = 0
        self.over_at = {}
        for g in range(n):
            sc = list(self.sc.get(g, [])); vec = list(self.pin.get(g, []))
            room = self.room(g)
            excl = any(slots(i)[1] for i in vec)
            if excl: room = min(room, 0)
            act = sorted([s for s in self.streams if s['start'] <= g and s['pos'] < len(s['ops'])], key=lambda s: -1 if s['spacing'] else s['end'])
            took = set()
            while True:
                prog = False
                for s in act:
                    if s['pos'] >= len(s['ops']): continue
                    if any(t['pos'] < len(t['ops']) for t in s['after']): continue
                    i = s['ops'][s['pos']]
                    c, ex = slots(i)
                    force = g >= min(s['end'], n - 1)
                    if g < s['nb'] and not force: continue
                    if is_scalar(i):
                        unit = [i]
                        while s['pos'] + len(unit) < len(s['ops']) and ('s', 'scc') in s['ops'][s['pos'] + len(unit)].rd:
                            unit.append(s['ops'][s['pos'] + len(unit)])
                        left = len(s['ops']) - s['pos']
                        urgent = (min(s['end'], n - 1) - g) < 2 * left
                        if not sc and not excl and id(s) not in took and not (took and s['after']) and room >= len(unit) - 1:
                            sc += unit; room -= len(unit) - 1
                        elif (urgent and room >= len(unit)) or force: vec += unit; room -= len(unit)
                        else: continue
                        s['pos'] += len(unit) - 1
                    elif ex:
                        if not sc and not vec: vec.append(i); room -= c; excl = True; room = min(room, 0)
                        elif force: vec.append(i); room -= c
                        else: continue
                    else:
                        if room >= c or force: vec.append(i); room -= c
                        else: continue
                    took.add(id(s))
                    if s['spacing'] and not is_scalar(i): s['nb'] = g + s['spacing']
                    s['pos'] += 1; prog = True
                    if s['pos'] == len(s['ops']): s['done_at'] = g
                    break
                if not prog: break
            if room < 0: over -= room; self.over_at[g] = -room
            else: idle += room
            out.append(self.m[g]); out += sc + vec + self.blk.get(g, [])
        for s in self.streams:
            assert s['pos'] == len(s['ops']), "stream not drained " + s['name']
        if verbose:
            print("flatten: mfma %d overflow slots %d idle slots %d" % (n, over, idle), file=sys.stderr)
            reg = {}
            for g, o in self.over_at.items(): reg[g // 72 * 72] = reg.get(g // 72 * 72, 0) + o
            print("   overflow by region:", reg, file=sys.stderr)
            for s in self.streams:
                if s['name']: print("   stream %-10s %4d..%4d done at %d (%d ops)" % (s['name'], s['start'], s['end'], s.get('done_at', -1), len(s['ops'])), file=sys.stderr)
        return out
```

```python
import sys, math, struct
from asmlib import *
from fw import *

WS_A = 0x000000
WS_B = 0x300000
WS_Y = 0x3000000
WS_G = 0x600000
WS_O = 0x602000
WS_P = 0x800000
WS_C = 0x620000
WS_8 = 0x1c00000
WS_H = 0x3400000
CL = lambda n: WS_C + 128 * n
WS_N = 0x610000
KB_STRIDE = 131072
MF = "v_mfma_f32_16x16x32_bf16"
def f2h(x): return "0x%08x" % struct.unpack("<I", struct.pack("<f", x))[0]
def mf(d, a, b, c, opt=False):
    return I("%s %s, %s, %s, %s" % (MF, rs(d), rs(a), rs(b), rs(c) if c else "0"), opt=opt)
def F(text, opt=False, tag=None, **env):
    e = dict(ENV); e.update(env)
    kw = {}
    for k in ("lds_r", "lds_w", "priv", "need_vm", "need_lgkm"):
        if k in env: kw[k] = env[k]
    return L(text.format(**e), opt=opt, tag=tag, **kw)

ENV = dict(X="s[8:11]", WG="s[12:15]", WU="s[16:19]", WD="s[20:23]", WS="s[24:27]", DBG="s[28:31]", WP="s[32:35]", WA="s36", WB="s37", f="s38", g="s39", GW="s[40:43]", OUT="s[40:43]", PO1="s75", PO2="s76", PE1="s77", PE2="s78", XA="s83", HB="s46", HT="s47", S8="s44", SM_="s45",
           T="s79", C="s80", W="s81", W1K="s82", KB="s83", RG="s87", FH="s88", S2="s89", a="s84", b="s85", c="s86", d="s92", e="s93",
           Q="s94", KB3="s95", NL="s96", KB1="s97", GA="s98", GB="s99", SA="s100", SB="s101", ST="s90", SP="s91", u="s6", w="s7", ROT="s3")
S_KK, S_DK, S_XQ = 48, 66, 75
OPT = dict(stamps=False, BI=2, sc1p=True)
VST = [223]
def stamp(idx):
    if not OPT['stamps']: return []
    return L("s_memrealtime s[4:5]\ns_waitcnt lgkmcnt(0)\nv_writelane_b32 v%d, s4, %d\ns_memtime s[4:5]\ns_waitcnt lgkmcnt(0)\nv_writelane_b32 v%d, s4, %d" % (VST[0], idx, VST[0], 32 + idx))
def ts(idx):
    return stamp(idx) if OPT.get('diag') == 8 else []
def tp(idx):
    return stamp(idx) if OPT.get('diag') == 10 else []
def diag(n, idx):
    if OPT.get('diag', 0) != n: return []
    return L("s_waitcnt vmcnt(0)") + stamp(idx)
def stamp_out(kidx):
    if not OPT['stamps']: return []
    p = L("s_waitcnt vmcnt(0)") + stamp(31)
    p += F("s_cmp_lg_u32 {W}, 0\ns_cbranch_scc1 L_end_KN\ns_lshl_b32 s4, s2, 8\ns_add_u32 s4, s4, 0x%x\nv_lshlrev_b32 v0, 2, v0" % (STAMP_OFF + kidx * 262144))
    p += F("buffer_store_dword v%d, v0, {WS}, s4 offen" % VST[0])
    return p
def srd(d, b, n):
    return L("s_mov_b32 s%d, s%d\ns_and_b32 s%d, s%d, 0xffff\ns_mov_b32 s%d, 0x%x\ns_mov_b32 s%d, 0x20000" % (d, b, d + 1, b + 1, d + 2, n, d + 3))
def emit(a, name, prog, vg, accum=None):
    p = finish(prog)
    dr = OPT.get('drop', "")
    if 'd' in dr: p = [i for i in p if i.kind != 'dma']
    if 'b' in dr: p = [i for i in p if i.kind != 'bar']
    if 't' in dr: p = [i for i in p if not (i.kind == 'ds' and i.tag and i.tag.startswith('f'))]
    if 'v' in dr: p = [i for i in p if not getattr(i, 'silu', False)]
    if 'q' in dr: p = [i for i in p if not (i.kind == 'dma' and i.tag in ('q0', 'q1', 'q2'))]
    if 'y' in dr: p = [i for i in p if not (i.kind == 'dma' and i.tag == 'y')]
    if 'h' in dr: p = [i for i in p if i.tag not in ('gh1', 'gh2')]
    if '8' in dr: p = [i for i in p if i.tag != 'p8']
    if 's' in dr: p = [i for i in p if not (i.kind == 'vmem' and 's90' in i.text)]
    a.begin(name)
    for i in p: a(i.text.replace("KN", name))
    a("L_end_%s:\ns_endpgm" % name)
    for t in SPINS: a(t.replace("KN", name))
    a.end(name, vg, accum=accum)
    print(name, stats(p), file=sys.stderr)

def PL(): return (16384, 1024, 147456) if OPT.get('lay', 0) else (262144, 16384, 1024)
def WSP(): return OPT.get('wsp', WS_P)
def flat(t):
    o = []
    for x in t: o += x if isinstance(x, list) else [x]
    return o
def XF(mi, kk):
    n = kk * 4 + mi
    return A(4 * n, 4) if n < 64 else V(224 + 4 * (n - 64), 4)
def HF(mi, ks):
    n = ks * 8 + mi
    return XF(n & 3, n >> 2)
SET = [32, 64, 96, 128]
FB = 160
TMP = 196
V_DX, V_DW, V_DH, V_DD, V_RW, V_RX = 3, 4, 5, 6, 7, 13
V_HW, V_HH, V_L16, V_L16B, V_ST, V_SIL = 19, 20, 21, 22, 23, 24

def dma(vo, srdn, soff, pb, ioff, tag):
    assert pb - ioff >= 0
    m = F("s_add_u32 m0, {W1K}, %d" % (pb - ioff))[0]
    d = F("buffer_load_dwordx4 v%d, {%s}, s%d offen%s%s lds" % (vo, srdn, soff, (" offset:%d" % ioff) if ioff else "", OPT.get('xfl', "") if srdn == 'X' else OPT.get('wfl', "")), tag=tag, lds_w=(pb, pb + 4096))[0]
    return m, d

def gate_code(XQ, GQ, R):
    e = dict(va=R[2], vo=R[3], t0=R[4], t1=R[5], t2=R[6], t3=R[7])
    p = F("""v_lshrrev_b32 v{vo}, 5, v0
s_lshl_b32 {a}, {C}, 3
s_lshl_b32 {b}, {W}, 1
s_add_u32 {a}, {a}, {b}
v_add_u32 v{vo}, {a}, v{vo}
v_and_b32 v{t0}, 63, v{vo}
v_lshlrev_b32 v{t0}, 5, v{t0}
v_lshrrev_b32 v{t1}, 6, v{vo}
v_add_u32 v{t0}, v{t0}, v{t1}
s_lshl_b32 {a}, {T}, 1
v_add_u32 v{t0}, {a}, v{t0}
v_mul_u32_u24 v{t0}, 1152, v{t0}
v_and_b32 v{t1}, 31, v0
v_mul_u32_u24 v{t1}, 36, v{t1}
v_add_u32 v{t0}, v{t0}, v{t1}""", **e)
    for b_, s_, ad, sr in ((XQ, R[0], "t0", "X"), (GQ, R[1], "t1", "GW")):
        p += F("buffer_load_dwordx4 v[%d:%d], v{%s}, {%s}, 0 offen\nbuffer_load_dwordx4 v[%d:%d], v{%s}, {%s}, 0 offen offset:16\nbuffer_load_dword v%d, v{%s}, {%s}, 0 offen offset:32"
               % (b_, b_ + 3, ad, sr, b_ + 4, b_ + 7, ad, sr, s_, ad, sr), **e)
    def rest():
        q = []
        for n in range(9):
            q += F("""v_lshlrev_b32 v{t0}, 16, v{x}
v_lshlrev_b32 v{t1}, 16, v{y}
v_and_b32 v{t2}, 0xffff0000, v{x}
v_and_b32 v{t3}, 0xffff0000, v{y}
v_mul_f32 v{t0}, v{t0}, v{t1}
v_mul_f32 v{t2}, v{t2}, v{t3}
v_cvt_pk_bf16_f32 v{t0}, v{t0}, v{t2}
v_lshlrev_b32 v{t1}, 16, v{t0}
v_and_b32 v{t0}, 0xffff0000, v{t0}""", x=XQ + n if n < 8 else R[0], y=GQ + n if n < 8 else R[1], **e)
            q += F("v_add_f32 v{va}, v{t1}, v{t0}" if n == 0 else "v_add_f32 v{va}, v{va}, v{t1}\nv_add_f32 v{va}, v{va}, v{t0}", **e)
        for sh in (8, 4, 2, 1):
            q += F("v_add_f32_dpp v{va}, v{va}, v{va} row_ror:%d row_mask:0xf bank_mask:0xf" % sh, **e)
        q += F("""v_mov_b32 v{t0}, v{va}
v_and_b32 v{t1}, 31, v0
v_cmp_eq_u32 vcc, 0, v{t1}
v_permlane16_swap_b32 v{va}, v{t0}
v_add_f32 v{va}, v{va}, v{t0}
v_cvt_pk_bf16_f32 v{va}, v{va}, v{va}
v_lshlrev_b32 v{va}, 16, v{va}
v_mul_f32 v{va}, {NL}, v{va}
v_exp_f32 v{va}, v{va}
v_lshlrev_b32 v{vo}, 2, v{vo}
v_add_f32 v{va}, 1.0, v{va}
v_rcp_f32 v{va}, v{va}
v_bfrev_b32 v{t1}, 1
v_cvt_pk_bf16_f32 v{va}, v{va}, v{va}
v_lshlrev_b32 v{va}, 16, v{va}
v_sub_f32 v{t0}, 1.0, v{va}
v_cvt_pk_bf16_f32 v{t0}, v{t0}, v{t0}
v_lshlrev_b32 v{t0}, 16, v{t0}
v_cndmask_b32 v{vo}, v{t1}, v{vo}, vcc
s_lshl_b32 {u}, {T}, 9
s_add_u32 {u}, {u}, %d
s_add_u32 {w}, {u}, %d""" % (WS_G, WS_O - WS_G), **e)
        q += F("buffer_store_dword v{va}, v{vo}, {WS}, {u} offen sc1\nbuffer_store_dword v{t0}, v{vo}, {WS}, {w} offen sc1", tag="pub1", **e)
        return q
    return p, rest

def t_setup(P, kb, opt=False):
    e = dict(vk=P, vphi=P + 1, vco=P + 2, vd=P + 3, vmu=P + 4, vsg=P + 5, t=P + 6, kb=kb)
    return F("""v_lshrrev_b32 v{vk}, 2, v1
v_lshlrev_b32 v{vk}, 1, v{vk}
v_and_b32 v{t}, 1, v1
v_add_u32 v{vk}, v{vk}, v{t}
v_lshlrev_b32 v{vsg}, 31, v{t}
v_or_b32 v{vsg}, 1.0, v{vsg}
s_lshl_b32 {a}, {kb}, 4
s_lshl_b32 {b}, {FH}, 3
s_add_u32 {a}, {a}, {b}
v_add_u32 v{vk}, {a}, v{vk}
v_bfe_u32 v{vphi}, v1, 1, 1
v_cvt_f32_u32 v{vphi}, v{vphi}
v_mul_f32 v{vphi}, 0x3e800000, v{vphi}
v_add_u32 v{t}, {a}, v1
v_cmp_eq_u32 vcc, 2, v{t}
v_mov_b32 v{t}, 0x120
v_lshlrev_b32 v{vd}, 3, v2
v_cndmask_b32 v{vk}, v{vk}, v{t}, vcc
v_cndmask_b32 v{vphi}, v{vphi}, 0, vcc
v_mul_u32_u24 v{t}, {ROT}, v{vk}
v_mul_u32_u24 v{vco}, 7282, v{t}
v_lshrrev_b32 v{vco}, 16, v{vco}
v_mul_u32_u24 v{vco}, 9, v{vco}
v_sub_u32 v{t}, v{t}, v{vco}
v_cvt_f32_u32 v{t}, v{t}
v_fmac_f32 v{vphi}, 0x3de38e39, v{t}
v_cvt_f32_u32 v{vk}, v{vk}
v_mul_f32 v{vco}, %s, v{vk}
v_mul_f32 v{vk}, %s, v{vk}
v_cos_f32 v{vco}, v{vco}
v_add_u32 v{t}, {a}, v2
v_cmp_eq_u32 vcc, 0, v{t}
v_cvt_f32_u32 v{vd}, v{vd}
v_add_f32 v{vco}, v{vco}, v{vco}
v_cndmask_b32 v{vmu}, 1.0, 0, vcc""" % (f2h(1.0 / 18), f2h(1.0 / 576)), opt=opt, **e)

def t_frag(kk, f, ST, P, opt=False):
    cur = ST + 8 * (kk & 1); prv = ST + 8 * ((kk + 1) & 1); ops = []
    if kk < 2:
        for j in range(8): ops += L("v_add_f32 v%d, %s, v%d" % (cur + j, f2h(32.0 * kk + j), P + 3), opt=opt)
        for j in range(8): ops += L("v_fma_f32 v%d, v%d, v%d, v%d" % (cur + j, cur + j, P, P + 1), opt=opt)
        for j in range(8): ops += L("v_cos_f32 v%d, v%d" % (cur + j, cur + j), opt=opt)
    else:
        for j in range(8): ops += L("v_fma_f32 v%d, v%d, v%d, -v%d" % (cur + j, P + 2, prv + j, cur + j), opt=opt)
    for jp in range(4): ops += L("v_cvt_pk_bf16_f32 v%d, v%d, v%d" % (f + jp, cur + 2 * jp, cur + 2 * jp + 1), opt=opt)
    return ops

def twiddle_A(TW, T, tiles):
    vs, vj, p0, p1, c0, c1 = T, T + 4, T + 5, T + 6, T + 7, T + 8
    p = F("v_lshlrev_b32 v{vs}, 7, v2\nv_add_u32 v{vs}, {S2}, v{vs}\nv_cvt_f32_u32 v{vs}, v{vs}", vs=vs)
    for j in range(1, 4): p += L("v_add_f32 v%d, %s, v%d" % (vs + j, f2h(32.0 * j), vs))
    for a in tiles:
        p += L("v_lshl_add_u32 v%d, v1, 2, %d\nv_cvt_f32_u32 v%d, v%d\nv_mul_f32 v%d, %s, v%d" % (vj, a, vj, vj, vj, f2h(1.0 / 2048), vj))
        b = TW(a)
        for jp in range(2):
            p += L("""v_mul_f32 v%d, v%d, v%d
v_mul_f32 v%d, v%d, v%d
v_cos_f32 v%d, v%d
v_cos_f32 v%d, v%d
v_sin_f32 v%d, v%d
v_sin_f32 v%d, v%d
v_cvt_pk_bf16_f32 v%d, v%d, v%d
v_cvt_pk_bf16_f32 v%d, v%d, v%d""" % (p0, vs + 2 * jp, vj, p1, vs + 2 * jp + 1, vj, c0, p0, c1, p1, p0, p0, p1, p1, b + jp, c0, c1, b + 4 + jp, p0, p1))
            C = "v%d, v%d" % (c0, c1); nC = "-v%d, -v%d" % (c0, c1); Sn = "v%d, v%d" % (p0, p1); nS = "-v%d, -v%d" % (p0, p1)
            cc, ss = [(C, Sn), (nS, C), (nC, nS), (Sn, nC)][a]
            p += L("v_cvt_pk_bf16_f32 v%d, %s\nv_cvt_pk_bf16_f32 v%d, %s" % (b + 2 + jp, cc, b + 6 + jp, ss))
    return p

def step_A(ACC, TW, DF, P, kb, stg, fill=None, opt=False):
    k = dict(opt=opt)
    fill = fill or (lambda n: [])
    t0, t1, va, vb = DF + 8, DF + 9, DF + 10, DF + 11
    e = dict(va=va, vb=vb, t0=t0, kb=kb, L16=V_L16)
    p = F("""s_mul_i32 {a}, {RG}, 4352
s_lshl_b32 {b}, {FH}, 4
s_add_u32 {a}, {a}, {b}
s_add_u32 {a}, {a}, %d
v_mul_u32_u24 v{va}, 272, v1
v_lshl_add_u32 v{va}, v2, 2, v{va}
v_add_u32 v{va}, {a}, v{va}
s_mul_i32 {a}, {W}, 2176
s_add_u32 {a}, {a}, %d
v_lshl_add_u32 v{vb}, v2, 4, v{L16}
v_add_u32 v{vb}, {a}, v{vb}
s_lshl_b32 {c}, {W}, 11
s_lshl_b32 {a}, {T}, 13
s_lshl_b32 {b}, {kb}, 17
s_add_u32 {b}, {b}, {a}
s_add_u32 {b}, {b}, {c}""" % (stg, stg), **k, **e)
    for i in range(16): p += L("v_fma_f32 v%d, v%d, v%d, v%d" % (ACC + i, P + 5, ACC + 16 + i, ACC + i), **k)
    for i in range(8):
        p += L("v_add_f32 v%d, v%d, v%d\nv_sub_f32 v%d, v%d, v%d" % (ACC + 16 + i, ACC + i, ACC + 8 + i, ACC + 24 + i, ACC + i, ACC + 8 + i), **k)
    for i in range(8): p += L("v_cvt_pk_bf16_f32 v%d, v%d, v%d" % (DF + i, ACC + 16 + 2 * i, ACC + 17 + 2 * i), **k)
    T1, T2 = ACC, ACC + 16
    for a in range(4):
        for cs, D in ((0, T1), (1, T2)):
            p.append(mf(V(D + 4 * a, 4), V(DF + 4 * (a & 1), 4), V(TW(a) + 4 * cs, 4), None, opt))
            p += fill(2)
    rng = (stg, stg + 8704)
    for a in range(4):
        x, y = T1 + 4 * a, T2 + 4 * a
        p += L("""v_fma_f32 v%d, v%d, v%d, v%d
v_add_f32 v%d, v%d, v%d
v_cvt_pk_bf16_f32 v%d, v%d, v%d
v_fma_f32 v%d, v%d, v%d, -v%d
v_sub_f32 v%d, v%d, v%d
v_cvt_pk_bf16_f32 v%d, v%d, v%d""" % (t0, P + 4, y + 2, x, t1, x + 1, y + 3, DF + 2 * a, t0, t1, t0, P + 4, x + 2, y, t1, x + 3, y + 1, DF + 2 * a + 1, t0, t1), **k)
        p += L("ds_write2_b32 v%d, v%d, v%d offset0:%d offset1:%d" % (va, DF + 2 * a, DF + 2 * a + 1, 16 * a, 16 * a + 8), lds_w=rng, tag="sa", **k)
    if not opt:
        p += F("s_or_b32 {c}, {kb}, {FH}\ns_cmp_lg_u32 {c}, 0\ns_cbranch_scc1 L_ny_KN", kb=kb)
        o = "ny"
        q = F("""s_lshl_b32 {a}, {S2}, 12
s_add_u32 {a}, {a}, %d
v_bfe_u32 v{va}, v1, 2, 1
v_lshlrev_b32 v{va}, 6, v{va}
v_lshrrev_b32 v{t0}, 3, v1
v_lshl_add_u32 v{va}, v{t0}, 17, v{va}
v_and_b32 v{t0}, 3, v1
v_lshl_add_u32 v{va}, v{t0}, 2, v{va}
v_lshl_add_u32 v{va}, v2, 28, v{va}""" % (18 * KB_STRIDE), opt=o, va=va, t0=t0)
        for par in range(2):
            q += L("v_cvt_pk_bf16_f32 v%d, v%d, v%d\nv_cvt_pk_bf16_f32 v%d, -v%d, -v%d"
                   % (T1 + par, T1 + 4 * par + 2, T1 + 4 * par + 10, T2 + par, T2 + 4 * par + 2, T2 + 4 * par + 10), opt=o)
        for par in range(2):
            q += F("buffer_store_dword v%d, v{va}, {WS}, {a} offen offset:%d sc1\nbuffer_store_dword v%d, v{va}, {WS}, {a} offen offset:%d sc1"
                   % (T1 + par, par * 16, T2 + par, 32 + par * 16), opt=o, tag="pub1", va=va)
        p += q + L("L_ny_KN:")
    p += L("s_barrier", need_lgkm=("sa",), **k)
    p += L("ds_read_b128 v[%d:%d], v%d\nds_read_b128 v[%d:%d], v%d offset:1088" % (DF, DF + 3, vb, DF + 4, DF + 7, vb), lds_r=rng, tag="lds", **k)
    p += fill(16)
    p += F("buffer_store_dwordx4 v[%d:%d], v{L16}, {WS}, {b} offen sc1\nbuffer_store_dwordx4 v[%d:%d], v{L16}, {WS}, {b} offen offset:1024 sc1"
           % (DF, DF + 3, DF + 4, DF + 7), tag="pub1", **k, **e)
    return p

def dft32(M, T, opt):
    vi, vg, p0, p1, c0, c1 = T, T + 1, T + 2, T + 3, T + 4, T + 5
    k = dict(opt=opt)
    p = L("v_cvt_f32_u32 v%d, v1\nv_lshlrev_b32 v%d, 2, v2\nv_mul_f32 v%d, %s, v%d\nv_cvt_f32_u32 v%d, v%d" % (vi, vg, vi, f2h(1.0 / 32), vi, vg, vg), **k)
    for jp in range(2):
        p += L("""v_add_f32 v%d, %s, v%d
v_add_f32 v%d, %s, v%d
v_mul_f32 v%d, v%d, v%d
v_mul_f32 v%d, v%d, v%d
v_cos_f32 v%d, v%d
v_cos_f32 v%d, v%d
v_sin_f32 v%d, v%d
v_sin_f32 v%d, v%d
v_cvt_pk_bf16_f32 v%d, v%d, v%d
v_cvt_pk_bf16_f32 v%d, v%d, v%d""" % (p0, f2h(2.0 * jp), vg, p1, f2h(2.0 * jp + 1), vg, p0, p0, vi, p1, p1, vi, c0, p0, c1, p1, p0, p0, p1, p1, M + jp, c0, c1, M + 4 + jp, p0, p1), **k)
    p += L("v_and_b32 v%d, 1, v1\nv_mul_u32_u24 v%d, 0x8000, v%d\nv_lshl_add_u32 v%d, v%d, 16, v%d" % (vi, vi, vi, vi, vi, vi), **k)
    for b in (M, M + 4):
        for jp in range(2): p += L("v_xor_b32 v%d, v%d, v%d" % (b + 2 + jp, vi, b + jp), **k)
    for d in range(4):
        p += L("v_xor_b32 v%d, 0x80008000, v%d\nv_xor_b32 v%d, 0x80000000, v%d\nv_xor_b32 v%d, 0x80000000, v%d\nv_xor_b32 v%d, 0x8000, v%d"
               % (M + 8 + d, M + 4 + d, M + 12 + d, M + d, M + 16 + d, M + 4 + d, M + 20 + d, M + 4 + d), **k)
    return p

def nyw_load(r, o):
    return F("""s_lshl_b32 {a}, {T}, 7
s_lshl_b32 {b}, {FH}, 6
s_add_u32 {a}, {a}, {b}
v_add_u32 v{r}, {a}, v0
v_mul_u32_u24 v{r}, 578, v{r}
buffer_load_ushort v{r}, v{r}, {WP}, 0 offen offset:576""", opt=o, r=r)
def nyw_store(r, j, t, o):
    return F("""s_lshl_b32 {a}, {RG}, 12
s_lshl_b32 {b}, {T}, 8
s_add_u32 {a}, {a}, {b}
s_lshl_b32 {b}, {FH}, 7
s_add_u32 {a}, {a}, {b}
s_add_u32 {a}, {a}, %d
v_and_b32 v{j}, 14, v0
v_and_b32 v{t}, 1, v0
v_lshl_add_u32 v{j}, v{t}, 4, v{j}
v_and_b32 v{t}, 1, v2
v_lshl_add_u32 v{j}, v{t}, 6, v{j}
v_lshrrev_b32 v{t}, 1, v2
v_lshl_add_u32 v{j}, v{t}, 5, v{j}""" % WS_N, opt=o, j=j, t=t) + F("buffer_store_short v%d, v%d, {WS}, {a} offen sc1" % (r, j), opt=o, tag="pub1")

def s2_scalars(gam, wo, keep):
    return F("""s_and_b32 {b}, {gam}, 31
s_lshl_b32 {keep}, {b}, 7
s_lshl_b32 {b}, {b}, 1
s_add_u32 {b}, {b}, {FH}
s_mul_i32 {b}, {b}, 578
s_lshr_b32 {a}, {gam}, 5
s_lshl_b32 {wo}, {a}, 6
s_add_u32 {wo}, {wo}, {b}
s_lshl_b32 {a}, {a}, 1
s_add_u32 {a}, {a}, {RG}
s_lshl_b32 {a}, {a}, 17
s_add_u32 {keep}, {keep}, {a}
s_lshl_b32 {b}, {FH}, 16
s_add_u32 {keep}, {keep}, {b}""", gam=gam, wo=wo, keep=keep)
def s2_wloads(gam, wo, Wr, vw, t0):
    return F("""v_lshrrev_b32 v{vw}, 2, v0
v_mul_u32_u24 v{vw}, 36992, v{vw}
v_and_b32 v{t0}, 3, v0
v_lshl_add_u32 v{vw}, v{t0}, 4, v{vw}
s_cmp_lt_u32 {gam}, 288
s_cselect_b32 {f}, 0, 0x80000000
v_or_b32 v{vw}, {f}, v{vw}
s_add_u32 {f}, {wo}, %d
buffer_load_dwordx4 v[%d:%d], v{vw}, {WP}, {wo} offen
buffer_load_dwordx4 v[%d:%d], v{vw}, {WP}, {f} offen""" % (16 * 36992, Wr, Wr + 3, Wr + 4, Wr + 7), gam=gam, wo=wo, vw=vw, t0=t0)
def s2_wspecial(Wr, vw, t0, opt):
    return F("""s_lshl_b32 {a}, {RG}, 12
s_lshl_b32 {b}, {FH}, 6
s_add_u32 {a}, {a}, {b}
s_add_u32 {a}, {a}, %d
v_lshrrev_b32 v{vw}, 2, v0
v_lshlrev_b32 v{vw}, 7, v{vw}
v_and_b32 v{t0}, 3, v0
v_lshl_add_u32 v{vw}, v{t0}, 4, v{vw}
buffer_load_dwordx4 v[%d:%d], v{vw}, {WS}, {a} offen sc1
buffer_load_dwordx4 v[%d:%d], v{vw}, {WS}, {a} offen offset:2048 sc1""" % (WS_N, Wr, Wr + 3, Wr + 4, Wr + 7), opt=opt, vw=vw, t0=t0)
def s2_gaddr(va, t0, opt):
    return F("v_lshrrev_b32 v{va}, 3, v0\nv_lshlrev_b32 v{va}, 12, v{va}\nv_and_b32 v{t0}, 7, v0\nv_lshl_add_u32 v{va}, v{t0}, 4, v{va}", opt=opt, va=va, t0=t0)
def s2_dloads(gam, keep, D, va, vm):
    return F("""s_cmp_le_u32 {gam}, 288
s_cselect_b32 {f}, 0, 0x80000000
v_or_b32 v{vm}, {f}, v{va}
s_add_u32 {f}, {keep}, 0x8000
buffer_load_dwordx4 v[%d:%d], v{vm}, {WS}, {keep} offen sc1
buffer_load_dwordx4 v[%d:%d], v{vm}, {WS}, {f} offen sc1""" % (D, D + 3, D + 4, D + 7), keep=keep, gam=gam, va=va, vm=vm)

def s2_addr(T, lds_base, opt):
    e = dict(vl=T, vr=T + 1, vw=T + 2, vo=T + 3, vp=T + 4, vb=T + 5, t0=T + 7, L16=V_L16)
    return F("""s_lshl_b32 {u}, {W}, 11
s_add_u32 {u}, {u}, %d
v_add_u32 v{vl}, {u}, v{L16}
v_lshrrev_b32 v{t0}, 3, v0
v_lshlrev_b32 v{t0}, 4, v{t0}
v_xor_b32 v{vb}, v{vl}, v{t0}
v_lshrrev_b32 v{vr}, 2, v1
v_lshl_add_u32 v{vr}, v2, 2, v{vr}
v_lshlrev_b32 v{vw}, 6, v{vr}
v_lshlrev_b32 v{vr}, 7, v{vr}
v_and_b32 v{t0}, 3, v1
v_lshl_add_u32 v{vr}, v{t0}, 3, v{vr}
v_lshl_add_u32 v{vw}, v{t0}, 3, v{vw}
s_lshl_b32 {u}, {RG}, 12
s_lshl_b32 {w}, {FH}, 6
s_add_u32 {u}, {u}, {w}
s_add_u32 {u}, {u}, %d
v_add_u32 v{vr}, {u}, v{vr}
v_lshlrev_b32 v{vo}, 7, v1
v_lshl_add_u32 v{vo}, v2, 3, v{vo}
v_add_u32 v{vo}, {u}, v{vo}
v_and_b32 v{t0}, 7, v1
v_lshlrev_b32 v{t0}, 4, v{t0}
v_xor_b32 v{vo}, v{vo}, v{t0}
v_xor_b32 v{vp}, 32, v{vo}
s_lshl_b32 {u}, {FH}, 11
s_lshl_b32 {w}, {RG}, 5
s_add_u32 {u}, {u}, {w}
s_add_u32 {u}, {u}, %d
v_add_u32 v{vw}, {u}, v{vw}""" % (lds_base, lds_base, lds_base + 8192), opt=opt, **e)

def s2_compute(keep, M, D, Z, Wr, T, X, lds_base, opt):
    e = dict(keep=keep, vl=T, vr=T + 1, vw=T + 2, vb=T + 5, va=T + 6, t0=X, t1=X + 1, t2=X + 2, t3=X + 3)
    k = dict(opt=opt)
    rng = (lds_base, lds_base + 16384); rn2 = (lds_base + 16384, lds_base + 24576)
    q = F("ds_write_b128 v{vl}, v[%d:%d]\nds_write_b128 v{vl}, v[%d:%d] offset:1024\nds_write_b128 v{vl}, v[%d:%d] offset:8192\nds_write_b128 v{vl}, v[%d:%d] offset:9216"
          % (D, D + 3, D + 4, D + 7, Wr, Wr + 3, Wr + 4, Wr + 7), lds_w=rng, tag="s2", **k, **e)
    q += F("s_add_u32 {a}, {keep}, %d\ns_add_u32 {b}, {a}, 0x8000" % WS_B, **k, **e)
    q += L("s_barrier", need_lgkm=("s2",), **k)
    for pl in range(2):
        q += F("ds_read_b64_tr_b16 v[%d:%d], v{vr} offset:%d\nds_read_b64_tr_b16 v[%d:%d], v{vr} offset:%d"
               % (D + 4 * pl, D + 4 * pl + 1, pl * 32, D + 4 * pl + 2, D + 4 * pl + 3, pl * 32 + 2048), lds_r=rng, tag="lds", **k, **e)
    for pl in range(2):
        q += F("ds_read_b64_tr_b16 v[%d:%d], v{vw} offset:%d\nds_read_b64_tr_b16 v[%d:%d], v{vw} offset:%d"
               % (Wr + 4 * pl, Wr + 4 * pl + 1, pl * 4096, Wr + 4 * pl + 2, Wr + 4 * pl + 3, pl * 4096 + 1024), lds_r=rng, tag="lds", **k, **e)
    C = lambda a: V(M + (a * 3) * 4, 4)
    Sn = lambda a: V(M + (a * 3 + 1) * 4, 4)
    N = lambda a: V(M + (a * 3 + 2) * 4, 4)
    Ar, Ai = V(D, 4), V(D + 4, 4)
    for aa in range(2):
        zr, zi = V(Z + 4 * aa, 4), V(Z + 8 + 4 * aa, 4)
        q += [mf(zr, C(aa), Ar, None, opt), mf(zr, Sn(aa), Ai, zr, opt), mf(zi, C(aa), Ai, None, opt), mf(zi, N(aa), Ar, zi, opt)]
    for i in range(8):
        un = "v_lshlrev_b32 v{t2}, 16, v{wr}\nv_lshlrev_b32 v{t3}, 16, v{wi}\n" if i % 2 == 0 else "v_and_b32 v{t2}, 0xffff0000, v{wr}\nv_and_b32 v{t3}, 0xffff0000, v{wi}\n"
        q += F(un + """v_mul_f32 v{t0}, v{zi}, v{t3}
v_mul_f32 v{t1}, v{zr}, v{t3}
v_fma_f32 v{zr}, v{zr}, v{t2}, -v{t0}
v_fma_f32 v{zi}, v{zi}, v{t2}, v{t1}""", zr=Z + i, zi=Z + 8 + i, wr=Wr + i // 2, wi=Wr + 4 + i // 2, **k, **e)
    for pl in range(2):
        for d in range(4): q += L("v_cvt_pk_bf16_f32 v%d, v%d, v%d" % (D + 4 * pl + d, Z + 8 * pl + 2 * d, Z + 8 * pl + 2 * d + 1), **k)
    for aa in range(2):
        br = V(Z + 4 * aa, 4)
        q += [mf(br, Ar, C(aa), None, opt), mf(br, Ai, N(aa), br, opt)]
    for aa in range(2):
        bi = V(Z + 8 + 4 * aa, 4)
        q += [mf(bi, Ai, C(aa), None, opt), mf(bi, Ar, Sn(aa), bi, opt)]
    for pl in range(2):
        for aa in range(2):
            r = Wr + 4 * pl + 2 * aa; z = Z + 8 * pl + 4 * aa
            q += L("v_cvt_pk_bf16_f32 v%d, v%d, v%d\nv_cvt_pk_bf16_f32 v%d, v%d, v%d" % (r, z, z + 1, r + 1, z + 2, z + 3), **k)
            q += L("ds_write_b64 v%d, v[%d:%d] offset:%d" % (T + 3 + pl, r, r + 1, 16384 + aa * 2048), lds_w=rn2, tag="s2", **k)
    q += L("s_barrier", need_lgkm=("s2", "lds"), **k)
    q += F("ds_read_b128 v[%d:%d], v{vb} offset:16384\nds_read_b128 v[%d:%d], v{vb} offset:17408" % (D, D + 3, D + 4, D + 7), lds_r=rn2, tag="lds", **k, **e)
    q += F("buffer_store_dwordx4 v[%d:%d], v{va}, {WS}, {a} offen sc1\nbuffer_store_dwordx4 v[%d:%d], v{va}, {WS}, {b} offen sc1"
           % (D, D + 3, D + 4, D + 7), tag="pub2", **k, **e)
    return q

def twiddle_D(TW, T):
    vs, vj, vk, c0, c1, s0, s1 = T, T + 1, T + 2, T + 3, T + 4, T + 5, T + 6
    p = F("""s_lshl_b32 {u}, {FH}, 9
s_add_u32 {u}, {u}, {S2}
v_lshlrev_b32 v{vs}, 5, v1
v_add_u32 v{vs}, {u}, v{vs}
v_cvt_f32_u32 v{vs}, v{vs}
v_mul_f32 v{vs}, %s, v{vs}
v_lshlrev_b32 v{vj}, 4, v2
v_cvt_f32_u32 v{vj}, v{vj}
v_add_f32 v{vk}, v{vs}, v{vs}
v_cos_f32 v{vk}, v{vk}""" % f2h(1.0 / 2048), vs=vs, vj=vj, vk=vk)
    for par in range(2):
        p += L("""v_add_f32 v%d, %s, v%d
v_add_f32 v%d, %s, v%d
v_mul_f32 v%d, v%d, v%d
v_mul_f32 v%d, v%d, v%d
v_cos_f32 v%d, v%d
v_cos_f32 v%d, v%d
v_sin_f32 v%d, v%d
v_sin_f32 v%d, v%d""" % (s0, f2h(float(par)), vj, s1, f2h(par + 2.0), vj, s0, s0, vs, s1, s1, vs, c0, s0, c1, s1, s0, s0, s1, s1))
        if par == 0: p += L("v_add_f32 v%d, v%d, v%d" % (vk, vk, vk))
        for jp in range(4):
            if jp:
                p += L("v_fma_f32 v%d, v%d, v%d, -v%d\nv_fma_f32 v%d, v%d, v%d, -v%d\nv_fma_f32 v%d, v%d, v%d, -v%d\nv_fma_f32 v%d, v%d, v%d, -v%d"
                       % (c0, vk, c1, c0, s0, vk, s1, s0, c1, vk, c0, c1, s1, vk, s0, s1))
            p += L("v_cvt_pk_bf16_f32 v%d, v%d, v%d\nv_cvt_pk_bf16_f32 v%d, v%d, v%d" % (TW + par * 8 + jp, c0, c1, TW + par * 8 + 4 + jp, s0, s1))
    return p

def stepD_loads(kb, RAW, opt=False):
    p = F("s_lshl_b32 {a}, {S2}, 12\ns_add_u32 {a}, {a}, %d\ns_lshl_b32 {b}, {kb}, 17\ns_add_u32 {b}, {b}, {a}" % WS_B, kb=kb, opt=opt)
    for i in range(4):
        p += F("buffer_load_dwordx4 v[%d:%d], v%d, {WS}, {b} offen offset:%d sc1" % (RAW + 4 * i, RAW + 4 * i + 3, V_L16, i * 1024), opt=opt)
    return p
def stepD_nyloads(NY, T, opt):
    p = F("s_add_u32 {a}, {a}, %d\nv_and_b32 v{t}, 1, v2\nv_lshlrev_b32 v{t}, 6, v{t}\nv_lshrrev_b32 v{n}, 1, v2\nv_lshl_add_u32 v{t}, v{n}, 17, v{t}" % (18 * KB_STRIDE), opt=opt, t=T, n=NY)
    for par in range(2):
        for pl in range(2):
            r = NY + (par * 2 + pl) * 4
            p += F("buffer_load_dwordx4 v[%d:%d], v%d, {WS}, {a} offen offset:%d sc1" % (r, r + 3, T, pl * 32 + par * 16), opt=opt)
    return p

def stepD_parts(RAW, NY, NB, TW, ACC, T, stage_base, kb, so, opt=False):
    k = dict(opt=opt)
    e = dict(vl=T, vr=T + 1, t0=T + 2, so=so, kb=kb)
    rng = (stage_base, stage_base + 16384)
    p = F("s_lshl_b32 {so}, {W}, 12\ns_add_u32 {so}, {so}, %d\nv_add_u32 v{vl}, {so}, v%d" % (stage_base, V_L16), **k, **e)
    p += F("""v_lshrrev_b32 v{vr}, 2, v1
v_lshl_add_u32 v{vr}, v2, 3, v{vr}
v_lshlrev_b32 v{vr}, 7, v{vr}
v_and_b32 v{t0}, 3, v1
v_lshl_add_u32 v{vr}, v{t0}, 3, v{vr}
v_add_u32 v{vr}, {so}, v{vr}""", **k, **e)
    for i in range(4):
        p += F("ds_write_b128 v{vl}, v[%d:%d] offset:%d" % (RAW + 4 * i, RAW + 4 * i + 3, i * 1024), lds_w=rng, priv=True, tag="lds", **k, **e)
    for par in range(2):
        for pl in range(2):
            r = RAW + (par * 2 + pl) * 4; o = par * 64 + pl * 32
            p += F("ds_read_b64_tr_b16 v[%d:%d], v{vr} offset:%d\nds_read_b64_tr_b16 v[%d:%d], v{vr} offset:%d" % (r, r + 1, o, r + 2, r + 3, o + 512),
                   lds_r=rng, priv=True, tag="lds", **k, **e)
    p += F("s_lshl_b32 {so}, {S2}, 1\ns_mul_i32 {so}, {so}, 18\ns_add_u32 {so}, {so}, {kb}\ns_lshl_b32 {so}, {so}, 1\ns_add_u32 {so}, {so}, {FH}\ns_lshl_b32 {so}, {so}, 10\ns_add_u32 {so}, {so}, %d" % WS_Y, **k, **e)
    ng = []
    for par in range(2):
        for d in range(4): ng += L("v_xor_b32 v%d, 0x80008000, v%d" % (NB + 4 * par + d, RAW + par * 8 + 4 + d), **k)
    mr = []
    for par in range(2):
        er = V(ACC + 8 * par, 4)
        mr += [mf(er, V(RAW + 8 * par, 4), V(TW + 8 * par, 4), None, opt), mf(er, V(NB + 4 * par, 4), V(TW + 8 * par + 4, 4), er, opt)]
    pt = []
    if not opt:
        pt = F("s_cmp_lg_u32 {C}, 0\ns_cbranch_scc1 L_nyd_KN") + L("v_cmp_eq_u32 vcc, 0, v1", opt="nyd")
        for par in range(2):
            for d in range(4):
                br, bi, nr, ni = RAW + 8 * par + d, RAW + 8 * par + 4 + d, NY + 8 * par + d, NY + 8 * par + 4 + d
                pt += L("v_xor_b32 v%d, 0x80008000, v%d\nv_cndmask_b32 v%d, v%d, v%d, vcc\nv_cndmask_b32 v%d, v%d, v%d, vcc" % (ni, ni, bi, bi, nr, br, br, ni), opt="nyd")
        pt += L("L_nyd_KN:")
    mi_ = []
    for par in range(2):
        ei = V(ACC + 8 * par + 4, 4)
        mi_ += [mf(ei, V(RAW + 8 * par + 4, 4), V(TW + 8 * par, 4), None, opt), mf(ei, V(RAW + 8 * par, 4), V(TW + 8 * par + 4, 4), ei, opt)]
    f = []
    for r in range(8):
        f += L("v_add_f32 v%d, v%d, v%d\nv_sub_f32 v%d, v%d, v%d" % (RAW + r, ACC + r, ACC + 8 + r, RAW + 8 + r, ACC + r, ACC + 8 + r), **k)
    for u in range(2):
        for d in range(4): f += L("v_cvt_pk_bf16_f32 v%d, v%d, v%d" % (RAW + 8 * u + d, RAW + 8 * u + 2 * d, RAW + 8 * u + 2 * d + 1), **k)
        f += F("buffer_store_dwordx4 v[%d:%d], v%d, {WS}, {so} offen sc1" % (RAW + 8 * u, RAW + 8 * u + 3, V_L16), tag="p8", **k, **e)
        if u == 0: f += F("s_add_u32 {so}, {so}, 36864", **k, **e)
    return p, ng, mr, pt, mi_, f

V_M0, V_ONE = 222, 3
SPINS = []
def signal(so):
    return F("buffer_atomic_add v%d, v%d, {WS}, %s offen sc1" % (V_ONE, V_M0, so))
def poll(vr, so, srdn="WS"):
    return F("buffer_load_dword v%d, v%d, {%s}, %s offen sc1" % (vr, V_M0, srdn, so))
def check(name, vr, so, exp, srdn="WS", sidx=None):
    p = F("v_readfirstlane_b32 {SP}, v%d\ns_cmp_ge_u32 {SP}, %s\ns_cbranch_scc0 L_sp%s_KN\nL_bk%s_KN:" % (vr, exp, name, name))
    st = ""
    if OPT['stamps'] and sidx is not None: st = "v_writelane_b32 v%d, s5, %d\n" % (VST[0], sidx)
    SPINS.append(("""L_sp{n}_KN:
s_mov_b32 s5, 0
L_sq{n}_KN:
s_sleep 1
buffer_load_dword v%d, v%d, {%s}, %s offen sc1
s_add_u32 s5, s5, 1
s_waitcnt vmcnt(0)
v_readfirstlane_b32 {SP}, v%d
%ss_cmp_ge_u32 s5, 0x80000
s_cbranch_scc1 L_bk{n}_KN
s_cmp_ge_u32 {SP}, %s
s_cbranch_scc0 L_sq{n}_KN
s_branch L_bk{n}_KN""" % (vr, V_M0, srdn, so, vr, st, exp)).format(n=name, **ENV))
    return p

def kernel_main(a):
    name = NAME + "_kernel"
    BI = OPT['BI']
    t0, t1 = SET[0], SET[0] + 1
    e = dict(t0=t0, t1=t1, DX=V_DX, DW=V_DW, DH=V_DH, DD=V_DD, RW=V_RW, RX=V_RX, RW1=V_RW + 3, RX1=V_RX + 3, HW=V_HW, HH=V_HH, L16=V_L16, L16B=V_L16B, VST_=V_ST)
    VPF, VDM = V_HH, V_ST
    def vaddr64(q):
        for i in q:
            if i.op == "v_add_co_u32": i.wr.append(('s', 'vcc')); i.rd = [r for r in i.rd if r != ('s', 'vcc')]
            if i.op == "v_addc_co_u32": i.wr.append(('s', 'vcc'))
        return q
    G = []
    def grp(kind, nm, need, **kw):
        d = dict(kind=kind, nm=nm, need=need, bar=False, xr=None, rate=2); d.update(kw); G.append(d); return d
    for sg in range(9):
        for tau in range(4):
            mat = 'G' if tau < 2 else 'U'
            g = grp('SB', 16 if tau == 3 else 8, [(mat, 0, 2 * sg), (mat, 0, 2 * sg + 1)], sg=sg, tau=tau, rate=(5 if tau == 3 else 2))
            if tau == 2 or (sg == 0 and tau == 0): g['bar'] = True
            if sg < 8 and tau in (2, 3): g['xr'] = (sg + 1, tau - 2)
    PS = {}
    for mat, b, st in [('G', 1, 3), ('U', 1, 2), ('G', 2, 0), ('U', 2, 1), ('G', 3, 3), ('U', 3, 2)]:
        PS[mat + str(b)] = len(G)
        for sl in range(6):
            for ap in range(2):
                g = grp('P1', 12, [(mat, b, 3 * sl + e_) for e_ in range(3)], st=st, sl=sl, ap=ap, ps=mat + str(b))
                if ap == 0 and (sl % BI == BI - 1): g['bar'] = True
    for hf, mat in enumerate(('HG', 'HU')):
        PS[mat] = len(G)
        for gi in range(6):
            g = grp('PH', 12, [(mat, (3 * gi + e_) >> 1) for e_ in range(3)], gi=gi, ps=mat, half=hf)
            if gi % 2 == 0: g['bar'] = True
    P2 = len(G); HU = PS['HU']
    seq = [(0, 0), (1, 0), (0, 1), (1, 1), (0, 2), (1, 2)] + [(u, gi) for u in range(2, 9) for gi in range(3)]
    for u, gi in seq:
        grp('P2', 24, [('D', u, 3 * gi + e_) for e_ in range(3)], cb=u, gi=gi, rate=OPT.get('r2', 4), bar=True)
    NG = len(G)
    G[P2 - 1]['bar'] = True
    def rdg(n): return n - 1 if n > P2 else n - 2
    iv = []; n = 0
    for g in G:
        if g['bar']: n += 1
        iv.append(n)
    def free_iv(gr):
        for k in range(gr, NG):
            if G[k]['bar']: return iv[k]
        return 10 ** 6
    def next_bar(gi):
        while not G[gi]['bar']: gi += 1
        return gi
    first = {}; fre = {}; order = []
    def use(key, rg_, done_g):
        if key not in first: first[key] = iv[rg_] if rg_ >= 0 else 0; order.append(key)
        fre[key] = max(fre.get(key, 0), free_iv(done_g))
    for q in range(4): use(('x', 0, q), -1, 1)
    ev = []
    for gi, g in enumerate(G):
        for k in g['need']: ev.append((rdg(gi), 0, k, gi))
        if g['xr']:
            for q in range(4): ev.append((gi, 1, ('x', g['xr'][0], q), 4 * g['xr'][0] + 1))
    ev.sort(key=lambda x: (x[0], x[1]))
    for r_, _, k, d_ in ev: use(k, r_, d_)
    order.sort(key=lambda k: first[k])
    fixed = {}
    for sg in range(9):
        s = 8 * (sg % 5)
        for e_ in range(2):
            fixed[('G', 0, 2 * sg + e_)] = s + e_; fixed[('U', 0, 2 * sg + e_)] = s + 2 + e_
        for q in range(4): fixed[('x', sg, q)] = s + 4 + q
    gS2 = PS['U2'] + 11
    gSD = P2 + OPT.get('sdat', 4); gQ = P2 + 16
    ga1 = next_bar(PS['G1'] + 5); gc1 = next_bar(PS['U2'] + 2); ga2 = next_bar(gS2 + 5); gc2 = HU + 2
    gh1 = next_bar(PS['HG'] + 4); gq1 = P2 + 1; gh2 = P2 + 7; gq2 = P2 + 12; gf8 = P2 + 11; gY = P2 + 17; gfa = P2 + OPT.get('faat', 26)
    res = [(0, 4, PS['G1'] - 1, NG - 1), (4, 1, PS['G1'] - 1, PS['G1']), (12, 6, gS2, gS2 + 1), (4, 4, PS['G2'], NG - 1), (8, 4, PS['G3'], gQ), (8, 3, gQ, NG - 1),
           (12, 4, PS['HG'], gQ + 1), (16, 2, P2, gQ + 1), (18, 4, gSD, gSD + 4)]
    resv = {pg: [] for pg in range(40)}
    for f_, npg, ga, gb in res:
        for pg in range(f_, f_ + npg): resv[pg].append((iv[ga], free_iv(gb + 1)))
    free_at = [-1] * 40; phys = {}; issue_grp = {}; qi = 0
    def ioff(k):
        if k[0] == 'D': return 0 if k[1] == 0 else ((k[1] - 1) & 3) * 128
        return k[1] * 128 if k[0] in 'GU' else 0
    def try_alloc(k, cur):
        for pg in ([fixed[k]] if k in fixed else range(39, -1, -1)):
            if free_at[pg] > cur or (pg == 0 and ioff(k) > 0): continue
            if any(not (fre[k] <= a_ or cur >= b_) for a_, b_ in resv[pg]): continue
            return pg
        return None
    cum = [0]
    for g in G: cum.append(cum[-1] + g['nm'])
    bar_grp = {iv[gi]: gi for gi, g in enumerate(G) if g['bar']}; bar_grp[0] = 0
    vt = {}; cnt_iv = {}
    for k in order:
        n_ = cnt_iv.get(first[k], 0); cnt_iv[first[k]] = n_ + 1
        vt[k] = cum[bar_grp[first[k]]] + n_ * (5 if k in fixed else 8)
    LA = lambda k: OPT.get('la0', 120) if k in fixed else OPT.get('la1', 400)
    NPRO = OPT.get('npro', 16)
    while qi < NPRO:
        k = order[qi]; phys[k] = try_alloc(k, -1); free_at[phys[k]] = fre[k]; issue_grp[k] = -1; qi += 1
    for gi, g in enumerate(G):
        g['dma'] = []
        while qi < len(order) and len(g['dma']) < g['rate']:
            k = order[qi]
            if vt[k] - cum[gi] > LA(k): break
            pg = try_alloc(k, iv[gi])
            if pg is None: break
            assert iv[gi] < first[k], ("late DMA", k, gi)
            phys[k] = pg; free_at[pg] = fre[k]; issue_grp[k] = gi; g['dma'].append(k); qi += 1
    assert qi == len(order), order[qi]
    print("dma per group:", "".join(str(len(g['dma'])) for g in G), file=sys.stderr)
    slk = {}
    for k in order:
        if issue_grp[k] >= 0:
            kk_ = k[:2] if k[0] in 'GUD' else k[:1]
            slk[kk_] = min(slk.get(kk_, 9999), cum[bar_grp[first[k]]] - cum[issue_grp[k] + 1])
    print("min DMA slack (mfmas):", slk, file=sys.stderr)
    V_D8 = TMP + 25
    def mkdma(k):
        tag = "pg%d" % first[k]; pb = phys[k] * 4096
        if k[0] == 'x':
            pre = []
            if k[2] == 0 and k[1] > 0:
                pre = F("s_cmp_eq_u32 {ROT}, %d\ns_cselect_b32 {SP}, -8, 1\nv_lshl_add_u32 v%d, {SP}, 7, v%d" % (9 - k[1], V_DX, V_DX))
            m_, d_ = dma(V_DX, 'X', S_XQ + k[2], pb, 0, tag)
            return (pre + [m_], d_) if pre else (m_, d_)
        if k[0] == 'G': return dma(V_DW, 'WG', S_KK + k[2], pb, ioff(k), tag)
        if k[0] == 'U': return dma(V_DW, 'WU', S_KK + k[2], pb, ioff(k), tag)
        if k[0] == 'HG': return dma(V_DH, 'WG', S_KK + 2 * k[1], pb, 0, tag)
        if k[0] == 'HU': return dma(V_DH, 'WU', S_KK + 2 * k[1], pb, 0, tag)
        return dma(V_DD if k[1] else V_D8, 'WD', (S_DK if k[1] < 5 else S_KK) + k[2], pb, ioff(k), tag)
    def mkx(kind, pg, va):
        m_ = F("s_add_u32 m0, {W1K}, %d" % (pg * 4096))[0]
        d_ = F("buffer_load_dwordx4 v%d, {WS}, m0 offen sc1 lds" % va, tag=kind, lds_w=(pg * 4096, pg * 4096 + 4096))[0]
        return m_, d_
    p = L("s_cmp_ge_u32 s2, 256\ns_cbranch_scc1 L_end_KN")
    if OPT['stamps']: p += L("v_mov_b32 v%d, 0" % VST[0])
    p += stamp(0)
    p += L("s_load_dwordx16 s[52:67], s[0:1], 0\ns_load_dwordx4 s[68:71], s[0:1], 64\ns_load_dwordx2 s[72:73], s[0:1], 80")
    p += vaddr64(L("s_getpc_b64 s[6:7]\nv_lshlrev_b32 v34, 5, v0\nv_mov_b32 v35, s7\nv_add_co_u32 v34, vcc, s6, v34\nv_addc_co_u32 v35, vcc, 0, v35, vcc"))
    p += [Ins("global_load_dword v%d, v[34:35], off" % VDM, 'vmem', V(34, 2), [])]
    p += F("""v_lshrrev_b32 v1, 6, v0
v_and_b32 v0, 63, v0
v_readfirstlane_b32 {W}, v1
v_and_b32 v1, 15, v0
v_lshrrev_b32 v2, 4, v0
s_and_b32 {C}, s2, 3
s_lshl_b32 {C}, {C}, 2
s_bfe_u32 {a}, s2, 0x20003
s_add_u32 {C}, {C}, {a}
s_lshr_b32 {ROT}, s2, 5
s_lshl_b32 {T}, {ROT}, 1
s_bfe_u32 {b}, s2, 0x10002
s_add_u32 {T}, {T}, {b}
s_lshl_b32 {a}, {a}, 1
s_add_u32 {ROT}, {ROT}, {a}
s_cmp_ge_u32 {ROT}, 9
s_cselect_b32 {a}, 9, 0
s_sub_u32 {ROT}, {ROT}, {a}
s_lshr_b32 {RG}, {W}, 1
s_and_b32 {FH}, {W}, 1
s_lshl_b32 {W1K}, {W}, 10
v_lshrrev_b32 v{DD}, 3, v0
s_lshl_b32 {a}, {W}, 3
v_add_u32 v{DD}, {a}, v{DD}
v_mul_u32_u24 v{DX}, %d, v{DD}
s_lshl_b32 {a}, {FH}, 2
v_add_u32 v{t0}, {a}, v2
v_xor_b32 v{t0}, v0, v{t0}
v_and_b32 v{t0}, 7, v{t0}
v_lshl_add_u32 v{DX}, v{t0}, 4, v{DX}
s_mul_i32 {a}, {T}, 2304
s_lshl_b32 {b}, {ROT}, 7
s_add_u32 {a}, {a}, {b}
v_add_u32 v{DX}, {a}, v{DX}
v_mul_u32_u24 v{DW}, 9216, v{DD}
v_bfe_u32 v{t0}, v0, 1, 2
v_and_b32 v{t1}, 1, v2
s_lshl_b32 {a}, {FH}, 1
v_or_b32 v{t1}, {a}, v{t1}
v_xor_b32 v{t1}, v{t1}, v{t0}
v_lshl_add_u32 v{DW}, v{t1}, 5, v{DW}
v_and_b32 v{t1}, 1, v0
v_lshl_add_u32 v{DW}, v{t1}, 4, v{DW}
s_mul_i32 {d}, {C}, 576
s_and_b32 {e}, {C}, 1
s_lshl_b32 {c}, {e}, 6
s_add_u32 {c}, {c}, {d}
v_add_u32 v{DW}, {c}, v{DW}""" % (32 * 1152), **e)
    for q in range(4): p += L("s_mov_b32 s%d, %d" % (S_XQ + q, (1024 * (q & 1) + (q >> 1)) * 1152))
    def skk(m):
        KS = 32 * 9216
        if m == 0: q = F("s_mul_i32 s%d, {ROT}, %d" % (S_KK, 2 * KS))
        else: q = F("s_add_u32 s%d, s%d, %d\ns_cmp_eq_u32 {ROT}, %d\ns_cselect_b32 s%d, 0, s%d" % (S_KK + 2 * m, S_KK + 2 * m - 2, 2 * KS, 9 - m, S_KK + 2 * m, S_KK + 2 * m))
        return q + L("s_add_u32 s%d, s%d, %d" % (S_KK + 2 * m + 1, S_KK + 2 * m, KS))
    p += skk(0) + skk(1)
    for d_, n_ in ((8, 2048 * 1152), (12, 576 * 9216), (16, 576 * 9216)): p += L("s_mov_b32 s%d, 0x%x\ns_mov_b32 s%d, 0x20000" % (d_ + 2, n_, d_ + 3))
    p += L("s_waitcnt lgkmcnt(0)")
    pro = [k for k in order if issue_grp[k] < 0]
    p += L("s_mov_b32 s8, s52\ns_and_b32 s9, s53, 0xffff")
    for k in pro[:4]: p += flat(mkdma(k))
    p += L("s_mov_b32 s12, s60\ns_and_b32 s13, s61, 0xffff\ns_mov_b32 s16, s62\ns_and_b32 s17, s63, 0xffff")
    for k in pro[4:8]: p += flat(mkdma(k))
    p += F("s_cmp_eq_u32 {RG}, 0\ns_cselect_b32 s54, s54, s56\ns_cselect_b32 s55, s55, s57")
    p += srd(32, 54, 2048 * 578) + srd(20, 64, 4608 * 1152) + srd(40, 66, 1152) + srd(28, 70, 256) + srd(24, 72, WS_BYTES)
    p += vaddr64(F("""s_lshr_b32 {a}, s2, 3
s_lshl_b32 {a}, {a}, 2
s_add_u32 {a}, {a}, {W}
s_lshl_b32 {a}, {a}, 9
s_add_u32 {a}, {a}, 8192
v_lshlrev_b32 v34, 3, v0
v_add_u32 v34, {a}, v34
v_mov_b32 v35, s7
v_add_co_u32 v34, vcc, s6, v34
v_addc_co_u32 v35, vcc, 0, v35, vcc"""))
    p += [Ins("global_load_dword v%d, v[34:35], off" % VDM, 'vmem', V(34, 2), [])]
    g1, g2 = gate_code(SET[2] + 16, SET[2] + 24, [FB + 8, FB + 9, FB + 10, FB + 11, FB + 20, FB + 21, FB + 22, FB + 23])
    p += g1 + srd(40, 68, 2048 * 1152)
    p += F("s_cmp_lg_u32 {C}, 0\ns_cbranch_scc1 L_nw_KN") + nyw_load(TMP + 24, "nw") + L("L_nw_KN:")
    p += F("s_cmp_lg_u32 s2, 0\ns_cbranch_scc1 L_z_KN")
    p += F("v_mov_b32 v36, 0\nv_mov_b32 v37, 0\nv_mov_b32 v38, 0\nv_mov_b32 v39, 0\nv_lshlrev_b32 v40, 4, v0\ns_lshl_b32 {a}, {W}, 12\ns_add_u32 {a}, {a}, %d" % WS_C, opt="z")
    for i in range(4): p += F("buffer_store_dwordx4 v[36:39], v40, {WS}, {a} offen offset:%d sc1" % (i * 1024), opt="z", tag="zero")
    p += L("L_z_KN:")
    for m in range(2, 9): p += skk(m)
    w = F("""s_lshl_b32 {S2}, {T}, 1
s_add_u32 {S2}, {S2}, {RG}
v_lshrrev_b32 v{RW}, 2, v1
v_lshlrev_b32 v{RW}, 7, v{RW}
v_lshl_add_u32 v{RW}, v2, 10, v{RW}
v_and_b32 v{t0}, 3, v1
v_lshl_add_u32 v{RW}, v{t0}, 3, v{RW}
v_bfe_u32 v{t0}, v1, 3, 1
v_and_b32 v{t1}, 1, v2
v_lshl_add_u32 v{t0}, v{t1}, 1, v{t0}
s_lshl_b32 {a}, {FH}, 1
v_xor_b32 v{t0}, {a}, v{t0}
v_lshl_add_u32 v{RW}, v{t0}, 5, v{RW}
v_xor_b32 v{RW1}, 32, v{RW}
v_lshrrev_b32 v{t0}, 1, v1
v_xor_b32 v{t0}, v{t0}, v2
v_lshlrev_b32 v{t0}, 4, v{t0}
v_lshl_add_u32 v{RX}, v1, 7, v{t0}
s_lshl_b32 {a}, {RG}, 13
v_add_u32 v{RX}, {a}, v{RX}
v_xor_b32 v{RX1}, 64, v{RX}""", **e)
    for b in (V_RW, V_RW + 3, V_RX, V_RX + 3):
        w += L("v_add_u32 v%d, 0x10000, v%d\nv_add_u32 v%d, 0x20000, v%d" % (b + 1, b, b + 2, b))
    w += F("""v_or_b32 v{m}, {W}, v0
v_min_u32 v{m}, 1, v{m}
v_lshlrev_b32 v{m}, 31, v{m}
v_mul_u32_u24 v{DD}, 1152, v{DD}
v_bfe_u32 v{t0}, v0, 1, 2
v_xor_b32 v{t0}, v{t0}, v2
v_lshl_add_u32 v{DD}, v{t0}, 5, v{DD}
v_and_b32 v{t1}, 1, v0
v_lshl_add_u32 v{DD}, v{t1}, 4, v{DD}
v_lshrrev_b32 v{DH}, 2, v0
s_lshl_b32 {a}, {W}, 4
v_add_u32 v{DH}, {a}, v{DH}
v_mul_u32_u24 v{DH}, 9216, v{DH}
v_lshl_add_u32 v{DH}, v{t1}, 4, v{DH}
v_bfe_u32 v{t0}, v0, 1, 1
v_lshrrev_b32 v{t1}, 5, v0
v_xor_b32 v{t0}, v{t0}, v{t1}
v_lshl_add_u32 v{DH}, v{t0}, 5, v{DH}
s_cmp_eq_u32 {e}, 0
s_cselect_b32 {a}, 512, 0
s_add_u32 {a}, {a}, {d}
v_add_u32 v{DH}, {a}, v{DH}
v_lshlrev_b32 v{L16}, 4, v0
v_add_u32 v{L16B}, 0x10000, v{L16}
s_lshl_b32 {a}, {FH}, 13
s_lshl_b32 {b}, {RG}, 12
s_add_u32 {a}, {a}, {b}
v_add_u32 v{HW}, {a}, v{L16}
s_lshl_b32 {HB}, {T}, 4
s_add_u32 {HB}, {HB}, {C}
s_mul_i32 {HB}, {HB}, 73728
s_add_u32 {HB}, {HB}, %d
s_mov_b32 {Q}, 0x3e800000
s_mov_b32 {NL}, %s
s_add_u32 {KB1}, {C}, 2
s_add_u32 {KB3}, {C}, 4
s_cmp_lt_u32 {KB3}, 18
s_cselect_b32 {KB3}, {KB3}, 0
s_mul_i32 {GA}, {T}, 12
s_add_u32 {GA}, {GA}, {C}
s_cmp_lt_u32 {C}, 12
s_cselect_b32 {GA}, {GA}, 0x1000
s_add_u32 {GB}, {GA}, 192
s_mul_i32 {a}, {C}, %d
s_mul_i32 {c}, {e}, %d
s_add_u32 s%d, {a}, {c}
s_cmp_eq_u32 {e}, 0
s_cselect_b32 {c}, %d, 0
s_add_u32 s%d, {a}, {c}
s_lshr_b32 {b}, {T}, 1
s_mul_i32 {b}, {b}, %d
s_add_u32 {a}, {a}, {b}
s_mul_i32 {b}, {W}, %d
s_add_u32 {a}, {a}, {b}
v_lshlrev_b32 v{pf}, 7, v0
v_add_u32 v{pf}, {a}, v{pf}
v_cmp_gt_u32 vcc, 27, v0
v_bfrev_b32 v{t0}, 1
s_lshl_b32 {S8}, {T}, 18
s_lshl_b32 {b}, {W}, 16
v_cndmask_b32 v{pf}, v{t0}, v{pf}, vcc
s_add_u32 {S8}, {S8}, {b}
s_lshl_b32 {b}, {C}, 10
s_add_u32 {S8}, {S8}, {b}""" % (WS_H, f2h(-math.log2(math.e)), 288 * 1152, 32 * 1152, S_DK, 256 * 1152, S_DK + 8, 36 * 1152, 9 * 1152), m=V_M0, pf=VPF, **e)
    for ks in range(1, 8): w += L("s_add_u32 s%d, s%d, %d" % (S_DK + ks, S_DK, ks * 32 * 1152))
    w += s2_scalars(ENV['GA'], ENV['WA'], ENV['SA']) + s2_scalars(ENV['GB'], ENV['WB'], ENV['SB'])
    TP = V_SIL
    TF = lambda kk: (SET[3] + 4 * kk) if kk < 8 else FB + 32
    TWA = lambda a_: (TMP + 8 * a_) if a_ < 3 else SET[3]
    w += t_setup(TP, ENV['C'])
    p += w
    parts = [(lambda kk=kk: t_frag(kk, TF(kk), SET[1], TP)) for kk in range(9)] + [lambda: twiddle_A(TWA, SET[0], range(OPT.get('ntw', 3)))]
    dstart = OPT.get('dst', 2); rest = pro[8:]
    for n_, f_ in enumerate(parts):
        p += f_()
        if n_ >= dstart and rest: p += flat(mkdma(rest.pop(0)))
    for k in rest: p += flat(mkdma(k))
    sec = Sec2()
    def FBUF(gi): return FB + 12 * (gi % 3) if gi <= P2 else FB + 12 * ((gi - P2) & 1)
    assert P2 % 3 == 0
    def frag_reads(gi):
        g = G[gi]; out = []
        for e_, k in enumerate(g['need']):
            pb = phys[k] * 4096
            if k[0] in 'GU':
                ap = g['tau'] & 1 if g['kind'] == 'SB' else g['ap']
                base, o, d2 = V_RW + 3 * ap, pb, 512
            elif k[0] in ('HG', 'HU'): base, o, d2 = V_RX, pb + ((3 * g['gi'] + e_) & 1) * 2048, 256
            else: base, o, d2 = V_RX + 3, pb, 2048
            r = FBUF(gi) + 4 * e_
            out.append(L("ds_read_b64_tr_b16 v[%d:%d], v%d offset:%d\nds_read_b64_tr_b16 v[%d:%d], v%d offset:%d"
                         % (r, r + 1, base + (o >> 16), o & 0xffff, r + 2, r + 3, base + (o >> 16), (o & 0xffff) + d2), lds_r=(pb, pb + 4096), tag="f%d" % gi))
        return out
    def x_reads(sg, e_):
        kk = 2 * sg + e_; out = []; pb = phys[('x', sg, 0)] * 4096
        for mi in range(4):
            o = pb + mi * 2048
            out += L("ds_read_b128 %s, v%d offset:%d" % (rs(XF(mi, kk)), V_RX + 3 * e_ + (o >> 16), o & 0xffff), lds_r=(pb, pb + 16384), tag="x%d" % sg)
        return [out[0:2], out[2:4]]
    def h_read(n_, tag):
        o = (n_ >> 3) * 8192 + (n_ & 7) * 1024
        return L("ds_read_b128 %s, v%d offset:%d" % (rs(HF(n_ & 7, n_ >> 3)), V_L16B if o >> 16 else V_L16, o & 0xffff), lds_r=(o, o + 1024), tag=tag)[0]
    def silu_a(st, n_=32):
        out = []
        for i in range(0, n_, 4):
            T = V_SIL + (i & 4); rr = range(st + i, st + i + 4)
            out += [F("v_mul_f32 v%d, {NL}, v%d" % (T + j, r))[0] for j, r in enumerate(rr)]
            out += [I("v_exp_f32 v%d, v%d" % (T + j, T + j)) for j in range(4)]
            out += [I("v_add_f32 v%d, 1.0, v%d" % (T + j, T + j)) for j in range(4)]
            out += [I("v_rcp_f32 v%d, v%d" % (T + j, T + j)) for j in range(4)]
            out += [I("v_mul_f32 v%d, v%d, v%d" % (r, r, T + j)) for j, r in enumerate(rr)]
        return out
    def silu_b(sm, sp, b):
        out = []
        for mi in range(4):
            d = sp + 4 * mi
            for ap in range(2):
                o = (ap * 4 + mi) * 4
                out += [I("v_mul_f32 v%d, v%d, v%d" % (sm + o + r, sm + o + r, sp + o + r)) for r in range(4)]
            for ap in range(2):
                q = sm + (ap * 4 + mi) * 4
                out += [I("v_cvt_pk_bf16_f32 v%d, v%d, v%d" % (d + 2 * ap + h, q + 2 * h, q + 2 * h + 1)) for h in range(2)]
            out += L("ds_write_b128 v%d, v[%d:%d] offset:%d" % (V_HW, d, d + 3, b * 16384 + mi * 1024), lds_w=(b * 16384, b * 16384 + 16384), tag="lds")
        return out
    def h_out(sp, b):
        out = F("s_add_u32 {HT}, {HB}, %d" % (b * 16384))
        for mi in range(4):
            out += F("buffer_store_dwordx4 v[%d:%d], v%d, {WS}, {HT} offen offset:%d sc1" % (sp + 4 * mi, sp + 4 * mi + 3, V_HW, mi * 1024), tag="gh1" if b < 3 else "gh2")
        return out
    def silu_bH(st):
        out = []
        for mi in range(4):
            gq, uq = st + 4 * mi, st + 16 + 4 * mi
            out += [I("v_mul_f32 v%d, v%d, v%d" % (gq + r, gq + r, uq + r)) for r in range(4)]
            out += [I("v_cvt_pk_bf16_f32 v%d, v%d, v%d" % (uq + h, gq + 2 * h, gq + 2 * h + 1)) for h in range(2)]
            out += L("ds_write_b64 v%d, v[%d:%d] offset:%d" % (V_HH, uq, uq + 1, mi * 1024), lds_w=(65536, 65536 + 8192), tag="lds")
        return out
    PACC = [SET[1], SET[2], SET[1], SET[3], SET[0], SET[2], SET[1], SET[3], SET[0]]
    def out_ops(cb):
        acc = PACC[cb]; out = []
        for ip in range(4):
            b = acc + 8 * ip
            if cb == 0: out += F("s_add_u32 {ST}, {S8}, 0x%x" % (WS_8 + ip * 16384))
            else: out += F("s_mov_b32 {ST}, 0x%x" % (WS_P + (cb - 5) * 131072 + ip * 8192))
            out += [I("v_cvt_pk_bf16_f32 v%d, v%d, v%d" % (b + d, b + 2 * d, b + 2 * d + 1)) for d in range(4)]
            out += F("buffer_store_dwordx4 v[%d:%d], v%d, {WS}, {ST} offen sc1" % (b, b + 3, V_ST if cb else V_L16), tag="p8" if cb == 0 else "pA" if cb < 7 else "pB")
        return out
    p += stamp(1) + L("s_barrier", need_vm=("pg0",)) + stamp(2)
    xa, xb = x_reads(0, 0), x_reads(0, 1)
    for r_ in [xa[0], xb[0]] + frag_reads(0) + [xa[1], xb[1]] + frag_reads(1): p += r_
    sec.stream(g2(), 40, 188, "gate")
    VP = TMP + 22
    HSP = OPT.get('hsp', 30)
    hq = {HU + 2: range(0, 6), HU + 3: range(6, 12), HU + 4: range(12, 18), HU + 5: range(18, 24), P2: range(24, 36), P2 + 1: range(36, 48), P2 + 2: range(48, 64), P2 + 3: range(64, 72)}
    qq = {P2 + 13: range(0, 16), P2 + 14: range(16, 36), P2 + 15: range(36, 54), P2 + 16: range(54, 72)}
    VQ, VY = V_DW, V_DH
    xd = {}
    for i in range(12): xd.setdefault(gq1 + (i * (gq2 - gq1)) // 12 + (1 if i >= 6 else 0) * 0, []).append(('q%d' % (i // 6), i, VQ))
    for i in range(12, 18): xd.setdefault(gq2 + (i - 12) // 3, []).append(('q2', i, VQ))
    for i in range(9): xd.setdefault(gY + i // 2, []).append(('y', i, VY))
    S2D = [SET[2] + 16, SET[2] + 24]; S2W = [TMP, TMP + 8]
    M2, Z2, S2T = SET[3], SET[2], SET[3] + 24
    KBX = "s_lshr_b32 {x}, {y}, 5\ns_cmp_eq_u32 {x}, 9\ns_cselect_b32 {x}, 0, {x}\ns_add_u32 {x}, {x}, {o}\ns_add_u32 {XA}, {T}, 34\ns_cmp_gt_u32 {y}, 288\ns_cselect_b32 {x}, {XA}, {x}\ns_lshl_b32 {x}, {x}, 7\ns_add_u32 {x}, {x}, %d\n" % WS_C
    kbx = lambda x, y, o: KBX.replace("{x}", "{%s}" % x).replace("{y}", "{%s}" % y).replace("{o}", str(o))
    W0 = "s_cmp_eq_u32 {W}, 0\ns_cselect_b32 {PE1}, {PE1}, 0\ns_cselect_b32 {PE2}, {PE2}, 0"
    RAW, RA2, NB, SDT = TMP, SET[3] + 16, FB + 24, FB + 32
    for gi, g in enumerate(G):
        base = sec.n(); fb = FBUF(gi); ms = []
        if g['kind'] == 'SB':
            st = SET[0] if g['tau'] < 2 else SET[1]
            for mi in range(4):
                for e_ in range(2):
                    acc = V(st + ((g['tau'] & 1) * 4 + mi) * 4, 4); kk = 2 * g['sg'] + e_
                    ms.append(mf(acc, V(fb + 4 * e_, 4), XF(mi, kk), acc if kk else None))
            if g['tau'] == 3:
                for mi in range(4):
                    for e_ in range(2):
                        kk = 2 * g['sg'] + e_
                        acc = V(SET[2] + 16 * (kk // 9) + 4 * mi, 4)
                        ms.append(mf(acc, XF(mi, kk), V(TF(kk % 9), 4), acc if kk % 9 else None))
        elif g['kind'] in ('P1', 'PH'):
            st = SET[g['st']] + 16 * g['ap'] if g['kind'] == 'P1' else SET[0] + 16 * g['half']
            k0 = 3 * (g['sl'] if g['kind'] == 'P1' else g['gi'])
            for mi in range(4):
                for e_ in range(3):
                    acc = V(st + 4 * mi, 4)
                    ms.append(mf(acc, V(fb + 4 * e_, 4), XF(mi, k0 + e_), acc if k0 + e_ else None))
        else:
            for mi in range(8):
                for e_ in range(3):
                    acc = V(PACC[g['cb']] + 4 * mi, 4)
                    ms.append(mf(acc, V(fb + 4 * e_, 4), HF(mi, 3 * g['gi'] + e_), acc if (g['gi'] or e_ or g['cb'] >= 5) else None))
        lg = ["f%d" % gi]; vm = []
        if g['kind'] == 'SB' and g['tau'] == 0: lg.append("x%d" % g['sg'])
        if g['kind'] == 'P2' and g['cb'] == 0: lg.append("h%d" % g['gi'])
        if g['kind'] == 'P2' and g['cb'] == 5: lg.append("r%d" % g['gi'])
        if g['bar']:
            vm.append("pg%d" % iv[gi]); lg.append("lds")
            for gx, tg in ((6, "zero"), (ga1, "pub1"), (ga2, "pub2"), (gfa, "pA"), (NG - 2, "y"), (gh1, "gh1"), (gh2, "gh2"), (gf8, "p8"), (P2 + 13, "q0"), (P2 + 14, "q1"), (P2 + 15, "q2")):
                if gi == gx: vm.append(tg)
        if gi == ga1: sec.block(base - 1, check("0", VP, "0", ENV['PE1'], "DBG", 27))
        if gi in (gc1, gc2):
            n_ = "1" if gi == gc1 else "2"
            sec.block(base - 1, check(n_ + "a", VP, ENV['PO1'], ENV['PE1'], sidx=28 if gi == gc1 else 29) + check(n_ + "b", VP + 1, ENV['PO2'], ENV['PE2']))
        if gi == gq1: sec.block(base - 1, check("q1", VP + 2, ENV['SB'], ENV['SM_'], sidx=22))
        if gi == gq2: sec.block(base - 1, check("q2", VP + 2, ENV['SB'], ENV['SM_'], sidx=23))
        if gi == gY: sec.block(base - 1, check("8", VP, ENV['PO1'], ENV['PE1'], sidx=26))
        if gi:
            if sec.blk.get(base - 1): sec.block(base - 1, [Need(vm, lg)])
            else: sec.at(base - 1, Need(vm, lg))
        for m_ in ms: sec.mfma(m_)
        nm = g['nm']; end = sec.n()
        sidx = None
        if g['kind'] in ('P1', 'PH') and PS[g['ps']] == gi: sidx = 3 + list(PS).index(g['ps'])
        if g['kind'] == 'P2' and (gi - P2) % 3 == 0: sidx = 11 + (gi - P2) // 3
        if OPT.get('diag') == 7:
            g0 = OPT.get('g0', 36); sp = OPT.get('gs', 4)
            sidx = 3 + (gi - g0) // sp if (g0 <= gi < g0 + 17 * sp and (gi - g0) % sp == 0) else None
        if OPT.get('diag') == 8: sidx = None
        gap = 0
        if g['bar']:
            sec.at(base, L("s_barrier", need_vm=tuple(vm), need_lgkm=tuple(lg))); gap = 1
        if sidx is not None and OPT['stamps']: sec.block(base, stamp(sidx))
        pairs = []
        for n_ in range(gi + 1, min(NG, gi + 3)):
            if rdg(n_) == gi: pairs += frag_reads(n_)
        if g['xr']: pairs += x_reads(*g['xr'])
        hr = [h_read(n_, "h%d" % (n_ // 24)) for n_ in hq.get(gi, [])] + [h_read(n_, "r%d" % (n_ // 24)) for n_ in qq.get(gi, [])]
        pairs += [hr[i:i + 2] for i in range(0, len(hr), 2)]
        avail = list(range(gap, nm - 1)); items = []
        dm = [mkdma(k) for k in g['dma']] + [mkx(*k) for k in xd.get(gi, [])]
        ip_, id_ = 0, 0
        early = g['kind'] == 'P2'
        while ip_ < len(pairs) or id_ < len(dm):
            if ip_ < len(pairs): items.append(('r', pairs[ip_])); ip_ += 1
            elif not items or items[-1][0] == 'd': items.append(('z', None))
            if id_ < len(dm) and (not early or ip_ >= min(len(pairs), 3)): items.append(('d', dm[id_])); id_ += 1
        assert len(items) <= len(avail), (gi, len(items), len(avail))
        pos = 0; slack = len(avail) - len(items); nd_left = len(dm)
        if hr: slack = 0
        for kind, it in items:
            if kind == 'r': sec.at(base + avail[pos], it)
            if kind == 'd':
                if isinstance(it[0], list): sec.block(base + avail[pos] - 1, it[0])
                else: sec.at(base + avail[pos] - 1, it[0])
                sec.at(base + avail[pos], it[1])
                sk = slack // max(1, nd_left); pos += sk; slack -= sk; nd_left -= 1
            pos += 1
        if gi == 6:
            q = F("s_cmp_lg_u32 s2, 0\ns_cbranch_scc1 L_zf_KN") + L("v_mov_b32 v31, 1", opt="zf")
            sec.block(end - 1, q + F("buffer_store_dword v31, v%d, {DBG}, 0 offen sc1" % V_M0, opt="zf") + L("L_zf_KN:"))
        if gi == 19: sec.block(end - 1, F("s_cmp_lg_u32 {C}, 0\ns_cbranch_scc1 L_nw2_KN") + nyw_store(TMP + 24, TMP + 25, 31, "nw2") + L("L_nw2_KN:"))
        if gi == 27: sec.stream(twiddle_A(TWA, SET[3] + 8, range(OPT.get('ntw', 3), 4)), end, end + 78, "twA")
        if gi == PS['G1'] - 1:
            e2 = dict(e); e2.update(t0=TMP + 24, t1=31)
            sw = F("""v_lshrrev_b32 v{RX}, 2, v1
v_lshl_add_u32 v{RX}, v2, 3, v{RX}
v_lshlrev_b32 v{RX}, 6, v{RX}
v_and_b32 v{t0}, 3, v1
v_lshl_add_u32 v{RX}, v{t0}, 3, v{RX}
v_and_b32 v{t1}, 1, v2
v_xor_b32 v{t1}, {FH}, v{t1}
v_lshl_add_u32 v{RX}, v{t1}, 5, v{RX}
v_lshrrev_b32 v{RX1}, 2, v1
v_lshl_add_u32 v{RX1}, v2, 2, v{RX1}
v_bfe_u32 v{t1}, v{RX1}, 1, 2
v_xor_b32 v{t1}, {W}, v{t1}
v_lshlrev_b32 v{RX1}, 7, v{RX1}
v_lshl_add_u32 v{RX1}, v{t1}, 5, v{RX1}
v_lshl_add_u32 v{RX1}, v{t0}, 3, v{RX1}
v_add_u32 v{d8}, 0x400, v{DD}
s_and_b32 {u}, {C}, 1
v_lshl_add_u32 v{DD}, {u}, 9, v{DD}
v_mov_b32 v{one}, 1""", d8=V_D8, one=V_ONE, **e2)
            for b in (V_RX, V_RX + 3): sw += L("v_add_u32 v%d, 0x10000, v%d\nv_add_u32 v%d, 0x20000, v%d" % (b + 1, b, b + 2, b))
            sw += F("s_cmp_eq_u32 {W}, 0\ns_cselect_b32 {PE1}, 1, 0\ns_lshr_b32 {PO1}, {C}, 1\ns_lshl_b32 {PO1}, {PO1}, 7\ns_add_u32 {PO1}, {PO1}, %d\ns_add_u32 {PO2}, {T}, 34\ns_cmp_lt_u32 {KB1}, 16\ns_cselect_b32 {PO2}, {PO2}, 8\ns_lshl_b32 {PO2}, {PO2}, 7\ns_add_u32 {PO2}, {PO2}, %d" % (WS_C, WS_C))
            sec.stream(sw, end - 38, end - 2, "sw")
            blk = step_A(SET[2], TWA, SET[3] + 8, TP, ENV['C'], 0)
            blk += F("s_cmp_lt_u32 {KB1}, 16\ns_cbranch_scc1 L_x1_KN")
            o = "x1"; s1 = Sec2(); XS = SET[3] + 8; XFr = SET[3] + 24
            s1.pre = t_setup(TP, ENV['KB1'], opt=o) + t_frag(0, XFr, XS, TP, opt=o)
            for kk in range(9):
                b0 = s1.n()
                for hh in range(2):
                    for mi in range(4):
                        acc = V(SET[2] + 16 * hh + 4 * mi, 4)
                        s1.mfma(mf(acc, XF(mi, kk + 9 * hh), V(XFr + 4 * (kk & 1), 4), acc if kk else None, o))
                if kk < 8: s1.stream(t_frag(kk + 1, XFr + 4 * ((kk + 1) & 1), XS, TP, opt=o), b0, b0 + 6)
            blk += s1.flatten() + step_A(SET[2], TWA, SET[3] + 8, TP, ENV['KB1'], 8704, opt=o) + L("L_x1_KN:")
            sec.block(end - 1, blk)
            sec.stream(poll(VP, "0", "DBG"), end, end + 12, "p0")
            sec.stream(silu_a(SET[0]), end, end + 200, "a0")
            sec.stream(silu_b(SET[0], SET[1], 0), end + 145, end + 286, "b0", "a0")
            sec.stream(h_out(SET[1], 0), end + 145, end + 428, "o0", "b0", HSP)
        if g['kind'] == 'P1' and g['sl'] == 5 and g['ap'] == 1:
            ps = g['ps']
            if ps == 'G1': sec.stream(silu_a(SET[3]), end + 2, end + 287 + 12 * (gc1 - PS['U2']) - 40, "a1", "a0")
            if ps == 'U1':
                sec.stream(silu_b(SET[3], SET[2], 1), end + 2, end + 143 + 12 * (gc1 - PS['U2']), "b1", "a1")
                sec.stream(h_out(SET[2], 1), end + 2, end + 284, "o1", "b1,o0", HSP)
            if ps == 'G2': sec.stream(silu_a(SET[0]), end + 2, end + 380, "a2", "a1")
            if ps == 'U2':
                sec.stream(silu_b(SET[0], SET[1], 2), end + 2, end + 286, "b2", "a2")
                sec.stream(h_out(SET[1], 2), end + 2, end + 300, "o2", "b2", HSP)
            if ps == 'G3': sec.stream(silu_a(SET[3]), end + 2, end + 144 + OPT.get('a3e', 100), "a3", "a2")
            if ps == 'U3':
                sec.stream(silu_b(SET[2], SET[3], 3), end + 2, end + 144 + 22, "b3", "a3")
                sec.stream(h_out(SET[3], 3), end + 2, end + 144 + 100, "o3", "b3,o2", 16)
        if g['kind'] == 'PH' and g['gi'] == 5:
            if g['half'] == 0: sec.stream(silu_a(SET[0], 16), end + 2, end + 72 + 54, "aH", "a3")
            else: sec.stream(silu_bH(SET[0]), end + 2, end + 70, "bH", "aH")
        for it in range(3):
            if gi == PS['G1'] + OPT.get('pfd0', 6) + it * OPT.get('pfdi', 12):
                i = F("buffer_load_dword v%d, v%d, {WD}, 0 offen" % (VDM, VPF))[0]
                if it < 2: i.wr = []
                sec.stream([i] + L("v_add_u32 v%d, %d, v%d" % (VPF, 27 * 128, VPF)), base, base + 10, "pf%d" % it)
        if gi == ga1: sec.stream(signal(ENV['PO1']) + signal(ENV['PO2']), base + 1, base + 11, "ar1")
        for r_, (gam, wo) in enumerate((('GA', 'WA'), ('GB', 'WB'))):
            if gi == PS['U1'] + OPT.get('w%dat' % r_, 1 + 12 * r_): sec.stream(s2_wloads(ENV[gam], ENV[wo], S2W[r_], TMP + 16, TMP + 17), base, base + 22, "w%d" % r_)
        if gi == gc1 - 6:
            q = F(kbx('PO1', 'GA', 0) + kbx('PO2', 'GB', 0)) + poll(VP, ENV['PO1']) + poll(VP + 1, ENV['PO2'])
            q += F("s_cmp_gt_u32 {GA}, 288\ns_cselect_b32 {PE1}, 0, 32\ns_cmp_gt_u32 {GB}, 288\ns_cselect_b32 {PE2}, 0, 32\n" + W0)
            sec.stream(q, base - 12, base + 50, "p1")
        if gi == gc1:
            sec.block(base, F("s_cmp_lg_u32 {GB}, 288\ns_cbranch_scc1 L_s2n_KN") + s2_wspecial(S2W[1], TMP + 16, TMP + 17, "s2n") + L("L_s2n_KN:"))
            q = s2_gaddr(S2T + 6, S2T + 7, False) + s2_dloads(ENV['GA'], ENV['SA'], S2D[0], S2T + 6, S2T + 7) + s2_dloads(ENV['GB'], ENV['SB'], S2D[1], S2T + 6, S2T + 7)
            sec.stream(q, base + 1, base + 30, "dl", "b1")
            sec.stream(dft32(M2, TMP + 16, False) + s2_addr(S2T, 12 * 4096, False), base + 2, base + 12 * (gS2 - gi) + 10, "s2pre", "dl")
        if gi == gS2:
            blk = []
            for r_, (gam, keep) in enumerate((('GA', 'SA'), ('GB', 'SB'))):
                o = "s2c%d" % r_
                blk += F("s_cmp_gt_u32 {%s}, 288\ns_cbranch_scc1 L_%s_KN" % (gam, o))
                blk += s2_compute(ENV[keep], M2, S2D[r_], Z2, S2W[r_], S2T, TMP + 16, 12 * 4096, o) + L("L_%s_KN:" % o)
            sec.block(end - 1, blk)
            q = F(kbx('PO1', 'GA', 9) + kbx('PO2', 'GB', 9))
            q += F("""s_lshl_b32 {u}, {FH}, 3
s_lshl_b32 {w}, {RG}, 12
s_add_u32 {u}, {u}, {w}
v_add_u32 v{HH}, {u}, v{L16B}
s_lshl_b32 {u}, {T}, 1
s_and_b32 {w}, {C}, 1
s_add_u32 {u}, {u}, {w}
s_lshl_b32 {u}, {u}, 19
s_lshl_b32 {w}, {W}, 15
s_add_u32 {u}, {u}, {w}
s_lshr_b32 {w}, {C}, 1
s_lshl_b32 {w}, {w}, 10
s_add_u32 {u}, {u}, {w}
v_add_u32 v{VST_}, {u}, v{L16}
s_lshl_b32 {XA}, {T}, 7
s_lshl_b32 {SB}, {C}, 2
s_add_u32 {XA}, {XA}, {SB}
s_add_u32 {XA}, {XA}, %d
s_xor_b32 {SB}, {XA}, 4
s_cmp_eq_u32 {W}, 0
s_cselect_b32 {SM_}, 1, 0""" % CL(50), **e)
            sec.stream(q[:18], end, end + 12 * (ga2 - gi - 1) - 2, "a2s")
            sec.stream(q[18:], end, end + 200, "a2t", "a2s")
        if gi == ga2: sec.stream(signal(ENV['PO1']) + signal(ENV['PO2']), base + 1, base + 11, "ar2")
        if gi == gc2 - 6:
            q = F("s_lshr_b32 {PO1}, {C}, 1\ns_lshl_b32 {PO1}, {PO1}, 7\ns_add_u32 {PO1}, {PO1}, %d\ns_mov_b32 {PO2}, %d" % (CL(9), CL(17))) + poll(VP, ENV['PO1']) + poll(VP + 1, ENV['PO2'])
            q += F("s_cmp_lt_u32 {C}, 2\ns_cselect_b32 {PE1}, 33, 32\ns_cmp_lt_u32 {KB3}, 16\ns_cselect_b32 {PE2}, 0, 32\n" + W0)
            sec.stream(q, base - 6, base + 30, "p2")
        if gi in (gh1, gh2): sec.stream(signal(ENV['XA']), base + 1, base + 10, "sh%d" % gi)
        if gi == gc2:
            q = stepD_loads(ENV['C'], RAW)
            for i in q:
                i.text = i.text.replace(ENV['a'], ENV['f']).replace(ENV['b'], ENV['g'])
                fx = lambda lst: [('s', 38) if r == ('s', 84) else ('s', 39) if r == ('s', 85) else r for r in lst]
                i.rd = fx(i.rd); i.wr = fx(i.wr)
            sec.stream(q, base + 1, base + 40, "sdl")
        if gi == HU + 3:
            q = poll(VP + 2, ENV['SB'])
            q += F("""s_xor_b32 {u}, {C}, 1
s_sub_u32 {w}, {u}, {C}
s_mul_i32 {w}, {w}, 73728
s_add_u32 {w}, {w}, {HB}
v_add_u32 v%d, {w}, v%d
s_and_b32 {w}, {u}, 1
s_mul_i32 {u}, {u}, %d
s_mul_i32 s%d, {w}, %d
s_add_u32 s%d, s%d, {u}
s_xor_b32 {w}, {w}, 1
s_mul_i32 {w}, {w}, %d
s_add_u32 s%d, {u}, {w}""" % (VQ, V_L16, 288 * 1152, S_KK, 32 * 1152, S_KK, S_KK, 256 * 1152, S_KK + 8))
            for ks in range(1, 8): q += L("s_add_u32 s%d, s%d, %d" % (S_KK + ks, S_KK, ks * 32 * 1152))
            sec.stream(q[:6], base + 6, base + 56, "pq0")
            sec.stream(q[6:], base + 6, base + 130, "pq1", "pq0")
        if gi == P2 + 1:
            blk = F("s_lshl_b32 {a}, {S2}, 12\ns_add_u32 {a}, {a}, %d\ns_cmp_lg_u32 {C}, 0\ns_cbranch_scc1 L_nyl_KN" % WS_B) + stepD_nyloads(RA2, SDT, "nyl") + L("L_nyl_KN:")
            blk += F("s_cmp_lt_u32 {KB3}, 16\ns_cbranch_scc1 L_d2l_KN") + stepD_loads(ENV['KB3'], RA2, opt="d2l") + L("L_d2l_KN:")
            sec.block(base, blk)
        if gi == P2 + 3:
            q = F("s_lshl_b32 {d}, {W}, 11\nv_add_u32 v%d, {d}, v%d" % (V_HH, V_L16B))
            q += L("ds_read_b128 v[%d:%d], v%d\nds_read_b128 v[%d:%d], v%d offset:1024" % (V_SIL, V_SIL + 3, V_HH, V_SIL + 4, V_SIL + 7, V_HH), lds_r=(65536, 73728), tag="lds")
            sec.stream(q, base + 1, base + 16, "hh1", "bH")
            q = F("buffer_store_dwordx4 v[%d:%d], v%d, {WS}, {HB} offen sc1\nbuffer_store_dwordx4 v[%d:%d], v%d, {WS}, {HB} offen offset:1024 sc1"
                  % (V_SIL, V_SIL + 3, V_HH, V_SIL + 4, V_SIL + 7, V_HH), tag="gh2")
            sec.stream(q, base + 20, base + 34, "hh2", "hh1")
            sec.stream(twiddle_D(SET[0], SET[0] + 16), base, base + 24 * (gSD - gi) + 68, "twD", "pq1,bH")
        if gi == gSD:
            SD = stepD_parts(RAW, RA2, NB, SET[0], SET[0] + 16, SDT, 18 * 4096, ENV['C'], ENV['SA'])
            sec.stream(SD[0], base + 1, base + 54, "sd0")
            sec.stream(SD[1], base + 60, base + 69, "sd1", "sd0")
        if gi == gSD + 2:
            for m_ in SD[2]: sec.mfma(m_)
            sec.block(sec.n() - 1, SD[3])
            for m_ in SD[4]: sec.mfma(m_)
            sec.stream(SD[5], sec.n() + 2, sec.n() + 44, "sd5")
        if gi == gSD + 4:
            blk = F("s_cmp_lt_u32 {KB3}, 16\ns_cbranch_scc1 L_d2_KN")
            for part in stepD_parts(RA2, None, NB, SET[0], SET[0] + 16, SDT, 18 * 4096, ENV['KB3'], ENV['SA'], opt="d2"): blk += part
            sec.block(end - 1, blk + L("L_d2_KN:"))
        if gi == gq2 - 2: sec.stream(F("s_lshl_b32 {SM_}, {SM_}, 1") + poll(VP + 2, ENV['SB']), base + 1, base + 8, "pq2")
        if gi == gf8 - 1:
            q = F("""s_lshl_b32 {PO1}, {T}, 7
s_add_u32 {PO1}, {PO1}, %d
s_cmp_eq_u32 {W}, 0
s_cselect_b32 {PE1}, 16, 0
s_lshr_b32 {PE2}, {C}, 2
s_lshl_b32 {u}, {T}, 2
s_add_u32 {u}, {u}, {PE2}
s_mul_i32 {u}, {u}, 36864
s_add_u32 {u}, {u}, %d
v_add_u32 v%d, {u}, v%d""" % (CL(18), WS_Y, VY, V_L16))
            sec.stream(q, base - 20, base + 22, "f8s")
        if gi == gf8: sec.stream(signal(ENV['PO1']), base + 1, base + 12, "f8")
        if gi == gY - 2: sec.stream(poll(VP, ENV['PO1']), base + 1, base + 22, "p8")
        if gi == gY + 3:
            q = F("""s_and_b32 {u}, {C}, 3
s_lshl_b32 {u}, {u}, 2
s_add_u32 {u}, {u}, {PE2}
s_lshl_b32 {w}, {T}, 4
s_add_u32 {u}, {u}, {w}
s_lshl_b32 {u}, {u}, 2
s_add_u32 {u}, {u}, {W}
s_lshl_b32 {u}, {u}, 12
s_add_u32 {u}, {u}, %d""" % WS_8)
            for i in range(4): q += F("buffer_load_dwordx4 v[%d:%d], v%d, {WS}, {u} offen offset:%d sc1" % (TMP + 4 * i, TMP + 4 * i + 3, V_L16, i * 1024))
            q += F("""s_lshl_b32 {u}, {T}, 1
s_and_b32 {w}, {C}, 1
s_add_u32 {u}, {u}, {w}
s_lshl_b32 {PO1}, {u}, 7
s_add_u32 {PO1}, {PO1}, %d
s_lshr_b32 {PE1}, {PE1}, 1
s_lshl_b32 {XA}, {u}, 2
s_add_u32 {XA}, {XA}, {RG}
s_lshl_b32 {XA}, {XA}, 2
s_and_b32 {w}, {C}, 2
s_add_u32 {XA}, {XA}, {w}
s_add_u32 {XA}, {XA}, {FH}
s_lshl_b32 {XA}, {XA}, 2
s_add_u32 {XA}, {XA}, {PE2}
s_lshl_b32 {XA}, {XA}, 13
s_add_u32 {XA}, {XA}, %d""" % (CL(66), WS_P))
            sec.stream(q, base, base + 90, "l8")
        if gi == gfa: sec.stream(signal(ENV['PO1']), base + 1, base + 8, "fa")
        if g['kind'] == 'P2' and g['gi'] == 2 and g['cb'] in (0, 5, 6, 7):
            sec.stream(out_ops(g['cb']), sec.n() + 2, sec.n() + (22 if g['cb'] == 0 else OPT.get('ow', 30)), "out%d" % g['cb'])
            if g['cb'] == 5: sec.stream(TL.pre1(), sec.n(), sec.n() + 200, "tp1", "out5,tp0")
            if g['cb'] == 6: sec.stream(TL.pre2(), sec.n(), sec.n() + 142, "tp2", "out6,tp1,l8,gl")
        if gi == P2 + 9: TL = Tail(out_ops, 0, VP); sec.stream(TL.pre0(), base, base + 180, "tp0")
        if gi == gY: sec.stream(TL.gl(), base + 1, base + 60, "gl", "tp0")
    p += sec.flatten(verbose=True)
    p += ([] if OPT.get('diag') == 8 else stamp(20)) + TL.main()
    p += stamp_out(2)
    emit(a, name, p, 512, accum=256)

class Tail:
    def __init__(self, out_ops, YB, VP):
        self.out_ops, self.YB, self.VP = out_ops, YB, VP
        self.ST = [SET[2], SET[2] + 16, SET[1]]
        self.FR = [SET[1] + 16, SET[1] + 24, FB + 24]
        self.CO, self.KD, self.VG4, self.G8, self.VS, self.SEL = [7, 8, 9], [10, 11, 12], 13, 14, 15, 24
        self.GV, self.VO, self.V8, self.VO8 = TMP + 16, 30, 31, 19
    def seeds(self, pc, n):
        cur = self.ST[pc] + 8 * n; g4 = self.G8 if pc == 2 else self.VG4; q = []
        for j in range(4): q += L("v_add_f32 v%d, %s, v%d" % (cur + j, f2h(16.0 * n + j), g4))
        for j in range(4): q += F("v_fma_f32 v%d, v%d, v%d, {Q}\nv_mul_f32 v%d, v%d, v%d" % (cur + 4 + j, cur + j, self.KD[pc], cur + j, cur + j, self.KD[pc]))
        for j in range(8): q += L("v_cos_f32 v%d, v%d" % (cur + j, cur + j))
        return q
    def frag(self, pc, n):
        cur = self.ST[pc] + 8 * (n & 1); prv = self.ST[pc] + 8 * ((n + 1) & 1); f = self.FR[pc] + 4 * (n & 1); q = []
        if n >= 2:
            for j in range(8): q += L("v_fma_f32 v%d, v%d, v%d, -v%d" % (cur + j, self.CO[pc], prv + j, cur + j))
        if n == 0:
            q += L("v_cmp_eq_f32 vcc, 0, v%d" % (self.G8 if pc == 2 else self.VG4))
            q += L("v_cvt_pk_bf16_f32 v%d, v%d, v%d\nv_cvt_pk_bf16_f32 v%d, v%d, v%d" % (f + 1, cur + 2, cur + 3, f + 3, cur + 6, cur + 7))
            q += L("v_cndmask_b32 v%d, v%d, 0.5, vcc\nv_cndmask_b32 v%d, v%d, v%d, vcc" % (f, cur, f + 2, cur + 4, self.VS))
            q += L("v_cvt_pk_bf16_f32 v%d, v%d, v%d\nv_cvt_pk_bf16_f32 v%d, v%d, v%d" % (f, f, cur + 1, f + 2, f + 2, cur + 5))
        else:
            for jp in range(4): q += L("v_cvt_pk_bf16_f32 v%d, v%d, v%d" % (f + jp, cur + 2 * jp, cur + 2 * jp + 1))
        return q
    def pre0(self):
        KD, CO, SEL, GV = self.KD, self.CO, self.SEL, self.GV
        p = F("""s_and_b32 {d}, {C}, 3
s_lshl_b32 {d}, {d}, 4
s_and_b32 {e}, {C}, 1
s_lshl_b32 {e}, {e}, 2
s_add_u32 {e}, {e}, {RG}
s_lshl_b32 {e}, {e}, 2
s_and_b32 {a}, {C}, 2
s_add_u32 {e}, {e}, {a}
s_add_u32 {e}, {e}, {FH}
s_lshl_b32 {e}, {e}, 4
v_add_u32 v{ka}, {e}, v1
v_add_u32 v{kb_}, 0x80, v{ka}
v_add_u32 v{kc}, {d}, v1
v_add_u32 v{kc}, 0x200, v{kc}
v_and_b32 v{vs}, 1, v1
v_lshlrev_b32 v{vs}, 31, v{vs}
v_or_b32 v{vs}, 0.5, v{vs}
v_lshlrev_b32 v{g4}, 2, v2
v_cvt_f32_u32 v{g4}, v{g4}
s_mul_i32 {a}, {W}, 80
v_cvt_f32_u32 v{g8}, {a}
v_add_f32 v{g8}, v{g8}, v{g4}""", ka=KD[0], kb_=KD[1], kc=KD[2], vs=self.VS, g4=self.VG4, g8=self.G8)
        for i in range(3): p += L("v_cvt_f32_u32 v%d, v%d\nv_mul_f32 v%d, %s, v%d" % (KD[i], KD[i], CO[i], f2h(1.0 / 36), KD[i]))
        for i in range(3): p += L("v_cos_f32 v%d, v%d" % (CO[i], CO[i]))
        for i in range(3): p += L("v_mul_f32 v%d, %s, v%d\nv_add_f32 v%d, v%d, v%d" % (KD[i], f2h(1.0 / 576), KD[i], CO[i], CO[i], CO[i]))
        p += L("""v_lshrrev_b32 v{a}, 2, v1
v_cmp_eq_u32 vcc, v{a}, v2
v_and_b32 v{b}, 1, v1
v_lshlrev_b32 v{b}, 4, v{b}
v_mov_b32 v{a}, 0x3f80
v_lshlrev_b32 v{b}, v{b}, v{a}
v_cndmask_b32 v{b}, 0, v{b}, vcc
v_and_b32 v{a}, 2, v1
v_cmp_eq_u32 vcc, 0, v{a}
v_mov_b32 v{s0}, 0
v_mov_b32 v{s1}, 0
v_cndmask_b32 v{s2}, 0, v{b}, vcc
v_cndmask_b32 v{s3}, v{b}, 0, vcc
v_mov_b32 v{s4}, 0
v_mov_b32 v{s5}, 0""".format(a=SEL + 4, b=SEL + 5, s0=SEL, s1=SEL + 1, s2=SEL + 2, s3=SEL + 3, s4=SEL + 4, s5=SEL + 5))
        return p
    def gl(self):
        GV = self.GV
        return F("""s_lshl_b32 {a}, {T}, 9
s_lshl_b32 {b}, {PE2}, 7
s_add_u32 {a}, {a}, {b}
s_add_u32 {a}, {a}, %d
s_add_u32 {b}, {a}, %d
v_lshlrev_b32 v{t}, 2, v1
buffer_load_dword v{g}, v{t}, {WS}, {a} offen sc1
buffer_load_dword v{g1}, v{t}, {WS}, {a} offen offset:64 sc1
buffer_load_dword v{g2}, v{t}, {WS}, {b} offen sc1
buffer_load_dword v{g3}, v{t}, {WS}, {b} offen offset:64 sc1""" % (WS_G, WS_O - WS_G), t=self.VO, g=GV, g1=GV + 1, g2=GV + 2, g3=GV + 3)
    def pre1(self):
        return self.seeds(0, 0) + self.seeds(0, 1) + self.seeds(1, 0) + self.seeds(1, 1)
    def pre2(self):
        p = self.seeds(2, 0) + self.seeds(2, 1)
        for pc in range(3): p += self.frag(pc, 0) + self.frag(pc, 1)
        sc_ = f2h(2.0 / (2048 * 576))
        p += F("""v_mul_f32 v{g}, %s, v{g}
v_mul_f32 v{g1}, %s, v{g1}
v_and_b32 v{o}, 31, v0
v_mul_u32_u24 v{o}, %d, v{o}
v_lshrrev_b32 v{t}, 5, v0
v_lshl_add_u32 v{o}, v{t}, 4, v{o}
s_and_b32 {a}, {PE2}, 1
s_lshl_b32 {a}, {a}, 10
s_lshr_b32 {b}, {PE2}, 1
s_add_u32 {a}, {a}, {b}
s_lshl_b32 {b}, {T}, 1
s_add_u32 {a}, {a}, {b}
s_mul_i32 {a}, {a}, 1152
s_lshl_b32 {d}, {d}, 1
s_add_u32 {d}, {d}, {a}
s_lshl_b32 {e}, {e}, 1
s_add_u32 {e}, {e}, {a}
s_mul_i32 {a}, {W}, 10240
v_add_u32 v{t}, {a}, v{l}
s_cmp_eq_u32 {W}, 0
s_cselect_b32 {a}, 0, 0x80000000
v_or_b32 v{o8}, {a}, v{o}
s_add_u32 {PO2}, {PO1}, 4""" % (sc_, sc_, 32 * 1152), g=self.GV, g1=self.GV + 1, o=self.VO, t=self.V8, l=V_L16, o8=self.VO8)
        return p
    def main(self):
        YB, VP, FR, SEL, GV, V8 = self.YB, self.VP, self.FR, self.SEL, self.GV, self.V8
        YF = 224; AC = [240, 248, SET[3]]
        SMQ = lambda pc, h: SET[3] + 8 + 8 * pc + 4 * h
        PAr = lambda i: A(4 * i, 4)
        PBr = lambda i: A(32 + 4 * i, 4)
        P8r = lambda i: V(TMP + 4 * i, 4)
        yr = (YB, YB + 36864)
        def yrd(n, va, o):
            r = YF + 8 * (n & 1)
            return L("ds_read_b128 v[%d:%d], v%d offset:%d\nds_read_b128 v[%d:%d], v%d offset:%d" % (r, r + 3, va, o, r + 4, r + 7, va, o + 1024), lds_r=yr)
        def pload(regs, i):
            q = F("buffer_load_dwordx4 %s, v%d, {WS}, {XA} offen offset:%d sc1" % (rs(regs), V_L16, (i % 4) * 1024))
            return q + (F("s_add_u32 {XA}, {XA}, 4096") if i % 4 == 3 else [])
        def summ(pc, regs, first):
            return [mf(V(SMQ(pc, h), 4), V(SEL + 2 - 2 * h, 4), regs, None if first else V(SMQ(pc, h), 4)) for h in range(2)]
        def combine(pc): return [I("v_mul_f32 v%d, v%d, v%d" % (AC[pc] + r, AC[pc] + r, GV + (r >> 2))) for r in range(8)]
        def combine2(pc): return [I("v_fma_f32 v%d, v%d, v%d, v%d" % (AC[pc] + r, SMQ(pc, r >> 2) + (r & 3), GV + 2 + (r >> 2), AC[pc] + r)) for r in range(8)]
        def store(b, so, off, va):
            q = []
            for d in range(4): q += L("v_cvt_pk_bf16_f32 v%d, v%d, v%d" % (b + d, b + 2 * d, b + 2 * d + 1))
            q += L("v_permlane16_swap_b32 v%d, v%d\nv_permlane16_swap_b32 v%d, v%d" % (b, b + 2, b + 1, b + 3))
            return q + F("buffer_store_dwordx4 v[%d:%d], v%d, {OUT}, %s offen offset:%d%s" % (b, b + 3, va, so, off, OPT.get('ofl', "")))
        p = ts(3) + yrd(0, V8, YB) + yrd(1, V8, YB + 2048) + self.out_ops(8) + poll(VP, ENV['PO1']) + ts(4)
        for i in range(4): p += summ(2, P8r(i), i == 0)
        for n in range(5):
            o = "q8" if n >= 3 else False
            if n == 3: p += F("s_cmp_eq_u32 {W}, 3\ns_cbranch_scc1 L_q8_KN")
            q = []
            if n == 3: q += yrd(3, V8, YB + 3 * 2048) + yrd(4, V8, YB + 4 * 2048) + self.frag(2, 3)
            for h in range(2):
                acc = V(AC[2] + 4 * h, 4)
                q.append(mf(acc, V(FR[2] + 4 * (n & 1), 4), V(YF + 8 * (n & 1) + 4 * h, 4), acc if n else None))
            if n == 0: q += yrd(2, V8, YB + 2 * 2048) + self.frag(2, 2)
            if n == 3: q += self.frag(2, 4)
            for i in q: i.opt = o
            p += q
        p += L("L_q8_KN:") + yrd(0, V_L16, YB)
        XB = 9 * 4096
        p += F("s_lshl_b32 {a}, {W}, 11\nv_add_u32 v%d, {a}, v%d" % (V8, V_L16)) + combine(2) + combine2(2)
        p += L("ds_write_b128 v%d, v[%d:%d] offset:%d\nds_write_b128 v%d, v[%d:%d] offset:%d" % (V8, AC[2], AC[2] + 3, XB, V8, AC[2] + 4, AC[2] + 7, XB + 1024), lds_w=(XB, XB + 8192), tag="r8")
        sec = Sec2()
        ksB, kcB = OPT.get('ksb', 0), OPT.get('kcb', 7)
        R8 = SET[0]
        for kb in range(18):
            b0 = sec.n()
            for pc in range(2):
                for h in range(2):
                    acc = V(AC[pc] + 4 * h, 4)
                    sec.mfma(mf(acc, V(FR[pc] + 4 * (kb & 1), 4), V(YF + 8 * (kb & 1) + 4 * h, 4), acc if kb else None))
            if kb >= 10:
                for m_ in summ(0, PAr(kb - 10), kb == 10): sec.mfma(m_)
            e0 = sec.n() - 1
            if kb < 17: sec.at(b0, yrd(kb + 1, V_L16, YB + (kb + 1) * 2048))
            if 1 <= kb < 17: sec.stream(self.frag(0, kb + 1) + self.frag(1, kb + 1), b0, e0)
            blk = []
            if kb == ksB:
                blk += ts(5) + check("A", VP, ENV['PO1'], ENV['PE1'], sidx=24) + ts(6) + L("s_barrier", need_vm=("pB",), need_lgkm=("r8",))
                blk += signal(ENV['PO2']) + poll(VP + 1, ENV['PO2']) + ts(7)
                for i in range(8): blk += pload(PAr(i), i)
                for i in range(8): blk += L("ds_read_b128 v[%d:%d], v%d offset:%d" % (R8 + 4 * i, R8 + 4 * i + 3, V_L16, XB + i * 1024), lds_r=(XB, XB + 8192))
                blk += F("s_add_u32 {XA}, {XA}, %d" % (2 * 131072 - 8192)) + ts(8)
            if kb == kcB:
                blk += ts(9) + check("B", VP + 1, ENV['PO2'], ENV['PE1'], sidx=25) + L("s_barrier") + ts(10)
                for i in range(8): blk += pload(PBr(i), i)
                blk += ts(11)
            if blk: sec.block(e0, blk)
        p += sec.flatten() + ts(12)
        for r in range(8): p += L("v_add_f32 v%d, v%d, v%d\nv_add_f32 v%d, v%d, v%d\nv_add_f32 v%d, v%d, v%d" % (R8 + r, R8 + r, R8 + 8 + r, R8 + 16 + r, R8 + 16 + r, R8 + 24 + r, R8 + r, R8 + r, R8 + 16 + r))
        p += store(R8, ENV['d'], 1024, self.VO8)
        p += combine(0) + combine2(0) + store(AC[0], ENV['e'], 0, self.VO) + combine(1)
        p += stamp(21)
        for i in range(8): p += summ(1, PBr(i), i == 0)
        p += combine2(1) + store(AC[1], ENV['e'], 256, self.VO)
        return p

if __name__ == "__main__":
    for x in sys.argv[2:]:
        k, v = x.split("=")
        OPT[k] = int(v) if v.lstrip("-").isdigit() else v.replace("_", " ")
    a = Asm()
    kernel_main(a)
    a.launches = ['; @launch grid=(256,1,1) block=(256,1,1) lds=163840']
    a(".fill 5120, 4, 0xbf800000")
    open(sys.argv[1], "w").write(a.text())
```

```python
import sys, math, struct
from asmlib import *
from fw import *

WS_A = 0x000000
WS_B = 0x300000
WS_Y = 0x3000000
WS_G = 0x600000
WS_O = 0x602000
WS_P = 0x800000
WS_C = 0x620000
WS_8 = 0x1c00000
WS_H = 0x3400000
CL = lambda n: WS_C + 128 * n
WS_N = 0x610000
KB_STRIDE = 131072
MF = "v_mfma_f32_16x16x32_bf16"
def f2h(x): return "0x%08x" % struct.unpack("<I", struct.pack("<f", x))[0]
def mf(d, a, b, c, opt=False):
    return I("%s %s, %s, %s, %s" % (MF, rs(d), rs(a), rs(b), rs(c) if c else "0"), opt=opt)
def F(text, opt=False, tag=None, **env):
    e = dict(ENV); e.update(env)
    kw = {}
    for k in ("lds_r", "lds_w", "priv", "need_vm", "need_lgkm"):
        if k in env: kw[k] = env[k]
    return L(text.format(**e), opt=opt, tag=tag, **kw)

ENV = dict(X="s[8:11]", WG="s[12:15]", WU="s[16:19]", WD="s[20:23]", WS="s[24:27]", DBG="s[28:31]", WP="s[32:35]", WA="s36", WB="s37", f="s38", g="s39", GW="s[40:43]", OUT="s[40:43]", PO1="s75", PO2="s76", PE1="s77", PE2="s78", XA="s83", HB="s46", HT="s47", S8="s44", SM_="s45",
           T="s79", C="s80", W="s81", W1K="s82", KB="s83", RG="s87", FH="s88", S2="s89", a="s84", b="s85", c="s86", d="s92", e="s93",
           Q="s94", KB3="s95", NL="s96", KB1="s97", GA="s98", GB="s99", SA="s100", SB="s101", ST="s90", SP="s91", u="s6", w="s7", ROT="s3")
S_KK, S_DK, S_XQ = 48, 66, 75
OPT = dict(stamps=False, BI=2, sc1p=True)
VST = [223]
def stamp(idx):
    if not OPT['stamps']: return []
    return L("s_memrealtime s[4:5]\ns_waitcnt lgkmcnt(0)\nv_writelane_b32 v%d, s4, %d\ns_memtime s[4:5]\ns_waitcnt lgkmcnt(0)\nv_writelane_b32 v%d, s4, %d" % (VST[0], idx, VST[0], 32 + idx))
def ts(idx):
    return stamp(idx) if OPT.get('diag') == 8 else []
def tp(idx):
    return stamp(idx) if OPT.get('diag') == 10 else []
def diag(n, idx):
    if OPT.get('diag', 0) != n: return []
    return L("s_waitcnt vmcnt(0)") + stamp(idx)
def stamp_out(kidx):
    if not OPT['stamps']: return []
    p = L("s_waitcnt vmcnt(0)") + stamp(31)
    p += F("s_cmp_lg_u32 {W}, 0\ns_cbranch_scc1 L_end_KN\ns_lshl_b32 s4, s2, 8\ns_add_u32 s4, s4, 0x%x\nv_lshlrev_b32 v0, 2, v0" % (STAMP_OFF + kidx * 262144))
    p += F("buffer_store_dword v%d, v0, {WS}, s4 offen" % VST[0])
    return p
def srd(d, b, n):
    return L("s_mov_b32 s%d, s%d\ns_and_b32 s%d, s%d, 0xffff\ns_mov_b32 s%d, 0x%x\ns_mov_b32 s%d, 0x20000" % (d, b, d + 1, b + 1, d + 2, n, d + 3))
def emit(a, name, prog, vg, accum=None):
    p = finish(prog)
    dr = OPT.get('drop', "")
    if 'd' in dr: p = [i for i in p if i.kind != 'dma']
    if 'b' in dr: p = [i for i in p if i.kind != 'bar']
    if 't' in dr: p = [i for i in p if not (i.kind == 'ds' and i.tag and i.tag.startswith('f'))]
    if 'v' in dr: p = [i for i in p if not getattr(i, 'silu', False)]
    if 'q' in dr: p = [i for i in p if not (i.kind == 'dma' and i.tag in ('q0', 'q1', 'q2'))]
    if 'y' in dr: p = [i for i in p if not (i.kind == 'dma' and i.tag == 'y')]
    if 'h' in dr: p = [i for i in p if i.tag not in ('gh1', 'gh2')]
    if '8' in dr: p = [i for i in p if i.tag != 'p8']
    if 'w' in dr: p = [i for i in p if not (i.kind == 'vmem' and 'dwordx4' in i.text and 's[32:35]' in i.text)]
    if 'P' in dr: p = [i for i in p if i.tag not in ('pA', 'pB')]
    if 'B' in dr: p = [i for i in p if i.tag not in ('pub1', 'pub2')]
    if 'L' in dr: p = [i for i in p if not (i.kind == 'vmem' and i.op == 'buffer_load_dwordx4' and 'sc1' in i.text)]
    if 'x' in dr:
        for i in p:
            if i.tag in ('gh1', 'gh2', 'pA', 'pB', 'p8', 'pub1', 'pub2'): i.text = i.text.replace(' sc1', '')
    if 's' in dr: p = [i for i in p if not (i.kind == 'vmem' and 's90' in i.text)]
    a.begin(name)
    for i in p: a(i.text.replace("KN", name))
    a("L_end_%s:\ns_endpgm" % name)
    for t in SPINS: a(t.replace("KN", name))
    a.end(name, vg, accum=accum)
    print(name, stats(p), file=sys.stderr)

def PL(): return (16384, 1024, 147456) if OPT.get('lay', 0) else (262144, 16384, 1024)
def WSP(): return OPT.get('wsp', WS_P)
def flat(t):
    o = []
    for x in t: o += x if isinstance(x, list) else [x]
    return o
def XF(mi, kk):
    n = kk * 4 + mi
    return A(4 * n, 4) if n < 64 else V(224 + 4 * (n - 64), 4)
def HF(mi, ks):
    n = ks * 8 + mi
    return XF(n & 3, n >> 2)
SET = [32, 64, 96, 128]
FB = 160
TMP = 196
V_DX, V_DW, V_DH, V_DD, V_RW, V_RX = 3, 4, 5, 6, 7, 13
V_HW, V_HH, V_L16, V_L16B, V_ST, V_SIL = 19, 20, 21, 22, 23, 24

def dma(vo, srdn, soff, pb, ioff, tag):
    assert pb - ioff >= 0
    m = F("s_add_u32 m0, {W1K}, %d" % (pb - ioff))[0]
    d = F("buffer_load_dwordx4 v%d, {%s}, s%d offen%s%s lds" % (vo, srdn, soff, (" offset:%d" % ioff) if ioff else "", OPT.get('xfl', "") if srdn == 'X' else OPT.get('wfl', "")), tag=tag, lds_w=(pb, pb + 4096))[0]
    return m, d

def gate_code(XQ, GQ, R):
    e = dict(va=R[2], vo=R[3], t0=R[4], t1=R[5], t2=R[6], t3=R[7])
    p = F("""v_lshrrev_b32 v{vo}, 5, v0
s_lshl_b32 {a}, {C}, 3
s_lshl_b32 {b}, {W}, 1
s_add_u32 {a}, {a}, {b}
v_add_u32 v{vo}, {a}, v{vo}
v_and_b32 v{t0}, 63, v{vo}
v_lshlrev_b32 v{t0}, 5, v{t0}
v_lshrrev_b32 v{t1}, 6, v{vo}
v_add_u32 v{t0}, v{t0}, v{t1}
s_lshl_b32 {a}, {T}, 1
v_add_u32 v{t0}, {a}, v{t0}
v_mul_u32_u24 v{t0}, 1152, v{t0}
v_and_b32 v{t1}, 31, v0
v_mul_u32_u24 v{t1}, 36, v{t1}
v_add_u32 v{t0}, v{t0}, v{t1}""", **e)
    for b_, s_, ad, sr in ((XQ, R[0], "t0", "X"), (GQ, R[1], "t1", "GW")):
        p += F("buffer_load_dwordx4 v[%d:%d], v{%s}, {%s}, 0 offen\nbuffer_load_dwordx4 v[%d:%d], v{%s}, {%s}, 0 offen offset:16\nbuffer_load_dword v%d, v{%s}, {%s}, 0 offen offset:32"
               % (b_, b_ + 3, ad, sr, b_ + 4, b_ + 7, ad, sr, s_, ad, sr), **e)
    def rest():
        q = []
        for n in range(9):
            q += F("""v_lshlrev_b32 v{t0}, 16, v{x}
v_lshlrev_b32 v{t1}, 16, v{y}
v_and_b32 v{t2}, 0xffff0000, v{x}
v_and_b32 v{t3}, 0xffff0000, v{y}
v_mul_f32 v{t0}, v{t0}, v{t1}
v_mul_f32 v{t2}, v{t2}, v{t3}
v_cvt_pk_bf16_f32 v{t0}, v{t0}, v{t2}
v_lshlrev_b32 v{t1}, 16, v{t0}
v_and_b32 v{t0}, 0xffff0000, v{t0}""", x=XQ + n if n < 8 else R[0], y=GQ + n if n < 8 else R[1], **e)
            q += F("v_add_f32 v{va}, v{t1}, v{t0}" if n == 0 else "v_add_f32 v{va}, v{va}, v{t1}\nv_add_f32 v{va}, v{va}, v{t0}", **e)
        for sh in (8, 4, 2, 1):
            q += F("v_add_f32_dpp v{va}, v{va}, v{va} row_ror:%d row_mask:0xf bank_mask:0xf" % sh, **e)
        q += F("""v_mov_b32 v{t0}, v{va}
v_and_b32 v{t1}, 31, v0
v_cmp_eq_u32 vcc, 0, v{t1}
v_permlane16_swap_b32 v{va}, v{t0}
v_add_f32 v{va}, v{va}, v{t0}
v_cvt_pk_bf16_f32 v{va}, v{va}, v{va}
v_lshlrev_b32 v{va}, 16, v{va}
v_mul_f32 v{va}, {NL}, v{va}
v_exp_f32 v{va}, v{va}
v_lshlrev_b32 v{vo}, 2, v{vo}
v_add_f32 v{va}, 1.0, v{va}
v_rcp_f32 v{va}, v{va}
v_bfrev_b32 v{t1}, 1
v_cvt_pk_bf16_f32 v{va}, v{va}, v{va}
v_lshlrev_b32 v{va}, 16, v{va}
v_sub_f32 v{t0}, 1.0, v{va}
v_cvt_pk_bf16_f32 v{t0}, v{t0}, v{t0}
v_lshlrev_b32 v{t0}, 16, v{t0}
v_cndmask_b32 v{vo}, v{t1}, v{vo}, vcc
s_lshl_b32 {u}, {T}, 9
s_add_u32 {u}, {u}, %d
s_add_u32 {w}, {u}, %d""" % (WS_G, WS_O - WS_G), **e)
        q += F("buffer_store_dword v{va}, v{vo}, {WS}, {u} offen sc1\nbuffer_store_dword v{t0}, v{vo}, {WS}, {w} offen sc1", tag="pub1", **e)
        return q
    return p, rest

def t_setup(P, kb, opt=False):
    e = dict(vk=P, vphi=P + 1, vco=P + 2, vd=P + 3, vmu=P + 4, vsg=P + 5, t=P + 6, kb=kb)
    return F("""v_lshrrev_b32 v{vk}, 2, v1
v_lshlrev_b32 v{vk}, 1, v{vk}
v_and_b32 v{t}, 1, v1
v_add_u32 v{vk}, v{vk}, v{t}
v_lshlrev_b32 v{vsg}, 31, v{t}
v_or_b32 v{vsg}, 1.0, v{vsg}
s_lshl_b32 {a}, {kb}, 4
s_lshl_b32 {b}, {FH}, 3
s_add_u32 {a}, {a}, {b}
v_add_u32 v{vk}, {a}, v{vk}
v_bfe_u32 v{vphi}, v1, 1, 1
v_cvt_f32_u32 v{vphi}, v{vphi}
v_mul_f32 v{vphi}, 0x3e800000, v{vphi}
v_add_u32 v{t}, {a}, v1
v_cmp_eq_u32 vcc, 2, v{t}
v_mov_b32 v{t}, 0x120
v_lshlrev_b32 v{vd}, 3, v2
v_cndmask_b32 v{vk}, v{vk}, v{t}, vcc
v_cndmask_b32 v{vphi}, v{vphi}, 0, vcc
v_mul_u32_u24 v{t}, {ROT}, v{vk}
v_mul_u32_u24 v{vco}, 7282, v{t}
v_lshrrev_b32 v{vco}, 16, v{vco}
v_mul_u32_u24 v{vco}, 9, v{vco}
v_sub_u32 v{t}, v{t}, v{vco}
v_cvt_f32_u32 v{t}, v{t}
v_fmac_f32 v{vphi}, 0x3de38e39, v{t}
v_cvt_f32_u32 v{vk}, v{vk}
v_mul_f32 v{vco}, %s, v{vk}
v_mul_f32 v{vk}, %s, v{vk}
v_cos_f32 v{vco}, v{vco}
v_add_u32 v{t}, {a}, v2
v_cmp_eq_u32 vcc, 0, v{t}
v_cvt_f32_u32 v{vd}, v{vd}
v_add_f32 v{vco}, v{vco}, v{vco}
v_cndmask_b32 v{vmu}, 1.0, 0, vcc""" % (f2h(1.0 / 18), f2h(1.0 / 576)), opt=opt, **e)

def t_frag(kk, f, ST, P, opt=False):
    cur = ST + 8 * (kk & 1); prv = ST + 8 * ((kk + 1) & 1); ops = []
    if kk < 2:
        for j in range(8): ops += L("v_add_f32 v%d, %s, v%d" % (cur + j, f2h(32.0 * kk + j), P + 3), opt=opt)
        for j in range(8): ops += L("v_fma_f32 v%d, v%d, v%d, v%d" % (cur + j, cur + j, P, P + 1), opt=opt)
        for j in range(8): ops += L("v_cos_f32 v%d, v%d" % (cur + j, cur + j), opt=opt)
    else:
        for j in range(8): ops += L("v_fma_f32 v%d, v%d, v%d, -v%d" % (cur + j, P + 2, prv + j, cur + j), opt=opt)
    for jp in range(4): ops += L("v_cvt_pk_bf16_f32 v%d, v%d, v%d" % (f + jp, cur + 2 * jp, cur + 2 * jp + 1), opt=opt)
    return ops

def twiddle_A(TW, T, tiles):
    vs, vj, p0, p1, c0, c1 = T, T + 4, T + 5, T + 6, T + 7, T + 8
    p = F("v_lshlrev_b32 v{vs}, 7, v2\nv_add_u32 v{vs}, {S2}, v{vs}\nv_cvt_f32_u32 v{vs}, v{vs}", vs=vs)
    for j in range(1, 4): p += L("v_add_f32 v%d, %s, v%d" % (vs + j, f2h(32.0 * j), vs))
    for a in tiles:
        p += L("v_lshl_add_u32 v%d, v1, 2, %d\nv_cvt_f32_u32 v%d, v%d\nv_mul_f32 v%d, %s, v%d" % (vj, a, vj, vj, vj, f2h(1.0 / 2048), vj))
        b = TW(a)
        for jp in range(2):
            p += L("""v_mul_f32 v%d, v%d, v%d
v_mul_f32 v%d, v%d, v%d
v_cos_f32 v%d, v%d
v_cos_f32 v%d, v%d
v_sin_f32 v%d, v%d
v_sin_f32 v%d, v%d
v_cvt_pk_bf16_f32 v%d, v%d, v%d
v_cvt_pk_bf16_f32 v%d, v%d, v%d""" % (p0, vs + 2 * jp, vj, p1, vs + 2 * jp + 1, vj, c0, p0, c1, p1, p0, p0, p1, p1, b + jp, c0, c1, b + 4 + jp, p0, p1))
            C = "v%d, v%d" % (c0, c1); nC = "-v%d, -v%d" % (c0, c1); Sn = "v%d, v%d" % (p0, p1); nS = "-v%d, -v%d" % (p0, p1)
            cc, ss = [(C, Sn), (nS, C), (nC, nS), (Sn, nC)][a]
            p += L("v_cvt_pk_bf16_f32 v%d, %s\nv_cvt_pk_bf16_f32 v%d, %s" % (b + 2 + jp, cc, b + 6 + jp, ss))
    return p

def step_A(ACC, TW, DF, P, kb, stg, fill=None, opt=False):
    k = dict(opt=opt)
    fill = fill or (lambda n: [])
    t0, t1, va, vb = DF + 8, DF + 9, DF + 10, DF + 11
    e = dict(va=va, vb=vb, t0=t0, kb=kb, L16=V_L16)
    p = F("""s_mul_i32 {a}, {RG}, 4352
s_lshl_b32 {b}, {FH}, 4
s_add_u32 {a}, {a}, {b}
s_add_u32 {a}, {a}, %d
v_mul_u32_u24 v{va}, 272, v1
v_lshl_add_u32 v{va}, v2, 2, v{va}
v_add_u32 v{va}, {a}, v{va}
s_mul_i32 {a}, {W}, 2176
s_add_u32 {a}, {a}, %d
v_lshl_add_u32 v{vb}, v2, 4, v{L16}
v_add_u32 v{vb}, {a}, v{vb}
s_lshl_b32 {c}, {W}, 11
s_lshl_b32 {a}, {T}, 13
s_lshl_b32 {b}, {kb}, 17
s_add_u32 {b}, {b}, {a}
s_add_u32 {b}, {b}, {c}""" % (stg, stg), **k, **e)
    for i in range(16): p += L("v_fma_f32 v%d, v%d, v%d, v%d" % (ACC + i, P + 5, ACC + 16 + i, ACC + i), **k)
    for i in range(8):
        p += L("v_add_f32 v%d, v%d, v%d\nv_sub_f32 v%d, v%d, v%d" % (ACC + 16 + i, ACC + i, ACC + 8 + i, ACC + 24 + i, ACC + i, ACC + 8 + i), **k)
    for i in range(8): p += L("v_cvt_pk_bf16_f32 v%d, v%d, v%d" % (DF + i, ACC + 16 + 2 * i, ACC + 17 + 2 * i), **k)
    T1, T2 = ACC, ACC + 16
    for a in range(4):
        for cs, D in ((0, T1), (1, T2)):
            p.append(mf(V(D + 4 * a, 4), V(DF + 4 * (a & 1), 4), V(TW(a) + 4 * cs, 4), None, opt))
            p += fill(2)
    rng = (stg, stg + 8704)
    for a in range(4):
        x, y = T1 + 4 * a, T2 + 4 * a
        p += L("""v_fma_f32 v%d, v%d, v%d, v%d
v_add_f32 v%d, v%d, v%d
v_cvt_pk_bf16_f32 v%d, v%d, v%d
v_fma_f32 v%d, v%d, v%d, -v%d
v_sub_f32 v%d, v%d, v%d
v_cvt_pk_bf16_f32 v%d, v%d, v%d""" % (t0, P + 4, y + 2, x, t1, x + 1, y + 3, DF + 2 * a, t0, t1, t0, P + 4, x + 2, y, t1, x + 3, y + 1, DF + 2 * a + 1, t0, t1), **k)
        p += L("ds_write2_b32 v%d, v%d, v%d offset0:%d offset1:%d" % (va, DF + 2 * a, DF + 2 * a + 1, 16 * a, 16 * a + 8), lds_w=rng, tag="sa", **k)
    if not opt:
        p += F("s_or_b32 {c}, {kb}, {FH}\ns_cmp_lg_u32 {c}, 0\ns_cbranch_scc1 L_ny_KN", kb=kb)
        o = "ny"
        q = F("""s_lshl_b32 {a}, {S2}, 12
s_add_u32 {a}, {a}, %d
v_bfe_u32 v{va}, v1, 2, 1
v_lshlrev_b32 v{va}, 6, v{va}
v_lshrrev_b32 v{t0}, 3, v1
v_lshl_add_u32 v{va}, v{t0}, 17, v{va}
v_and_b32 v{t0}, 3, v1
v_lshl_add_u32 v{va}, v{t0}, 2, v{va}
v_lshl_add_u32 v{va}, v2, 28, v{va}""" % (18 * KB_STRIDE), opt=o, va=va, t0=t0)
        for par in range(2):
            q += L("v_cvt_pk_bf16_f32 v%d, v%d, v%d\nv_cvt_pk_bf16_f32 v%d, -v%d, -v%d"
                   % (T1 + par, T1 + 4 * par + 2, T1 + 4 * par + 10, T2 + par, T2 + 4 * par + 2, T2 + 4 * par + 10), opt=o)
        for par in range(2):
            q += F("buffer_store_dword v%d, v{va}, {WS}, {a} offen offset:%d sc1\nbuffer_store_dword v%d, v{va}, {WS}, {a} offen offset:%d sc1"
                   % (T1 + par, par * 16, T2 + par, 32 + par * 16), opt=o, tag="pub1", va=va)
        p += q + L("L_ny_KN:")
    p += L("s_barrier", need_lgkm=("sa",), **k)
    p += L("ds_read_b128 v[%d:%d], v%d\nds_read_b128 v[%d:%d], v%d offset:1088" % (DF, DF + 3, vb, DF + 4, DF + 7, vb), lds_r=rng, tag="lds", **k)
    p += fill(16)
    p += F("buffer_store_dwordx4 v[%d:%d], v{L16}, {WS}, {b} offen sc1\nbuffer_store_dwordx4 v[%d:%d], v{L16}, {WS}, {b} offen offset:1024 sc1"
           % (DF, DF + 3, DF + 4, DF + 7), tag="pub1", **k, **e)
    return p

def dft32(M, T, opt):
    vi, vg, p0, p1, c0, c1 = T, T + 1, T + 2, T + 3, T + 4, T + 5
    k = dict(opt=opt)
    p = L("v_cvt_f32_u32 v%d, v1\nv_lshlrev_b32 v%d, 2, v2\nv_mul_f32 v%d, %s, v%d\nv_cvt_f32_u32 v%d, v%d" % (vi, vg, vi, f2h(1.0 / 32), vi, vg, vg), **k)
    for jp in range(2):
        p += L("""v_add_f32 v%d, %s, v%d
v_add_f32 v%d, %s, v%d
v_mul_f32 v%d, v%d, v%d
v_mul_f32 v%d, v%d, v%d
v_cos_f32 v%d, v%d
v_cos_f32 v%d, v%d
v_sin_f32 v%d, v%d
v_sin_f32 v%d, v%d
v_cvt_pk_bf16_f32 v%d, v%d, v%d
v_cvt_pk_bf16_f32 v%d, v%d, v%d""" % (p0, f2h(2.0 * jp), vg, p1, f2h(2.0 * jp + 1), vg, p0, p0, vi, p1, p1, vi, c0, p0, c1, p1, p0, p0, p1, p1, M + jp, c0, c1, M + 4 + jp, p0, p1), **k)
    p += L("v_and_b32 v%d, 1, v1\nv_mul_u32_u24 v%d, 0x8000, v%d\nv_lshl_add_u32 v%d, v%d, 16, v%d" % (vi, vi, vi, vi, vi, vi), **k)
    for b in (M, M + 4):
        for jp in range(2): p += L("v_xor_b32 v%d, v%d, v%d" % (b + 2 + jp, vi, b + jp), **k)
    for d in range(4):
        p += L("v_xor_b32 v%d, 0x80008000, v%d\nv_xor_b32 v%d, 0x80000000, v%d\nv_xor_b32 v%d, 0x80000000, v%d\nv_xor_b32 v%d, 0x8000, v%d"
               % (M + 8 + d, M + 4 + d, M + 12 + d, M + d, M + 16 + d, M + 4 + d, M + 20 + d, M + 4 + d), **k)
    return p

def nyw_load(r, o):
    return F("""s_lshl_b32 {a}, {T}, 7
s_lshl_b32 {b}, {FH}, 6
s_add_u32 {a}, {a}, {b}
v_add_u32 v{r}, {a}, v0
v_mul_u32_u24 v{r}, 578, v{r}
buffer_load_ushort v{r}, v{r}, {WP}, 0 offen offset:576""", opt=o, r=r)
def nyw_store(r, j, t, o):
    return F("""s_lshl_b32 {a}, {RG}, 12
s_lshl_b32 {b}, {T}, 8
s_add_u32 {a}, {a}, {b}
s_lshl_b32 {b}, {FH}, 7
s_add_u32 {a}, {a}, {b}
s_add_u32 {a}, {a}, %d
v_and_b32 v{j}, 14, v0
v_and_b32 v{t}, 1, v0
v_lshl_add_u32 v{j}, v{t}, 4, v{j}
v_and_b32 v{t}, 1, v2
v_lshl_add_u32 v{j}, v{t}, 6, v{j}
v_lshrrev_b32 v{t}, 1, v2
v_lshl_add_u32 v{j}, v{t}, 5, v{j}""" % WS_N, opt=o, j=j, t=t) + F("buffer_store_short v%d, v%d, {WS}, {a} offen sc1" % (r, j), opt=o, tag="pub1")

def s2_scalars(gam, wo, keep):
    return F("""s_and_b32 {b}, {gam}, 31
s_lshl_b32 {keep}, {b}, 7
s_lshl_b32 {b}, {b}, 1
s_add_u32 {b}, {b}, {FH}
s_mul_i32 {b}, {b}, 578
s_lshr_b32 {a}, {gam}, 5
s_lshl_b32 {wo}, {a}, 6
s_add_u32 {wo}, {wo}, {b}
s_lshl_b32 {a}, {a}, 1
s_add_u32 {a}, {a}, {RG}
s_lshl_b32 {a}, {a}, 17
s_add_u32 {keep}, {keep}, {a}
s_lshl_b32 {b}, {FH}, 16
s_add_u32 {keep}, {keep}, {b}""", gam=gam, wo=wo, keep=keep)
def s2_wloads(gam, wo, Wr, vw, t0):
    return F("""v_lshrrev_b32 v{vw}, 2, v0
v_mul_u32_u24 v{vw}, 36992, v{vw}
v_and_b32 v{t0}, 3, v0
v_lshl_add_u32 v{vw}, v{t0}, 4, v{vw}
s_cmp_lt_u32 {gam}, 288
s_cselect_b32 {f}, 0, 0x80000000
v_or_b32 v{vw}, {f}, v{vw}
s_add_u32 {f}, {wo}, %d
buffer_load_dwordx4 v[%d:%d], v{vw}, {WP}, {wo} offen
buffer_load_dwordx4 v[%d:%d], v{vw}, {WP}, {f} offen""" % (16 * 36992, Wr, Wr + 3, Wr + 4, Wr + 7), gam=gam, wo=wo, vw=vw, t0=t0)
def s2_wspecial(Wr, vw, t0, opt):
    return F("""s_lshl_b32 {a}, {RG}, 12
s_lshl_b32 {b}, {FH}, 6
s_add_u32 {a}, {a}, {b}
s_add_u32 {a}, {a}, %d
v_lshrrev_b32 v{vw}, 2, v0
v_lshlrev_b32 v{vw}, 7, v{vw}
v_and_b32 v{t0}, 3, v0
v_lshl_add_u32 v{vw}, v{t0}, 4, v{vw}
buffer_load_dwordx4 v[%d:%d], v{vw}, {WS}, {a} offen sc1
buffer_load_dwordx4 v[%d:%d], v{vw}, {WS}, {a} offen offset:2048 sc1""" % (WS_N, Wr, Wr + 3, Wr + 4, Wr + 7), opt=opt, vw=vw, t0=t0)
def s2_gaddr(va, t0, opt):
    return F("v_lshrrev_b32 v{va}, 3, v0\nv_lshlrev_b32 v{va}, 12, v{va}\nv_and_b32 v{t0}, 7, v0\nv_lshl_add_u32 v{va}, v{t0}, 4, v{va}", opt=opt, va=va, t0=t0)
def s2_dloads(gam, keep, D, va, vm):
    return F("""s_cmp_le_u32 {gam}, 288
s_cselect_b32 {f}, 0, 0x80000000
v_or_b32 v{vm}, {f}, v{va}
s_add_u32 {f}, {keep}, 0x8000
buffer_load_dwordx4 v[%d:%d], v{vm}, {WS}, {keep} offen sc1
buffer_load_dwordx4 v[%d:%d], v{vm}, {WS}, {f} offen sc1""" % (D, D + 3, D + 4, D + 7), keep=keep, gam=gam, va=va, vm=vm)

def s2_addr(T, lds_base, opt):
    e = dict(vl=T, vr=T + 1, vw=T + 2, vo=T + 3, vp=T + 4, vb=T + 5, t0=T + 7, L16=V_L16)
    return F("""s_lshl_b32 {u}, {W}, 11
s_add_u32 {u}, {u}, %d
v_add_u32 v{vl}, {u}, v{L16}
v_lshrrev_b32 v{t0}, 3, v0
v_lshlrev_b32 v{t0}, 4, v{t0}
v_xor_b32 v{vb}, v{vl}, v{t0}
v_lshrrev_b32 v{vr}, 2, v1
v_lshl_add_u32 v{vr}, v2, 2, v{vr}
v_lshlrev_b32 v{vw}, 6, v{vr}
v_lshlrev_b32 v{vr}, 7, v{vr}
v_and_b32 v{t0}, 3, v1
v_lshl_add_u32 v{vr}, v{t0}, 3, v{vr}
v_lshl_add_u32 v{vw}, v{t0}, 3, v{vw}
s_lshl_b32 {u}, {RG}, 12
s_lshl_b32 {w}, {FH}, 6
s_add_u32 {u}, {u}, {w}
s_add_u32 {u}, {u}, %d
v_add_u32 v{vr}, {u}, v{vr}
v_lshlrev_b32 v{vo}, 7, v1
v_lshl_add_u32 v{vo}, v2, 3, v{vo}
v_add_u32 v{vo}, {u}, v{vo}
v_and_b32 v{t0}, 7, v1
v_lshlrev_b32 v{t0}, 4, v{t0}
v_xor_b32 v{vo}, v{vo}, v{t0}
v_xor_b32 v{vp}, 32, v{vo}
s_lshl_b32 {u}, {FH}, 11
s_lshl_b32 {w}, {RG}, 5
s_add_u32 {u}, {u}, {w}
s_add_u32 {u}, {u}, %d
v_add_u32 v{vw}, {u}, v{vw}""" % (lds_base, lds_base, lds_base + 8192), opt=opt, **e)

def s2_compute(keep, M, D, Z, Wr, T, X, lds_base, opt):
    e = dict(keep=keep, vl=T, vr=T + 1, vw=T + 2, vb=T + 5, va=T + 6, t0=X, t1=X + 1, t2=X + 2, t3=X + 3)
    k = dict(opt=opt)
    rng = (lds_base, lds_base + 16384); rn2 = (lds_base + 16384, lds_base + 24576)
    q = F("ds_write_b128 v{vl}, v[%d:%d]\nds_write_b128 v{vl}, v[%d:%d] offset:1024\nds_write_b128 v{vl}, v[%d:%d] offset:8192\nds_write_b128 v{vl}, v[%d:%d] offset:9216"
          % (D, D + 3, D + 4, D + 7, Wr, Wr + 3, Wr + 4, Wr + 7), lds_w=rng, tag="s2", **k, **e)
    q += F("s_add_u32 {a}, {keep}, %d\ns_add_u32 {b}, {a}, 0x8000" % WS_B, **k, **e)
    q += L("s_barrier", need_lgkm=("s2",), **k)
    for pl in range(2):
        q += F("ds_read_b64_tr_b16 v[%d:%d], v{vr} offset:%d\nds_read_b64_tr_b16 v[%d:%d], v{vr} offset:%d"
               % (D + 4 * pl, D + 4 * pl + 1, pl * 32, D + 4 * pl + 2, D + 4 * pl + 3, pl * 32 + 2048), lds_r=rng, tag="lds", **k, **e)
    for pl in range(2):
        q += F("ds_read_b64_tr_b16 v[%d:%d], v{vw} offset:%d\nds_read_b64_tr_b16 v[%d:%d], v{vw} offset:%d"
               % (Wr + 4 * pl, Wr + 4 * pl + 1, pl * 4096, Wr + 4 * pl + 2, Wr + 4 * pl + 3, pl * 4096 + 1024), lds_r=rng, tag="lds", **k, **e)
    C = lambda a: V(M + (a * 3) * 4, 4)
    Sn = lambda a: V(M + (a * 3 + 1) * 4, 4)
    N = lambda a: V(M + (a * 3 + 2) * 4, 4)
    Ar, Ai = V(D, 4), V(D + 4, 4)
    for aa in range(2):
        zr, zi = V(Z + 4 * aa, 4), V(Z + 8 + 4 * aa, 4)
        q += [mf(zr, C(aa), Ar, None, opt), mf(zr, Sn(aa), Ai, zr, opt), mf(zi, C(aa), Ai, None, opt), mf(zi, N(aa), Ar, zi, opt)]
    for i in range(8):
        un = "v_lshlrev_b32 v{t2}, 16, v{wr}\nv_lshlrev_b32 v{t3}, 16, v{wi}\n" if i % 2 == 0 else "v_and_b32 v{t2}, 0xffff0000, v{wr}\nv_and_b32 v{t3}, 0xffff0000, v{wi}\n"
        q += F(un + """v_mul_f32 v{t0}, v{zi}, v{t3}
v_mul_f32 v{t1}, v{zr}, v{t3}
v_fma_f32 v{zr}, v{zr}, v{t2}, -v{t0}
v_fma_f32 v{zi}, v{zi}, v{t2}, v{t1}""", zr=Z + i, zi=Z + 8 + i, wr=Wr + i // 2, wi=Wr + 4 + i // 2, **k, **e)
    for pl in range(2):
        for d in range(4): q += L("v_cvt_pk_bf16_f32 v%d, v%d, v%d" % (D + 4 * pl + d, Z + 8 * pl + 2 * d, Z + 8 * pl + 2 * d + 1), **k)
    for aa in range(2):
        br = V(Z + 4 * aa, 4)
        q += [mf(br, Ar, C(aa), None, opt), mf(br, Ai, N(aa), br, opt)]
    for aa in range(2):
        bi = V(Z + 8 + 4 * aa, 4)
        q += [mf(bi, Ai, C(aa), None, opt), mf(bi, Ar, Sn(aa), bi, opt)]
    for pl in range(2):
        for aa in range(2):
            r = Wr + 4 * pl + 2 * aa; z = Z + 8 * pl + 4 * aa
            q += L("v_cvt_pk_bf16_f32 v%d, v%d, v%d\nv_cvt_pk_bf16_f32 v%d, v%d, v%d" % (r, z, z + 1, r + 1, z + 2, z + 3), **k)
            q += L("ds_write_b64 v%d, v[%d:%d] offset:%d" % (T + 3 + pl, r, r + 1, 16384 + aa * 2048), lds_w=rn2, tag="s2", **k)
    q += L("s_barrier", need_lgkm=("s2", "lds"), **k)
    q += F("ds_read_b128 v[%d:%d], v{vb} offset:16384\nds_read_b128 v[%d:%d], v{vb} offset:17408" % (D, D + 3, D + 4, D + 7), lds_r=rn2, tag="lds", **k, **e)
    q += F("buffer_store_dwordx4 v[%d:%d], v{va}, {WS}, {a} offen sc1\nbuffer_store_dwordx4 v[%d:%d], v{va}, {WS}, {b} offen sc1"
           % (D, D + 3, D + 4, D + 7), tag="pub2", **k, **e)
    return q

def twiddle_D(TW, T):
    vs, vj, vk, c0, c1, s0, s1 = T, T + 1, T + 2, T + 3, T + 4, T + 5, T + 6
    p = F("""s_lshl_b32 {u}, {FH}, 9
s_add_u32 {u}, {u}, {S2}
v_lshlrev_b32 v{vs}, 5, v1
v_add_u32 v{vs}, {u}, v{vs}
v_cvt_f32_u32 v{vs}, v{vs}
v_mul_f32 v{vs}, %s, v{vs}
v_lshlrev_b32 v{vj}, 4, v2
v_cvt_f32_u32 v{vj}, v{vj}
v_add_f32 v{vk}, v{vs}, v{vs}
v_cos_f32 v{vk}, v{vk}""" % f2h(1.0 / 2048), vs=vs, vj=vj, vk=vk)
    for par in range(2):
        p += L("""v_add_f32 v%d, %s, v%d
v_add_f32 v%d, %s, v%d
v_mul_f32 v%d, v%d, v%d
v_mul_f32 v%d, v%d, v%d
v_cos_f32 v%d, v%d
v_cos_f32 v%d, v%d
v_sin_f32 v%d, v%d
v_sin_f32 v%d, v%d""" % (s0, f2h(float(par)), vj, s1, f2h(par + 2.0), vj, s0, s0, vs, s1, s1, vs, c0, s0, c1, s1, s0, s0, s1, s1))
        if par == 0: p += L("v_add_f32 v%d, v%d, v%d" % (vk, vk, vk))
        for jp in range(4):
            if jp:
                p += L("v_fma_f32 v%d, v%d, v%d, -v%d\nv_fma_f32 v%d, v%d, v%d, -v%d\nv_fma_f32 v%d, v%d, v%d, -v%d\nv_fma_f32 v%d, v%d, v%d, -v%d"
                       % (c0, vk, c1, c0, s0, vk, s1, s0, c1, vk, c0, c1, s1, vk, s0, s1))
            p += L("v_cvt_pk_bf16_f32 v%d, v%d, v%d\nv_cvt_pk_bf16_f32 v%d, v%d, v%d" % (TW + par * 8 + jp, c0, c1, TW + par * 8 + 4 + jp, s0, s1))
    return p

def stepD_loads(kb, RAW, opt=False):
    p = F("s_lshl_b32 {a}, {S2}, 12\ns_add_u32 {a}, {a}, %d\ns_lshl_b32 {b}, {kb}, 17\ns_add_u32 {b}, {b}, {a}" % WS_B, kb=kb, opt=opt)
    for i in range(4):
        p += F("buffer_load_dwordx4 v[%d:%d], v%d, {WS}, {b} offen offset:%d sc1" % (RAW + 4 * i, RAW + 4 * i + 3, V_L16, i * 1024), opt=opt)
    return p
def stepD_nyloads(NY, T, opt):
    p = F("s_add_u32 {a}, {a}, %d\nv_and_b32 v{t}, 1, v2\nv_lshlrev_b32 v{t}, 6, v{t}\nv_lshrrev_b32 v{n}, 1, v2\nv_lshl_add_u32 v{t}, v{n}, 17, v{t}" % (18 * KB_STRIDE), opt=opt, t=T, n=NY)
    for par in range(2):
        for pl in range(2):
            r = NY + (par * 2 + pl) * 4
            p += F("buffer_load_dwordx4 v[%d:%d], v%d, {WS}, {a} offen offset:%d sc1" % (r, r + 3, T, pl * 32 + par * 16), opt=opt)
    return p

def stepD_parts(RAW, NY, NB, TW, ACC, T, stage_base, kb, so, opt=False):
    k = dict(opt=opt)
    e = dict(vl=T, vr=T + 1, t0=T + 2, so=so, kb=kb)
    rng = (stage_base, stage_base + 16384)
    p = F("s_lshl_b32 {so}, {W}, 12\ns_add_u32 {so}, {so}, %d\nv_add_u32 v{vl}, {so}, v%d" % (stage_base, V_L16), **k, **e)
    p += F("""v_lshrrev_b32 v{vr}, 2, v1
v_lshl_add_u32 v{vr}, v2, 3, v{vr}
v_lshlrev_b32 v{vr}, 7, v{vr}
v_and_b32 v{t0}, 3, v1
v_lshl_add_u32 v{vr}, v{t0}, 3, v{vr}
v_add_u32 v{vr}, {so}, v{vr}""", **k, **e)
    for i in range(4):
        p += F("ds_write_b128 v{vl}, v[%d:%d] offset:%d" % (RAW + 4 * i, RAW + 4 * i + 3, i * 1024), lds_w=rng, priv=True, tag="lds", **k, **e)
    for par in range(2):
        for pl in range(2):
            r = RAW + (par * 2 + pl) * 4; o = par * 64 + pl * 32
            p += F("ds_read_b64_tr_b16 v[%d:%d], v{vr} offset:%d\nds_read_b64_tr_b16 v[%d:%d], v{vr} offset:%d" % (r, r + 1, o, r + 2, r + 3, o + 512),
                   lds_r=rng, priv=True, tag="lds", **k, **e)
    p += F("s_lshl_b32 {so}, {S2}, 1\ns_mul_i32 {so}, {so}, 18\ns_add_u32 {so}, {so}, {kb}\ns_lshl_b32 {so}, {so}, 1\ns_add_u32 {so}, {so}, {FH}\ns_lshl_b32 {so}, {so}, 10\ns_add_u32 {so}, {so}, %d" % WS_Y, **k, **e)
    ng = []
    for par in range(2):
        for d in range(4): ng += L("v_xor_b32 v%d, 0x80008000, v%d" % (NB + 4 * par + d, RAW + par * 8 + 4 + d), **k)
    mr = []
    for par in range(2):
        er = V(ACC + 8 * par, 4)
        mr += [mf(er, V(RAW + 8 * par, 4), V(TW + 8 * par, 4), None, opt), mf(er, V(NB + 4 * par, 4), V(TW + 8 * par + 4, 4), er, opt)]
    pt = []
    if not opt:
        pt = F("s_cmp_lg_u32 {C}, 0\ns_cbranch_scc1 L_nyd_KN") + L("v_cmp_eq_u32 vcc, 0, v1", opt="nyd")
        for par in range(2):
            for d in range(4):
                br, bi, nr, ni = RAW + 8 * par + d, RAW + 8 * par + 4 + d, NY + 8 * par + d, NY + 8 * par + 4 + d
                pt += L("v_xor_b32 v%d, 0x80008000, v%d\nv_cndmask_b32 v%d, v%d, v%d, vcc\nv_cndmask_b32 v%d, v%d, v%d, vcc" % (ni, ni, bi, bi, nr, br, br, ni), opt="nyd")
        pt += L("L_nyd_KN:")
    mi_ = []
    for par in range(2):
        ei = V(ACC + 8 * par + 4, 4)
        mi_ += [mf(ei, V(RAW + 8 * par + 4, 4), V(TW + 8 * par, 4), None, opt), mf(ei, V(RAW + 8 * par, 4), V(TW + 8 * par + 4, 4), ei, opt)]
    f = []
    for r in range(8):
        f += L("v_add_f32 v%d, v%d, v%d\nv_sub_f32 v%d, v%d, v%d" % (RAW + r, ACC + r, ACC + 8 + r, RAW + 8 + r, ACC + r, ACC + 8 + r), **k)
    for u in range(2):
        for d in range(4): f += L("v_cvt_pk_bf16_f32 v%d, v%d, v%d" % (RAW + 8 * u + d, RAW + 8 * u + 2 * d, RAW + 8 * u + 2 * d + 1), **k)
        f += F("buffer_store_dwordx4 v[%d:%d], v%d, {WS}, {so} offen sc1" % (RAW + 8 * u, RAW + 8 * u + 3, V_L16), tag="p8", **k, **e)
        if u == 0: f += F("s_add_u32 {so}, {so}, 36864", **k, **e)
    return p, ng, mr, pt, mi_, f

V_M0, V_ONE = 222, 3
SPINS = []
def signal(so):
    return F("buffer_atomic_add v%d, v%d, {WS}, %s offen sc1" % (V_ONE, V_M0, so))
def poll(vr, so, srdn="WS"):
    return F("buffer_load_dword v%d, v%d, {%s}, %s offen sc1" % (vr, V_M0, srdn, so))
def check(name, vr, so, exp, srdn="WS", sidx=None):
    p = F("v_readfirstlane_b32 {SP}, v%d\ns_cmp_ge_u32 {SP}, %s\ns_cbranch_scc0 L_sp%s_KN\nL_bk%s_KN:" % (vr, exp, name, name))
    st = ""
    if OPT['stamps'] and sidx is not None: st = "v_writelane_b32 v%d, s5, %d\n" % (VST[0], sidx)
    SPINS.append(("""L_sp{n}_KN:
s_mov_b32 s5, 0
L_sq{n}_KN:
s_sleep 1
buffer_load_dword v%d, v%d, {%s}, %s offen sc1
s_add_u32 s5, s5, 1
s_waitcnt vmcnt(0)
v_readfirstlane_b32 {SP}, v%d
%ss_cmp_ge_u32 s5, 0x80000
s_cbranch_scc1 L_bk{n}_KN
s_cmp_ge_u32 {SP}, %s
s_cbranch_scc0 L_sq{n}_KN
s_branch L_bk{n}_KN""" % (vr, V_M0, srdn, so, vr, st, exp)).format(n=name, **ENV))
    return p

def kernel_main(a):
    name = NAME + "_kernel"
    BI = OPT['BI']
    t0, t1 = SET[0], SET[0] + 1
    e = dict(t0=t0, t1=t1, DX=V_DX, DW=V_DW, DH=V_DH, DD=V_DD, RW=V_RW, RX=V_RX, RW1=V_RW + 3, RX1=V_RX + 3, HW=V_HW, HH=V_HH, L16=V_L16, L16B=V_L16B, VST_=V_ST)
    VPF, VDM = V_HH, V_ST
    def vaddr64(q):
        for i in q:
            if i.op == "v_add_co_u32": i.wr.append(('s', 'vcc')); i.rd = [r for r in i.rd if r != ('s', 'vcc')]
            if i.op == "v_addc_co_u32": i.wr.append(('s', 'vcc'))
        return q
    G = []
    def grp(kind, nm, need, **kw):
        d = dict(kind=kind, nm=nm, need=need, bar=False, xr=None, rate=2); d.update(kw); G.append(d); return d
    for sg in range(9):
        for tau in range(4):
            mat = 'G' if tau < 2 else 'U'
            g = grp('SB', 16 if tau == 3 else 8, [(mat, 0, 2 * sg), (mat, 0, 2 * sg + 1)], sg=sg, tau=tau, rate=(5 if tau == 3 else 2))
            if tau == 2 or (sg == 0 and tau == 0): g['bar'] = True
            if sg < 8 and tau in (2, 3): g['xr'] = (sg + 1, tau - 2)
    PS = {}
    for mat, b, st in [('G', 1, 3), ('U', 1, 2), ('G', 2, 0), ('U', 2, 1), ('G', 3, 3), ('U', 3, 2)]:
        PS[mat + str(b)] = len(G)
        for sl in range(6):
            for ap in range(2):
                g = grp('P1', 12, [(mat, b, 3 * sl + e_) for e_ in range(3)], st=st, sl=sl, ap=ap, ps=mat + str(b))
                if ap == 0 and (sl % BI == BI - 1): g['bar'] = True
    for hf, mat in enumerate(('HG', 'HU')):
        PS[mat] = len(G)
        for gi in range(6):
            g = grp('PH', 12, [(mat, (3 * gi + e_) >> 1) for e_ in range(3)], gi=gi, ps=mat, half=hf)
            if gi % 2 == 0: g['bar'] = True
    P2 = len(G); HU = PS['HU']
    seq = [(0, 0), (1, 0), (0, 1), (1, 1), (0, 2), (1, 2)] + [(u, gi) for u in range(2, 9) for gi in range(3)]
    for u, gi in seq:
        grp('P2', 24, [('D', u, 3 * gi + e_) for e_ in range(3)], cb=u, gi=gi, rate=OPT.get('r2', 4), bar=True)
    NG = len(G)
    G[P2 - 1]['bar'] = True
    def rdg(n): return n - 1 if n > P2 else n - 2
    iv = []; n = 0
    for g in G:
        if g['bar']: n += 1
        iv.append(n)
    def free_iv(gr):
        for k in range(gr, NG):
            if G[k]['bar']: return iv[k]
        return 10 ** 6
    def next_bar(gi):
        while not G[gi]['bar']: gi += 1
        return gi
    first = {}; fre = {}; order = []
    def use(key, rg_, done_g):
        if key not in first: first[key] = iv[rg_] if rg_ >= 0 else 0; order.append(key)
        fre[key] = max(fre.get(key, 0), free_iv(done_g))
    for q in range(4): use(('x', 0, q), -1, 1)
    ev = []
    for gi, g in enumerate(G):
        for k in g['need']: ev.append((rdg(gi), 0, k, gi))
        if g['xr']:
            for q in range(4): ev.append((gi, 1, ('x', g['xr'][0], q), 4 * g['xr'][0] + 1))
    ev.sort(key=lambda x: (x[0], x[1]))
    for r_, _, k, d_ in ev: use(k, r_, d_)
    order.sort(key=lambda k: first[k])
    fixed = {}
    for sg in range(9):
        s = 8 * (sg % 5)
        for e_ in range(2):
            fixed[('G', 0, 2 * sg + e_)] = s + e_; fixed[('U', 0, 2 * sg + e_)] = s + 2 + e_
        for q in range(4): fixed[('x', sg, q)] = s + 4 + q
    gS2 = PS['U2'] + 11
    gSD = P2 + OPT.get('sdat', 4); gQ = P2 + 16
    ga1 = next_bar(PS['G1'] + 5); gc1 = next_bar(PS['U2'] + 2); ga2 = next_bar(gS2 + 5); gc2 = HU + 2
    gh1 = next_bar(PS['HG'] + 4); gq1 = P2 + 1; gh2 = P2 + 7; gq2 = P2 + 12; gf8 = P2 + 11; gY = P2 + 17; gfa = P2 + OPT.get('faat', 26)
    res = [(0, 4, PS['G1'] - 1, NG - 1), (4, 1, PS['G1'] - 1, PS['G1']), (12, 6, gS2, gS2 + 1), (4, 4, PS['G2'], NG - 1), (8, 4, PS['G3'], gQ), (8, 3, gQ, NG - 1),
           (12, 4, PS['HG'], gQ + 1), (16, 2, P2, gQ + 1), (18, 4, gSD, gSD + 4)]
    resv = {pg: [] for pg in range(40)}
    for f_, npg, ga, gb in res:
        for pg in range(f_, f_ + npg): resv[pg].append((iv[ga], free_iv(gb + 1)))
    free_at = [-1] * 40; phys = {}; issue_grp = {}; qi = 0
    def ioff(k):
        if k[0] == 'D': return 0 if k[1] == 0 else ((k[1] - 1) & 3) * 128
        return k[1] * 128 if k[0] in 'GU' else 0
    def try_alloc(k, cur):
        for pg in ([fixed[k]] if k in fixed else range(39, -1, -1)):
            if free_at[pg] > cur or (pg == 0 and ioff(k) > 0): continue
            if any(not (fre[k] <= a_ or cur >= b_) for a_, b_ in resv[pg]): continue
            return pg
        return None
    cum = [0]
    for g in G: cum.append(cum[-1] + g['nm'])
    bar_grp = {iv[gi]: gi for gi, g in enumerate(G) if g['bar']}; bar_grp[0] = 0
    vt = {}; cnt_iv = {}
    for k in order:
        n_ = cnt_iv.get(first[k], 0); cnt_iv[first[k]] = n_ + 1
        vt[k] = cum[bar_grp[first[k]]] + n_ * (5 if k in fixed else 8)
    LA = lambda k: OPT.get('la0', 120) if k in fixed else OPT.get('la1', 400)
    NPRO = OPT.get('npro', 16)
    while qi < NPRO:
        k = order[qi]; phys[k] = try_alloc(k, -1); free_at[phys[k]] = fre[k]; issue_grp[k] = -1; qi += 1
    for gi, g in enumerate(G):
        g['dma'] = []
        while qi < len(order) and len(g['dma']) < g['rate']:
            k = order[qi]
            if vt[k] - cum[gi] > LA(k): break
            pg = try_alloc(k, iv[gi])
            if pg is None: break
            assert iv[gi] < first[k], ("late DMA", k, gi)
            phys[k] = pg; free_at[pg] = fre[k]; issue_grp[k] = gi; g['dma'].append(k); qi += 1
    assert qi == len(order), order[qi]
    print("dma per group:", "".join(str(len(g['dma'])) for g in G), file=sys.stderr)
    slk = {}
    for k in order:
        if issue_grp[k] >= 0:
            kk_ = k[:2] if k[0] in 'GUD' else k[:1]
            slk[kk_] = min(slk.get(kk_, 9999), cum[bar_grp[first[k]]] - cum[issue_grp[k] + 1])
    print("min DMA slack (mfmas):", slk, file=sys.stderr)
    V_D8 = TMP + 25
    def mkdma(k):
        tag = "pg%d" % first[k]; pb = phys[k] * 4096
        if k[0] == 'x':
            pre = []
            if k[2] == 0 and k[1] > 0:
                pre = F("s_cmp_eq_u32 {ROT}, %d\ns_cselect_b32 {SP}, -8, 1\nv_lshl_add_u32 v%d, {SP}, 7, v%d" % (9 - k[1], V_DX, V_DX))
            m_, d_ = dma(V_DX, 'X', S_XQ + k[2], pb, 0, tag)
            return (pre + [m_], d_) if pre else (m_, d_)
        if k[0] == 'G': return dma(V_DW, 'WG', S_KK + k[2], pb, ioff(k), tag)
        if k[0] == 'U': return dma(V_DW, 'WU', S_KK + k[2], pb, ioff(k), tag)
        if k[0] == 'HG': return dma(V_DH, 'WG', S_KK + 2 * k[1], pb, 0, tag)
        if k[0] == 'HU': return dma(V_DH, 'WU', S_KK + 2 * k[1], pb, 0, tag)
        return dma(V_DD if k[1] else V_D8, 'WD', (S_DK if k[1] < 5 else S_KK) + k[2], pb, ioff(k), tag)
    def mkx(kind, pg, va):
        m_ = F("s_add_u32 m0, {W1K}, %d" % (pg * 4096))[0]
        d_ = F("buffer_load_dwordx4 v%d, {WS}, m0 offen sc1 lds" % va, tag=kind, lds_w=(pg * 4096, pg * 4096 + 4096))[0]
        return m_, d_
    p = L("s_cmp_ge_u32 s2, 256\ns_cbranch_scc1 L_end_KN")
    if OPT['stamps']: p += L("v_mov_b32 v%d, 0" % VST[0])
    p += stamp(0)
    p += L("s_load_dwordx16 s[52:67], s[0:1], 0\ns_load_dwordx4 s[68:71], s[0:1], 64\ns_load_dwordx2 s[72:73], s[0:1], 80")
    p += vaddr64(L("s_getpc_b64 s[6:7]\nv_lshlrev_b32 v34, 5, v0\nv_mov_b32 v35, s7\nv_add_co_u32 v34, vcc, s6, v34\nv_addc_co_u32 v35, vcc, 0, v35, vcc"))
    p += [Ins("global_load_dword v%d, v[34:35], off" % VDM, 'vmem', V(34, 2), [])]
    p += F("""v_lshrrev_b32 v1, 6, v0
v_and_b32 v0, 63, v0
v_readfirstlane_b32 {W}, v1
v_and_b32 v1, 15, v0
v_lshrrev_b32 v2, 4, v0
s_and_b32 {C}, s2, 3
s_lshl_b32 {C}, {C}, 2
s_bfe_u32 {a}, s2, 0x20003
s_add_u32 {C}, {C}, {a}
s_lshr_b32 {ROT}, s2, 5
s_lshl_b32 {T}, {ROT}, 1
s_bfe_u32 {b}, s2, 0x10002
s_add_u32 {T}, {T}, {b}
s_lshl_b32 {a}, {a}, 1
s_add_u32 {ROT}, {ROT}, {a}
s_cmp_ge_u32 {ROT}, 9
s_cselect_b32 {a}, 9, 0
s_sub_u32 {ROT}, {ROT}, {a}
s_lshr_b32 {RG}, {W}, 1
s_and_b32 {FH}, {W}, 1
s_lshl_b32 {W1K}, {W}, 10
v_lshrrev_b32 v{DD}, 3, v0
s_lshl_b32 {a}, {W}, 3
v_add_u32 v{DD}, {a}, v{DD}
v_mul_u32_u24 v{DX}, %d, v{DD}
s_lshl_b32 {a}, {FH}, 2
v_add_u32 v{t0}, {a}, v2
v_xor_b32 v{t0}, v0, v{t0}
v_and_b32 v{t0}, 7, v{t0}
v_lshl_add_u32 v{DX}, v{t0}, 4, v{DX}
s_mul_i32 {a}, {T}, 2304
s_lshl_b32 {b}, {ROT}, 7
s_add_u32 {a}, {a}, {b}
v_add_u32 v{DX}, {a}, v{DX}
v_mul_u32_u24 v{DW}, 9216, v{DD}
v_bfe_u32 v{t0}, v0, 1, 2
v_and_b32 v{t1}, 1, v2
s_lshl_b32 {a}, {FH}, 1
v_or_b32 v{t1}, {a}, v{t1}
v_xor_b32 v{t1}, v{t1}, v{t0}
v_lshl_add_u32 v{DW}, v{t1}, 5, v{DW}
v_and_b32 v{t1}, 1, v0
v_lshl_add_u32 v{DW}, v{t1}, 4, v{DW}
s_mul_i32 {d}, {C}, 576
s_and_b32 {e}, {C}, 1
s_lshl_b32 {c}, {e}, 6
s_add_u32 {c}, {c}, {d}
v_add_u32 v{DW}, {c}, v{DW}""" % (32 * 1152), **e)
    for q in range(4): p += L("s_mov_b32 s%d, %d" % (S_XQ + q, (1024 * (q & 1) + (q >> 1)) * 1152))
    def skk(m):
        KS = 32 * 9216
        if m == 0: q = F("s_mul_i32 s%d, {ROT}, %d" % (S_KK, 2 * KS))
        else: q = F("s_add_u32 s%d, s%d, %d\ns_cmp_eq_u32 {ROT}, %d\ns_cselect_b32 s%d, 0, s%d" % (S_KK + 2 * m, S_KK + 2 * m - 2, 2 * KS, 9 - m, S_KK + 2 * m, S_KK + 2 * m))
        return q + L("s_add_u32 s%d, s%d, %d" % (S_KK + 2 * m + 1, S_KK + 2 * m, KS))
    p += skk(0) + skk(1)
    for d_, n_ in ((8, 2048 * 1152), (12, 576 * 9216), (16, 576 * 9216)): p += L("s_mov_b32 s%d, 0x%x\ns_mov_b32 s%d, 0x20000" % (d_ + 2, n_, d_ + 3))
    p += L("s_waitcnt lgkmcnt(0)")
    pro = [k for k in order if issue_grp[k] < 0]
    p += L("s_mov_b32 s8, s52\ns_and_b32 s9, s53, 0xffff")
    for k in pro[:4]: p += flat(mkdma(k))
    p += L("s_mov_b32 s12, s60\ns_and_b32 s13, s61, 0xffff\ns_mov_b32 s16, s62\ns_and_b32 s17, s63, 0xffff")
    for k in pro[4:8]: p += flat(mkdma(k))
    p += F("s_cmp_eq_u32 {RG}, 0\ns_cselect_b32 s54, s54, s56\ns_cselect_b32 s55, s55, s57")
    p += srd(32, 54, 2048 * 578) + srd(20, 64, 4608 * 1152) + srd(40, 66, 1152) + srd(28, 70, 256) + srd(24, 72, WS_BYTES)
    p += vaddr64(F("""s_lshr_b32 {a}, s2, 3
s_lshl_b32 {a}, {a}, 2
s_add_u32 {a}, {a}, {W}
s_lshl_b32 {a}, {a}, 9
s_add_u32 {a}, {a}, 8192
v_lshlrev_b32 v34, 3, v0
v_add_u32 v34, {a}, v34
v_mov_b32 v35, s7
v_add_co_u32 v34, vcc, s6, v34
v_addc_co_u32 v35, vcc, 0, v35, vcc"""))
    p += [Ins("global_load_dword v%d, v[34:35], off" % VDM, 'vmem', V(34, 2), [])]
    g1, g2 = gate_code(SET[2] + 16, SET[2] + 24, [FB + 8, FB + 9, FB + 10, FB + 11, FB + 20, FB + 21, FB + 22, FB + 23])
    p += g1 + srd(40, 68, 2048 * 1152)
    p += F("s_cmp_lg_u32 {C}, 0\ns_cbranch_scc1 L_nw_KN") + nyw_load(TMP + 24, "nw") + L("L_nw_KN:")
    p += F("s_cmp_lg_u32 s2, 0\ns_cbranch_scc1 L_z_KN")
    p += F("v_mov_b32 v36, 0\nv_mov_b32 v37, 0\nv_mov_b32 v38, 0\nv_mov_b32 v39, 0\nv_lshlrev_b32 v40, 4, v0\ns_lshl_b32 {a}, {W}, 12\ns_add_u32 {a}, {a}, %d" % WS_C, opt="z")
    for i in range(4): p += F("buffer_store_dwordx4 v[36:39], v40, {WS}, {a} offen offset:%d sc1" % (i * 1024), opt="z", tag="zero")
    p += L("L_z_KN:")
    for m in range(2, 9): p += skk(m)
    w = F("""s_lshl_b32 {S2}, {T}, 1
s_add_u32 {S2}, {S2}, {RG}
v_lshrrev_b32 v{RW}, 2, v1
v_lshlrev_b32 v{RW}, 7, v{RW}
v_lshl_add_u32 v{RW}, v2, 10, v{RW}
v_and_b32 v{t0}, 3, v1
v_lshl_add_u32 v{RW}, v{t0}, 3, v{RW}
v_bfe_u32 v{t0}, v1, 3, 1
v_and_b32 v{t1}, 1, v2
v_lshl_add_u32 v{t0}, v{t1}, 1, v{t0}
s_lshl_b32 {a}, {FH}, 1
v_xor_b32 v{t0}, {a}, v{t0}
v_lshl_add_u32 v{RW}, v{t0}, 5, v{RW}
v_xor_b32 v{RW1}, 32, v{RW}
v_lshrrev_b32 v{t0}, 1, v1
v_xor_b32 v{t0}, v{t0}, v2
v_lshlrev_b32 v{t0}, 4, v{t0}
v_lshl_add_u32 v{RX}, v1, 7, v{t0}
s_lshl_b32 {a}, {RG}, 13
v_add_u32 v{RX}, {a}, v{RX}
v_xor_b32 v{RX1}, 64, v{RX}""", **e)
    for b in (V_RW, V_RW + 3, V_RX, V_RX + 3):
        w += L("v_add_u32 v%d, 0x10000, v%d\nv_add_u32 v%d, 0x20000, v%d" % (b + 1, b, b + 2, b))
    w += F("""v_or_b32 v{m}, {W}, v0
v_min_u32 v{m}, 1, v{m}
v_lshlrev_b32 v{m}, 31, v{m}
v_mul_u32_u24 v{DD}, 1152, v{DD}
v_bfe_u32 v{t0}, v0, 1, 2
v_xor_b32 v{t0}, v{t0}, v2
v_lshl_add_u32 v{DD}, v{t0}, 5, v{DD}
v_and_b32 v{t1}, 1, v0
v_lshl_add_u32 v{DD}, v{t1}, 4, v{DD}
v_lshrrev_b32 v{DH}, 2, v0
s_lshl_b32 {a}, {W}, 4
v_add_u32 v{DH}, {a}, v{DH}
v_mul_u32_u24 v{DH}, 9216, v{DH}
v_lshl_add_u32 v{DH}, v{t1}, 4, v{DH}
v_bfe_u32 v{t0}, v0, 1, 1
v_lshrrev_b32 v{t1}, 5, v0
v_xor_b32 v{t0}, v{t0}, v{t1}
v_lshl_add_u32 v{DH}, v{t0}, 5, v{DH}
s_cmp_eq_u32 {e}, 0
s_cselect_b32 {a}, 512, 0
s_add_u32 {a}, {a}, {d}
v_add_u32 v{DH}, {a}, v{DH}
v_lshlrev_b32 v{L16}, 4, v0
v_add_u32 v{L16B}, 0x10000, v{L16}
s_lshl_b32 {a}, {FH}, 13
s_lshl_b32 {b}, {RG}, 12
s_add_u32 {a}, {a}, {b}
v_add_u32 v{HW}, {a}, v{L16}
s_lshl_b32 {HB}, {T}, 4
s_add_u32 {HB}, {HB}, {C}
s_mul_i32 {HB}, {HB}, 73728
s_add_u32 {HB}, {HB}, %d
s_mov_b32 {Q}, 0x3e800000
s_mov_b32 {NL}, %s
s_add_u32 {KB1}, {C}, 2
s_add_u32 {KB3}, {C}, 4
s_cmp_lt_u32 {KB3}, 18
s_cselect_b32 {KB3}, {KB3}, 0
s_mul_i32 {GA}, {T}, 12
s_add_u32 {GA}, {GA}, {C}
s_cmp_lt_u32 {C}, 12
s_cselect_b32 {GA}, {GA}, 0x1000
s_add_u32 {GB}, {GA}, 192
s_mul_i32 {a}, {C}, %d
s_mul_i32 {c}, {e}, %d
s_add_u32 s%d, {a}, {c}
s_cmp_eq_u32 {e}, 0
s_cselect_b32 {c}, %d, 0
s_add_u32 s%d, {a}, {c}
s_lshr_b32 {b}, {T}, 1
s_mul_i32 {b}, {b}, %d
s_add_u32 {a}, {a}, {b}
s_mul_i32 {b}, {W}, %d
s_add_u32 {a}, {a}, {b}
v_lshlrev_b32 v{pf}, 7, v0
v_add_u32 v{pf}, {a}, v{pf}
v_cmp_gt_u32 vcc, 27, v0
v_bfrev_b32 v{t0}, 1
s_lshl_b32 {S8}, {T}, 18
s_lshl_b32 {b}, {W}, 16
v_cndmask_b32 v{pf}, v{t0}, v{pf}, vcc
s_add_u32 {S8}, {S8}, {b}
s_lshl_b32 {b}, {C}, 10
s_add_u32 {S8}, {S8}, {b}""" % (WS_H, f2h(-math.log2(math.e)), 288 * 1152, 32 * 1152, S_DK, 256 * 1152, S_DK + 8, 36 * 1152, 9 * 1152), m=V_M0, pf=VPF, **e)
    for ks in range(1, 8): w += L("s_add_u32 s%d, s%d, %d" % (S_DK + ks, S_DK, ks * 32 * 1152))
    w += s2_scalars(ENV['GA'], ENV['WA'], ENV['SA']) + s2_scalars(ENV['GB'], ENV['WB'], ENV['SB'])
    TP = V_SIL
    TF = lambda kk: (SET[3] + 4 * kk) if kk < 8 else FB + 32
    TWA = lambda a_: (TMP + 8 * a_) if a_ < 3 else SET[3]
    w += t_setup(TP, ENV['C'])
    p += w
    parts = [(lambda kk=kk: t_frag(kk, TF(kk), SET[1], TP)) for kk in range(9)] + [lambda: twiddle_A(TWA, SET[0], range(OPT.get('ntw', 3)))]
    dstart = OPT.get('dst', 2); rest = pro[8:]
    for n_, f_ in enumerate(parts):
        p += f_()
        if n_ >= dstart and rest: p += flat(mkdma(rest.pop(0)))
    for k in rest: p += flat(mkdma(k))
    sec = Sec2()
    def FBUF(gi): return FB + 12 * (gi % 3) if gi <= P2 else FB + 12 * ((gi - P2) & 1)
    assert P2 % 3 == 0
    def frag_reads(gi):
        g = G[gi]; out = []
        for e_, k in enumerate(g['need']):
            pb = phys[k] * 4096
            if k[0] in 'GU':
                ap = g['tau'] & 1 if g['kind'] == 'SB' else g['ap']
                base, o, d2 = V_RW + 3 * ap, pb, 512
            elif k[0] in ('HG', 'HU'): base, o, d2 = V_RX, pb + ((3 * g['gi'] + e_) & 1) * 2048, 256
            else: base, o, d2 = V_RX + 3, pb, 2048
            r = FBUF(gi) + 4 * e_
            out.append(L("ds_read_b64_tr_b16 v[%d:%d], v%d offset:%d\nds_read_b64_tr_b16 v[%d:%d], v%d offset:%d"
                         % (r, r + 1, base + (o >> 16), o & 0xffff, r + 2, r + 3, base + (o >> 16), (o & 0xffff) + d2), lds_r=(pb, pb + 4096), tag="f%d" % gi))
        return out
    def x_reads(sg, e_):
        kk = 2 * sg + e_; out = []; pb = phys[('x', sg, 0)] * 4096
        for mi in range(4):
            o = pb + mi * 2048
            out += L("ds_read_b128 %s, v%d offset:%d" % (rs(XF(mi, kk)), V_RX + 3 * e_ + (o >> 16), o & 0xffff), lds_r=(pb, pb + 16384), tag="x%d" % sg)
        return [out[0:2], out[2:4]]
    def h_read(n_, tag):
        o = (n_ >> 3) * 8192 + (n_ & 7) * 1024
        return L("ds_read_b128 %s, v%d offset:%d" % (rs(HF(n_ & 7, n_ >> 3)), V_L16B if o >> 16 else V_L16, o & 0xffff), lds_r=(o, o + 1024), tag=tag)[0]
    def silu_a(st, n_=32):
        out = []
        for i in range(0, n_, 4):
            T = V_SIL + (i & 4); rr = range(st + i, st + i + 4)
            out += [F("v_mul_f32 v%d, {NL}, v%d" % (T + j, r))[0] for j, r in enumerate(rr)]
            out += [I("v_exp_f32 v%d, v%d" % (T + j, T + j)) for j in range(4)]
            out += [I("v_add_f32 v%d, 1.0, v%d" % (T + j, T + j)) for j in range(4)]
            out += [I("v_rcp_f32 v%d, v%d" % (T + j, T + j)) for j in range(4)]
            out += [I("v_mul_f32 v%d, v%d, v%d" % (r, r, T + j)) for j, r in enumerate(rr)]
        return out
    def silu_b(sm, sp, b):
        out = []
        for mi in range(4):
            d = sp + 4 * mi
            for ap in range(2):
                o = (ap * 4 + mi) * 4
                out += [I("v_mul_f32 v%d, v%d, v%d" % (sm + o + r, sm + o + r, sp + o + r)) for r in range(4)]
            for ap in range(2):
                q = sm + (ap * 4 + mi) * 4
                out += [I("v_cvt_pk_bf16_f32 v%d, v%d, v%d" % (d + 2 * ap + h, q + 2 * h, q + 2 * h + 1)) for h in range(2)]
            out += L("ds_write_b128 v%d, v[%d:%d] offset:%d" % (V_HW, d, d + 3, b * 16384 + mi * 1024), lds_w=(b * 16384, b * 16384 + 16384), tag="lds")
        return out
    def h_out(sp, b):
        out = F("s_add_u32 {HT}, {HB}, %d" % (b * 16384))
        for mi in range(4):
            out += F("buffer_store_dwordx4 v[%d:%d], v%d, {WS}, {HT} offen offset:%d sc1" % (sp + 4 * mi, sp + 4 * mi + 3, V_HW, mi * 1024), tag="gh1" if b < 3 else "gh2")
        return out
    def silu_bH(st):
        out = []
        for mi in range(4):
            gq, uq = st + 4 * mi, st + 16 + 4 * mi
            out += [I("v_mul_f32 v%d, v%d, v%d" % (gq + r, gq + r, uq + r)) for r in range(4)]
            out += [I("v_cvt_pk_bf16_f32 v%d, v%d, v%d" % (uq + h, gq + 2 * h, gq + 2 * h + 1)) for h in range(2)]
            out += L("ds_write_b64 v%d, v[%d:%d] offset:%d" % (V_HH, uq, uq + 1, mi * 1024), lds_w=(65536, 65536 + 8192), tag="lds")
        return out
    PACC = [SET[1], SET[2], SET[1], SET[3], SET[0], SET[2], SET[1], SET[3], SET[0]]
    def out_ops(cb):
        acc = PACC[cb]; out = []
        for ip in range(4):
            b = acc + 8 * ip
            if cb == 0: out += F("s_add_u32 {ST}, {S8}, 0x%x" % (WS_8 + ip * 16384))
            else: out += F("s_mov_b32 {ST}, 0x%x" % (WS_P + (cb - 5) * 131072 + ip * 8192))
            out += [I("v_cvt_pk_bf16_f32 v%d, v%d, v%d" % (b + d, b + 2 * d, b + 2 * d + 1)) for d in range(4)]
            out += F("buffer_store_dwordx4 v[%d:%d], v%d, {WS}, {ST} offen sc1" % (b, b + 3, V_ST if cb else V_L16), tag="p8" if cb == 0 else "pA" if cb < 7 else "pB")
        return out
    p += stamp(1) + L("s_barrier", need_vm=("pg0",)) + stamp(2)
    xa, xb = x_reads(0, 0), x_reads(0, 1)
    for r_ in [xa[0], xb[0]] + frag_reads(0) + [xa[1], xb[1]] + frag_reads(1): p += r_
    sec.stream(g2(), 40, 188, "gate")
    VP = TMP + 22
    HSP = OPT.get('hsp', 30)
    hq = {HU + 2: range(0, 6), HU + 3: range(6, 12), HU + 4: range(12, 18), HU + 5: range(18, 24), P2: range(24, 36), P2 + 1: range(36, 48), P2 + 2: range(48, 64), P2 + 3: range(64, 72)}
    qq = {P2 + 13: range(0, 16), P2 + 14: range(16, 36), P2 + 15: range(36, 54), P2 + 16: range(54, 72)}
    VQ, VY = V_DW, V_DH
    xd = {}
    for i in range(12): xd.setdefault(gq1 + (i * (gq2 - gq1)) // 12 + (1 if i >= 6 else 0) * 0, []).append(('q%d' % (i // 6), i, VQ))
    for i in range(12, 18): xd.setdefault(gq2 + (i - 12) // 3, []).append(('q2', i, VQ))
    for i in range(9): xd.setdefault(gY + i // 2, []).append(('y', i, VY))
    S2D = [SET[2] + 16, SET[2] + 24]; S2W = [TMP, TMP + 8]
    M2, Z2, S2T = SET[3], SET[2], SET[3] + 24
    KBX = "s_lshr_b32 {x}, {y}, 5\ns_cmp_eq_u32 {x}, 9\ns_cselect_b32 {x}, 0, {x}\ns_add_u32 {x}, {x}, {o}\ns_add_u32 {XA}, {T}, 34\ns_cmp_gt_u32 {y}, 288\ns_cselect_b32 {x}, {XA}, {x}\ns_lshl_b32 {x}, {x}, 7\ns_add_u32 {x}, {x}, %d\n" % WS_C
    kbx = lambda x, y, o: KBX.replace("{x}", "{%s}" % x).replace("{y}", "{%s}" % y).replace("{o}", str(o))
    W0 = "s_cmp_eq_u32 {W}, 0\ns_cselect_b32 {PE1}, {PE1}, 0\ns_cselect_b32 {PE2}, {PE2}, 0"
    RAW, RA2, NB, SDT = TMP, SET[3] + 16, FB + 24, FB + 32
    for gi, g in enumerate(G):
        base = sec.n(); fb = FBUF(gi); ms = []
        if g['kind'] == 'SB':
            st = SET[0] if g['tau'] < 2 else SET[1]
            for mi in range(4):
                for e_ in range(2):
                    acc = V(st + ((g['tau'] & 1) * 4 + mi) * 4, 4); kk = 2 * g['sg'] + e_
                    ms.append(mf(acc, V(fb + 4 * e_, 4), XF(mi, kk), acc if kk else None))
            if g['tau'] == 3:
                for mi in range(4):
                    for e_ in range(2):
                        kk = 2 * g['sg'] + e_
                        acc = V(SET[2] + 16 * (kk // 9) + 4 * mi, 4)
                        ms.append(mf(acc, XF(mi, kk), V(TF(kk % 9), 4), acc if kk % 9 else None))
        elif g['kind'] in ('P1', 'PH'):
            st = SET[g['st']] + 16 * g['ap'] if g['kind'] == 'P1' else SET[0] + 16 * g['half']
            k0 = 3 * (g['sl'] if g['kind'] == 'P1' else g['gi'])
            for mi in range(4):
                for e_ in range(3):
                    acc = V(st + 4 * mi, 4)
                    ms.append(mf(acc, V(fb + 4 * e_, 4), XF(mi, k0 + e_), acc if k0 + e_ else None))
        else:
            for mi in range(8):
                for e_ in range(3):
                    acc = V(PACC[g['cb']] + 4 * mi, 4)
                    ms.append(mf(acc, V(fb + 4 * e_, 4), HF(mi, 3 * g['gi'] + e_), acc if (g['gi'] or e_ or g['cb'] >= 5) else None))
        lg = ["f%d" % gi]; vm = []
        if g['kind'] == 'SB' and g['tau'] == 0: lg.append("x%d" % g['sg'])
        if g['kind'] == 'P2' and g['cb'] == 0: lg.append("h%d" % g['gi'])
        if g['kind'] == 'P2' and g['cb'] == 5: lg.append("r%d" % g['gi'])
        if g['bar']:
            vm.append("pg%d" % iv[gi]); lg.append("lds")
            for gx, tg in ((6, "zero"), (ga1, "pub1"), (ga2, "pub2"), (gfa, "pA"), (NG - 2, "y"), (gh1, "gh1"), (gh2, "gh2"), (gf8, "p8"), (P2 + 13, "q0"), (P2 + 14, "q1"), (P2 + 15, "q2")):
                if gi == gx: vm.append(tg)
        if gi == ga1: sec.block(base - 1, check("0", VP, "0", ENV['PE1'], "DBG", 27))
        if gi in (gc1, gc2):
            n_ = "1" if gi == gc1 else "2"
            sec.block(base - 1, check(n_ + "a", VP, ENV['PO1'], ENV['PE1'], sidx=28 if gi == gc1 else 29) + check(n_ + "b", VP + 1, ENV['PO2'], ENV['PE2']))
        if gi == gq1: sec.block(base - 1, check("q1", VP + 2, ENV['SB'], ENV['SM_'], sidx=22))
        if gi == gq2: sec.block(base - 1, check("q2", VP + 2, ENV['SB'], ENV['SM_'], sidx=23))
        if gi == gY: sec.block(base - 1, check("8", VP, ENV['PO1'], ENV['PE1'], sidx=26))
        if gi:
            if sec.blk.get(base - 1): sec.block(base - 1, [Need(vm, lg)])
            else: sec.at(base - 1, Need(vm, lg))
        for m_ in ms: sec.mfma(m_)
        nm = g['nm']; end = sec.n()
        sidx = None
        if g['kind'] in ('P1', 'PH') and PS[g['ps']] == gi: sidx = 3 + list(PS).index(g['ps'])
        if g['kind'] == 'P2' and (gi - P2) % 3 == 0: sidx = 11 + (gi - P2) // 3
        if OPT.get('diag') == 7:
            g0 = OPT.get('g0', 36); sp = OPT.get('gs', 4)
            sidx = 3 + (gi - g0) // sp if (g0 <= gi < g0 + 17 * sp and (gi - g0) % sp == 0) else None
        if OPT.get('diag') == 8: sidx = None
        gap = 0
        if g['bar']:
            sec.at(base, L("s_barrier", need_vm=tuple(vm), need_lgkm=tuple(lg))); gap = 1
        if sidx is not None and OPT['stamps']: sec.block(base, stamp(sidx))
        pairs = []
        for n_ in range(gi + 1, min(NG, gi + 3)):
            if rdg(n_) == gi: pairs += frag_reads(n_)
        if g['xr']: pairs += x_reads(*g['xr'])
        hr = [h_read(n_, "h%d" % (n_ // 24)) for n_ in hq.get(gi, [])] + [h_read(n_, "r%d" % (n_ // 24)) for n_ in qq.get(gi, [])]
        pairs += [hr[i:i + 2] for i in range(0, len(hr), 2)]
        avail = list(range(gap, nm - 1)); items = []
        dm = [mkdma(k) for k in g['dma']] + [mkx(*k) for k in xd.get(gi, [])]
        ip_, id_ = 0, 0
        early = g['kind'] == 'P2'
        while ip_ < len(pairs) or id_ < len(dm):
            if ip_ < len(pairs): items.append(('r', pairs[ip_])); ip_ += 1
            elif not items or items[-1][0] == 'd': items.append(('z', None))
            if id_ < len(dm) and (not early or ip_ >= min(len(pairs), 3)): items.append(('d', dm[id_])); id_ += 1
        assert len(items) <= len(avail), (gi, len(items), len(avail))
        pos = 0; slack = len(avail) - len(items); nd_left = len(dm)
        if hr: slack = 0
        for kind, it in items:
            if kind == 'r': sec.at(base + avail[pos], it)
            if kind == 'd':
                if isinstance(it[0], list): sec.block(base + avail[pos] - 1, it[0])
                else: sec.at(base + avail[pos] - 1, it[0])
                sec.at(base + avail[pos], it[1])
                sk = slack // max(1, nd_left); pos += sk; slack -= sk; nd_left -= 1
            pos += 1
        if gi == 6:
            q = F("s_cmp_lg_u32 s2, 0\ns_cbranch_scc1 L_zf_KN") + L("v_mov_b32 v31, 1", opt="zf")
            sec.block(end - 1, q + F("buffer_store_dword v31, v%d, {DBG}, 0 offen sc1" % V_M0, opt="zf") + L("L_zf_KN:"))
        if gi == 19: sec.block(end - 1, F("s_cmp_lg_u32 {C}, 0\ns_cbranch_scc1 L_nw2_KN") + nyw_store(TMP + 24, TMP + 25, 31, "nw2") + L("L_nw2_KN:"))
        if gi == 27: sec.stream(twiddle_A(TWA, SET[3] + 8, range(OPT.get('ntw', 3), 4)), end, end + 78, "twA")
        if gi == PS['G1'] - 1:
            e2 = dict(e); e2.update(t0=TMP + 24, t1=31)
            sw = F("""v_lshrrev_b32 v{RX}, 2, v1
v_lshl_add_u32 v{RX}, v2, 3, v{RX}
v_lshlrev_b32 v{RX}, 6, v{RX}
v_and_b32 v{t0}, 3, v1
v_lshl_add_u32 v{RX}, v{t0}, 3, v{RX}
v_and_b32 v{t1}, 1, v2
v_xor_b32 v{t1}, {FH}, v{t1}
v_lshl_add_u32 v{RX}, v{t1}, 5, v{RX}
v_lshrrev_b32 v{RX1}, 2, v1
v_lshl_add_u32 v{RX1}, v2, 2, v{RX1}
v_bfe_u32 v{t1}, v{RX1}, 1, 2
v_xor_b32 v{t1}, {W}, v{t1}
v_lshlrev_b32 v{RX1}, 7, v{RX1}
v_lshl_add_u32 v{RX1}, v{t1}, 5, v{RX1}
v_lshl_add_u32 v{RX1}, v{t0}, 3, v{RX1}
v_add_u32 v{d8}, 0x400, v{DD}
s_and_b32 {u}, {C}, 1
v_lshl_add_u32 v{DD}, {u}, 9, v{DD}
v_mov_b32 v{one}, 1""", d8=V_D8, one=V_ONE, **e2)
            for b in (V_RX, V_RX + 3): sw += L("v_add_u32 v%d, 0x10000, v%d\nv_add_u32 v%d, 0x20000, v%d" % (b + 1, b, b + 2, b))
            sw += F("s_cmp_eq_u32 {W}, 0\ns_cselect_b32 {PE1}, 1, 0\ns_lshr_b32 {PO1}, {C}, 1\ns_lshl_b32 {PO1}, {PO1}, 7\ns_add_u32 {PO1}, {PO1}, %d\ns_add_u32 {PO2}, {T}, 34\ns_cmp_lt_u32 {KB1}, 16\ns_cselect_b32 {PO2}, {PO2}, 8\ns_lshl_b32 {PO2}, {PO2}, 7\ns_add_u32 {PO2}, {PO2}, %d" % (WS_C, WS_C))
            sec.stream(sw, end - 38, end - 2, "sw")
            blk = step_A(SET[2], TWA, SET[3] + 8, TP, ENV['C'], 0)
            blk += F("s_cmp_lt_u32 {KB1}, 16\ns_cbranch_scc1 L_x1_KN")
            o = "x1"; s1 = Sec2(); XS = SET[3] + 8; XFr = SET[3] + 24
            s1.pre = t_setup(TP, ENV['KB1'], opt=o) + t_frag(0, XFr, XS, TP, opt=o)
            for kk in range(9):
                b0 = s1.n()
                for hh in range(2):
                    for mi in range(4):
                        acc = V(SET[2] + 16 * hh + 4 * mi, 4)
                        s1.mfma(mf(acc, XF(mi, kk + 9 * hh), V(XFr + 4 * (kk & 1), 4), acc if kk else None, o))
                if kk < 8: s1.stream(t_frag(kk + 1, XFr + 4 * ((kk + 1) & 1), XS, TP, opt=o), b0, b0 + 6)
            blk += s1.flatten() + step_A(SET[2], TWA, SET[3] + 8, TP, ENV['KB1'], 8704, opt=o) + L("L_x1_KN:")
            sec.block(end - 1, blk)
            sec.stream(poll(VP, "0", "DBG"), end, end + 12, "p0")
            sec.stream(silu_a(SET[0]), end, end + 200, "a0")
            sec.stream(silu_b(SET[0], SET[1], 0), end + 145, end + 286, "b0", "a0")
            sec.stream(h_out(SET[1], 0), end + 145, end + 428, "o0", "b0", HSP)
        if g['kind'] == 'P1' and g['sl'] == 5 and g['ap'] == 1:
            ps = g['ps']
            if ps == 'G1': sec.stream(silu_a(SET[3]), end + 2, end + 287 + 12 * (gc1 - PS['U2']) - 40, "a1", "a0")
            if ps == 'U1':
                sec.stream(silu_b(SET[3], SET[2], 1), end + 2, end + 143 + 12 * (gc1 - PS['U2']), "b1", "a1")
                sec.stream(h_out(SET[2], 1), end + 2, end + 284, "o1", "b1,o0", HSP)
            if ps == 'G2': sec.stream(silu_a(SET[0]), end + 2, end + 380, "a2", "a1")
            if ps == 'U2':
                sec.stream(silu_b(SET[0], SET[1], 2), end + 2, end + 286, "b2", "a2")
                sec.stream(h_out(SET[1], 2), end + 2, end + 300, "o2", "b2", HSP)
            if ps == 'G3': sec.stream(silu_a(SET[3]), end + 2, end + 144 + OPT.get('a3e', 100), "a3", "a2")
            if ps == 'U3':
                sec.stream(silu_b(SET[2], SET[3], 3), end + 2, end + 144 + 22, "b3", "a3")
                sec.stream(h_out(SET[3], 3), end + 2, end + 144 + 100, "o3", "b3,o2", 16)
        if g['kind'] == 'PH' and g['gi'] == 5:
            if g['half'] == 0: sec.stream(silu_a(SET[0], 16), end + 2, end + 72 + 54, "aH", "a3")
            else: sec.stream(silu_bH(SET[0]), end + 2, end + 70, "bH", "aH")
        for it in range(3):
            if gi == PS['G1'] + OPT.get('pfd0', 6) + it * OPT.get('pfdi', 12):
                i = F("buffer_load_dword v%d, v%d, {WD}, 0 offen" % (VDM, VPF))[0]
                if it < 2: i.wr = []
                sec.stream([i] + L("v_add_u32 v%d, %d, v%d" % (VPF, 27 * 128, VPF)), base, base + 10, "pf%d" % it)
        if gi == ga1: sec.stream(signal(ENV['PO1']) + signal(ENV['PO2']), base + 1, base + 11, "ar1")
        for r_, (gam, wo) in enumerate((('GA', 'WA'), ('GB', 'WB'))):
            if gi == PS['U1'] + OPT.get('w%dat' % r_, 1 + 12 * r_): sec.stream(s2_wloads(ENV[gam], ENV[wo], S2W[r_], TMP + 16, TMP + 17), base, base + 22, "w%d" % r_)
        if gi == gc1 - 6:
            q = F(kbx('PO1', 'GA', 0) + kbx('PO2', 'GB', 0)) + poll(VP, ENV['PO1']) + poll(VP + 1, ENV['PO2'])
            q += F("s_cmp_gt_u32 {GA}, 288\ns_cselect_b32 {PE1}, 0, 32\ns_cmp_gt_u32 {GB}, 288\ns_cselect_b32 {PE2}, 0, 32\n" + W0)
            sec.stream(q, base - 12, base + 50, "p1")
        if gi == gc1:
            sec.block(base, F("s_cmp_lg_u32 {GB}, 288\ns_cbranch_scc1 L_s2n_KN") + s2_wspecial(S2W[1], TMP + 16, TMP + 17, "s2n") + L("L_s2n_KN:"))
            q = s2_gaddr(S2T + 6, S2T + 7, False) + s2_dloads(ENV['GA'], ENV['SA'], S2D[0], S2T + 6, S2T + 7) + s2_dloads(ENV['GB'], ENV['SB'], S2D[1], S2T + 6, S2T + 7)
            sec.stream(q, base + 1, base + 30, "dl", "b1")
            sec.stream(dft32(M2, TMP + 16, False) + s2_addr(S2T, 12 * 4096, False), base + 2, base + 12 * (gS2 - gi) + 10, "s2pre", "dl")
        if gi == gS2:
            blk = []
            for r_, (gam, keep) in enumerate((('GA', 'SA'), ('GB', 'SB'))):
                o = "s2c%d" % r_
                blk += F("s_cmp_gt_u32 {%s}, 288\ns_cbranch_scc1 L_%s_KN" % (gam, o))
                blk += s2_compute(ENV[keep], M2, S2D[r_], Z2, S2W[r_], S2T, TMP + 16, 12 * 4096, o) + L("L_%s_KN:" % o)
            sec.block(end - 1, blk)
            q = F(kbx('PO1', 'GA', 9) + kbx('PO2', 'GB', 9))
            q += F("""s_lshl_b32 {u}, {FH}, 3
s_lshl_b32 {w}, {RG}, 12
s_add_u32 {u}, {u}, {w}
v_add_u32 v{HH}, {u}, v{L16B}
s_lshl_b32 {u}, {T}, 1
s_and_b32 {w}, {C}, 1
s_add_u32 {u}, {u}, {w}
s_lshl_b32 {u}, {u}, 19
s_lshl_b32 {w}, {W}, 15
s_add_u32 {u}, {u}, {w}
s_lshr_b32 {w}, {C}, 1
s_lshl_b32 {w}, {w}, 10
s_add_u32 {u}, {u}, {w}
v_add_u32 v{VST_}, {u}, v{L16}
s_lshl_b32 {XA}, {T}, 7
s_lshl_b32 {SB}, {C}, 2
s_add_u32 {XA}, {XA}, {SB}
s_add_u32 {XA}, {XA}, %d
s_xor_b32 {SB}, {XA}, 4
s_cmp_eq_u32 {W}, 0
s_cselect_b32 {SM_}, 1, 0""" % CL(50), **e)
            sec.stream(q[:18], end, end + 12 * (ga2 - gi - 1) - 2, "a2s")
            sec.stream(q[18:], end, end + 200, "a2t", "a2s")
        if gi == ga2: sec.stream(signal(ENV['PO1']) + signal(ENV['PO2']), base + 1, base + 11, "ar2")
        if gi == gc2 - 6:
            q = F("s_lshr_b32 {PO1}, {C}, 1\ns_lshl_b32 {PO1}, {PO1}, 7\ns_add_u32 {PO1}, {PO1}, %d\ns_mov_b32 {PO2}, %d" % (CL(9), CL(17))) + poll(VP, ENV['PO1']) + poll(VP + 1, ENV['PO2'])
            q += F("s_cmp_lt_u32 {C}, 2\ns_cselect_b32 {PE1}, 33, 32\ns_cmp_lt_u32 {KB3}, 16\ns_cselect_b32 {PE2}, 0, 32\n" + W0)
            sec.stream(q, base - 6, base + 30, "p2")
        if gi in (gh1, gh2): sec.stream(signal(ENV['XA']), base + 1, base + 10, "sh%d" % gi)
        if gi == gc2:
            q = stepD_loads(ENV['C'], RAW)
            for i in q:
                i.text = i.text.replace(ENV['a'], ENV['f']).replace(ENV['b'], ENV['g'])
                fx = lambda lst: [('s', 38) if r == ('s', 84) else ('s', 39) if r == ('s', 85) else r for r in lst]
                i.rd = fx(i.rd); i.wr = fx(i.wr)
            sec.stream(q, base + 1, base + 40, "sdl")
        if gi == HU + 3:
            q = poll(VP + 2, ENV['SB'])
            q += F("""s_xor_b32 {u}, {C}, 1
s_sub_u32 {w}, {u}, {C}
s_mul_i32 {w}, {w}, 73728
s_add_u32 {w}, {w}, {HB}
v_add_u32 v%d, {w}, v%d
s_and_b32 {w}, {u}, 1
s_mul_i32 {u}, {u}, %d
s_mul_i32 s%d, {w}, %d
s_add_u32 s%d, s%d, {u}
s_xor_b32 {w}, {w}, 1
s_mul_i32 {w}, {w}, %d
s_add_u32 s%d, {u}, {w}""" % (VQ, V_L16, 288 * 1152, S_KK, 32 * 1152, S_KK, S_KK, 256 * 1152, S_KK + 8))
            for ks in range(1, 8): q += L("s_add_u32 s%d, s%d, %d" % (S_KK + ks, S_KK, ks * 32 * 1152))
            sec.stream(q[:6], base + 6, base + 56, "pq0")
            sec.stream(q[6:], base + 6, base + 130, "pq1", "pq0")
        if gi == P2 + 1:
            blk = F("s_lshl_b32 {a}, {S2}, 12\ns_add_u32 {a}, {a}, %d\ns_cmp_lg_u32 {C}, 0\ns_cbranch_scc1 L_nyl_KN" % WS_B) + stepD_nyloads(RA2, SDT, "nyl") + L("L_nyl_KN:")
            blk += F("s_cmp_lt_u32 {KB3}, 16\ns_cbranch_scc1 L_d2l_KN") + stepD_loads(ENV['KB3'], RA2, opt="d2l") + L("L_d2l_KN:")
            sec.block(base, blk)
        if gi == P2 + 3:
            q = F("s_lshl_b32 {d}, {W}, 11\nv_add_u32 v%d, {d}, v%d" % (V_HH, V_L16B))
            q += L("ds_read_b128 v[%d:%d], v%d\nds_read_b128 v[%d:%d], v%d offset:1024" % (V_SIL, V_SIL + 3, V_HH, V_SIL + 4, V_SIL + 7, V_HH), lds_r=(65536, 73728), tag="lds")
            sec.stream(q, base + 1, base + 16, "hh1", "bH")
            q = F("buffer_store_dwordx4 v[%d:%d], v%d, {WS}, {HB} offen sc1\nbuffer_store_dwordx4 v[%d:%d], v%d, {WS}, {HB} offen offset:1024 sc1"
                  % (V_SIL, V_SIL + 3, V_HH, V_SIL + 4, V_SIL + 7, V_HH), tag="gh2")
            sec.stream(q, base + 20, base + 34, "hh2", "hh1")
            sec.stream(twiddle_D(SET[0], SET[0] + 16), base, base + 24 * (gSD - gi) + 68, "twD", "pq1,bH")
        if gi == gSD:
            SD = stepD_parts(RAW, RA2, NB, SET[0], SET[0] + 16, SDT, 18 * 4096, ENV['C'], ENV['SA'])
            sec.stream(SD[0], base + 1, base + 54, "sd0")
            sec.stream(SD[1], base + 60, base + 69, "sd1", "sd0")
        if gi == gSD + 2:
            for m_ in SD[2]: sec.mfma(m_)
            sec.block(sec.n() - 1, SD[3])
            for m_ in SD[4]: sec.mfma(m_)
            sec.stream(SD[5], sec.n() + 2, sec.n() + 44, "sd5")
        if gi == gSD + 4:
            blk = F("s_cmp_lt_u32 {KB3}, 16\ns_cbranch_scc1 L_d2_KN")
            for part in stepD_parts(RA2, None, NB, SET[0], SET[0] + 16, SDT, 18 * 4096, ENV['KB3'], ENV['SA'], opt="d2"): blk += part
            sec.block(end - 1, blk + L("L_d2_KN:"))
        if gi == gq2 - 2: sec.stream(F("s_lshl_b32 {SM_}, {SM_}, 1") + poll(VP + 2, ENV['SB']), base + 1, base + 8, "pq2")
        if gi == gf8 - 1:
            q = F("""s_lshl_b32 {PO1}, {T}, 7
s_add_u32 {PO1}, {PO1}, %d
s_cmp_eq_u32 {W}, 0
s_cselect_b32 {PE1}, 16, 0
s_lshr_b32 {PE2}, {C}, 2
s_lshl_b32 {u}, {T}, 2
s_add_u32 {u}, {u}, {PE2}
s_mul_i32 {u}, {u}, 36864
s_add_u32 {u}, {u}, %d
v_add_u32 v%d, {u}, v%d""" % (CL(18), WS_Y, VY, V_L16))
            sec.stream(q, base - 20, base + 22, "f8s")
        if gi == gf8: sec.stream(signal(ENV['PO1']), base + 1, base + 12, "f8")
        if gi == gY - 2: sec.stream(poll(VP, ENV['PO1']), base + 1, base + 22, "p8")
        if gi == gY + 3:
            q = F("""s_and_b32 {u}, {C}, 3
s_lshl_b32 {u}, {u}, 2
s_add_u32 {u}, {u}, {PE2}
s_lshl_b32 {w}, {T}, 4
s_add_u32 {u}, {u}, {w}
s_lshl_b32 {u}, {u}, 2
s_add_u32 {u}, {u}, {W}
s_lshl_b32 {u}, {u}, 12
s_add_u32 {u}, {u}, %d""" % WS_8)
            for i in range(4): q += F("buffer_load_dwordx4 v[%d:%d], v%d, {WS}, {u} offen offset:%d sc1" % (TMP + 4 * i, TMP + 4 * i + 3, V_L16, i * 1024))
            q += F("""s_lshl_b32 {u}, {T}, 1
s_and_b32 {w}, {C}, 1
s_add_u32 {u}, {u}, {w}
s_lshl_b32 {PO1}, {u}, 7
s_add_u32 {PO1}, {PO1}, %d
s_lshr_b32 {PE1}, {PE1}, 1
s_lshl_b32 {XA}, {u}, 2
s_add_u32 {XA}, {XA}, {RG}
s_lshl_b32 {XA}, {XA}, 2
s_and_b32 {w}, {C}, 2
s_add_u32 {XA}, {XA}, {w}
s_add_u32 {XA}, {XA}, {FH}
s_lshl_b32 {XA}, {XA}, 2
s_add_u32 {XA}, {XA}, {PE2}
s_lshl_b32 {XA}, {XA}, 13
s_add_u32 {XA}, {XA}, %d""" % (CL(66), WS_P))
            sec.stream(q, base, base + 90, "l8")
        if gi == gfa: sec.stream(signal(ENV['PO1']), base + 1, base + 8, "fa")
        if g['kind'] == 'P2' and g['gi'] == 2 and g['cb'] in (0, 5, 6, 7):
            sec.stream(out_ops(g['cb']), sec.n() + 2, sec.n() + (22 if g['cb'] == 0 else OPT.get('ow', 30)), "out%d" % g['cb'])
            if g['cb'] == 5: sec.stream(TL.pre1(), sec.n(), sec.n() + 200, "tp1", "out5,tp0")
            if g['cb'] == 6: sec.stream(TL.pre2(), sec.n(), sec.n() + 142, "tp2", "out6,tp1,l8,gl")
        if gi == P2 + 9: TL = Tail(out_ops, 0, VP); sec.stream(TL.pre0(), base, base + 180, "tp0")
        if gi == gY: sec.stream(TL.gl(), base + 1, base + 60, "gl", "tp0")
    p += sec.flatten(verbose=True)
    p += ([] if OPT.get('diag') == 8 else stamp(20)) + TL.main()
    p += stamp_out(2)
    emit(a, name, p, 512, accum=256)

class Tail:
    def __init__(self, out_ops, YB, VP):
        self.out_ops, self.YB, self.VP = out_ops, YB, VP
        self.ST = [SET[2], SET[2] + 16, SET[1]]
        self.FR = [SET[1] + 16, SET[1] + 24, FB + 24]
        self.CO, self.KD, self.VG4, self.G8, self.VS, self.SEL = [7, 8, 9], [10, 11, 12], 13, 14, 15, 24
        self.GV, self.VO, self.V8, self.VO8 = TMP + 16, 30, 31, 19
    def seeds(self, pc, n):
        cur = self.ST[pc] + 8 * n; g4 = self.G8 if pc == 2 else self.VG4; q = []
        for j in range(4): q += L("v_add_f32 v%d, %s, v%d" % (cur + j, f2h(16.0 * n + j), g4))
        for j in range(4): q += F("v_fma_f32 v%d, v%d, v%d, {Q}\nv_mul_f32 v%d, v%d, v%d" % (cur + 4 + j, cur + j, self.KD[pc], cur + j, cur + j, self.KD[pc]))
        for j in range(8): q += L("v_cos_f32 v%d, v%d" % (cur + j, cur + j))
        return q
    def frag(self, pc, n):
        cur = self.ST[pc] + 8 * (n & 1); prv = self.ST[pc] + 8 * ((n + 1) & 1); f = self.FR[pc] + 4 * (n & 1); q = []
        if n >= 2:
            for j in range(8): q += L("v_fma_f32 v%d, v%d, v%d, -v%d" % (cur + j, self.CO[pc], prv + j, cur + j))
        if n == 0:
            q += L("v_cmp_eq_f32 vcc, 0, v%d" % (self.G8 if pc == 2 else self.VG4))
            q += L("v_cvt_pk_bf16_f32 v%d, v%d, v%d\nv_cvt_pk_bf16_f32 v%d, v%d, v%d" % (f + 1, cur + 2, cur + 3, f + 3, cur + 6, cur + 7))
            q += L("v_cndmask_b32 v%d, v%d, 0.5, vcc\nv_cndmask_b32 v%d, v%d, v%d, vcc" % (f, cur, f + 2, cur + 4, self.VS))
            q += L("v_cvt_pk_bf16_f32 v%d, v%d, v%d\nv_cvt_pk_bf16_f32 v%d, v%d, v%d" % (f, f, cur + 1, f + 2, f + 2, cur + 5))
        else:
            for jp in range(4): q += L("v_cvt_pk_bf16_f32 v%d, v%d, v%d" % (f + jp, cur + 2 * jp, cur + 2 * jp + 1))
        return q
    def pre0(self):
        KD, CO, SEL, GV = self.KD, self.CO, self.SEL, self.GV
        p = F("""s_and_b32 {d}, {C}, 3
s_lshl_b32 {d}, {d}, 4
s_and_b32 {e}, {C}, 1
s_lshl_b32 {e}, {e}, 2
s_add_u32 {e}, {e}, {RG}
s_lshl_b32 {e}, {e}, 2
s_and_b32 {a}, {C}, 2
s_add_u32 {e}, {e}, {a}
s_add_u32 {e}, {e}, {FH}
s_lshl_b32 {e}, {e}, 4
v_add_u32 v{ka}, {e}, v1
v_add_u32 v{kb_}, 0x80, v{ka}
v_add_u32 v{kc}, {d}, v1
v_add_u32 v{kc}, 0x200, v{kc}
v_and_b32 v{vs}, 1, v1
v_lshlrev_b32 v{vs}, 31, v{vs}
v_or_b32 v{vs}, 0.5, v{vs}
v_lshlrev_b32 v{g4}, 2, v2
v_cvt_f32_u32 v{g4}, v{g4}
s_mul_i32 {a}, {W}, 80
v_cvt_f32_u32 v{g8}, {a}
v_add_f32 v{g8}, v{g8}, v{g4}""", ka=KD[0], kb_=KD[1], kc=KD[2], vs=self.VS, g4=self.VG4, g8=self.G8)
        for i in range(3): p += L("v_cvt_f32_u32 v%d, v%d\nv_mul_f32 v%d, %s, v%d" % (KD[i], KD[i], CO[i], f2h(1.0 / 36), KD[i]))
        for i in range(3): p += L("v_cos_f32 v%d, v%d" % (CO[i], CO[i]))
        for i in range(3): p += L("v_mul_f32 v%d, %s, v%d\nv_add_f32 v%d, v%d, v%d" % (KD[i], f2h(1.0 / 576), KD[i], CO[i], CO[i], CO[i]))
        p += L("""v_lshrrev_b32 v{a}, 2, v1
v_cmp_eq_u32 vcc, v{a}, v2
v_and_b32 v{b}, 1, v1
v_lshlrev_b32 v{b}, 4, v{b}
v_mov_b32 v{a}, 0x3f80
v_lshlrev_b32 v{b}, v{b}, v{a}
v_cndmask_b32 v{b}, 0, v{b}, vcc
v_and_b32 v{a}, 2, v1
v_cmp_eq_u32 vcc, 0, v{a}
v_mov_b32 v{s0}, 0
v_mov_b32 v{s1}, 0
v_cndmask_b32 v{s2}, 0, v{b}, vcc
v_cndmask_b32 v{s3}, v{b}, 0, vcc
v_mov_b32 v{s4}, 0
v_mov_b32 v{s5}, 0""".format(a=SEL + 4, b=SEL + 5, s0=SEL, s1=SEL + 1, s2=SEL + 2, s3=SEL + 3, s4=SEL + 4, s5=SEL + 5))
        return p
    def gl(self):
        GV = self.GV
        return F("""s_lshl_b32 {a}, {T}, 9
s_lshl_b32 {b}, {PE2}, 7
s_add_u32 {a}, {a}, {b}
s_add_u32 {a}, {a}, %d
s_add_u32 {b}, {a}, %d
v_lshlrev_b32 v{t}, 2, v1
buffer_load_dword v{g}, v{t}, {WS}, {a} offen sc1
buffer_load_dword v{g1}, v{t}, {WS}, {a} offen offset:64 sc1
buffer_load_dword v{g2}, v{t}, {WS}, {b} offen sc1
buffer_load_dword v{g3}, v{t}, {WS}, {b} offen offset:64 sc1""" % (WS_G, WS_O - WS_G), t=self.VO, g=GV, g1=GV + 1, g2=GV + 2, g3=GV + 3)
    def pre1(self):
        return self.seeds(0, 0) + self.seeds(0, 1) + self.seeds(1, 0) + self.seeds(1, 1)
    def pre2(self):
        p = self.seeds(2, 0) + self.seeds(2, 1)
        for pc in range(3): p += self.frag(pc, 0) + self.frag(pc, 1)
        sc_ = f2h(2.0 / (2048 * 576))
        p += F("""v_mul_f32 v{g}, %s, v{g}
v_mul_f32 v{g1}, %s, v{g1}
v_and_b32 v{o}, 31, v0
v_mul_u32_u24 v{o}, %d, v{o}
v_lshrrev_b32 v{t}, 5, v0
v_lshl_add_u32 v{o}, v{t}, 4, v{o}
s_and_b32 {a}, {PE2}, 1
s_lshl_b32 {a}, {a}, 10
s_lshr_b32 {b}, {PE2}, 1
s_add_u32 {a}, {a}, {b}
s_lshl_b32 {b}, {T}, 1
s_add_u32 {a}, {a}, {b}
s_mul_i32 {a}, {a}, 1152
s_lshl_b32 {d}, {d}, 1
s_add_u32 {d}, {d}, {a}
s_lshl_b32 {e}, {e}, 1
s_add_u32 {e}, {e}, {a}
s_mul_i32 {a}, {W}, 10240
v_add_u32 v{t}, {a}, v{l}
s_cmp_eq_u32 {W}, 0
s_cselect_b32 {a}, 0, 0x80000000
v_or_b32 v{o8}, {a}, v{o}
s_add_u32 {PO2}, {PO1}, 4""" % (sc_, sc_, 32 * 1152), g=self.GV, g1=self.GV + 1, o=self.VO, t=self.V8, l=V_L16, o8=self.VO8)
        return p
    def main(self):
        YB, VP, FR, SEL, GV, V8 = self.YB, self.VP, self.FR, self.SEL, self.GV, self.V8
        YF = 224; AC = [240, 248, SET[3]]
        SMQ = lambda pc, h: SET[3] + 8 + 8 * pc + 4 * h
        PAr = lambda i: A(4 * i, 4)
        PBr = lambda i: A(32 + 4 * i, 4)
        P8r = lambda i: V(TMP + 4 * i, 4)
        yr = (YB, YB + 36864)
        def yrd(n, va, o):
            r = YF + 8 * (n & 1)
            return L("ds_read_b128 v[%d:%d], v%d offset:%d\nds_read_b128 v[%d:%d], v%d offset:%d" % (r, r + 3, va, o, r + 4, r + 7, va, o + 1024), lds_r=yr)
        def pload(regs, i):
            q = F("buffer_load_dwordx4 %s, v%d, {WS}, {XA} offen offset:%d sc1" % (rs(regs), V_L16, (i % 4) * 1024))
            return q + (F("s_add_u32 {XA}, {XA}, 4096") if i % 4 == 3 else [])
        def summ(pc, regs, first):
            return [mf(V(SMQ(pc, h), 4), V(SEL + 2 - 2 * h, 4), regs, None if first else V(SMQ(pc, h), 4)) for h in range(2)]
        def combine(pc): return [I("v_mul_f32 v%d, v%d, v%d" % (AC[pc] + r, AC[pc] + r, GV + (r >> 2))) for r in range(8)]
        def combine2(pc): return [I("v_fma_f32 v%d, v%d, v%d, v%d" % (AC[pc] + r, SMQ(pc, r >> 2) + (r & 3), GV + 2 + (r >> 2), AC[pc] + r)) for r in range(8)]
        def store(b, so, off, va):
            q = []
            for d in range(4): q += L("v_cvt_pk_bf16_f32 v%d, v%d, v%d" % (b + d, b + 2 * d, b + 2 * d + 1))
            q += L("v_permlane16_swap_b32 v%d, v%d\nv_permlane16_swap_b32 v%d, v%d" % (b, b + 2, b + 1, b + 3))
            return q + F("buffer_store_dwordx4 v[%d:%d], v%d, {OUT}, %s offen offset:%d%s" % (b, b + 3, va, so, off, OPT.get('ofl', "")))
        p = ts(3) + yrd(0, V8, YB) + yrd(1, V8, YB + 2048) + self.out_ops(8) + poll(VP, ENV['PO1']) + ts(4)
        for i in range(4): p += summ(2, P8r(i), i == 0)
        for n in range(5):
            o = "q8" if n >= 3 else False
            if n == 3: p += F("s_cmp_eq_u32 {W}, 3\ns_cbranch_scc1 L_q8_KN")
            q = []
            if n == 3: q += yrd(3, V8, YB + 3 * 2048) + yrd(4, V8, YB + 4 * 2048) + self.frag(2, 3)
            for h in range(2):
                acc = V(AC[2] + 4 * h, 4)
                q.append(mf(acc, V(FR[2] + 4 * (n & 1), 4), V(YF + 8 * (n & 1) + 4 * h, 4), acc if n else None))
            if n == 0: q += yrd(2, V8, YB + 2 * 2048) + self.frag(2, 2)
            if n == 3: q += self.frag(2, 4)
            for i in q: i.opt = o
            p += q
        p += L("L_q8_KN:") + yrd(0, V_L16, YB)
        XB = 9 * 4096
        p += F("s_lshl_b32 {a}, {W}, 11\nv_add_u32 v%d, {a}, v%d" % (V8, V_L16)) + combine(2) + combine2(2)
        p += L("ds_write_b128 v%d, v[%d:%d] offset:%d\nds_write_b128 v%d, v[%d:%d] offset:%d" % (V8, AC[2], AC[2] + 3, XB, V8, AC[2] + 4, AC[2] + 7, XB + 1024), lds_w=(XB, XB + 8192), tag="r8")
        sec = Sec2()
        ksB, kcB = OPT.get('ksb', 0), OPT.get('kcb', 7)
        R8 = SET[0]
        for kb in range(18):
            b0 = sec.n()
            for pc in range(2):
                for h in range(2):
                    acc = V(AC[pc] + 4 * h, 4)
                    sec.mfma(mf(acc, V(FR[pc] + 4 * (kb & 1), 4), V(YF + 8 * (kb & 1) + 4 * h, 4), acc if kb else None))
            if kb >= 10:
                for m_ in summ(0, PAr(kb - 10), kb == 10): sec.mfma(m_)
            e0 = sec.n() - 1
            if kb < 17: sec.at(b0, yrd(kb + 1, V_L16, YB + (kb + 1) * 2048))
            if 1 <= kb < 17: sec.stream(self.frag(0, kb + 1) + self.frag(1, kb + 1), b0, e0)
            blk = []
            if kb == ksB:
                blk += ts(5) + check("A", VP, ENV['PO1'], ENV['PE1'], sidx=24) + ts(6) + L("s_barrier", need_vm=("pB",), need_lgkm=("r8",))
                blk += signal(ENV['PO2']) + poll(VP + 1, ENV['PO2']) + ts(7)
                for i in range(8): blk += pload(PAr(i), i)
                for i in range(8): blk += L("ds_read_b128 v[%d:%d], v%d offset:%d" % (R8 + 4 * i, R8 + 4 * i + 3, V_L16, XB + i * 1024), lds_r=(XB, XB + 8192))
                blk += F("s_add_u32 {XA}, {XA}, %d" % (2 * 131072 - 8192)) + ts(8)
            if kb == kcB:
                blk += ts(9) + check("B", VP + 1, ENV['PO2'], ENV['PE1'], sidx=25) + L("s_barrier") + ts(10)
                for i in range(8): blk += pload(PBr(i), i)
                blk += ts(11)
            if blk: sec.block(e0, blk)
        p += sec.flatten() + ts(12)
        for r in range(8): p += L("v_add_f32 v%d, v%d, v%d\nv_add_f32 v%d, v%d, v%d\nv_add_f32 v%d, v%d, v%d" % (R8 + r, R8 + r, R8 + 8 + r, R8 + 16 + r, R8 + 16 + r, R8 + 24 + r, R8 + r, R8 + r, R8 + 16 + r))
        p += store(R8, ENV['d'], 1024, self.VO8)
        p += combine(0) + combine2(0) + store(AC[0], ENV['e'], 0, self.VO) + combine(1)
        p += stamp(21)
        for i in range(8): p += summ(1, PBr(i), i == 0)
        p += combine2(1) + store(AC[1], ENV['e'], 256, self.VO)
        return p

if __name__ == "__main__":
    for x in sys.argv[2:]:
        k, v = x.split("=")
        OPT[k] = int(v) if v.lstrip("-").isdigit() else v.replace("_", " ")
    a = Asm()
    kernel_main(a)
    a.launches = ['; @launch grid=(256,1,1) block=(256,1,1) lds=163840']
    a(".fill 5120, 4, 0xbf800000")
    open(sys.argv[1], "w").write(a.text())
```

```python
import re, sys

def R(kind, lo, n=1):
    return [(kind, lo + i) for i in range(n)]
def V(lo, n=1): return R('v', lo, n)
def A(lo, n=1): return R('a', lo, n)
def S(lo, n=1): return R('s', lo, n)
def rs(regs):
    k, lo = regs[0]
    n = len(regs)
    for i, r in enumerate(regs):
        assert r == (k, lo + i), regs
    return "%s%d" % (k, lo) if n == 1 else "%s[%d:%d]" % (k, lo, lo + n - 1)

TRANS = ("v_exp_f32", "v_rcp_f32", "v_sin_f32", "v_cos_f32", "v_log_f32", "v_rsq_f32", "v_sqrt_f32")

class Ins:
    seq = 0
    def __init__(self, text, kind, rd=(), wr=(), **kw):
        self.text = text; self.kind = kind
        self.rd = list(rd); self.wr = list(wr)
        self.lds_r = kw.get("lds_r")
        self.lds_w = kw.get("lds_w")
        self.priv = kw.get("priv", False)
        self.tag = kw.get("tag")
        self.need_vm = kw.get("need_vm", ())
        self.need_lgkm = kw.get("need_lgkm", ())
        self.opt = kw.get("opt", False)
        self.mC = kw.get("mC", ())
        self.wide = kw.get("wide", False)
        self.passes = kw.get("passes", 4)
        self.op = text.split()[0] if text else ""
        self.trans = self.op.replace("_e32", "").replace("_e64", "") in TRANS
        Ins.seq += 1
        self.id = Ins.seq
    def cost(self):
        if self.kind == 'valu': return 8 if self.trans else 4
        return 4

_reg_re = re.compile(r"\b([vas])(\d+)\b|\b([vas])\[(\d+):(\d+)\]")
def parse_regs(tok):
    out = []
    for m in _reg_re.finditer(tok):
        if m.group(1): out.append((m.group(1), int(m.group(2))))
        else: out += R(m.group(3), int(m.group(4)), int(m.group(5)) - int(m.group(4)) + 1)
    if re.search(r"\bvcc\b", tok): out.append(('s', 'vcc'))
    if re.search(r"\bm0\b", tok): out.append(('s', 'm0'))
    if re.search(r"\bexec\b", tok): out.append(('s', 'exec'))
    return out

def split_ops(s):
    out, depth, cur = [], 0, ""
    for ch in s:
        if ch == "[" or ch == "(": depth += 1
        if ch == "]" or ch == ")": depth -= 1
        if ch == "," and depth == 0:
            out.append(cur.strip()); cur = ""
        else: cur += ch
    if cur.strip(): out.append(cur.strip())
    return out

RMW = ("v_writelane_b32", "v_fmac_f32", "v_dot2c_f32_bf16", "v_permlane32_swap_b32", "v_permlane16_swap_b32")
def I(text, **kw):
    text = text.strip()
    op = text.split()[0]
    rest = text[len(op):].strip()
    ops = split_ops(rest)
    rd, wr = [], []
    if op.startswith("v_mfma"):
        wr = parse_regs(ops[0]); rd = parse_regs(ops[1]) + parse_regs(ops[2]) + parse_regs(ops[3])
        return Ins(text, 'mfma', rd, wr, mC=parse_regs(ops[3]), passes=(8 if "32x32x16" in op else 4), **kw)
    if op.startswith("ds_read"):
        return Ins(text, 'ds', parse_regs(ops[1]), parse_regs(ops[0]), **kw)
    if op.startswith("ds_write"):
        return Ins(text, 'ds', parse_regs(rest), [], **kw)
    if op.startswith("ds_bpermute") or op.startswith("ds_swizzle"):
        return Ins(text, 'ds', parse_regs(",".join(ops[1:])), parse_regs(ops[0]), **kw)
    if op.startswith("buffer_load"):
        if rest.endswith(" lds"):
            return Ins(text, 'dma', parse_regs(rest) + [('s', 'm0')], [], **kw)
        w = parse_regs(ops[0])
        r = parse_regs(",".join(ops[1:]))
        return Ins(text, 'vmem', r, w, **kw)
    if op.startswith("buffer_store"):
        return Ins(text, 'vmem', parse_regs(rest), [], wide=("x4" in op or "x3" in op), **kw)
    if op.startswith("buffer_atomic"):
        w = parse_regs(ops[0]) if " sc0" in rest else []
        return Ins(text, 'vmem', parse_regs(rest), w, **kw)
    if op == "s_barrier": return Ins(text, 'bar', **kw)
    if op in ("s_nop", "s_setprio", "s_sleep"): return Ins(text, 'nop', **kw)
    if op == "s_waitcnt": return Ins(text, 'wait', **kw)
    if op.startswith("s_cbranch") or op == "s_branch" or op == "s_endpgm":
        return Ins(text, 'br', [('s', 'scc')] if "scc" in op else ([('s', 'exec')] if "exec" in op else ([('s','vcc')] if "vcc" in op else [])), [], **kw)
    if text.endswith(":"): return Ins(text, 'label', **kw)
    if op.startswith("s_load") or op.startswith("s_mem"):
        return Ins(text, 'smem', parse_regs(",".join(ops[1:])), parse_regs(ops[0]), **kw)
    if op.startswith("s_cmp"):
        return Ins(text, 'salu', parse_regs(rest), [('s', 'scc')], **kw)
    if op.startswith("s_"):
        wr = parse_regs(ops[0]); rd = parse_regs(",".join(ops[1:]))
        if op.startswith("s_cselect") or op.startswith("s_addc"): rd.append(('s', 'scc'))
        if not (op.startswith("s_mov") or op.startswith("s_cselect") or op.startswith("s_mul") or op.startswith("s_getreg")):
            wr.append(('s', 'scc'))
        if "saveexec" in op: wr.append(('s', 'exec')); rd.append(('s', 'exec'))
        return Ins(text, 'salu', rd, wr, **kw)
    if op.startswith("v_"):
        wr = parse_regs(ops[0]); rd = parse_regs(",".join(ops[1:]))
        b = op.replace("_e32", "").replace("_e64", "")
        if b in RMW: rd += wr
        if "permlane" in b and "swap" in b: wr = wr + parse_regs(ops[1])
        return Ins(text, 'valu', rd, wr, **kw)
    raise ValueError(text)

def L(text, **kw):
    return [I(t, **kw) for t in text.strip().split("\n") if t.strip()]

class Sec:
    def __init__(self):
        self.m = []
        self.pre = []
        self.pin = {}
        self.streams = []
    def n(self): return len(self.m)
    def mfma(self, ins): self.m.append(ins); return len(self.m) - 1
    def at(self, idx, ins):
        if not isinstance(ins, list): ins = [ins]
        if idx < 0: self.pre += ins
        else: self.pin.setdefault(idx, []).extend(ins)
    def stream(self, lst, start, end):
        self.streams.append([list(lst), start, end])
    def flatten(self, cap=8):
        out = list(self.pre)
        n = len(self.m)
        st = [dict(ops=s[0], pos=0, start=s[1], end=min(s[2], n - 1), tot=sum(i.cost() for i in s[0]), done=0) for s in self.streams]
        for g in range(n):
            out.append(self.m[g])
            pins = self.pin.get(g, [])
            out += pins
            room = cap - sum(4 for p in pins if p.kind in ('ds', 'dma', 'vmem', 'salu', 'valu', 'bar'))
            act = [s for s in st if s['start'] <= g and s['pos'] < len(s['ops'])]
            while True:
                best = None; bl = -1e9
                for s in act:
                    if s['pos'] >= len(s['ops']): continue
                    span = max(1, s['end'] - s['start'] + 1)
                    target = s['tot'] * min(1.0, (g - s['start'] + 1) / span)
                    lag = target - s['done']
                    c = s['ops'][s['pos']].cost()
                    must = g >= s['end'] or lag >= 3 * 8
                    if (must or (c <= room and lag > 0)) and (lag + (1e6 if must else 0)) > bl:
                        best = s; bl = lag + (1e6 if must else 0)
                if best is None: break
                ins = best['ops'][best['pos']]
                out.append(ins); best['pos'] += 1; best['done'] += ins.cost(); room -= ins.cost()
        for s in st:
            assert s['pos'] == len(s['ops']), "stream not drained"
        return out

def check_order(prog):
    def producers(seq):
        last = {}; res = {}
        for i in seq:
            res[i.id] = {r: last.get(r) for r in i.rd}
            for r in i.wr: last[r] = i.id
        return res
    a = producers(sorted(prog, key=lambda i: i.id)); b = producers(prog)
    byid = {i.id: i for i in prog}
    bad = 0
    for k in a:
        if a[k] != b[k]:
            for r in a[k]:
                if a[k][r] != b[k][r]:
                    bad += 1
                    if bad < 10:
                        f = lambda x: byid[x].text if x else None
                        print("ORDER VIOLATION at '%s' reg %s: logical producer '%s' scheduled producer '%s'" % (byid[k].text, r, f(a[k][r]), f(b[k][r])))
    assert bad == 0, "order violations: %d" % bad

def insert_waits(prog):
    out = []
    vm = []; lg = []
    def need(lst, idx, cur_opt):
        op = lst[idx]
        return sum(1 for y in lst[idx + 1:] if (not y.opt) or (y.opt == cur_opt))
    for i in prog:
        if i.kind == 'wait':
            m = re.search(r"vmcnt\((\d+)\)", i.text)
            if m and int(m.group(1)) == 0 and not i.opt:
                for y in vm: y.done_pos = len(out)
                vm = []
            m = re.search(r"lgkmcnt\((\d+)\)", i.text)
            if m and int(m.group(1)) == 0 and not i.opt:
                for y in lg: y.done_pos = len(out)
                lg = []
            out.append(i); continue
        touched = set(i.rd) | (set() if getattr(i, 'nowaw', False) else set(i.wr))
        nv = nl = None; iv = il = -1
        for k, y in enumerate(vm):
            if (set(y.wr) & touched) or (y.tag is not None and y.tag in i.need_vm): iv = k
        for k, y in enumerate(lg):
            if (set(y.wr) & touched) or (y.tag is not None and y.tag in i.need_lgkm): il = k
        parts = []
        if iv >= 0:
            nv = min(63, need(vm, iv, i.opt)); parts.append("vmcnt(%d)" % nv)
        if il >= 0:
            nl = min(15, need(lg, il, i.opt))
            if any(y.kind == 'smem' for y in lg): nl = 0; il = len(lg) - 1
            parts.append("lgkmcnt(%d)" % nl)
        if parts:
            w = Ins("s_waitcnt " + " ".join(parts), 'wait'); w.opt = i.opt
            def retire(lst, idx):
                keep = []
                for k, y in enumerate(lst):
                    if k <= idx and (not i.opt or y.opt == i.opt):
                        y.done_pos = len(out)
                    else: keep.append(y)
                return keep
            if iv >= 0: vm = retire(vm, iv)
            if il >= 0: lg = retire(lg, il)
            out.append(w)
        if i.kind == 'need': continue
        i.pos = len(out)
        out.append(i)
        if i.kind in ('vmem', 'dma'): i.done_pos = None; vm.append(i)
        if i.kind in ('ds', 'smem'): i.done_pos = None; lg.append(i)
    return out

def states(i):
    if i.kind == 'label': return 0
    if i.op == "s_nop": return int(i.text.split()[1]) + 1
    return 1

def insert_nops(prog):
    out = []
    W = 400
    for i in prog:
        need = 0
        dist = 0
        rd = set(i.rd); wr = set(i.wr)
        for p in reversed(out[-W:]):
            req = 0
            pw = set(p.wr)
            if p.kind == 'valu':
                vw = {r for r in pw if r[0] in 'va'}
                sw = {r for r in pw if r[0] == 's'}
                if i.kind == 'mfma' and vw & rd: req = max(req, 2)
                if i.kind == 'valu':
                    if p.trans and not i.trans and vw & rd: req = max(req, 1)
                    if "permlane" in i.op and vw & rd: req = max(req, 2)
                    if ("dpp" in i.text or "row_" in i.text or "quad_perm" in i.text) and vw & rd: req = max(req, 2)
                    if ("readfirstlane" in i.op or "readlane" in i.op) and vw & rd: req = max(req, 1)
                    if sw & rd: req = max(req, 2)
                if i.kind in ('vmem', 'dma') and sw & rd: req = max(req, 5)
                if i.kind in ('salu', 'br') and sw & rd: req = max(req, 2)
            if p.kind == 'mfma':
                big = {4: 8, 8: 12}[p.passes]
                if i.kind == 'mfma':
                    c = set(i.mC); ab = rd - c
                    if pw & ab: req = max(req, big)
                    if pw & c and list(i.mC) != list(p.wr): req = max(req, {4: 6, 8: 10}[p.passes])
                elif i.kind in ('valu', 'vmem', 'ds', 'dma'):
                    if pw & (rd | wr): req = max(req, big)
                    if i.kind == 'valu' and set(p.mC) & wr: req = max(req, {4: 3, 8: 7}[p.passes])
            if p.kind == 'salu' and ('s', 'm0') in pw and i.kind == 'dma': req = max(req, 1)
            if p.kind == 'vmem' and p.wide and not p.wr and wr & {r for r in p.rd if r[0] in 'va'}: req = max(req, 2)
            if req > dist: need = max(need, req - dist)
            if not (p.opt and p.opt != i.opt): dist += states(p)
            if dist >= 20: break
        while need > 0:
            k = min(need, 16)
            n = Ins("s_nop %d" % (k - 1), 'nop'); n.opt = i.opt
            out.append(n); need -= k
        out.append(i)
    return out

def check_lds(prog):
    bars = [i.pos for i in prog if i.kind == 'bar' and not i.opt]
    obars = [(i.pos, i.opt) for i in prog if i.kind == 'bar' and i.opt]
    import bisect
    def bar_between(a, b, o1=False, o2=False):
        k = bisect.bisect_right(bars, a)
        if k < len(bars) and bars[k] < b: return True
        return any(a < q < b and (o == o1 or o == o2) for q, o in obars)
    acc = [i for i in prog if i.lds_r or i.lds_w]
    G = 256
    lastw = {}; lastr = {}
    bad = 0
    def rep(kind, p, i):
        nonlocal bad
        bad += 1
        if bad < 10: print("LDS %s violation: '%s' (pos %d done %s) -> '%s' (pos %d)" % (kind, p.text, p.pos, p.done_pos, i.text, i.pos))
    def ok(p, i, samegroup):
        if p.priv and i.priv:
            if p.kind == 'ds' and i.kind == 'ds': return True
            return p.done_pos is not None and p.done_pos <= i.pos
        return p.done_pos is not None and bar_between(p.done_pos, i.pos, p.opt, i.opt)
    for i in acc:
        if i.lds_r:
            for g in range(i.lds_r[0] // G, (i.lds_r[1] + G - 1) // G):
                ws = lastw.get(g)
                assert ws, "read of never-written LDS: %s" % i.text
                for p in ws:
                    if not ok(p, i, False): rep("RAW", p, i)
                lastr.setdefault(g, []).append(i)
        if i.lds_w:
            for g in range(i.lds_w[0] // G, (i.lds_w[1] + G - 1) // G):
                rr = lastr.get(g, [])
                for p in rr:
                    if not ok(p, i, False): rep("WAR", p, i)
                if rr:
                    lastw[g] = [i]; lastr[g] = []
                else:
                    lastw.setdefault(g, []).append(i)
    assert bad == 0, "LDS violations: %d" % bad

def finish(prog, check=True):
    if check: check_order(prog)
    p = insert_waits(prog)
    if check: check_lds(p)
    p = insert_nops(p)
    return p

def stats(p):
    from collections import Counter
    c = Counter(i.kind for i in p)
    return dict(c)


def slots(i):
    k = i.kind
    if k == 'valu':
        return (2 if (i.trans or "permlane" in i.op) else 1, False)
    if k == 'ds':
        if i.op == "ds_write_b128": return (5, True)
        if i.op == "ds_write_b64": return (3, True)
        if i.op == "ds_write_b32": return (2, False)
        return (1, False)
    if k == 'dma': return (2, True)
    if k == 'vmem':
        return ((5 if i.wide else 3), True) if 'store' in i.op else (2, True)
    if k == 'bar': return (2, True)
    if k == 'need': return (0, False)
    return (1, False)

def is_scalar(i): return i.kind in ('salu', 'wait', 'nop', 'need')

def Need(vm=(), lgkm=(), regs=()):
    return Ins("", 'need', rd=regs, need_vm=tuple(vm), need_lgkm=tuple(lgkm))

class Sec2:
    def __init__(self):
        self.m = []; self.pre = []
        self.sc = {}
        self.pin = {}
        self.blk = {}
        self.streams = []
        self.smooth = False; self.margin = 4; self.eff = 0.98; self.hor = 200
    def n(self): return len(self.m)
    def mfma(self, ins): self.m.append(ins); return len(self.m) - 1
    def at(self, g, ins):
        for i in (ins if isinstance(ins, list) else [ins]):
            (self.sc if is_scalar(i) else self.pin).setdefault(g, []).append(i)
    def block(self, g, lst): self.blk.setdefault(g, []).extend(lst)
    def free(self, g):
        return not self.sc.get(g) and not self.pin.get(g)
    def room(self, g):
        r = 2 - sum(slots(i)[0] for i in self.pin.get(g, [])) - max(0, len(self.sc.get(g, [])) - 1)
        return r
    def stream(self, lst, start, end, name="", after=None, spacing=0):
        aft = [s for s in self.streams if after and s['name'] in after.split(",")]
        self.streams.append(dict(ops=list(lst), pos=0, start=start, end=end, name=name, after=aft, spacing=spacing, nb=0))
    def flatten(self, verbose=False):
        out = list(self.pre); n = len(self.m)
        over = 0; idle = 0
        self.over_at = {}
        def basecap(g):
            if any(slots(i)[1] for i in self.pin.get(g, [])): return 0
            return max(0, self.room(g))
        pref = [0]
        for g in range(n): pref.append(pref[-1] + basecap(g))
        def vcost(i): return 0 if is_scalar(i) else min(2, slots(i)[0])
        for s in self.streams:
            c = [vcost(i) for i in s['ops']]
            s['suf'] = [sum(c[k:]) for k in range(len(c) + 1)]
        byend = sorted(self.streams, key=lambda s: s['end'])
        def pressure(g):
            dem = 0; worst = 0.0
            for s in byend:
                if s['pos'] >= len(s['ops']): continue
                if s['end'] > g + self.hor: break
                dem += s['suf'][s['pos']]
                e = min(max(g, s['end'] - self.margin), n - 1)
                ex = dem - self.eff * (pref[e + 1] - pref[g])
                if ex > 0: worst = max(worst, ex / max(1, e - g + 1))
            return worst
        credit = 0.0
        for g in range(n):
            sc = list(self.sc.get(g, [])); vec = list(self.pin.get(g, []))
            room = self.room(g)
            excl = any(slots(i)[1] for i in vec)
            if excl: room = min(room, 0)
            bonus = 0
            if self.smooth:
                credit = min(2.0, credit + pressure(g))
                if credit >= 1.0 and not excl: bonus = int(credit); room += bonus
            act = sorted([s for s in self.streams if s['start'] <= g and s['pos'] < len(s['ops'])], key=lambda s: -1 if s['spacing'] else s['end'])
            took = set()
            while True:
                prog = False
                for s in act:
                    if s['pos'] >= len(s['ops']): continue
                    if any(t['pos'] < len(t['ops']) for t in s['after']): continue
                    i = s['ops'][s['pos']]
                    c, ex = slots(i)
                    force = g >= min(s['end'], n - 1)
                    if g < s['nb'] and not force: continue
                    if is_scalar(i):
                        unit = [i]
                        while s['pos'] + len(unit) < len(s['ops']) and ('s', 'scc') in s['ops'][s['pos'] + len(unit)].rd:
                            unit.append(s['ops'][s['pos'] + len(unit)])
                        left = len(s['ops']) - s['pos']
                        urgent = (min(s['end'], n - 1) - g) < 2 * left
                        if not sc and not excl and id(s) not in took and not (took and s['after']) and room >= len(unit) - 1:
                            sc += unit; room -= len(unit) - 1
                        elif (urgent and room >= len(unit)) or force: vec += unit; room -= len(unit)
                        else: continue
                        s['pos'] += len(unit) - 1
                    elif ex:
                        if not sc and not vec: vec.append(i); room -= bonus + c; bonus = 0; excl = True; room = min(room, 0)
                        elif force: vec.append(i); room -= c
                        else: continue
                    else:
                        if room >= c or force: vec.append(i); room -= c
                        else: continue
                    took.add(id(s))
                    if s['spacing'] and not is_scalar(i): s['nb'] = g + s['spacing']
                    s['pos'] += 1; prog = True
                    if s['pos'] == len(s['ops']): s['done_at'] = g
                    break
                if not prog: break
            if bonus:
                usedb = min(bonus, max(0, bonus - max(room, 0))); credit -= usedb; room -= bonus
            if room < 0: over -= room; self.over_at[g] = -room
            else: idle += room
            out.append(self.m[g]); out += sc + vec + self.blk.get(g, [])
        for s in self.streams:
            assert s['pos'] == len(s['ops']), "stream not drained " + s['name']
        if verbose:
            print("flatten: mfma %d overflow slots %d idle slots %d" % (n, over, idle), file=sys.stderr)
            reg = {}
            for g, o in self.over_at.items(): reg[g // 72 * 72] = reg.get(g // 72 * 72, 0) + o
            print("   overflow by region:", reg, file=sys.stderr)
            for s in self.streams:
                if s['name']: print("   stream %-10s %4d..%4d done at %d (%d ops)" % (s['name'], s['start'], s['end'], s.get('done_at', -1), len(s['ops'])), file=sys.stderr)
        return out
```

```python
import sys, math, struct
from asmlib import *
from fw import *

WS_A = 0x000000
WS_B = 0x300000
WS_Y = 0x3000000
WS_G = 0x600000
WS_O = 0x602000
WS_P = 0x800000
WS_C = 0x620000
WS_8 = 0x1c00000
WS_H = 0x3400000
CL = lambda n: WS_C + 128 * n
WS_N = 0x610000
KB_STRIDE = 131072
MF = "v_mfma_f32_16x16x32_bf16"
def f2h(x): return "0x%08x" % struct.unpack("<I", struct.pack("<f", x))[0]
def mf(d, a, b, c, opt=False):
    return I("%s %s, %s, %s, %s" % (MF, rs(d), rs(a), rs(b), rs(c) if c else "0"), opt=opt)
def F(text, opt=False, tag=None, **env):
    e = dict(ENV); e.update(env)
    kw = {}
    for k in ("lds_r", "lds_w", "priv", "need_vm", "need_lgkm"):
        if k in env: kw[k] = env[k]
    return L(text.format(**e), opt=opt, tag=tag, **kw)

ENV = dict(X="s[8:11]", WG="s[12:15]", WU="s[16:19]", WD="s[20:23]", WS="s[24:27]", DBG="s[28:31]", WP="s[32:35]", WA="s36", WB="s37", f="s38", g="s39", GW="s[40:43]", OUT="s[40:43]", PO1="s75", PO2="s76", PE1="s77", PE2="s78", XA="s83", HB="s46", HT="s47", S8="s44", SM_="s45",
           T="s79", C="s80", W="s81", W1K="s82", KB="s83", RG="s87", FH="s88", S2="s89", a="s84", b="s85", c="s86", d="s92", e="s93",
           Q="s94", KB3="s95", NL="s96", KB1="s97", GA="s98", GB="s99", SA="s100", SB="s101", ST="s90", SP="s91", u="s6", w="s7", ROT="s3")
S_KK, S_DK, S_XQ = 48, 66, 75
OPT = dict(stamps=False, BI=2, sc1p=True)
VST = [223]
def stamp(idx):
    if not OPT['stamps']: return []
    return L("s_memrealtime s[4:5]\ns_waitcnt lgkmcnt(0)\nv_writelane_b32 v%d, s4, %d\ns_memtime s[4:5]\ns_waitcnt lgkmcnt(0)\nv_writelane_b32 v%d, s4, %d" % (VST[0], idx, VST[0], 32 + idx))
def ts(idx):
    return stamp(idx) if OPT.get('diag') == 8 else []
def tp(idx):
    return stamp(idx) if OPT.get('diag') == 10 else []
def diag(n, idx):
    if OPT.get('diag', 0) != n: return []
    return L("s_waitcnt vmcnt(0)") + stamp(idx)
def stamp_out(kidx):
    if not OPT['stamps']: return []
    p = L("s_waitcnt vmcnt(0)") + stamp(31)
    p += F("s_cmp_lg_u32 {W}, 0\ns_cbranch_scc1 L_end_KN\ns_lshl_b32 s4, s2, 8\ns_add_u32 s4, s4, 0x%x\nv_lshlrev_b32 v0, 2, v0" % (STAMP_OFF + kidx * 262144))
    p += F("buffer_store_dword v%d, v0, {WS}, s4 offen" % VST[0])
    if OPT.get('lb') is not None:
        p += F("""s_cmp_lg_u32 s2, %d
s_cbranch_scc1 L_end_KN
v_readlane_b32 {a}, v%d, %d
v_readlane_b32 {b}, v%d, %d
s_nop 4
s_sub_u32 {a}, {b}, {a}
s_mul_i32 {a}, {a}, 10
s_min_u32 {a}, {a}, 200000
s_memrealtime s[4:5]
s_waitcnt lgkmcnt(0)
s_mov_b32 {b}, s4
L_leak_KN:
s_memrealtime s[4:5]
s_waitcnt lgkmcnt(0)
s_sub_u32 {c}, s4, {b}
s_cmp_lt_u32 {c}, {a}
s_cbranch_scc1 L_leak_KN""" % (OPT.get('lw', 5), VST[0], OPT['la'], VST[0], OPT['lb']))
    return p
def srd(d, b, n):
    return L("s_mov_b32 s%d, s%d\ns_and_b32 s%d, s%d, 0xffff\ns_mov_b32 s%d, 0x%x\ns_mov_b32 s%d, 0x20000" % (d, b, d + 1, b + 1, d + 2, n, d + 3))
def emit(a, name, prog, vg, accum=None):
    p = finish(prog)
    dr = OPT.get('drop', "")
    if 'd' in dr: p = [i for i in p if i.kind != 'dma']
    if 'b' in dr: p = [i for i in p if i.kind != 'bar']
    if 't' in dr: p = [i for i in p if not (i.kind == 'ds' and i.tag and i.tag.startswith('f'))]
    if 'v' in dr: p = [i for i in p if not getattr(i, 'silu', False)]
    if 'q' in dr: p = [i for i in p if not (i.kind == 'dma' and i.tag in ('q0', 'q1', 'q2'))]
    if 'y' in dr: p = [i for i in p if not (i.kind == 'dma' and i.tag == 'y')]
    if 'h' in dr: p = [i for i in p if i.tag not in ('gh1', 'gh2')]
    if '8' in dr: p = [i for i in p if i.tag != 'p8']
    if 'w' in dr: p = [i for i in p if not (i.kind == 'vmem' and 'dwordx4' in i.text and 's[32:35]' in i.text)]
    if 'P' in dr: p = [i for i in p if i.tag not in ('pA', 'pB')]
    if 'B' in dr: p = [i for i in p if i.tag not in ('pub1', 'pub2')]
    if 'L' in dr: p = [i for i in p if not (i.kind == 'vmem' and i.op == 'buffer_load_dwordx4' and 'sc1' in i.text)]
    if 'x' in dr:
        for i in p:
            if i.tag in ('gh1', 'gh2', 'pA', 'pB', 'p8', 'pub1', 'pub2'): i.text = i.text.replace(' sc1', '')
    if 's' in dr: p = [i for i in p if not (i.kind == 'vmem' and 's90' in i.text)]
    a.begin(name)
    for i in p: a(i.text.replace("KN", name))
    a("L_end_%s:\ns_endpgm" % name)
    for t in SPINS: a(t.replace("KN", name))
    a.end(name, vg, accum=accum)
    print(name, stats(p), file=sys.stderr)

def PL(): return (16384, 1024, 147456) if OPT.get('lay', 0) else (262144, 16384, 1024)
def WSP(): return OPT.get('wsp', WS_P)
def flat(t):
    o = []
    for x in t: o += x if isinstance(x, list) else [x]
    return o
def XF(mi, kk):
    n = kk * 4 + mi
    return A(4 * n, 4) if n < 64 else V(224 + 4 * (n - 64), 4)
def HF(mi, ks):
    n = ks * 8 + mi
    return XF(n & 3, n >> 2)
SET = [32, 64, 96, 128]
FB = 160
TMP = 196
V_DX, V_DW, V_DH, V_DD, V_RW, V_RX = 3, 4, 5, 6, 7, 13
V_HW, V_HH, V_L16, V_L16B, V_ST, V_SIL = 19, 20, 21, 22, 23, 24

def dma(vo, srdn, soff, pb, ioff, tag):
    assert pb - ioff >= 0
    m = F("s_add_u32 m0, {W1K}, %d" % (pb - ioff))[0]
    d = F("buffer_load_dwordx4 v%d, {%s}, s%d offen%s%s lds" % (vo, srdn, soff, (" offset:%d" % ioff) if ioff else "", OPT.get('xfl', "") if srdn == 'X' else OPT.get('wfl', "")), tag=tag, lds_w=(pb, pb + 4096))[0]
    return m, d

def gate_code(XQ, GQ, R):
    e = dict(va=R[2], vo=R[3], t0=R[4], t1=R[5], t2=R[6], t3=R[7])
    p = F("""v_lshrrev_b32 v{vo}, 5, v0
s_lshl_b32 {a}, {C}, 3
s_lshl_b32 {b}, {W}, 1
s_add_u32 {a}, {a}, {b}
v_add_u32 v{vo}, {a}, v{vo}
v_and_b32 v{t0}, 63, v{vo}
v_lshlrev_b32 v{t0}, 5, v{t0}
v_lshrrev_b32 v{t1}, 6, v{vo}
v_add_u32 v{t0}, v{t0}, v{t1}
s_lshl_b32 {a}, {T}, 1
v_add_u32 v{t0}, {a}, v{t0}
v_mul_u32_u24 v{t0}, 1152, v{t0}
v_and_b32 v{t1}, 31, v0
v_mul_u32_u24 v{t1}, 36, v{t1}
v_add_u32 v{t0}, v{t0}, v{t1}""", **e)
    for b_, s_, ad, sr in ((XQ, R[0], "t0", "X"), (GQ, R[1], "t1", "GW")):
        p += F("buffer_load_dwordx4 v[%d:%d], v{%s}, {%s}, 0 offen\nbuffer_load_dwordx4 v[%d:%d], v{%s}, {%s}, 0 offen offset:16\nbuffer_load_dword v%d, v{%s}, {%s}, 0 offen offset:32"
               % (b_, b_ + 3, ad, sr, b_ + 4, b_ + 7, ad, sr, s_, ad, sr), **e)
    def rest():
        q = []
        for n in range(9):
            q += F("""v_lshlrev_b32 v{t0}, 16, v{x}
v_lshlrev_b32 v{t1}, 16, v{y}
v_and_b32 v{t2}, 0xffff0000, v{x}
v_and_b32 v{t3}, 0xffff0000, v{y}
v_mul_f32 v{t0}, v{t0}, v{t1}
v_mul_f32 v{t2}, v{t2}, v{t3}
v_cvt_pk_bf16_f32 v{t0}, v{t0}, v{t2}
v_lshlrev_b32 v{t1}, 16, v{t0}
v_and_b32 v{t0}, 0xffff0000, v{t0}""", x=XQ + n if n < 8 else R[0], y=GQ + n if n < 8 else R[1], **e)
            q += F("v_add_f32 v{va}, v{t1}, v{t0}" if n == 0 else "v_add_f32 v{va}, v{va}, v{t1}\nv_add_f32 v{va}, v{va}, v{t0}", **e)
        for sh in (8, 4, 2, 1):
            q += F("v_add_f32_dpp v{va}, v{va}, v{va} row_ror:%d row_mask:0xf bank_mask:0xf" % sh, **e)
        q += F("""v_mov_b32 v{t0}, v{va}
v_and_b32 v{t1}, 31, v0
v_cmp_eq_u32 vcc, 0, v{t1}
v_permlane16_swap_b32 v{va}, v{t0}
v_add_f32 v{va}, v{va}, v{t0}
v_cvt_pk_bf16_f32 v{va}, v{va}, v{va}
v_lshlrev_b32 v{va}, 16, v{va}
v_mul_f32 v{va}, {NL}, v{va}
v_exp_f32 v{va}, v{va}
v_lshlrev_b32 v{vo}, 2, v{vo}
v_add_f32 v{va}, 1.0, v{va}
v_rcp_f32 v{va}, v{va}
v_bfrev_b32 v{t1}, 1
v_cvt_pk_bf16_f32 v{va}, v{va}, v{va}
v_lshlrev_b32 v{va}, 16, v{va}
v_sub_f32 v{t0}, 1.0, v{va}
v_cvt_pk_bf16_f32 v{t0}, v{t0}, v{t0}
v_lshlrev_b32 v{t0}, 16, v{t0}
v_cndmask_b32 v{vo}, v{t1}, v{vo}, vcc
s_lshl_b32 {u}, {T}, 9
s_add_u32 {u}, {u}, %d
s_add_u32 {w}, {u}, %d""" % (WS_G, WS_O - WS_G), **e)
        q += F("buffer_store_dword v{va}, v{vo}, {WS}, {u} offen sc1\nbuffer_store_dword v{t0}, v{vo}, {WS}, {w} offen sc1", tag="pub1", **e)
        return q
    return p, rest

def t_setup(P, kb, opt=False):
    e = dict(vk=P, vphi=P + 1, vco=P + 2, vd=P + 3, vmu=P + 4, vsg=P + 5, t=P + 6, kb=kb)
    return F("""v_lshrrev_b32 v{vk}, 2, v1
v_lshlrev_b32 v{vk}, 1, v{vk}
v_and_b32 v{t}, 1, v1
v_add_u32 v{vk}, v{vk}, v{t}
v_lshlrev_b32 v{vsg}, 31, v{t}
v_or_b32 v{vsg}, 1.0, v{vsg}
s_lshl_b32 {a}, {kb}, 4
s_lshl_b32 {b}, {FH}, 3
s_add_u32 {a}, {a}, {b}
v_add_u32 v{vk}, {a}, v{vk}
v_bfe_u32 v{vphi}, v1, 1, 1
v_cvt_f32_u32 v{vphi}, v{vphi}
v_mul_f32 v{vphi}, 0x3e800000, v{vphi}
v_add_u32 v{t}, {a}, v1
v_cmp_eq_u32 vcc, 2, v{t}
v_mov_b32 v{t}, 0x120
v_lshlrev_b32 v{vd}, 3, v2
v_cndmask_b32 v{vk}, v{vk}, v{t}, vcc
v_cndmask_b32 v{vphi}, v{vphi}, 0, vcc
v_mul_u32_u24 v{t}, {ROT}, v{vk}
v_mul_u32_u24 v{vco}, 7282, v{t}
v_lshrrev_b32 v{vco}, 16, v{vco}
v_mul_u32_u24 v{vco}, 9, v{vco}
v_sub_u32 v{t}, v{t}, v{vco}
v_cvt_f32_u32 v{t}, v{t}
v_fmac_f32 v{vphi}, 0x3de38e39, v{t}
v_cvt_f32_u32 v{vk}, v{vk}
v_mul_f32 v{vco}, %s, v{vk}
v_mul_f32 v{vk}, %s, v{vk}
v_cos_f32 v{vco}, v{vco}
v_add_u32 v{t}, {a}, v2
v_cmp_eq_u32 vcc, 0, v{t}
v_cvt_f32_u32 v{vd}, v{vd}
v_add_f32 v{vco}, v{vco}, v{vco}
v_cndmask_b32 v{vmu}, 1.0, 0, vcc""" % (f2h(1.0 / 18), f2h(1.0 / 576)), opt=opt, **e)

def t_frag(kk, f, ST, P, opt=False):
    cur = ST + 8 * (kk & 1); prv = ST + 8 * ((kk + 1) & 1); ops = []
    if kk < 2:
        for j in range(8): ops += L("v_add_f32 v%d, %s, v%d" % (cur + j, f2h(32.0 * kk + j), P + 3), opt=opt)
        for j in range(8): ops += L("v_fma_f32 v%d, v%d, v%d, v%d" % (cur + j, cur + j, P, P + 1), opt=opt)
        for j in range(8): ops += L("v_cos_f32 v%d, v%d" % (cur + j, cur + j), opt=opt)
    else:
        for j in range(8): ops += L("v_fma_f32 v%d, v%d, v%d, -v%d" % (cur + j, P + 2, prv + j, cur + j), opt=opt)
    for jp in range(4): ops += L("v_cvt_pk_bf16_f32 v%d, v%d, v%d" % (f + jp, cur + 2 * jp, cur + 2 * jp + 1), opt=opt)
    return ops

def twiddle_A(TW, T, tiles):
    vs, vj, p0, p1, c0, c1 = T, T + 4, T + 5, T + 6, T + 7, T + 8
    p = F("v_lshlrev_b32 v{vs}, 7, v2\nv_add_u32 v{vs}, {S2}, v{vs}\nv_cvt_f32_u32 v{vs}, v{vs}", vs=vs)
    for j in range(1, 4): p += L("v_add_f32 v%d, %s, v%d" % (vs + j, f2h(32.0 * j), vs))
    for a in tiles:
        p += L("v_lshl_add_u32 v%d, v1, 2, %d\nv_cvt_f32_u32 v%d, v%d\nv_mul_f32 v%d, %s, v%d" % (vj, a, vj, vj, vj, f2h(1.0 / 2048), vj))
        b = TW(a)
        for jp in range(2):
            p += L("""v_mul_f32 v%d, v%d, v%d
v_mul_f32 v%d, v%d, v%d
v_cos_f32 v%d, v%d
v_cos_f32 v%d, v%d
v_sin_f32 v%d, v%d
v_sin_f32 v%d, v%d
v_cvt_pk_bf16_f32 v%d, v%d, v%d
v_cvt_pk_bf16_f32 v%d, v%d, v%d""" % (p0, vs + 2 * jp, vj, p1, vs + 2 * jp + 1, vj, c0, p0, c1, p1, p0, p0, p1, p1, b + jp, c0, c1, b + 4 + jp, p0, p1))
            C = "v%d, v%d" % (c0, c1); nC = "-v%d, -v%d" % (c0, c1); Sn = "v%d, v%d" % (p0, p1); nS = "-v%d, -v%d" % (p0, p1)
            cc, ss = [(C, Sn), (nS, C), (nC, nS), (Sn, nC)][a]
            p += L("v_cvt_pk_bf16_f32 v%d, %s\nv_cvt_pk_bf16_f32 v%d, %s" % (b + 2 + jp, cc, b + 6 + jp, ss))
    return p

def step_A(ACC, TW, DF, P, kb, stg, fill=None, opt=False):
    k = dict(opt=opt)
    fill = fill or (lambda n: [])
    t0, t1, va, vb = DF + 8, DF + 9, DF + 10, DF + 11
    e = dict(va=va, vb=vb, t0=t0, kb=kb, L16=V_L16)
    p = F("""s_mul_i32 {a}, {RG}, 4352
s_lshl_b32 {b}, {FH}, 4
s_add_u32 {a}, {a}, {b}
s_add_u32 {a}, {a}, %d
v_mul_u32_u24 v{va}, 272, v1
v_lshl_add_u32 v{va}, v2, 2, v{va}
v_add_u32 v{va}, {a}, v{va}
s_mul_i32 {a}, {W}, 2176
s_add_u32 {a}, {a}, %d
v_lshl_add_u32 v{vb}, v2, 4, v{L16}
v_add_u32 v{vb}, {a}, v{vb}
s_lshl_b32 {c}, {W}, 11
s_lshl_b32 {a}, {T}, 13
s_lshl_b32 {b}, {kb}, 17
s_add_u32 {b}, {b}, {a}
s_add_u32 {b}, {b}, {c}""" % (stg, stg), **k, **e)
    for i in range(16): p += L("v_fma_f32 v%d, v%d, v%d, v%d" % (ACC + i, P + 5, ACC + 16 + i, ACC + i), **k)
    for i in range(8):
        p += L("v_add_f32 v%d, v%d, v%d\nv_sub_f32 v%d, v%d, v%d" % (ACC + 16 + i, ACC + i, ACC + 8 + i, ACC + 24 + i, ACC + i, ACC + 8 + i), **k)
    for i in range(8): p += L("v_cvt_pk_bf16_f32 v%d, v%d, v%d" % (DF + i, ACC + 16 + 2 * i, ACC + 17 + 2 * i), **k)
    T1, T2 = ACC, ACC + 16
    for a in range(4):
        for cs, D in ((0, T1), (1, T2)):
            p.append(mf(V(D + 4 * a, 4), V(DF + 4 * (a & 1), 4), V(TW(a) + 4 * cs, 4), None, opt))
            p += fill(2)
    rng = (stg, stg + 8704)
    for a in range(4):
        x, y = T1 + 4 * a, T2 + 4 * a
        p += L("""v_fma_f32 v%d, v%d, v%d, v%d
v_add_f32 v%d, v%d, v%d
v_cvt_pk_bf16_f32 v%d, v%d, v%d
v_fma_f32 v%d, v%d, v%d, -v%d
v_sub_f32 v%d, v%d, v%d
v_cvt_pk_bf16_f32 v%d, v%d, v%d""" % (t0, P + 4, y + 2, x, t1, x + 1, y + 3, DF + 2 * a, t0, t1, t0, P + 4, x + 2, y, t1, x + 3, y + 1, DF + 2 * a + 1, t0, t1), **k)
        p += L("ds_write2_b32 v%d, v%d, v%d offset0:%d offset1:%d" % (va, DF + 2 * a, DF + 2 * a + 1, 16 * a, 16 * a + 8), lds_w=rng, tag="sa", **k)
    if not opt:
        p += F("s_or_b32 {c}, {kb}, {FH}\ns_cmp_lg_u32 {c}, 0\ns_cbranch_scc1 L_ny_KN", kb=kb)
        o = "ny"
        q = F("""s_lshl_b32 {a}, {S2}, 12
s_add_u32 {a}, {a}, %d
v_bfe_u32 v{va}, v1, 2, 1
v_lshlrev_b32 v{va}, 6, v{va}
v_lshrrev_b32 v{t0}, 3, v1
v_lshl_add_u32 v{va}, v{t0}, 17, v{va}
v_and_b32 v{t0}, 3, v1
v_lshl_add_u32 v{va}, v{t0}, 2, v{va}
v_lshl_add_u32 v{va}, v2, 28, v{va}""" % (18 * KB_STRIDE), opt=o, va=va, t0=t0)
        for par in range(2):
            q += L("v_cvt_pk_bf16_f32 v%d, v%d, v%d\nv_cvt_pk_bf16_f32 v%d, -v%d, -v%d"
                   % (T1 + par, T1 + 4 * par + 2, T1 + 4 * par + 10, T2 + par, T2 + 4 * par + 2, T2 + 4 * par + 10), opt=o)
        for par in range(2):
            q += F("buffer_store_dword v%d, v{va}, {WS}, {a} offen offset:%d sc1\nbuffer_store_dword v%d, v{va}, {WS}, {a} offen offset:%d sc1"
                   % (T1 + par, par * 16, T2 + par, 32 + par * 16), opt=o, tag="pub1", va=va)
        p += q + L("L_ny_KN:")
    p += L("s_barrier", need_lgkm=("sa",), **k)
    p += L("ds_read_b128 v[%d:%d], v%d\nds_read_b128 v[%d:%d], v%d offset:1088" % (DF, DF + 3, vb, DF + 4, DF + 7, vb), lds_r=rng, tag="lds", **k)
    p += fill(16)
    p += F("buffer_store_dwordx4 v[%d:%d], v{L16}, {WS}, {b} offen sc1\nbuffer_store_dwordx4 v[%d:%d], v{L16}, {WS}, {b} offen offset:1024 sc1"
           % (DF, DF + 3, DF + 4, DF + 7), tag="pub1", **k, **e)
    return p

def dft32(M, T, opt):
    vi, vg, p0, p1, c0, c1 = T, T + 1, T + 2, T + 3, T + 4, T + 5
    k = dict(opt=opt)
    p = L("v_cvt_f32_u32 v%d, v1\nv_lshlrev_b32 v%d, 2, v2\nv_mul_f32 v%d, %s, v%d\nv_cvt_f32_u32 v%d, v%d" % (vi, vg, vi, f2h(1.0 / 32), vi, vg, vg), **k)
    for jp in range(2):
        p += L("""v_add_f32 v%d, %s, v%d
v_add_f32 v%d, %s, v%d
v_mul_f32 v%d, v%d, v%d
v_mul_f32 v%d, v%d, v%d
v_cos_f32 v%d, v%d
v_cos_f32 v%d, v%d
v_sin_f32 v%d, v%d
v_sin_f32 v%d, v%d
v_cvt_pk_bf16_f32 v%d, v%d, v%d
v_cvt_pk_bf16_f32 v%d, v%d, v%d""" % (p0, f2h(2.0 * jp), vg, p1, f2h(2.0 * jp + 1), vg, p0, p0, vi, p1, p1, vi, c0, p0, c1, p1, p0, p0, p1, p1, M + jp, c0, c1, M + 4 + jp, p0, p1), **k)
    p += L("v_and_b32 v%d, 1, v1\nv_mul_u32_u24 v%d, 0x8000, v%d\nv_lshl_add_u32 v%d, v%d, 16, v%d" % (vi, vi, vi, vi, vi, vi), **k)
    for b in (M, M + 4):
        for jp in range(2): p += L("v_xor_b32 v%d, v%d, v%d" % (b + 2 + jp, vi, b + jp), **k)
    for d in range(4):
        p += L("v_xor_b32 v%d, 0x80008000, v%d\nv_xor_b32 v%d, 0x80000000, v%d\nv_xor_b32 v%d, 0x80000000, v%d\nv_xor_b32 v%d, 0x8000, v%d"
               % (M + 8 + d, M + 4 + d, M + 12 + d, M + d, M + 16 + d, M + 4 + d, M + 20 + d, M + 4 + d), **k)
    return p

def nyw_load(r, o):
    return F("""s_lshl_b32 {a}, {T}, 7
s_lshl_b32 {b}, {FH}, 6
s_add_u32 {a}, {a}, {b}
v_add_u32 v{r}, {a}, v0
v_mul_u32_u24 v{r}, 578, v{r}
buffer_load_ushort v{r}, v{r}, {WP}, 0 offen offset:576""", opt=o, r=r)
def nyw_store(r, j, t, o):
    return F("""s_lshl_b32 {a}, {RG}, 12
s_lshl_b32 {b}, {T}, 8
s_add_u32 {a}, {a}, {b}
s_lshl_b32 {b}, {FH}, 7
s_add_u32 {a}, {a}, {b}
s_add_u32 {a}, {a}, %d
v_and_b32 v{j}, 14, v0
v_and_b32 v{t}, 1, v0
v_lshl_add_u32 v{j}, v{t}, 4, v{j}
v_and_b32 v{t}, 1, v2
v_lshl_add_u32 v{j}, v{t}, 6, v{j}
v_lshrrev_b32 v{t}, 1, v2
v_lshl_add_u32 v{j}, v{t}, 5, v{j}""" % WS_N, opt=o, j=j, t=t) + F("buffer_store_short v%d, v%d, {WS}, {a} offen sc1" % (r, j), opt=o, tag="pub1")

def s2_scalars(gam, wo, keep):
    return F("""s_and_b32 {b}, {gam}, 31
s_lshl_b32 {keep}, {b}, 7
s_lshl_b32 {b}, {b}, 1
s_add_u32 {b}, {b}, {FH}
s_mul_i32 {b}, {b}, 578
s_lshr_b32 {a}, {gam}, 5
s_lshl_b32 {wo}, {a}, 6
s_add_u32 {wo}, {wo}, {b}
s_lshl_b32 {a}, {a}, 1
s_add_u32 {a}, {a}, {RG}
s_lshl_b32 {a}, {a}, 17
s_add_u32 {keep}, {keep}, {a}
s_lshl_b32 {b}, {FH}, 16
s_add_u32 {keep}, {keep}, {b}""", gam=gam, wo=wo, keep=keep)
def s2_wloads(gam, wo, Wr, vw, t0):
    return F("""v_lshrrev_b32 v{vw}, 2, v0
v_mul_u32_u24 v{vw}, 36992, v{vw}
v_and_b32 v{t0}, 3, v0
v_lshl_add_u32 v{vw}, v{t0}, 4, v{vw}
s_cmp_lt_u32 {gam}, 288
s_cselect_b32 {f}, 0, 0x80000000
v_or_b32 v{vw}, {f}, v{vw}
s_add_u32 {f}, {wo}, %d
buffer_load_dwordx4 v[%d:%d], v{vw}, {WP}, {wo} offen
buffer_load_dwordx4 v[%d:%d], v{vw}, {WP}, {f} offen""" % (16 * 36992, Wr, Wr + 3, Wr + 4, Wr + 7), gam=gam, wo=wo, vw=vw, t0=t0)
def s2_wspecial(Wr, vw, t0, opt):
    return F("""s_lshl_b32 {a}, {RG}, 12
s_lshl_b32 {b}, {FH}, 6
s_add_u32 {a}, {a}, {b}
s_add_u32 {a}, {a}, %d
v_lshrrev_b32 v{vw}, 2, v0
v_lshlrev_b32 v{vw}, 7, v{vw}
v_and_b32 v{t0}, 3, v0
v_lshl_add_u32 v{vw}, v{t0}, 4, v{vw}
buffer_load_dwordx4 v[%d:%d], v{vw}, {WS}, {a} offen sc1
buffer_load_dwordx4 v[%d:%d], v{vw}, {WS}, {a} offen offset:2048 sc1""" % (WS_N, Wr, Wr + 3, Wr + 4, Wr + 7), opt=opt, vw=vw, t0=t0)
def s2_gaddr(va, t0, opt):
    return F("v_lshrrev_b32 v{va}, 3, v0\nv_lshlrev_b32 v{va}, 12, v{va}\nv_and_b32 v{t0}, 7, v0\nv_lshl_add_u32 v{va}, v{t0}, 4, v{va}", opt=opt, va=va, t0=t0)
def s2_dloads(gam, keep, D, va, vm):
    return F("""s_cmp_le_u32 {gam}, 288
s_cselect_b32 {f}, 0, 0x80000000
v_or_b32 v{vm}, {f}, v{va}
s_add_u32 {f}, {keep}, 0x8000
buffer_load_dwordx4 v[%d:%d], v{vm}, {WS}, {keep} offen sc1
buffer_load_dwordx4 v[%d:%d], v{vm}, {WS}, {f} offen sc1""" % (D, D + 3, D + 4, D + 7), keep=keep, gam=gam, va=va, vm=vm)

def s2_addr(T, lds_base, opt):
    e = dict(vl=T, vr=T + 1, vw=T + 2, vo=T + 3, vp=T + 4, vb=T + 5, t0=T + 7, L16=V_L16)
    return F("""s_lshl_b32 {u}, {W}, 11
s_add_u32 {u}, {u}, %d
v_add_u32 v{vl}, {u}, v{L16}
v_lshrrev_b32 v{t0}, 3, v0
v_lshlrev_b32 v{t0}, 4, v{t0}
v_xor_b32 v{vb}, v{vl}, v{t0}
v_lshrrev_b32 v{vr}, 2, v1
v_lshl_add_u32 v{vr}, v2, 2, v{vr}
v_lshlrev_b32 v{vw}, 6, v{vr}
v_lshlrev_b32 v{vr}, 7, v{vr}
v_and_b32 v{t0}, 3, v1
v_lshl_add_u32 v{vr}, v{t0}, 3, v{vr}
v_lshl_add_u32 v{vw}, v{t0}, 3, v{vw}
s_lshl_b32 {u}, {RG}, 12
s_lshl_b32 {w}, {FH}, 6
s_add_u32 {u}, {u}, {w}
s_add_u32 {u}, {u}, %d
v_add_u32 v{vr}, {u}, v{vr}
v_lshlrev_b32 v{vo}, 7, v1
v_lshl_add_u32 v{vo}, v2, 3, v{vo}
v_add_u32 v{vo}, {u}, v{vo}
v_and_b32 v{t0}, 7, v1
v_lshlrev_b32 v{t0}, 4, v{t0}
v_xor_b32 v{vo}, v{vo}, v{t0}
v_xor_b32 v{vp}, 32, v{vo}
s_lshl_b32 {u}, {FH}, 11
s_lshl_b32 {w}, {RG}, 5
s_add_u32 {u}, {u}, {w}
s_add_u32 {u}, {u}, %d
v_add_u32 v{vw}, {u}, v{vw}""" % (lds_base, lds_base, lds_base + 8192), opt=opt, **e)

def s2_compute(keep, M, D, Z, Wr, T, X, lds_base, opt):
    e = dict(keep=keep, vl=T, vr=T + 1, vw=T + 2, vb=T + 5, va=T + 6, t0=X, t1=X + 1, t2=X + 2, t3=X + 3)
    k = dict(opt=opt)
    rng = (lds_base, lds_base + 16384); rn2 = (lds_base + 16384, lds_base + 24576)
    q = F("ds_write_b128 v{vl}, v[%d:%d]\nds_write_b128 v{vl}, v[%d:%d] offset:1024\nds_write_b128 v{vl}, v[%d:%d] offset:8192\nds_write_b128 v{vl}, v[%d:%d] offset:9216"
          % (D, D + 3, D + 4, D + 7, Wr, Wr + 3, Wr + 4, Wr + 7), lds_w=rng, tag="s2", **k, **e)
    q += F("s_add_u32 {a}, {keep}, %d\ns_add_u32 {b}, {a}, 0x8000" % WS_B, **k, **e)
    q += L("s_barrier", need_lgkm=("s2",), **k)
    for pl in range(2):
        q += F("ds_read_b64_tr_b16 v[%d:%d], v{vr} offset:%d\nds_read_b64_tr_b16 v[%d:%d], v{vr} offset:%d"
               % (D + 4 * pl, D + 4 * pl + 1, pl * 32, D + 4 * pl + 2, D + 4 * pl + 3, pl * 32 + 2048), lds_r=rng, tag="lds", **k, **e)
    for pl in range(2):
        q += F("ds_read_b64_tr_b16 v[%d:%d], v{vw} offset:%d\nds_read_b64_tr_b16 v[%d:%d], v{vw} offset:%d"
               % (Wr + 4 * pl, Wr + 4 * pl + 1, pl * 4096, Wr + 4 * pl + 2, Wr + 4 * pl + 3, pl * 4096 + 1024), lds_r=rng, tag="lds", **k, **e)
    C = lambda a: V(M + (a * 3) * 4, 4)
    Sn = lambda a: V(M + (a * 3 + 1) * 4, 4)
    N = lambda a: V(M + (a * 3 + 2) * 4, 4)
    Ar, Ai = V(D, 4), V(D + 4, 4)
    for aa in range(2):
        zr, zi = V(Z + 4 * aa, 4), V(Z + 8 + 4 * aa, 4)
        q += [mf(zr, C(aa), Ar, None, opt), mf(zr, Sn(aa), Ai, zr, opt), mf(zi, C(aa), Ai, None, opt), mf(zi, N(aa), Ar, zi, opt)]
    for i in range(8):
        un = "v_lshlrev_b32 v{t2}, 16, v{wr}\nv_lshlrev_b32 v{t3}, 16, v{wi}\n" if i % 2 == 0 else "v_and_b32 v{t2}, 0xffff0000, v{wr}\nv_and_b32 v{t3}, 0xffff0000, v{wi}\n"
        q += F(un + """v_mul_f32 v{t0}, v{zi}, v{t3}
v_mul_f32 v{t1}, v{zr}, v{t3}
v_fma_f32 v{zr}, v{zr}, v{t2}, -v{t0}
v_fma_f32 v{zi}, v{zi}, v{t2}, v{t1}""", zr=Z + i, zi=Z + 8 + i, wr=Wr + i // 2, wi=Wr + 4 + i // 2, **k, **e)
    for pl in range(2):
        for d in range(4): q += L("v_cvt_pk_bf16_f32 v%d, v%d, v%d" % (D + 4 * pl + d, Z + 8 * pl + 2 * d, Z + 8 * pl + 2 * d + 1), **k)
    for aa in range(2):
        br = V(Z + 4 * aa, 4)
        q += [mf(br, Ar, C(aa), None, opt), mf(br, Ai, N(aa), br, opt)]
    for aa in range(2):
        bi = V(Z + 8 + 4 * aa, 4)
        q += [mf(bi, Ai, C(aa), None, opt), mf(bi, Ar, Sn(aa), bi, opt)]
    for pl in range(2):
        for aa in range(2):
            r = Wr + 4 * pl + 2 * aa; z = Z + 8 * pl + 4 * aa
            q += L("v_cvt_pk_bf16_f32 v%d, v%d, v%d\nv_cvt_pk_bf16_f32 v%d, v%d, v%d" % (r, z, z + 1, r + 1, z + 2, z + 3), **k)
            q += L("ds_write_b64 v%d, v[%d:%d] offset:%d" % (T + 3 + pl, r, r + 1, 16384 + aa * 2048), lds_w=rn2, tag="s2", **k)
    q += L("s_barrier", need_lgkm=("s2", "lds"), **k)
    q += F("ds_read_b128 v[%d:%d], v{vb} offset:16384\nds_read_b128 v[%d:%d], v{vb} offset:17408" % (D, D + 3, D + 4, D + 7), lds_r=rn2, tag="lds", **k, **e)
    q += F("buffer_store_dwordx4 v[%d:%d], v{va}, {WS}, {a} offen sc1\nbuffer_store_dwordx4 v[%d:%d], v{va}, {WS}, {b} offen sc1"
           % (D, D + 3, D + 4, D + 7), tag="pub2", **k, **e)
    return q

def twiddle_D(TW, T):
    vs, vj, vk, c0, c1, s0, s1 = T, T + 1, T + 2, T + 3, T + 4, T + 5, T + 6
    p = F("""s_lshl_b32 {u}, {FH}, 9
s_add_u32 {u}, {u}, {S2}
v_lshlrev_b32 v{vs}, 5, v1
v_add_u32 v{vs}, {u}, v{vs}
v_cvt_f32_u32 v{vs}, v{vs}
v_mul_f32 v{vs}, %s, v{vs}
v_lshlrev_b32 v{vj}, 4, v2
v_cvt_f32_u32 v{vj}, v{vj}
v_add_f32 v{vk}, v{vs}, v{vs}
v_cos_f32 v{vk}, v{vk}""" % f2h(1.0 / 2048), vs=vs, vj=vj, vk=vk)
    for par in range(2):
        p += L("""v_add_f32 v%d, %s, v%d
v_add_f32 v%d, %s, v%d
v_mul_f32 v%d, v%d, v%d
v_mul_f32 v%d, v%d, v%d
v_cos_f32 v%d, v%d
v_cos_f32 v%d, v%d
v_sin_f32 v%d, v%d
v_sin_f32 v%d, v%d""" % (s0, f2h(float(par)), vj, s1, f2h(par + 2.0), vj, s0, s0, vs, s1, s1, vs, c0, s0, c1, s1, s0, s0, s1, s1))
        if par == 0: p += L("v_add_f32 v%d, v%d, v%d" % (vk, vk, vk))
        for jp in range(4):
            if jp:
                p += L("v_fma_f32 v%d, v%d, v%d, -v%d\nv_fma_f32 v%d, v%d, v%d, -v%d\nv_fma_f32 v%d, v%d, v%d, -v%d\nv_fma_f32 v%d, v%d, v%d, -v%d"
                       % (c0, vk, c1, c0, s0, vk, s1, s0, c1, vk, c0, c1, s1, vk, s0, s1))
            p += L("v_cvt_pk_bf16_f32 v%d, v%d, v%d\nv_cvt_pk_bf16_f32 v%d, v%d, v%d" % (TW + par * 8 + jp, c0, c1, TW + par * 8 + 4 + jp, s0, s1))
    return p

def stepD_loads(kb, RAW, opt=False):
    p = F("s_lshl_b32 {a}, {S2}, 12\ns_add_u32 {a}, {a}, %d\ns_lshl_b32 {b}, {kb}, 17\ns_add_u32 {b}, {b}, {a}" % WS_B, kb=kb, opt=opt)
    for i in range(4):
        p += F("buffer_load_dwordx4 v[%d:%d], v%d, {WS}, {b} offen offset:%d sc1" % (RAW + 4 * i, RAW + 4 * i + 3, V_L16, i * 1024), opt=opt)
    return p
def stepD_nyloads(NY, T, opt):
    p = F("s_add_u32 {a}, {a}, %d\nv_and_b32 v{t}, 1, v2\nv_lshlrev_b32 v{t}, 6, v{t}\nv_lshrrev_b32 v{n}, 1, v2\nv_lshl_add_u32 v{t}, v{n}, 17, v{t}" % (18 * KB_STRIDE), opt=opt, t=T, n=NY)
    for par in range(2):
        for pl in range(2):
            r = NY + (par * 2 + pl) * 4
            p += F("buffer_load_dwordx4 v[%d:%d], v%d, {WS}, {a} offen offset:%d sc1" % (r, r + 3, T, pl * 32 + par * 16), opt=opt)
    return p

def stepD_parts(RAW, NY, NB, TW, ACC, T, stage_base, kb, so, opt=False):
    k = dict(opt=opt)
    e = dict(vl=T, vr=T + 1, t0=T + 2, so=so, kb=kb)
    rng = (stage_base, stage_base + 16384)
    p = F("s_lshl_b32 {so}, {W}, 12\ns_add_u32 {so}, {so}, %d\nv_add_u32 v{vl}, {so}, v%d" % (stage_base, V_L16), **k, **e)
    p += F("""v_lshrrev_b32 v{vr}, 2, v1
v_lshl_add_u32 v{vr}, v2, 3, v{vr}
v_lshlrev_b32 v{vr}, 7, v{vr}
v_and_b32 v{t0}, 3, v1
v_lshl_add_u32 v{vr}, v{t0}, 3, v{vr}
v_add_u32 v{vr}, {so}, v{vr}""", **k, **e)
    for i in range(4):
        p += F("ds_write_b128 v{vl}, v[%d:%d] offset:%d" % (RAW + 4 * i, RAW + 4 * i + 3, i * 1024), lds_w=rng, priv=True, tag="lds", **k, **e)
    for par in range(2):
        for pl in range(2):
            r = RAW + (par * 2 + pl) * 4; o = par * 64 + pl * 32
            p += F("ds_read_b64_tr_b16 v[%d:%d], v{vr} offset:%d\nds_read_b64_tr_b16 v[%d:%d], v{vr} offset:%d" % (r, r + 1, o, r + 2, r + 3, o + 512),
                   lds_r=rng, priv=True, tag="lds", **k, **e)
    p += F("s_lshl_b32 {so}, {S2}, 1\ns_mul_i32 {so}, {so}, 18\ns_add_u32 {so}, {so}, {kb}\ns_lshl_b32 {so}, {so}, 1\ns_add_u32 {so}, {so}, {FH}\ns_lshl_b32 {so}, {so}, 10\ns_add_u32 {so}, {so}, %d" % WS_Y, **k, **e)
    ng = []
    for par in range(2):
        for d in range(4): ng += L("v_xor_b32 v%d, 0x80008000, v%d" % (NB + 4 * par + d, RAW + par * 8 + 4 + d), **k)
    mr = []
    for par in range(2):
        er = V(ACC + 8 * par, 4)
        mr += [mf(er, V(RAW + 8 * par, 4), V(TW + 8 * par, 4), None, opt), mf(er, V(NB + 4 * par, 4), V(TW + 8 * par + 4, 4), er, opt)]
    pt = []
    if not opt:
        pt = F("s_cmp_lg_u32 {C}, 0\ns_cbranch_scc1 L_nyd_KN") + L("v_cmp_eq_u32 vcc, 0, v1", opt="nyd")
        for par in range(2):
            for d in range(4):
                br, bi, nr, ni = RAW + 8 * par + d, RAW + 8 * par + 4 + d, NY + 8 * par + d, NY + 8 * par + 4 + d
                pt += L("v_xor_b32 v%d, 0x80008000, v%d\nv_cndmask_b32 v%d, v%d, v%d, vcc\nv_cndmask_b32 v%d, v%d, v%d, vcc" % (ni, ni, bi, bi, nr, br, br, ni), opt="nyd")
        pt += L("L_nyd_KN:")
    mi_ = []
    for par in range(2):
        ei = V(ACC + 8 * par + 4, 4)
        mi_ += [mf(ei, V(RAW + 8 * par + 4, 4), V(TW + 8 * par, 4), None, opt), mf(ei, V(RAW + 8 * par, 4), V(TW + 8 * par + 4, 4), ei, opt)]
    f = []
    for r in range(8):
        f += L("v_add_f32 v%d, v%d, v%d\nv_sub_f32 v%d, v%d, v%d" % (RAW + r, ACC + r, ACC + 8 + r, RAW + 8 + r, ACC + r, ACC + 8 + r), **k)
    for u in range(2):
        for d in range(4): f += L("v_cvt_pk_bf16_f32 v%d, v%d, v%d" % (RAW + 8 * u + d, RAW + 8 * u + 2 * d, RAW + 8 * u + 2 * d + 1), **k)
        f += F("buffer_store_dwordx4 v[%d:%d], v%d, {WS}, {so} offen sc1" % (RAW + 8 * u, RAW + 8 * u + 3, V_L16), tag="p8", **k, **e)
        if u == 0: f += F("s_add_u32 {so}, {so}, 36864", **k, **e)
    return p, ng, mr, pt, mi_, f

V_M0, V_ONE = 222, 3
SPINS = []
def signal(so):
    return F("buffer_atomic_add v%d, v%d, {WS}, %s offen sc1" % (V_ONE, V_M0, so))
def poll(vr, so, srdn="WS"):
    return F("buffer_load_dword v%d, v%d, {%s}, %s offen sc1" % (vr, V_M0, srdn, so))
def check(name, vr, so, exp, srdn="WS", sidx=None):
    p = F("v_readfirstlane_b32 {SP}, v%d\ns_cmp_ge_u32 {SP}, %s\ns_cbranch_scc0 L_sp%s_KN\nL_bk%s_KN:" % (vr, exp, name, name))
    st = ""
    if OPT['stamps'] and sidx is not None: st = "v_writelane_b32 v%d, s5, %d\n" % (VST[0], sidx)
    SPINS.append(("""L_sp{n}_KN:
s_mov_b32 s5, 0
L_sq{n}_KN:
s_sleep 1
buffer_load_dword v%d, v%d, {%s}, %s offen sc1
s_add_u32 s5, s5, 1
s_waitcnt vmcnt(0)
v_readfirstlane_b32 {SP}, v%d
%ss_cmp_ge_u32 s5, 0x80000
s_cbranch_scc1 L_bk{n}_KN
s_cmp_ge_u32 {SP}, %s
s_cbranch_scc0 L_sq{n}_KN
s_branch L_bk{n}_KN""" % (vr, V_M0, srdn, so, vr, st, exp)).format(n=name, **ENV))
    return p

def kernel_main(a):
    name = NAME + "_kernel"
    BI = OPT['BI']
    t0, t1 = SET[0], SET[0] + 1
    e = dict(t0=t0, t1=t1, DX=V_DX, DW=V_DW, DH=V_DH, DD=V_DD, RW=V_RW, RX=V_RX, RW1=V_RW + 3, RX1=V_RX + 3, HW=V_HW, HH=V_HH, L16=V_L16, L16B=V_L16B, VST_=V_ST)
    VPF, VDM = V_HH, V_ST
    def vaddr64(q):
        for i in q:
            if i.op == "v_add_co_u32": i.wr.append(('s', 'vcc')); i.rd = [r for r in i.rd if r != ('s', 'vcc')]
            if i.op == "v_addc_co_u32": i.wr.append(('s', 'vcc'))
        return q
    G = []
    def grp(kind, nm, need, **kw):
        d = dict(kind=kind, nm=nm, need=need, bar=False, xr=None, rate=2); d.update(kw); G.append(d); return d
    for sg in range(9):
        for tau in range(4):
            mat = 'G' if tau < 2 else 'U'
            g = grp('SB', 16 if tau == 3 else 8, [(mat, 0, 2 * sg), (mat, 0, 2 * sg + 1)], sg=sg, tau=tau, rate=(5 if tau == 3 else 2))
            if tau == 2 or (sg == 0 and tau == 0): g['bar'] = True
            if sg < 8 and tau in (2, 3): g['xr'] = (sg + 1, tau - 2)
    PS = {}
    for mat, b, st in [('G', 1, 3), ('U', 1, 2), ('G', 2, 0), ('U', 2, 1), ('G', 3, 3), ('U', 3, 2)]:
        PS[mat + str(b)] = len(G)
        for sl in range(6):
            for ap in range(2):
                g = grp('P1', 12, [(mat, b, 3 * sl + e_) for e_ in range(3)], st=st, sl=sl, ap=ap, ps=mat + str(b))
                if ap == 0 and (sl % BI == BI - 1): g['bar'] = True
    for hf, mat in enumerate(('HG', 'HU')):
        PS[mat] = len(G)
        for gi in range(6):
            g = grp('PH', 12, [(mat, (3 * gi + e_) >> 1) for e_ in range(3)], gi=gi, ps=mat, half=hf)
            if gi % 2 == 0: g['bar'] = True
    P2 = len(G); HU = PS['HU']; IL = OPT.get('il', 0)
    seq = [(0, 0), (1, 0), (0, 1), (1, 1), (0, 2), (1, 2)] + [(u, gi) for u in range(2, 5) for gi in range(3)] + ([(5, 0), (6, 0), (5, 1), (6, 1), (5, 2), (6, 2)] if IL else [(5, 0), (6, 0), (5, 1), (5, 2), (6, 1), (6, 2)]) + [(u, gi) for u in range(7, 9) for gi in range(3)]
    for u, gi in seq:
        grp('P2', 24, [('D', u, 3 * gi + e_) for e_ in range(3)], cb=u, gi=gi, rate=OPT.get('r2', 4), bar=True)
    NG = len(G)
    G[P2 - 1]['bar'] = True
    def rdg(n): return n - 1 if n > P2 else n - 2
    iv = []; n = 0
    for g in G:
        if g['bar']: n += 1
        iv.append(n)
    def free_iv(gr):
        for k in range(gr, NG):
            if G[k]['bar']: return iv[k]
        return 10 ** 6
    def next_bar(gi):
        while not G[gi]['bar']: gi += 1
        return gi
    first = {}; fre = {}; order = []
    def use(key, rg_, done_g):
        if key not in first: first[key] = iv[rg_] if rg_ >= 0 else 0; order.append(key)
        fre[key] = max(fre.get(key, 0), free_iv(done_g))
    for q in range(4): use(('x', 0, q), -1, 1)
    ev = []
    for gi, g in enumerate(G):
        for k in g['need']: ev.append((rdg(gi), 0, k, gi))
        if g['xr']:
            for q in range(4): ev.append((gi, 1, ('x', g['xr'][0], q), 4 * g['xr'][0] + 1))
    ev.sort(key=lambda x: (x[0], x[1]))
    for r_, _, k, d_ in ev: use(k, r_, d_)
    order.sort(key=lambda k: first[k])
    fixed = {}
    for sg in range(9):
        s = 8 * (sg % 5)
        for e_ in range(2):
            fixed[('G', 0, 2 * sg + e_)] = s + e_; fixed[('U', 0, 2 * sg + e_)] = s + 2 + e_
        for q in range(4): fixed[('x', sg, q)] = s + 4 + q
    gS2 = PS['U2'] + 11
    gSD = P2 + OPT.get('sdat', 4); gQ = P2 + 18
    ga1 = next_bar(PS['G1'] + 5); gc1 = next_bar(PS['U2'] + 2); ga2 = next_bar(gS2 + 5); gc2 = HU + 2
    gh1 = next_bar(PS['HG'] + 4); gq1 = P2 + 1; gh2 = P2 + 7; gq2 = P2 + 12; gf8 = P2 + OPT.get('f8at', 10); gY = P2 + OPT.get('yat', 17); gfa = P2 + OPT.get('faat', 24)
    res = [(0, 4, PS['G1'] - 1, NG - 1), (4, 1, PS['G1'] - 1, PS['G1']), (12, 6, gS2, gS2 + 1), (4, 4, PS['G2'], NG - 1), (8, 4, PS['G3'], gQ), (8, 3, gQ, NG - 1),
           (12, 4, PS['HG'], gQ + 1), (16, 2, P2, gQ + 1), (18, 4, gSD, gSD + 4)]
    resv = {pg: [] for pg in range(40)}
    for f_, npg, ga, gb in res:
        for pg in range(f_, f_ + npg): resv[pg].append((iv[ga], free_iv(gb + 1)))
    free_at = [-1] * 40; phys = {}; issue_grp = {}; qi = 0
    def ioff(k):
        if k[0] == 'D': return 0 if k[1] == 0 else ((k[1] - 1) & 3) * 128
        return k[1] * 128 if k[0] in 'GU' else 0
    def try_alloc(k, cur):
        for pg in ([fixed[k]] if k in fixed else range(39, -1, -1)):
            if free_at[pg] > cur or (pg == 0 and ioff(k) > 0): continue
            if any(not (fre[k] <= a_ or cur >= b_) for a_, b_ in resv[pg]): continue
            return pg
        return None
    cum = [0]
    for g in G: cum.append(cum[-1] + g['nm'])
    bar_grp = {iv[gi]: gi for gi, g in enumerate(G) if g['bar']}; bar_grp[0] = 0
    vt = {}; cnt_iv = {}
    for k in order:
        n_ = cnt_iv.get(first[k], 0); cnt_iv[first[k]] = n_ + 1
        vt[k] = cum[bar_grp[first[k]]] + n_ * (5 if k in fixed else 8)
    LA = lambda k: OPT.get('la0', 120) if k in fixed else OPT.get('la1', 400)
    NPRO = OPT.get('npro', 16)
    while qi < NPRO:
        k = order[qi]; phys[k] = try_alloc(k, -1); free_at[phys[k]] = fre[k]; issue_grp[k] = -1; qi += 1
    hole_end = -1; hole_left = 0
    for gi, g in enumerate(G):
        g['dma'] = []
        if g['kind'] in ('P1', 'PH') and OPT.get('hole'): g['rate'] = OPT.get('hr', 3)
        while qi < len(order) and len(g['dma']) < g['rate']:
            k = order[qi]
            if vt[k] - cum[gi] > LA(k): break
            if cum[gi] < hole_end and hole_left <= 0 and vt[k] - cum[gi] > OPT.get('hmin', 70): break
            pg = try_alloc(k, iv[gi])
            if pg is None: break
            assert iv[gi] < first[k], ("late DMA", k, gi)
            phys[k] = pg; free_at[pg] = fre[k]; issue_grp[k] = gi; g['dma'].append(k); qi += 1
            hole_left -= 2 if k[0] in ('HG', 'HU') else 1
            if OPT.get('hole') and k not in fixed and k[0] != 'D' and k[-1] == 0: hole_end = cum[gi] + OPT['hole']; hole_left = OPT.get('hn', 6)
    assert qi == len(order), order[qi]
    print("dma per group:", "".join(str(len(g['dma'])) for g in G), file=sys.stderr)
    slk = {}
    for k in order:
        if issue_grp[k] >= 0:
            kk_ = k[:2] if k[0] in 'GUD' else k[:1]
            slk[kk_] = min(slk.get(kk_, 9999), cum[bar_grp[first[k]]] - cum[issue_grp[k] + 1])
    print("min DMA slack (mfmas):", slk, file=sys.stderr)
    V_D8 = TMP + 25
    def mkdma(k):
        tag = "pg%d" % first[k]; pb = phys[k] * 4096
        if k[0] == 'x':
            pre = []
            if k[2] == 0 and k[1] > 0:
                pre = F("s_cmp_eq_u32 {ROT}, %d\ns_cselect_b32 {SP}, -8, 1\nv_lshl_add_u32 v%d, {SP}, 7, v%d" % (9 - k[1], V_DX, V_DX))
            m_, d_ = dma(V_DX, 'X', S_XQ + k[2], pb, 0, tag)
            return (pre + [m_], d_) if pre else (m_, d_)
        if k[0] == 'G': return dma(V_DW, 'WG', S_KK + k[2], pb, ioff(k), tag)
        if k[0] == 'U': return dma(V_DW, 'WU', S_KK + k[2], pb, ioff(k), tag)
        if k[0] == 'HG': return dma(V_DH, 'WG', S_KK + 2 * k[1], pb, 0, tag)
        if k[0] == 'HU': return dma(V_DH, 'WU', S_KK + 2 * k[1], pb, 0, tag)
        return dma(V_DD if k[1] else V_D8, 'WD', (S_DK if k[1] < 5 else S_KK) + k[2], pb, ioff(k), tag)
    def mkx(kind, pg, va):
        m_ = F("s_add_u32 m0, {W1K}, %d" % (pg * 4096))[0]
        d_ = F("buffer_load_dwordx4 v%d, {WS}, m0 offen sc1 lds" % va, tag=kind, lds_w=(pg * 4096, pg * 4096 + 4096))[0]
        return m_, d_
    MP = OPT.get('map', 1)
    IDS = """s_and_b32 {C}, s2, 3
s_lshl_b32 {C}, {C}, 2
s_bfe_u32 {a}, s2, 0x20003
s_add_u32 {C}, {C}, {a}
s_lshr_b32 {ROT}, s2, 5
s_lshl_b32 {T}, {ROT}, 1
s_bfe_u32 {b}, s2, 0x10002
s_add_u32 {T}, {T}, {b}
s_lshl_b32 {a}, {a}, 1
s_add_u32 {ROT}, {ROT}, {a}
s_cmp_ge_u32 {ROT}, 9
s_cselect_b32 {a}, 9, 0
s_sub_u32 {ROT}, {ROT}, {a}
""" if MP == 1 else """s_and_b32 {C}, s2, 7
s_lshl_b32 {C}, {C}, 1
s_bfe_u32 {a}, s2, 0x10003
s_add_u32 {C}, {C}, {a}
s_lshr_b32 {T}, s2, 4
s_lshl_b32 {a}, {a}, 2
s_add_u32 {ROT}, {T}, {a}
s_cmp_ge_u32 {ROT}, 9
s_cselect_b32 {a}, 9, 0
s_sub_u32 {ROT}, {ROT}, {a}
s_cmp_ge_u32 {ROT}, 9
s_cselect_b32 {a}, 9, 0
s_sub_u32 {ROT}, {ROT}, {a}
"""
    NPF = 27 if MP == 1 else 14
    RV = OPT.get('rv', 0)
    if RV == 1: IDS += "s_mul_i32 {a}, {ROT}, 11\ns_lshr_b32 {a}, {a}, 5\ns_mul_i32 {a}, {a}, 3\ns_sub_u32 {ROT}, {ROT}, {a}\ns_mul_i32 {ROT}, {ROT}, 3\n"
    if RV == 2: IDS += "s_and_b32 {ROT}, {ROT}, 14\n"
    p = L("s_cmp_ge_u32 s2, 256\ns_cbranch_scc1 L_end_KN")
    if OPT['stamps']: p += L("v_mov_b32 v%d, 0" % VST[0])
    p += stamp(0)
    p += L("s_load_dwordx16 s[52:67], s[0:1], 0\ns_load_dwordx4 s[68:71], s[0:1], 64\ns_load_dwordx2 s[72:73], s[0:1], 80")
    p += vaddr64(L("s_getpc_b64 s[6:7]\nv_lshlrev_b32 v34, 5, v0\nv_mov_b32 v35, s7\nv_add_co_u32 v34, vcc, s6, v34\nv_addc_co_u32 v35, vcc, 0, v35, vcc"))
    p += [Ins("global_load_dword v%d, v[34:35], off" % VDM, 'vmem', V(34, 2), [])]
    p += F("""v_lshrrev_b32 v1, 6, v0
v_and_b32 v0, 63, v0
v_readfirstlane_b32 {W}, v1
v_and_b32 v1, 15, v0
v_lshrrev_b32 v2, 4, v0
IDSs_lshr_b32 {RG}, {W}, 1
s_and_b32 {FH}, {W}, 1
s_lshl_b32 {W1K}, {W}, 10
v_lshrrev_b32 v{DD}, 3, v0
s_lshl_b32 {a}, {W}, 3
v_add_u32 v{DD}, {a}, v{DD}
v_mul_u32_u24 v{DX}, %d, v{DD}
s_lshl_b32 {a}, {FH}, 2
v_add_u32 v{t0}, {a}, v2
v_xor_b32 v{t0}, v0, v{t0}
v_and_b32 v{t0}, 7, v{t0}
v_lshl_add_u32 v{DX}, v{t0}, 4, v{DX}
s_mul_i32 {a}, {T}, 2304
s_lshl_b32 {b}, {ROT}, 7
s_add_u32 {a}, {a}, {b}
v_add_u32 v{DX}, {a}, v{DX}
v_mul_u32_u24 v{DW}, 9216, v{DD}
v_bfe_u32 v{t0}, v0, 1, 2
v_and_b32 v{t1}, 1, v2
s_lshl_b32 {a}, {FH}, 1
v_or_b32 v{t1}, {a}, v{t1}
v_xor_b32 v{t1}, v{t1}, v{t0}
v_lshl_add_u32 v{DW}, v{t1}, 5, v{DW}
v_and_b32 v{t1}, 1, v0
v_lshl_add_u32 v{DW}, v{t1}, 4, v{DW}
s_mul_i32 {d}, {C}, 576
s_and_b32 {e}, {C}, 1
s_lshl_b32 {c}, {e}, 6
s_add_u32 {c}, {c}, {d}
v_add_u32 v{DW}, {c}, v{DW}""".replace("IDS", IDS) % (32 * 1152), **e)
    for q in range(4): p += L("s_mov_b32 s%d, %d" % (S_XQ + q, (1024 * (q & 1) + (q >> 1)) * 1152))
    def skk(m):
        KS = 32 * 9216
        if m == 0: q = F("s_mul_i32 s%d, {ROT}, %d" % (S_KK, 2 * KS))
        else: q = F("s_add_u32 s%d, s%d, %d\ns_cmp_eq_u32 {ROT}, %d\ns_cselect_b32 s%d, 0, s%d" % (S_KK + 2 * m, S_KK + 2 * m - 2, 2 * KS, 9 - m, S_KK + 2 * m, S_KK + 2 * m))
        return q + L("s_add_u32 s%d, s%d, %d" % (S_KK + 2 * m + 1, S_KK + 2 * m, KS))
    p += skk(0) + skk(1)
    for d_, n_ in ((8, 2048 * 1152), (12, 576 * 9216), (16, 576 * 9216)): p += L("s_mov_b32 s%d, 0x%x\ns_mov_b32 s%d, 0x20000" % (d_ + 2, n_, d_ + 3))
    p += L("s_waitcnt lgkmcnt(0)")
    pro = [k for k in order if issue_grp[k] < 0]
    p += L("s_mov_b32 s8, s52\ns_and_b32 s9, s53, 0xffff")
    for k in pro[:4]: p += flat(mkdma(k))
    p += L("s_mov_b32 s12, s60\ns_and_b32 s13, s61, 0xffff\ns_mov_b32 s16, s62\ns_and_b32 s17, s63, 0xffff")
    for k in pro[4:8]: p += flat(mkdma(k))
    p += F("s_cmp_eq_u32 {RG}, 0\ns_cselect_b32 s54, s54, s56\ns_cselect_b32 s55, s55, s57")
    p += srd(32, 54, 2048 * 578) + srd(20, 64, 4608 * 1152) + srd(40, 66, 1152) + srd(28, 70, 256) + srd(24, 72, WS_BYTES)
    p += vaddr64(F("""s_lshr_b32 {a}, s2, 3
s_lshl_b32 {a}, {a}, 2
s_add_u32 {a}, {a}, {W}
s_lshl_b32 {a}, {a}, 9
s_add_u32 {a}, {a}, 8192
v_lshlrev_b32 v34, 3, v0
v_add_u32 v34, {a}, v34
v_mov_b32 v35, s7
v_add_co_u32 v34, vcc, s6, v34
v_addc_co_u32 v35, vcc, 0, v35, vcc"""))
    p += [Ins("global_load_dword v%d, v[34:35], off" % VDM, 'vmem', V(34, 2), [])]
    g1, g2 = gate_code(SET[2] + 16, SET[2] + 24, [FB + 8, FB + 9, FB + 10, FB + 11, FB + 20, FB + 21, FB + 22, FB + 23])
    p += g1 + srd(40, 68, 2048 * 1152)
    p += F("s_cmp_lg_u32 {C}, 0\ns_cbranch_scc1 L_nw_KN") + nyw_load(TMP + 24, "nw") + L("L_nw_KN:")
    p += F("s_cmp_lg_u32 s2, 0\ns_cbranch_scc1 L_z_KN")
    p += F("v_mov_b32 v36, 0\nv_mov_b32 v37, 0\nv_mov_b32 v38, 0\nv_mov_b32 v39, 0\nv_lshlrev_b32 v40, 4, v0\ns_lshl_b32 {a}, {W}, 12\ns_add_u32 {a}, {a}, %d" % WS_C, opt="z")
    for i in range(4): p += F("buffer_store_dwordx4 v[36:39], v40, {WS}, {a} offen offset:%d sc1" % (i * 1024), opt="z", tag="zero")
    p += L("L_z_KN:")
    for m in range(2, 9): p += skk(m)
    w = F("""s_lshl_b32 {S2}, {T}, 1
s_add_u32 {S2}, {S2}, {RG}
v_lshrrev_b32 v{RW}, 2, v1
v_lshlrev_b32 v{RW}, 7, v{RW}
v_lshl_add_u32 v{RW}, v2, 10, v{RW}
v_and_b32 v{t0}, 3, v1
v_lshl_add_u32 v{RW}, v{t0}, 3, v{RW}
v_bfe_u32 v{t0}, v1, 3, 1
v_and_b32 v{t1}, 1, v2
v_lshl_add_u32 v{t0}, v{t1}, 1, v{t0}
s_lshl_b32 {a}, {FH}, 1
v_xor_b32 v{t0}, {a}, v{t0}
v_lshl_add_u32 v{RW}, v{t0}, 5, v{RW}
v_xor_b32 v{RW1}, 32, v{RW}
v_lshrrev_b32 v{t0}, 1, v1
v_xor_b32 v{t0}, v{t0}, v2
v_lshlrev_b32 v{t0}, 4, v{t0}
v_lshl_add_u32 v{RX}, v1, 7, v{t0}
s_lshl_b32 {a}, {RG}, 13
v_add_u32 v{RX}, {a}, v{RX}
v_xor_b32 v{RX1}, 64, v{RX}""", **e)
    for b in (V_RW, V_RW + 3, V_RX, V_RX + 3):
        w += L("v_add_u32 v%d, 0x10000, v%d\nv_add_u32 v%d, 0x20000, v%d" % (b + 1, b, b + 2, b))
    w += F("""v_or_b32 v{m}, {W}, v0
v_min_u32 v{m}, 1, v{m}
v_lshlrev_b32 v{m}, 31, v{m}
v_mul_u32_u24 v{DD}, 1152, v{DD}
v_bfe_u32 v{t0}, v0, 1, 2
v_xor_b32 v{t0}, v{t0}, v2
v_lshl_add_u32 v{DD}, v{t0}, 5, v{DD}
v_and_b32 v{t1}, 1, v0
v_lshl_add_u32 v{DD}, v{t1}, 4, v{DD}
v_lshrrev_b32 v{DH}, 2, v0
s_lshl_b32 {a}, {W}, 4
v_add_u32 v{DH}, {a}, v{DH}
v_mul_u32_u24 v{DH}, 9216, v{DH}
v_lshl_add_u32 v{DH}, v{t1}, 4, v{DH}
v_bfe_u32 v{t0}, v0, 1, 1
v_lshrrev_b32 v{t1}, 5, v0
v_xor_b32 v{t0}, v{t0}, v{t1}
v_lshl_add_u32 v{DH}, v{t0}, 5, v{DH}
s_cmp_eq_u32 {e}, 0
s_cselect_b32 {a}, 512, 0
s_add_u32 {a}, {a}, {d}
v_add_u32 v{DH}, {a}, v{DH}
v_lshlrev_b32 v{L16}, 4, v0
v_add_u32 v{L16B}, 0x10000, v{L16}
s_lshl_b32 {a}, {FH}, 13
s_lshl_b32 {b}, {RG}, 12
s_add_u32 {a}, {a}, {b}
v_add_u32 v{HW}, {a}, v{L16}
s_lshl_b32 {HB}, {T}, 4
s_add_u32 {HB}, {HB}, {C}
s_mul_i32 {HB}, {HB}, 73728
s_add_u32 {HB}, {HB}, %d
s_mov_b32 {Q}, 0x3e800000
s_mov_b32 {NL}, %s
s_add_u32 {KB1}, {C}, 2
s_add_u32 {KB3}, {C}, 4
s_cmp_lt_u32 {KB3}, 18
s_cselect_b32 {KB3}, {KB3}, 0
s_mul_i32 {GA}, {T}, 12
s_add_u32 {GA}, {GA}, {C}
s_cmp_lt_u32 {C}, 12
s_cselect_b32 {GA}, {GA}, 0x1000
s_add_u32 {GB}, {GA}, 192
s_mul_i32 {a}, {C}, %d
s_mul_i32 {c}, {e}, %d
s_add_u32 s%d, {a}, {c}
s_cmp_eq_u32 {e}, 0
s_cselect_b32 {c}, %d, 0
s_add_u32 s%d, {a}, {c}
s_lshr_b32 {b}, {T}, {mp}
s_mul_i32 {b}, {b}, %d
s_add_u32 {a}, {a}, {b}
s_mul_i32 {b}, {W}, %d
s_add_u32 {a}, {a}, {b}
v_lshlrev_b32 v{pf}, 7, v0
v_add_u32 v{pf}, {a}, v{pf}
v_cmp_gt_u32 vcc, {npf}, v0
v_bfrev_b32 v{t0}, 1
s_lshl_b32 {S8}, {T}, 18
s_lshl_b32 {b}, {W}, 16
v_cndmask_b32 v{pf}, v{t0}, v{pf}, vcc
s_add_u32 {S8}, {S8}, {b}
s_lshl_b32 {b}, {C}, 10
s_add_u32 {S8}, {S8}, {b}""" % (WS_H, f2h(-math.log2(math.e)), 288 * 1152, 32 * 1152, S_DK, 256 * 1152, S_DK + 8, (36 if MP else 18) * 1152, 3 * NPF * 128), m=V_M0, pf=VPF, mp=MP, npf=NPF, **e)
    for ks in range(1, 8): w += L("s_add_u32 s%d, s%d, %d" % (S_DK + ks, S_DK, ks * 32 * 1152))
    w += s2_scalars(ENV['GA'], ENV['WA'], ENV['SA']) + s2_scalars(ENV['GB'], ENV['WB'], ENV['SB'])
    TP = V_SIL
    TF = lambda kk: (SET[3] + 4 * kk) if kk < 8 else FB + 32
    TWA = lambda a_: (TMP + 8 * a_) if a_ < 3 else SET[3]
    def clears(r):
        n0 = OPT.get('cl0', 2)
        q0 = F("""s_lshl_b32 {g}, {T}, 1
s_and_b32 {SM_}, {C}, 1
s_add_u32 {g}, {g}, {SM_}
s_lshl_b32 {g}, {g}, 19
s_lshl_b32 {SM_}, {W}, 15
s_add_u32 {g}, {g}, {SM_}
s_lshr_b32 {SM_}, {C}, 1
s_lshl_b32 {SM_}, {SM_}, 10
s_add_u32 {g}, {g}, {SM_}
s_add_u32 {g}, {g}, %d""" % (WS_P + n0 * 131072))
        for i in range(4): q0 += L("v_mov_b32 v%d, -1" % (r + i))
        q1 = []
        for i in range(4 * (4 - n0)):
            q1 += F("buffer_store_dwordx4 v[%d:%d], v%d, {WS}, {g} offen sc1" % (r, r + 3, V_L16), tag="p8")
            q1 += F("s_add_u32 {g}, {g}, %d" % (8192 if i % 4 != 3 else 131072 - 3 * 8192))
        return q0, q1
    if OPT.get('sent') and OPT.get('clat', -1) < 0:
        q0, q1 = clears(SET[0] + 12); w += q0 + q1
    w += t_setup(TP, ENV['C'])
    p += w
    parts = [(lambda kk=kk: t_frag(kk, TF(kk), SET[1], TP)) for kk in range(9)] + [lambda: twiddle_A(TWA, SET[0], range(OPT.get('ntw', 3)))]
    dstart = OPT.get('dst', 2); rest = pro[8:]
    for n_, f_ in enumerate(parts):
        p += f_()
        if n_ >= dstart and rest: p += flat(mkdma(rest.pop(0)))
    for k in rest: p += flat(mkdma(k))
    sec = Sec2(); sec.smooth = bool(OPT.get('smooth', 1)); sec.hor = OPT.get('hor', 200)
    def FBUF(gi): return FB + 12 * (gi % 3) if gi <= P2 else FB + 12 * ((gi - P2) & 1)
    assert P2 % 3 == 0
    def frag_reads(gi):
        g = G[gi]; out = []
        for e_, k in enumerate(g['need']):
            pb = phys[k] * 4096
            if k[0] in 'GU':
                ap = g['tau'] & 1 if g['kind'] == 'SB' else g['ap']
                base, o, d2 = V_RW + 3 * ap, pb, 512
            elif k[0] in ('HG', 'HU'): base, o, d2 = V_RX, pb + ((3 * g['gi'] + e_) & 1) * 2048, 256
            else: base, o, d2 = V_RX + 3, pb, 2048
            r = FBUF(gi) + 4 * e_
            out.append(L("ds_read_b64_tr_b16 v[%d:%d], v%d offset:%d\nds_read_b64_tr_b16 v[%d:%d], v%d offset:%d"
                         % (r, r + 1, base + (o >> 16), o & 0xffff, r + 2, r + 3, base + (o >> 16), (o & 0xffff) + d2), lds_r=(pb, pb + 4096), tag="f%d" % gi))
        return out
    def x_reads(sg, e_):
        kk = 2 * sg + e_; out = []; pb = phys[('x', sg, 0)] * 4096
        for mi in range(4):
            o = pb + mi * 2048
            out += L("ds_read_b128 %s, v%d offset:%d" % (rs(XF(mi, kk)), V_RX + 3 * e_ + (o >> 16), o & 0xffff), lds_r=(pb, pb + 16384), tag="x%d" % sg)
        return [out[0:2], out[2:4]]
    def h_read(n_, tag):
        o = (n_ >> 3) * 8192 + (n_ & 7) * 1024
        return L("ds_read_b128 %s, v%d offset:%d" % (rs(HF(n_ & 7, n_ >> 3)), V_L16B if o >> 16 else V_L16, o & 0xffff), lds_r=(o, o + 1024), tag=tag)[0]
    def silu_a(st, n_=32):
        out = []
        for i in range(0, n_, 4):
            T = V_SIL + (i & 4); rr = range(st + i, st + i + 4)
            out += [F("v_mul_f32 v%d, {NL}, v%d" % (T + j, r))[0] for j, r in enumerate(rr)]
            out += [I("v_exp_f32 v%d, v%d" % (T + j, T + j)) for j in range(4)]
            out += [I("v_add_f32 v%d, 1.0, v%d" % (T + j, T + j)) for j in range(4)]
            out += [I("v_rcp_f32 v%d, v%d" % (T + j, T + j)) for j in range(4)]
            out += [I("v_mul_f32 v%d, v%d, v%d" % (r, r, T + j)) for j, r in enumerate(rr)]
        return out
    def silu_b(sm, sp, b):
        out = []
        for mi in range(4):
            d = sp + 4 * mi
            for ap in range(2):
                o = (ap * 4 + mi) * 4
                out += [I("v_mul_f32 v%d, v%d, v%d" % (sm + o + r, sm + o + r, sp + o + r)) for r in range(4)]
            for ap in range(2):
                q = sm + (ap * 4 + mi) * 4
                out += [I("v_cvt_pk_bf16_f32 v%d, v%d, v%d" % (d + 2 * ap + h, q + 2 * h, q + 2 * h + 1)) for h in range(2)]
            out += L("ds_write_b128 v%d, v[%d:%d] offset:%d" % (V_HW, d, d + 3, b * 16384 + mi * 1024), lds_w=(b * 16384, b * 16384 + 16384), tag="lds")
        return out
    def h_out(sp, b):
        out = F("s_add_u32 {HT}, {HB}, %d" % (b * 16384))
        for mi in range(4):
            out += F("buffer_store_dwordx4 v[%d:%d], v%d, {WS}, {HT} offen offset:%d sc1" % (sp + 4 * mi, sp + 4 * mi + 3, V_HW, mi * 1024), tag="gh1" if b < 3 else "gh2")
        return out
    def silu_bH(st):
        out = []
        for mi in range(4):
            gq, uq = st + 4 * mi, st + 16 + 4 * mi
            out += [I("v_mul_f32 v%d, v%d, v%d" % (gq + r, gq + r, uq + r)) for r in range(4)]
            out += [I("v_cvt_pk_bf16_f32 v%d, v%d, v%d" % (uq + h, gq + 2 * h, gq + 2 * h + 1)) for h in range(2)]
            out += L("ds_write_b64 v%d, v[%d:%d] offset:%d" % (V_HH, uq, uq + 1, mi * 1024), lds_w=(65536, 65536 + 8192), tag="lds")
        return out
    PACC = [SET[1], SET[2], SET[1], SET[3], SET[0], SET[2], SET[1], SET[3], SET[0]]
    def out_ops(cb, ips=range(4)):
        acc = PACC[cb]; out = []
        for ip in ips:
            b = acc + 8 * ip
            if cb == 0: out += F("s_add_u32 {ST}, {S8}, 0x%x" % (WS_8 + ip * 16384))
            else: out += F("s_mov_b32 {ST}, 0x%x" % (WS_P + (cb - 5) * 131072 + ip * 8192))
            out += [I("v_cvt_pk_bf16_f32 v%d, v%d, v%d" % (b + d, b + 2 * d, b + 2 * d + 1)) for d in range(4)]
            if cb >= 7 and OPT.get('sent'): out += [I("v_min_u32 v%d, -2, v%d" % (b + d, b + d)) for d in range(4)]
            out += F("buffer_store_dwordx4 v[%d:%d], v%d, {WS}, {ST} offen sc1" % (b, b + 3, V_ST if cb else V_L16), tag="p8" if cb == 0 else "pA" if cb < 7 else "pB")
        return out
    p += stamp(1) + L("s_barrier", need_vm=("pg0",)) + stamp(2)
    xa, xb = x_reads(0, 0), x_reads(0, 1)
    for r_ in [xa[0], xb[0]] + frag_reads(0) + [xa[1], xb[1]] + frag_reads(1): p += r_
    sec.stream(g2(), 40, 188, "gate")
    VP = TMP + 22
    HSP = OPT.get('hsp', 30)
    hq = {HU + 2: range(0, 6), HU + 3: range(6, 12), HU + 4: range(12, 18), HU + 5: range(18, 24), P2: range(24, 36), P2 + 1: range(36, 48), P2 + 2: range(48, 64), P2 + 3: range(64, 72)}
    qq = {P2 + 13 + i: range(12 * i, 12 * i + 12) for i in range(6)} if IL else {P2 + 13: range(0, 12), P2 + 14: range(12, 28), P2 + 15: range(28, 44), P2 + 16: range(44, 58), P2 + 17: range(58, 72)}
    VQ, VY = V_DW, V_DH
    xd = {}
    for i in range(12): xd.setdefault(gq1 + (i * (gq2 - gq1)) // 12 + (1 if i >= 6 else 0) * 0, []).append(('q%d' % (i // 6), i, VQ))
    for i in range(12, 18): xd.setdefault(gq2 + (i - 12) // (2 if IL else 3), []).append(('q2', i, VQ))
    for i in range(9): xd.setdefault(max(gY + 1 + i // OPT.get('yr', 3), P2 + 18 if i >= 6 else 0), []).append(('y', i, VY))
    S2D = [SET[2] + 16, SET[2] + 24]; S2W = [TMP, TMP + 8]
    M2, Z2, S2T = SET[3], SET[2], SET[3] + 24
    KBX = "s_lshr_b32 {x}, {y}, 5\ns_cmp_eq_u32 {x}, 9\ns_cselect_b32 {x}, 0, {x}\ns_add_u32 {x}, {x}, {o}\ns_add_u32 {XA}, {T}, 34\ns_cmp_gt_u32 {y}, 288\ns_cselect_b32 {x}, {XA}, {x}\ns_lshl_b32 {x}, {x}, 7\ns_add_u32 {x}, {x}, %d\n" % WS_C
    kbx = lambda x, y, o: KBX.replace("{x}", "{%s}" % x).replace("{y}", "{%s}" % y).replace("{o}", str(o))
    W0 = "s_cmp_eq_u32 {W}, 0\ns_cselect_b32 {PE1}, {PE1}, 0\ns_cselect_b32 {PE2}, {PE2}, 0"
    RAW, RA2, NB, SDT = TMP, SET[3] + 16, FB + 24, FB + 32
    for gi, g in enumerate(G):
        base = sec.n(); fb = FBUF(gi); ms = []
        if g['kind'] == 'SB':
            st = SET[0] if g['tau'] < 2 else SET[1]
            for mi in range(4):
                for e_ in range(2):
                    acc = V(st + ((g['tau'] & 1) * 4 + mi) * 4, 4); kk = 2 * g['sg'] + e_
                    ms.append(mf(acc, V(fb + 4 * e_, 4), XF(mi, kk), acc if kk else None))
            if g['tau'] == 3:
                for mi in range(4):
                    for e_ in range(2):
                        kk = 2 * g['sg'] + e_
                        acc = V(SET[2] + 16 * (kk // 9) + 4 * mi, 4)
                        ms.append(mf(acc, XF(mi, kk), V(TF(kk % 9), 4), acc if kk % 9 else None))
        elif g['kind'] in ('P1', 'PH'):
            st = SET[g['st']] + 16 * g['ap'] if g['kind'] == 'P1' else SET[0] + 16 * g['half']
            k0 = 3 * (g['sl'] if g['kind'] == 'P1' else g['gi'])
            for mi in range(4):
                for e_ in range(3):
                    acc = V(st + 4 * mi, 4)
                    ms.append(mf(acc, V(fb + 4 * e_, 4), XF(mi, k0 + e_), acc if k0 + e_ else None))
        else:
            for mi in range(8):
                for e_ in range(3):
                    acc = V(PACC[g['cb']] + 4 * mi, 4)
                    ms.append(mf(acc, V(fb + 4 * e_, 4), HF(mi, 3 * g['gi'] + e_), acc if (g['gi'] or e_ or g['cb'] >= 5) else None))
        lg = ["f%d" % gi]; vm = []
        if g['kind'] == 'SB' and g['tau'] == 0: lg.append("x%d" % g['sg'])
        if g['kind'] == 'P2' and g['cb'] == 0: lg.append("h%d" % g['gi'])
        if g['kind'] == 'P2' and g['cb'] == 5: lg.append("r%d" % g['gi'])
        if g['bar']:
            vm.append("pg%d" % iv[gi]); lg.append("lds")
            for gx, tg in ((6, "zero"), (ga1, "pub1"), (ga2, "pub2"), (gfa, "pA"), (NG - 1, "y"), (gh1, "gh1"), (gh2, "gh2"), (gf8, "p8"), (P2 + 13, "q0"), (P2 + 15 if IL else P2 + 14, "q1"), (P2 + 17 if IL else P2 + 16, "q2")):
                if gi == gx: vm.append(tg)
        if gi == ga1: sec.block(base - 1, check("0", VP, "0", ENV['PE1'], "DBG", 27))
        if gi in (gc1, gc2):
            n_ = "1" if gi == gc1 else "2"
            sec.block(base - 1, check(n_ + "a", VP, ENV['PO1'], ENV['PE1'], sidx=28 if gi == gc1 else 29) + check(n_ + "b", VP + 1, ENV['PO2'], ENV['PE2']))
        if gi == gq1: sec.block(base - 1, check("q1", VP + 2, ENV['SB'], ENV['SM_'], sidx=22))
        if gi == gq2: sec.block(base - 1, check("q2", VP + 2, ENV['SB'], ENV['SM_'], sidx=23))
        if gi == gY: sec.block(base - 1, check("8", VP, ENV['PO1'], ENV['PE1'], sidx=26))
        if gi:
            if sec.blk.get(base - 1): sec.block(base - 1, [Need(vm, lg)])
            else: sec.at(base - 1, Need(vm, lg))
        for m_ in ms: sec.mfma(m_)
        nm = g['nm']; end = sec.n()
        sidx = None
        if g['kind'] in ('P1', 'PH') and PS[g['ps']] == gi: sidx = 3 + list(PS).index(g['ps'])
        if g['kind'] == 'P2' and (gi - P2) % 3 == 0: sidx = 11 + (gi - P2) // 3
        if OPT.get('diag') == 7:
            g0 = OPT.get('g0', 36); sp = OPT.get('gs', 4)
            sidx = 3 + (gi - g0) // sp if (g0 <= gi < g0 + 17 * sp and (gi - g0) % sp == 0) else None
        if OPT.get('diag') == 8: sidx = None
        gap = 0
        if g['bar']:
            sec.at(base, L("s_barrier", need_vm=tuple(vm), need_lgkm=tuple(lg))); gap = 1
        if sidx is not None and OPT['stamps']: sec.block(base, stamp(sidx))
        pairs = []
        for n_ in range(gi + 1, min(NG, gi + 3)):
            if rdg(n_) == gi: pairs += frag_reads(n_)
        if g['xr']: pairs += x_reads(*g['xr'])
        hr = [h_read(n_, "h%d" % (n_ // 24)) for n_ in hq.get(gi, [])] + [h_read(n_, "r%d" % (n_ // 24)) for n_ in qq.get(gi, [])]
        pairs += [hr[i:i + 2] for i in range(0, len(hr), 2)]
        avail = list(range(gap, nm - 1)); items = []
        dm = [mkdma(k) for k in g['dma']] + [mkx(*k) for k in xd.get(gi, [])]
        ip_, id_ = 0, 0
        early = g['kind'] == 'P2'
        while ip_ < len(pairs) or id_ < len(dm):
            if ip_ < len(pairs): items.append(('r', pairs[ip_])); ip_ += 1
            elif not items or items[-1][0] == 'd': items.append(('z', None))
            if id_ < len(dm) and (not early or ip_ >= min(len(pairs), 3)): items.append(('d', dm[id_])); id_ += 1
        assert len(items) <= len(avail), (gi, len(items), len(avail))
        pos = 0; slack = len(avail) - len(items); nd_left = len(dm)
        if hr: slack = 0
        for kind, it in items:
            if kind == 'r': sec.at(base + avail[pos], it)
            if kind == 'd':
                if isinstance(it[0], list): sec.block(base + avail[pos] - 1, it[0])
                else: sec.at(base + avail[pos] - 1, it[0])
                sec.at(base + avail[pos], it[1])
                sk = slack // max(1, nd_left); pos += sk; slack -= sk; nd_left -= 1
            pos += 1
        if gi == 6:
            q = F("s_cmp_lg_u32 s2, 0\ns_cbranch_scc1 L_zf_KN") + L("v_mov_b32 v31, 1", opt="zf")
            sec.block(end - 1, q + F("buffer_store_dword v31, v%d, {DBG}, 0 offen sc1" % V_M0, opt="zf") + L("L_zf_KN:"))
        if gi == 19: sec.block(end - 1, F("s_cmp_lg_u32 {C}, 0\ns_cbranch_scc1 L_nw2_KN") + nyw_store(TMP + 24, TMP + 25, 31, "nw2") + L("L_nw2_KN:"))
        if gi == OPT.get('clat', -1):
            q0, q1 = clears(V_SIL if gi < 0 else TMP + 16)
            sec.stream(q0, end, end + 30, "cl0")
            sec.stream(q1, end, end + 400, "cl1", "cl0", OPT.get('csp', 30))
        if gi == 27: sec.stream(twiddle_A(TWA, SET[3] + 8, range(OPT.get('ntw', 3), 4)), end, end + 78, "twA")
        if gi == PS['G1'] - 1:
            e2 = dict(e); e2.update(t0=TMP + 24, t1=31)
            sw = F("""v_lshrrev_b32 v{RX}, 2, v1
v_lshl_add_u32 v{RX}, v2, 3, v{RX}
v_lshlrev_b32 v{RX}, 6, v{RX}
v_and_b32 v{t0}, 3, v1
v_lshl_add_u32 v{RX}, v{t0}, 3, v{RX}
v_and_b32 v{t1}, 1, v2
v_xor_b32 v{t1}, {FH}, v{t1}
v_lshl_add_u32 v{RX}, v{t1}, 5, v{RX}
v_lshrrev_b32 v{RX1}, 2, v1
v_lshl_add_u32 v{RX1}, v2, 2, v{RX1}
v_bfe_u32 v{t1}, v{RX1}, 1, 2
v_xor_b32 v{t1}, {W}, v{t1}
v_lshlrev_b32 v{RX1}, 7, v{RX1}
v_lshl_add_u32 v{RX1}, v{t1}, 5, v{RX1}
v_lshl_add_u32 v{RX1}, v{t0}, 3, v{RX1}
v_add_u32 v{d8}, 0x400, v{DD}
s_and_b32 {u}, {C}, 1
v_lshl_add_u32 v{DD}, {u}, 9, v{DD}
v_mov_b32 v{one}, 1""", d8=V_D8, one=V_ONE, **e2)
            for b in (V_RX, V_RX + 3): sw += L("v_add_u32 v%d, 0x10000, v%d\nv_add_u32 v%d, 0x20000, v%d" % (b + 1, b, b + 2, b))
            sw += F("s_cmp_eq_u32 {W}, 0\ns_cselect_b32 {PE1}, 1, 0\ns_lshr_b32 {PO1}, {C}, 1\ns_lshl_b32 {PO1}, {PO1}, 7\ns_add_u32 {PO1}, {PO1}, %d\ns_add_u32 {PO2}, {T}, 34\ns_cmp_lt_u32 {KB1}, 16\ns_cselect_b32 {PO2}, {PO2}, 8\ns_lshl_b32 {PO2}, {PO2}, 7\ns_add_u32 {PO2}, {PO2}, %d" % (WS_C, WS_C))
            sec.stream(sw, end - 38, end - 2, "sw")
            blk = step_A(SET[2], TWA, SET[3] + 8, TP, ENV['C'], 0)
            blk += F("s_cmp_lt_u32 {KB1}, 16\ns_cbranch_scc1 L_x1_KN")
            o = "x1"; s1 = Sec2(); XS = SET[3] + 8; XFr = SET[3] + 24
            s1.pre = t_setup(TP, ENV['KB1'], opt=o) + t_frag(0, XFr, XS, TP, opt=o)
            for kk in range(9):
                b0 = s1.n()
                for hh in range(2):
                    for mi in range(4):
                        acc = V(SET[2] + 16 * hh + 4 * mi, 4)
                        s1.mfma(mf(acc, XF(mi, kk + 9 * hh), V(XFr + 4 * (kk & 1), 4), acc if kk else None, o))
                if kk < 8: s1.stream(t_frag(kk + 1, XFr + 4 * ((kk + 1) & 1), XS, TP, opt=o), b0, b0 + 6)
            blk += s1.flatten() + step_A(SET[2], TWA, SET[3] + 8, TP, ENV['KB1'], 8704, opt=o) + L("L_x1_KN:")
            sec.block(end - 1, blk)
            sec.stream(poll(VP, "0", "DBG"), end, end + 12, "p0")
            sec.stream(silu_a(SET[0]), end, end + 200, "a0")
            sec.stream(silu_b(SET[0], SET[1], 0), end + 145, end + 286, "b0", "a0")
            sec.stream(h_out(SET[1], 0), end + 145, end + 428, "o0", "b0", HSP)
        if g['kind'] == 'P1' and g['sl'] == 5 and g['ap'] == 1:
            ps = g['ps']
            if ps == 'G1': sec.stream(silu_a(SET[3]), end + 2, end + 287 + 12 * (gc1 - PS['U2']) - 40, "a1", "a0")
            if ps == 'U1':
                sec.stream(silu_b(SET[3], SET[2], 1), end + 2, end + 143 + 12 * (gc1 - PS['U2']), "b1", "a1")
                sec.stream(h_out(SET[2], 1), end + 2, end + 284, "o1", "b1,o0", HSP)
            if ps == 'G2': sec.stream(silu_a(SET[0]), end + 2, end + 380, "a2", "a1")
            if ps == 'U2':
                sec.stream(silu_b(SET[0], SET[1], 2), end + 2, end + 286, "b2", "a2")
                sec.stream(h_out(SET[1], 2), end + 2, end + 300, "o2", "b2", HSP)
            if ps == 'G3': sec.stream(silu_a(SET[3]), end + 2, end + 144 + OPT.get('a3e', 100), "a3", "a2")
            if ps == 'U3':
                sec.stream(silu_b(SET[2], SET[3], 3), end + 2, end + 144 + 22, "b3", "a3")
                sec.stream(h_out(SET[3], 3), end + 2, end + 144 + 100, "o3", "b3,o2", 16)
        if g['kind'] == 'PH' and g['gi'] == 5:
            if g['half'] == 0: sec.stream(silu_a(SET[0], 16), end + 2, end + 72 + 54, "aH", "a3")
            else: sec.stream(silu_bH(SET[0]), end + 2, end + 70, "bH", "aH")
        for it in range(3):
            if gi == PS['G1'] + OPT.get('pfd0', 6) + it * OPT.get('pfdi', 12):
                i = F("buffer_load_dword v%d, v%d, {WD}, 0 offen" % (VDM, VPF))[0]
                if it < 2: i.wr = []
                sec.stream([i] + L("v_add_u32 v%d, %d, v%d" % (VPF, NPF * 128, VPF)), base, base + 10, "pf%d" % it)
        if gi == ga1: sec.stream(signal(ENV['PO1']) + signal(ENV['PO2']), base + 1, base + 11, "ar1")
        for r_, (gam, wo) in enumerate((('GA', 'WA'), ('GB', 'WB'))):
            if gi == PS['U1'] + OPT.get('w%dat' % r_, 1 + 12 * r_): sec.stream(s2_wloads(ENV[gam], ENV[wo], S2W[r_], TMP + 16, TMP + 17), base, base + 22, "w%d" % r_)
        if gi == gc1 - 6:
            q = F(kbx('PO1', 'GA', 0) + kbx('PO2', 'GB', 0)) + poll(VP, ENV['PO1']) + poll(VP + 1, ENV['PO2'])
            q += F("s_cmp_gt_u32 {GA}, 288\ns_cselect_b32 {PE1}, 0, 32\ns_cmp_gt_u32 {GB}, 288\ns_cselect_b32 {PE2}, 0, 32\n" + W0)
            sec.stream(q, base - 12, base + 50, "p1")
        if gi == gc1:
            sec.block(base, F("s_cmp_lg_u32 {GB}, 288\ns_cbranch_scc1 L_s2n_KN") + s2_wspecial(S2W[1], TMP + 16, TMP + 17, "s2n") + L("L_s2n_KN:"))
            q = s2_gaddr(S2T + 6, S2T + 7, False) + s2_dloads(ENV['GA'], ENV['SA'], S2D[0], S2T + 6, S2T + 7) + s2_dloads(ENV['GB'], ENV['SB'], S2D[1], S2T + 6, S2T + 7)
            sec.stream(q, base + 1, base + 30, "dl", "b1")
            sec.stream(dft32(M2, TMP + 16, False) + s2_addr(S2T, 12 * 4096, False), base + 2, base + 12 * (gS2 - gi) + 10, "s2pre", "dl")
        if gi == gS2:
            blk = []
            for r_, (gam, keep) in enumerate((('GA', 'SA'), ('GB', 'SB'))):
                o = "s2c%d" % r_
                blk += F("s_cmp_gt_u32 {%s}, 288\ns_cbranch_scc1 L_%s_KN" % (gam, o))
                blk += s2_compute(ENV[keep], M2, S2D[r_], Z2, S2W[r_], S2T, TMP + 16, 12 * 4096, o) + L("L_%s_KN:" % o)
            sec.block(end - 1, blk)
            q = F(kbx('PO1', 'GA', 9) + kbx('PO2', 'GB', 9))
            q += F("""s_lshl_b32 {u}, {FH}, 3
s_lshl_b32 {w}, {RG}, 12
s_add_u32 {u}, {u}, {w}
v_add_u32 v{HH}, {u}, v{L16B}
s_lshl_b32 {u}, {T}, 1
s_and_b32 {w}, {C}, 1
s_add_u32 {u}, {u}, {w}
s_lshl_b32 {u}, {u}, 19
s_lshl_b32 {w}, {W}, 15
s_add_u32 {u}, {u}, {w}
s_lshr_b32 {w}, {C}, 1
s_lshl_b32 {w}, {w}, 10
s_add_u32 {u}, {u}, {w}
v_add_u32 v{VST_}, {u}, v{L16}
s_lshl_b32 {XA}, {T}, 7
s_lshl_b32 {SB}, {C}, 2
s_add_u32 {XA}, {XA}, {SB}
s_add_u32 {XA}, {XA}, %d
s_xor_b32 {SB}, {XA}, 4
s_cmp_eq_u32 {W}, 0
s_cselect_b32 {SM_}, 1, 0""" % CL(50), **e)
            sec.stream(q[:18], end, end + 12 * (ga2 - gi - 1) - 2, "a2s")
            sec.stream(q[18:], end, end + 200, "a2t", "a2s")
        if gi == ga2: sec.stream(signal(ENV['PO1']) + signal(ENV['PO2']), base + 1, base + 11, "ar2")
        if gi == gc2 - 6:
            q = F("s_lshr_b32 {PO1}, {C}, 1\ns_lshl_b32 {PO1}, {PO1}, 7\ns_add_u32 {PO1}, {PO1}, %d\ns_mov_b32 {PO2}, %d" % (CL(9), CL(17))) + poll(VP, ENV['PO1']) + poll(VP + 1, ENV['PO2'])
            q += F("s_cmp_lt_u32 {C}, 2\ns_cselect_b32 {PE1}, 33, 32\ns_cmp_lt_u32 {KB3}, 16\ns_cselect_b32 {PE2}, 0, 32\n" + W0)
            sec.stream(q, base - 6, base + 30, "p2")
        if gi in (gh1, gh2): sec.stream(signal(ENV['XA']), base + 1, base + 10, "sh%d" % gi)
        if gi == gc2:
            q = stepD_loads(ENV['C'], RAW)
            for i in q:
                i.text = i.text.replace(ENV['a'], ENV['f']).replace(ENV['b'], ENV['g'])
                fx = lambda lst: [('s', 38) if r == ('s', 84) else ('s', 39) if r == ('s', 85) else r for r in lst]
                i.rd = fx(i.rd); i.wr = fx(i.wr)
            sec.stream(q, base + 1, base + 40, "sdl")
        if gi == HU + 3:
            q = poll(VP + 2, ENV['SB'])
            q += F("""s_xor_b32 {u}, {C}, 1
s_sub_u32 {w}, {u}, {C}
s_mul_i32 {w}, {w}, 73728
s_add_u32 {w}, {w}, {HB}
v_add_u32 v%d, {w}, v%d
s_and_b32 {w}, {u}, 1
s_mul_i32 {u}, {u}, %d
s_mul_i32 s%d, {w}, %d
s_add_u32 s%d, s%d, {u}
s_xor_b32 {w}, {w}, 1
s_mul_i32 {w}, {w}, %d
s_add_u32 s%d, {u}, {w}""" % (VQ, V_L16, 288 * 1152, S_KK, 32 * 1152, S_KK, S_KK, 256 * 1152, S_KK + 8))
            for ks in range(1, 8): q += L("s_add_u32 s%d, s%d, %d" % (S_KK + ks, S_KK, ks * 32 * 1152))
            sec.stream(q[:6], base + 6, base + 56, "pq0")
            sec.stream(q[6:], base + 6, base + 130, "pq1", "pq0")
        if gi == P2 + 1:
            blk = F("s_lshl_b32 {a}, {S2}, 12\ns_add_u32 {a}, {a}, %d\ns_cmp_lg_u32 {C}, 0\ns_cbranch_scc1 L_nyl_KN" % WS_B) + stepD_nyloads(RA2, SDT, "nyl") + L("L_nyl_KN:")
            blk += F("s_cmp_lt_u32 {KB3}, 16\ns_cbranch_scc1 L_d2l_KN") + stepD_loads(ENV['KB3'], RA2, opt="d2l") + L("L_d2l_KN:")
            sec.block(base, blk)
        if gi == P2 + 3:
            q = F("s_lshl_b32 {d}, {W}, 11\nv_add_u32 v%d, {d}, v%d" % (V_HH, V_L16B))
            q += L("ds_read_b128 v[%d:%d], v%d\nds_read_b128 v[%d:%d], v%d offset:1024" % (V_SIL, V_SIL + 3, V_HH, V_SIL + 4, V_SIL + 7, V_HH), lds_r=(65536, 73728), tag="lds")
            sec.stream(q, base + 1, base + 16, "hh1", "bH")
            q = F("buffer_store_dwordx4 v[%d:%d], v%d, {WS}, {HB} offen sc1\nbuffer_store_dwordx4 v[%d:%d], v%d, {WS}, {HB} offen offset:1024 sc1"
                  % (V_SIL, V_SIL + 3, V_HH, V_SIL + 4, V_SIL + 7, V_HH), tag="gh2")
            sec.stream(q, base + 20, base + 34, "hh2", "hh1")
            sec.stream(twiddle_D(SET[0], SET[0] + 16), base, base + 24 * (gSD - gi) + 68, "twD", "pq1,bH")
        if gi == gSD:
            SD = stepD_parts(RAW, RA2, NB, SET[0], SET[0] + 16, SDT, 18 * 4096, ENV['C'], ENV['SA'])
            sec.stream(SD[0], base + 1, base + 54, "sd0")
            sec.stream(SD[1], base + 60, base + 69, "sd1", "sd0")
        if gi == gSD + 2:
            for m_ in SD[2]: sec.mfma(m_)
            sec.block(sec.n() - 1, SD[3])
            for m_ in SD[4]: sec.mfma(m_)
            sec.stream(SD[5], sec.n() + 2, sec.n() + 44, "sd5")
        if gi == gSD + 4:
            blk = F("s_cmp_lt_u32 {KB3}, 16\ns_cbranch_scc1 L_d2_KN")
            for part in stepD_parts(RA2, None, NB, SET[0], SET[0] + 16, SDT, 18 * 4096, ENV['KB3'], ENV['SA'], opt="d2"): blk += part
            sec.block(end - 1, blk + L("L_d2_KN:"))
        if gi == gq2 - 2: sec.stream(F("s_lshl_b32 {SM_}, {SM_}, 1") + poll(VP + 2, ENV['SB']), base + 1, base + 8, "pq2")
        if gi == gf8 - 1:
            q = F("""s_lshl_b32 {PO1}, {T}, 7
s_add_u32 {PO1}, {PO1}, %d
s_cmp_eq_u32 {W}, 0
s_cselect_b32 {PE1}, 16, 0
s_lshr_b32 {PE2}, {C}, 2
s_lshl_b32 {u}, {T}, 2
s_add_u32 {u}, {u}, {PE2}
s_mul_i32 {u}, {u}, 36864
s_add_u32 {u}, {u}, %d
v_add_u32 v%d, {u}, v%d""" % (CL(18), WS_Y, VY, V_L16))
            sec.stream(q, base - 20, base + 22, "f8s")
        if gi == gf8: sec.stream(signal(ENV['PO1']), base + 1, base + 12, "f8")
        if gi == gY - 2: sec.stream(poll(VP, ENV['PO1']), base + 1, base + 22, "p8")
        if gi == gY + OPT.get('l8d', 0):
            q = F("""s_and_b32 {u}, {C}, 3
s_lshl_b32 {u}, {u}, 2
s_add_u32 {u}, {u}, {PE2}
s_lshl_b32 {w}, {T}, 4
s_add_u32 {u}, {u}, {w}
s_lshl_b32 {u}, {u}, 2
s_add_u32 {u}, {u}, {W}
s_lshl_b32 {u}, {u}, 12
s_add_u32 {u}, {u}, %d""" % WS_8)
            for i in range(4): q += F("buffer_load_dwordx4 v[%d:%d], v%d, {WS}, {u} offen offset:%d sc1" % (TMP + 4 * i, TMP + 4 * i + 3, V_L16, i * 1024))
            q += F("""s_lshl_b32 {u}, {T}, 1
s_and_b32 {w}, {C}, 1
s_add_u32 {u}, {u}, {w}
s_lshl_b32 {PO1}, {u}, 7
s_add_u32 {PO1}, {PO1}, %d
s_lshr_b32 {PE1}, {PE1}, 1
s_lshl_b32 {XA}, {u}, 2
s_add_u32 {XA}, {XA}, {RG}
s_lshl_b32 {XA}, {XA}, 2
s_and_b32 {w}, {C}, 2
s_add_u32 {XA}, {XA}, {w}
s_add_u32 {XA}, {XA}, {FH}
s_lshl_b32 {XA}, {XA}, 2
s_add_u32 {XA}, {XA}, {PE2}
s_lshl_b32 {XA}, {XA}, 13
s_add_u32 {XA}, {XA}, %d""" % (CL(66), WS_P))
            sec.stream(q[:9], base - 20, base + 4, "l8a", "f8s")
            sec.stream(q[9:13], base + 1, base + 40, "l8b", "l8a", OPT.get('lsp', 6))
            sec.stream(q[13:], base, base + 120, "l8", "l8b")
        if gi == gfa: sec.stream(signal(ENV['PO1']), base + 1, base + 8, "fa")
        if gi == NG - 1 and OPT.get('pae'): sec.stream(poll(VP, ENV['PO1']), base + 4, base + 7, "pA", "fa")
        if g['kind'] == 'P2' and g['gi'] == 2 and g['cb'] in (0, 5, 6, 7, 8):
            cb = g['cb']
            for ip in range(4 if cb < 8 else 3):
                osp = OPT.get('osp', 6)
                st0 = base + 6 * ip + 8 if cb in (0, 8) else base + 8 + osp * ip + (4 * osp - 24 if cb == 6 and IL else 0)
                sec.stream(out_ops(cb, [ip]), st0, min(end - 1, st0 + 6) if cb == 8 else st0 + OPT.get('ow', 12), "out%d%s" % (cb, "" if ip == 3 else "abc"[ip]), ("out%d%s" % (cb, "abc"[ip - 1])) if ip else "out%d" % (cb - 1))
            if cb == 5: sec.stream(TL.pre1(), end, end + 130, "tp1", "out5,tp0")
            if cb == 6: sec.stream(TL.pre2(), end, end + 130, "tp2", "out6,tp1,l8,gl")
        if gi == P2 + 9: TL = Tail(out_ops, 0, VP); sec.stream(TL.pre0(), base, base + 180, "tp0")
        if gi == gY: sec.stream(TL.gl(), base + 1, base + 60, "gl", "tp0")
    p += sec.flatten(verbose=True)
    p += ([] if OPT.get('diag') == 8 else stamp(20)) + TL.main()
    p += stamp_out(2)
    emit(a, name, p, 512, accum=256)

class Tail:
    def __init__(self, out_ops, YB, VP):
        self.out_ops, self.YB, self.VP = out_ops, YB, VP
        self.ST = [SET[2], SET[2] + 16, SET[1]]
        self.FR = [SET[1] + 16, SET[1] + 24, FB + 24]
        self.CO, self.KD, self.VG4, self.G8, self.VS, self.SEL = [7, 8, 9], [10, 11, 12], 13, 14, 15, 24
        self.GV, self.VO, self.V8, self.VO8 = TMP + 16, 30, 31, 19
    def seeds(self, pc, n):
        cur = self.ST[pc] + 8 * n; g4 = self.G8 if pc == 2 else self.VG4; q = []
        for j in range(4): q += L("v_add_f32 v%d, %s, v%d" % (cur + j, f2h(16.0 * n + j), g4))
        for j in range(4): q += F("v_fma_f32 v%d, v%d, v%d, {Q}\nv_mul_f32 v%d, v%d, v%d" % (cur + 4 + j, cur + j, self.KD[pc], cur + j, cur + j, self.KD[pc]))
        for j in range(8): q += L("v_cos_f32 v%d, v%d" % (cur + j, cur + j))
        return q
    def frag(self, pc, n):
        cur = self.ST[pc] + 8 * (n & 1); prv = self.ST[pc] + 8 * ((n + 1) & 1); f = self.FR[pc] + 4 * (n & 1); q = []
        if n >= 2:
            for j in range(8): q += L("v_fma_f32 v%d, v%d, v%d, -v%d" % (cur + j, self.CO[pc], prv + j, cur + j))
        if n == 0:
            q += L("v_cmp_eq_f32 vcc, 0, v%d" % (self.G8 if pc == 2 else self.VG4))
            q += L("v_cvt_pk_bf16_f32 v%d, v%d, v%d\nv_cvt_pk_bf16_f32 v%d, v%d, v%d" % (f + 1, cur + 2, cur + 3, f + 3, cur + 6, cur + 7))
            q += L("v_cndmask_b32 v%d, v%d, 0.5, vcc\nv_cndmask_b32 v%d, v%d, v%d, vcc" % (f, cur, f + 2, cur + 4, self.VS))
            q += L("v_cvt_pk_bf16_f32 v%d, v%d, v%d\nv_cvt_pk_bf16_f32 v%d, v%d, v%d" % (f, f, cur + 1, f + 2, f + 2, cur + 5))
        else:
            for jp in range(4): q += L("v_cvt_pk_bf16_f32 v%d, v%d, v%d" % (f + jp, cur + 2 * jp, cur + 2 * jp + 1))
        return q
    def pre0(self):
        KD, CO, SEL, GV = self.KD, self.CO, self.SEL, self.GV
        p = F("""s_and_b32 {d}, {C}, 3
s_lshl_b32 {d}, {d}, 4
s_and_b32 {e}, {C}, 1
s_lshl_b32 {e}, {e}, 2
s_add_u32 {e}, {e}, {RG}
s_lshl_b32 {e}, {e}, 2
s_and_b32 {a}, {C}, 2
s_add_u32 {e}, {e}, {a}
s_add_u32 {e}, {e}, {FH}
s_lshl_b32 {e}, {e}, 4
v_add_u32 v{ka}, {e}, v1
v_add_u32 v{kb_}, 0x80, v{ka}
v_add_u32 v{kc}, {d}, v1
v_add_u32 v{kc}, 0x200, v{kc}
v_and_b32 v{vs}, 1, v1
v_lshlrev_b32 v{vs}, 31, v{vs}
v_or_b32 v{vs}, 0.5, v{vs}
v_lshlrev_b32 v{g4}, 2, v2
v_cvt_f32_u32 v{g4}, v{g4}
s_mul_i32 {a}, {W}, 80
v_cvt_f32_u32 v{g8}, {a}
v_add_f32 v{g8}, v{g8}, v{g4}""", ka=KD[0], kb_=KD[1], kc=KD[2], vs=self.VS, g4=self.VG4, g8=self.G8)
        for i in range(3): p += L("v_cvt_f32_u32 v%d, v%d\nv_mul_f32 v%d, %s, v%d" % (KD[i], KD[i], CO[i], f2h(1.0 / 36), KD[i]))
        for i in range(3): p += L("v_cos_f32 v%d, v%d" % (CO[i], CO[i]))
        for i in range(3): p += L("v_mul_f32 v%d, %s, v%d\nv_add_f32 v%d, v%d, v%d" % (KD[i], f2h(1.0 / 576), KD[i], CO[i], CO[i], CO[i]))
        p += L("""v_lshrrev_b32 v{a}, 2, v1
v_cmp_eq_u32 vcc, v{a}, v2
v_and_b32 v{b}, 1, v1
v_lshlrev_b32 v{b}, 4, v{b}
v_mov_b32 v{a}, 0x3f80
v_lshlrev_b32 v{b}, v{b}, v{a}
v_cndmask_b32 v{b}, 0, v{b}, vcc
v_and_b32 v{a}, 2, v1
v_cmp_eq_u32 vcc, 0, v{a}
v_mov_b32 v{s0}, 0
v_mov_b32 v{s1}, 0
v_cndmask_b32 v{s2}, 0, v{b}, vcc
v_cndmask_b32 v{s3}, v{b}, 0, vcc
v_mov_b32 v{s4}, 0
v_mov_b32 v{s5}, 0""".format(a=SEL + 4, b=SEL + 5, s0=SEL, s1=SEL + 1, s2=SEL + 2, s3=SEL + 3, s4=SEL + 4, s5=SEL + 5))
        return p
    def gl(self):
        GV = self.GV
        return F("""s_lshl_b32 {a}, {T}, 9
s_lshl_b32 {b}, {PE2}, 7
s_add_u32 {a}, {a}, {b}
s_add_u32 {a}, {a}, %d
s_add_u32 {b}, {a}, %d
v_lshlrev_b32 v{t}, 2, v1
buffer_load_dword v{g}, v{t}, {WS}, {a} offen sc1
buffer_load_dword v{g1}, v{t}, {WS}, {a} offen offset:64 sc1
buffer_load_dword v{g2}, v{t}, {WS}, {b} offen sc1
buffer_load_dword v{g3}, v{t}, {WS}, {b} offen offset:64 sc1""" % (WS_G, WS_O - WS_G), t=self.VO, g=GV, g1=GV + 1, g2=GV + 2, g3=GV + 3)
    def pre1(self):
        return self.seeds(0, 0) + self.seeds(0, 1) + self.seeds(1, 0) + self.seeds(1, 1)
    def pre2(self):
        p = self.seeds(2, 0) + self.seeds(2, 1)
        for pc in range(3): p += self.frag(pc, 0) + self.frag(pc, 1)
        sc_ = f2h(2.0 / (2048 * 576))
        p += F("""v_mul_f32 v{g}, %s, v{g}
v_mul_f32 v{g1}, %s, v{g1}
v_and_b32 v{o}, 31, v0
v_mul_u32_u24 v{o}, %d, v{o}
v_lshrrev_b32 v{t}, 5, v0
v_lshl_add_u32 v{o}, v{t}, 4, v{o}
s_and_b32 {a}, {PE2}, 1
s_lshl_b32 {a}, {a}, 10
s_lshr_b32 {b}, {PE2}, 1
s_add_u32 {a}, {a}, {b}
s_lshl_b32 {b}, {T}, 1
s_add_u32 {a}, {a}, {b}
s_mul_i32 {a}, {a}, 1152
s_lshl_b32 {d}, {d}, 1
s_add_u32 {d}, {d}, {a}
s_lshl_b32 {e}, {e}, 1
s_add_u32 {e}, {e}, {a}
s_mul_i32 {a}, {W}, 10240
v_add_u32 v{t}, {a}, v{l}
s_cmp_eq_u32 {W}, 0
s_cselect_b32 {a}, 0, 0x80000000
v_or_b32 v{o8}, {a}, v{o}
s_add_u32 {SA}, {XA}, 262144
s_add_u32 {SB}, {XA}, 266240""" % (sc_, sc_, 32 * 1152), g=self.GV, g1=self.GV + 1, o=self.VO, t=self.V8, l=V_L16, o8=self.VO8)
        return p
    def main(self):
        YB, VP, FR, SEL, GV, V8 = self.YB, self.VP, self.FR, self.SEL, self.GV, self.V8
        SENT = OPT.get('sent')
        YF = 224; AC = [240, 248, SET[3]]
        SMQ = lambda pc, h: SET[3] + 8 + 8 * pc + 4 * h
        PAr = lambda i: A(4 * i, 4)
        PBr = lambda i: V(FB + 4 * i, 4) if i < 6 else V(TMP + 4 * (i - 6), 4)
        P8r = lambda i: V(TMP + 4 * i, 4)
        yr = (YB, YB + 36864)
        def yrd(n, va, o):
            r = YF + 8 * (n & 1)
            return L("ds_read_b128 v[%d:%d], v%d offset:%d\nds_read_b128 v[%d:%d], v%d offset:%d" % (r, r + 3, va, o, r + 4, r + 7, va, o + 1024), lds_r=yr)
        def pload(regs, i):
            q = F("buffer_load_dwordx4 %s, v%d, {WS}, {XA} offen offset:%d sc1" % (rs(regs), V_L16, (i % 4) * 1024))
            return q + (F("s_add_u32 {XA}, {XA}, 4096") if i % 4 == 3 else [])
        def summ(pc, regs, first):
            return [mf(V(SMQ(pc, h), 4), V(SEL + 2 - 2 * h, 4), regs, None if first else V(SMQ(pc, h), 4)) for h in range(2)]
        def combine(pc): return [I("v_mul_f32 v%d, v%d, v%d" % (AC[pc] + r, AC[pc] + r, GV + (r >> 2))) for r in range(8)]
        def combine2(pc): return [I("v_fma_f32 v%d, v%d, v%d, v%d" % (AC[pc] + r, SMQ(pc, r >> 2) + (r & 3), GV + 2 + (r >> 2), AC[pc] + r)) for r in range(8)]
        def store(b, so, off, va):
            q = []
            for d in range(4): q += L("v_cvt_pk_bf16_f32 v%d, v%d, v%d" % (b + d, b + 2 * d, b + 2 * d + 1))
            q += L("v_permlane16_swap_b32 v%d, v%d\nv_permlane16_swap_b32 v%d, v%d" % (b, b + 2, b + 1, b + 3))
            return q + F("buffer_store_dwordx4 v[%d:%d], v%d, {OUT}, %s offen offset:%d%s" % (b, b + 3, va, so, off, OPT.get('ofl', "")))
        p = ts(3) + yrd(0, V8, YB) + yrd(1, V8, YB + 2048) + self.out_ops(8, [3]) + ([] if OPT.get('pae') else poll(VP, ENV['PO1'])) + ts(4)
        for i in range(4): p += summ(2, P8r(i), i == 0)
        for n in range(5):
            o = "q8" if n >= 3 else False
            if n == 3: p += F("s_cmp_eq_u32 {W}, 3\ns_cbranch_scc1 L_q8_KN")
            q = []
            if n == 3: q += yrd(3, V8, YB + 3 * 2048) + yrd(4, V8, YB + 4 * 2048) + self.frag(2, 3)
            for h in range(2):
                acc = V(AC[2] + 4 * h, 4)
                q.append(mf(acc, V(FR[2] + 4 * (n & 1), 4), V(YF + 8 * (n & 1) + 4 * h, 4), acc if n else None))
            if n == 0: q += yrd(2, V8, YB + 2 * 2048) + self.frag(2, 2)
            if n == 3: q += self.frag(2, 4)
            for i in q: i.opt = o
            p += q
        p += L("L_q8_KN:") + yrd(0, V_L16, YB)
        XB = 9 * 4096
        p += F("s_lshl_b32 {a}, {W}, 11\nv_add_u32 v%d, {a}, v%d" % (V8, V_L16)) + combine(2) + combine2(2)
        p += L("ds_write_b128 v%d, v[%d:%d] offset:%d\nds_write_b128 v%d, v[%d:%d] offset:%d" % (V8, AC[2], AC[2] + 3, XB, V8, AC[2] + 4, AC[2] + 7, XB + 1024), lds_w=(XB, XB + 8192), tag="r8")
        bl = lambda i: "buffer_load_dwordx4 %s, v%d, {WS}, {%s} offen offset:%d sc1" % (rs(PBr(i)), V_L16, "SA" if i < 4 else "SB", (i % 4) * 1024)
        sec = Sec2()
        ksB, kcB = OPT.get('ksb', 1), OPT.get('kcb', 8)
        R8 = SET[0]
        for kb in range(18):
            b0 = sec.n()
            for pc in range(2):
                for h in range(2):
                    acc = V(AC[pc] + 4 * h, 4)
                    sec.mfma(mf(acc, V(FR[pc] + 4 * (kb & 1), 4), V(YF + 8 * (kb & 1) + 4 * h, 4), acc if kb else None))
            if kb >= 14:
                for i in (2 * (kb - 14), 2 * (kb - 14) + 1):
                    for m_ in summ(0, PAr(i), i == 0): sec.mfma(m_)
            e0 = sec.n() - 1
            if kb < 17: sec.at(b0, yrd(kb + 1, V_L16, YB + (kb + 1) * 2048))
            if 1 <= kb < 17: sec.stream(self.frag(0, kb + 1) + self.frag(1, kb + 1), b0, e0)
            blk = []
            if kb == ksB:
                blk += ts(5) + check("A", VP, ENV['PO1'], ENV['PE1'], sidx=24) + ts(6) + L("s_barrier", need_vm=() if SENT else ("pB",), need_lgkm=("r8",))
                if not SENT: blk += F("s_add_u32 {PO2}, {PO1}, 4") + signal(ENV['PO2']) + poll(VP + 1, ENV['PO2'])
                blk += ts(7)
                for i in range(8): blk += pload(PAr(i), i)
                for i in range(8): blk += L("ds_read_b128 v[%d:%d], v%d offset:%d" % (R8 + 4 * i, R8 + 4 * i + 3, V_L16, XB + i * 1024), lds_r=(XB, XB + 8192))
                blk += ts(8)
            if kb == kcB:
                if not SENT: blk += check("B", VP + 1, ENV['PO2'], ENV['PE1'], sidx=25) + L("s_barrier")
                for i in range(8): blk += F(bl(i))
                blk += ts(9)
            if blk: sec.block(e0, blk)
        p += sec.flatten() + ts(12)
        for r in range(8): p += L("v_add_f32 v%d, v%d, v%d\nv_add_f32 v%d, v%d, v%d\nv_add_f32 v%d, v%d, v%d" % (R8 + r, R8 + r, R8 + 8 + r, R8 + 16 + r, R8 + 16 + r, R8 + 24 + r, R8 + r, R8 + r, R8 + 16 + r))
        p += store(R8, ENV['d'], 1024, self.VO8)
        p += combine(0) + combine2(0) + store(AC[0], ENV['e'], 0, self.VO) + combine(1)
        MX = 4
        def mx(i, acc):
            r = PBr(i)[0][1]
            if acc: return "v_max3_u32 v%d, v%d, v%d, v%d\nv_max3_u32 v%d, v%d, v%d, v%d" % (MX, MX, r, r + 1, MX, MX, r + 2, r + 3)
            return "v_max3_u32 v%d, v%d, v%d, v%d\nv_max_u32 v%d, v%d, v%d" % (MX, r, r + 1, r + 2, MX, MX, r + 3)
        for i in range(8 if SENT else 0): p += L(mx(i, i > 0))
        if SENT: p += L("v_cmp_eq_u32 vcc, -1, v%d\ns_nop 4\ns_cbranch_vccnz L_rt_KN\nL_rb_KN:" % MX)
        o = "L_rt_KN:\ns_mov_b32 s5, 0\nL_rl_KN:\ns_mov_b32 s4, 0\n"
        for i in range(8):
            o += mx(i, False) + "\nv_cmp_eq_u32 vcc, -1, v%d\ns_nop 4\ns_cbranch_vccz L_rs%d_KN\n" % (MX, i) + bl(i).format(**ENV) + "\ns_mov_b32 s4, 1\nL_rs%d_KN:\n" % i
        o += "s_add_u32 s5, s5, 1\n"
        if OPT['stamps']: o += "v_writelane_b32 v%d, s5, 25\n" % VST[0]
        o += "s_cmp_eq_u32 s4, 0\ns_cbranch_scc1 L_rb_KN\ns_waitcnt vmcnt(0)\ns_cmp_lt_u32 s5, 0x40000\ns_cbranch_scc1 L_rl_KN\ns_branch L_rb_KN"
        if SENT: SPINS.append(o)
        p += stamp(21)
        for i in range(8): p += summ(1, PBr(i), i == 0)
        p += combine2(1) + store(AC[1], ENV['e'], 256, self.VO)
        return p

if __name__ == "__main__":
    for x in sys.argv[2:]:
        k, v = x.split("=")
        OPT[k] = int(v) if v.lstrip("-").isdigit() else v.replace("_", " ")
    a = Asm()
    kernel_main(a)
    a.launches = ['; @launch grid=(256,1,1) block=(256,1,1) lds=163840']
    a(".fill 5120, 4, 0xbf800000")
    open(sys.argv[1], "w").write(a.text())
```

```python
import re, sys

def R(kind, lo, n=1):
    return [(kind, lo + i) for i in range(n)]
def V(lo, n=1): return R('v', lo, n)
def A(lo, n=1): return R('a', lo, n)
def S(lo, n=1): return R('s', lo, n)
def rs(regs):
    k, lo = regs[0]
    n = len(regs)
    for i, r in enumerate(regs):
        assert r == (k, lo + i), regs
    return "%s%d" % (k, lo) if n == 1 else "%s[%d:%d]" % (k, lo, lo + n - 1)

TRANS = ("v_exp_f32", "v_rcp_f32", "v_sin_f32", "v_cos_f32", "v_log_f32", "v_rsq_f32", "v_sqrt_f32")

class Ins:
    seq = 0
    def __init__(self, text, kind, rd=(), wr=(), **kw):
        self.text = text; self.kind = kind
        self.rd = list(rd); self.wr = list(wr)
        self.lds_r = kw.get("lds_r")
        self.lds_w = kw.get("lds_w")
        self.priv = kw.get("priv", False)
        self.tag = kw.get("tag")
        self.need_vm = kw.get("need_vm", ())
        self.need_lgkm = kw.get("need_lgkm", ())
        self.opt = kw.get("opt", False)
        self.mC = kw.get("mC", ())
        self.wide = kw.get("wide", False)
        self.passes = kw.get("passes", 4)
        self.op = text.split()[0] if text else ""
        self.trans = self.op.replace("_e32", "").replace("_e64", "") in TRANS
        Ins.seq += 1
        self.id = Ins.seq
    def cost(self):
        if self.kind == 'valu': return 8 if self.trans else 4
        return 4

_reg_re = re.compile(r"\b([vas])(\d+)\b|\b([vas])\[(\d+):(\d+)\]")
def parse_regs(tok):
    out = []
    for m in _reg_re.finditer(tok):
        if m.group(1): out.append((m.group(1), int(m.group(2))))
        else: out += R(m.group(3), int(m.group(4)), int(m.group(5)) - int(m.group(4)) + 1)
    if re.search(r"\bvcc\b", tok): out.append(('s', 'vcc'))
    if re.search(r"\bm0\b", tok): out.append(('s', 'm0'))
    if re.search(r"\bexec\b", tok): out.append(('s', 'exec'))
    return out

def split_ops(s):
    out, depth, cur = [], 0, ""
    for ch in s:
        if ch == "[" or ch == "(": depth += 1
        if ch == "]" or ch == ")": depth -= 1
        if ch == "," and depth == 0:
            out.append(cur.strip()); cur = ""
        else: cur += ch
    if cur.strip(): out.append(cur.strip())
    return out

RMW = ("v_writelane_b32", "v_fmac_f32", "v_dot2c_f32_bf16", "v_permlane32_swap_b32", "v_permlane16_swap_b32")
def I(text, **kw):
    text = text.strip()
    op = text.split()[0]
    rest = text[len(op):].strip()
    ops = split_ops(rest)
    rd, wr = [], []
    if op.startswith("v_mfma"):
        wr = parse_regs(ops[0]); rd = parse_regs(ops[1]) + parse_regs(ops[2]) + parse_regs(ops[3])
        return Ins(text, 'mfma', rd, wr, mC=parse_regs(ops[3]), passes=(8 if "32x32x16" in op else 4), **kw)
    if op.startswith("ds_read"):
        return Ins(text, 'ds', parse_regs(ops[1]), parse_regs(ops[0]), **kw)
    if op.startswith("ds_write"):
        return Ins(text, 'ds', parse_regs(rest), [], **kw)
    if op.startswith("ds_bpermute") or op.startswith("ds_swizzle"):
        return Ins(text, 'ds', parse_regs(",".join(ops[1:])), parse_regs(ops[0]), **kw)
    if op.startswith("buffer_load"):
        if rest.endswith(" lds"):
            return Ins(text, 'dma', parse_regs(rest) + [('s', 'm0')], [], **kw)
        w = parse_regs(ops[0])
        r = parse_regs(",".join(ops[1:]))
        return Ins(text, 'vmem', r, w, **kw)
    if op.startswith("buffer_store"):
        return Ins(text, 'vmem', parse_regs(rest), [], wide=("x4" in op or "x3" in op), **kw)
    if op.startswith("buffer_atomic"):
        w = parse_regs(ops[0]) if " sc0" in rest else []
        return Ins(text, 'vmem', parse_regs(rest), w, **kw)
    if op == "s_barrier": return Ins(text, 'bar', **kw)
    if op in ("s_nop", "s_setprio", "s_sleep"): return Ins(text, 'nop', **kw)
    if op == "s_waitcnt": return Ins(text, 'wait', **kw)
    if op.startswith("s_cbranch") or op == "s_branch" or op == "s_endpgm":
        return Ins(text, 'br', [('s', 'scc')] if "scc" in op else ([('s', 'exec')] if "exec" in op else ([('s','vcc')] if "vcc" in op else [])), [], **kw)
    if text.endswith(":"): return Ins(text, 'label', **kw)
    if op.startswith("s_load") or op.startswith("s_mem"):
        return Ins(text, 'smem', parse_regs(",".join(ops[1:])), parse_regs(ops[0]), **kw)
    if op.startswith("s_cmp"):
        return Ins(text, 'salu', parse_regs(rest), [('s', 'scc')], **kw)
    if op.startswith("s_"):
        wr = parse_regs(ops[0]); rd = parse_regs(",".join(ops[1:]))
        if op.startswith("s_cselect") or op.startswith("s_addc"): rd.append(('s', 'scc'))
        if not (op.startswith("s_mov") or op.startswith("s_cselect") or op.startswith("s_mul") or op.startswith("s_getreg")):
            wr.append(('s', 'scc'))
        if "saveexec" in op: wr.append(('s', 'exec')); rd.append(('s', 'exec'))
        return Ins(text, 'salu', rd, wr, **kw)
    if op.startswith("v_"):
        wr = parse_regs(ops[0]); rd = parse_regs(",".join(ops[1:]))
        b = op.replace("_e32", "").replace("_e64", "")
        if b in RMW: rd += wr
        if "permlane" in b and "swap" in b: wr = wr + parse_regs(ops[1])
        return Ins(text, 'valu', rd, wr, **kw)
    raise ValueError(text)

def L(text, **kw):
    return [I(t, **kw) for t in text.strip().split("\n") if t.strip()]

class Sec:
    def __init__(self):
        self.m = []
        self.pre = []
        self.pin = {}
        self.streams = []
    def n(self): return len(self.m)
    def mfma(self, ins): self.m.append(ins); return len(self.m) - 1
    def at(self, idx, ins):
        if not isinstance(ins, list): ins = [ins]
        if idx < 0: self.pre += ins
        else: self.pin.setdefault(idx, []).extend(ins)
    def stream(self, lst, start, end):
        self.streams.append([list(lst), start, end])
    def flatten(self, cap=8):
        out = list(self.pre)
        n = len(self.m)
        st = [dict(ops=s[0], pos=0, start=s[1], end=min(s[2], n - 1), tot=sum(i.cost() for i in s[0]), done=0) for s in self.streams]
        for g in range(n):
            out.append(self.m[g])
            pins = self.pin.get(g, [])
            out += pins
            room = cap - sum(4 for p in pins if p.kind in ('ds', 'dma', 'vmem', 'salu', 'valu', 'bar'))
            act = [s for s in st if s['start'] <= g and s['pos'] < len(s['ops'])]
            while True:
                best = None; bl = -1e9
                for s in act:
                    if s['pos'] >= len(s['ops']): continue
                    span = max(1, s['end'] - s['start'] + 1)
                    target = s['tot'] * min(1.0, (g - s['start'] + 1) / span)
                    lag = target - s['done']
                    c = s['ops'][s['pos']].cost()
                    must = g >= s['end'] or lag >= 3 * 8
                    if (must or (c <= room and lag > 0)) and (lag + (1e6 if must else 0)) > bl:
                        best = s; bl = lag + (1e6 if must else 0)
                if best is None: break
                ins = best['ops'][best['pos']]
                out.append(ins); best['pos'] += 1; best['done'] += ins.cost(); room -= ins.cost()
        for s in st:
            assert s['pos'] == len(s['ops']), "stream not drained"
        return out

def check_order(prog):
    def producers(seq):
        last = {}; res = {}
        for i in seq:
            res[i.id] = {r: last.get(r) for r in i.rd}
            for r in i.wr: last[r] = i.id
        return res
    a = producers(sorted(prog, key=lambda i: i.id)); b = producers(prog)
    byid = {i.id: i for i in prog}
    bad = 0
    for k in a:
        if a[k] != b[k]:
            for r in a[k]:
                if a[k][r] != b[k][r]:
                    bad += 1
                    if bad < 10:
                        f = lambda x: byid[x].text if x else None
                        print("ORDER VIOLATION at '%s' reg %s: logical producer '%s' scheduled producer '%s'" % (byid[k].text, r, f(a[k][r]), f(b[k][r])))
    assert bad == 0, "order violations: %d" % bad

def insert_waits(prog):
    out = []
    vm = []; lg = []
    local = {}
    def need(lst, idx, cur_opt):
        op = lst[idx]
        return sum(1 for y in lst[idx + 1:] if (not y.opt) or (y.opt == cur_opt))
    for i in prog:
        if i.kind == 'wait':
            m = re.search(r"vmcnt\((\d+)\)", i.text)
            if m and int(m.group(1)) == 0 and not i.opt:
                for y in vm: y.done_pos = len(out)
                vm = []
            m = re.search(r"lgkmcnt\((\d+)\)", i.text)
            if m and int(m.group(1)) == 0 and not i.opt:
                for y in lg: y.done_pos = len(out)
                lg = []
            out.append(i); continue
        touched = set(i.rd) | (set() if getattr(i, 'nowaw', False) else set(i.wr))
        nv = nl = None; iv = il = -1
        loc = local.setdefault(i.opt, set()) if i.opt else set()
        for k, y in enumerate(vm):
            if id(y) in loc: continue
            if (set(y.wr) & touched) or (y.tag is not None and y.tag in i.need_vm): iv = k
        for k, y in enumerate(lg):
            if id(y) in loc: continue
            if (set(y.wr) & touched) or (y.tag is not None and y.tag in i.need_lgkm): il = k
        parts = []
        if iv >= 0:
            nv = min(63, need(vm, iv, i.opt)); parts.append("vmcnt(%d)" % nv)
        if il >= 0:
            nl = min(15, need(lg, il, i.opt))
            if any(y.kind == 'smem' for y in lg): nl = 0; il = len(lg) - 1
            parts.append("lgkmcnt(%d)" % nl)
        if parts:
            w = Ins("s_waitcnt " + " ".join(parts), 'wait'); w.opt = i.opt
            def retire(lst, idx):
                keep = []
                for k, y in enumerate(lst):
                    if k <= idx and (not i.opt or y.opt == i.opt):
                        y.done_pos = len(out)
                    else:
                        keep.append(y)
                        if k <= idx: loc.add(id(y))
                return keep
            if iv >= 0: vm = retire(vm, iv)
            if il >= 0: lg = retire(lg, il)
            out.append(w)
        if i.kind == 'need': continue
        i.pos = len(out)
        out.append(i)
        if i.kind in ('vmem', 'dma'): i.done_pos = None; vm.append(i)
        if i.kind in ('ds', 'smem'): i.done_pos = None; lg.append(i)
    return out

def states(i):
    if i.kind == 'label': return 0
    if i.op == "s_nop": return int(i.text.split()[1]) + 1
    return 1

def insert_nops(prog):
    out = []
    W = 400
    for i in prog:
        need = 0
        dist = 0
        rd = set(i.rd); wr = set(i.wr)
        for p in reversed(out[-W:]):
            req = 0
            pw = set(p.wr)
            if p.kind == 'valu':
                vw = {r for r in pw if r[0] in 'va'}
                sw = {r for r in pw if r[0] == 's'}
                if i.kind == 'mfma' and vw & rd: req = max(req, 2)
                if i.kind == 'valu':
                    if p.trans and not i.trans and vw & rd: req = max(req, 1)
                    if "permlane" in i.op and vw & rd: req = max(req, 2)
                    if ("dpp" in i.text or "row_" in i.text or "quad_perm" in i.text) and vw & rd: req = max(req, 2)
                    if ("readfirstlane" in i.op or "readlane" in i.op) and vw & rd: req = max(req, 1)
                    if sw & rd: req = max(req, 2)
                if i.kind in ('vmem', 'dma') and sw & rd: req = max(req, 5)
                if i.kind in ('salu', 'br') and sw & rd: req = max(req, 2)
            if p.kind == 'mfma':
                big = {4: 8, 8: 12}[p.passes]
                if i.kind == 'mfma':
                    c = set(i.mC); ab = rd - c
                    if pw & ab: req = max(req, big)
                    if pw & c and list(i.mC) != list(p.wr): req = max(req, {4: 6, 8: 10}[p.passes])
                elif i.kind in ('valu', 'vmem', 'ds', 'dma'):
                    if pw & (rd | wr): req = max(req, big)
                    if i.kind == 'valu' and set(p.mC) & wr: req = max(req, {4: 3, 8: 7}[p.passes])
            if p.kind == 'salu' and ('s', 'm0') in pw and i.kind == 'dma': req = max(req, 1)
            if p.kind == 'vmem' and p.wide and not p.wr and wr & {r for r in p.rd if r[0] in 'va'}: req = max(req, 2)
            if req > dist: need = max(need, req - dist)
            if not (p.opt and p.opt != i.opt): dist += states(p)
            if dist >= 20: break
        while need > 0:
            k = min(need, 16)
            n = Ins("s_nop %d" % (k - 1), 'nop'); n.opt = i.opt
            out.append(n); need -= k
        out.append(i)
    return out

def check_lds(prog):
    bars = [i.pos for i in prog if i.kind == 'bar' and not i.opt]
    obars = [(i.pos, i.opt) for i in prog if i.kind == 'bar' and i.opt]
    import bisect
    def bar_between(a, b, o1=False, o2=False):
        k = bisect.bisect_right(bars, a)
        if k < len(bars) and bars[k] < b: return True
        return any(a < q < b and (o == o1 or o == o2) for q, o in obars)
    acc = [i for i in prog if i.lds_r or i.lds_w]
    G = 256
    lastw = {}; lastr = {}
    bad = 0
    def rep(kind, p, i):
        nonlocal bad
        bad += 1
        if bad < 10: print("LDS %s violation: '%s' (pos %d done %s) -> '%s' (pos %d)" % (kind, p.text, p.pos, p.done_pos, i.text, i.pos))
    def ok(p, i, samegroup):
        if p.opt and i.opt and p.opt != i.opt and str(p.opt).startswith('ex') and str(i.opt).startswith('ex'): return True
        if p.priv and i.priv:
            if p.kind == 'ds' and i.kind == 'ds': return True
            return p.done_pos is not None and p.done_pos <= i.pos
        return p.done_pos is not None and bar_between(p.done_pos, i.pos, p.opt, i.opt)
    for i in acc:
        if i.lds_r:
            for g in range(i.lds_r[0] // G, (i.lds_r[1] + G - 1) // G):
                ws = lastw.get(g)
                assert ws, "read of never-written LDS: %s" % i.text
                for p in ws:
                    if not ok(p, i, False): rep("RAW", p, i)
                lastr.setdefault(g, []).append(i)
        if i.lds_w:
            for g in range(i.lds_w[0] // G, (i.lds_w[1] + G - 1) // G):
                rr = lastr.get(g, [])
                for p in rr:
                    if not ok(p, i, False): rep("WAR", p, i)
                if rr:
                    lastw[g] = [i]; lastr[g] = []
                else:
                    lastw.setdefault(g, []).append(i)
    assert bad == 0, "LDS violations: %d" % bad

def finish(prog, check=True):
    if check: check_order(prog)
    p = insert_waits(prog)
    if check: check_lds(p)
    p = insert_nops(p)
    return p

def stats(p):
    from collections import Counter
    c = Counter(i.kind for i in p)
    return dict(c)


def slots(i):
    k = i.kind
    if k == 'valu':
        return (2 if (i.trans or "permlane" in i.op) else 1, False)
    if k == 'ds':
        if i.op == "ds_write_b128": return (5, True)
        if i.op in ("ds_write_b64", "ds_write2_b32"): return (3, True)
        if i.op == "ds_write_b32": return (2, False)
        return (1, False)
    if k == 'dma': return (2, True)
    if k == 'vmem':
        return ((5 if i.wide else 3), True) if 'store' in i.op else (2, True)
    if k == 'bar': return (2, True)
    if k == 'need': return (0, False)
    return (1, False)

def is_scalar(i): return i.kind in ('salu', 'wait', 'nop', 'need')

def Need(vm=(), lgkm=(), regs=()):
    return Ins("", 'need', rd=regs, need_vm=tuple(vm), need_lgkm=tuple(lgkm))

class Sec2:
    def __init__(self):
        self.m = []; self.pre = []
        self.sc = {}
        self.pin = {}
        self.blk = {}
        self.streams = []
        self.smooth = False; self.margin = 4; self.eff = 0.98; self.hor = 200; self.sm0 = 0
    def n(self): return len(self.m)
    def mfma(self, ins): self.m.append(ins); return len(self.m) - 1
    def at(self, g, ins):
        for i in (ins if isinstance(ins, list) else [ins]):
            (self.sc if is_scalar(i) else self.pin).setdefault(g, []).append(i)
    def block(self, g, lst): self.blk.setdefault(g, []).extend(lst)
    def free(self, g):
        return not self.sc.get(g) and not self.pin.get(g)
    def room(self, g):
        r = 2 - sum(slots(i)[0] for i in self.pin.get(g, [])) - max(0, len(self.sc.get(g, [])) - 1)
        return r
    def stream(self, lst, start, end, name="", after=None, spacing=0):
        aft = [s for s in self.streams if after and s['name'] in after.split(",")]
        self.streams.append(dict(ops=list(lst), pos=0, start=start, end=end, name=name, after=aft, spacing=spacing, nb=0))
    def flatten(self, verbose=False):
        out = list(self.pre); n = len(self.m)
        over = 0; idle = 0
        self.over_at = {}; self.idle_at = {}
        def basecap(g):
            if any(slots(i)[1] for i in self.pin.get(g, [])): return 0
            return max(0, self.room(g))
        pref = [0]
        for g in range(n): pref.append(pref[-1] + basecap(g))
        def vcost(i): return 0 if is_scalar(i) else min(2, slots(i)[0])
        for s in self.streams:
            c = [vcost(i) for i in s['ops']]
            s['suf'] = [sum(c[k:]) for k in range(len(c) + 1)]
        byend = sorted(self.streams, key=lambda s: s['end'])
        def pressure(g):
            dem = 0; worst = 0.0
            for s in byend:
                if s['pos'] >= len(s['ops']): continue
                if s['end'] > g + self.hor: break
                dem += s['suf'][s['pos']]
                e = min(max(g, s['end'] - self.margin), n - 1)
                ex = dem - self.eff * (pref[e + 1] - pref[g])
                if ex > 0: worst = max(worst, ex / max(1, e - g + 1))
            return worst
        credit = 0.0
        for g in range(n):
            sc = list(self.sc.get(g, [])); vec = list(self.pin.get(g, []))
            room = self.room(g)
            excl = any(slots(i)[1] for i in vec)
            if excl: room = min(room, 0)
            bonus = 0
            if self.smooth and g >= self.sm0:
                credit = min(2.0, credit + pressure(g))
                if credit >= 1.0 and not excl: bonus = int(credit); room += bonus
            act = sorted([s for s in self.streams if s['start'] <= g and s['pos'] < len(s['ops'])], key=lambda s: -1 if s['spacing'] else s['end'])
            took = set()
            while True:
                prog = False
                for s in act:
                    if s['pos'] >= len(s['ops']): continue
                    if any(t['pos'] < len(t['ops']) for t in s['after']): continue
                    i = s['ops'][s['pos']]
                    c, ex = slots(i)
                    force = g >= min(s['end'], n - 1)
                    if g < s['nb'] and not force: continue
                    if is_scalar(i):
                        unit = [i]
                        while s['pos'] + len(unit) < len(s['ops']) and ('s', 'scc') in s['ops'][s['pos'] + len(unit)].rd:
                            unit.append(s['ops'][s['pos'] + len(unit)])
                        left = len(s['ops']) - s['pos']
                        urgent = (min(s['end'], n - 1) - g) < 2 * left
                        if not sc and not excl and id(s) not in took and not (took and s['after']) and room >= len(unit) - 1:
                            sc += unit; room -= len(unit) - 1
                        elif (urgent and room >= len(unit)) or force: vec += unit; room -= len(unit)
                        else: continue
                        s['pos'] += len(unit) - 1
                    elif ex:
                        if not sc and not vec: vec.append(i); room -= bonus + c; bonus = 0; excl = True; room = min(room, 0)
                        elif force: vec.append(i); room -= c
                        else: continue
                    else:
                        if room >= c or force: vec.append(i); room -= c
                        else: continue
                    took.add(id(s))
                    if s['spacing'] and not is_scalar(i): s['nb'] = g + s['spacing']
                    s['pos'] += 1; prog = True
                    if s['pos'] == len(s['ops']): s['done_at'] = g
                    break
                if not prog: break
            if bonus:
                usedb = min(bonus, max(0, bonus - max(room, 0))); credit -= usedb; room -= bonus
            if room < 0: over -= room; self.over_at[g] = -room
            else: idle += room; self.idle_at[g // 72 * 72] = self.idle_at.get(g // 72 * 72, 0) + room
            out.append(self.m[g]); out += sc + vec + self.blk.get(g, [])
        for s in self.streams:
            assert s['pos'] == len(s['ops']), "stream not drained " + s['name']
        if verbose:
            print("flatten: mfma %d overflow slots %d idle slots %d" % (n, over, idle), file=sys.stderr)
            reg = {}
            for g, o in self.over_at.items(): reg[g // 72 * 72] = reg.get(g // 72 * 72, 0) + o
            print("   overflow by region:", reg, file=sys.stderr)
            print("   idle by region:", self.idle_at, file=sys.stderr)
            for s in self.streams:
                if s['name']: print("   stream %-10s %4d..%4d done at %d (%d ops)" % (s['name'], s['start'], s['end'], s.get('done_at', -1), len(s['ops'])), file=sys.stderr)
        return out
```

```python
import sys, math, struct
from asmlib import *
from fw import *

WS_A = 0x000000
WS_B = 0x300000
WS_Y = 0x3000000
WS_G = 0x600000
WS_O = 0x602000
WS_P = 0x800000
WS_C = 0x620000
WS_8 = 0x1c00000
WS_H = 0x3400000
CL = lambda n: WS_C + 128 * n
WS_N = 0x610000
KB_STRIDE = 131072
MF = "v_mfma_f32_16x16x32_bf16"
def f2h(x): return "0x%08x" % struct.unpack("<I", struct.pack("<f", x))[0]
def mf(d, a, b, c, opt=False):
    return I("%s %s, %s, %s, %s" % (MF, rs(d), rs(a), rs(b), rs(c) if c else "0"), opt=opt)
def F(text, opt=False, tag=None, **env):
    e = dict(ENV); e.update(env)
    kw = {}
    for k in ("lds_r", "lds_w", "priv", "need_vm", "need_lgkm"):
        if k in env: kw[k] = env[k]
    return L(text.format(**e), opt=opt, tag=tag, **kw)

ENV = dict(X="s[8:11]", WG="s[12:15]", WU="s[16:19]", WD="s[20:23]", WS="s[24:27]", DBG="s[28:31]", WP="s[32:35]", WA="s36", WB="s37", f="s38", g="s39", GW="s[40:43]", OUT="s[40:43]", PO1="s75", PO2="s76", PE1="s77", PE2="s78", XA="s83", HB="s46", HT="s47", S8="s44", SM_="s45",
           T="s79", C="s80", W="s81", W1K="s82", KB="s83", RG="s87", FH="s88", S2="s89", a="s84", b="s85", c="s86", d="s92", e="s93",
           Q="s94", KB3="s95", NL="s96", KB1="s97", GA="s98", GB="s99", SA="s100", SB="s101", ST="s90", SP="s91", u="s6", w="s7", ROT="s3")
S_KK, S_DK, S_XQ = 48, 66, 75
OPT = dict(stamps=False, BI=2, sc1p=True)
VST = [223]
def stamp(idx):
    if not OPT['stamps']: return []
    return L("s_memrealtime s[4:5]\ns_waitcnt lgkmcnt(0)\nv_writelane_b32 v%d, s4, %d\ns_memtime s[4:5]\ns_waitcnt lgkmcnt(0)\nv_writelane_b32 v%d, s4, %d" % (VST[0], idx, VST[0], 32 + idx))
def ts(idx):
    return stamp(idx) if OPT.get('diag') == 8 else []
def tp(idx):
    return stamp(idx) if OPT.get('diag') == 10 else []
def diag(n, idx):
    if OPT.get('diag', 0) != n: return []
    return L("s_waitcnt vmcnt(0)") + stamp(idx)
def stamp_out(kidx):
    if not OPT['stamps']: return []
    p = L("s_waitcnt vmcnt(0)") + stamp(31)
    p += F("s_cmp_lg_u32 {W}, 0\ns_cbranch_scc1 L_end_KN\ns_lshl_b32 s4, s2, 8\ns_add_u32 s4, s4, 0x%x\nv_lshlrev_b32 v0, 2, v0" % (STAMP_OFF + kidx * 262144))
    p += F("buffer_store_dword v%d, v0, {WS}, s4 offen" % VST[0])
    if OPT.get('lb') is not None:
        p += F("""s_cmp_lg_u32 s2, %d
s_cbranch_scc1 L_end_KN
v_readlane_b32 {a}, v%d, %d
v_readlane_b32 {b}, v%d, %d
s_nop 4
s_sub_u32 {a}, {b}, {a}
s_mul_i32 {a}, {a}, 10
s_min_u32 {a}, {a}, 200000
s_memrealtime s[4:5]
s_waitcnt lgkmcnt(0)
s_mov_b32 {b}, s4
L_leak_KN:
s_memrealtime s[4:5]
s_waitcnt lgkmcnt(0)
s_sub_u32 {c}, s4, {b}
s_cmp_lt_u32 {c}, {a}
s_cbranch_scc1 L_leak_KN""" % (OPT.get('lw', 5), VST[0], OPT['la'], VST[0], OPT['lb']))
    return p
def srd(d, b, n):
    return L("s_mov_b32 s%d, s%d\ns_and_b32 s%d, s%d, 0xffff\ns_mov_b32 s%d, 0x%x\ns_mov_b32 s%d, 0x20000" % (d, b, d + 1, b + 1, d + 2, n, d + 3))
def emit(a, name, prog, vg, accum=None):
    p = finish(prog)
    dr = OPT.get('drop', "")
    if 'd' in dr: p = [i for i in p if i.kind != 'dma']
    if 'b' in dr: p = [i for i in p if i.kind != 'bar']
    if 't' in dr: p = [i for i in p if not (i.kind == 'ds' and i.tag and i.tag.startswith('f'))]
    if 'v' in dr: p = [i for i in p if not getattr(i, 'silu', False)]
    if 'q' in dr: p = [i for i in p if not (i.kind == 'dma' and i.tag in ('q0', 'q1', 'q2'))]
    if 'y' in dr: p = [i for i in p if not (i.kind == 'dma' and i.tag == 'y')]
    if 'h' in dr: p = [i for i in p if i.tag not in ('gh0', 'gh1', 'gh2')]
    if '8' in dr: p = [i for i in p if i.tag != 'p8']
    if 'w' in dr: p = [i for i in p if not (i.kind == 'vmem' and 'dwordx4' in i.text and 's[32:35]' in i.text)]
    if 'P' in dr: p = [i for i in p if i.tag not in ('pA', 'pB')]
    if 'B' in dr: p = [i for i in p if i.tag not in ('pub1', 'pub2')]
    if 'L' in dr: p = [i for i in p if not (i.kind == 'vmem' and i.op == 'buffer_load_dwordx4' and 'sc1' in i.text)]
    if 'x' in dr:
        for i in p:
            if i.tag in ('gh1', 'gh2', 'pA', 'pB', 'p8', 'pub1', 'pub2'): i.text = i.text.replace(' sc1', '')
    if 's' in dr: p = [i for i in p if not (i.kind == 'vmem' and 's90' in i.text)]
    OOL = ("zf", "nw2", "ny", "s2n", "nyl", "nyd", "d2l", "d2", "ex1")
    q = []; k = 0
    while k < len(p):
        i = p[k]
        if i.kind == 'br' and k + 1 < len(p) and p[k + 1].opt in OOL and not i.opt and OPT.get('ool', 1):
            o = p[k + 1].opt; j = k + 1
            while p[j].opt == o: j += 1
            op, lab = i.text.split()
            assert p[j].text == lab + ":", (p[j].text, lab)
            inv = {"s_cbranch_scc1": "s_cbranch_scc0", "s_cbranch_scc0": "s_cbranch_scc1"}[op]
            i.text = "%s L_o%s_KN" % (inv, o); q.append(i)
            body = [x.text for x in p[k + 1:j]]
            if not body[-1].startswith("s_branch"): body.append("s_branch " + lab)
            SPINS.append("L_o%s_KN:\n" % o + "\n".join(body))
            k = j
        else: q.append(i); k += 1
    p = q
    a.begin(name)
    for i in p: a(i.text.replace("KN", name))
    a("L_end_%s:\ns_endpgm" % name)
    for t in SPINS: a(t.replace("KN", name))
    a.end(name, vg, accum=accum)
    print(name, stats(p), file=sys.stderr)

def PL(): return (16384, 1024, 147456) if OPT.get('lay', 0) else (262144, 16384, 1024)
def WSP(): return OPT.get('wsp', WS_P)
def flat(t):
    o = []
    for x in t: o += x if isinstance(x, list) else [x]
    return o
def XF(mi, kk):
    n = kk * 4 + mi
    return A(4 * n, 4) if n < 64 else V(224 + 4 * (n - 64), 4)
def HF(mi, ks):
    n = ks * 8 + mi
    return XF(n & 3, n >> 2)
SET = [32, 64, 96, 128]
FB = 160
TMP = 196
V_DX, V_DW, V_DH, V_DD, V_RW, V_RX = 3, 4, 5, 6, 7, 13
V_HW, V_HH, V_L16, V_L16B, V_ST, V_SIL = 19, 20, 21, 22, 23, 24

def dma(vo, srdn, soff, pb, ioff, tag):
    assert pb - ioff >= 0
    m = F("s_add_u32 m0, {W1K}, %d" % (pb - ioff))[0]
    d = F("buffer_load_dwordx4 v%d, {%s}, s%d offen%s%s lds" % (vo, srdn, soff, (" offset:%d" % ioff) if ioff else "", OPT.get('xfl', "") if srdn == 'X' else OPT.get('wfl', "")), tag=tag, lds_w=(pb, pb + 4096))[0]
    return m, d

def gate_code(XQ, GQ, R):
    e = dict(va=R[2], vo=R[3], t0=R[4], t1=R[5], t2=R[6], t3=R[7])
    p = F("""v_lshrrev_b32 v{vo}, 5, v0
s_lshl_b32 {a}, {C}, 3
s_lshl_b32 {b}, {W}, 1
s_add_u32 {a}, {a}, {b}
v_add_u32 v{vo}, {a}, v{vo}
v_and_b32 v{t0}, 63, v{vo}
v_lshlrev_b32 v{t0}, 5, v{t0}
v_lshrrev_b32 v{t1}, 6, v{vo}
v_add_u32 v{t0}, v{t0}, v{t1}
s_lshl_b32 {a}, {T}, 1
v_add_u32 v{t0}, {a}, v{t0}
v_mul_u32_u24 v{t0}, 1152, v{t0}
v_and_b32 v{t1}, 31, v0
v_mul_u32_u24 v{t1}, 36, v{t1}
v_add_u32 v{t0}, v{t0}, v{t1}""", **e)
    for b_, s_, ad, sr in ((XQ, R[0], "t0", "X"), (GQ, R[1], "t1", "GW")):
        p += F("buffer_load_dwordx4 v[%d:%d], v{%s}, {%s}, 0 offen\nbuffer_load_dwordx4 v[%d:%d], v{%s}, {%s}, 0 offen offset:16\nbuffer_load_dword v%d, v{%s}, {%s}, 0 offen offset:32"
               % (b_, b_ + 3, ad, sr, b_ + 4, b_ + 7, ad, sr, s_, ad, sr), **e)
    def rest():
        q = []
        for n in range(9):
            q += F("""v_lshlrev_b32 v{t0}, 16, v{x}
v_lshlrev_b32 v{t1}, 16, v{y}
v_and_b32 v{t2}, 0xffff0000, v{x}
v_and_b32 v{t3}, 0xffff0000, v{y}
v_mul_f32 v{t0}, v{t0}, v{t1}
v_mul_f32 v{t2}, v{t2}, v{t3}
v_cvt_pk_bf16_f32 v{t0}, v{t0}, v{t2}
v_lshlrev_b32 v{t1}, 16, v{t0}
v_and_b32 v{t0}, 0xffff0000, v{t0}""", x=XQ + n if n < 8 else R[0], y=GQ + n if n < 8 else R[1], **e)
            q += F("v_add_f32 v{va}, v{t1}, v{t0}" if n == 0 else "v_add_f32 v{va}, v{va}, v{t1}\nv_add_f32 v{va}, v{va}, v{t0}", **e)
        for sh in (8, 4, 2, 1):
            q += F("v_add_f32_dpp v{va}, v{va}, v{va} row_ror:%d row_mask:0xf bank_mask:0xf" % sh, **e)
        q += F("""v_mov_b32 v{t0}, v{va}
v_and_b32 v{t1}, 31, v0
v_cmp_eq_u32 vcc, 0, v{t1}
v_permlane16_swap_b32 v{va}, v{t0}
v_add_f32 v{va}, v{va}, v{t0}
v_cvt_pk_bf16_f32 v{va}, v{va}, v{va}
v_lshlrev_b32 v{va}, 16, v{va}
v_mul_f32 v{va}, {NL}, v{va}
v_exp_f32 v{va}, v{va}
v_lshlrev_b32 v{vo}, 2, v{vo}
v_add_f32 v{va}, 1.0, v{va}
v_rcp_f32 v{va}, v{va}
v_bfrev_b32 v{t1}, 1
v_cvt_pk_bf16_f32 v{va}, v{va}, v{va}
v_lshlrev_b32 v{va}, 16, v{va}
v_sub_f32 v{t0}, 1.0, v{va}
v_cvt_pk_bf16_f32 v{t0}, v{t0}, v{t0}
v_lshlrev_b32 v{t0}, 16, v{t0}
v_cndmask_b32 v{vo}, v{t1}, v{vo}, vcc
s_lshl_b32 {u}, {T}, 9
s_add_u32 {u}, {u}, %d
s_add_u32 {w}, {u}, %d""" % (WS_G, WS_O - WS_G), **e)
        q += F("buffer_store_dword v{va}, v{vo}, {WS}, {u} offen sc1\nbuffer_store_dword v{t0}, v{vo}, {WS}, {w} offen sc1", tag="pub1", **e)
        return q
    return p, rest

def t_setup(P, kb, opt=False):
    e = dict(vk=P, vphi=P + 1, vco=P + 2, vd=P + 3, vmu=P + 4, vsg=P + 5, t=P + 6, kb=kb)
    return F("""v_lshrrev_b32 v{vk}, 2, v1
v_lshlrev_b32 v{vk}, 1, v{vk}
v_and_b32 v{t}, 1, v1
v_add_u32 v{vk}, v{vk}, v{t}
v_lshlrev_b32 v{vsg}, 31, v{t}
v_or_b32 v{vsg}, 1.0, v{vsg}
s_lshl_b32 {a}, {kb}, 4
s_lshl_b32 {b}, {FH}, 3
s_add_u32 {a}, {a}, {b}
v_add_u32 v{vk}, {a}, v{vk}
v_bfe_u32 v{vphi}, v1, 1, 1
v_cvt_f32_u32 v{vphi}, v{vphi}
v_mul_f32 v{vphi}, 0x3e800000, v{vphi}
v_add_u32 v{t}, {a}, v1
v_cmp_eq_u32 vcc, 2, v{t}
v_mov_b32 v{t}, 0x120
v_lshlrev_b32 v{vd}, 3, v2
v_cndmask_b32 v{vk}, v{vk}, v{t}, vcc
v_cndmask_b32 v{vphi}, v{vphi}, 0, vcc
v_mul_u32_u24 v{t}, {ROT}, v{vk}
v_mul_u32_u24 v{vco}, 7282, v{t}
v_lshrrev_b32 v{vco}, 16, v{vco}
v_mul_u32_u24 v{vco}, 9, v{vco}
v_sub_u32 v{t}, v{t}, v{vco}
v_cvt_f32_u32 v{t}, v{t}
v_fmac_f32 v{vphi}, 0x3de38e39, v{t}
v_cvt_f32_u32 v{vk}, v{vk}
v_mul_f32 v{vco}, %s, v{vk}
v_mul_f32 v{vk}, %s, v{vk}
v_cos_f32 v{vco}, v{vco}
v_add_u32 v{t}, {a}, v2
v_cmp_eq_u32 vcc, 0, v{t}
v_cvt_f32_u32 v{vd}, v{vd}
v_add_f32 v{vco}, v{vco}, v{vco}
v_cndmask_b32 v{vmu}, 1.0, 0, vcc""" % (f2h(1.0 / 18), f2h(1.0 / 576)), opt=opt, **e)

def t_frag(kk, f, ST, P, opt=False):
    cur = ST + 8 * (kk & 1); prv = ST + 8 * ((kk + 1) & 1); ops = []
    if kk < 2:
        for j in range(8): ops += L("v_add_f32 v%d, %s, v%d" % (cur + j, f2h(32.0 * kk + j), P + 3), opt=opt)
        for j in range(8): ops += L("v_fma_f32 v%d, v%d, v%d, v%d" % (cur + j, cur + j, P, P + 1), opt=opt)
        for j in range(8): ops += L("v_cos_f32 v%d, v%d" % (cur + j, cur + j), opt=opt)
    else:
        for j in range(8): ops += L("v_fma_f32 v%d, v%d, v%d, -v%d" % (cur + j, P + 2, prv + j, cur + j), opt=opt)
    for jp in range(4): ops += L("v_cvt_pk_bf16_f32 v%d, v%d, v%d" % (f + jp, cur + 2 * jp, cur + 2 * jp + 1), opt=opt)
    return ops

def twiddle_A(TW, T, tiles):
    vs, vj, p0, p1, c0, c1 = T, T + 4, T + 5, T + 6, T + 7, T + 8
    p = F("v_lshlrev_b32 v{vs}, 7, v2\nv_add_u32 v{vs}, {S2}, v{vs}\nv_cvt_f32_u32 v{vs}, v{vs}", vs=vs)
    for j in range(1, 4): p += L("v_add_f32 v%d, %s, v%d" % (vs + j, f2h(32.0 * j), vs))
    for a in tiles:
        p += L("v_lshl_add_u32 v%d, v1, 2, %d\nv_cvt_f32_u32 v%d, v%d\nv_mul_f32 v%d, %s, v%d" % (vj, a, vj, vj, vj, f2h(1.0 / 2048), vj))
        b = TW(a)
        for jp in range(2):
            p += L("""v_mul_f32 v%d, v%d, v%d
v_mul_f32 v%d, v%d, v%d
v_cos_f32 v%d, v%d
v_cos_f32 v%d, v%d
v_sin_f32 v%d, v%d
v_sin_f32 v%d, v%d
v_cvt_pk_bf16_f32 v%d, v%d, v%d
v_cvt_pk_bf16_f32 v%d, v%d, v%d""" % (p0, vs + 2 * jp, vj, p1, vs + 2 * jp + 1, vj, c0, p0, c1, p1, p0, p0, p1, p1, b + jp, c0, c1, b + 4 + jp, p0, p1))
            C = "v%d, v%d" % (c0, c1); nC = "-v%d, -v%d" % (c0, c1); Sn = "v%d, v%d" % (p0, p1); nS = "-v%d, -v%d" % (p0, p1)
            cc, ss = [(C, Sn), (nS, C), (nC, nS), (Sn, nC)][a]
            p += L("v_cvt_pk_bf16_f32 v%d, %s\nv_cvt_pk_bf16_f32 v%d, %s" % (b + 2 + jp, cc, b + 6 + jp, ss))
    return p

def step_A(ACC, TW, DF, P, kb, stg, fill=None, opt=False):
    k = dict(opt=opt)
    fill = fill or (lambda n: [])
    t0, t1, va, vb = DF + 8, DF + 9, DF + 10, DF + 11
    e = dict(va=va, vb=vb, t0=t0, kb=kb, L16=V_L16)
    p = F("""s_mul_i32 {a}, {RG}, 4352
s_lshl_b32 {b}, {FH}, 4
s_add_u32 {a}, {a}, {b}
s_add_u32 {a}, {a}, %d
v_mul_u32_u24 v{va}, 272, v1
v_lshl_add_u32 v{va}, v2, 2, v{va}
v_add_u32 v{va}, {a}, v{va}
s_mul_i32 {a}, {W}, 2176
s_add_u32 {a}, {a}, %d
v_lshl_add_u32 v{vb}, v2, 4, v{L16}
v_add_u32 v{vb}, {a}, v{vb}
s_lshl_b32 {c}, {W}, 11
s_lshl_b32 {a}, {T}, 13
s_lshl_b32 {b}, {kb}, 17
s_add_u32 {b}, {b}, {a}
s_add_u32 {b}, {b}, {c}""" % (stg, stg), **k, **e)
    for i in range(16): p += L("v_fma_f32 v%d, v%d, v%d, v%d" % (ACC + i, P + 5, ACC + 16 + i, ACC + i), **k)
    for i in range(8):
        p += L("v_add_f32 v%d, v%d, v%d\nv_sub_f32 v%d, v%d, v%d" % (ACC + 16 + i, ACC + i, ACC + 8 + i, ACC + 24 + i, ACC + i, ACC + 8 + i), **k)
    for i in range(8): p += L("v_cvt_pk_bf16_f32 v%d, v%d, v%d" % (DF + i, ACC + 16 + 2 * i, ACC + 17 + 2 * i), **k)
    T1, T2 = ACC, ACC + 16
    for a in range(4):
        for cs, D in ((0, T1), (1, T2)):
            p.append(mf(V(D + 4 * a, 4), V(DF + 4 * (a & 1), 4), V(TW(a) + 4 * cs, 4), None, opt))
            p += fill(2)
    rng = (stg, stg + 8704)
    for a in range(4):
        x, y = T1 + 4 * a, T2 + 4 * a
        p += L("""v_fma_f32 v%d, v%d, v%d, v%d
v_add_f32 v%d, v%d, v%d
v_fma_f32 v%d, v%d, v%d, -v%d
v_sub_f32 v%d, v%d, v%d
v_cvt_pk_bf16_f32 v%d, v%d, v%d
v_cvt_pk_bf16_f32 v%d, v%d, v%d""" % (x, P + 4, y + 2, x, x + 1, x + 1, y + 3, y, P + 4, x + 2, y, y + 1, x + 3, y + 1, DF + 2 * a, x, x + 1, DF + 2 * a + 1, y, y + 1), **k)
        if a: p += L("ds_write2_b32 v%d, v%d, v%d offset0:%d offset1:%d" % (va, DF + 2 * a - 2, DF + 2 * a - 1, 16 * a - 16, 16 * a - 8), lds_w=rng, tag="sa", **k)
    p += L("ds_write2_b32 v%d, v%d, v%d offset0:48 offset1:56" % (va, DF + 6, DF + 7), lds_w=rng, tag="sa", **k)
    if not opt:
        p += F("s_or_b32 {c}, {kb}, {FH}\ns_cmp_lg_u32 {c}, 0\ns_cbranch_scc1 L_ny_KN", kb=kb)
        o = "ny"
        q = F("""s_lshl_b32 {a}, {S2}, 12
s_add_u32 {a}, {a}, %d
v_bfe_u32 v{va}, v1, 2, 1
v_lshlrev_b32 v{va}, 6, v{va}
v_lshrrev_b32 v{t0}, 3, v1
v_lshl_add_u32 v{va}, v{t0}, 17, v{va}
v_and_b32 v{t0}, 3, v1
v_lshl_add_u32 v{va}, v{t0}, 2, v{va}
v_lshl_add_u32 v{va}, v2, 28, v{va}""" % (18 * KB_STRIDE), opt=o, va=va, t0=t0)
        for par in range(2):
            q += L("v_cvt_pk_bf16_f32 v%d, v%d, v%d\nv_cvt_pk_bf16_f32 v%d, -v%d, -v%d"
                   % (T1 + par, T1 + 4 * par + 2, T1 + 4 * par + 10, T2 + par, T2 + 4 * par + 2, T2 + 4 * par + 10), opt=o)
        for par in range(2):
            q += F("buffer_store_dword v%d, v{va}, {WS}, {a} offen offset:%d sc1\nbuffer_store_dword v%d, v{va}, {WS}, {a} offen offset:%d sc1"
                   % (T1 + par, par * 16, T2 + par, 32 + par * 16), opt=o, tag="pub1", va=va)
        p += q + L("L_ny_KN:")
    p += L("s_barrier", need_lgkm=("sa",), **k)
    p += L("ds_read_b128 v[%d:%d], v%d\nds_read_b128 v[%d:%d], v%d offset:1088" % (DF, DF + 3, vb, DF + 4, DF + 7, vb), lds_r=rng, tag="lds", **k)
    p += fill(16)
    p += F("buffer_store_dwordx4 v[%d:%d], v{L16}, {WS}, {b} offen sc1\nbuffer_store_dwordx4 v[%d:%d], v{L16}, {WS}, {b} offen offset:1024 sc1"
           % (DF, DF + 3, DF + 4, DF + 7), tag="pub1", **k, **e)
    return p

def dft32(M, T, opt):
    vi, vg, p0, p1, c0, c1 = T, T + 1, T + 2, T + 3, T + 4, T + 5
    k = dict(opt=opt)
    p = L("v_cvt_f32_u32 v%d, v1\nv_lshlrev_b32 v%d, 2, v2\nv_mul_f32 v%d, %s, v%d\nv_cvt_f32_u32 v%d, v%d" % (vi, vg, vi, f2h(1.0 / 32), vi, vg, vg), **k)
    for jp in range(2):
        p += L("""v_add_f32 v%d, %s, v%d
v_add_f32 v%d, %s, v%d
v_mul_f32 v%d, v%d, v%d
v_mul_f32 v%d, v%d, v%d
v_cos_f32 v%d, v%d
v_cos_f32 v%d, v%d
v_sin_f32 v%d, v%d
v_sin_f32 v%d, v%d
v_cvt_pk_bf16_f32 v%d, v%d, v%d
v_cvt_pk_bf16_f32 v%d, v%d, v%d""" % (p0, f2h(2.0 * jp), vg, p1, f2h(2.0 * jp + 1), vg, p0, p0, vi, p1, p1, vi, c0, p0, c1, p1, p0, p0, p1, p1, M + jp, c0, c1, M + 4 + jp, p0, p1), **k)
    p += L("v_and_b32 v%d, 1, v1\nv_mul_u32_u24 v%d, 0x8000, v%d\nv_lshl_add_u32 v%d, v%d, 16, v%d" % (vi, vi, vi, vi, vi, vi), **k)
    for b in (M, M + 4):
        for jp in range(2): p += L("v_xor_b32 v%d, v%d, v%d" % (b + 2 + jp, vi, b + jp), **k)
    for d in range(4):
        p += L("v_xor_b32 v%d, 0x80008000, v%d\nv_xor_b32 v%d, 0x80000000, v%d\nv_xor_b32 v%d, 0x80000000, v%d\nv_xor_b32 v%d, 0x8000, v%d"
               % (M + 8 + d, M + 4 + d, M + 12 + d, M + d, M + 16 + d, M + 4 + d, M + 20 + d, M + 4 + d), **k)
    return p

def nyw_load(r, o):
    return F("""s_lshl_b32 {a}, {T}, 7
s_lshl_b32 {b}, {FH}, 6
s_add_u32 {a}, {a}, {b}
v_add_u32 v{r}, {a}, v0
v_mul_u32_u24 v{r}, 578, v{r}
buffer_load_ushort v{r}, v{r}, {WP}, 0 offen offset:576""", opt=o, r=r)
def nyw_store(r, j, t, o):
    return F("""s_lshl_b32 {a}, {RG}, 12
s_lshl_b32 {b}, {T}, 8
s_add_u32 {a}, {a}, {b}
s_lshl_b32 {b}, {FH}, 7
s_add_u32 {a}, {a}, {b}
s_add_u32 {a}, {a}, %d
v_and_b32 v{j}, 14, v0
v_and_b32 v{t}, 1, v0
v_lshl_add_u32 v{j}, v{t}, 4, v{j}
v_and_b32 v{t}, 1, v2
v_lshl_add_u32 v{j}, v{t}, 6, v{j}
v_lshrrev_b32 v{t}, 1, v2
v_lshl_add_u32 v{j}, v{t}, 5, v{j}""" % WS_N, opt=o, j=j, t=t) + F("buffer_store_short v%d, v%d, {WS}, {a} offen sc1" % (r, j), opt=o, tag="pub1")

def s2_scalars(gam, wo, keep):
    return F("""s_and_b32 {b}, {gam}, 31
s_lshl_b32 {keep}, {b}, 7
s_lshl_b32 {b}, {b}, 1
s_add_u32 {b}, {b}, {FH}
s_mul_i32 {b}, {b}, 578
s_lshr_b32 {a}, {gam}, 5
s_lshl_b32 {wo}, {a}, 6
s_add_u32 {wo}, {wo}, {b}
s_lshl_b32 {a}, {a}, 1
s_add_u32 {a}, {a}, {RG}
s_lshl_b32 {a}, {a}, 17
s_add_u32 {keep}, {keep}, {a}
s_lshl_b32 {b}, {FH}, 16
s_add_u32 {keep}, {keep}, {b}""", gam=gam, wo=wo, keep=keep)
def s2_wloads(gam, wo, Wr, vw, t0):
    return F("""v_lshrrev_b32 v{vw}, 2, v0
v_mul_u32_u24 v{vw}, 36992, v{vw}
v_and_b32 v{t0}, 3, v0
v_lshl_add_u32 v{vw}, v{t0}, 4, v{vw}
s_cmp_lt_u32 {gam}, 288
s_cselect_b32 {f}, 0, 0x80000000
v_or_b32 v{vw}, {f}, v{vw}
s_add_u32 {f}, {wo}, %d
buffer_load_dwordx4 v[%d:%d], v{vw}, {WP}, {wo} offen
buffer_load_dwordx4 v[%d:%d], v{vw}, {WP}, {f} offen""" % (16 * 36992, Wr, Wr + 3, Wr + 4, Wr + 7), gam=gam, wo=wo, vw=vw, t0=t0)
def s2_wspecial(Wr, vw, t0, opt):
    return F("""s_lshl_b32 {a}, {RG}, 12
s_lshl_b32 {b}, {FH}, 6
s_add_u32 {a}, {a}, {b}
s_add_u32 {a}, {a}, %d
v_lshrrev_b32 v{vw}, 2, v0
v_lshlrev_b32 v{vw}, 7, v{vw}
v_and_b32 v{t0}, 3, v0
v_lshl_add_u32 v{vw}, v{t0}, 4, v{vw}
buffer_load_dwordx4 v[%d:%d], v{vw}, {WS}, {a} offen sc1
buffer_load_dwordx4 v[%d:%d], v{vw}, {WS}, {a} offen offset:2048 sc1""" % (WS_N, Wr, Wr + 3, Wr + 4, Wr + 7), opt=opt, vw=vw, t0=t0)
def s2_gaddr(va, t0, opt):
    return F("v_lshrrev_b32 v{va}, 3, v0\nv_lshlrev_b32 v{va}, 12, v{va}\nv_and_b32 v{t0}, 7, v0\nv_lshl_add_u32 v{va}, v{t0}, 4, v{va}", opt=opt, va=va, t0=t0)
def s2_dloads(gam, keep, D, va, vm):
    return F("""s_cmp_le_u32 {gam}, 288
s_cselect_b32 {f}, 0, 0x80000000
v_or_b32 v{vm}, {f}, v{va}
s_add_u32 {f}, {keep}, 0x8000
buffer_load_dwordx4 v[%d:%d], v{vm}, {WS}, {keep} offen sc1
buffer_load_dwordx4 v[%d:%d], v{vm}, {WS}, {f} offen sc1""" % (D, D + 3, D + 4, D + 7), keep=keep, gam=gam, va=va, vm=vm)

def s2_addr(T, lds_base, opt):
    e = dict(vl=T, vr=T + 1, vw=T + 2, vo=T + 3, vp=T + 4, vb=T + 5, t0=T + 7, L16=V_L16)
    return F("""s_lshl_b32 {u}, {W}, 11
s_add_u32 {u}, {u}, %d
v_add_u32 v{vl}, {u}, v{L16}
v_lshrrev_b32 v{t0}, 3, v0
v_lshlrev_b32 v{t0}, 4, v{t0}
v_xor_b32 v{vb}, v{vl}, v{t0}
v_lshrrev_b32 v{vr}, 2, v1
v_lshl_add_u32 v{vr}, v2, 2, v{vr}
v_lshlrev_b32 v{vw}, 6, v{vr}
v_lshlrev_b32 v{vr}, 7, v{vr}
v_and_b32 v{t0}, 3, v1
v_lshl_add_u32 v{vr}, v{t0}, 3, v{vr}
v_lshl_add_u32 v{vw}, v{t0}, 3, v{vw}
s_lshl_b32 {u}, {RG}, 12
s_lshl_b32 {w}, {FH}, 6
s_add_u32 {u}, {u}, {w}
s_add_u32 {u}, {u}, %d
v_add_u32 v{vr}, {u}, v{vr}
v_lshlrev_b32 v{vo}, 7, v1
v_lshl_add_u32 v{vo}, v2, 3, v{vo}
v_add_u32 v{vo}, {u}, v{vo}
v_and_b32 v{t0}, 7, v1
v_lshlrev_b32 v{t0}, 4, v{t0}
v_xor_b32 v{vo}, v{vo}, v{t0}
v_xor_b32 v{vp}, 32, v{vo}
s_lshl_b32 {u}, {FH}, 11
s_lshl_b32 {w}, {RG}, 5
s_add_u32 {u}, {u}, {w}
s_add_u32 {u}, {u}, %d
v_add_u32 v{vw}, {u}, v{vw}""" % (lds_base, lds_base, lds_base + 8192), opt=opt, **e)

def s2_compute(R, M, T, X, lds_base, opt):
    k = dict(opt=opt)
    e = dict(vl=T, vr=T + 1, vw=T + 2, vb=T + 5, va=T + 6, t0=X, t1=X + 1, t2=X + 2, t3=X + 3)
    C = lambda a: V(M + (a * 3) * 4, 4)
    Sn = lambda a: V(M + (a * 3 + 1) * 4, 4)
    N = lambda a: V(M + (a * 3 + 2) * 4, 4)
    q = []
    for n, (keep, D, Z, Wr, sa, sb) in enumerate(R):
        o = n * 16384; rng = (lds_base + o, lds_base + o + 16384)
        q += F("ds_write_b128 v{vl}, v[%d:%d] offset:%d\nds_write_b128 v{vl}, v[%d:%d] offset:%d\nds_write_b128 v{vl}, v[%d:%d] offset:%d\nds_write_b128 v{vl}, v[%d:%d] offset:%d"
               % (D, D + 3, o, D + 4, D + 7, o + 1024, Wr, Wr + 3, o + 8192, Wr + 4, Wr + 7, o + 9216), lds_w=rng, tag="s2", **k, **e)
        q += L("s_add_u32 %s, %s, %d\ns_add_u32 %s, %s, 0x8000" % (sa, keep, WS_B, sb, sa), **k)
    q += L("s_barrier", need_lgkm=("s2",), **k)
    for n, (keep, D, Z, Wr, sa, sb) in enumerate(R):
        o = n * 16384; rng = (lds_base + o, lds_base + o + 16384)
        for pl in range(2):
            q += F("ds_read_b64_tr_b16 v[%d:%d], v{vr} offset:%d\nds_read_b64_tr_b16 v[%d:%d], v{vr} offset:%d"
                   % (D + 4 * pl, D + 4 * pl + 1, o + pl * 32, D + 4 * pl + 2, D + 4 * pl + 3, o + pl * 32 + 2048), lds_r=rng, tag="s2r", **k, **e)
    for n, (keep, D, Z, Wr, sa, sb) in enumerate(R):
        o = n * 16384; rng = (lds_base + o, lds_base + o + 16384)
        for pl in range(2):
            q += F("ds_read_b64_tr_b16 v[%d:%d], v{vw} offset:%d\nds_read_b64_tr_b16 v[%d:%d], v{vw} offset:%d"
                   % (Wr + 4 * pl, Wr + 4 * pl + 1, o + pl * 4096, Wr + 4 * pl + 2, Wr + 4 * pl + 3, o + pl * 4096 + 1024), lds_r=rng, tag="s2r", **k, **e)
    def fwd(D, Z):
        Ar, Ai = V(D, 4), V(D + 4, 4); m = []
        for aa in range(2):
            zr, zi = V(Z(4 * aa), 4), V(Z(8 + 4 * aa), 4)
            m += [mf(zr, C(aa), Ar, None, opt), mf(zr, Sn(aa), Ai, zr, opt), mf(zi, C(aa), Ai, None, opt), mf(zi, N(aa), Ar, zi, opt)]
        return m
    def mul(D, Z, Wr):
        v = []
        for i in range(0, 8, 2):
            v += F("""v_lshlrev_b32 v{t3}, 16, v{wi}
v_and_b32 v{wi}, 0xffff0000, v{wi}
v_lshlrev_b32 v{t2}, 16, v{wr}
v_and_b32 v{wr}, 0xffff0000, v{wr}
v_mul_f32 v{t0}, v{zi}, v{t3}
v_mul_f32 v{t1}, v{yi}, v{wi}
v_mul_f32 v{t3}, v{zr}, v{t3}
v_mul_f32 v{wi}, v{yr}, v{wi}
v_fma_f32 v{zr}, v{zr}, v{t2}, -v{t0}
v_fma_f32 v{yr}, v{yr}, v{wr}, -v{t1}
v_fma_f32 v{zi}, v{zi}, v{t2}, v{t3}
v_fma_f32 v{yi}, v{yi}, v{wr}, v{wi}""", zr=Z(i), zi=Z(8 + i), yr=Z(i + 1), yi=Z(9 + i), wr=Wr + i // 2, wi=Wr + 4 + i // 2, **k, **e)
        for pl in range(2):
            for d in range(4): v += L("v_cvt_pk_bf16_f32 v%d, v%d, v%d" % (D + 4 * pl + d, Z(8 * pl + 2 * d), Z(8 * pl + 2 * d + 1)), **k)
        return v
    def inv(D, Z):
        Ar, Ai = V(D, 4), V(D + 4, 4); m = []
        for aa in range(2):
            br = V(Z(4 * aa), 4); m += [mf(br, Ar, C(aa), None, opt), mf(br, Ai, N(aa), br, opt)]
        for aa in range(2):
            bi = V(Z(8 + 4 * aa), 4); m += [mf(bi, Ai, C(aa), None, opt), mf(bi, Ar, Sn(aa), bi, opt)]
        return m
    def outw(n, Z, Wr):
        v = []; o = n * 16384
        for pl in range(2):
            for aa in range(2):
                r = Wr + 4 * pl + 2 * aa; z = Z(8 * pl + 4 * aa)
                v += L("v_cvt_pk_bf16_f32 v%d, v%d, v%d\nv_cvt_pk_bf16_f32 v%d, v%d, v%d" % (r, z, z + 1, r + 1, z + 2, z + 3), **k)
                v += L("ds_write_b64 v%d, v[%d:%d] offset:%d" % (T + 3 + pl, r, r + 1, o + aa * 2048), lds_w=(lds_base + o, lds_base + o + 8192), tag="s2", **k)
        return v
    def mix(ms, vs, lead=0):
        out = list(vs[:lead]); vs = vs[lead:]
        for n, m in enumerate(ms):
            out.append(m); out += vs[2 * n:2 * n + 2]
        return out + vs[2 * len(ms):]
    bar2 = lambda: L("s_barrier", need_lgkm=("s2r",), **k)
    if len(R) == 1:
        keep, D, Z, Wr, sa, sb = R[0]
        f = fwd(D, Z); b2 = bar2(); v = mul(D, Z, Wr)
        q += f[:4] + mix(f[4:], []) + b2 + v + inv(D, Z) + outw(0, Z, Wr)
    else:
        (k0, D0, Z0, W0, _, _), (k1, D1, Z1, W1, _, _) = R
        f0 = fwd(D0, Z0); f1 = fwd(D1, Z1); b2 = bar2(); v0 = mul(D0, Z0, W0); i0 = inv(D0, Z0); v1 = mul(D1, Z1, W1); o0 = outw(0, Z0, W0); i1 = inv(D1, Z1); o1 = outw(1, Z1, W1)
        q += f0 + b2 + mix(f1, v0) + mix(i0, v1, 2) + mix(i1, o0, 2) + o1
    q += L("s_barrier", need_lgkm=("s2",), **k)
    for n, (keep, D, Z, Wr, sa, sb) in enumerate(R):
        o = n * 16384
        q += F("ds_read_b128 v[%d:%d], v{vb} offset:%d\nds_read_b128 v[%d:%d], v{vb} offset:%d" % (D, D + 3, o, D + 4, D + 7, o + 1024), lds_r=(lds_base + o, lds_base + o + 8192), tag="lds", **k, **e)
    for n, (keep, D, Z, Wr, sa, sb) in enumerate(R):
        q += F("buffer_store_dwordx4 v[%d:%d], v{va}, {WS}, %s offen sc1\nbuffer_store_dwordx4 v[%d:%d], v{va}, {WS}, %s offen sc1"
               % (D, D + 3, sa, D + 4, D + 7, sb), tag="pub2", **k, **e)
    return q

def twiddle_D(TW, T):
    vs, vj, vk, c0, c1, s0, s1 = T, T + 1, T + 2, T + 3, T + 4, T + 5, T + 6
    p = F("""s_lshl_b32 {u}, {FH}, 9
s_add_u32 {u}, {u}, {S2}
v_lshlrev_b32 v{vs}, 5, v1
v_add_u32 v{vs}, {u}, v{vs}
v_cvt_f32_u32 v{vs}, v{vs}
v_mul_f32 v{vs}, %s, v{vs}
v_lshlrev_b32 v{vj}, 4, v2
v_cvt_f32_u32 v{vj}, v{vj}
v_add_f32 v{vk}, v{vs}, v{vs}
v_cos_f32 v{vk}, v{vk}""" % f2h(1.0 / 2048), vs=vs, vj=vj, vk=vk)
    for par in range(2):
        p += L("""v_add_f32 v%d, %s, v%d
v_add_f32 v%d, %s, v%d
v_mul_f32 v%d, v%d, v%d
v_mul_f32 v%d, v%d, v%d
v_cos_f32 v%d, v%d
v_cos_f32 v%d, v%d
v_sin_f32 v%d, v%d
v_sin_f32 v%d, v%d""" % (s0, f2h(float(par)), vj, s1, f2h(par + 2.0), vj, s0, s0, vs, s1, s1, vs, c0, s0, c1, s1, s0, s0, s1, s1))
        if par == 0: p += L("v_add_f32 v%d, v%d, v%d" % (vk, vk, vk))
        for jp in range(4):
            if jp:
                p += L("v_fma_f32 v%d, v%d, v%d, -v%d\nv_fma_f32 v%d, v%d, v%d, -v%d\nv_fma_f32 v%d, v%d, v%d, -v%d\nv_fma_f32 v%d, v%d, v%d, -v%d"
                       % (c0, vk, c1, c0, s0, vk, s1, s0, c1, vk, c0, c1, s1, vk, s0, s1))
            p += L("v_cvt_pk_bf16_f32 v%d, v%d, v%d\nv_cvt_pk_bf16_f32 v%d, v%d, v%d" % (TW + par * 8 + jp, c0, c1, TW + par * 8 + 4 + jp, s0, s1))
    return p

def stepD_loads(kb, RAW, opt=False):
    p = F("s_lshl_b32 {a}, {S2}, 12\ns_add_u32 {a}, {a}, %d\ns_lshl_b32 {b}, {kb}, 17\ns_add_u32 {b}, {b}, {a}" % WS_B, kb=kb, opt=opt)
    for i in range(4):
        p += F("buffer_load_dwordx4 v[%d:%d], v%d, {WS}, {b} offen offset:%d sc1" % (RAW + 4 * i, RAW + 4 * i + 3, V_L16, i * 1024), opt=opt)
    return p
def stepD_nyloads(NY, T, opt):
    p = F("s_add_u32 {a}, {a}, %d\nv_and_b32 v{t}, 1, v2\nv_lshlrev_b32 v{t}, 6, v{t}\nv_lshrrev_b32 v{n}, 1, v2\nv_lshl_add_u32 v{t}, v{n}, 17, v{t}" % (18 * KB_STRIDE), opt=opt, t=T, n=NY)
    for par in range(2):
        for pl in range(2):
            r = NY + (par * 2 + pl) * 4
            p += F("buffer_load_dwordx4 v[%d:%d], v%d, {WS}, {a} offen offset:%d sc1" % (r, r + 3, T, pl * 32 + par * 16), opt=opt)
    return p

def stepD_parts(RAW, NY, NB, TW, ACC, T, stage_base, kb, so, opt=False):
    k = dict(opt=opt)
    e = dict(vl=T, vr=T + 1, t0=T + 2, so=so, kb=kb)
    rng = (stage_base, stage_base + 16384)
    p = F("s_lshl_b32 {so}, {W}, 12\ns_add_u32 {so}, {so}, %d\nv_add_u32 v{vl}, {so}, v%d" % (stage_base, V_L16), **k, **e)
    p += F("""v_lshrrev_b32 v{vr}, 2, v1
v_lshl_add_u32 v{vr}, v2, 3, v{vr}
v_lshlrev_b32 v{vr}, 7, v{vr}
v_and_b32 v{t0}, 3, v1
v_lshl_add_u32 v{vr}, v{t0}, 3, v{vr}
v_add_u32 v{vr}, {so}, v{vr}""", **k, **e)
    for i in range(4):
        p += F("ds_write_b128 v{vl}, v[%d:%d] offset:%d" % (RAW + 4 * i, RAW + 4 * i + 3, i * 1024), lds_w=rng, priv=True, tag="lds", **k, **e)
    for par in range(2):
        for pl in range(2):
            r = RAW + (par * 2 + pl) * 4; o = par * 64 + pl * 32
            p += F("ds_read_b64_tr_b16 v[%d:%d], v{vr} offset:%d\nds_read_b64_tr_b16 v[%d:%d], v{vr} offset:%d" % (r, r + 1, o, r + 2, r + 3, o + 512),
                   lds_r=rng, priv=True, tag="lds", **k, **e)
    p += F("s_lshl_b32 {so}, {S2}, 1\ns_mul_i32 {so}, {so}, 18\ns_add_u32 {so}, {so}, {kb}\ns_lshl_b32 {so}, {so}, 1\ns_add_u32 {so}, {so}, {FH}\ns_lshl_b32 {so}, {so}, 10\ns_add_u32 {so}, {so}, %d" % WS_Y, **k, **e)
    ng = []
    for par in range(2):
        for d in range(4): ng += L("v_xor_b32 v%d, 0x80008000, v%d" % (NB + 4 * par + d, RAW + par * 8 + 4 + d), **k)
    mr = []
    for par in range(2):
        er = V(ACC + 8 * par, 4)
        mr += [mf(er, V(RAW + 8 * par, 4), V(TW + 8 * par, 4), None, opt), mf(er, V(NB + 4 * par, 4), V(TW + 8 * par + 4, 4), er, opt)]
    pt = []
    if not opt:
        pt = F("s_cmp_lg_u32 {C}, 0\ns_cbranch_scc1 L_nyd_KN") + L("v_cmp_eq_u32 vcc, 0, v1", opt="nyd")
        for par in range(2):
            for d in range(4):
                br, bi, nr, ni = RAW + 8 * par + d, RAW + 8 * par + 4 + d, NY + 8 * par + d, NY + 8 * par + 4 + d
                pt += L("v_xor_b32 v%d, 0x80008000, v%d\nv_cndmask_b32 v%d, v%d, v%d, vcc\nv_cndmask_b32 v%d, v%d, v%d, vcc" % (ni, ni, bi, bi, nr, br, br, ni), opt="nyd")
        pt += L("L_nyd_KN:")
    mi_ = []
    for par in range(2):
        ei = V(ACC + 8 * par + 4, 4)
        mi_ += [mf(ei, V(RAW + 8 * par + 4, 4), V(TW + 8 * par, 4), None, opt), mf(ei, V(RAW + 8 * par, 4), V(TW + 8 * par + 4, 4), ei, opt)]
    f = []
    for r in range(8):
        f += L("v_add_f32 v%d, v%d, v%d\nv_sub_f32 v%d, v%d, v%d" % (RAW + r, ACC + r, ACC + 8 + r, RAW + 8 + r, ACC + r, ACC + 8 + r), **k)
    for u in range(2):
        for d in range(4): f += L("v_cvt_pk_bf16_f32 v%d, v%d, v%d" % (RAW + 8 * u + d, RAW + 8 * u + 2 * d, RAW + 8 * u + 2 * d + 1), **k)
        f += F("buffer_store_dwordx4 v[%d:%d], v%d, {WS}, {so} offen sc1" % (RAW + 8 * u, RAW + 8 * u + 3, V_L16), tag="p8", **k, **e)
        if u == 0: f += F("s_add_u32 {so}, {so}, 36864", **k, **e)
    return p, ng, mr, pt, mi_, f

V_M0, V_ONE = 222, 3
SPINS = []
def signal(so):
    return F("buffer_atomic_add v%d, v%d, {WS}, %s offen sc1" % (V_ONE, V_M0, so))
def poll(vr, so, srdn="WS"):
    return F("buffer_load_dword v%d, v%d, {%s}, %s offen sc1" % (vr, V_M0, srdn, so))
def check(name, vr, so, exp, srdn="WS", sidx=None):
    p = F("v_readfirstlane_b32 {SP}, v%d\ns_cmp_ge_u32 {SP}, %s\ns_cbranch_scc0 L_sp%s_KN\nL_bk%s_KN:" % (vr, exp, name, name))
    st = ""
    if OPT['stamps'] and sidx is not None and OPT.get('diag') != 11: st = "v_writelane_b32 v%d, s5, %d\n" % (VST[0], sidx)
    SPINS.append(("""L_sp{n}_KN:
s_mov_b32 s5, 0
L_sq{n}_KN:
s_sleep 1
buffer_load_dword v%d, v%d, {%s}, %s offen sc1
s_add_u32 s5, s5, 1
s_waitcnt vmcnt(0)
v_readfirstlane_b32 {SP}, v%d
%ss_cmp_ge_u32 s5, 0x80000
s_cbranch_scc1 L_bk{n}_KN
s_cmp_ge_u32 {SP}, %s
s_cbranch_scc0 L_sq{n}_KN
s_branch L_bk{n}_KN""" % (vr, V_M0, srdn, so, vr, st, exp)).format(n=name, **ENV))
    return p

def kernel_main(a):
    name = NAME + "_kernel"
    BI = OPT['BI']
    t0, t1 = SET[0], SET[0] + 1
    e = dict(t0=t0, t1=t1, DX=V_DX, DW=V_DW, DH=V_DH, DD=V_DD, RW=V_RW, RX=V_RX, RW1=V_RW + 3, RX1=V_RX + 3, HW=V_HW, HH=V_HH, L16=V_L16, L16B=V_L16B, VST_=V_ST)
    VPF, VDM = V_HH, V_ST
    def vaddr64(q):
        for i in q:
            if i.op == "v_add_co_u32": i.wr.append(('s', 'vcc')); i.rd = [r for r in i.rd if r != ('s', 'vcc')]
            if i.op == "v_addc_co_u32": i.wr.append(('s', 'vcc'))
        return q
    G = []
    def grp(kind, nm, need, **kw):
        d = dict(kind=kind, nm=nm, need=need, bar=False, xr=None, rate=2); d.update(kw); G.append(d); return d
    for sg in range(9):
        for tau in range(4):
            mat = 'G' if tau < 2 else 'U'
            g = grp('SB', 16 if tau == 3 else 8, [(mat, 0, 2 * sg), (mat, 0, 2 * sg + 1)], sg=sg, tau=tau, rate=[int(x) for x in str(OPT.get('sbr', 2214))][tau])
            if tau == 2 or (sg == 0 and tau == 0): g['bar'] = True
            if sg < 8 and tau in (2, 3): g['xr'] = (sg + 1, tau - 2)
    PS = {}
    for mat, b, st in [('G', 1, 3), ('U', 1, 2), ('G', 2, 0), ('U', 2, 1), ('G', 3, 3), ('U', 3, 2)]:
        PS[mat + str(b)] = len(G)
        for sl in range(6):
            for ap in range(2):
                g = grp('P1', 12, [(mat, b, 3 * sl + e_) for e_ in range(3)], st=st, sl=sl, ap=ap, ps=mat + str(b))
                if ap == 0 and (sl % BI == BI - 1): g['bar'] = True
    for hf, mat in enumerate(('HG', 'HU')):
        PS[mat] = len(G)
        for gi in range(6):
            g = grp('PH', 12, [(mat, (3 * gi + e_) >> 1) for e_ in range(3)], gi=gi, ps=mat, half=hf)
            if gi % 2 == 0: g['bar'] = True
    P2 = len(G); HU = PS['HU']; IL = OPT.get('il', 1)
    seq = [(0, 0), (1, 0), (0, 1), (1, 1), (0, 2), (1, 2)] + [(u, gi) for u in range(2, 5) for gi in range(3)] + ([(5, 0), (6, 0), (5, 1), (6, 1), (5, 2), (6, 2)] if IL else [(5, 0), (6, 0), (5, 1), (5, 2), (6, 1), (6, 2)]) + [(u, gi) for u in range(7, 9) for gi in range(3)]
    for u, gi in seq:
        grp('P2', 24, [('D', u, 3 * gi + e_) for e_ in range(3)], cb=u, gi=gi, rate=OPT.get('r2', 4), bar=True)
    NG = len(G)
    G[P2 - 1]['bar'] = True
    def rdg(n): return n - 1 if n > P2 else n - 2
    iv = []; n = 0
    for g in G:
        if g['bar']: n += 1
        iv.append(n)
    def free_iv(gr):
        for k in range(gr, NG):
            if G[k]['bar']: return iv[k]
        return 10 ** 6
    def next_bar(gi):
        while not G[gi]['bar']: gi += 1
        return gi
    first = {}; fre = {}; order = []
    def use(key, rg_, done_g):
        if key not in first: first[key] = iv[rg_] if rg_ >= 0 else 0; order.append(key)
        fre[key] = max(fre.get(key, 0), free_iv(done_g))
    for q in range(4): use(('x', 0, q), -1, 1)
    ev = []
    for gi, g in enumerate(G):
        for k in g['need']: ev.append((rdg(gi), 0, k, gi))
        if g['xr']:
            for q in range(4): ev.append((gi, 1, ('x', g['xr'][0], q), 4 * g['xr'][0] + 1))
    ev.sort(key=lambda x: (x[0], x[1]))
    for r_, _, k, d_ in ev: use(k, r_, d_)
    order.sort(key=lambda k: first[k])
    fixed = {}
    for sg in range(9):
        s = 8 * (sg % 5)
        for e_ in range(2):
            fixed[('G', 0, 2 * sg + e_)] = s + e_; fixed[('U', 0, 2 * sg + e_)] = s + 2 + e_
        for q in range(4): fixed[('x', sg, q)] = s + 4 + q
    gS2 = PS['U2'] + 11
    gSD = P2 + OPT.get('sdat', 4); gQ = P2 + 18
    ga1 = next_bar(PS['G1'] + 5); gc1 = next_bar(PS['U2'] + 2); ga2 = next_bar(gS2 + OPT.get('a2at', 9)); gc2 = HU + 2
    gh1 = next_bar(PS['HG'] + OPT.get('h1at', 2)); gq1 = P2 + OPT.get('q1at', 1); gh2 = P2 + OPT.get('h2at', 8); gq2 = P2 + OPT.get('q2at', 13); gf8 = P2 + OPT.get('f8at', 12); gY = P2 + OPT.get('yat', 18); gfa = P2 + OPT.get('faat', 26)
    QP = OPT.get('qp', 0); gq0 = next_bar(PS['U3'] + OPT.get('q0at', 8))
    res = [(0, 4, PS['G1'] - 1, NG - 1), (4, 1, PS['G1'] - 1, PS['G1']), (8, 8, gS2, gS2 + 1), (4, 4, PS['G2'], NG - 1), (8, 4, PS['G3'], gQ), (8, 3, gQ, NG - 1),
           (12, 4, PS['HG'], gQ + 1), (16, 2, P2, gQ + 1), (18, 4, gSD, gSD + 4)]
    resv = {pg: [] for pg in range(40)}
    for f_, npg, ga, gb in res:
        for pg in range(f_, f_ + npg): resv[pg].append((iv[ga], free_iv(gb + 1)))
    free_at = [-1] * 40; phys = {}; issue_grp = {}; qi = 0
    def ioff(k):
        if k[0] == 'D': return 0 if k[1] == 0 else ((k[1] - 1) & 3) * 128
        return k[1] * 128 if k[0] in 'GU' else 0
    def try_alloc(k, cur):
        for pg in ([fixed[k]] if k in fixed else range(39, -1, -1)):
            if free_at[pg] > cur or (pg == 0 and ioff(k) > 0): continue
            if any(not (fre[k] <= a_ or cur >= b_) for a_, b_ in resv[pg]): continue
            return pg
        return None
    cum = [0]
    for g in G: cum.append(cum[-1] + g['nm'])
    bar_grp = {iv[gi]: gi for gi, g in enumerate(G) if g['bar']}; bar_grp[0] = 0
    vt = {}; cnt_iv = {}
    for k in order:
        n_ = cnt_iv.get(first[k], 0); cnt_iv[first[k]] = n_ + 1
        vt[k] = cum[bar_grp[first[k]]] + n_ * (5 if k in fixed else 8)
    LA = lambda k: OPT.get('la0', 120) if k in fixed else OPT.get('la1', 400)
    NPRO = OPT.get('npro', 16)
    while qi < NPRO:
        k = order[qi]; phys[k] = try_alloc(k, -1); free_at[phys[k]] = fre[k]; issue_grp[k] = -1; qi += 1
    hole_end = -1; hole_left = 0
    for gi, g in enumerate(G):
        g['dma'] = []
        if g['kind'] in ('P1', 'PH') and OPT.get('hole'): g['rate'] = OPT.get('hr', 3)
        while qi < len(order) and len(g['dma']) < g['rate']:
            k = order[qi]
            if vt[k] - cum[gi] > LA(k): break
            if cum[gi] < hole_end and hole_left <= 0 and vt[k] - cum[gi] > OPT.get('hmin', 70): break
            pg = try_alloc(k, iv[gi])
            if pg is None: break
            assert iv[gi] < first[k], ("late DMA", k, gi)
            phys[k] = pg; free_at[pg] = fre[k]; issue_grp[k] = gi; g['dma'].append(k); qi += 1
            hole_left -= 2 if k[0] in ('HG', 'HU') else 1
            if OPT.get('hole') and k not in fixed and k[0] != 'D' and k[-1] == 0: hole_end = cum[gi] + OPT['hole']; hole_left = OPT.get('hn', 6)
    assert qi == len(order), order[qi]
    print("dma per group:", "".join(str(len(g['dma'])) for g in G), file=sys.stderr)
    slk = {}
    for k in order:
        if issue_grp[k] >= 0:
            kk_ = k[:2] if k[0] in 'GUD' else k[:1]
            slk[kk_] = min(slk.get(kk_, 9999), cum[bar_grp[first[k]]] - cum[issue_grp[k] + 1])
    print("min DMA slack (mfmas):", slk, file=sys.stderr)
    V_D8 = TMP + 25
    def mkdma(k):
        tag = "pg%d" % first[k]; pb = phys[k] * 4096
        if k[0] == 'x':
            pre = []
            if k[2] == 0 and k[1] > 0:
                pre = F("s_cmp_eq_u32 {ROT}, %d\ns_cselect_b32 {SP}, -8, 1\nv_lshl_add_u32 v%d, {SP}, 7, v%d" % (9 - k[1], V_DX, V_DX))
            m_, d_ = dma(V_DX, 'X', S_XQ + k[2], pb, 0, tag)
            return (pre + [m_], d_) if pre else (m_, d_)
        if k[0] == 'G': return dma(V_DW, 'WG', S_KK + k[2], pb, ioff(k), tag)
        if k[0] == 'U': return dma(V_DW, 'WU', S_KK + k[2], pb, ioff(k), tag)
        if k[0] == 'HG': return dma(V_DH, 'WG', S_KK + 2 * k[1], pb, 0, tag)
        if k[0] == 'HU': return dma(V_DH, 'WU', S_KK + 2 * k[1], pb, 0, tag)
        return dma(V_DD if k[1] else V_D8, 'WD', (S_DK if k[1] < 5 else S_KK) + k[2], pb, ioff(k), tag)
    def mkx(kind, pg, va):
        m_ = F("s_add_u32 m0, {W1K}, %d" % (pg * 4096))[0]
        d_ = F("buffer_load_dwordx4 v%d, {WS}, m0 offen sc1 lds" % va, tag=kind, lds_w=(pg * 4096, pg * 4096 + 4096))[0]
        return m_, d_
    MP = OPT.get('map', 1)
    IDS = """s_and_b32 {C}, s2, 3
s_lshl_b32 {C}, {C}, 2
s_bfe_u32 {a}, s2, 0x20003
s_add_u32 {C}, {C}, {a}
s_lshr_b32 {ROT}, s2, 5
s_lshl_b32 {T}, {ROT}, 1
s_bfe_u32 {b}, s2, 0x10002
s_add_u32 {T}, {T}, {b}
s_lshl_b32 {a}, {a}, 1
s_add_u32 {ROT}, {ROT}, {a}
s_cmp_ge_u32 {ROT}, 9
s_cselect_b32 {a}, 9, 0
s_sub_u32 {ROT}, {ROT}, {a}
""" if MP == 1 else """s_and_b32 {C}, s2, 7
s_lshl_b32 {C}, {C}, 1
s_bfe_u32 {a}, s2, 0x10003
s_add_u32 {C}, {C}, {a}
s_lshr_b32 {T}, s2, 4
s_lshl_b32 {a}, {a}, 2
s_add_u32 {ROT}, {T}, {a}
s_cmp_ge_u32 {ROT}, 9
s_cselect_b32 {a}, 9, 0
s_sub_u32 {ROT}, {ROT}, {a}
s_cmp_ge_u32 {ROT}, 9
s_cselect_b32 {a}, 9, 0
s_sub_u32 {ROT}, {ROT}, {a}
"""
    NPF = 27 if MP == 1 else 14
    RV = OPT.get('rv', 0)
    if RV == 1: IDS += "s_mul_i32 {a}, {ROT}, 11\ns_lshr_b32 {a}, {a}, 5\ns_mul_i32 {a}, {a}, 3\ns_sub_u32 {ROT}, {ROT}, {a}\ns_mul_i32 {ROT}, {ROT}, 3\n"
    if RV == 2: IDS += "s_and_b32 {ROT}, {ROT}, 14\n"
    p = L("s_cmp_ge_u32 s2, 256\ns_cbranch_scc1 L_end_KN")
    if OPT['stamps']: p += L("v_mov_b32 v%d, 0" % VST[0])
    p += stamp(0)
    p += L("s_load_dwordx16 s[52:67], s[0:1], 0\ns_load_dwordx4 s[68:71], s[0:1], 64\ns_load_dwordx2 s[72:73], s[0:1], 80")
    p += vaddr64(L("s_getpc_b64 s[6:7]\nv_lshlrev_b32 v34, 5, v0\nv_mov_b32 v35, s7\nv_add_co_u32 v34, vcc, s6, v34\nv_addc_co_u32 v35, vcc, 0, v35, vcc"))
    p += [Ins("global_load_dword v%d, v[34:35], off" % VDM, 'vmem', V(34, 2), [])]
    p += F("""v_lshrrev_b32 v1, 6, v0
v_and_b32 v0, 63, v0
v_readfirstlane_b32 {W}, v1
v_and_b32 v1, 15, v0
v_lshrrev_b32 v2, 4, v0
IDSs_lshr_b32 {RG}, {W}, 1
s_and_b32 {FH}, {W}, 1
s_lshl_b32 {W1K}, {W}, 10
v_lshrrev_b32 v{DD}, 3, v0
s_lshl_b32 {a}, {W}, 3
v_add_u32 v{DD}, {a}, v{DD}
v_mul_u32_u24 v{DX}, %d, v{DD}
s_lshl_b32 {a}, {FH}, 2
v_add_u32 v{t0}, {a}, v2
v_xor_b32 v{t0}, v0, v{t0}
v_and_b32 v{t0}, 7, v{t0}
v_lshl_add_u32 v{DX}, v{t0}, 4, v{DX}
s_mul_i32 {a}, {T}, 2304
s_lshl_b32 {b}, {ROT}, 7
s_add_u32 {a}, {a}, {b}
v_add_u32 v{DX}, {a}, v{DX}
v_mul_u32_u24 v{DW}, 9216, v{DD}
v_bfe_u32 v{t0}, v0, 1, 2
v_and_b32 v{t1}, 1, v2
s_lshl_b32 {a}, {FH}, 1
v_or_b32 v{t1}, {a}, v{t1}
v_xor_b32 v{t1}, v{t1}, v{t0}
v_lshl_add_u32 v{DW}, v{t1}, 5, v{DW}
v_and_b32 v{t1}, 1, v0
v_lshl_add_u32 v{DW}, v{t1}, 4, v{DW}
s_mul_i32 {d}, {C}, 576
s_and_b32 {e}, {C}, 1
s_lshl_b32 {c}, {e}, 6
s_add_u32 {c}, {c}, {d}
v_add_u32 v{DW}, {c}, v{DW}""".replace("IDS", IDS) % (32 * 1152), **e)
    for q in range(4): p += L("s_mov_b32 s%d, %d" % (S_XQ + q, (1024 * (q & 1) + (q >> 1)) * 1152))
    def skk(m):
        KS = 32 * 9216
        if m == 0: q = F("s_mul_i32 s%d, {ROT}, %d" % (S_KK, 2 * KS))
        else: q = F("s_add_u32 s%d, s%d, %d\ns_cmp_eq_u32 {ROT}, %d\ns_cselect_b32 s%d, 0, s%d" % (S_KK + 2 * m, S_KK + 2 * m - 2, 2 * KS, 9 - m, S_KK + 2 * m, S_KK + 2 * m))
        return q + L("s_add_u32 s%d, s%d, %d" % (S_KK + 2 * m + 1, S_KK + 2 * m, KS))
    p += skk(0) + skk(1)
    for d_, n_ in ((8, 2048 * 1152), (12, 576 * 9216), (16, 576 * 9216)): p += L("s_mov_b32 s%d, 0x%x\ns_mov_b32 s%d, 0x20000" % (d_ + 2, n_, d_ + 3))
    p += L("s_waitcnt lgkmcnt(0)")
    pro = [k for k in order if issue_grp[k] < 0]
    p += L("s_mov_b32 s8, s52\ns_and_b32 s9, s53, 0xffff")
    for k in pro[:4]: p += flat(mkdma(k))
    p += L("s_mov_b32 s12, s60\ns_and_b32 s13, s61, 0xffff\ns_mov_b32 s16, s62\ns_and_b32 s17, s63, 0xffff")
    for k in pro[4:8]: p += flat(mkdma(k))
    p += F("s_cmp_eq_u32 {RG}, 0\ns_cselect_b32 s54, s54, s56\ns_cselect_b32 s55, s55, s57")
    p += srd(32, 54, 2048 * 578) + srd(20, 64, 4608 * 1152) + srd(40, 66, 1152) + srd(28, 70, 256) + srd(24, 72, WS_BYTES)
    p += vaddr64(F("""s_lshr_b32 {a}, s2, 3
s_lshl_b32 {a}, {a}, 2
s_add_u32 {a}, {a}, {W}
s_lshl_b32 {a}, {a}, 9
s_add_u32 {a}, {a}, 8192
v_lshlrev_b32 v34, 3, v0
v_add_u32 v34, {a}, v34
v_mov_b32 v35, s7
v_add_co_u32 v34, vcc, s6, v34
v_addc_co_u32 v35, vcc, 0, v35, vcc"""))
    p += [Ins("global_load_dword v%d, v[34:35], off" % VDM, 'vmem', V(34, 2), [])]
    g1, g2 = gate_code(SET[2] + 16, SET[2] + 24, [FB + 8, FB + 9, FB + 10, FB + 11, FB + 20, FB + 21, FB + 22, FB + 23])
    p += g1 + srd(40, 68, 2048 * 1152)
    p += F("s_cmp_lg_u32 {C}, 0\ns_cbranch_scc1 L_nw_KN") + nyw_load(TMP + 24, "nw") + L("L_nw_KN:")
    p += F("s_cmp_lg_u32 s2, 0\ns_cbranch_scc1 L_z_KN")
    p += F("v_mov_b32 v36, 0\nv_mov_b32 v37, 0\nv_mov_b32 v38, 0\nv_mov_b32 v39, 0\nv_lshlrev_b32 v40, 4, v0\ns_lshl_b32 {a}, {W}, 12\ns_add_u32 {a}, {a}, %d" % WS_C, opt="z")
    for i in range(4): p += F("buffer_store_dwordx4 v[36:39], v40, {WS}, {a} offen offset:%d sc1" % (i * 1024), opt="z", tag="zero")
    p += L("L_z_KN:")
    for m in range(2, 9): p += skk(m)
    w = F("""s_lshl_b32 {S2}, {T}, 1
s_add_u32 {S2}, {S2}, {RG}
v_lshrrev_b32 v{RW}, 2, v1
v_lshlrev_b32 v{RW}, 7, v{RW}
v_lshl_add_u32 v{RW}, v2, 10, v{RW}
v_and_b32 v{t0}, 3, v1
v_lshl_add_u32 v{RW}, v{t0}, 3, v{RW}
v_bfe_u32 v{t0}, v1, 3, 1
v_and_b32 v{t1}, 1, v2
v_lshl_add_u32 v{t0}, v{t1}, 1, v{t0}
s_lshl_b32 {a}, {FH}, 1
v_xor_b32 v{t0}, {a}, v{t0}
v_lshl_add_u32 v{RW}, v{t0}, 5, v{RW}
v_xor_b32 v{RW1}, 32, v{RW}
v_lshrrev_b32 v{t0}, 1, v1
v_xor_b32 v{t0}, v{t0}, v2
v_lshlrev_b32 v{t0}, 4, v{t0}
v_lshl_add_u32 v{RX}, v1, 7, v{t0}
s_lshl_b32 {a}, {RG}, 13
v_add_u32 v{RX}, {a}, v{RX}
v_xor_b32 v{RX1}, 64, v{RX}""", **e)
    for b in (V_RW, V_RW + 3, V_RX, V_RX + 3):
        w += L("v_add_u32 v%d, 0x10000, v%d\nv_add_u32 v%d, 0x20000, v%d" % (b + 1, b, b + 2, b))
    w += F("""v_or_b32 v{m}, {W}, v0
v_min_u32 v{m}, 1, v{m}
v_lshlrev_b32 v{m}, 31, v{m}
v_mul_u32_u24 v{DD}, 1152, v{DD}
v_bfe_u32 v{t0}, v0, 1, 2
v_xor_b32 v{t0}, v{t0}, v2
v_lshl_add_u32 v{DD}, v{t0}, 5, v{DD}
v_and_b32 v{t1}, 1, v0
v_lshl_add_u32 v{DD}, v{t1}, 4, v{DD}
v_lshrrev_b32 v{DH}, 2, v0
s_lshl_b32 {a}, {W}, 4
v_add_u32 v{DH}, {a}, v{DH}
v_mul_u32_u24 v{DH}, 9216, v{DH}
v_lshl_add_u32 v{DH}, v{t1}, 4, v{DH}
v_bfe_u32 v{t0}, v0, 1, 1
v_lshrrev_b32 v{t1}, 5, v0
v_xor_b32 v{t0}, v{t0}, v{t1}
v_lshl_add_u32 v{DH}, v{t0}, 5, v{DH}
s_cmp_eq_u32 {e}, 0
s_cselect_b32 {a}, 512, 0
s_add_u32 {a}, {a}, {d}
v_add_u32 v{DH}, {a}, v{DH}
v_lshlrev_b32 v{L16}, 4, v0
v_add_u32 v{L16B}, 0x10000, v{L16}
s_lshl_b32 {a}, {FH}, 13
s_lshl_b32 {b}, {RG}, 12
s_add_u32 {a}, {a}, {b}
v_add_u32 v{HW}, {a}, v{L16}
s_lshl_b32 {HB}, {T}, 4
s_add_u32 {HB}, {HB}, {C}
s_mul_i32 {HB}, {HB}, 73728
s_add_u32 {HB}, {HB}, %d
s_mov_b32 {Q}, 0x3e800000
s_mov_b32 {NL}, %s
s_add_u32 {KB1}, {C}, 2
s_add_u32 {KB3}, {C}, 4
s_cmp_lt_u32 {KB3}, 18
s_cselect_b32 {KB3}, {KB3}, 0
s_sub_u32 {GA}, 11, {C}
s_lshl_b32 {GA}, {GA}, 4
s_add_u32 {GA}, {GA}, {T}
s_cmp_lt_u32 {C}, 12
s_cselect_b32 {GA}, {GA}, 0x1000
s_add_u32 {GB}, {GA}, 192
s_mul_i32 {a}, {C}, %d
s_mul_i32 {c}, {e}, %d
s_add_u32 s%d, {a}, {c}
s_cmp_eq_u32 {e}, 0
s_cselect_b32 {c}, %d, 0
s_add_u32 s%d, {a}, {c}
s_lshr_b32 {b}, {T}, {mp}
s_mul_i32 {b}, {b}, %d
s_add_u32 {a}, {a}, {b}
s_mul_i32 {b}, {W}, %d
s_add_u32 {a}, {a}, {b}
v_lshlrev_b32 v{pf}, 7, v0
v_add_u32 v{pf}, {a}, v{pf}
v_cmp_gt_u32 vcc, {npf}, v0
v_bfrev_b32 v{t0}, 1
s_lshl_b32 {S8}, {T}, 18
s_lshl_b32 {b}, {W}, 16
v_cndmask_b32 v{pf}, v{t0}, v{pf}, vcc
s_add_u32 {S8}, {S8}, {b}
s_lshl_b32 {b}, {C}, 10
s_add_u32 {S8}, {S8}, {b}""" % (WS_H, f2h(-math.log2(math.e)), 288 * 1152, 32 * 1152, S_DK, 256 * 1152, S_DK + 8, (36 if MP else 18) * 1152, 3 * NPF * 128), m=V_M0, pf=VPF, mp=MP, npf=NPF, **e)
    for ks in range(1, 8): w += L("s_add_u32 s%d, s%d, %d" % (S_DK + ks, S_DK, ks * 32 * 1152))
    w += s2_scalars(ENV['GA'], ENV['WA'], ENV['SA']) + s2_scalars(ENV['GB'], ENV['WB'], ENV['SB'])
    TP = V_SIL
    TF = lambda kk: (SET[3] + 4 * kk) if kk < 8 else FB + 32
    TWA = lambda a_: (TMP + 8 * a_) if a_ < 3 else SET[3]
    def clears(r):
        n0 = OPT.get('cl0', 2)
        q0 = F("""s_lshl_b32 {g}, {T}, 1
s_and_b32 {SM_}, {C}, 1
s_add_u32 {g}, {g}, {SM_}
s_lshl_b32 {g}, {g}, 19
s_lshl_b32 {SM_}, {W}, 15
s_add_u32 {g}, {g}, {SM_}
s_lshr_b32 {SM_}, {C}, 1
s_lshl_b32 {SM_}, {SM_}, 10
s_add_u32 {g}, {g}, {SM_}
s_add_u32 {g}, {g}, %d""" % (WS_P + n0 * 131072))
        for i in range(4): q0 += L("v_mov_b32 v%d, -1" % (r + i))
        q1 = []
        for i in range(4 * (4 - n0)):
            q1 += F("buffer_store_dwordx4 v[%d:%d], v%d, {WS}, {g} offen sc1" % (r, r + 3, V_L16), tag="p8")
            q1 += F("s_add_u32 {g}, {g}, %d" % (8192 if i % 4 != 3 else 131072 - 3 * 8192))
        return q0, q1
    if OPT.get('sent') and OPT.get('clat', -1) < 0:
        q0, q1 = clears(SET[0] + 12); w += q0 + q1
    w += t_setup(TP, ENV['C'])
    p += w
    parts = [(lambda kk=kk: t_frag(kk, TF(kk), SET[1], TP)) for kk in range(9)] + [lambda: twiddle_A(TWA, SET[0], range(OPT.get('ntw', 3)))]
    dstart = OPT.get('dst', 2); rest = pro[8:]
    for n_, f_ in enumerate(parts):
        p += f_()
        if n_ >= dstart and rest: p += flat(mkdma(rest.pop(0)))
    for k in rest: p += flat(mkdma(k))
    sec = Sec2(); sec.smooth = bool(OPT.get('smooth', 1)); sec.hor = OPT.get('hor', 200)
    def FBUF(gi): return FB + 12 * (gi % 3) if gi <= P2 else FB + 12 * ((gi - P2) & 1)
    assert P2 % 3 == 0
    def frag_reads(gi):
        g = G[gi]; out = []
        for e_, k in enumerate(g['need']):
            pb = phys[k] * 4096
            if k[0] in 'GU':
                ap = g['tau'] & 1 if g['kind'] == 'SB' else g['ap']
                base, o, d2 = V_RW + 3 * ap, pb, 512
            elif k[0] in ('HG', 'HU'): base, o, d2 = V_RX, pb + ((3 * g['gi'] + e_) & 1) * 2048, 256
            else: base, o, d2 = V_RX + 3, pb, 2048
            r = FBUF(gi) + 4 * e_
            out.append(L("ds_read_b64_tr_b16 v[%d:%d], v%d offset:%d\nds_read_b64_tr_b16 v[%d:%d], v%d offset:%d"
                         % (r, r + 1, base + (o >> 16), o & 0xffff, r + 2, r + 3, base + (o >> 16), (o & 0xffff) + d2), lds_r=(pb, pb + 4096), tag="f%d" % gi))
        return out
    def x_reads(sg, e_):
        kk = 2 * sg + e_; out = []; pb = phys[('x', sg, 0)] * 4096
        for mi in range(4):
            o = pb + mi * 2048
            out += L("ds_read_b128 %s, v%d offset:%d" % (rs(XF(mi, kk)), V_RX + 3 * e_ + (o >> 16), o & 0xffff), lds_r=(pb, pb + 16384), tag="x%d" % sg)
        return [out[0:2], out[2:4]]
    def h_read(n_, tag):
        o = (n_ >> 3) * 8192 + (n_ & 7) * 1024
        return L("ds_read_b128 %s, v%d offset:%d" % (rs(HF(n_ & 7, n_ >> 3)), V_L16B if o >> 16 else V_L16, o & 0xffff), lds_r=(o, o + 1024), tag=tag)[0]
    def silu_a(st, n_=32):
        out = []
        for i in range(0, n_, 4):
            T = V_SIL + (i & 4); rr = range(st + i, st + i + 4)
            out += [F("v_mul_f32 v%d, {NL}, v%d" % (T + j, r))[0] for j, r in enumerate(rr)]
            out += [I("v_exp_f32 v%d, v%d" % (T + j, T + j)) for j in range(4)]
            out += [I("v_add_f32 v%d, 1.0, v%d" % (T + j, T + j)) for j in range(4)]
            out += [I("v_rcp_f32 v%d, v%d" % (T + j, T + j)) for j in range(4)]
            out += [I("v_mul_f32 v%d, v%d, v%d" % (r, r, T + j)) for j, r in enumerate(rr)]
        return out
    def silu_b(sm, sp, b):
        out = []
        for mi in range(4):
            d = sp + 4 * mi
            for ap in range(2):
                o = (ap * 4 + mi) * 4
                out += [I("v_mul_f32 v%d, v%d, v%d" % (sm + o + r, sm + o + r, sp + o + r)) for r in range(4)]
            for ap in range(2):
                q = sm + (ap * 4 + mi) * 4
                out += [I("v_cvt_pk_bf16_f32 v%d, v%d, v%d" % (d + 2 * ap + h, q + 2 * h, q + 2 * h + 1)) for h in range(2)]
            out += L("ds_write_b128 v%d, v[%d:%d] offset:%d" % (V_HW, d, d + 3, b * 16384 + mi * 1024), lds_w=(b * 16384, b * 16384 + 16384), tag="hw%d" % b)
        return out
    def h_out(sp, b):
        out = F("s_add_u32 {HT}, {HB}, %d" % (b * 16384))
        for mi in range(4):
            out += F("buffer_store_dwordx4 v[%d:%d], v%d, {WS}, {HT} offen offset:%d sc1" % (sp + 4 * mi, sp + 4 * mi + 3, V_HW, mi * 1024), tag="gh0" if b < 2 else "gh1" if b < 3 else "gh2")
        return out
    def silu_bH(st):
        out = []
        for mi in range(4):
            gq, uq = st + 4 * mi, st + 16 + 4 * mi
            out += [I("v_mul_f32 v%d, v%d, v%d" % (gq + r, gq + r, uq + r)) for r in range(4)]
            out += [I("v_cvt_pk_bf16_f32 v%d, v%d, v%d" % (uq + h, gq + 2 * h, gq + 2 * h + 1)) for h in range(2)]
            out += L("ds_write_b64 v%d, v[%d:%d] offset:%d" % (V_HH, uq, uq + 1, mi * 1024), lds_w=(65536, 65536 + 8192), tag="hw4")
        return out
    PACC = [SET[1], SET[2], SET[1], SET[3], SET[0], SET[2], SET[1], SET[3], SET[0]]
    def out_ops(cb, ips=range(4)):
        acc = PACC[cb]; out = []
        for ip in ips:
            b = acc + 8 * ip
            if cb == 0: out += F("s_add_u32 {ST}, {S8}, 0x%x" % (WS_8 + ip * 16384))
            else: out += F("s_mov_b32 {ST}, 0x%x" % (WS_P + (cb - 5) * 131072 + ip * 8192))
            out += [I("v_cvt_pk_bf16_f32 v%d, v%d, v%d" % (b + d, b + 2 * d, b + 2 * d + 1)) for d in range(4)]
            if cb >= 7 and OPT.get('sent'): out += [I("v_min_u32 v%d, -2, v%d" % (b + d, b + d)) for d in range(4)]
            out += F("buffer_store_dwordx4 v[%d:%d], v%d, {WS}, {ST} offen sc1" % (b, b + 3, V_ST if cb else V_L16), tag="p8" if cb == 0 else "pA" if cb < 7 else "pB")
        return out
    p += stamp(1) + L("s_barrier", need_vm=("pg0",)) + stamp(2)
    xa, xb = x_reads(0, 0), x_reads(0, 1)
    for r_ in [xa[0], xb[0]] + frag_reads(0) + [xa[1], xb[1]] + frag_reads(1): p += r_
    q = g2()
    sec.stream(q[:98], 30, 188, "gate0")
    sec.stream(q[98:], 30, 300, "gate", "gate0")
    VP = TMP + 22
    HSP = OPT.get('hsp', 30)
    hq = {HU + 2: range(0, 6), HU + 3: range(6, 12), HU + 4: range(12, 18), HU + 5: range(18, 24), P2: range(24, 36), P2 + 1: range(36, 48), P2 + 2: range(48, 64), P2 + 3: range(64, 72)}
    qq = {P2 + 13 + i: range(12 * i, 12 * i + 12) for i in range(6)} if IL else {P2 + 13: range(0, 12), P2 + 14: range(12, 28), P2 + 15: range(28, 44), P2 + 16: range(44, 58), P2 + 17: range(58, 72)}
    VQ, VY = V_DW, V_DH
    xd = {}
    for i in range(12): xd.setdefault(gq1 + (i * (P2 + OPT.get('qe', 11) - gq1)) // 12, []).append(('q%d' % (i // 6), i, VQ))
    for i in range(12, 18): xd.setdefault(gq2 + (i - 12) // 3, []).append(('q2', i, VQ))
    for i in range(9): xd.setdefault(max(gY + 1 + i // OPT.get('yr', 3), P2 + 18 if i >= 6 else 0), []).append(('y', i, VY))
    S2D = [SET[2] + 16, SET[2] + 24]; S2W = [TMP, TMP + 8]
    M2, Z2, S2T, S2L = SET[3], SET[2], SET[3] + 24, 8 * 4096
    def pfw(it):
        i = F("buffer_load_dword v%d, v%d, {WD}, 0 offen" % (VDM, VPF))[0]
        if it < 2: i.wr = []
        return [i] + L("v_add_u32 v%d, %d, v%d" % (VPF, NPF * 128, VPF))
    KBX = "s_lshr_b32 {x}, {y}, 5\ns_cmp_eq_u32 {x}, 9\ns_cselect_b32 {x}, 0, {x}\ns_add_u32 {x}, {x}, {o}\ns_add_u32 {XA}, {T}, 34\ns_cmp_gt_u32 {y}, 288\ns_cselect_b32 {x}, {XA}, {x}\ns_lshl_b32 {x}, {x}, 7\ns_add_u32 {x}, {x}, %d\n" % WS_C
    kbx = lambda x, y, o: KBX.replace("{x}", "{%s}" % x).replace("{y}", "{%s}" % y).replace("{o}", str(o))
    W0 = "s_cmp_eq_u32 {W}, 0\ns_cselect_b32 {PE1}, {PE1}, 0\ns_cselect_b32 {PE2}, {PE2}, 0"
    CPF = {int(x): TMP + 20 for x in str(OPT.get('cpf', '0')).split(',') if x != '0'}
    RAW, RA2, NB, SDT = TMP, SET[3] + 16, FB + 24, FB + 32
    for gi, g in enumerate(G):
        base = sec.n(); fb = FBUF(gi); ms = []
        if g['kind'] == 'SB':
            st = SET[0] if g['tau'] < 2 else SET[1]
            for mi in range(4):
                for e_ in range(2):
                    acc = V(st + ((g['tau'] & 1) * 4 + mi) * 4, 4); kk = 2 * g['sg'] + e_
                    ms.append(mf(acc, V(fb + 4 * e_, 4), XF(mi, kk), acc if kk else None))
            if g['tau'] == 3:
                for mi in range(4):
                    for e_ in range(2):
                        kk = 2 * g['sg'] + e_
                        acc = V(SET[2] + 16 * (kk // 9) + 4 * mi, 4)
                        ms.append(mf(acc, XF(mi, kk), V(TF(kk % 9), 4), acc if kk % 9 else None))
        elif g['kind'] in ('P1', 'PH'):
            st = SET[g['st']] + 16 * g['ap'] if g['kind'] == 'P1' else SET[0] + 16 * g['half']
            k0 = 3 * (g['sl'] if g['kind'] == 'P1' else g['gi'])
            for mi in range(4):
                for e_ in range(3):
                    acc = V(st + 4 * mi, 4)
                    ms.append(mf(acc, V(fb + 4 * e_, 4), XF(mi, k0 + e_), acc if k0 + e_ else None))
        else:
            for mi in range(8):
                for e_ in range(3):
                    acc = V(PACC[g['cb']] + 4 * mi, 4)
                    ms.append(mf(acc, V(fb + 4 * e_, 4), HF(mi, 3 * g['gi'] + e_), acc if (g['gi'] or e_ or g['cb'] >= 5) else None))
        lg = ["f%d" % gi]; vm = []
        if g['kind'] == 'SB' and g['tau'] == 0: lg.append("x%d" % g['sg'])
        if g['kind'] == 'P2' and g['cb'] == 0: lg.append("h%d" % g['gi'])
        if g['kind'] == 'P2' and g['cb'] == 5: lg.append("r%d" % g['gi'])
        if g['bar']:
            vm.append("pg%d" % iv[gi])
            for gx, tg in ((P2 + 2, "hw3"), (P2 + 3, "hw4")):
                if gi == gx: lg.append(tg)
            for gx, tg in ((6, "zero"), (ga1, "pub1"), (ga2, "pub2"), (gfa, "pA"), (NG - 1, "y"), (ga2, "gh0"), (gh1, "gh1"), (gh2, "gh2"), (gf8, "p8"), (P2 + 13, "q0"), (P2 + 15 if IL else P2 + 14, "q1"), (P2 + 17 if IL else P2 + 16, "q2")):
                if gi == gx: vm.append(tg)
        if gi == ga1: sec.block(base - 1, check("0", VP, "0", ENV['PE1'], "DBG", 27))
        if gi in (gc1, gc2):
            n_ = "1" if gi == gc1 else "2"
            sec.block(base - 1, check(n_ + "a", VP, ENV['PO1'], ENV['PE1'], sidx=28 if gi == gc1 else 29) + check(n_ + "b", VP + 1, ENV['PO2'], ENV['PE2']))
        if gi == gq0 and QP: sec.block(base - 1, check("q0", VP + 2, ENV['SB'], ENV['SM_']))
        if gi == gq1: sec.block(base - 1, check("q1", VP + 2, ENV['SB'], ENV['SM_'], sidx=22))
        if gi == gq2: sec.block(base - 1, check("q2", VP + 2, ENV['SB'], ENV['SM_'], sidx=23))
        if gi == gY: sec.block(base - 1, check("8", VP, ENV['PO1'], ENV['PE1'], sidx=26))
        if gi:
            if sec.blk.get(base - 1): sec.block(base - 1, [Need(vm, lg)])
            else: sec.at(base - 1, Need(vm, lg))
        for m_ in ms: sec.mfma(m_)
        nm = g['nm']; end = sec.n()
        sidx = None
        if g['kind'] in ('P1', 'PH') and PS[g['ps']] == gi: sidx = 3 + list(PS).index(g['ps'])
        if g['kind'] == 'P2' and (gi - P2) % 3 == 0: sidx = 11 + (gi - P2) // 3
        if OPT.get('diag') == 7:
            g0 = OPT.get('g0', 36); sp = OPT.get('gs', 4)
            sidx = 3 + (gi - g0) // sp if (g0 <= gi < g0 + 17 * sp and (gi - g0) % sp == 0) else None
        if OPT.get('diag') in (8, 11): sidx = None
        gap = 0
        if g['bar']:
            sec.at(base, L("s_barrier", need_vm=tuple(vm), need_lgkm=tuple(lg))); gap = 1
        if sidx is not None and OPT['stamps']: sec.block(base, stamp(sidx))
        pairs = []
        for n_ in range(gi + 1, min(NG, gi + 3)):
            if rdg(n_) == gi: pairs += frag_reads(n_)
        hr = []
        if g['xr'] and g['tau'] == 2:
            xa_, xb_ = x_reads(g['xr'][0], 0), x_reads(g['xr'][0], 1)
            sec.stream(flat([xa_[0], xb_[0], xa_[1], xb_[1]]), base + 1, end + 10, "", None, OPT.get('xsp', 2))
        hr += [h_read(n_, "h%d" % (n_ // 24)) for n_ in hq.get(gi, [])] + [h_read(n_, "r%d" % (n_ // 24)) for n_ in qq.get(gi, [])]
        dm = [mkdma(k) for k in g['dma']] + [mkx(*k) for k in xd.get(gi, [])]
        lo, hi = gap + 1, nm - 2
        dpos = [lo + ((2 * k_ + 1) * (hi - lo + 1)) // (2 * len(dm)) for k_ in range(len(dm))]
        for k_ in range(1, len(dm)): dpos[k_] = max(dpos[k_], dpos[k_ - 1] + 2)
        for k_ in range(len(dm) - 1, -1, -1): dpos[k_] = min(dpos[k_], hi if k_ == len(dm) - 1 else dpos[k_ + 1] - 2)
        assert not dm or dpos[0] >= lo, (gi, dpos)
        for ps_, it in zip(dpos, dm):
            if isinstance(it[0], list): sec.block(base + ps_ - 1, it[0])
            else: sec.at(base + ps_ - 1, it[0])
            sec.at(base + ps_, it[1])
        fr = [x for x in range(gap, nm) if x not in dpos]
        if g['kind'] == 'P2': sel = fr[0:2 * len(pairs):2]
        else: sel = [fr[(k_ * len(fr)) // len(pairs)] for k_ in range(len(pairs))] if pairs else []
        for ps_, it in zip(sel, pairs): sec.at(base + ps_, it)
        if hr: sec.stream(hr, base + gap, end - (5 if nm > 12 else 1), "", None, 1)
        if OPT.get('diag') == 11:
            g0 = OPT.get('g0', 0); sp = OPT.get('gs', 3)
            li = (gi - g0) // sp
            if gi >= g0 and (gi - g0) % sp == 0 and li < 58:
                li = 3 + li if li < 17 else 16 + li + (2 if li >= 17 else 0)
                fg = [x for x in fr if not sec.sc.get(base + x) and x < nm - 3][0]
                if li < 63 and li not in (52, 53):
                    sec.at(base + fg, Ins("s_memtime s[4:5]", 'salu', [], S(4, 2)))
                    sec.block(base + nm - 2, L("v_writelane_b32 v%d, s4, %d" % (VST[0], li)))
                    print("light", li, gi, base + fg, file=sys.stderr)
        if gi == 6:
            q = F("s_cmp_lg_u32 s2, 0\ns_cbranch_scc1 L_zf_KN") + L("v_mov_b32 v31, 1", opt="zf")
            sec.block(end - 1, q + F("buffer_store_dword v31, v%d, {DBG}, 0 offen sc1" % V_M0, opt="zf") + L("L_zf_KN:"))
        if gi == 19: sec.block(end - 1, F("s_cmp_lg_u32 {C}, 0\ns_cbranch_scc1 L_nw2_KN") + nyw_store(TMP + 24, TMP + 25, 31, "nw2") + L("L_nw2_KN:"))
        if gi == OPT.get('clat', -1):
            q0, q1 = clears(V_SIL if gi < 0 else TMP + 16)
            sec.stream(q0, end, end + 30, "cl0")
            sec.stream(q1, end, end + 400, "cl1", "cl0", OPT.get('csp', 30))
        if gi == 27: sec.stream(twiddle_A(TWA, SET[3] + 8, range(OPT.get('ntw', 3), 4)), end, end + 78, "twA")
        if gi == PS['G1'] - 1:
            e2 = dict(e); e2.update(t0=TMP + 24, t1=31)
            sw = F("""v_lshrrev_b32 v{RX}, 2, v1
v_lshl_add_u32 v{RX}, v2, 3, v{RX}
v_lshlrev_b32 v{RX}, 6, v{RX}
v_and_b32 v{t0}, 3, v1
v_lshl_add_u32 v{RX}, v{t0}, 3, v{RX}
v_and_b32 v{t1}, 1, v2
v_xor_b32 v{t1}, {FH}, v{t1}
v_lshl_add_u32 v{RX}, v{t1}, 5, v{RX}
v_lshrrev_b32 v{RX1}, 2, v1
v_lshl_add_u32 v{RX1}, v2, 2, v{RX1}
v_bfe_u32 v{t1}, v{RX1}, 1, 2
v_xor_b32 v{t1}, {W}, v{t1}
v_lshlrev_b32 v{RX1}, 7, v{RX1}
v_lshl_add_u32 v{RX1}, v{t1}, 5, v{RX1}
v_lshl_add_u32 v{RX1}, v{t0}, 3, v{RX1}
v_add_u32 v{d8}, 0x400, v{DD}
s_and_b32 {u}, {C}, 1
v_lshl_add_u32 v{DD}, {u}, 9, v{DD}
v_mov_b32 v{one}, 1""", d8=V_D8, one=V_ONE, **e2)
            for b in (V_RX, V_RX + 3): sw += L("v_add_u32 v%d, 0x10000, v%d\nv_add_u32 v%d, 0x20000, v%d" % (b + 1, b, b + 2, b))
            sw += F("s_cmp_eq_u32 {W}, 0\ns_cselect_b32 {PE1}, 1, 0\ns_lshr_b32 {PO1}, {C}, 1\ns_lshl_b32 {PO1}, {PO1}, 7\ns_add_u32 {PO1}, {PO1}, %d\ns_add_u32 {PO2}, {T}, 34\ns_cmp_lt_u32 {KB1}, 16\ns_cselect_b32 {PO2}, {PO2}, 8\ns_lshl_b32 {PO2}, {PO2}, 7\ns_add_u32 {PO2}, {PO2}, %d" % (WS_C, WS_C))
            sec.stream(sw, end - 38, end - 2, "sw")
            wt = F("""v_lshrrev_b32 v{x}, 1, v0
v_mul_u32_u24 v{x}, 36992, v{x}
v_and_b32 v{y}, 1, v0
v_mul_u32_u24 v{y}, 60, v{y}
v_add_u32 v{x}, v{x}, v{y}
s_cmp_lt_u32 {GB}, 288
s_cselect_b32 {f}, 0, 0x80000000
v_or_b32 v{y}, {f}, v{x}
s_cmp_lt_u32 {GA}, 288
s_cselect_b32 {f}, 0, 0x80000000
v_or_b32 v{x}, {f}, v{x}""", x=SET[3] + 20, y=SET[3] + 21)
            if OPT.get('wt', 0): sec.stream(wt, end - 38, end - 2, "wt")
            blk = F("buffer_load_dword v{d}, v{x}, {WP}, {WA} offen\nbuffer_load_dword v{d}, v{y}, {WP}, {WB} offen", x=SET[3] + 20, y=SET[3] + 21, d=VDM) if OPT.get('wt', 0) else []
            for i in blk: i.wr = []
            if OPT.get('pfd0', 8) < 0: blk += pfw(0)
            blk += step_A(SET[2], TWA, SET[3] + 8, TP, ENV['C'], 0)
            blk += F("s_cmp_lt_u32 {KB1}, 16\ns_cbranch_scc1 L_x1_KN")
            o = "x1"; s1 = Sec2(); XS = SET[3] + 8; XFr = SET[3] + 24
            s1.pre = t_setup(TP, ENV['KB1'], opt=o) + t_frag(0, XFr, XS, TP, opt=o)
            for kk in range(9):
                b0 = s1.n()
                for hh in range(2):
                    for mi in range(4):
                        acc = V(SET[2] + 16 * hh + 4 * mi, 4)
                        s1.mfma(mf(acc, XF(mi, kk + 9 * hh), V(XFr + 4 * (kk & 1), 4), acc if kk else None, o))
                if kk < 8: s1.stream(t_frag(kk + 1, XFr + 4 * ((kk + 1) & 1), XS, TP, opt=o), b0, b0 + 6)
            blk += s1.flatten() + step_A(SET[2], TWA, SET[3] + 8, TP, ENV['KB1'], 8704, opt=o) + L("L_x1_KN:")
            sec.block(end - 1, blk)
            sec.stream(poll(VP, "0", "DBG"), end, end + 12, "p0")
            sec.stream(silu_a(SET[0]), end, end + 200, "a0")
            sec.stream(silu_b(SET[0], SET[1], 0), end + 145, end + 286, "b0", "a0")
            sec.stream(h_out(SET[1], 0), end + 145, end + 428, "o0", "b0", HSP)
        if g['kind'] == 'P1' and g['sl'] == 5 and g['ap'] == 1:
            ps = g['ps']
            if ps == 'G1': sec.stream(silu_a(SET[3]), end + 2, end + 287 + 12 * (gc1 - PS['U2']) - 40, "a1", "a0")
            if ps == 'U1':
                sec.stream(silu_b(SET[3], SET[2], 1), end + 2, end + 143 + 12 * (gc1 - PS['U2']), "b1", "a1")
                sec.stream(h_out(SET[2], 1), end + 2, end + 284, "o1", "b1,o0", HSP)
            if ps == 'G2': sec.stream(silu_a(SET[0]), end + 2, end + 380, "a2", "a1")
            if ps == 'U2':
                sec.stream(silu_b(SET[0], SET[1], 2), end + 2, end + 286, "b2", "a2")
                sec.stream(h_out(SET[1], 2), end + 2, end + 260, "o2", "b2", 20)
            if ps == 'G3': sec.stream(silu_a(SET[3]), end + 2, end + 144 + OPT.get('a3e', 100), "a3", "a2")
            if ps == 'U3':
                sec.stream(silu_b(SET[2], SET[3], 3), end + 2, end + 144 + 22, "b3", "a3")
                sec.stream(h_out(SET[3], 3), end + 2, end + 144 + 100, "o3", "b3,o2", 16)
        if g['kind'] == 'PH' and g['gi'] == 5:
            if g['half'] == 0: sec.stream(silu_a(SET[0], 16), end + 2, end + 72 + 46, "aH", "a3")
            else: sec.stream(silu_bH(SET[0]), end + 2, end + 62, "bH", "aH")
        if gi == PS['G1'] + OPT.get('pfd0', 8) and gi >= PS['G1']: sec.stream(pfw(0), base, base + 10, "pf0")
        if gi == PS['G1'] + OPT.get('pfd1', 20): sec.stream(pfw(1), base, base + 10, "pf1")
        if gi == PS['G1'] + OPT.get('pfd2', 32) and gi >= PS['G1']: sec.stream(pfw(2), base, base + 10, "pf2")
        if gi == PS['G3'] + OPT.get('pfh', 1):
            q = F("""s_lshr_b32 {f}, {T}, 1
s_lshl_b32 {g}, {W}, 3
s_add_u32 {f}, {f}, {g}
v_lshl_add_u32 v{r}, v0, 5, {f}
v_mul_u32_u24 v{r}, 9216, v{r}
s_or_b32 {f}, {C}, 1
s_mul_i32 {f}, {f}, 576
s_and_b32 {g}, {C}, 1
s_cmp_eq_u32 {g}, 0
s_cselect_b32 s8, s12, s16
s_cselect_b32 s9, s13, s17
s_mov_b32 s10, %d
s_mov_b32 s11, 0x20000
buffer_load_dword v{r}, v{r}, s[8:11], {f} offen""" % (576 * 9216), r=TMP + 16)
            sec.stream(q, base, base + 30, "pfh")
        if gi in CPF:
            r = CPF[gi]
            q = vaddr64(F("""s_lshr_b32 {c}, s2, 3
s_lshl_b32 {c}, {c}, 2
s_add_u32 {c}, {c}, {W}
s_lshl_b32 {c}, {c}, %d
v_lshl_add_u32 v{r}, v0, %d, {c}
s_getpc_b64 s[84:85]
v_mov_b32 v{r1}, s85
v_add_co_u32 v{r}, vcc, s84, v{r}
v_addc_co_u32 v{r1}, vcc, 0, v{r1}, vcc""" % ((8, 2) if OPT.get('cw', 1) else (7, 1)), r=r, r1=r + 1))
            q.append(Ins("global_load_ubyte v%d, v[%d:%d], off" % (r, r, r + 1), 'vmem', V(r, 2), V(r, 1)))
            sec.stream(q, base + 2, base + 22, "cp%d" % gi)
        if gi == ga1: sec.stream(signal(ENV['PO1']) + signal(ENV['PO2']), base + 1, base + 11, "ar1")
        for r_, (gam, wo) in enumerate((('GA', 'WA'), ('GB', 'WB'))):
            if gi == PS['U1'] + OPT.get('w%dat' % r_, 1 + 12 * r_): sec.stream(s2_wloads(ENV[gam], ENV[wo], S2W[r_], TMP + 16, TMP + 17), base, base + 22, "w%d" % r_)
        if gi == gc1 - 6:
            q = F(kbx('PO1', 'GA', 0) + kbx('PO2', 'GB', 0)) + poll(VP, ENV['PO1']) + poll(VP + 1, ENV['PO2'])
            q += F("s_cmp_gt_u32 {GA}, 288\ns_cselect_b32 {PE1}, 0, 32\ns_cmp_gt_u32 {GB}, 288\ns_cselect_b32 {PE2}, 0, 32\n" + W0)
            sec.stream(q[:20], base - 50, base - 4, "p1")
            sec.stream(q[20:], base - 50, base + 60, "p1b", "p1")
        if gi == gc1:
            sec.block(base, F("s_cmp_lg_u32 {GB}, 288\ns_cbranch_scc1 L_s2n_KN") + s2_wspecial(S2W[1], TMP + 16, TMP + 17, "s2n") + L("L_s2n_KN:"))
            q = s2_gaddr(S2T + 6, S2T + 7, False) + s2_dloads(ENV['GA'], ENV['SA'], S2D[0], S2T + 6, S2T + 7) + s2_dloads(ENV['GB'], ENV['SB'], S2D[1], S2T + 6, S2T + 7)
            sec.stream(q, base + 1, base + 30, "dl", "b1")
            sec.stream(dft32(M2, TMP + 16, False) + s2_addr(S2T, S2L, False), base + 2, base + 12 * (gS2 - gi) + 10, "s2pre", "dl")
        if gi == gS2:
            R0 = (ENV['SA'], S2D[0], lambda i: Z2 + i, S2W[0], ENV['a'], ENV['b'])
            R1 = (ENV['SB'], S2D[1], lambda i: fb + i if i < 12 else TMP + 8 + i, S2W[1], ENV['c'], ENV['d'])
            blk = (pfw(2) if OPT.get('pfd2', 32) < 0 else []) + F("s_cmp_gt_u32 {GA}, 288\ns_cbranch_scc1 L_s2e_KN\ns_cmp_gt_u32 {GB}, 288\ns_cbranch_scc0 L_s2d_KN")
            blk += s2_compute([R0], M2, S2T, TMP + 16, S2L, "ex1") + L("s_branch L_s2e_KN", opt="ex1") + L("L_s2d_KN:")
            blk += s2_compute([R0, R1], M2, S2T, TMP + 16, S2L, "ex2") + L("L_s2e_KN:")
            sec.block(end - 1, blk)
            q = F(kbx('PO1', 'GA', 9) + kbx('PO2', 'GB', 9))
            q += F("""s_lshl_b32 {u}, {FH}, 3
s_lshl_b32 {w}, {RG}, 12
s_add_u32 {u}, {u}, {w}
v_add_u32 v{HH}, {u}, v{L16B}
s_lshl_b32 {u}, {T}, 1
s_and_b32 {w}, {C}, 1
s_add_u32 {u}, {u}, {w}
s_lshl_b32 {u}, {u}, 19
s_lshl_b32 {w}, {W}, 15
s_add_u32 {u}, {u}, {w}
s_lshr_b32 {w}, {C}, 1
s_lshl_b32 {w}, {w}, 10
s_add_u32 {u}, {u}, {w}
v_add_u32 v{VST_}, {u}, v{L16}
s_lshl_b32 {XA}, {T}, 7
s_lshl_b32 {SB}, {C}, 2
s_add_u32 {XA}, {XA}, {SB}
s_add_u32 {XA}, {XA}, %d
s_xor_b32 {SB}, {XA}, 4
s_cmp_eq_u32 {W}, 0
s_cselect_b32 {SM_}, 1, 0""" % CL(50), **e)
            sec.stream(q[:18], end, end + 12 * (ga2 - gi - 1) - 2, "a2s")
            sec.stream(q[18:], end + 90, end + 200, "a2t", "a2s")
        if gi == ga2: sec.stream(signal(ENV['PO1']) + signal(ENV['PO2']) + (signal(ENV['XA']) if QP else []), base + 1, base + 14, "ar2")
        if gi == gq0 - 6 and QP:
            q = poll(VP + 2, ENV['SB']) + F("""s_xor_b32 {u}, {C}, 1
s_sub_u32 {w}, {u}, {C}
s_mul_i32 {w}, {w}, 73728
s_add_u32 {w}, {w}, {HB}
s_lshl_b32 {u}, {W}, 12
s_add_u32 {w}, {w}, {u}
v_and_b32 v{r}, 31, v0
v_lshlrev_b32 v{r}, 7, v{r}
v_add_u32 v{r}, {w}, v{r}
s_movk_i32 {u}, 0x4000""", r=TMP + 17)
            sec.stream(q, base, base + 60, "pq00")
        if gi == gq0 and QP:
            sec.stream(F("buffer_load_dword v%d, v%d, {WS}, 0 offen sc1" % (TMP + 18, TMP + 17)), base + 1, base + 10, "qpa")
            sec.stream(F("buffer_load_dword v%d, v%d, {WS}, {u} offen sc1\ns_lshl_b32 {SM_}, {SM_}, 1" % (TMP + 19, TMP + 17)), base + 1 + OPT.get('qpd', 48), base + 12 + OPT.get('qpd', 48), "qpb")
        if gi == gc2 - 8:
            q = F("s_lshr_b32 {PO1}, {C}, 1\ns_lshl_b32 {PO1}, {PO1}, 7\ns_add_u32 {PO1}, {PO1}, %d\ns_mov_b32 {PO2}, %d" % (CL(9), CL(17))) + poll(VP, ENV['PO1']) + poll(VP + 1, ENV['PO2'])
            q += F("s_cmp_lt_u32 {C}, 2\ns_cselect_b32 {PE1}, 33, 32\ns_cmp_lt_u32 {KB3}, 16\ns_cselect_b32 {PE2}, 0, 32\n" + W0)
            sec.stream(q, base - 6, base + 30, "p2")
        if gi in (gh1, gh2): sec.stream(signal(ENV['XA']), base + 1, base + 10, "sh%d" % gi)
        if gi == gc2:
            q = stepD_loads(ENV['C'], RAW)
            for i in q:
                i.text = i.text.replace(ENV['a'], ENV['f']).replace(ENV['b'], ENV['g'])
                fx = lambda lst: [('s', 38) if r == ('s', 84) else ('s', 39) if r == ('s', 85) else r for r in lst]
                i.rd = fx(i.rd); i.wr = fx(i.wr)
            sec.stream(q, base + 1, base + 40, "sdl")
        if gi == HU + 3:
            q = poll(VP + 2, ENV['SB'])
            q += F("""s_xor_b32 {u}, {C}, 1
s_sub_u32 {w}, {u}, {C}
s_mul_i32 {w}, {w}, 73728
s_add_u32 {w}, {w}, {HB}
v_add_u32 v%d, {w}, v%d
s_and_b32 {w}, {u}, 1
s_mul_i32 {u}, {u}, %d
s_mul_i32 s%d, {w}, %d
s_add_u32 s%d, s%d, {u}
s_xor_b32 {w}, {w}, 1
s_mul_i32 {w}, {w}, %d
s_add_u32 s%d, {u}, {w}""" % (VQ, V_L16, 288 * 1152, S_KK, 32 * 1152, S_KK, S_KK, 256 * 1152, S_KK + 8))
            for ks in range(1, 8): q += L("s_add_u32 s%d, s%d, %d" % (S_KK + ks, S_KK, ks * 32 * 1152))
            sec.stream(q[:6], base - 6, base + 20, "pq0")
            sec.stream(q[6:], base + 6, base + 130, "pq1", "pq0")
        if gi == P2 + 1:
            blk = F("s_lshl_b32 {a}, {S2}, 12\ns_add_u32 {a}, {a}, %d\ns_cmp_lg_u32 {C}, 0\ns_cbranch_scc1 L_nyl_KN" % WS_B) + stepD_nyloads(RA2, SDT, "nyl") + L("L_nyl_KN:")
            blk += F("s_cmp_lt_u32 {KB3}, 16\ns_cbranch_scc1 L_d2l_KN") + stepD_loads(ENV['KB3'], RA2, opt="d2l") + L("L_d2l_KN:")
            sec.block(base, blk)
        if gi == P2 + 3:
            q = F("s_lshl_b32 {d}, {W}, 11\nv_add_u32 v%d, {d}, v%d" % (V_HH, V_L16B))
            q += L("ds_read_b128 v[%d:%d], v%d\nds_read_b128 v[%d:%d], v%d offset:1024" % (V_SIL, V_SIL + 3, V_HH, V_SIL + 4, V_SIL + 7, V_HH), lds_r=(65536, 73728), tag="lds")
            sec.stream(q, base + 1, base + 16, "hh1", "bH")
            q = F("buffer_store_dwordx4 v[%d:%d], v%d, {WS}, {HB} offen sc1\nbuffer_store_dwordx4 v[%d:%d], v%d, {WS}, {HB} offen offset:1024 sc1"
                  % (V_SIL, V_SIL + 3, V_HH, V_SIL + 4, V_SIL + 7, V_HH), tag="gh2")
            sec.stream(q, base + 20, base + 34, "hh2", "hh1")
            sec.stream(twiddle_D(SET[0], SET[0] + 16), base, base + 24 * (gSD - gi) + 68, "twD", "pq1,bH")
        if gi == gSD:
            SD = stepD_parts(RAW, RA2, NB, SET[0], SET[0] + 16, SDT, 18 * 4096, ENV['C'], ENV['SA'])
            sec.stream(SD[0], base + 1, base + 54, "sd0")
            sec.stream(SD[1], base + 60, base + 69, "sd1", "sd0")
        if gi == gSD + 2:
            for m_ in SD[2]: sec.mfma(m_)
            sec.block(sec.n() - 1, SD[3])
            for m_ in SD[4]: sec.mfma(m_)
            sec.stream(SD[5], sec.n() + 2, sec.n() + 44, "sd5")
        if gi == gSD + 4:
            blk = F("s_cmp_lt_u32 {KB3}, 16\ns_cbranch_scc1 L_d2_KN")
            for part in stepD_parts(RA2, None, NB, SET[0], SET[0] + 16, SDT, 18 * 4096, ENV['KB3'], ENV['SA'], opt="d2"): blk += part
            sec.block(end - 1, blk + L("L_d2_KN:"))
        if gi == gq2 - 2: sec.stream(F("s_lshr_b32 {SM_}, {SM_}, 1\ns_mul_i32 {SM_}, {SM_}, 3" if QP else "s_lshl_b32 {SM_}, {SM_}, 1") + poll(VP + 2, ENV['SB']), base + 1, base + 8, "pq2")
        if gi == gf8 - 1:
            q = F("""s_lshl_b32 {PO1}, {T}, 7
s_add_u32 {PO1}, {PO1}, %d
s_cmp_eq_u32 {W}, 0
s_cselect_b32 {PE1}, 16, 0
s_lshr_b32 {PE2}, {C}, 2
s_lshl_b32 {u}, {T}, 2
s_add_u32 {u}, {u}, {PE2}
s_mul_i32 {u}, {u}, 36864
s_add_u32 {u}, {u}, %d
v_add_u32 v%d, {u}, v%d""" % (CL(18), WS_Y, VY, V_L16))
            sec.stream(q, base - 20, base + 22, "f8s")
        if gi == gf8: sec.stream(signal(ENV['PO1']), base + 1, base + 12, "f8")
        if gi == gY - 3: sec.stream(poll(VP, ENV['PO1']), base + 1, base + 12, "p8")
        if gi == gY + OPT.get('l8d', 0):
            q = F("""s_and_b32 {u}, {C}, 3
s_lshl_b32 {u}, {u}, 2
s_add_u32 {u}, {u}, {PE2}
s_lshl_b32 {w}, {T}, 4
s_add_u32 {u}, {u}, {w}
s_lshl_b32 {u}, {u}, 2
s_add_u32 {u}, {u}, {W}
s_lshl_b32 {u}, {u}, 12
s_add_u32 {u}, {u}, %d""" % WS_8)
            for i in range(4): q += F("buffer_load_dwordx4 v[%d:%d], v%d, {WS}, {u} offen offset:%d sc1" % (TMP + 4 * i, TMP + 4 * i + 3, V_L16, i * 1024))
            q += F("""s_lshl_b32 {u}, {T}, 1
s_and_b32 {w}, {C}, 1
s_add_u32 {u}, {u}, {w}
s_lshl_b32 {PO1}, {u}, 7
s_add_u32 {PO1}, {PO1}, %d
s_lshr_b32 {PE1}, {PE1}, 1
s_lshl_b32 {XA}, {u}, 2
s_add_u32 {XA}, {XA}, {RG}
s_lshl_b32 {XA}, {XA}, 2
s_and_b32 {w}, {C}, 2
s_add_u32 {XA}, {XA}, {w}
s_add_u32 {XA}, {XA}, {FH}
s_lshl_b32 {XA}, {XA}, 2
s_add_u32 {XA}, {XA}, {PE2}
s_lshl_b32 {XA}, {XA}, 13
s_add_u32 {XA}, {XA}, %d""" % (CL(66), WS_P))
            sec.stream(q[:9], base - 20, base + 4, "l8a", "f8s")
            sec.stream(q[9:13], base + 1, base + 40, "l8b", "l8a", OPT.get('lsp', 6))
            sec.stream(q[13:], base, base + 120, "l8", "l8b")
        if gi == gfa: sec.stream(signal(ENV['PO1']), base + 1, base + 8, "fa")
        if gi == NG - 1 and OPT.get('pae'): sec.stream(poll(VP, ENV['PO1']), base + 4, base + 7, "pA", "fa")
        if g['kind'] == 'P2' and g['gi'] == 2 and g['cb'] in (0, 5, 6, 7, 8):
            cb = g['cb']
            for ip in range(4 if cb < 8 else 3):
                osp = OPT.get('osp', 6)
                st0 = base + 6 * ip + 8 if cb in (0, 8) else base + 8 + osp * ip + (4 * osp - 24 if cb == 6 and IL else 0)
                sec.stream(out_ops(cb, [ip]), st0, min(end - 1, st0 + 6) if cb == 8 else st0 + OPT.get('ow', 12), "out%d%s" % (cb, "" if ip == 3 else "abc"[ip]), ("out%d%s" % (cb, "abc"[ip - 1])) if ip else "out%d" % (cb - 1))
            if cb == 5: sec.stream(TL.pre1(), end, end + 130, "tp1", "out5,tp0")
            if cb == 6: sec.stream(TL.pre2(), end, end + 130, "tp2", "out6,tp1,l8,gl")
        if gi == P2 + 9: TL = Tail(out_ops, 0, VP); sec.stream(TL.pre0(), base, base + 180, "tp0")
        if gi == gY: sec.stream(TL.gl(), base + 1, base + 60, "gl", "tp0")
    p += sec.flatten(verbose=True)
    p += ([] if OPT.get('diag') == 8 else stamp(20)) + TL.main()
    p += stamp_out(2)
    emit(a, name, p, 512, accum=256)

class Tail:
    def __init__(self, out_ops, YB, VP):
        self.out_ops, self.YB, self.VP = out_ops, YB, VP
        self.ST = [SET[2], SET[2] + 16, SET[1]]
        self.FR = [SET[1] + 16, SET[1] + 24, FB + 24]
        self.CO, self.KD, self.VG4, self.G8, self.VS, self.SEL = [7, 8, 9], [10, 11, 12], 13, 14, 15, 24
        self.GV, self.VO, self.V8, self.VO8 = TMP + 16, 30, 31, 19
    def seeds(self, pc, n):
        cur = self.ST[pc] + 8 * n; g4 = self.G8 if pc == 2 else self.VG4; q = []
        for j in range(4): q += L("v_add_f32 v%d, %s, v%d" % (cur + j, f2h(16.0 * n + j), g4))
        for j in range(4): q += F("v_fma_f32 v%d, v%d, v%d, {Q}\nv_mul_f32 v%d, v%d, v%d" % (cur + 4 + j, cur + j, self.KD[pc], cur + j, cur + j, self.KD[pc]))
        for j in range(8): q += L("v_cos_f32 v%d, v%d" % (cur + j, cur + j))
        return q
    def frag(self, pc, n):
        cur = self.ST[pc] + 8 * (n & 1); prv = self.ST[pc] + 8 * ((n + 1) & 1); f = self.FR[pc] + 4 * (n & 1); q = []
        if n >= 2:
            for j in range(8): q += L("v_fma_f32 v%d, v%d, v%d, -v%d" % (cur + j, self.CO[pc], prv + j, cur + j))
        if n == 0:
            q += L("v_cmp_eq_f32 vcc, 0, v%d" % (self.G8 if pc == 2 else self.VG4))
            q += L("v_cvt_pk_bf16_f32 v%d, v%d, v%d\nv_cvt_pk_bf16_f32 v%d, v%d, v%d" % (f + 1, cur + 2, cur + 3, f + 3, cur + 6, cur + 7))
            q += L("v_cndmask_b32 v%d, v%d, 0.5, vcc\nv_cndmask_b32 v%d, v%d, v%d, vcc" % (f, cur, f + 2, cur + 4, self.VS))
            q += L("v_cvt_pk_bf16_f32 v%d, v%d, v%d\nv_cvt_pk_bf16_f32 v%d, v%d, v%d" % (f, f, cur + 1, f + 2, f + 2, cur + 5))
        else:
            for jp in range(4): q += L("v_cvt_pk_bf16_f32 v%d, v%d, v%d" % (f + jp, cur + 2 * jp, cur + 2 * jp + 1))
        return q
    def pre0(self):
        KD, CO, SEL, GV = self.KD, self.CO, self.SEL, self.GV
        p = F("""s_and_b32 {d}, {C}, 3
s_lshl_b32 {d}, {d}, 4
s_and_b32 {e}, {C}, 1
s_lshl_b32 {e}, {e}, 2
s_add_u32 {e}, {e}, {RG}
s_lshl_b32 {e}, {e}, 2
s_and_b32 {a}, {C}, 2
s_add_u32 {e}, {e}, {a}
s_add_u32 {e}, {e}, {FH}
s_lshl_b32 {e}, {e}, 4
v_add_u32 v{ka}, {e}, v1
v_add_u32 v{kb_}, 0x80, v{ka}
v_add_u32 v{kc}, {d}, v1
v_add_u32 v{kc}, 0x200, v{kc}
v_and_b32 v{vs}, 1, v1
v_lshlrev_b32 v{vs}, 31, v{vs}
v_or_b32 v{vs}, 0.5, v{vs}
v_lshlrev_b32 v{g4}, 2, v2
v_cvt_f32_u32 v{g4}, v{g4}
s_mul_i32 {a}, {W}, 80
v_cvt_f32_u32 v{g8}, {a}
v_add_f32 v{g8}, v{g8}, v{g4}""", ka=KD[0], kb_=KD[1], kc=KD[2], vs=self.VS, g4=self.VG4, g8=self.G8)
        for i in range(3): p += L("v_cvt_f32_u32 v%d, v%d\nv_mul_f32 v%d, %s, v%d" % (KD[i], KD[i], CO[i], f2h(1.0 / 36), KD[i]))
        for i in range(3): p += L("v_cos_f32 v%d, v%d" % (CO[i], CO[i]))
        for i in range(3): p += L("v_mul_f32 v%d, %s, v%d\nv_add_f32 v%d, v%d, v%d" % (KD[i], f2h(1.0 / 576), KD[i], CO[i], CO[i], CO[i]))
        p += L("""v_lshrrev_b32 v{a}, 2, v1
v_cmp_eq_u32 vcc, v{a}, v2
v_and_b32 v{b}, 1, v1
v_lshlrev_b32 v{b}, 4, v{b}
v_mov_b32 v{a}, 0x3f80
v_lshlrev_b32 v{b}, v{b}, v{a}
v_cndmask_b32 v{b}, 0, v{b}, vcc
v_and_b32 v{a}, 2, v1
v_cmp_eq_u32 vcc, 0, v{a}
v_mov_b32 v{s0}, 0
v_mov_b32 v{s1}, 0
v_cndmask_b32 v{s2}, 0, v{b}, vcc
v_cndmask_b32 v{s3}, v{b}, 0, vcc
v_mov_b32 v{s4}, 0
v_mov_b32 v{s5}, 0""".format(a=SEL + 4, b=SEL + 5, s0=SEL, s1=SEL + 1, s2=SEL + 2, s3=SEL + 3, s4=SEL + 4, s5=SEL + 5))
        return p
    def gl(self):
        GV = self.GV
        return F("""s_lshl_b32 {a}, {T}, 9
s_lshl_b32 {b}, {PE2}, 7
s_add_u32 {a}, {a}, {b}
s_add_u32 {a}, {a}, %d
s_add_u32 {b}, {a}, %d
v_lshlrev_b32 v{t}, 2, v1
buffer_load_dword v{g}, v{t}, {WS}, {a} offen sc1
buffer_load_dword v{g1}, v{t}, {WS}, {a} offen offset:64 sc1
buffer_load_dword v{g2}, v{t}, {WS}, {b} offen sc1
buffer_load_dword v{g3}, v{t}, {WS}, {b} offen offset:64 sc1""" % (WS_G, WS_O - WS_G), t=self.VO, g=GV, g1=GV + 1, g2=GV + 2, g3=GV + 3)
    def pre1(self):
        return self.seeds(0, 0) + self.seeds(0, 1) + self.seeds(1, 0) + self.seeds(1, 1)
    def pre2(self):
        p = self.seeds(2, 0) + self.seeds(2, 1)
        for pc in range(3): p += self.frag(pc, 0) + self.frag(pc, 1)
        sc_ = f2h(2.0 / (2048 * 576))
        p += F("""v_mul_f32 v{g}, %s, v{g}
v_mul_f32 v{g1}, %s, v{g1}
v_and_b32 v{o}, 31, v0
v_mul_u32_u24 v{o}, %d, v{o}
v_lshrrev_b32 v{t}, 5, v0
v_lshl_add_u32 v{o}, v{t}, 4, v{o}
s_and_b32 {a}, {PE2}, 1
s_lshl_b32 {a}, {a}, 10
s_lshr_b32 {b}, {PE2}, 1
s_add_u32 {a}, {a}, {b}
s_lshl_b32 {b}, {T}, 1
s_add_u32 {a}, {a}, {b}
s_mul_i32 {a}, {a}, 1152
s_lshl_b32 {d}, {d}, 1
s_add_u32 {d}, {d}, {a}
s_lshl_b32 {e}, {e}, 1
s_add_u32 {e}, {e}, {a}
s_mul_i32 {a}, {W}, 10240
v_add_u32 v{t}, {a}, v{l}
s_cmp_eq_u32 {W}, 0
s_cselect_b32 {a}, 0, 0x80000000
v_or_b32 v{o8}, {a}, v{o}
s_add_u32 {SA}, {XA}, 262144
s_add_u32 {SB}, {XA}, 266240""" % (sc_, sc_, 32 * 1152), g=self.GV, g1=self.GV + 1, o=self.VO, t=self.V8, l=V_L16, o8=self.VO8)
        return p
    def main(self):
        YB, VP, FR, SEL, GV, V8 = self.YB, self.VP, self.FR, self.SEL, self.GV, self.V8
        SENT = OPT.get('sent')
        YF = 224; AC = [240, 248, SET[3]]
        SMQ = lambda pc, h: SET[3] + 8 + 8 * pc + 4 * h
        PAr = lambda i: A(4 * i, 4)
        PBr = lambda i: V(FB + 4 * i, 4) if i < 6 else V(TMP + 4 * (i - 6), 4)
        P8r = lambda i: V(TMP + 4 * i, 4)
        yr = (YB, YB + 36864)
        def yrd(n, va, o):
            r = YF + 8 * (n & 1)
            return L("ds_read_b128 v[%d:%d], v%d offset:%d\nds_read_b128 v[%d:%d], v%d offset:%d" % (r, r + 3, va, o, r + 4, r + 7, va, o + 1024), lds_r=yr)
        def pload(regs, i):
            q = F("buffer_load_dwordx4 %s, v%d, {WS}, {XA} offen offset:%d sc1" % (rs(regs), V_L16, (i % 4) * 1024))
            return q + (F("s_add_u32 {XA}, {XA}, 4096") if i % 4 == 3 else [])
        def summ(pc, regs, first):
            return [mf(V(SMQ(pc, h), 4), V(SEL + 2 - 2 * h, 4), regs, None if first else V(SMQ(pc, h), 4)) for h in range(2)]
        def combine(pc): return [I("v_mul_f32 v%d, v%d, v%d" % (AC[pc] + r, AC[pc] + r, GV + (r >> 2))) for r in range(8)]
        def combine2(pc): return [I("v_fma_f32 v%d, v%d, v%d, v%d" % (AC[pc] + r, SMQ(pc, r >> 2) + (r & 3), GV + 2 + (r >> 2), AC[pc] + r)) for r in range(8)]
        def store(b, so, off, va):
            q = []
            for d in range(4): q += L("v_cvt_pk_bf16_f32 v%d, v%d, v%d" % (b + d, b + 2 * d, b + 2 * d + 1))
            q += L("v_permlane16_swap_b32 v%d, v%d\nv_permlane16_swap_b32 v%d, v%d" % (b, b + 2, b + 1, b + 3))
            return q + F("buffer_store_dwordx4 v[%d:%d], v%d, {OUT}, %s offen offset:%d%s" % (b, b + 3, va, so, off, OPT.get('ofl', "")))
        p = ts(3) + yrd(0, V8, YB) + yrd(1, V8, YB + 2048) + self.out_ops(8, [3]) + ([] if OPT.get('pae') else poll(VP, ENV['PO1'])) + ts(4)
        for i in range(4): p += summ(2, P8r(i), i == 0)
        for n in range(5):
            o = "q8" if n >= 3 else False
            if n == 3: p += F("s_cmp_eq_u32 {W}, 3\ns_cbranch_scc1 L_q8_KN")
            q = []
            if n == 3: q += yrd(3, V8, YB + 3 * 2048) + yrd(4, V8, YB + 4 * 2048) + self.frag(2, 3)
            for h in range(2):
                acc = V(AC[2] + 4 * h, 4)
                q.append(mf(acc, V(FR[2] + 4 * (n & 1), 4), V(YF + 8 * (n & 1) + 4 * h, 4), acc if n else None))
            if n == 0: q += yrd(2, V8, YB + 2 * 2048) + self.frag(2, 2)
            if n == 3: q += self.frag(2, 4)
            for i in q: i.opt = o
            p += q
        p += L("L_q8_KN:") + yrd(0, V_L16, YB)
        XB = 9 * 4096
        p += F("s_lshl_b32 {a}, {W}, 11\nv_add_u32 v%d, {a}, v%d" % (V8, V_L16)) + combine(2) + combine2(2)
        p += L("ds_write_b128 v%d, v[%d:%d] offset:%d\nds_write_b128 v%d, v[%d:%d] offset:%d" % (V8, AC[2], AC[2] + 3, XB, V8, AC[2] + 4, AC[2] + 7, XB + 1024), lds_w=(XB, XB + 8192), tag="r8")
        bl = lambda i: "buffer_load_dwordx4 %s, v%d, {WS}, {%s} offen offset:%d sc1" % (rs(PBr(i)), V_L16, "SA" if i < 4 else "SB", (i % 4) * 1024)
        sec = Sec2()
        ksB, kcB = OPT.get('ksb', 1), OPT.get('kcb', 8)
        R8 = SET[0]
        for kb in range(18):
            b0 = sec.n()
            for pc in range(2):
                for h in range(2):
                    acc = V(AC[pc] + 4 * h, 4)
                    sec.mfma(mf(acc, V(FR[pc] + 4 * (kb & 1), 4), V(YF + 8 * (kb & 1) + 4 * h, 4), acc if kb else None))
            if kb >= 14:
                for i in (2 * (kb - 14), 2 * (kb - 14) + 1):
                    for m_ in summ(0, PAr(i), i == 0): sec.mfma(m_)
            e0 = sec.n() - 1
            if kb < 17: sec.at(b0, yrd(kb + 1, V_L16, YB + (kb + 1) * 2048))
            if 1 <= kb < 17: sec.stream(self.frag(0, kb + 1) + self.frag(1, kb + 1), b0, e0)
            blk = []
            if kb == ksB:
                blk += ts(5) + check("A", VP, ENV['PO1'], ENV['PE1'], sidx=24) + ts(6) + L("s_barrier", need_vm=() if SENT else ("pB",), need_lgkm=("r8",))
                if not SENT: blk += F("s_add_u32 {PO2}, {PO1}, 4") + signal(ENV['PO2']) + poll(VP + 1, ENV['PO2'])
                blk += ts(7)
                for i in range(8): blk += pload(PAr(i), i)
                for i in range(8): blk += L("ds_read_b128 v[%d:%d], v%d offset:%d" % (R8 + 4 * i, R8 + 4 * i + 3, V_L16, XB + i * 1024), lds_r=(XB, XB + 8192))
                blk += ts(8)
            if kb == kcB:
                if not SENT: blk += check("B", VP + 1, ENV['PO2'], ENV['PE1'], sidx=25) + L("s_barrier")
                for i in range(8): blk += F(bl(i))
                blk += ts(9)
            if blk: sec.block(e0, blk)
        p += sec.flatten() + ts(12)
        for r in range(8): p += L("v_add_f32 v%d, v%d, v%d\nv_add_f32 v%d, v%d, v%d\nv_add_f32 v%d, v%d, v%d" % (R8 + r, R8 + r, R8 + 8 + r, R8 + 16 + r, R8 + 16 + r, R8 + 24 + r, R8 + r, R8 + r, R8 + 16 + r))
        p += store(R8, ENV['d'], 1024, self.VO8)
        p += combine(0) + combine2(0) + store(AC[0], ENV['e'], 0, self.VO) + combine(1)
        MX = 4
        def mx(i, acc):
            r = PBr(i)[0][1]
            if acc: return "v_max3_u32 v%d, v%d, v%d, v%d\nv_max3_u32 v%d, v%d, v%d, v%d" % (MX, MX, r, r + 1, MX, MX, r + 2, r + 3)
            return "v_max3_u32 v%d, v%d, v%d, v%d\nv_max_u32 v%d, v%d, v%d" % (MX, r, r + 1, r + 2, MX, MX, r + 3)
        for i in range(8 if SENT else 0): p += L(mx(i, i > 0))
        if SENT: p += L("v_cmp_eq_u32 vcc, -1, v%d\ns_nop 4\ns_cbranch_vccnz L_rt_KN\nL_rb_KN:" % MX)
        o = "L_rt_KN:\ns_mov_b32 s5, 0\nL_rl_KN:\ns_mov_b32 s4, 0\n"
        for i in range(8):
            o += mx(i, False) + "\nv_cmp_eq_u32 vcc, -1, v%d\ns_nop 4\ns_cbranch_vccz L_rs%d_KN\n" % (MX, i) + bl(i).format(**ENV) + "\ns_mov_b32 s4, 1\nL_rs%d_KN:\n" % i
        o += "s_add_u32 s5, s5, 1\n"
        if OPT['stamps']: o += "v_writelane_b32 v%d, s5, 25\n" % VST[0]
        o += "s_cmp_eq_u32 s4, 0\ns_cbranch_scc1 L_rb_KN\ns_waitcnt vmcnt(0)\ns_cmp_lt_u32 s5, 0x40000\ns_cbranch_scc1 L_rl_KN\ns_branch L_rb_KN"
        if SENT: SPINS.append(o)
        p += stamp(21)
        for i in range(8): p += summ(1, PBr(i), i == 0)
        p += combine2(1) + store(AC[1], ENV['e'], 256, self.VO)
        return p

if __name__ == "__main__":
    for x in sys.argv[2:]:
        k, v = x.split("=")
        OPT[k] = int(v) if v.lstrip("-").isdigit() else v.replace("_", " ")
    a = Asm()
    kernel_main(a)
    a.launches = ['; @launch grid=(256,1,1) block=(256,1,1) lds=163840']
    a(".fill 8448, 4, 0xbf800000")
    open(sys.argv[1], "w").write(a.text())
```

```python
import sys, math, struct
from asmlib import *
from fw import *

WS_A = 0x000000
WS_B = 0x300000
WS_Y = 0x3000000
WS_G = 0x600000
WS_O = 0x602000
WS_P = 0x800000
WS_C = 0x620000
WS_8 = 0x1c00000
WS_H = 0x3400000
CL = lambda n: WS_C + 128 * n
WS_N = 0x610000
KB_STRIDE = 131072
MF = "v_mfma_f32_16x16x32_bf16"
def f2h(x): return "0x%08x" % struct.unpack("<I", struct.pack("<f", x))[0]
def mf(d, a, b, c, opt=False):
    return I("%s %s, %s, %s, %s" % (MF, rs(d), rs(a), rs(b), rs(c) if c else "0"), opt=opt)
def F(text, opt=False, tag=None, **env):
    e = dict(ENV); e.update(env)
    kw = {}
    for k in ("lds_r", "lds_w", "priv", "need_vm", "need_lgkm"):
        if k in env: kw[k] = env[k]
    return L(text.format(**e), opt=opt, tag=tag, **kw)

ENV = dict(X="s[8:11]", WG="s[12:15]", WU="s[16:19]", WD="s[20:23]", WS="s[24:27]", DBG="s[28:31]", WP="s[32:35]", WA="s36", WB="s37", f="s38", g="s39", GW="s[40:43]", OUT="s[40:43]", PO1="s75", PO2="s76", PE1="s77", PE2="s78", XA="s83", HB="s46", HT="s47", S8="s44", SM_="s45",
           T="s79", C="s80", W="s81", W1K="s82", KB="s83", RG="s87", FH="s88", S2="s89", a="s84", b="s85", c="s86", d="s92", e="s93",
           Q="s94", KB3="s95", NL="s96", KB1="s97", GA="s98", GB="s99", SA="s100", SB="s101", ST="s90", SP="s91", u="s6", w="s7", ROT="s3")
S_KK, S_DK, S_XQ = 48, 66, 75
OPT = dict(stamps=False, BI=2, sc1p=True)
VST = [223]
def stamp(idx):
    if not OPT['stamps']: return []
    return L("s_memrealtime s[4:5]\ns_waitcnt lgkmcnt(0)\nv_writelane_b32 v%d, s4, %d\ns_memtime s[4:5]\ns_waitcnt lgkmcnt(0)\nv_writelane_b32 v%d, s4, %d" % (VST[0], idx, VST[0], 32 + idx))
def ts(idx):
    return stamp(idx) if OPT.get('diag') == 8 else []
def tp(idx):
    return stamp(idx) if OPT.get('diag') == 10 else []
def diag(n, idx):
    if OPT.get('diag', 0) != n: return []
    return L("s_waitcnt vmcnt(0)") + stamp(idx)
def stamp_out(kidx):
    if not OPT['stamps']: return []
    p = L("s_waitcnt vmcnt(0)") + stamp(31)
    p += F("s_cmp_lg_u32 {W}, 0\ns_cbranch_scc1 L_end_KN\ns_lshl_b32 s4, s2, 8\ns_add_u32 s4, s4, 0x%x\nv_lshlrev_b32 v0, 2, v0" % (STAMP_OFF + kidx * 262144))
    p += F("buffer_store_dword v%d, v0, {WS}, s4 offen" % VST[0])
    if OPT.get('lb') is not None:
        p += F("""s_cmp_lg_u32 s2, %d
s_cbranch_scc1 L_end_KN
v_readlane_b32 {a}, v%d, %d
v_readlane_b32 {b}, v%d, %d
s_nop 4
s_sub_u32 {a}, {b}, {a}
s_mul_i32 {a}, {a}, 10
s_min_u32 {a}, {a}, 200000
s_memrealtime s[4:5]
s_waitcnt lgkmcnt(0)
s_mov_b32 {b}, s4
L_leak_KN:
s_memrealtime s[4:5]
s_waitcnt lgkmcnt(0)
s_sub_u32 {c}, s4, {b}
s_cmp_lt_u32 {c}, {a}
s_cbranch_scc1 L_leak_KN""" % (OPT.get('lw', 5), VST[0], OPT['la'], VST[0], OPT['lb']))
    return p
def srd(d, b, n):
    return L("s_mov_b32 s%d, s%d\ns_and_b32 s%d, s%d, 0xffff\ns_mov_b32 s%d, 0x%x\ns_mov_b32 s%d, 0x20000" % (d, b, d + 1, b + 1, d + 2, n, d + 3))
def emit(a, name, prog, vg, accum=None):
    p = finish(prog)
    dr = OPT.get('drop', "")
    if 'd' in dr: p = [i for i in p if i.kind != 'dma']
    if 'b' in dr: p = [i for i in p if i.kind != 'bar']
    if 't' in dr: p = [i for i in p if not (i.kind == 'ds' and i.tag and i.tag.startswith('f'))]
    if 'v' in dr: p = [i for i in p if not getattr(i, 'silu', False)]
    if 'q' in dr: p = [i for i in p if not (i.kind == 'dma' and i.tag in ('q0', 'q1', 'q2'))]
    if 'y' in dr: p = [i for i in p if not (i.kind == 'dma' and i.tag == 'y')]
    if 'h' in dr: p = [i for i in p if i.tag not in ('gh0', 'gh1', 'gh2')]
    if '8' in dr: p = [i for i in p if i.tag != 'p8']
    if 'w' in dr: p = [i for i in p if not (i.kind == 'vmem' and 'dwordx4' in i.text and 's[32:35]' in i.text)]
    if 'P' in dr: p = [i for i in p if i.tag not in ('pA', 'pB')]
    if 'B' in dr: p = [i for i in p if i.tag not in ('pub1', 'pub2')]
    if 'L' in dr: p = [i for i in p if not (i.kind == 'vmem' and i.op == 'buffer_load_dwordx4' and 'sc1' in i.text)]
    if 'x' in dr:
        for i in p:
            if i.tag in ('gh1', 'gh2', 'pA', 'pB', 'p8', 'pub1', 'pub2'): i.text = i.text.replace(' sc1', '')
    if 's' in dr: p = [i for i in p if not (i.kind == 'vmem' and 's90' in i.text)]
    OOL = ("zf", "nw2", "ny", "s2n", "nyl", "nyd", "d2l", "d2", "ex1")
    q = []; k = 0
    while k < len(p):
        i = p[k]
        if i.kind == 'br' and k + 1 < len(p) and p[k + 1].opt in OOL and not i.opt and OPT.get('ool', 1):
            o = p[k + 1].opt; j = k + 1
            while p[j].opt == o: j += 1
            op, lab = i.text.split()
            assert p[j].text == lab + ":", (p[j].text, lab)
            inv = {"s_cbranch_scc1": "s_cbranch_scc0", "s_cbranch_scc0": "s_cbranch_scc1"}[op]
            i.text = "%s L_o%s_KN" % (inv, o); q.append(i)
            body = [x.text for x in p[k + 1:j]]
            if not body[-1].startswith("s_branch"): body.append("s_branch " + lab)
            SPINS.append("L_o%s_KN:\n" % o + "\n".join(body))
            k = j
        else: q.append(i); k += 1
    p = q
    a.begin(name)
    for i in p: a(i.text.replace("KN", name))
    a("L_end_%s:\ns_endpgm" % name)
    for t in SPINS: a(t.replace("KN", name))
    a.end(name, vg, accum=accum)
    print(name, stats(p), file=sys.stderr)

def PL(): return (16384, 1024, 147456) if OPT.get('lay', 0) else (262144, 16384, 1024)
def WSP(): return OPT.get('wsp', WS_P)
def flat(t):
    o = []
    for x in t: o += x if isinstance(x, list) else [x]
    return o
def XF(mi, kk):
    n = kk * 4 + mi
    return A(4 * n, 4) if n < 64 else V(224 + 4 * (n - 64), 4)
def HF(mi, ks):
    n = ks * 8 + mi
    return XF(n & 3, n >> 2)
SET = [32, 64, 96, 128]
FB = 160
TMP = 196
V_DX, V_DW, V_DH, V_DD, V_RW, V_RX = 3, 4, 5, 6, 7, 13
V_HW, V_HH, V_L16, V_L16B, V_ST, V_SIL = 19, 20, 21, 22, 23, 24

def dma(vo, srdn, soff, pb, ioff, tag):
    assert pb - ioff >= 0
    m = F("s_add_u32 m0, {W1K}, %d" % (pb - ioff))[0]
    d = F("buffer_load_dwordx4 v%d, {%s}, s%d offen%s%s lds" % (vo, srdn, soff, (" offset:%d" % ioff) if ioff else "", OPT.get('xfl', "") if srdn == 'X' else OPT.get('wfl', "")), tag=tag, lds_w=(pb, pb + 4096))[0]
    return m, d

def gate_code(XQ, GQ, R):
    e = dict(va=R[2], vo=R[3], t0=R[4], t1=R[5], t2=R[6], t3=R[7])
    p = F("""v_lshrrev_b32 v{vo}, 5, v0
s_lshl_b32 {a}, {C}, 3
s_lshl_b32 {b}, {W}, 1
s_add_u32 {a}, {a}, {b}
v_add_u32 v{vo}, {a}, v{vo}
v_and_b32 v{t0}, 63, v{vo}
v_lshlrev_b32 v{t0}, 5, v{t0}
v_lshrrev_b32 v{t1}, 6, v{vo}
v_add_u32 v{t0}, v{t0}, v{t1}
s_lshl_b32 {a}, {T}, 1
v_add_u32 v{t0}, {a}, v{t0}
v_mul_u32_u24 v{t0}, 1152, v{t0}
v_and_b32 v{t1}, 31, v0
v_mul_u32_u24 v{t1}, 36, v{t1}
v_add_u32 v{t0}, v{t0}, v{t1}""", **e)
    for b_, s_, ad, sr in ((XQ, R[0], "t0", "X"), (GQ, R[1], "t1", "GW")):
        p += F("buffer_load_dwordx4 v[%d:%d], v{%s}, {%s}, 0 offen\nbuffer_load_dwordx4 v[%d:%d], v{%s}, {%s}, 0 offen offset:16\nbuffer_load_dword v%d, v{%s}, {%s}, 0 offen offset:32"
               % (b_, b_ + 3, ad, sr, b_ + 4, b_ + 7, ad, sr, s_, ad, sr), **e)
    def rest():
        q = []
        for n in range(9):
            q += F("""v_lshlrev_b32 v{t0}, 16, v{x}
v_lshlrev_b32 v{t1}, 16, v{y}
v_and_b32 v{t2}, 0xffff0000, v{x}
v_and_b32 v{t3}, 0xffff0000, v{y}
v_mul_f32 v{t0}, v{t0}, v{t1}
v_mul_f32 v{t2}, v{t2}, v{t3}
v_cvt_pk_bf16_f32 v{t0}, v{t0}, v{t2}
v_lshlrev_b32 v{t1}, 16, v{t0}
v_and_b32 v{t0}, 0xffff0000, v{t0}""", x=XQ + n if n < 8 else R[0], y=GQ + n if n < 8 else R[1], **e)
            q += F("v_add_f32 v{va}, v{t1}, v{t0}" if n == 0 else "v_add_f32 v{va}, v{va}, v{t1}\nv_add_f32 v{va}, v{va}, v{t0}", **e)
        for sh in (8, 4, 2, 1):
            q += F("v_add_f32_dpp v{va}, v{va}, v{va} row_ror:%d row_mask:0xf bank_mask:0xf" % sh, **e)
        q += F("""v_mov_b32 v{t0}, v{va}
v_and_b32 v{t1}, 31, v0
v_cmp_eq_u32 vcc, 0, v{t1}
v_permlane16_swap_b32 v{va}, v{t0}
v_add_f32 v{va}, v{va}, v{t0}
v_cvt_pk_bf16_f32 v{va}, v{va}, v{va}
v_lshlrev_b32 v{va}, 16, v{va}
v_mul_f32 v{va}, {NL}, v{va}
v_exp_f32 v{va}, v{va}
v_lshlrev_b32 v{vo}, 2, v{vo}
v_add_f32 v{va}, 1.0, v{va}
v_rcp_f32 v{va}, v{va}
v_bfrev_b32 v{t1}, 1
v_cvt_pk_bf16_f32 v{va}, v{va}, v{va}
v_lshlrev_b32 v{va}, 16, v{va}
v_sub_f32 v{t0}, 1.0, v{va}
v_cvt_pk_bf16_f32 v{t0}, v{t0}, v{t0}
v_lshlrev_b32 v{t0}, 16, v{t0}
v_cndmask_b32 v{vo}, v{t1}, v{vo}, vcc
s_lshl_b32 {u}, {T}, 9
s_add_u32 {u}, {u}, %d
s_add_u32 {w}, {u}, %d""" % (WS_G, WS_O - WS_G), **e)
        q += F("buffer_store_dword v{va}, v{vo}, {WS}, {u} offen sc1\nbuffer_store_dword v{t0}, v{vo}, {WS}, {w} offen sc1", tag="pub1", **e)
        return q
    return p, rest

def t_setup(P, kb, opt=False):
    e = dict(vk=P, vphi=P + 1, vco=P + 2, vd=P + 3, vmu=P + 4, vsg=P + 5, t=P + 6, kb=kb)
    return F("""v_lshrrev_b32 v{vk}, 2, v1
v_lshlrev_b32 v{vk}, 1, v{vk}
v_and_b32 v{t}, 1, v1
v_add_u32 v{vk}, v{vk}, v{t}
v_lshlrev_b32 v{vsg}, 31, v{t}
v_or_b32 v{vsg}, 1.0, v{vsg}
s_lshl_b32 {a}, {kb}, 4
s_lshl_b32 {b}, {FH}, 3
s_add_u32 {a}, {a}, {b}
v_add_u32 v{vk}, {a}, v{vk}
v_bfe_u32 v{vphi}, v1, 1, 1
v_cvt_f32_u32 v{vphi}, v{vphi}
v_mul_f32 v{vphi}, 0x3e800000, v{vphi}
v_add_u32 v{t}, {a}, v1
v_cmp_eq_u32 vcc, 2, v{t}
v_mov_b32 v{t}, 0x120
v_lshlrev_b32 v{vd}, 3, v2
v_cndmask_b32 v{vk}, v{vk}, v{t}, vcc
v_cndmask_b32 v{vphi}, v{vphi}, 0, vcc
v_mul_u32_u24 v{t}, {ROT}, v{vk}
v_mul_u32_u24 v{vco}, 7282, v{t}
v_lshrrev_b32 v{vco}, 16, v{vco}
v_mul_u32_u24 v{vco}, 9, v{vco}
v_sub_u32 v{t}, v{t}, v{vco}
v_cvt_f32_u32 v{t}, v{t}
v_fmac_f32 v{vphi}, 0x3de38e39, v{t}
v_cvt_f32_u32 v{vk}, v{vk}
v_mul_f32 v{vco}, %s, v{vk}
v_mul_f32 v{vk}, %s, v{vk}
v_cos_f32 v{vco}, v{vco}
v_add_u32 v{t}, {a}, v2
v_cmp_eq_u32 vcc, 0, v{t}
v_cvt_f32_u32 v{vd}, v{vd}
v_add_f32 v{vco}, v{vco}, v{vco}
v_cndmask_b32 v{vmu}, 1.0, 0, vcc""" % (f2h(1.0 / 18), f2h(1.0 / 576)), opt=opt, **e)

def t_frag(kk, f, ST, P, opt=False):
    cur = ST + 8 * (kk & 1); prv = ST + 8 * ((kk + 1) & 1); ops = []
    if kk < 2:
        for j in range(8): ops += L("v_add_f32 v%d, %s, v%d" % (cur + j, f2h(32.0 * kk + j), P + 3), opt=opt)
        for j in range(8): ops += L("v_fma_f32 v%d, v%d, v%d, v%d" % (cur + j, cur + j, P, P + 1), opt=opt)
        for j in range(8): ops += L("v_cos_f32 v%d, v%d" % (cur + j, cur + j), opt=opt)
    else:
        for j in range(8): ops += L("v_fma_f32 v%d, v%d, v%d, -v%d" % (cur + j, P + 2, prv + j, cur + j), opt=opt)
    for jp in range(4): ops += L("v_cvt_pk_bf16_f32 v%d, v%d, v%d" % (f + jp, cur + 2 * jp, cur + 2 * jp + 1), opt=opt)
    return ops

def twiddle_A(TW, T, tiles):
    vs, vj, p0, p1, c0, c1 = T, T + 4, T + 5, T + 6, T + 7, T + 8
    p = F("v_lshlrev_b32 v{vs}, 7, v2\nv_add_u32 v{vs}, {S2}, v{vs}\nv_cvt_f32_u32 v{vs}, v{vs}", vs=vs)
    for j in range(1, 4): p += L("v_add_f32 v%d, %s, v%d" % (vs + j, f2h(32.0 * j), vs))
    for a in tiles:
        p += L("v_lshl_add_u32 v%d, v1, 2, %d\nv_cvt_f32_u32 v%d, v%d\nv_mul_f32 v%d, %s, v%d" % (vj, a, vj, vj, vj, f2h(1.0 / 2048), vj))
        b = TW(a)
        for jp in range(2):
            p += L("""v_mul_f32 v%d, v%d, v%d
v_mul_f32 v%d, v%d, v%d
v_cos_f32 v%d, v%d
v_cos_f32 v%d, v%d
v_sin_f32 v%d, v%d
v_sin_f32 v%d, v%d
v_cvt_pk_bf16_f32 v%d, v%d, v%d
v_cvt_pk_bf16_f32 v%d, v%d, v%d""" % (p0, vs + 2 * jp, vj, p1, vs + 2 * jp + 1, vj, c0, p0, c1, p1, p0, p0, p1, p1, b + jp, c0, c1, b + 4 + jp, p0, p1))
            C = "v%d, v%d" % (c0, c1); nC = "-v%d, -v%d" % (c0, c1); Sn = "v%d, v%d" % (p0, p1); nS = "-v%d, -v%d" % (p0, p1)
            cc, ss = [(C, Sn), (nS, C), (nC, nS), (Sn, nC)][a]
            p += L("v_cvt_pk_bf16_f32 v%d, %s\nv_cvt_pk_bf16_f32 v%d, %s" % (b + 2 + jp, cc, b + 6 + jp, ss))
    return p

def sA_front(ACC, DF, P, opt=False):
    k = dict(opt=opt); p = []
    for i in range(16): p += L("v_fma_f32 v%d, v%d, v%d, v%d" % (ACC + i, P + 5, ACC + 16 + i, ACC + i), **k)
    for i in range(8):
        p += L("v_add_f32 v%d, v%d, v%d\nv_sub_f32 v%d, v%d, v%d" % (ACC + 16 + i, ACC + i, ACC + 8 + i, ACC + 24 + i, ACC + i, ACC + 8 + i), **k)
    for i in range(8): p += L("v_cvt_pk_bf16_f32 v%d, v%d, v%d" % (DF + i, ACC + 16 + 2 * i, ACC + 17 + 2 * i), **k)
    return p
def sA_mfma(ACC, TW, DF, opt=False):
    return [mf(V(ACC + 16 * cs + 4 * a, 4), V(DF + 4 * (a & 1), 4), V(TW(a) + 4 * cs, 4), None, opt) for a in range(4) for cs in range(2)]
def sA_dest(so, kb, t, opt=False):
    return F("s_lshl_b32 {so}, {kb}, 4\ns_add_u32 {so}, {so}, {T}\ns_lshl_b32 {so}, {so}, 2\ns_add_u32 {so}, {so}, {W}\ns_lshl_b32 {so}, {so}, 11", so=so, kb=kb, opt=opt)
def sA_back(ACC, D, mu, va, stg, s0, s1, opt=False):
    k = dict(opt=opt)
    p = F("""s_mul_i32 {x}, {RG}, 4352
s_lshl_b32 {y}, {FH}, 4
s_add_u32 {x}, {x}, {y}
s_add_u32 {x}, {x}, %d
v_mul_u32_u24 v{va}, 272, v1
v_lshl_add_u32 v{va}, v2, 2, v{va}
v_add_u32 v{va}, {x}, v{va}""" % stg, va=va, x=s0, y=s1, **k)
    T1, T2 = ACC, ACC + 16; rng = (stg, stg + 8704)
    for a in range(4):
        x, y = T1 + 4 * a, T2 + 4 * a
        p += L("""v_fma_f32 v%d, v%d, v%d, v%d
v_add_f32 v%d, v%d, v%d
v_fma_f32 v%d, v%d, v%d, -v%d
v_sub_f32 v%d, v%d, v%d
v_cvt_pk_bf16_f32 v%d, v%d, v%d
v_cvt_pk_bf16_f32 v%d, v%d, v%d""" % (x, mu, y + 2, x, x + 1, x + 1, y + 3, y, mu, x + 2, y, y + 1, x + 3, y + 1, D + 2 * a, x, x + 1, D + 2 * a + 1, y, y + 1), **k)
        p += L("ds_write2_b32 v%d, v%d, v%d offset0:%d offset1:%d" % (va, D + 2 * a, D + 2 * a + 1, 16 * a, 16 * a + 8), lds_w=rng, tag="sa", **k)
    p += F("s_mul_i32 {x}, {W}, 2176\ns_add_u32 {x}, {x}, %d\nv_lshl_add_u32 v{va}, v2, 4, v%d\nv_add_u32 v{va}, {x}, v{va}" % (stg, V_L16), va=va, x=s0, **k)
    return p
def sA_read(D, va, stg, opt=False):
    return L("ds_read_b128 v[%d:%d], v%d\nds_read_b128 v[%d:%d], v%d offset:1088" % (D, D + 3, va, D + 4, D + 7, va), lds_r=(stg, stg + 8704), tag="lds", opt=opt)
def sA_store(D, so, opt=False):
    return F("buffer_store_dwordx4 v[%d:%d], v%d, {WS}, %s offen sc1\nbuffer_store_dwordx4 v[%d:%d], v%d, {WS}, %s offen offset:1024 sc1"
             % (D, D + 3, V_L16, so, D + 4, D + 7, V_L16, so), tag="pub1", opt=opt)
def sA_ny(ACC, R):
    T1, T2 = ACC, ACC + 16; o = "ny"; va, t0 = R + 4, R + 5
    p = F("s_or_b32 {c}, {C}, {FH}\ns_cmp_lg_u32 {c}, 0\ns_cbranch_scc1 L_ny_KN")
    q = F("""s_lshl_b32 {a}, {S2}, 12
s_add_u32 {a}, {a}, %d
v_bfe_u32 v{va}, v1, 2, 1
v_lshlrev_b32 v{va}, 6, v{va}
v_lshrrev_b32 v{t0}, 3, v1
v_lshl_add_u32 v{va}, v{t0}, 17, v{va}
v_and_b32 v{t0}, 3, v1
v_lshl_add_u32 v{va}, v{t0}, 2, v{va}
v_lshl_add_u32 v{va}, v2, 28, v{va}""" % (18 * KB_STRIDE), opt=o, va=va, t0=t0)
    for par in range(2):
        q += L("v_cvt_pk_bf16_f32 v%d, v%d, v%d\nv_cvt_pk_bf16_f32 v%d, -v%d, -v%d"
               % (R + par, T1 + 4 * par + 2, T1 + 4 * par + 10, R + 2 + par, T2 + 4 * par + 2, T2 + 4 * par + 10), opt=o)
    for par in range(2):
        q += F("buffer_store_dword v%d, v{va}, {WS}, {a} offen offset:%d sc1\nbuffer_store_dword v%d, v{va}, {WS}, {a} offen offset:%d sc1"
               % (R + par, par * 16, R + 2 + par, 32 + par * 16), opt=o, tag="pub1", va=va)
    return p + q + L("L_ny_KN:")

def dft32(M, T, opt):
    vi, vg, p0, p1, c0, c1 = T, T + 1, T + 2, T + 3, T + 4, T + 5
    k = dict(opt=opt)
    p = L("v_cvt_f32_u32 v%d, v1\nv_lshlrev_b32 v%d, 2, v2\nv_mul_f32 v%d, %s, v%d\nv_cvt_f32_u32 v%d, v%d" % (vi, vg, vi, f2h(1.0 / 32), vi, vg, vg), **k)
    for jp in range(2):
        p += L("""v_add_f32 v%d, %s, v%d
v_add_f32 v%d, %s, v%d
v_mul_f32 v%d, v%d, v%d
v_mul_f32 v%d, v%d, v%d
v_cos_f32 v%d, v%d
v_cos_f32 v%d, v%d
v_sin_f32 v%d, v%d
v_sin_f32 v%d, v%d
v_cvt_pk_bf16_f32 v%d, v%d, v%d
v_cvt_pk_bf16_f32 v%d, v%d, v%d""" % (p0, f2h(2.0 * jp), vg, p1, f2h(2.0 * jp + 1), vg, p0, p0, vi, p1, p1, vi, c0, p0, c1, p1, p0, p0, p1, p1, M + jp, c0, c1, M + 4 + jp, p0, p1), **k)
    p += L("v_and_b32 v%d, 1, v1\nv_mul_u32_u24 v%d, 0x8000, v%d\nv_lshl_add_u32 v%d, v%d, 16, v%d" % (vi, vi, vi, vi, vi, vi), **k)
    for b in (M, M + 4):
        for jp in range(2): p += L("v_xor_b32 v%d, v%d, v%d" % (b + 2 + jp, vi, b + jp), **k)
    for d in range(4):
        p += L("v_xor_b32 v%d, 0x80008000, v%d\nv_xor_b32 v%d, 0x80000000, v%d\nv_xor_b32 v%d, 0x80000000, v%d\nv_xor_b32 v%d, 0x8000, v%d"
               % (M + 8 + d, M + 4 + d, M + 12 + d, M + d, M + 16 + d, M + 4 + d, M + 20 + d, M + 4 + d), **k)
    return p

def nyw_load(r, o):
    return F("""s_lshl_b32 {a}, {T}, 7
s_lshl_b32 {b}, {FH}, 6
s_add_u32 {a}, {a}, {b}
v_add_u32 v{r}, {a}, v0
v_mul_u32_u24 v{r}, 578, v{r}
buffer_load_ushort v{r}, v{r}, {WP}, 0 offen offset:576""", opt=o, r=r)
def nyw_store(r, j, t, o):
    return F("""s_lshl_b32 {a}, {RG}, 12
s_lshl_b32 {b}, {T}, 8
s_add_u32 {a}, {a}, {b}
s_lshl_b32 {b}, {FH}, 7
s_add_u32 {a}, {a}, {b}
s_add_u32 {a}, {a}, %d
v_and_b32 v{j}, 14, v0
v_and_b32 v{t}, 1, v0
v_lshl_add_u32 v{j}, v{t}, 4, v{j}
v_and_b32 v{t}, 1, v2
v_lshl_add_u32 v{j}, v{t}, 6, v{j}
v_lshrrev_b32 v{t}, 1, v2
v_lshl_add_u32 v{j}, v{t}, 5, v{j}""" % WS_N, opt=o, j=j, t=t) + F("buffer_store_short v%d, v%d, {WS}, {a} offen sc1" % (r, j), opt=o, tag="pub1")

def s2_scalars(gam, wo, keep):
    return F("""s_and_b32 {b}, {gam}, 31
s_lshl_b32 {keep}, {b}, 7
s_lshl_b32 {b}, {b}, 1
s_add_u32 {b}, {b}, {FH}
s_mul_i32 {b}, {b}, 578
s_lshr_b32 {a}, {gam}, 5
s_lshl_b32 {wo}, {a}, 6
s_add_u32 {wo}, {wo}, {b}
s_lshl_b32 {a}, {a}, 1
s_add_u32 {a}, {a}, {RG}
s_lshl_b32 {a}, {a}, 17
s_add_u32 {keep}, {keep}, {a}
s_lshl_b32 {b}, {FH}, 16
s_add_u32 {keep}, {keep}, {b}""", gam=gam, wo=wo, keep=keep)
def s2_wloads(gam, wo, Wr, vw, t0):
    return F("""v_lshrrev_b32 v{vw}, 2, v0
v_mul_u32_u24 v{vw}, 36992, v{vw}
v_and_b32 v{t0}, 3, v0
v_lshl_add_u32 v{vw}, v{t0}, 4, v{vw}
s_cmp_lt_u32 {gam}, 288
s_cselect_b32 {f}, 0, 0x80000000
v_or_b32 v{vw}, {f}, v{vw}
s_add_u32 {f}, {wo}, %d
buffer_load_dwordx4 v[%d:%d], v{vw}, {WP}, {wo} offen
buffer_load_dwordx4 v[%d:%d], v{vw}, {WP}, {f} offen""" % (16 * 36992, Wr, Wr + 3, Wr + 4, Wr + 7), gam=gam, wo=wo, vw=vw, t0=t0)
def s2_wspecial(Wr, vw, t0, opt):
    return F("""s_lshl_b32 {a}, {RG}, 12
s_lshl_b32 {b}, {FH}, 6
s_add_u32 {a}, {a}, {b}
s_add_u32 {a}, {a}, %d
v_lshrrev_b32 v{vw}, 2, v0
v_lshlrev_b32 v{vw}, 7, v{vw}
v_and_b32 v{t0}, 3, v0
v_lshl_add_u32 v{vw}, v{t0}, 4, v{vw}
buffer_load_dwordx4 v[%d:%d], v{vw}, {WS}, {a} offen sc1
buffer_load_dwordx4 v[%d:%d], v{vw}, {WS}, {a} offen offset:2048 sc1""" % (WS_N, Wr, Wr + 3, Wr + 4, Wr + 7), opt=opt, vw=vw, t0=t0)
def s2_gaddr(va, t0, opt):
    return F("v_lshrrev_b32 v{va}, 3, v0\nv_lshlrev_b32 v{va}, 12, v{va}\nv_and_b32 v{t0}, 7, v0\nv_lshl_add_u32 v{va}, v{t0}, 4, v{va}", opt=opt, va=va, t0=t0)
def s2_dloads(gam, keep, D, va, vm):
    return F("""s_cmp_le_u32 {gam}, 288
s_cselect_b32 {f}, 0, 0x80000000
v_or_b32 v{vm}, {f}, v{va}
s_add_u32 {f}, {keep}, 0x8000
buffer_load_dwordx4 v[%d:%d], v{vm}, {WS}, {keep} offen sc1
buffer_load_dwordx4 v[%d:%d], v{vm}, {WS}, {f} offen sc1""" % (D, D + 3, D + 4, D + 7), keep=keep, gam=gam, va=va, vm=vm)

def s2_addr(T, lds_base, opt):
    e = dict(vl=T, vr=T + 1, vw=T + 2, vo=T + 3, vp=T + 4, vb=T + 5, t0=T + 7, L16=V_L16)
    return F("""s_lshl_b32 {u}, {W}, 11
s_add_u32 {u}, {u}, %d
v_add_u32 v{vl}, {u}, v{L16}
v_lshrrev_b32 v{t0}, 3, v0
v_lshlrev_b32 v{t0}, 4, v{t0}
v_xor_b32 v{vb}, v{vl}, v{t0}
v_lshrrev_b32 v{vr}, 2, v1
v_lshl_add_u32 v{vr}, v2, 2, v{vr}
v_lshlrev_b32 v{vw}, 6, v{vr}
v_lshlrev_b32 v{vr}, 7, v{vr}
v_and_b32 v{t0}, 3, v1
v_lshl_add_u32 v{vr}, v{t0}, 3, v{vr}
v_lshl_add_u32 v{vw}, v{t0}, 3, v{vw}
s_lshl_b32 {u}, {RG}, 12
s_lshl_b32 {w}, {FH}, 6
s_add_u32 {u}, {u}, {w}
s_add_u32 {u}, {u}, %d
v_add_u32 v{vr}, {u}, v{vr}
v_lshlrev_b32 v{vo}, 7, v1
v_lshl_add_u32 v{vo}, v2, 3, v{vo}
v_add_u32 v{vo}, {u}, v{vo}
v_and_b32 v{t0}, 7, v1
v_lshlrev_b32 v{t0}, 4, v{t0}
v_xor_b32 v{vo}, v{vo}, v{t0}
v_xor_b32 v{vp}, 32, v{vo}
s_lshl_b32 {u}, {FH}, 11
s_lshl_b32 {w}, {RG}, 5
s_add_u32 {u}, {u}, {w}
s_add_u32 {u}, {u}, %d
v_add_u32 v{vw}, {u}, v{vw}""" % (lds_base, lds_base, lds_base + 8192), opt=opt, **e)

def s2_compute(R, M, T, X, lds_base, opt):
    k = dict(opt=opt)
    e = dict(vl=T, vr=T + 1, vw=T + 2, vb=T + 5, va=T + 6, t0=X, t1=X + 1, t2=X + 2, t3=X + 3)
    C = lambda a: V(M + (a * 3) * 4, 4)
    Sn = lambda a: V(M + (a * 3 + 1) * 4, 4)
    N = lambda a: V(M + (a * 3 + 2) * 4, 4)
    q = []
    for n, (keep, D, Z, Wr, sa, sb) in enumerate(R):
        o = n * 16384; rng = (lds_base + o, lds_base + o + 16384)
        q += F("ds_write_b128 v{vl}, v[%d:%d] offset:%d\nds_write_b128 v{vl}, v[%d:%d] offset:%d\nds_write_b128 v{vl}, v[%d:%d] offset:%d\nds_write_b128 v{vl}, v[%d:%d] offset:%d"
               % (D, D + 3, o, D + 4, D + 7, o + 1024, Wr, Wr + 3, o + 8192, Wr + 4, Wr + 7, o + 9216), lds_w=rng, tag="s2", **k, **e)
        q += L("s_add_u32 %s, %s, %d\ns_add_u32 %s, %s, 0x8000" % (sa, keep, WS_B, sb, sa), **k)
    q += L("s_barrier", need_lgkm=("s2",), **k)
    for n, (keep, D, Z, Wr, sa, sb) in enumerate(R):
        o = n * 16384; rng = (lds_base + o, lds_base + o + 16384)
        for pl in range(2):
            q += F("ds_read_b64_tr_b16 v[%d:%d], v{vr} offset:%d\nds_read_b64_tr_b16 v[%d:%d], v{vr} offset:%d"
                   % (D + 4 * pl, D + 4 * pl + 1, o + pl * 32, D + 4 * pl + 2, D + 4 * pl + 3, o + pl * 32 + 2048), lds_r=rng, tag="s2r", **k, **e)
    for n, (keep, D, Z, Wr, sa, sb) in enumerate(R):
        o = n * 16384; rng = (lds_base + o, lds_base + o + 16384)
        for pl in range(2):
            q += F("ds_read_b64_tr_b16 v[%d:%d], v{vw} offset:%d\nds_read_b64_tr_b16 v[%d:%d], v{vw} offset:%d"
                   % (Wr + 4 * pl, Wr + 4 * pl + 1, o + pl * 4096, Wr + 4 * pl + 2, Wr + 4 * pl + 3, o + pl * 4096 + 1024), lds_r=rng, tag="s2r", **k, **e)
    def fwd(D, Z):
        Ar, Ai = V(D, 4), V(D + 4, 4); m = []
        for aa in range(2):
            zr, zi = V(Z(4 * aa), 4), V(Z(8 + 4 * aa), 4)
            m += [mf(zr, C(aa), Ar, None, opt), mf(zr, Sn(aa), Ai, zr, opt), mf(zi, C(aa), Ai, None, opt), mf(zi, N(aa), Ar, zi, opt)]
        return m
    def mul(D, Z, Wr):
        v = []
        for i in range(0, 8, 2):
            v += F("""v_lshlrev_b32 v{t3}, 16, v{wi}
v_and_b32 v{wi}, 0xffff0000, v{wi}
v_lshlrev_b32 v{t2}, 16, v{wr}
v_and_b32 v{wr}, 0xffff0000, v{wr}
v_mul_f32 v{t0}, v{zi}, v{t3}
v_mul_f32 v{t1}, v{yi}, v{wi}
v_mul_f32 v{t3}, v{zr}, v{t3}
v_mul_f32 v{wi}, v{yr}, v{wi}
v_fma_f32 v{zr}, v{zr}, v{t2}, -v{t0}
v_fma_f32 v{yr}, v{yr}, v{wr}, -v{t1}
v_fma_f32 v{zi}, v{zi}, v{t2}, v{t3}
v_fma_f32 v{yi}, v{yi}, v{wr}, v{wi}""", zr=Z(i), zi=Z(8 + i), yr=Z(i + 1), yi=Z(9 + i), wr=Wr + i // 2, wi=Wr + 4 + i // 2, **k, **e)
        for pl in range(2):
            for d in range(4): v += L("v_cvt_pk_bf16_f32 v%d, v%d, v%d" % (D + 4 * pl + d, Z(8 * pl + 2 * d), Z(8 * pl + 2 * d + 1)), **k)
        return v
    def inv(D, Z):
        Ar, Ai = V(D, 4), V(D + 4, 4); m = []
        for aa in range(2):
            br = V(Z(4 * aa), 4); m += [mf(br, Ar, C(aa), None, opt), mf(br, Ai, N(aa), br, opt)]
        for aa in range(2):
            bi = V(Z(8 + 4 * aa), 4); m += [mf(bi, Ai, C(aa), None, opt), mf(bi, Ar, Sn(aa), bi, opt)]
        return m
    def outw(n, Z, Wr):
        v = []; o = n * 16384
        for pl in range(2):
            for aa in range(2):
                r = Wr + 4 * pl + 2 * aa; z = Z(8 * pl + 4 * aa)
                v += L("v_cvt_pk_bf16_f32 v%d, v%d, v%d\nv_cvt_pk_bf16_f32 v%d, v%d, v%d" % (r, z, z + 1, r + 1, z + 2, z + 3), **k)
                v += L("ds_write_b64 v%d, v[%d:%d] offset:%d" % (T + 3 + pl, r, r + 1, o + aa * 2048), lds_w=(lds_base + o, lds_base + o + 8192), tag="s2", **k)
        return v
    def mix(ms, vs, lead=0):
        out = list(vs[:lead]); vs = vs[lead:]
        for n, m in enumerate(ms):
            out.append(m); out += vs[2 * n:2 * n + 2]
        return out + vs[2 * len(ms):]
    bar2 = lambda: L("s_barrier", need_lgkm=("s2r",), **k)
    if len(R) == 1:
        keep, D, Z, Wr, sa, sb = R[0]
        f = fwd(D, Z); b2 = bar2(); v = mul(D, Z, Wr)
        q += f[:4] + mix(f[4:], []) + b2 + v + inv(D, Z) + outw(0, Z, Wr)
    else:
        (k0, D0, Z0, W0, _, _), (k1, D1, Z1, W1, _, _) = R
        f0 = fwd(D0, Z0); f1 = fwd(D1, Z1); b2 = bar2(); v0 = mul(D0, Z0, W0); i0 = inv(D0, Z0); v1 = mul(D1, Z1, W1); o0 = outw(0, Z0, W0); i1 = inv(D1, Z1); o1 = outw(1, Z1, W1)
        q += f0 + b2 + mix(f1, v0) + mix(i0, v1, 2) + mix(i1, o0, 2) + o1
    q += L("s_barrier", need_lgkm=("s2",), **k)
    for n, (keep, D, Z, Wr, sa, sb) in enumerate(R):
        o = n * 16384
        q += F("ds_read_b128 v[%d:%d], v{vb} offset:%d\nds_read_b128 v[%d:%d], v{vb} offset:%d" % (D, D + 3, o, D + 4, D + 7, o + 1024), lds_r=(lds_base + o, lds_base + o + 8192), tag="lds", **k, **e)
    for n, (keep, D, Z, Wr, sa, sb) in enumerate(R):
        q += F("buffer_store_dwordx4 v[%d:%d], v{va}, {WS}, %s offen sc1\nbuffer_store_dwordx4 v[%d:%d], v{va}, {WS}, %s offen sc1"
               % (D, D + 3, sa, D + 4, D + 7, sb), tag="pub2", **k, **e)
    return q

def twiddle_D(TW, T):
    vs, vj, vk, c0, c1, s0, s1 = T, T + 1, T + 2, T + 3, T + 4, T + 5, T + 6
    p = F("""s_lshl_b32 {u}, {FH}, 9
s_add_u32 {u}, {u}, {S2}
v_lshlrev_b32 v{vs}, 5, v1
v_add_u32 v{vs}, {u}, v{vs}
v_cvt_f32_u32 v{vs}, v{vs}
v_mul_f32 v{vs}, %s, v{vs}
v_lshlrev_b32 v{vj}, 4, v2
v_cvt_f32_u32 v{vj}, v{vj}
v_add_f32 v{vk}, v{vs}, v{vs}
v_cos_f32 v{vk}, v{vk}""" % f2h(1.0 / 2048), vs=vs, vj=vj, vk=vk)
    for par in range(2):
        p += L("""v_add_f32 v%d, %s, v%d
v_add_f32 v%d, %s, v%d
v_mul_f32 v%d, v%d, v%d
v_mul_f32 v%d, v%d, v%d
v_cos_f32 v%d, v%d
v_cos_f32 v%d, v%d
v_sin_f32 v%d, v%d
v_sin_f32 v%d, v%d""" % (s0, f2h(float(par)), vj, s1, f2h(par + 2.0), vj, s0, s0, vs, s1, s1, vs, c0, s0, c1, s1, s0, s0, s1, s1))
        if par == 0: p += L("v_add_f32 v%d, v%d, v%d" % (vk, vk, vk))
        for jp in range(4):
            if jp:
                p += L("v_fma_f32 v%d, v%d, v%d, -v%d\nv_fma_f32 v%d, v%d, v%d, -v%d\nv_fma_f32 v%d, v%d, v%d, -v%d\nv_fma_f32 v%d, v%d, v%d, -v%d"
                       % (c0, vk, c1, c0, s0, vk, s1, s0, c1, vk, c0, c1, s1, vk, s0, s1))
            p += L("v_cvt_pk_bf16_f32 v%d, v%d, v%d\nv_cvt_pk_bf16_f32 v%d, v%d, v%d" % (TW + par * 8 + jp, c0, c1, TW + par * 8 + 4 + jp, s0, s1))
    return p

def stepD_loads(kb, RAW, opt=False):
    p = F("s_lshl_b32 {a}, {S2}, 12\ns_add_u32 {a}, {a}, %d\ns_lshl_b32 {b}, {kb}, 17\ns_add_u32 {b}, {b}, {a}" % WS_B, kb=kb, opt=opt)
    for i in range(4):
        p += F("buffer_load_dwordx4 v[%d:%d], v%d, {WS}, {b} offen offset:%d sc1" % (RAW + 4 * i, RAW + 4 * i + 3, V_L16, i * 1024), opt=opt)
    return p
def stepD_nyloads(NY, T, opt):
    p = F("s_add_u32 {a}, {a}, %d\nv_and_b32 v{t}, 1, v2\nv_lshlrev_b32 v{t}, 6, v{t}\nv_lshrrev_b32 v{n}, 1, v2\nv_lshl_add_u32 v{t}, v{n}, 17, v{t}" % (18 * KB_STRIDE), opt=opt, t=T, n=NY)
    for par in range(2):
        for pl in range(2):
            r = NY + (par * 2 + pl) * 4
            p += F("buffer_load_dwordx4 v[%d:%d], v%d, {WS}, {a} offen offset:%d sc1" % (r, r + 3, T, pl * 32 + par * 16), opt=opt)
    return p

def stepD_parts(RAW, NY, NB, TW, ACC, T, stage_base, kb, so, opt=False):
    k = dict(opt=opt)
    e = dict(vl=T, vr=T + 1, t0=T + 2, so=so, kb=kb)
    rng = (stage_base, stage_base + 16384)
    p = F("s_lshl_b32 {so}, {W}, 12\ns_add_u32 {so}, {so}, %d\nv_add_u32 v{vl}, {so}, v%d" % (stage_base, V_L16), **k, **e)
    p += F("""v_lshrrev_b32 v{vr}, 2, v1
v_lshl_add_u32 v{vr}, v2, 3, v{vr}
v_lshlrev_b32 v{vr}, 7, v{vr}
v_and_b32 v{t0}, 3, v1
v_lshl_add_u32 v{vr}, v{t0}, 3, v{vr}
v_add_u32 v{vr}, {so}, v{vr}""", **k, **e)
    for i in range(4):
        p += F("ds_write_b128 v{vl}, v[%d:%d] offset:%d" % (RAW + 4 * i, RAW + 4 * i + 3, i * 1024), lds_w=rng, priv=True, tag="lds", **k, **e)
    for par in range(2):
        for pl in range(2):
            r = RAW + (par * 2 + pl) * 4; o = par * 64 + pl * 32
            p += F("ds_read_b64_tr_b16 v[%d:%d], v{vr} offset:%d\nds_read_b64_tr_b16 v[%d:%d], v{vr} offset:%d" % (r, r + 1, o, r + 2, r + 3, o + 512),
                   lds_r=rng, priv=True, tag="lds", **k, **e)
    p += F("s_lshl_b32 {so}, {S2}, 1\ns_mul_i32 {so}, {so}, 18\ns_add_u32 {so}, {so}, {kb}\ns_lshl_b32 {so}, {so}, 1\ns_add_u32 {so}, {so}, {FH}\ns_lshl_b32 {so}, {so}, 10\ns_add_u32 {so}, {so}, %d" % WS_Y, **k, **e)
    ng = []
    for par in range(2):
        for d in range(4): ng += L("v_xor_b32 v%d, 0x80008000, v%d" % (NB + 4 * par + d, RAW + par * 8 + 4 + d), **k)
    mr = []
    for par in range(2):
        er = V(ACC + 8 * par, 4)
        mr += [mf(er, V(RAW + 8 * par, 4), V(TW + 8 * par, 4), None, opt), mf(er, V(NB + 4 * par, 4), V(TW + 8 * par + 4, 4), er, opt)]
    pt = []
    if not opt:
        pt = F("s_cmp_lg_u32 {C}, 0\ns_cbranch_scc1 L_nyd_KN") + L("v_cmp_eq_u32 vcc, 0, v1", opt="nyd")
        for par in range(2):
            for d in range(4):
                br, bi, nr, ni = RAW + 8 * par + d, RAW + 8 * par + 4 + d, NY + 8 * par + d, NY + 8 * par + 4 + d
                pt += L("v_xor_b32 v%d, 0x80008000, v%d\nv_cndmask_b32 v%d, v%d, v%d, vcc\nv_cndmask_b32 v%d, v%d, v%d, vcc" % (ni, ni, bi, bi, nr, br, br, ni), opt="nyd")
        pt += L("L_nyd_KN:")
    mi_ = []
    for par in range(2):
        ei = V(ACC + 8 * par + 4, 4)
        mi_ += [mf(ei, V(RAW + 8 * par + 4, 4), V(TW + 8 * par, 4), None, opt), mf(ei, V(RAW + 8 * par, 4), V(TW + 8 * par + 4, 4), ei, opt)]
    f = []
    for r in range(8):
        f += L("v_add_f32 v%d, v%d, v%d\nv_sub_f32 v%d, v%d, v%d" % (RAW + r, ACC + r, ACC + 8 + r, RAW + 8 + r, ACC + r, ACC + 8 + r), **k)
    for u in range(2):
        for d in range(4): f += L("v_cvt_pk_bf16_f32 v%d, v%d, v%d" % (RAW + 8 * u + d, RAW + 8 * u + 2 * d, RAW + 8 * u + 2 * d + 1), **k)
        f += F("buffer_store_dwordx4 v[%d:%d], v%d, {WS}, {so} offen sc1" % (RAW + 8 * u, RAW + 8 * u + 3, V_L16), tag="p8", **k, **e)
        if u == 0: f += F("s_add_u32 {so}, {so}, 36864", **k, **e)
    return p, ng, mr, pt, mi_, f

V_M0, V_ONE = 222, 3
SPINS = []
def signal(so):
    return F("buffer_atomic_add v%d, v%d, {WS}, %s offen sc1" % (V_ONE, V_M0, so))
def poll(vr, so, srdn="WS"):
    return F("buffer_load_dword v%d, v%d, {%s}, %s offen sc1" % (vr, V_M0, srdn, so))
def check(name, vr, so, exp, srdn="WS", sidx=None):
    p = F("v_readfirstlane_b32 {SP}, v%d\ns_cmp_ge_u32 {SP}, %s\ns_cbranch_scc0 L_sp%s_KN\nL_bk%s_KN:" % (vr, exp, name, name))
    st = ""
    if OPT['stamps'] and sidx is not None and OPT.get('diag') != 11: st = "v_writelane_b32 v%d, s5, %d\n" % (VST[0], sidx)
    SPINS.append(("""L_sp{n}_KN:
s_mov_b32 s5, 0
L_sq{n}_KN:
s_sleep 1
buffer_load_dword v%d, v%d, {%s}, %s offen sc1
s_add_u32 s5, s5, 1
s_waitcnt vmcnt(0)
v_readfirstlane_b32 {SP}, v%d
%ss_cmp_ge_u32 s5, 0x80000
s_cbranch_scc1 L_bk{n}_KN
s_cmp_ge_u32 {SP}, %s
s_cbranch_scc0 L_sq{n}_KN
s_branch L_bk{n}_KN""" % (vr, V_M0, srdn, so, vr, st, exp)).format(n=name, **ENV))
    return p

def kernel_main(a):
    name = NAME + "_kernel"
    BI = OPT['BI']
    t0, t1 = SET[0], SET[0] + 1
    e = dict(t0=t0, t1=t1, DX=V_DX, DW=V_DW, DH=V_DH, DD=V_DD, RW=V_RW, RX=V_RX, RW1=V_RW + 3, RX1=V_RX + 3, HW=V_HW, HH=V_HH, L16=V_L16, L16B=V_L16B, VST_=V_ST)
    VPF, VDM = V_HH, V_ST
    def vaddr64(q):
        for i in q:
            if i.op == "v_add_co_u32": i.wr.append(('s', 'vcc')); i.rd = [r for r in i.rd if r != ('s', 'vcc')]
            if i.op == "v_addc_co_u32": i.wr.append(('s', 'vcc'))
        return q
    G = []
    def grp(kind, nm, need, **kw):
        d = dict(kind=kind, nm=nm, need=need, bar=False, xr=None, rate=2); d.update(kw); G.append(d); return d
    for sg in range(9):
        for tau in range(4):
            mat = 'G' if tau < 2 else 'U'
            g = grp('SB', 16 if tau == (3 if sg < 8 else 0) else 8, [(mat, 0, 2 * sg), (mat, 0, 2 * sg + 1)], sg=sg, tau=tau, rate=[int(x) for x in str(OPT.get('sbr', 2214) if sg < 8 else OPT.get('sbl', 3111))][tau])
            if tau == 2 or (sg == 0 and tau == 0): g['bar'] = True
            if sg < 8 and tau in (2, 3): g['xr'] = (sg + 1, tau - 2)
    PS = {}
    for mat, b, st in [('G', 1, 3), ('U', 1, 2), ('G', 2, 0), ('U', 2, 1), ('G', 3, 3), ('U', 3, 2)]:
        PS[mat + str(b)] = len(G)
        for sl in range(6):
            for ap in range(2):
                g = grp('P1', 12, [(mat, b, 3 * sl + e_) for e_ in range(3)], st=st, sl=sl, ap=ap, ps=mat + str(b))
                if ap == 0 and (sl % BI == BI - 1): g['bar'] = True
    for hf, mat in enumerate(('HG', 'HU')):
        PS[mat] = len(G)
        for gi in range(6):
            g = grp('PH', 12, [(mat, (3 * gi + e_) >> 1) for e_ in range(3)], gi=gi, ps=mat, half=hf)
            if gi % 2 == 0: g['bar'] = True
    P2 = len(G); HU = PS['HU']; IL = OPT.get('il', 0)
    seq = [(0, 0), (1, 0), (0, 1), (1, 1), (0, 2), (1, 2)] + [(u, gi) for u in range(2, 5) for gi in range(3)] + ([(5, 0), (6, 0), (5, 1), (6, 1), (5, 2), (6, 2)] if IL else [(5, 0), (6, 0), (5, 1), (5, 2), (6, 1), (6, 2)]) + [(u, gi) for u in range(7, 9) for gi in range(3)]
    for u, gi in seq:
        grp('P2', 24, [('D', u, 3 * gi + e_) for e_ in range(3)], cb=u, gi=gi, rate=OPT.get('r2', 4), bar=True)
    NG = len(G)
    for x in str(OPT.get('nb', '')).split(','):
        if x: G[P2 + int(x)]['bar'] = False
    G[P2 - 1]['bar'] = True
    def rdg(n): return n - 1 if n > P2 else n - 2
    iv = []; n = 0
    for g in G:
        if g['bar']: n += 1
        iv.append(n)
    def free_iv(gr):
        for k in range(gr, NG):
            if G[k]['bar']: return iv[k]
        return 10 ** 6
    def next_bar(gi):
        while not G[gi]['bar']: gi += 1
        return gi
    first = {}; fre = {}; order = []
    def use(key, rg_, done_g):
        if key not in first: first[key] = iv[rg_] if rg_ >= 0 else 0; order.append(key)
        fre[key] = max(fre.get(key, 0), free_iv(done_g))
    for q in range(4): use(('x', 0, q), -1, 1)
    ev = []
    for gi, g in enumerate(G):
        for k in g['need']: ev.append((rdg(gi), 0, k, gi))
        if g['xr']:
            for q in range(4): ev.append((gi, 1, ('x', g['xr'][0], q), 4 * g['xr'][0] + 1))
    ev.sort(key=lambda x: (x[0], x[1]))
    for r_, _, k, d_ in ev: use(k, r_, d_)
    order.sort(key=lambda k: first[k])
    fixed = {}
    for sg in range(9):
        s = 8 * (sg % 5)
        for e_ in range(2):
            fixed[('G', 0, 2 * sg + e_)] = s + e_; fixed[('U', 0, 2 * sg + e_)] = s + 2 + e_
        for q in range(4): fixed[('x', sg, q)] = s + 4 + q
    gS2 = PS['U2'] + 11
    gSD = P2 + OPT.get('sdat', 4); gQ = P2 + 18
    gar = next_bar(PS['G1'] + 5); ga1 = next_bar(PS['U1'] + OPT.get('a1at', 2)); gc1 = next_bar(PS['U2'] + 2); ga2 = next_bar(gS2 + OPT.get('a2at', 9)); gc2 = HU + 2
    gh1 = next_bar(PS['HG'] + OPT.get('h1at', 2)); gq1 = P2 + OPT.get('q1at', 1); gh2 = P2 + OPT.get('h2at', 7); gq2 = P2 + OPT.get('q2at', 12); gf8 = P2 + OPT.get('f8at', 12); gY = P2 + OPT.get('yat', 18); gfa = P2 + OPT.get('faat', 26)
    QP = OPT.get('qp', 0); gq0 = next_bar(PS['U3'] + OPT.get('q0at', 8))
    res = [(0, 4, PS['G1'] - 1, NG - 1), (4, 1, PS['G1'] - 1, PS['G1']), (8, 8, gS2, gS2 + 1), (4, 4, PS['G2'], NG - 1), (8, 4, PS['G3'], gQ), (8, 3, gQ, NG - 1),
           (12, 4, PS['HG'], gQ + 1), (16, 2, P2, gQ + 1), (18, 4, gSD, gSD + 4)]
    resv = {pg: [] for pg in range(40)}
    for f_, npg, ga, gb in res:
        for pg in range(f_, f_ + npg): resv[pg].append((iv[ga], free_iv(gb + 1)))
    free_at = [-1] * 40; phys = {}; issue_grp = {}; qi = 0
    def ioff(k):
        if k[0] == 'D': return 0 if k[1] == 0 else ((k[1] - 1) & 3) * 128
        return k[1] * 128 if k[0] in 'GU' else 0
    def try_alloc(k, cur):
        for pg in ([fixed[k]] if k in fixed else range(39, -1, -1)):
            if free_at[pg] > cur or (pg == 0 and ioff(k) > 0): continue
            if any(not (fre[k] <= a_ or cur >= b_) for a_, b_ in resv[pg]): continue
            return pg
        return None
    cum = [0]
    for g in G: cum.append(cum[-1] + g['nm'])
    bar_grp = {iv[gi]: gi for gi, g in enumerate(G) if g['bar']}; bar_grp[0] = 0
    vt = {}; cnt_iv = {}
    for k in order:
        n_ = cnt_iv.get(first[k], 0); cnt_iv[first[k]] = n_ + 1
        vt[k] = cum[bar_grp[first[k]]] + n_ * (5 if k in fixed else 8)
    LA = lambda k: OPT.get('la0', 120) if k in fixed else OPT.get('la1', 400)
    NPRO = OPT.get('npro', 16)
    while qi < NPRO:
        k = order[qi]; phys[k] = try_alloc(k, -1); free_at[phys[k]] = fre[k]; issue_grp[k] = -1; qi += 1
    hole_end = -1; hole_left = 0
    for gi, g in enumerate(G):
        g['dma'] = []
        if g['kind'] in ('P1', 'PH') and OPT.get('hole'): g['rate'] = OPT.get('hr', 3)
        while qi < len(order) and len(g['dma']) < g['rate']:
            k = order[qi]
            if vt[k] - cum[gi] > LA(k): break
            if cum[gi] < hole_end and hole_left <= 0 and vt[k] - cum[gi] > OPT.get('hmin', 70): break
            pg = try_alloc(k, iv[gi])
            if pg is None: break
            assert iv[gi] < first[k], ("late DMA", k, gi)
            phys[k] = pg; free_at[pg] = fre[k]; issue_grp[k] = gi; g['dma'].append(k); qi += 1
            hole_left -= 2 if k[0] in ('HG', 'HU') else 1
            if OPT.get('hole') and k not in fixed and k[0] != 'D' and k[-1] == 0: hole_end = cum[gi] + OPT['hole']; hole_left = OPT.get('hn', 6)
    assert qi == len(order), order[qi]
    print("dma per group:", "".join(str(len(g['dma'])) for g in G), file=sys.stderr)
    slk = {}
    for k in order:
        if issue_grp[k] >= 0:
            kk_ = k[:2] if k[0] in 'GUD' else k[:1]
            slk[kk_] = min(slk.get(kk_, 9999), cum[bar_grp[first[k]]] - cum[issue_grp[k] + 1])
    print("min DMA slack (mfmas):", slk, file=sys.stderr)
    V_D8 = TMP + 25
    def mkdma(k):
        tag = "pg%d" % first[k]; pb = phys[k] * 4096
        if k[0] == 'x':
            pre = []
            if k[2] == 0 and k[1] > 0:
                pre = F("s_cmp_eq_u32 {ROT}, %d\ns_cselect_b32 {SP}, -8, 1\nv_lshl_add_u32 v%d, {SP}, 7, v%d" % (9 - k[1], V_DX, V_DX))
            m_, d_ = dma(V_DX, 'X', S_XQ + k[2], pb, 0, tag)
            return (pre + [m_], d_) if pre else (m_, d_)
        if k[0] == 'G': return dma(V_DW, 'WG', S_KK + k[2], pb, ioff(k), tag)
        if k[0] == 'U': return dma(V_DW, 'WU', S_KK + k[2], pb, ioff(k), tag)
        if k[0] == 'HG': return dma(V_DH, 'WG', S_KK + 2 * k[1], pb, 0, tag)
        if k[0] == 'HU': return dma(V_DH, 'WU', S_KK + 2 * k[1], pb, 0, tag)
        return dma(V_DD if k[1] else V_D8, 'WD', (S_DK if k[1] < 5 else S_KK) + k[2], pb, ioff(k), tag)
    def mkx(kind, pg, va):
        m_ = F("s_add_u32 m0, {W1K}, %d" % (pg * 4096))[0]
        d_ = F("buffer_load_dwordx4 v%d, {WS}, m0 offen sc1 lds" % va, tag=kind, lds_w=(pg * 4096, pg * 4096 + 4096))[0]
        return m_, d_
    MP = OPT.get('map', 1)
    IDS = """s_and_b32 {C}, s2, 3
s_lshl_b32 {C}, {C}, 2
s_bfe_u32 {a}, s2, 0x20003
s_add_u32 {C}, {C}, {a}
s_lshr_b32 {ROT}, s2, 5
s_lshl_b32 {T}, {ROT}, 1
s_bfe_u32 {b}, s2, 0x10002
s_add_u32 {T}, {T}, {b}
s_lshl_b32 {a}, {a}, 1
s_add_u32 {ROT}, {ROT}, {a}
s_cmp_ge_u32 {ROT}, 9
s_cselect_b32 {a}, 9, 0
s_sub_u32 {ROT}, {ROT}, {a}
""" if MP == 1 else """s_and_b32 {C}, s2, 7
s_lshl_b32 {C}, {C}, 1
s_bfe_u32 {a}, s2, 0x10003
s_add_u32 {C}, {C}, {a}
s_lshr_b32 {T}, s2, 4
s_lshl_b32 {a}, {a}, 2
s_add_u32 {ROT}, {T}, {a}
s_cmp_ge_u32 {ROT}, 9
s_cselect_b32 {a}, 9, 0
s_sub_u32 {ROT}, {ROT}, {a}
s_cmp_ge_u32 {ROT}, 9
s_cselect_b32 {a}, 9, 0
s_sub_u32 {ROT}, {ROT}, {a}
"""
    NPF = 27 if MP == 1 else 14
    RV = OPT.get('rv', 0)
    if RV == 1: IDS += "s_mul_i32 {a}, {ROT}, 11\ns_lshr_b32 {a}, {a}, 5\ns_mul_i32 {a}, {a}, 3\ns_sub_u32 {ROT}, {ROT}, {a}\ns_mul_i32 {ROT}, {ROT}, 3\n"
    if RV == 2: IDS += "s_and_b32 {ROT}, {ROT}, 14\n"
    p = L("s_cmp_ge_u32 s2, 256\ns_cbranch_scc1 L_end_KN")
    if OPT['stamps']: p += L("v_mov_b32 v%d, 0" % VST[0])
    p += stamp(0)
    p += L("s_load_dwordx16 s[52:67], s[0:1], 0\ns_load_dwordx4 s[68:71], s[0:1], 64\ns_load_dwordx2 s[72:73], s[0:1], 80")
    p += vaddr64(L("s_getpc_b64 s[6:7]\nv_lshlrev_b32 v34, 5, v0\nv_mov_b32 v35, s7\nv_add_co_u32 v34, vcc, s6, v34\nv_addc_co_u32 v35, vcc, 0, v35, vcc"))
    p += [Ins("global_load_dword v%d, v[34:35], off" % VDM, 'vmem', V(34, 2), [])]
    p += F("""v_lshrrev_b32 v1, 6, v0
v_and_b32 v0, 63, v0
v_readfirstlane_b32 {W}, v1
v_and_b32 v1, 15, v0
v_lshrrev_b32 v2, 4, v0
IDSs_lshr_b32 {RG}, {W}, 1
s_and_b32 {FH}, {W}, 1
s_lshl_b32 {W1K}, {W}, 10
v_lshrrev_b32 v{DD}, 3, v0
s_lshl_b32 {a}, {W}, 3
v_add_u32 v{DD}, {a}, v{DD}
v_mul_u32_u24 v{DX}, %d, v{DD}
s_lshl_b32 {a}, {FH}, 2
v_add_u32 v{t0}, {a}, v2
v_xor_b32 v{t0}, v0, v{t0}
v_and_b32 v{t0}, 7, v{t0}
v_lshl_add_u32 v{DX}, v{t0}, 4, v{DX}
s_mul_i32 {a}, {T}, 2304
s_lshl_b32 {b}, {ROT}, 7
s_add_u32 {a}, {a}, {b}
v_add_u32 v{DX}, {a}, v{DX}
v_mul_u32_u24 v{DW}, 9216, v{DD}
v_bfe_u32 v{t0}, v0, 1, 2
v_and_b32 v{t1}, 1, v2
s_lshl_b32 {a}, {FH}, 1
v_or_b32 v{t1}, {a}, v{t1}
v_xor_b32 v{t1}, v{t1}, v{t0}
v_lshl_add_u32 v{DW}, v{t1}, 5, v{DW}
v_and_b32 v{t1}, 1, v0
v_lshl_add_u32 v{DW}, v{t1}, 4, v{DW}
s_mul_i32 {d}, {C}, 576
s_and_b32 {e}, {C}, 1
s_lshl_b32 {c}, {e}, 6
s_add_u32 {c}, {c}, {d}
v_add_u32 v{DW}, {c}, v{DW}""".replace("IDS", IDS) % (32 * 1152), **e)
    for q in range(4): p += L("s_mov_b32 s%d, %d" % (S_XQ + q, (1024 * (q & 1) + (q >> 1)) * 1152))
    def skk(m):
        KS = 32 * 9216
        if m == 0: q = F("s_mul_i32 s%d, {ROT}, %d" % (S_KK, 2 * KS))
        else: q = F("s_add_u32 s%d, s%d, %d\ns_cmp_eq_u32 {ROT}, %d\ns_cselect_b32 s%d, 0, s%d" % (S_KK + 2 * m, S_KK + 2 * m - 2, 2 * KS, 9 - m, S_KK + 2 * m, S_KK + 2 * m))
        return q + L("s_add_u32 s%d, s%d, %d" % (S_KK + 2 * m + 1, S_KK + 2 * m, KS))
    p += skk(0) + skk(1)
    for d_, n_ in ((8, 2048 * 1152), (12, 576 * 9216), (16, 576 * 9216)): p += L("s_mov_b32 s%d, 0x%x\ns_mov_b32 s%d, 0x20000" % (d_ + 2, n_, d_ + 3))
    p += L("s_waitcnt lgkmcnt(0)")
    pro = [k for k in order if issue_grp[k] < 0]
    p += L("s_mov_b32 s8, s52\ns_and_b32 s9, s53, 0xffff")
    for k in pro[:4]: p += flat(mkdma(k))
    p += L("s_mov_b32 s12, s60\ns_and_b32 s13, s61, 0xffff\ns_mov_b32 s16, s62\ns_and_b32 s17, s63, 0xffff")
    for k in pro[4:8]: p += flat(mkdma(k))
    p += F("s_cmp_eq_u32 {RG}, 0\ns_cselect_b32 s54, s54, s56\ns_cselect_b32 s55, s55, s57")
    p += srd(32, 54, 2048 * 578) + srd(20, 64, 4608 * 1152) + srd(40, 66, 1152) + srd(28, 70, 256) + srd(24, 72, WS_BYTES)
    p += vaddr64(F("""s_lshr_b32 {a}, s2, 3
s_lshl_b32 {a}, {a}, 2
s_add_u32 {a}, {a}, {W}
s_lshl_b32 {a}, {a}, 9
s_add_u32 {a}, {a}, 8192
v_lshlrev_b32 v34, 3, v0
v_add_u32 v34, {a}, v34
v_mov_b32 v35, s7
v_add_co_u32 v34, vcc, s6, v34
v_addc_co_u32 v35, vcc, 0, v35, vcc"""))
    p += [Ins("global_load_dword v%d, v[34:35], off" % VDM, 'vmem', V(34, 2), [])]
    g1, g2 = gate_code(SET[2] + 16, SET[2] + 24, [FB + 8, FB + 9, FB + 10, FB + 11, FB + 20, FB + 21, FB + 22, FB + 23])
    p += g1 + srd(40, 68, 2048 * 1152)
    p += F("s_cmp_lg_u32 {C}, 0\ns_cbranch_scc1 L_nw_KN") + nyw_load(TMP + 24, "nw") + L("L_nw_KN:")
    p += F("s_cmp_lg_u32 s2, 0\ns_cbranch_scc1 L_z_KN")
    p += F("v_mov_b32 v36, 0\nv_mov_b32 v37, 0\nv_mov_b32 v38, 0\nv_mov_b32 v39, 0\nv_lshlrev_b32 v40, 4, v0\ns_lshl_b32 {a}, {W}, 12\ns_add_u32 {a}, {a}, %d" % WS_C, opt="z")
    for i in range(4): p += F("buffer_store_dwordx4 v[36:39], v40, {WS}, {a} offen offset:%d sc1" % (i * 1024), opt="z", tag="zero")
    p += L("L_z_KN:")
    for m in range(2, 9): p += skk(m)
    w = F("""s_lshl_b32 {S2}, {T}, 1
s_add_u32 {S2}, {S2}, {RG}
v_lshrrev_b32 v{RW}, 2, v1
v_lshlrev_b32 v{RW}, 7, v{RW}
v_lshl_add_u32 v{RW}, v2, 10, v{RW}
v_and_b32 v{t0}, 3, v1
v_lshl_add_u32 v{RW}, v{t0}, 3, v{RW}
v_bfe_u32 v{t0}, v1, 3, 1
v_and_b32 v{t1}, 1, v2
v_lshl_add_u32 v{t0}, v{t1}, 1, v{t0}
s_lshl_b32 {a}, {FH}, 1
v_xor_b32 v{t0}, {a}, v{t0}
v_lshl_add_u32 v{RW}, v{t0}, 5, v{RW}
v_xor_b32 v{RW1}, 32, v{RW}
v_lshrrev_b32 v{t0}, 1, v1
v_xor_b32 v{t0}, v{t0}, v2
v_lshlrev_b32 v{t0}, 4, v{t0}
v_lshl_add_u32 v{RX}, v1, 7, v{t0}
s_lshl_b32 {a}, {RG}, 13
v_add_u32 v{RX}, {a}, v{RX}
v_xor_b32 v{RX1}, 64, v{RX}""", **e)
    for b in (V_RW, V_RW + 3, V_RX, V_RX + 3):
        w += L("v_add_u32 v%d, 0x10000, v%d\nv_add_u32 v%d, 0x20000, v%d" % (b + 1, b, b + 2, b))
    w += F("""v_or_b32 v{m}, {W}, v0
v_min_u32 v{m}, 1, v{m}
v_lshlrev_b32 v{m}, 31, v{m}
v_mul_u32_u24 v{DD}, 1152, v{DD}
v_bfe_u32 v{t0}, v0, 1, 2
v_xor_b32 v{t0}, v{t0}, v2
v_lshl_add_u32 v{DD}, v{t0}, 5, v{DD}
v_and_b32 v{t1}, 1, v0
v_lshl_add_u32 v{DD}, v{t1}, 4, v{DD}
v_lshrrev_b32 v{DH}, 2, v0
s_lshl_b32 {a}, {W}, 4
v_add_u32 v{DH}, {a}, v{DH}
v_mul_u32_u24 v{DH}, 9216, v{DH}
v_lshl_add_u32 v{DH}, v{t1}, 4, v{DH}
v_bfe_u32 v{t0}, v0, 1, 1
v_lshrrev_b32 v{t1}, 5, v0
v_xor_b32 v{t0}, v{t0}, v{t1}
v_lshl_add_u32 v{DH}, v{t0}, 5, v{DH}
s_cmp_eq_u32 {e}, 0
s_cselect_b32 {a}, 512, 0
s_add_u32 {a}, {a}, {d}
v_add_u32 v{DH}, {a}, v{DH}
v_lshlrev_b32 v{L16}, 4, v0
v_add_u32 v{L16B}, 0x10000, v{L16}
s_lshl_b32 {a}, {FH}, 13
s_lshl_b32 {b}, {RG}, 12
s_add_u32 {a}, {a}, {b}
v_add_u32 v{HW}, {a}, v{L16}
s_lshl_b32 {HB}, {T}, 4
s_add_u32 {HB}, {HB}, {C}
s_mul_i32 {HB}, {HB}, 73728
s_add_u32 {HB}, {HB}, %d
s_mov_b32 {Q}, 0x3e800000
s_mov_b32 {NL}, %s
s_add_u32 {KB1}, {C}, 2
s_add_u32 {KB3}, {C}, 4
s_cmp_lt_u32 {KB3}, 18
s_cselect_b32 {KB3}, {KB3}, 0
s_sub_u32 {GA}, 11, {C}
s_lshl_b32 {GA}, {GA}, 4
s_add_u32 {GA}, {GA}, {T}
s_cmp_lt_u32 {C}, 12
s_cselect_b32 {GA}, {GA}, 0x1000
s_add_u32 {GB}, {GA}, 192
s_mul_i32 {a}, {C}, %d
s_mul_i32 {c}, {e}, %d
s_add_u32 s%d, {a}, {c}
s_cmp_eq_u32 {e}, 0
s_cselect_b32 {c}, %d, 0
s_add_u32 s%d, {a}, {c}
s_lshr_b32 {b}, {T}, {mp}
s_mul_i32 {b}, {b}, %d
s_add_u32 {a}, {a}, {b}
s_mul_i32 {b}, {W}, %d
s_add_u32 {a}, {a}, {b}
v_lshlrev_b32 v{pf}, 7, v0
v_add_u32 v{pf}, {a}, v{pf}
v_cmp_gt_u32 vcc, {npf}, v0
v_bfrev_b32 v{t0}, 1
s_lshl_b32 {S8}, {T}, 18
s_lshl_b32 {b}, {W}, 16
v_cndmask_b32 v{pf}, v{t0}, v{pf}, vcc
s_add_u32 {S8}, {S8}, {b}
s_lshl_b32 {b}, {C}, 10
s_add_u32 {S8}, {S8}, {b}""" % (WS_H, f2h(-math.log2(math.e)), 288 * 1152, 32 * 1152, S_DK, 256 * 1152, S_DK + 8, (36 if MP else 18) * 1152, 3 * NPF * 128), m=V_M0, pf=VPF, mp=MP, npf=NPF, **e)
    for ks in range(1, 8): w += L("s_add_u32 s%d, s%d, %d" % (S_DK + ks, S_DK, ks * 32 * 1152))
    w += s2_scalars(ENV['GA'], ENV['WA'], ENV['SA']) + s2_scalars(ENV['GB'], ENV['WB'], ENV['SB'])
    TP = V_SIL
    TF = lambda kk: (SET[3] + 4 * kk) if kk < 8 else FB + 32
    TWA = lambda a_: (TMP + 8 * a_) if a_ < 3 else SET[3]
    def clears(r):
        n0 = OPT.get('cl0', 2)
        q0 = F("""s_lshl_b32 {g}, {T}, 1
s_and_b32 {SM_}, {C}, 1
s_add_u32 {g}, {g}, {SM_}
s_lshl_b32 {g}, {g}, 19
s_lshl_b32 {SM_}, {W}, 15
s_add_u32 {g}, {g}, {SM_}
s_lshr_b32 {SM_}, {C}, 1
s_lshl_b32 {SM_}, {SM_}, 10
s_add_u32 {g}, {g}, {SM_}
s_add_u32 {g}, {g}, %d""" % (WS_P + n0 * 131072))
        for i in range(4): q0 += L("v_mov_b32 v%d, -1" % (r + i))
        q1 = []
        for i in range(4 * (4 - n0)):
            q1 += F("buffer_store_dwordx4 v[%d:%d], v%d, {WS}, {g} offen sc1" % (r, r + 3, V_L16), tag="p8")
            q1 += F("s_add_u32 {g}, {g}, %d" % (8192 if i % 4 != 3 else 131072 - 3 * 8192))
        return q0, q1
    if OPT.get('sent') and OPT.get('clat', -1) < 0:
        q0, q1 = clears(SET[0] + 12); w += q0 + q1
    w += t_setup(TP, ENV['C'])
    p += w
    parts = [(lambda kk=kk: t_frag(kk, TF(kk), SET[1], TP)) for kk in range(9)] + [lambda: twiddle_A(TWA, SET[0], range(OPT.get('ntw', 3)))]
    dstart = OPT.get('dst', 2); rest = pro[8:]
    for n_, f_ in enumerate(parts):
        p += f_()
        if n_ >= dstart and rest: p += flat(mkdma(rest.pop(0)))
    for k in rest: p += flat(mkdma(k))
    sec = Sec2(); sec.smooth = bool(OPT.get('smooth', 1)); sec.hor = OPT.get('hor', 200)
    def FBUF(gi): return FB + 12 * (gi % 3) if gi <= P2 else FB + 12 * ((gi - P2) & 1)
    assert P2 % 3 == 0
    def frag_reads(gi):
        g = G[gi]; out = []
        for e_, k in enumerate(g['need']):
            pb = phys[k] * 4096
            if k[0] in 'GU':
                ap = g['tau'] & 1 if g['kind'] == 'SB' else g['ap']
                base, o, d2 = V_RW + 3 * ap, pb, 512
            elif k[0] in ('HG', 'HU'): base, o, d2 = V_RX, pb + ((3 * g['gi'] + e_) & 1) * 2048, 256
            else: base, o, d2 = V_RX + 3, pb, 2048
            r = FBUF(gi) + 4 * e_
            out.append(L("ds_read_b64_tr_b16 v[%d:%d], v%d offset:%d\nds_read_b64_tr_b16 v[%d:%d], v%d offset:%d"
                         % (r, r + 1, base + (o >> 16), o & 0xffff, r + 2, r + 3, base + (o >> 16), (o & 0xffff) + d2), lds_r=(pb, pb + 4096), tag="f%d" % gi))
        return out
    def x_reads(sg, e_):
        kk = 2 * sg + e_; out = []; pb = phys[('x', sg, 0)] * 4096
        for mi in range(4):
            o = pb + mi * 2048
            out += L("ds_read_b128 %s, v%d offset:%d" % (rs(XF(mi, kk)), V_RX + 3 * e_ + (o >> 16), o & 0xffff), lds_r=(pb, pb + 16384), tag="x%d" % sg)
        return [out[0:2], out[2:4]]
    def h_read(n_, tag):
        o = (n_ >> 3) * 8192 + (n_ & 7) * 1024
        return L("ds_read_b128 %s, v%d offset:%d" % (rs(HF(n_ & 7, n_ >> 3)), V_L16B if o >> 16 else V_L16, o & 0xffff), lds_r=(o, o + 1024), tag=tag)[0]
    def silu_a(st, n_=32):
        out = []
        for i in range(0, n_, 4):
            T = V_SIL + (i & 4); rr = range(st + i, st + i + 4)
            out += [F("v_mul_f32 v%d, {NL}, v%d" % (T + j, r))[0] for j, r in enumerate(rr)]
            out += [I("v_exp_f32 v%d, v%d" % (T + j, T + j)) for j in range(4)]
            out += [I("v_add_f32 v%d, 1.0, v%d" % (T + j, T + j)) for j in range(4)]
            out += [I("v_rcp_f32 v%d, v%d" % (T + j, T + j)) for j in range(4)]
            out += [I("v_mul_f32 v%d, v%d, v%d" % (r, r, T + j)) for j, r in enumerate(rr)]
        return out
    def silu_b(sm, sp, b):
        out = []
        for mi in range(4):
            d = sp + 4 * mi
            for ap in range(2):
                o = (ap * 4 + mi) * 4
                out += [I("v_mul_f32 v%d, v%d, v%d" % (sm + o + r, sm + o + r, sp + o + r)) for r in range(4)]
            for ap in range(2):
                q = sm + (ap * 4 + mi) * 4
                out += [I("v_cvt_pk_bf16_f32 v%d, v%d, v%d" % (d + 2 * ap + h, q + 2 * h, q + 2 * h + 1)) for h in range(2)]
            out += L("ds_write_b128 v%d, v[%d:%d] offset:%d" % (V_HW, d, d + 3, b * 16384 + mi * 1024), lds_w=(b * 16384, b * 16384 + 16384), tag="hw%d" % b)
        return out
    def h_out(sp, b):
        out = F("s_add_u32 {HT}, {HB}, %d" % (b * 16384))
        for mi in range(4):
            out += F("buffer_store_dwordx4 v[%d:%d], v%d, {WS}, {HT} offen offset:%d sc1" % (sp + 4 * mi, sp + 4 * mi + 3, V_HW, mi * 1024), tag="gh0" if b < 2 else "gh1" if b < 3 else "gh2")
        return out
    def silu_bH(st):
        out = []
        for mi in range(4):
            gq, uq = st + 4 * mi, st + 16 + 4 * mi
            out += [I("v_mul_f32 v%d, v%d, v%d" % (gq + r, gq + r, uq + r)) for r in range(4)]
            out += [I("v_cvt_pk_bf16_f32 v%d, v%d, v%d" % (uq + h, gq + 2 * h, gq + 2 * h + 1)) for h in range(2)]
            out += L("ds_write_b64 v%d, v[%d:%d] offset:%d" % (V_HH, uq, uq + 1, mi * 1024), lds_w=(65536, 65536 + 8192), tag="hw4")
        return out
    PACC = [SET[1], SET[2], SET[1], SET[3], SET[0], SET[2], SET[1], SET[3], SET[0]]
    def out_ops(cb, ips=range(4)):
        acc = PACC[cb]; out = []
        for ip in ips:
            b = acc + 8 * ip
            if cb == 0: out += F("s_add_u32 {ST}, {S8}, 0x%x" % (WS_8 + ip * 16384))
            else: out += F("s_mov_b32 {ST}, 0x%x" % (WS_P + (cb - 5) * 131072 + ip * 8192))
            out += [I("v_cvt_pk_bf16_f32 v%d, v%d, v%d" % (b + d, b + 2 * d, b + 2 * d + 1)) for d in range(4)]
            if cb >= 7 and OPT.get('sent'): out += [I("v_min_u32 v%d, -2, v%d" % (b + d, b + d)) for d in range(4)]
            out += F("buffer_store_dwordx4 v[%d:%d], v%d, {WS}, {ST} offen sc1" % (b, b + 3, V_ST if cb else V_L16), tag="p8" if cb == 0 else "pA" if cb < 7 else "pB")
        return out
    p += stamp(1) + L("s_barrier", need_vm=("pg0",)) + stamp(2)
    xa, xb = x_reads(0, 0), x_reads(0, 1)
    for r_ in [xa[0], xb[0]] + frag_reads(0) + [xa[1], xb[1]] + frag_reads(1): p += r_
    q = g2()
    sec.stream(q[:98], 30, 188, "gate0")
    sec.stream(q[98:], 30, 300, "gate", "gate0")
    VP = TMP + 22
    HSP = OPT.get('hsp', 30)
    hq = {HU + 2: range(0, 6), HU + 3: range(6, 12), HU + 4: range(12, 18), HU + 5: range(18, 24), P2: range(24, 36), P2 + 1: range(36, 48), P2 + 2: range(48, 64), P2 + 3: range(64, 72)}
    qq = {P2 + 13 + i: range(12 * i, 12 * i + 12) for i in range(6)} if IL else {P2 + 13: range(0, 12), P2 + 14: range(12, 28), P2 + 15: range(28, 44), P2 + 16: range(44, 58), P2 + 17: range(58, 72)}
    VQ, VY = V_DW, V_DH
    xd = {}
    for i in range(12): xd.setdefault(gq1 + (i * (P2 + OPT.get('qe', 11) - gq1)) // 12, []).append(('q%d' % (i // 6), i, VQ))
    for i in range(12, 18): xd.setdefault(gq2 + (i - 12) // 3, []).append(('q2', i, VQ))
    for i in range(9): xd.setdefault(max(gY + 1 + i // OPT.get('yr', 3), P2 + 18 if i >= 6 else 0), []).append(('y', i, VY))
    S2D = [SET[2] + 16, SET[2] + 24]; S2W = [TMP, TMP + 8]
    M2, Z2, S2T, S2L = SET[3], SET[2], SET[3] + 24, 8 * 4096
    def pfw(it):
        i = F("buffer_load_dword v%d, v%d, {WD}, 0 offen" % (VDM, VPF))[0]
        if it < 2: i.wr = []
        return [i] + L("v_add_u32 v%d, %d, v%d" % (VPF, NPF * 128, VPF))
    KBX = "s_lshr_b32 {x}, {y}, 5\ns_cmp_eq_u32 {x}, 9\ns_cselect_b32 {x}, 0, {x}\ns_add_u32 {x}, {x}, {o}\ns_add_u32 {XA}, {T}, 34\ns_cmp_gt_u32 {y}, 288\ns_cselect_b32 {x}, {XA}, {x}\ns_lshl_b32 {x}, {x}, 7\ns_add_u32 {x}, {x}, %d\n" % WS_C
    kbx = lambda x, y, o: KBX.replace("{x}", "{%s}" % x).replace("{y}", "{%s}" % y).replace("{o}", str(o))
    W0 = "s_cmp_eq_u32 {W}, 0\ns_cselect_b32 {PE1}, {PE1}, 0\ns_cselect_b32 {PE2}, {PE2}, 0"
    CPF = {int(x): TMP + 20 for x in str(OPT.get('cpf', '0')).split(',') if x != '0'}
    RAW, RA2, NB, SDT = TMP, SET[3] + 16, FB + 24, FB + 32
    for gi, g in enumerate(G):
        base = sec.n(); fb = FBUF(gi); ms = []
        if g['kind'] == 'SB':
            st = SET[0] if g['tau'] < 2 else SET[1]
            for mi in range(4):
                for e_ in range(2):
                    acc = V(st + ((g['tau'] & 1) * 4 + mi) * 4, 4); kk = 2 * g['sg'] + e_
                    ms.append(mf(acc, V(fb + 4 * e_, 4), XF(mi, kk), acc if kk else None))
            if g['nm'] == 16:
                tm = []
                for mi in range(4):
                    for e_ in range(2):
                        kk = 2 * g['sg'] + e_
                        acc = V(SET[2] + 16 * (kk // 9) + 4 * mi, 4)
                        tm.append(mf(acc, XF(mi, kk), V(TF(kk % 9), 4), acc if kk % 9 else None))
                ms = ms + tm if g['sg'] < 8 else tm + ms
        elif g['kind'] in ('P1', 'PH'):
            st = SET[g['st']] + 16 * g['ap'] if g['kind'] == 'P1' else SET[0] + 16 * g['half']
            k0 = 3 * (g['sl'] if g['kind'] == 'P1' else g['gi'])
            for mi in range(4):
                for e_ in range(3):
                    acc = V(st + 4 * mi, 4)
                    ms.append(mf(acc, V(fb + 4 * e_, 4), XF(mi, k0 + e_), acc if k0 + e_ else None))
        else:
            for mi in range(8):
                for e_ in range(3):
                    acc = V(PACC[g['cb']] + 4 * mi, 4)
                    ms.append(mf(acc, V(fb + 4 * e_, 4), HF(mi, 3 * g['gi'] + e_), acc if (g['gi'] or e_ or g['cb'] >= 5) else None))
        lg = ["f%d" % gi]; vm = []
        if g['kind'] == 'SB' and g['tau'] == 0: lg.append("x%d" % g['sg'])
        if g['kind'] == 'P2' and g['cb'] == 0: lg.append("h%d" % g['gi'])
        if g['kind'] == 'P2' and g['cb'] == 5: lg.append("r%d" % g['gi'])
        if g['bar']:
            vm.append("pg%d" % iv[gi])
            for gx, tg in ((gar, "sa"), (P2 + 2, "hw3"), (P2 + 3, "hw4")):
                if gi == gx: lg.append(tg)
            for gx, tg in ((6, "zero"), (ga1, "pub1"), (ga2, "pub2"), (gfa, "pA"), (NG - 1, "y"), (ga2, "gh0"), (gh1, "gh1"), (gh2, "gh2"), (gf8, "p8"), (P2 + 13, "q0"), (P2 + 15 if IL else P2 + 14, "q1"), (P2 + 17 if IL else P2 + 16, "q2")):
                if gi == gx: vm.append(tg)
        if gi == ga1: sec.block(base - 1, check("0", VP, "0", ENV['PE1'], "DBG", 27))
        if gi in (gc1, gc2):
            n_ = "1" if gi == gc1 else "2"
            sec.block(base - 1, check(n_ + "a", VP, ENV['PO1'], ENV['PE1'], sidx=28 if gi == gc1 else 29) + check(n_ + "b", VP + 1, ENV['PO2'], ENV['PE2']))
        if gi == gq0 and QP: sec.block(base - 1, check("q0", VP + 2, ENV['SB'], ENV['SM_']))
        if gi == gq1: sec.block(base - 1, check("q1", VP + 2, ENV['SB'], ENV['SM_'], sidx=22))
        if gi == gq2: sec.block(base - 1, check("q2", VP + 2, ENV['SB'], ENV['SM_'], sidx=23))
        if gi == gY: sec.block(base - 1, check("8", VP, ENV['PO1'], ENV['PE1'], sidx=26))
        if gi:
            if sec.blk.get(base - 1): sec.block(base - 1, [Need(vm, lg)])
            else: sec.at(base - 1, Need(vm, lg))
        for m_ in ms: sec.mfma(m_)
        nm = g['nm']; end = sec.n()
        sidx = None
        if g['kind'] in ('P1', 'PH') and PS[g['ps']] == gi: sidx = 3 + list(PS).index(g['ps'])
        if g['kind'] == 'P2' and (gi - P2) % 3 == 0: sidx = 11 + (gi - P2) // 3
        if OPT.get('diag') == 7:
            g0 = OPT.get('g0', 36); sp = OPT.get('gs', 4)
            sidx = 3 + (gi - g0) // sp if (g0 <= gi < g0 + 17 * sp and (gi - g0) % sp == 0) else None
        if OPT.get('diag') in (8, 11): sidx = None
        gap = 0
        if g['bar']:
            sec.at(base, L("s_barrier", need_vm=tuple(vm), need_lgkm=tuple(lg))); gap = 1
        if sidx is not None and OPT['stamps']: sec.block(base, stamp(sidx))
        pairs = []
        for n_ in range(gi + 1, min(NG, gi + 3)):
            if rdg(n_) == gi: pairs += frag_reads(n_)
        hr = []
        if g['xr'] and g['tau'] == 2:
            xa_, xb_ = x_reads(g['xr'][0], 0), x_reads(g['xr'][0], 1)
            sec.stream(flat([xa_[0], xb_[0], xa_[1], xb_[1]]), base + 1, end + 10, "", None, OPT.get('xsp', 2))
        hr += [h_read(n_, "h%d" % (n_ // 24)) for n_ in hq.get(gi, [])] + [h_read(n_, "r%d" % (n_ // 24)) for n_ in qq.get(gi, [])]
        dm = [mkdma(k) for k in g['dma']] + [mkx(*k) for k in xd.get(gi, [])]
        lo, hi = gap + 1, nm - 2
        dpos = [lo + ((2 * k_ + 1) * (hi - lo + 1)) // (2 * len(dm)) for k_ in range(len(dm))]
        for k_ in range(1, len(dm)): dpos[k_] = max(dpos[k_], dpos[k_ - 1] + 2)
        for k_ in range(len(dm) - 1, -1, -1): dpos[k_] = min(dpos[k_], hi if k_ == len(dm) - 1 else dpos[k_ + 1] - 2)
        assert not dm or dpos[0] >= lo, (gi, dpos)
        for ps_, it in zip(dpos, dm):
            if isinstance(it[0], list): sec.block(base + ps_ - 1, it[0])
            else: sec.at(base + ps_ - 1, it[0])
            sec.at(base + ps_, it[1])
        fr = [x for x in range(gap, nm) if x not in dpos]
        if g['kind'] == 'P2': sel = fr[0:2 * len(pairs):2]
        else: sel = [fr[(k_ * len(fr)) // len(pairs)] for k_ in range(len(pairs))] if pairs else []
        for ps_, it in zip(sel, pairs): sec.at(base + ps_, it)
        if hr: sec.stream(hr, base + gap, end - (5 if nm > 12 else 1), "", None, 1)
        if OPT.get('diag') == 11:
            g0 = OPT.get('g0', 0); sp = OPT.get('gs', 3)
            li = (gi - g0) // sp
            if gi >= g0 and (gi - g0) % sp == 0 and li < 58:
                li = 3 + li if li < 17 else 16 + li + (2 if li >= 17 else 0)
                fg = [x for x in fr if not sec.sc.get(base + x) and x < nm - 3][0]
                if li < 63 and li not in (52, 53):
                    sec.at(base + fg, Ins("s_memtime s[4:5]", 'salu', [], S(4, 2)))
                    sec.block(base + nm - 2, L("v_writelane_b32 v%d, s4, %d" % (VST[0], li)))
                    print("light", li, gi, base + fg, file=sys.stderr)
        if gi == 6:
            q = F("s_cmp_lg_u32 s2, 0\ns_cbranch_scc1 L_zf_KN") + L("v_mov_b32 v31, 1", opt="zf")
            sec.block(end - 1, q + F("buffer_store_dword v31, v%d, {DBG}, 0 offen sc1" % V_M0, opt="zf") + L("L_zf_KN:"))
        if gi == 19: sec.block(end - 1, F("s_cmp_lg_u32 {C}, 0\ns_cbranch_scc1 L_nw2_KN") + nyw_store(TMP + 24, TMP + 25, 31, "nw2") + L("L_nw2_KN:"))
        if gi == OPT.get('clat', -1):
            q0, q1 = clears(V_SIL if gi < 0 else TMP + 16)
            sec.stream(q0, end, end + 30, "cl0")
            sec.stream(q1, end, end + 400, "cl1", "cl0", OPT.get('csp', 30))
        if gi == 27: sec.stream(twiddle_A(TWA, SET[3] + 8, range(OPT.get('ntw', 3), 4)), end, end + 46, "twA")
        if gi == 32: sec.stream(sA_front(SET[2], SET[3] + 8, TP) + L("v_mov_b32 v%d, v%d" % (TMP + 24, TP + 4)) + sA_dest(ENV['g'], ENV['C'], None), base + 10, base + 37, "sAf", "twA")
        if gi == PS['G1'] - 1:
            e2 = dict(e); e2.update(t0=TMP + 20, t1=TMP + 21)
            sw = F("""v_lshrrev_b32 v{RX}, 2, v1
v_lshl_add_u32 v{RX}, v2, 3, v{RX}
v_lshlrev_b32 v{RX}, 6, v{RX}
v_and_b32 v{t0}, 3, v1
v_lshl_add_u32 v{RX}, v{t0}, 3, v{RX}
v_and_b32 v{t1}, 1, v2
v_xor_b32 v{t1}, {FH}, v{t1}
v_lshl_add_u32 v{RX}, v{t1}, 5, v{RX}
v_lshrrev_b32 v{RX1}, 2, v1
v_lshl_add_u32 v{RX1}, v2, 2, v{RX1}
v_bfe_u32 v{t1}, v{RX1}, 1, 2
v_xor_b32 v{t1}, {W}, v{t1}
v_lshlrev_b32 v{RX1}, 7, v{RX1}
v_lshl_add_u32 v{RX1}, v{t1}, 5, v{RX1}
v_lshl_add_u32 v{RX1}, v{t0}, 3, v{RX1}
v_add_u32 v{d8}, 0x400, v{DD}
s_and_b32 {u}, {C}, 1
v_lshl_add_u32 v{DD}, {u}, 9, v{DD}
v_mov_b32 v{one}, 1""", d8=V_D8, one=V_ONE, **e2)
            for b in (V_RX, V_RX + 3): sw += L("v_add_u32 v%d, 0x10000, v%d\nv_add_u32 v%d, 0x20000, v%d" % (b + 1, b, b + 2, b))
            sw += F("s_cmp_eq_u32 {W}, 0\ns_cselect_b32 {PE1}, 1, 0\ns_lshr_b32 {PO1}, {C}, 1\ns_lshl_b32 {PO1}, {PO1}, 7\ns_add_u32 {PO1}, {PO1}, %d\ns_add_u32 {PO2}, {T}, 34\ns_cmp_lt_u32 {KB1}, 16\ns_cselect_b32 {PO2}, {PO2}, 8\ns_lshl_b32 {PO2}, {PO2}, 7\ns_add_u32 {PO2}, {PO2}, %d" % (WS_C, WS_C))
            for m_ in sA_mfma(SET[2], TWA, SET[3] + 8): sec.mfma(m_)
            end = sec.n()
            blk = F("s_cmp_lt_u32 {KB1}, 16\ns_cbranch_scc1 L_x1_KN")
            o = "x1"; s1 = Sec2(); XS = SET[3] + 8; XFr = SET[3] + 24; XD = FBUF(gi)
            s1.pre = t_setup(TP, ENV['KB1'], opt=o) + sA_back(SET[2], XD, TMP + 24, XD + 8, 8704, ENV['a'], ENV['b'], opt=o) + t_frag(0, XFr, XS, TP, opt=o)
            for kk in range(9):
                b0 = s1.n()
                for hh in range(2):
                    for mi in range(4):
                        acc = V(SET[2] + 16 * hh + 4 * mi, 4)
                        s1.mfma(mf(acc, XF(mi, kk + 9 * hh), V(XFr + 4 * (kk & 1), 4), acc if kk else None, o))
                if kk < 8: s1.stream(t_frag(kk + 1, XFr + 4 * ((kk + 1) & 1), XS, TP, opt=o), b0, b0 + 6)
                if kk == 2: s1.at(b0 + 7, L("s_barrier", need_lgkm=("sa",), opt=o))
                if kk == 3: s1.at(b0 + 7, sA_read(XD, XD + 8, 8704, opt=o))
                if kk == 8: s1.stream(sA_store(XD, ENV['g'], opt=o) + sA_dest(ENV['g'], ENV['KB1'], None, opt=o), b0, b0 + 7)
            blk += s1.flatten() + sA_front(SET[2], SET[3] + 8, TP, opt=o) + sA_mfma(SET[2], TWA, SET[3] + 8, opt=o) + L("L_x1_KN:")
            sec.block(end - 1, blk)
            sec.block(end + 4, sA_ny(SET[2], TMP + 10))
            sec.stream(sA_back(SET[2], TMP, TMP + 24, TMP + 8, 0, ENV['u'], ENV['w']), end + 5, end + 56, "sAb")
            sec.stream(sA_read(TMP, TMP + 8, 0), end + 12 * (gar - gi - 1) + 1, end + 12 * (gar - gi - 1) + 6, "sAr", "sAb")
            sec.stream(sA_store(TMP, ENV['g']), end + 12 * (gar - gi - 1) + 14, end + 12 * (gar - gi - 1) + 26, "sAs", "sAr")
            for i in sw: Ins.seq += 1; i.id = Ins.seq
            sec.stream(sw, end + 5, end + 130, "sw", "sAb")
            sec.stream(poll(VP, "0", "DBG"), end, end + 12, "p0")
            sec.stream(silu_a(SET[0]), end, end + 200, "a0")
            sec.stream(silu_b(SET[0], SET[1], 0), end + 145, end + 286, "b0", "a0")
            sec.stream(h_out(SET[1], 0), end + 145, end + 428, "o0", "b0", HSP)
        if g['kind'] == 'P1' and g['sl'] == 5 and g['ap'] == 1:
            ps = g['ps']
            if ps == 'G1': sec.stream(silu_a(SET[3]), end + 2, end + 287 + 12 * (gc1 - PS['U2']) - 40, "a1", "a0")
            if ps == 'U1':
                sec.stream(silu_b(SET[3], SET[2], 1), end + 2, end + 143 + 12 * (gc1 - PS['U2']), "b1", "a1")
                sec.stream(h_out(SET[2], 1), end + 2, end + 284, "o1", "b1,o0", HSP)
            if ps == 'G2': sec.stream(silu_a(SET[0]), end + 2, end + 380, "a2", "a1")
            if ps == 'U2':
                sec.stream(silu_b(SET[0], SET[1], 2), end + 2, end + 286, "b2", "a2")
                sec.stream(h_out(SET[1], 2), end + 2, end + 260, "o2", "b2", 20)
            if ps == 'G3': sec.stream(silu_a(SET[3]), end + 2, end + 144 + OPT.get('a3e', 100), "a3", "a2")
            if ps == 'U3':
                sec.stream(silu_b(SET[2], SET[3], 3), end + 2, end + 144 + 22, "b3", "a3")
                sec.stream(h_out(SET[3], 3), end + 2, end + 144 + 100, "o3", "b3,o2", 16)
        if g['kind'] == 'PH' and g['gi'] == 5:
            if g['half'] == 0: sec.stream(silu_a(SET[0], 16), end + 2, end + 72 + 46, "aH", "a3")
            else: sec.stream(silu_bH(SET[0]), end + 2, end + 62, "bH", "aH")
        if gi == PS['G1'] + OPT.get('pfd0', 8) and gi >= PS['G1']: sec.stream(pfw(0), base, base + 10, "pf0")
        if gi == PS['G1'] + OPT.get('pfd1', 20): sec.stream(pfw(1), base, base + 10, "pf1")
        if gi == PS['G1'] + OPT.get('pfd2', 32) and gi >= PS['G1']: sec.stream(pfw(2), base, base + 10, "pf2")
        if gi == PS['G3'] + OPT.get('pfh', 1):
            q = F("""s_lshr_b32 {f}, {T}, 1
s_lshl_b32 {g}, {W}, 3
s_add_u32 {f}, {f}, {g}
v_lshl_add_u32 v{r}, v0, 5, {f}
v_mul_u32_u24 v{r}, 9216, v{r}
s_or_b32 {f}, {C}, 1
s_mul_i32 {f}, {f}, 576
s_and_b32 {g}, {C}, 1
s_cmp_eq_u32 {g}, 0
s_cselect_b32 s8, s12, s16
s_cselect_b32 s9, s13, s17
s_mov_b32 s10, %d
s_mov_b32 s11, 0x20000
buffer_load_dword v{r}, v{r}, s[8:11], {f} offen""" % (576 * 9216), r=TMP + 16)
            sec.stream(q, base, base + 30, "pfh")
        if gi in CPF:
            r = CPF[gi]
            q = vaddr64(F("""s_lshr_b32 {c}, s2, 3
s_lshl_b32 {c}, {c}, 2
s_add_u32 {c}, {c}, {W}
s_lshl_b32 {c}, {c}, %d
v_lshl_add_u32 v{r}, v0, %d, {c}
s_getpc_b64 s[84:85]
v_mov_b32 v{r1}, s85
v_add_co_u32 v{r}, vcc, s84, v{r}
v_addc_co_u32 v{r1}, vcc, 0, v{r1}, vcc""" % ((8, 2) if OPT.get('cw', 1) else (7, 1)), r=r, r1=r + 1))
            q.append(Ins("global_load_ubyte v%d, v[%d:%d], off" % (r, r, r + 1), 'vmem', V(r, 2), V(r, 1)))
            sec.stream(q, base + 2, base + 22, "cp%d" % gi)
        if gi == ga1: sec.stream(signal(ENV['PO1']) + signal(ENV['PO2']), base + 1, base + 11, "ar1")
        for r_, (gam, wo) in enumerate((('GA', 'WA'), ('GB', 'WB'))):
            if gi == PS['U1'] + OPT.get('w%dat' % r_, 1 + 12 * r_): sec.stream(s2_wloads(ENV[gam], ENV[wo], S2W[r_], TMP + 16, TMP + 17), base, base + 22, "w%d" % r_)
        if gi == gc1 - 6:
            q = F(kbx('PO1', 'GA', 0) + kbx('PO2', 'GB', 0)) + poll(VP, ENV['PO1']) + poll(VP + 1, ENV['PO2'])
            q += F("s_cmp_gt_u32 {GA}, 288\ns_cselect_b32 {PE1}, 0, 32\ns_cmp_gt_u32 {GB}, 288\ns_cselect_b32 {PE2}, 0, 32\n" + W0)
            sec.stream(q[:20], base - 50, base - 4, "p1")
            sec.stream(q[20:], base - 50, base + 60, "p1b", "p1")
        if gi == gc1:
            sec.block(base, F("s_cmp_lg_u32 {GB}, 288\ns_cbranch_scc1 L_s2n_KN") + s2_wspecial(S2W[1], TMP + 16, TMP + 17, "s2n") + L("L_s2n_KN:"))
            q = s2_gaddr(S2T + 6, S2T + 7, False) + s2_dloads(ENV['GA'], ENV['SA'], S2D[0], S2T + 6, S2T + 7) + s2_dloads(ENV['GB'], ENV['SB'], S2D[1], S2T + 6, S2T + 7)
            sec.stream(q, base + 1, base + 30, "dl", "b1")
            sec.stream(dft32(M2, TMP + 16, False) + s2_addr(S2T, S2L, False), base + 2, base + 12 * (gS2 - gi) + 10, "s2pre", "dl")
        if gi == gS2:
            R0 = (ENV['SA'], S2D[0], lambda i: Z2 + i, S2W[0], ENV['a'], ENV['b'])
            R1 = (ENV['SB'], S2D[1], lambda i: fb + i if i < 12 else TMP + 8 + i, S2W[1], ENV['c'], ENV['d'])
            blk = (pfw(2) if OPT.get('pfd2', 32) < 0 else []) + F("s_cmp_gt_u32 {GA}, 288\ns_cbranch_scc1 L_s2e_KN\ns_cmp_gt_u32 {GB}, 288\ns_cbranch_scc0 L_s2d_KN")
            blk += s2_compute([R0], M2, S2T, TMP + 16, S2L, "ex1") + L("s_branch L_s2e_KN", opt="ex1") + L("L_s2d_KN:")
            blk += s2_compute([R0, R1], M2, S2T, TMP + 16, S2L, "ex2") + L("L_s2e_KN:")
            sec.block(end - 1, blk)
            q = F(kbx('PO1', 'GA', 9) + kbx('PO2', 'GB', 9))
            q += F("""s_lshl_b32 {u}, {FH}, 3
s_lshl_b32 {w}, {RG}, 12
s_add_u32 {u}, {u}, {w}
v_add_u32 v{HH}, {u}, v{L16B}
s_lshl_b32 {u}, {T}, 1
s_and_b32 {w}, {C}, 1
s_add_u32 {u}, {u}, {w}
s_lshl_b32 {u}, {u}, 19
s_lshl_b32 {w}, {W}, 15
s_add_u32 {u}, {u}, {w}
s_lshr_b32 {w}, {C}, 1
s_lshl_b32 {w}, {w}, 10
s_add_u32 {u}, {u}, {w}
v_add_u32 v{VST_}, {u}, v{L16}
s_lshl_b32 {XA}, {T}, 7
s_lshl_b32 {SB}, {C}, 2
s_add_u32 {XA}, {XA}, {SB}
s_add_u32 {XA}, {XA}, %d
s_xor_b32 {SB}, {XA}, 4
s_cmp_eq_u32 {W}, 0
s_cselect_b32 {SM_}, 1, 0""" % CL(50), **e)
            sec.stream(q[:18], end, end + 12 * (ga2 - gi - 1) - 2, "a2s")
            sec.stream(q[18:], end + 90, end + 200, "a2t", "a2s")
        if gi == ga2: sec.stream(signal(ENV['PO1']) + signal(ENV['PO2']) + (signal(ENV['XA']) if QP else []), base + 1, base + 14, "ar2")
        if gi == gq0 - 6 and QP:
            q = poll(VP + 2, ENV['SB']) + F("""s_xor_b32 {u}, {C}, 1
s_sub_u32 {w}, {u}, {C}
s_mul_i32 {w}, {w}, 73728
s_add_u32 {w}, {w}, {HB}
s_lshl_b32 {u}, {W}, 12
s_add_u32 {w}, {w}, {u}
v_and_b32 v{r}, 31, v0
v_lshlrev_b32 v{r}, 7, v{r}
v_add_u32 v{r}, {w}, v{r}
s_movk_i32 {u}, 0x4000""", r=TMP + 17)
            sec.stream(q, base, base + 60, "pq00")
        if gi == gq0 and QP:
            sec.stream(F("buffer_load_dword v%d, v%d, {WS}, 0 offen sc1" % (TMP + 18, TMP + 17)), base + 1, base + 10, "qpa")
            sec.stream(F("buffer_load_dword v%d, v%d, {WS}, {u} offen sc1\ns_lshl_b32 {SM_}, {SM_}, 1" % (TMP + 19, TMP + 17)), base + 1 + OPT.get('qpd', 48), base + 12 + OPT.get('qpd', 48), "qpb")
        if gi == gc2 - 8:
            q = F("s_lshr_b32 {PO1}, {C}, 1\ns_lshl_b32 {PO1}, {PO1}, 7\ns_add_u32 {PO1}, {PO1}, %d\ns_mov_b32 {PO2}, %d" % (CL(9), CL(17))) + poll(VP, ENV['PO1']) + poll(VP + 1, ENV['PO2'])
            q += F("s_cmp_lt_u32 {C}, 2\ns_cselect_b32 {PE1}, 33, 32\ns_cmp_lt_u32 {KB3}, 16\ns_cselect_b32 {PE2}, 0, 32\n" + W0)
            sec.stream(q, base - 6, base + 30, "p2")
        if gi in (gh1, gh2): sec.stream(signal(ENV['XA']), base + 1, base + 10, "sh%d" % gi)
        if gi == gc2:
            q = stepD_loads(ENV['C'], RAW)
            for i in q:
                i.text = i.text.replace(ENV['a'], ENV['f']).replace(ENV['b'], ENV['g'])
                fx = lambda lst: [('s', 38) if r == ('s', 84) else ('s', 39) if r == ('s', 85) else r for r in lst]
                i.rd = fx(i.rd); i.wr = fx(i.wr)
            sec.stream(q, base + 1, base + 40, "sdl")
        if gi == HU + 3:
            q = poll(VP + 2, ENV['SB'])
            q += F("""s_xor_b32 {u}, {C}, 1
s_sub_u32 {w}, {u}, {C}
s_mul_i32 {w}, {w}, 73728
s_add_u32 {w}, {w}, {HB}
v_add_u32 v%d, {w}, v%d
s_and_b32 {w}, {u}, 1
s_mul_i32 {u}, {u}, %d
s_mul_i32 s%d, {w}, %d
s_add_u32 s%d, s%d, {u}
s_xor_b32 {w}, {w}, 1
s_mul_i32 {w}, {w}, %d
s_add_u32 s%d, {u}, {w}""" % (VQ, V_L16, 288 * 1152, S_KK, 32 * 1152, S_KK, S_KK, 256 * 1152, S_KK + 8))
            for ks in range(1, 8): q += L("s_add_u32 s%d, s%d, %d" % (S_KK + ks, S_KK, ks * 32 * 1152))
            sec.stream(q[:6], base - 6, base + 20, "pq0")
            sec.stream(q[6:], base + 6, base + 130, "pq1", "pq0")
        if gi == P2 + 1:
            blk = F("s_lshl_b32 {a}, {S2}, 12\ns_add_u32 {a}, {a}, %d\ns_cmp_lg_u32 {C}, 0\ns_cbranch_scc1 L_nyl_KN" % WS_B) + stepD_nyloads(RA2, SDT, "nyl") + L("L_nyl_KN:")
            blk += F("s_cmp_lt_u32 {KB3}, 16\ns_cbranch_scc1 L_d2l_KN") + stepD_loads(ENV['KB3'], RA2, opt="d2l") + L("L_d2l_KN:")
            sec.block(base, blk)
        if gi == P2 + 3:
            q = F("s_lshl_b32 {d}, {W}, 11\nv_add_u32 v%d, {d}, v%d" % (V_HH, V_L16B))
            q += L("ds_read_b128 v[%d:%d], v%d\nds_read_b128 v[%d:%d], v%d offset:1024" % (V_SIL, V_SIL + 3, V_HH, V_SIL + 4, V_SIL + 7, V_HH), lds_r=(65536, 73728), tag="lds")
            sec.stream(q, base + 1, base + 16, "hh1", "bH")
            q = F("buffer_store_dwordx4 v[%d:%d], v%d, {WS}, {HB} offen sc1\nbuffer_store_dwordx4 v[%d:%d], v%d, {WS}, {HB} offen offset:1024 sc1"
                  % (V_SIL, V_SIL + 3, V_HH, V_SIL + 4, V_SIL + 7, V_HH), tag="gh2")
            sec.stream(q, base + 20, base + 34, "hh2", "hh1")
            sec.stream(twiddle_D(SET[0], SET[0] + 16), base, base + 24 * (gSD - gi) + 68, "twD", "pq1,bH")
        if gi == gSD:
            SD = stepD_parts(RAW, RA2, NB, SET[0], SET[0] + 16, SDT, 18 * 4096, ENV['C'], ENV['SA'])
            sec.stream(SD[0], base + 1, base + 54, "sd0")
            sec.stream(SD[1], base + 60, base + 69, "sd1", "sd0")
        if gi == gSD + 2:
            for m_ in SD[2]: sec.mfma(m_)
            sec.block(sec.n() - 1, SD[3])
            for m_ in SD[4]: sec.mfma(m_)
            sec.stream(SD[5], sec.n() + 2, sec.n() + 44, "sd5")
        if gi == gSD + 4:
            blk = F("s_cmp_lt_u32 {KB3}, 16\ns_cbranch_scc1 L_d2_KN")
            for part in stepD_parts(RA2, None, NB, SET[0], SET[0] + 16, SDT, 18 * 4096, ENV['KB3'], ENV['SA'], opt="d2"): blk += part
            sec.block(end - 1, blk + L("L_d2_KN:"))
        if gi == gq2 - 2: sec.stream(F("s_lshr_b32 {SM_}, {SM_}, 1\ns_mul_i32 {SM_}, {SM_}, 3" if QP else "s_lshl_b32 {SM_}, {SM_}, 1") + poll(VP + 2, ENV['SB']), base + 1, base + 8, "pq2")
        if gi == gf8 - 1:
            q = F("""s_lshl_b32 {PO1}, {T}, 7
s_add_u32 {PO1}, {PO1}, %d
s_cmp_eq_u32 {W}, 0
s_cselect_b32 {PE1}, 16, 0
s_lshr_b32 {PE2}, {C}, 2
s_lshl_b32 {u}, {T}, 2
s_add_u32 {u}, {u}, {PE2}
s_mul_i32 {u}, {u}, 36864
s_add_u32 {u}, {u}, %d
v_add_u32 v%d, {u}, v%d""" % (CL(18), WS_Y, VY, V_L16))
            sec.stream(q, base - 20, base + 22, "f8s")
        if gi == gf8: sec.stream(signal(ENV['PO1']), base + 1, base + 12, "f8")
        if gi == gY - 3: sec.stream(poll(VP, ENV['PO1']), base + 1, base + 12, "p8")
        if gi == gY + OPT.get('l8d', 0):
            q = F("""s_and_b32 {u}, {C}, 3
s_lshl_b32 {u}, {u}, 2
s_add_u32 {u}, {u}, {PE2}
s_lshl_b32 {w}, {T}, 4
s_add_u32 {u}, {u}, {w}
s_lshl_b32 {u}, {u}, 2
s_add_u32 {u}, {u}, {W}
s_lshl_b32 {u}, {u}, 12
s_add_u32 {u}, {u}, %d""" % WS_8)
            for i in range(4): q += F("buffer_load_dwordx4 v[%d:%d], v%d, {WS}, {u} offen offset:%d sc1" % (TMP + 4 * i, TMP + 4 * i + 3, V_L16, i * 1024))
            q += F("""s_lshl_b32 {u}, {T}, 1
s_and_b32 {w}, {C}, 1
s_add_u32 {u}, {u}, {w}
s_lshl_b32 {PO1}, {u}, 7
s_add_u32 {PO1}, {PO1}, %d
s_lshr_b32 {PE1}, {PE1}, 1
s_lshl_b32 {XA}, {u}, 2
s_add_u32 {XA}, {XA}, {RG}
s_lshl_b32 {XA}, {XA}, 2
s_and_b32 {w}, {C}, 2
s_add_u32 {XA}, {XA}, {w}
s_add_u32 {XA}, {XA}, {FH}
s_lshl_b32 {XA}, {XA}, 2
s_add_u32 {XA}, {XA}, {PE2}
s_lshl_b32 {XA}, {XA}, 13
s_add_u32 {XA}, {XA}, %d""" % (CL(66), WS_P))
            sec.stream(q[:9], base - 20, base + 4, "l8a", "f8s")
            sec.stream(q[9:13], base + 1, base + 40, "l8b", "l8a", OPT.get('lsp', 6))
            sec.stream(q[13:], base, base + 120, "l8", "l8b")
        if gi == gfa: sec.stream(signal(ENV['PO1']), base + 1, base + 8, "fa")
        if gi == NG - 1 and OPT.get('pae'): sec.stream(poll(VP, ENV['PO1']), base + 4, base + 7, "pA", "fa")
        if g['kind'] == 'P2' and g['gi'] == 2 and g['cb'] in (0, 5, 6, 7, 8):
            cb = g['cb']
            for ip in range(4 if cb < 8 else 3):
                osp = OPT.get('osp', 12)
                st0 = base + 6 * ip + 8 if cb in (0, 8) else base + 8 + osp * ip + (4 * osp - 24 if cb == 6 and IL else 0)
                sec.stream(out_ops(cb, [ip]), st0, min(end - 1, st0 + 6) if cb == 8 else st0 + OPT.get('ow', 12), "out%d%s" % (cb, "" if ip == 3 else "abc"[ip]), ("out%d%s" % (cb, "abc"[ip - 1])) if ip else "out%d" % (cb - 1))
            if cb == 5: sec.stream(TL.pre1(), end, end + 130, "tp1", "out5,tp0")
            if cb == 6: sec.stream(TL.pre2(), end, end + 130, "tp2", "out6,tp1,l8,gl")
        if gi == P2 + 9: TL = Tail(out_ops, 0, VP); sec.stream(TL.pre0(), base, base + 180, "tp0")
        if gi == gY: sec.stream(TL.gl(), base + 1, base + 60, "gl", "tp0")
    p += sec.flatten(verbose=True)
    p += ([] if OPT.get('diag') == 8 else stamp(20)) + TL.main()
    p += stamp_out(2)
    emit(a, name, p, 512, accum=256)

class Tail:
    def __init__(self, out_ops, YB, VP):
        self.out_ops, self.YB, self.VP = out_ops, YB, VP
        self.ST = [SET[2], SET[2] + 16, SET[1]]
        self.FR = [SET[1] + 16, SET[1] + 24, FB + 24]
        self.CO, self.KD, self.VG4, self.G8, self.VS, self.SEL = [7, 8, 9], [10, 11, 12], 13, 14, 15, 24
        self.GV, self.VO, self.V8, self.VO8 = TMP + 16, 30, 31, 19
    def seeds(self, pc, n):
        cur = self.ST[pc] + 8 * n; g4 = self.G8 if pc == 2 else self.VG4; q = []
        for j in range(4): q += L("v_add_f32 v%d, %s, v%d" % (cur + j, f2h(16.0 * n + j), g4))
        for j in range(4): q += F("v_fma_f32 v%d, v%d, v%d, {Q}\nv_mul_f32 v%d, v%d, v%d" % (cur + 4 + j, cur + j, self.KD[pc], cur + j, cur + j, self.KD[pc]))
        for j in range(8): q += L("v_cos_f32 v%d, v%d" % (cur + j, cur + j))
        return q
    def frag(self, pc, n):
        cur = self.ST[pc] + 8 * (n & 1); prv = self.ST[pc] + 8 * ((n + 1) & 1); f = self.FR[pc] + 4 * (n & 1); q = []
        if n >= 2:
            for j in range(8): q += L("v_fma_f32 v%d, v%d, v%d, -v%d" % (cur + j, self.CO[pc], prv + j, cur + j))
        if n == 0:
            q += L("v_cmp_eq_f32 vcc, 0, v%d" % (self.G8 if pc == 2 else self.VG4))
            q += L("v_cvt_pk_bf16_f32 v%d, v%d, v%d\nv_cvt_pk_bf16_f32 v%d, v%d, v%d" % (f + 1, cur + 2, cur + 3, f + 3, cur + 6, cur + 7))
            q += L("v_cndmask_b32 v%d, v%d, 0.5, vcc\nv_cndmask_b32 v%d, v%d, v%d, vcc" % (f, cur, f + 2, cur + 4, self.VS))
            q += L("v_cvt_pk_bf16_f32 v%d, v%d, v%d\nv_cvt_pk_bf16_f32 v%d, v%d, v%d" % (f, f, cur + 1, f + 2, f + 2, cur + 5))
        else:
            for jp in range(4): q += L("v_cvt_pk_bf16_f32 v%d, v%d, v%d" % (f + jp, cur + 2 * jp, cur + 2 * jp + 1))
        return q
    def pre0(self):
        KD, CO, SEL, GV = self.KD, self.CO, self.SEL, self.GV
        p = F("""s_and_b32 {d}, {C}, 3
s_lshl_b32 {d}, {d}, 4
s_and_b32 {e}, {C}, 1
s_lshl_b32 {e}, {e}, 2
s_add_u32 {e}, {e}, {RG}
s_lshl_b32 {e}, {e}, 2
s_and_b32 {a}, {C}, 2
s_add_u32 {e}, {e}, {a}
s_add_u32 {e}, {e}, {FH}
s_lshl_b32 {e}, {e}, 4
v_add_u32 v{ka}, {e}, v1
v_add_u32 v{kb_}, 0x80, v{ka}
v_add_u32 v{kc}, {d}, v1
v_add_u32 v{kc}, 0x200, v{kc}
v_and_b32 v{vs}, 1, v1
v_lshlrev_b32 v{vs}, 31, v{vs}
v_or_b32 v{vs}, 0.5, v{vs}
v_lshlrev_b32 v{g4}, 2, v2
v_cvt_f32_u32 v{g4}, v{g4}
s_mul_i32 {a}, {W}, 80
v_cvt_f32_u32 v{g8}, {a}
v_add_f32 v{g8}, v{g8}, v{g4}""", ka=KD[0], kb_=KD[1], kc=KD[2], vs=self.VS, g4=self.VG4, g8=self.G8)
        for i in range(3): p += L("v_cvt_f32_u32 v%d, v%d\nv_mul_f32 v%d, %s, v%d" % (KD[i], KD[i], CO[i], f2h(1.0 / 36), KD[i]))
        for i in range(3): p += L("v_cos_f32 v%d, v%d" % (CO[i], CO[i]))
        for i in range(3): p += L("v_mul_f32 v%d, %s, v%d\nv_add_f32 v%d, v%d, v%d" % (KD[i], f2h(1.0 / 576), KD[i], CO[i], CO[i], CO[i]))
        p += L("""v_lshrrev_b32 v{a}, 2, v1
v_cmp_eq_u32 vcc, v{a}, v2
v_and_b32 v{b}, 1, v1
v_lshlrev_b32 v{b}, 4, v{b}
v_mov_b32 v{a}, 0x3f80
v_lshlrev_b32 v{b}, v{b}, v{a}
v_cndmask_b32 v{b}, 0, v{b}, vcc
v_and_b32 v{a}, 2, v1
v_cmp_eq_u32 vcc, 0, v{a}
v_mov_b32 v{s0}, 0
v_mov_b32 v{s1}, 0
v_cndmask_b32 v{s2}, 0, v{b}, vcc
v_cndmask_b32 v{s3}, v{b}, 0, vcc
v_mov_b32 v{s4}, 0
v_mov_b32 v{s5}, 0""".format(a=SEL + 4, b=SEL + 5, s0=SEL, s1=SEL + 1, s2=SEL + 2, s3=SEL + 3, s4=SEL + 4, s5=SEL + 5))
        return p
    def gl(self):
        GV = self.GV
        return F("""s_lshl_b32 {a}, {T}, 9
s_lshl_b32 {b}, {PE2}, 7
s_add_u32 {a}, {a}, {b}
s_add_u32 {a}, {a}, %d
s_add_u32 {b}, {a}, %d
v_lshlrev_b32 v{t}, 2, v1
buffer_load_dword v{g}, v{t}, {WS}, {a} offen sc1
buffer_load_dword v{g1}, v{t}, {WS}, {a} offen offset:64 sc1
buffer_load_dword v{g2}, v{t}, {WS}, {b} offen sc1
buffer_load_dword v{g3}, v{t}, {WS}, {b} offen offset:64 sc1""" % (WS_G, WS_O - WS_G), t=self.VO, g=GV, g1=GV + 1, g2=GV + 2, g3=GV + 3)
    def pre1(self):
        return self.seeds(0, 0) + self.seeds(0, 1) + self.seeds(1, 0) + self.seeds(1, 1)
    def pre2(self):
        p = self.seeds(2, 0) + self.seeds(2, 1)
        for pc in range(3): p += self.frag(pc, 0) + self.frag(pc, 1)
        sc_ = f2h(2.0 / (2048 * 576))
        p += F("""v_mul_f32 v{g}, %s, v{g}
v_mul_f32 v{g1}, %s, v{g1}
v_and_b32 v{o}, 31, v0
v_mul_u32_u24 v{o}, %d, v{o}
v_lshrrev_b32 v{t}, 5, v0
v_lshl_add_u32 v{o}, v{t}, 4, v{o}
s_and_b32 {a}, {PE2}, 1
s_lshl_b32 {a}, {a}, 10
s_lshr_b32 {b}, {PE2}, 1
s_add_u32 {a}, {a}, {b}
s_lshl_b32 {b}, {T}, 1
s_add_u32 {a}, {a}, {b}
s_mul_i32 {a}, {a}, 1152
s_lshl_b32 {d}, {d}, 1
s_add_u32 {d}, {d}, {a}
s_lshl_b32 {e}, {e}, 1
s_add_u32 {e}, {e}, {a}
s_mul_i32 {a}, {W}, 10240
v_add_u32 v{t}, {a}, v{l}
s_cmp_eq_u32 {W}, 0
s_cselect_b32 {a}, 0, 0x80000000
v_or_b32 v{o8}, {a}, v{o}
s_add_u32 {SA}, {XA}, 262144
s_add_u32 {SB}, {XA}, 266240""" % (sc_, sc_, 32 * 1152), g=self.GV, g1=self.GV + 1, o=self.VO, t=self.V8, l=V_L16, o8=self.VO8)
        return p
    def main(self):
        YB, VP, FR, SEL, GV, V8 = self.YB, self.VP, self.FR, self.SEL, self.GV, self.V8
        SENT = OPT.get('sent')
        YF = 224; AC = [240, 248, SET[3]]
        SMQ = lambda pc, h: SET[3] + 8 + 8 * pc + 4 * h
        PAr = lambda i: A(4 * i, 4)
        PBr = lambda i: V(FB + 4 * i, 4) if i < 6 else V(TMP + 4 * (i - 6), 4)
        P8r = lambda i: V(TMP + 4 * i, 4)
        yr = (YB, YB + 36864)
        def yrd(n, va, o):
            r = YF + 8 * (n & 1)
            return L("ds_read_b128 v[%d:%d], v%d offset:%d\nds_read_b128 v[%d:%d], v%d offset:%d" % (r, r + 3, va, o, r + 4, r + 7, va, o + 1024), lds_r=yr)
        def pload(regs, i):
            q = F("buffer_load_dwordx4 %s, v%d, {WS}, {XA} offen offset:%d sc1" % (rs(regs), V_L16, (i % 4) * 1024))
            return q + (F("s_add_u32 {XA}, {XA}, 4096") if i % 4 == 3 else [])
        def summ(pc, regs, first):
            return [mf(V(SMQ(pc, h), 4), V(SEL + 2 - 2 * h, 4), regs, None if first else V(SMQ(pc, h), 4)) for h in range(2)]
        def combine(pc): return [I("v_mul_f32 v%d, v%d, v%d" % (AC[pc] + r, AC[pc] + r, GV + (r >> 2))) for r in range(8)]
        def combine2(pc): return [I("v_fma_f32 v%d, v%d, v%d, v%d" % (AC[pc] + r, SMQ(pc, r >> 2) + (r & 3), GV + 2 + (r >> 2), AC[pc] + r)) for r in range(8)]
        def store(b, so, off, va):
            q = []
            for d in range(4): q += L("v_cvt_pk_bf16_f32 v%d, v%d, v%d" % (b + d, b + 2 * d, b + 2 * d + 1))
            q += L("v_permlane16_swap_b32 v%d, v%d\nv_permlane16_swap_b32 v%d, v%d" % (b, b + 2, b + 1, b + 3))
            return q + F("buffer_store_dwordx4 v[%d:%d], v%d, {OUT}, %s offen offset:%d%s" % (b, b + 3, va, so, off, OPT.get('ofl', "")))
        p = ts(3) + yrd(0, V8, YB) + yrd(1, V8, YB + 2048) + self.out_ops(8, [3]) + ([] if OPT.get('pae') else poll(VP, ENV['PO1'])) + ts(4)
        for i in range(4): p += summ(2, P8r(i), i == 0)
        for n in range(5):
            o = "q8" if n >= 3 else False
            if n == 3: p += F("s_cmp_eq_u32 {W}, 3\ns_cbranch_scc1 L_q8_KN")
            q = []
            if n == 3: q += yrd(3, V8, YB + 3 * 2048) + yrd(4, V8, YB + 4 * 2048) + self.frag(2, 3)
            for h in range(2):
                acc = V(AC[2] + 4 * h, 4)
                q.append(mf(acc, V(FR[2] + 4 * (n & 1), 4), V(YF + 8 * (n & 1) + 4 * h, 4), acc if n else None))
            if n == 0: q += yrd(2, V8, YB + 2 * 2048) + self.frag(2, 2)
            if n == 3: q += self.frag(2, 4)
            for i in q: i.opt = o
            p += q
        p += L("L_q8_KN:") + yrd(0, V_L16, YB)
        XB = 9 * 4096
        p += F("s_lshl_b32 {a}, {W}, 11\nv_add_u32 v%d, {a}, v%d" % (V8, V_L16)) + combine(2) + combine2(2)
        p += L("ds_write_b128 v%d, v[%d:%d] offset:%d\nds_write_b128 v%d, v[%d:%d] offset:%d" % (V8, AC[2], AC[2] + 3, XB, V8, AC[2] + 4, AC[2] + 7, XB + 1024), lds_w=(XB, XB + 8192), tag="r8")
        bl = lambda i: "buffer_load_dwordx4 %s, v%d, {WS}, {%s} offen offset:%d sc1" % (rs(PBr(i)), V_L16, "SA" if i < 4 else "SB", (i % 4) * 1024)
        sec = Sec2()
        ksB, kcB = OPT.get('ksb', 3), OPT.get('kcb', 10)
        R8 = SET[0]
        for kb in range(18):
            b0 = sec.n()
            for pc in range(2):
                for h in range(2):
                    acc = V(AC[pc] + 4 * h, 4)
                    sec.mfma(mf(acc, V(FR[pc] + 4 * (kb & 1), 4), V(YF + 8 * (kb & 1) + 4 * h, 4), acc if kb else None))
            if kb >= 14:
                for i in (2 * (kb - 14), 2 * (kb - 14) + 1):
                    for m_ in summ(0, PAr(i), i == 0): sec.mfma(m_)
            e0 = sec.n() - 1
            if kb < 17: sec.at(b0, yrd(kb + 1, V_L16, YB + (kb + 1) * 2048))
            if 1 <= kb < 17: sec.stream(self.frag(0, kb + 1) + self.frag(1, kb + 1), b0, e0)
            blk = []
            if kb == ksB:
                blk += ts(5) + check("A", VP, ENV['PO1'], ENV['PE1'], sidx=24) + ts(6) + L("s_barrier", need_vm=() if SENT else ("pB",), need_lgkm=("r8",))
                if not SENT: blk += F("s_add_u32 {PO2}, {PO1}, 4") + signal(ENV['PO2']) + poll(VP + 1, ENV['PO2'])
                blk += ts(7)
                if not OPT.get('ai', 1):
                    for i in range(8): blk += pload(PAr(i), i)
                for i in range(8): blk += L("ds_read_b128 v[%d:%d], v%d offset:%d" % (R8 + 4 * i, R8 + 4 * i + 3, V_L16, XB + i * 1024), lds_r=(XB, XB + 8192))
                blk += ts(8)
            if OPT.get('ai', 1) and ksB < kb <= ksB + 4: blk += pload(PAr(2 * (kb - ksB - 1)), 2 * (kb - ksB - 1)) + pload(PAr(2 * (kb - ksB) - 1), 2 * (kb - ksB) - 1)
            if kb == kcB:
                if not SENT: blk += check("B", VP + 1, ENV['PO2'], ENV['PE1'], sidx=25) + L("s_barrier")
                for i in range(8): blk += F(bl(i))
                blk += ts(9)
            if blk: sec.block(e0, blk)
        p += sec.flatten() + ts(12)
        for r in range(8): p += L("v_add_f32 v%d, v%d, v%d\nv_add_f32 v%d, v%d, v%d\nv_add_f32 v%d, v%d, v%d" % (R8 + r, R8 + r, R8 + 8 + r, R8 + 16 + r, R8 + 16 + r, R8 + 24 + r, R8 + r, R8 + r, R8 + 16 + r))
        p += store(R8, ENV['d'], 1024, self.VO8)
        p += combine(0) + combine2(0) + store(AC[0], ENV['e'], 0, self.VO) + combine(1)
        MX = 4
        def mx(i, acc):
            r = PBr(i)[0][1]
            if acc: return "v_max3_u32 v%d, v%d, v%d, v%d\nv_max3_u32 v%d, v%d, v%d, v%d" % (MX, MX, r, r + 1, MX, MX, r + 2, r + 3)
            return "v_max3_u32 v%d, v%d, v%d, v%d\nv_max_u32 v%d, v%d, v%d" % (MX, r, r + 1, r + 2, MX, MX, r + 3)
        for i in range(8 if SENT else 0): p += L(mx(i, i > 0))
        if SENT: p += L("v_cmp_eq_u32 vcc, -1, v%d\ns_nop 4\ns_cbranch_vccnz L_rt_KN\nL_rb_KN:" % MX)
        o = "L_rt_KN:\ns_mov_b32 s5, 0\nL_rl_KN:\ns_mov_b32 s4, 0\n"
        for i in range(8):
            o += mx(i, False) + "\nv_cmp_eq_u32 vcc, -1, v%d\ns_nop 4\ns_cbranch_vccz L_rs%d_KN\n" % (MX, i) + bl(i).format(**ENV) + "\ns_mov_b32 s4, 1\nL_rs%d_KN:\n" % i
        o += "s_add_u32 s5, s5, 1\n"
        if OPT['stamps']: o += "v_writelane_b32 v%d, s5, 25\n" % VST[0]
        o += "s_cmp_eq_u32 s4, 0\ns_cbranch_scc1 L_rb_KN\ns_waitcnt vmcnt(0)\ns_cmp_lt_u32 s5, 0x40000\ns_cbranch_scc1 L_rl_KN\ns_branch L_rb_KN"
        if SENT: SPINS.append(o)
        p += stamp(21)
        for i in range(8): p += summ(1, PBr(i), i == 0)
        p += combine2(1) + store(AC[1], ENV['e'], 256, self.VO)
        return p

if __name__ == "__main__":
    for x in sys.argv[2:]:
        k, v = x.split("=")
        OPT[k] = int(v) if v.lstrip("-").isdigit() else v.replace("_", " ")
    a = Asm()
    kernel_main(a)
    a.launches = ['; @launch grid=(256,1,1) block=(256,1,1) lds=163840']
    a(".fill 8448, 4, 0xbf800000")
    open(sys.argv[1], "w").write(a.text())
```

```python
import sys, math, struct
from asmlib import *
from fw import *

WS_A = 0x000000
WS_B = 0x300000
WS_Y = 0x3000000
WS_G = 0x600000
WS_O = 0x602000
WS_P = 0x800000
WS_C = 0x620000
WS_8 = 0x1c00000
WS_H = 0x3400000
CL = lambda n: WS_C + 128 * n
WS_N = 0x610000
KB_STRIDE = 131072
MF = "v_mfma_f32_16x16x32_bf16"
def f2h(x): return "0x%08x" % struct.unpack("<I", struct.pack("<f", x))[0]
def mf(d, a, b, c, opt=False):
    return I("%s %s, %s, %s, %s" % (MF, rs(d), rs(a), rs(b), rs(c) if c else "0"), opt=opt)
def F(text, opt=False, tag=None, **env):
    e = dict(ENV); e.update(env)
    kw = {}
    for k in ("lds_r", "lds_w", "priv", "need_vm", "need_lgkm"):
        if k in env: kw[k] = env[k]
    return L(text.format(**e), opt=opt, tag=tag, **kw)

ENV = dict(X="s[8:11]", WG="s[12:15]", WU="s[16:19]", WD="s[20:23]", WS="s[24:27]", DBG="s[28:31]", WP="s[32:35]", WA="s36", WB="s37", f="s38", g="s39", GW="s[40:43]", OUT="s[40:43]", PO1="s75", PO2="s76", PE1="s77", PE2="s78", XA="s83", HB="s46", HT="s47", S8="s44", SM_="s45",
           T="s79", C="s80", W="s81", W1K="s82", KB="s83", RG="s87", FH="s88", S2="s89", a="s84", b="s85", c="s86", d="s92", e="s93",
           Q="s94", KB3="s95", NL="s96", KB1="s97", GA="s98", GB="s99", SA="s100", SB="s101", ST="s90", SP="s91", u="s6", w="s7", ROT="s3")
S_KK, S_DK, S_XQ = 48, 66, 75
OPT = dict(stamps=False, BI=2, sc1p=True)
VST = [223]
def stamp(idx):
    if not OPT['stamps']: return []
    return L("s_memrealtime s[4:5]\ns_waitcnt lgkmcnt(0)\nv_writelane_b32 v%d, s4, %d\ns_memtime s[4:5]\ns_waitcnt lgkmcnt(0)\nv_writelane_b32 v%d, s4, %d" % (VST[0], idx, VST[0], 32 + idx))
def ts(idx):
    return stamp(idx) if OPT.get('diag') == 8 else []
def tp(idx):
    return stamp(idx) if OPT.get('diag') == 10 else []
def diag(n, idx):
    if OPT.get('diag', 0) != n: return []
    return L("s_waitcnt vmcnt(0)") + stamp(idx)
def stamp_out(kidx):
    if not OPT['stamps']: return []
    p = L("s_waitcnt vmcnt(0)") + stamp(31)
    p += F("s_cmp_lg_u32 {W}, 0\ns_cbranch_scc1 L_end_KN\ns_lshl_b32 s4, s2, 8\ns_add_u32 s4, s4, 0x%x\nv_lshlrev_b32 v0, 2, v0" % (STAMP_OFF + kidx * 262144))
    p += F("buffer_store_dword v%d, v0, {WS}, s4 offen" % VST[0])
    if OPT.get('lb') is not None:
        p += F("""s_cmp_lg_u32 s2, %d
s_cbranch_scc1 L_end_KN
v_readlane_b32 {a}, v%d, %d
v_readlane_b32 {b}, v%d, %d
s_nop 4
s_sub_u32 {a}, {b}, {a}
s_mul_i32 {a}, {a}, 10
s_min_u32 {a}, {a}, 200000
s_memrealtime s[4:5]
s_waitcnt lgkmcnt(0)
s_mov_b32 {b}, s4
L_leak_KN:
s_memrealtime s[4:5]
s_waitcnt lgkmcnt(0)
s_sub_u32 {c}, s4, {b}
s_cmp_lt_u32 {c}, {a}
s_cbranch_scc1 L_leak_KN""" % (OPT.get('lw', 5), VST[0], OPT['la'], VST[0], OPT['lb']))
    return p
def srd(d, b, n):
    return L("s_mov_b32 s%d, s%d\ns_and_b32 s%d, s%d, 0xffff\ns_mov_b32 s%d, 0x%x\ns_mov_b32 s%d, 0x20000" % (d, b, d + 1, b + 1, d + 2, n, d + 3))
def emit(a, name, prog, vg, accum=None):
    p = finish(prog)
    dr = OPT.get('drop', "")
    if 'd' in dr: p = [i for i in p if i.kind != 'dma']
    if 'b' in dr: p = [i for i in p if i.kind != 'bar']
    if 't' in dr: p = [i for i in p if not (i.kind == 'ds' and i.tag and i.tag.startswith('f'))]
    if 'v' in dr: p = [i for i in p if not getattr(i, 'silu', False)]
    if 'q' in dr: p = [i for i in p if not (i.kind == 'dma' and i.tag in ('q0', 'q1', 'q2'))]
    if 'y' in dr: p = [i for i in p if not (i.kind == 'dma' and i.tag == 'y')]
    if 'h' in dr: p = [i for i in p if i.tag not in ('gh0', 'gh1', 'gh2')]
    if '8' in dr: p = [i for i in p if i.tag != 'p8']
    if 'w' in dr: p = [i for i in p if not (i.kind == 'vmem' and 'dwordx4' in i.text and 's[32:35]' in i.text)]
    if 'P' in dr: p = [i for i in p if i.tag not in ('pA', 'pB')]
    if 'B' in dr: p = [i for i in p if i.tag not in ('pub1', 'pub2')]
    if 'L' in dr: p = [i for i in p if not (i.kind == 'vmem' and i.op == 'buffer_load_dwordx4' and 'sc1' in i.text)]
    if 'x' in dr:
        for i in p:
            if i.tag in ('gh1', 'gh2', 'pA', 'pB', 'p8', 'pub1', 'pub2'): i.text = i.text.replace(' sc1', '')
    if '1' in dr: p = [i for i in p if i.opt != 'x1']
    if '2' in dr: p = [i for i in p if i.opt != 'ex2' and not (i.kind == 'vmem' and 's37' in i.text)]
    if '3' in dr: p = [i for i in p if i.opt not in ('ex1',) or i.kind == 'br']
    if 's' in dr: p = [i for i in p if not (i.kind == 'vmem' and 's90' in i.text)]
    OOL = ("x1" if OPT.get("x1o", 1) else "", "zf", "nw2", "ny", "s2n", "nyl", "nyd", "d2l", "d2", "ex1")
    q = []; k = 0
    while k < len(p):
        i = p[k]
        if i.kind == 'br' and k + 1 < len(p) and p[k + 1].opt in OOL and not i.opt and OPT.get('ool', 1):
            o = p[k + 1].opt; j = k + 1
            while p[j].opt == o: j += 1
            op, lab = i.text.split()
            assert p[j].text == lab + ":", (p[j].text, lab)
            inv = {"s_cbranch_scc1": "s_cbranch_scc0", "s_cbranch_scc0": "s_cbranch_scc1"}[op]
            i.text = "%s L_o%s_KN" % (inv, o); q.append(i)
            body = [x.text for x in p[k + 1:j]]
            if not body[-1].startswith("s_branch"): body.append("s_branch " + lab)
            SPINS.append("L_o%s_KN:\n" % o + "\n".join(body))
            k = j
        else: q.append(i); k += 1
    p = q
    a.begin(name)
    for i in p: a(i.text.replace("KN", name))
    a("L_end_%s:\ns_endpgm" % name)
    for t in SPINS: a(t.replace("KN", name))
    a.end(name, vg, accum=accum)
    print(name, stats(p), file=sys.stderr)

def PL(): return (16384, 1024, 147456) if OPT.get('lay', 0) else (262144, 16384, 1024)
def WSP(): return OPT.get('wsp', WS_P)
def flat(t):
    o = []
    for x in t: o += x if isinstance(x, list) else [x]
    return o
def XF(mi, kk):
    n = kk * 4 + mi
    return A(4 * n, 4) if n < 64 else V(224 + 4 * (n - 64), 4)
def HF(mi, ks):
    n = ks * 8 + mi
    return XF(n & 3, n >> 2)
SET = [32, 64, 96, 128]
FB = 160
TMP = 196
V_DX, V_DW, V_DH, V_DD, V_RW, V_RX = 3, 4, 5, 6, 7, 13
V_HW, V_HH, V_L16, V_L16B, V_ST, V_SIL = 19, 20, 21, 22, 23, 24

def dma(vo, srdn, soff, pb, ioff, tag):
    assert pb - ioff >= 0
    m = F("s_add_u32 m0, {W1K}, %d" % (pb - ioff))[0]
    d = F("buffer_load_dwordx4 v%d, {%s}, s%d offen%s%s lds" % (vo, srdn, soff, (" offset:%d" % ioff) if ioff else "", OPT.get('xfl', "") if srdn == 'X' else OPT.get('wfl', "")), tag=tag, lds_w=(pb, pb + 4096))[0]
    return m, d

def gate_code(XQ, GQ, R):
    e = dict(va=R[2], vo=R[3], t0=R[4], t1=R[5], t2=R[6], t3=R[7])
    p = F("""v_lshrrev_b32 v{vo}, 5, v0
s_lshl_b32 {a}, {C}, 3
s_lshl_b32 {b}, {W}, 1
s_add_u32 {a}, {a}, {b}
v_add_u32 v{vo}, {a}, v{vo}
v_and_b32 v{t0}, 63, v{vo}
v_lshlrev_b32 v{t0}, 5, v{t0}
v_lshrrev_b32 v{t1}, 6, v{vo}
v_add_u32 v{t0}, v{t0}, v{t1}
s_lshl_b32 {a}, {T}, 1
v_add_u32 v{t0}, {a}, v{t0}
v_mul_u32_u24 v{t0}, 1152, v{t0}
v_and_b32 v{t1}, 31, v0
v_mul_u32_u24 v{t1}, 36, v{t1}
v_add_u32 v{t0}, v{t0}, v{t1}""", **e)
    for b_, s_, ad, sr in ((XQ, R[0], "t0", "X"), (GQ, R[1], "t1", "GW")):
        p += F("buffer_load_dwordx4 v[%d:%d], v{%s}, {%s}, 0 offen\nbuffer_load_dwordx4 v[%d:%d], v{%s}, {%s}, 0 offen offset:16\nbuffer_load_dword v%d, v{%s}, {%s}, 0 offen offset:32"
               % (b_, b_ + 3, ad, sr, b_ + 4, b_ + 7, ad, sr, s_, ad, sr), **e)
    def rest():
        q = []
        for n in range(9):
            q += F("""v_lshlrev_b32 v{t0}, 16, v{x}
v_lshlrev_b32 v{t1}, 16, v{y}
v_and_b32 v{t2}, 0xffff0000, v{x}
v_and_b32 v{t3}, 0xffff0000, v{y}
v_mul_f32 v{t0}, v{t0}, v{t1}
v_mul_f32 v{t2}, v{t2}, v{t3}
v_cvt_pk_bf16_f32 v{t0}, v{t0}, v{t2}
v_lshlrev_b32 v{t1}, 16, v{t0}
v_and_b32 v{t0}, 0xffff0000, v{t0}""", x=XQ + n if n < 8 else R[0], y=GQ + n if n < 8 else R[1], **e)
            q += F("v_add_f32 v{va}, v{t1}, v{t0}" if n == 0 else "v_add_f32 v{va}, v{va}, v{t1}\nv_add_f32 v{va}, v{va}, v{t0}", **e)
        for sh in (8, 4, 2, 1):
            q += F("v_add_f32_dpp v{va}, v{va}, v{va} row_ror:%d row_mask:0xf bank_mask:0xf" % sh, **e)
        q += F("""v_mov_b32 v{t0}, v{va}
v_and_b32 v{t1}, 31, v0
v_cmp_eq_u32 vcc, 0, v{t1}
v_permlane16_swap_b32 v{va}, v{t0}
v_add_f32 v{va}, v{va}, v{t0}
v_cvt_pk_bf16_f32 v{va}, v{va}, v{va}
v_lshlrev_b32 v{va}, 16, v{va}
v_mul_f32 v{va}, {NL}, v{va}
v_exp_f32 v{va}, v{va}
v_lshlrev_b32 v{vo}, 2, v{vo}
v_add_f32 v{va}, 1.0, v{va}
v_rcp_f32 v{va}, v{va}
v_bfrev_b32 v{t1}, 1
v_cvt_pk_bf16_f32 v{va}, v{va}, v{va}
v_lshlrev_b32 v{va}, 16, v{va}
v_sub_f32 v{t0}, 1.0, v{va}
v_cvt_pk_bf16_f32 v{t0}, v{t0}, v{t0}
v_lshlrev_b32 v{t0}, 16, v{t0}
v_cndmask_b32 v{vo}, v{t1}, v{vo}, vcc
s_lshl_b32 {u}, {T}, 9
s_add_u32 {u}, {u}, %d
s_add_u32 {w}, {u}, %d""" % (WS_G, WS_O - WS_G), **e)
        q += F("buffer_store_dword v{va}, v{vo}, {WS}, {u} offen sc1\nbuffer_store_dword v{t0}, v{vo}, {WS}, {w} offen sc1", tag="pub1", **e)
        return q
    return p, rest

def t_setup(P, kb, opt=False):
    e = dict(vk=P, vphi=P + 1, vco=P + 2, vd=P + 3, vmu=P + 4, vsg=P + 5, t=P + 6, kb=kb)
    return F("""v_lshrrev_b32 v{vk}, 2, v1
v_lshlrev_b32 v{vk}, 1, v{vk}
v_and_b32 v{t}, 1, v1
v_add_u32 v{vk}, v{vk}, v{t}
v_lshlrev_b32 v{vsg}, 31, v{t}
v_or_b32 v{vsg}, 1.0, v{vsg}
s_lshl_b32 {a}, {kb}, 4
s_lshl_b32 {b}, {FH}, 3
s_add_u32 {a}, {a}, {b}
v_add_u32 v{vk}, {a}, v{vk}
v_bfe_u32 v{vphi}, v1, 1, 1
v_cvt_f32_u32 v{vphi}, v{vphi}
v_mul_f32 v{vphi}, 0x3e800000, v{vphi}
v_add_u32 v{t}, {a}, v1
v_cmp_eq_u32 vcc, 2, v{t}
v_mov_b32 v{t}, 0x120
v_lshlrev_b32 v{vd}, 3, v2
v_cndmask_b32 v{vk}, v{vk}, v{t}, vcc
v_cndmask_b32 v{vphi}, v{vphi}, 0, vcc
v_mul_u32_u24 v{t}, {ROT}, v{vk}
v_mul_u32_u24 v{vco}, 7282, v{t}
v_lshrrev_b32 v{vco}, 16, v{vco}
v_mul_u32_u24 v{vco}, 9, v{vco}
v_sub_u32 v{t}, v{t}, v{vco}
v_cvt_f32_u32 v{t}, v{t}
v_fmac_f32 v{vphi}, 0x3de38e39, v{t}
v_cvt_f32_u32 v{vk}, v{vk}
v_mul_f32 v{vco}, %s, v{vk}
v_mul_f32 v{vk}, %s, v{vk}
v_cos_f32 v{vco}, v{vco}
v_add_u32 v{t}, {a}, v2
v_cmp_eq_u32 vcc, 0, v{t}
v_cvt_f32_u32 v{vd}, v{vd}
v_add_f32 v{vco}, v{vco}, v{vco}
v_cndmask_b32 v{vmu}, 1.0, 0, vcc""" % (f2h(1.0 / 18), f2h(1.0 / 576)), opt=opt, **e)

def t_frag(kk, f, ST, P, opt=False):
    cur = ST + 8 * (kk & 1); prv = ST + 8 * ((kk + 1) & 1); ops = []
    if kk < 2:
        for j in range(8): ops += L("v_add_f32 v%d, %s, v%d" % (cur + j, f2h(32.0 * kk + j), P + 3), opt=opt)
        for j in range(8): ops += L("v_fma_f32 v%d, v%d, v%d, v%d" % (cur + j, cur + j, P, P + 1), opt=opt)
        for j in range(8): ops += L("v_cos_f32 v%d, v%d" % (cur + j, cur + j), opt=opt)
    else:
        for j in range(8): ops += L("v_fma_f32 v%d, v%d, v%d, -v%d" % (cur + j, P + 2, prv + j, cur + j), opt=opt)
    for jp in range(4): ops += L("v_cvt_pk_bf16_f32 v%d, v%d, v%d" % (f + jp, cur + 2 * jp, cur + 2 * jp + 1), opt=opt)
    return ops

def twiddle_A(TW, T, tiles):
    vs, vj, p0, p1, c0, c1 = T, T + 4, T + 5, T + 6, T + 7, T + 8
    p = F("v_lshlrev_b32 v{vs}, 7, v2\nv_add_u32 v{vs}, {S2}, v{vs}\nv_cvt_f32_u32 v{vs}, v{vs}", vs=vs)
    for j in range(1, 4): p += L("v_add_f32 v%d, %s, v%d" % (vs + j, f2h(32.0 * j), vs))
    for a in tiles:
        p += L("v_lshl_add_u32 v%d, v1, 2, %d\nv_cvt_f32_u32 v%d, v%d\nv_mul_f32 v%d, %s, v%d" % (vj, a, vj, vj, vj, f2h(1.0 / 2048), vj))
        b = TW(a)
        for jp in range(2):
            p += L("""v_mul_f32 v%d, v%d, v%d
v_mul_f32 v%d, v%d, v%d
v_cos_f32 v%d, v%d
v_cos_f32 v%d, v%d
v_sin_f32 v%d, v%d
v_sin_f32 v%d, v%d
v_cvt_pk_bf16_f32 v%d, v%d, v%d
v_cvt_pk_bf16_f32 v%d, v%d, v%d""" % (p0, vs + 2 * jp, vj, p1, vs + 2 * jp + 1, vj, c0, p0, c1, p1, p0, p0, p1, p1, b + jp, c0, c1, b + 4 + jp, p0, p1))
            C = "v%d, v%d" % (c0, c1); nC = "-v%d, -v%d" % (c0, c1); Sn = "v%d, v%d" % (p0, p1); nS = "-v%d, -v%d" % (p0, p1)
            cc, ss = [(C, Sn), (nS, C), (nC, nS), (Sn, nC)][a]
            p += L("v_cvt_pk_bf16_f32 v%d, %s\nv_cvt_pk_bf16_f32 v%d, %s" % (b + 2 + jp, cc, b + 6 + jp, ss))
    return p

def sA_front(ACC, DF, P, opt=False):
    k = dict(opt=opt); p = []
    for i in range(16): p += L("v_fma_f32 v%d, v%d, v%d, v%d" % (ACC + i, P + 5, ACC + 16 + i, ACC + i), **k)
    for i in range(8):
        p += L("v_add_f32 v%d, v%d, v%d\nv_sub_f32 v%d, v%d, v%d" % (ACC + 16 + i, ACC + i, ACC + 8 + i, ACC + 24 + i, ACC + i, ACC + 8 + i), **k)
    for i in range(8): p += L("v_cvt_pk_bf16_f32 v%d, v%d, v%d" % (DF + i, ACC + 16 + 2 * i, ACC + 17 + 2 * i), **k)
    return p
def sA_mfma(ACC, TW, DF, opt=False):
    return [mf(V(ACC + 16 * cs + 4 * a, 4), V(DF + 4 * (a & 1), 4), V(TW(a) + 4 * cs, 4), None, opt) for a in range(4) for cs in range(2)]
def sA_dest(so, kb, t, opt=False):
    return F("s_lshl_b32 {so}, {kb}, 4\ns_add_u32 {so}, {so}, {T}\ns_lshl_b32 {so}, {so}, 2\ns_add_u32 {so}, {so}, {W}\ns_lshl_b32 {so}, {so}, 11", so=so, kb=kb, opt=opt)
def sA_back(ACC, D, mu, va, stg, s0, s1, opt=False):
    k = dict(opt=opt)
    p = F("""s_mul_i32 {x}, {RG}, 4352
s_lshl_b32 {y}, {FH}, 4
s_add_u32 {x}, {x}, {y}
s_add_u32 {x}, {x}, %d
v_mul_u32_u24 v{va}, 272, v1
v_lshl_add_u32 v{va}, v2, 2, v{va}
v_add_u32 v{va}, {x}, v{va}""" % stg, va=va, x=s0, y=s1, **k)
    T1, T2 = ACC, ACC + 16; rng = (stg, stg + 8704)
    for a in range(4):
        x, y = T1 + 4 * a, T2 + 4 * a
        p += L("""v_fma_f32 v%d, v%d, v%d, v%d
v_add_f32 v%d, v%d, v%d
v_fma_f32 v%d, v%d, v%d, -v%d
v_sub_f32 v%d, v%d, v%d
v_cvt_pk_bf16_f32 v%d, v%d, v%d
v_cvt_pk_bf16_f32 v%d, v%d, v%d""" % (x, mu, y + 2, x, x + 1, x + 1, y + 3, y, mu, x + 2, y, y + 1, x + 3, y + 1, D + 2 * a, x, x + 1, D + 2 * a + 1, y, y + 1), **k)
        p += L("ds_write2_b32 v%d, v%d, v%d offset0:%d offset1:%d" % (va, D + 2 * a, D + 2 * a + 1, 16 * a, 16 * a + 8), lds_w=rng, tag="sa", **k)
    p += F("s_mul_i32 {x}, {W}, 2176\ns_add_u32 {x}, {x}, %d\nv_lshl_add_u32 v{va}, v2, 4, v%d\nv_add_u32 v{va}, {x}, v{va}" % (stg, V_L16), va=va, x=s0, **k)
    return p
def sA_read(D, va, stg, opt=False):
    return L("ds_read_b128 v[%d:%d], v%d\nds_read_b128 v[%d:%d], v%d offset:1088" % (D, D + 3, va, D + 4, D + 7, va), lds_r=(stg, stg + 8704), tag="lds", opt=opt)
def sA_store(D, so, opt=False):
    return F("buffer_store_dwordx4 v[%d:%d], v%d, {WS}, %s offen sc1\nbuffer_store_dwordx4 v[%d:%d], v%d, {WS}, %s offen offset:1024 sc1"
             % (D, D + 3, V_L16, so, D + 4, D + 7, V_L16, so), tag="pub1", opt=opt)
def sA_ny(ACC, R):
    T1, T2 = ACC, ACC + 16; o = "ny"; va, t0 = R + 4, R + 5
    p = F("s_or_b32 {c}, {C}, {FH}\ns_cmp_lg_u32 {c}, 0\ns_cbranch_scc1 L_ny_KN")
    q = F("""s_lshl_b32 {a}, {S2}, 12
s_add_u32 {a}, {a}, %d
v_bfe_u32 v{va}, v1, 2, 1
v_lshlrev_b32 v{va}, 6, v{va}
v_lshrrev_b32 v{t0}, 3, v1
v_lshl_add_u32 v{va}, v{t0}, 17, v{va}
v_and_b32 v{t0}, 3, v1
v_lshl_add_u32 v{va}, v{t0}, 2, v{va}
v_lshl_add_u32 v{va}, v2, 28, v{va}""" % (18 * KB_STRIDE), opt=o, va=va, t0=t0)
    for par in range(2):
        q += L("v_cvt_pk_bf16_f32 v%d, v%d, v%d\nv_cvt_pk_bf16_f32 v%d, -v%d, -v%d"
               % (R + par, T1 + 4 * par + 2, T1 + 4 * par + 10, R + 2 + par, T2 + 4 * par + 2, T2 + 4 * par + 10), opt=o)
    for par in range(2):
        q += F("buffer_store_dword v%d, v{va}, {WS}, {a} offen offset:%d sc1\nbuffer_store_dword v%d, v{va}, {WS}, {a} offen offset:%d sc1"
               % (R + par, par * 16, R + 2 + par, 32 + par * 16), opt=o, tag="pub1", va=va)
    return p + q + L("L_ny_KN:")

def dft32(M, T, opt):
    vi, vg, p0, p1, c0, c1 = T, T + 1, T + 2, T + 3, T + 4, T + 5
    k = dict(opt=opt)
    p = L("v_cvt_f32_u32 v%d, v1\nv_lshlrev_b32 v%d, 2, v2\nv_mul_f32 v%d, %s, v%d\nv_cvt_f32_u32 v%d, v%d" % (vi, vg, vi, f2h(1.0 / 32), vi, vg, vg), **k)
    for jp in range(2):
        p += L("""v_add_f32 v%d, %s, v%d
v_add_f32 v%d, %s, v%d
v_mul_f32 v%d, v%d, v%d
v_mul_f32 v%d, v%d, v%d
v_cos_f32 v%d, v%d
v_cos_f32 v%d, v%d
v_sin_f32 v%d, v%d
v_sin_f32 v%d, v%d
v_cvt_pk_bf16_f32 v%d, v%d, v%d
v_cvt_pk_bf16_f32 v%d, v%d, v%d""" % (p0, f2h(2.0 * jp), vg, p1, f2h(2.0 * jp + 1), vg, p0, p0, vi, p1, p1, vi, c0, p0, c1, p1, p0, p0, p1, p1, M + jp, c0, c1, M + 4 + jp, p0, p1), **k)
    p += L("v_and_b32 v%d, 1, v1\nv_mul_u32_u24 v%d, 0x8000, v%d\nv_lshl_add_u32 v%d, v%d, 16, v%d" % (vi, vi, vi, vi, vi, vi), **k)
    for b in (M, M + 4):
        for jp in range(2): p += L("v_xor_b32 v%d, v%d, v%d" % (b + 2 + jp, vi, b + jp), **k)
    for d in range(4):
        p += L("v_xor_b32 v%d, 0x80008000, v%d\nv_xor_b32 v%d, 0x80000000, v%d\nv_xor_b32 v%d, 0x80000000, v%d\nv_xor_b32 v%d, 0x8000, v%d"
               % (M + 8 + d, M + 4 + d, M + 12 + d, M + d, M + 16 + d, M + 4 + d, M + 20 + d, M + 4 + d), **k)
    return p

def nyw_load(r, o):
    return F("""s_lshl_b32 {a}, {T}, 7
s_lshl_b32 {b}, {FH}, 6
s_add_u32 {a}, {a}, {b}
v_add_u32 v{r}, {a}, v0
v_mul_u32_u24 v{r}, 578, v{r}
buffer_load_ushort v{r}, v{r}, {WP}, 0 offen offset:576""", opt=o, r=r)
def nyw_store(r, j, t, o):
    return F("""s_lshl_b32 {a}, {RG}, 12
s_lshl_b32 {b}, {T}, 8
s_add_u32 {a}, {a}, {b}
s_lshl_b32 {b}, {FH}, 7
s_add_u32 {a}, {a}, {b}
s_add_u32 {a}, {a}, %d
v_and_b32 v{j}, 14, v0
v_and_b32 v{t}, 1, v0
v_lshl_add_u32 v{j}, v{t}, 4, v{j}
v_and_b32 v{t}, 1, v2
v_lshl_add_u32 v{j}, v{t}, 6, v{j}
v_lshrrev_b32 v{t}, 1, v2
v_lshl_add_u32 v{j}, v{t}, 5, v{j}""" % WS_N, opt=o, j=j, t=t) + F("buffer_store_short v%d, v%d, {WS}, {a} offen sc1" % (r, j), opt=o, tag="pub1")

def s2_scalars(gam, wo, keep):
    return F("""s_and_b32 {b}, {gam}, 31
s_lshl_b32 {keep}, {b}, 7
s_lshl_b32 {b}, {b}, 1
s_add_u32 {b}, {b}, {FH}
s_mul_i32 {b}, {b}, 578
s_lshr_b32 {a}, {gam}, 5
s_lshl_b32 {wo}, {a}, 6
s_add_u32 {wo}, {wo}, {b}
s_lshl_b32 {a}, {a}, 1
s_add_u32 {a}, {a}, {RG}
s_lshl_b32 {a}, {a}, 17
s_add_u32 {keep}, {keep}, {a}
s_lshl_b32 {b}, {FH}, 16
s_add_u32 {keep}, {keep}, {b}""", gam=gam, wo=wo, keep=keep)
def s2_wloads(gam, wo, Wr, vw, t0):
    return F("""v_lshrrev_b32 v{vw}, 2, v0
v_mul_u32_u24 v{vw}, 36992, v{vw}
v_and_b32 v{t0}, 3, v0
v_lshl_add_u32 v{vw}, v{t0}, 4, v{vw}
s_cmp_lt_u32 {gam}, 288
s_cselect_b32 {f}, 0, 0x80000000
v_or_b32 v{vw}, {f}, v{vw}
s_add_u32 {f}, {wo}, %d
buffer_load_dwordx4 v[%d:%d], v{vw}, {WP}, {wo} offen
buffer_load_dwordx4 v[%d:%d], v{vw}, {WP}, {f} offen""" % (16 * 36992, Wr, Wr + 3, Wr + 4, Wr + 7), gam=gam, wo=wo, vw=vw, t0=t0)
def s2_wspecial(Wr, vw, t0, opt):
    return F("""s_lshl_b32 {a}, {RG}, 12
s_lshl_b32 {b}, {FH}, 6
s_add_u32 {a}, {a}, {b}
s_add_u32 {a}, {a}, %d
v_lshrrev_b32 v{vw}, 2, v0
v_lshlrev_b32 v{vw}, 7, v{vw}
v_and_b32 v{t0}, 3, v0
v_lshl_add_u32 v{vw}, v{t0}, 4, v{vw}
buffer_load_dwordx4 v[%d:%d], v{vw}, {WS}, {a} offen sc1
buffer_load_dwordx4 v[%d:%d], v{vw}, {WS}, {a} offen offset:2048 sc1""" % (WS_N, Wr, Wr + 3, Wr + 4, Wr + 7), opt=opt, vw=vw, t0=t0)
def s2_gaddr(va, t0, opt):
    return F("v_lshrrev_b32 v{va}, 3, v0\nv_lshlrev_b32 v{va}, 12, v{va}\nv_and_b32 v{t0}, 7, v0\nv_lshl_add_u32 v{va}, v{t0}, 4, v{va}", opt=opt, va=va, t0=t0)
def s2_dloads(gam, keep, D, va, vm):
    return F("""s_cmp_le_u32 {gam}, 288
s_cselect_b32 {f}, 0, 0x80000000
v_or_b32 v{vm}, {f}, v{va}
s_add_u32 {f}, {keep}, 0x8000
buffer_load_dwordx4 v[%d:%d], v{vm}, {WS}, {keep} offen sc1
buffer_load_dwordx4 v[%d:%d], v{vm}, {WS}, {f} offen sc1""" % (D, D + 3, D + 4, D + 7), keep=keep, gam=gam, va=va, vm=vm)

def s2_addr(T, lds_base, opt):
    e = dict(vl=T, vr=T + 1, vw=T + 2, vo=T + 3, vp=T + 4, vb=T + 5, t0=T + 7, L16=V_L16)
    return F("""s_lshl_b32 {u}, {W}, 11
s_add_u32 {u}, {u}, %d
v_add_u32 v{vl}, {u}, v{L16}
v_lshrrev_b32 v{t0}, 3, v0
v_lshlrev_b32 v{t0}, 4, v{t0}
v_xor_b32 v{vb}, v{vl}, v{t0}
v_lshrrev_b32 v{vr}, 2, v1
v_lshl_add_u32 v{vr}, v2, 2, v{vr}
v_lshlrev_b32 v{vw}, 6, v{vr}
v_lshlrev_b32 v{vr}, 7, v{vr}
v_and_b32 v{t0}, 3, v1
v_lshl_add_u32 v{vr}, v{t0}, 3, v{vr}
v_lshl_add_u32 v{vw}, v{t0}, 3, v{vw}
s_lshl_b32 {u}, {RG}, 12
s_lshl_b32 {w}, {FH}, 6
s_add_u32 {u}, {u}, {w}
s_add_u32 {u}, {u}, %d
v_add_u32 v{vr}, {u}, v{vr}
v_lshlrev_b32 v{vo}, 7, v1
v_lshl_add_u32 v{vo}, v2, 3, v{vo}
v_add_u32 v{vo}, {u}, v{vo}
v_and_b32 v{t0}, 7, v1
v_lshlrev_b32 v{t0}, 4, v{t0}
v_xor_b32 v{vo}, v{vo}, v{t0}
v_xor_b32 v{vp}, 32, v{vo}
s_lshl_b32 {u}, {FH}, 11
s_lshl_b32 {w}, {RG}, 5
s_add_u32 {u}, {u}, {w}
s_add_u32 {u}, {u}, %d
v_add_u32 v{vw}, {u}, v{vw}""" % (lds_base, lds_base, lds_base + 8192), opt=opt, **e)

def s2_compute(R, M, T, X, lds_base, opt):
    k = dict(opt=opt)
    e = dict(vl=T, vr=T + 1, vw=T + 2, vb=T + 5, va=T + 6, t0=X, t1=X + 1, t2=X + 2, t3=X + 3)
    C = lambda a: V(M + (a * 3) * 4, 4)
    Sn = lambda a: V(M + (a * 3 + 1) * 4, 4)
    N = lambda a: V(M + (a * 3 + 2) * 4, 4)
    q = []
    for n, (keep, D, Z, Wr, sa, sb) in enumerate(R):
        o = n * 16384; rng = (lds_base + o, lds_base + o + 16384)
        q += F("ds_write_b128 v{vl}, v[%d:%d] offset:%d\nds_write_b128 v{vl}, v[%d:%d] offset:%d\nds_write_b128 v{vl}, v[%d:%d] offset:%d\nds_write_b128 v{vl}, v[%d:%d] offset:%d"
               % (D, D + 3, o, D + 4, D + 7, o + 1024, Wr, Wr + 3, o + 8192, Wr + 4, Wr + 7, o + 9216), lds_w=rng, tag="s2", **k, **e)
        q += L("s_add_u32 %s, %s, %d\ns_add_u32 %s, %s, 0x8000" % (sa, keep, WS_B, sb, sa), **k)
    q += L("s_barrier", need_lgkm=("s2",), **k)
    for n, (keep, D, Z, Wr, sa, sb) in enumerate(R):
        o = n * 16384; rng = (lds_base + o, lds_base + o + 16384)
        for pl in range(2):
            q += F("ds_read_b64_tr_b16 v[%d:%d], v{vr} offset:%d\nds_read_b64_tr_b16 v[%d:%d], v{vr} offset:%d"
                   % (D + 4 * pl, D + 4 * pl + 1, o + pl * 32, D + 4 * pl + 2, D + 4 * pl + 3, o + pl * 32 + 2048), lds_r=rng, tag="s2r", **k, **e)
    for n, (keep, D, Z, Wr, sa, sb) in enumerate(R):
        o = n * 16384; rng = (lds_base + o, lds_base + o + 16384)
        for pl in range(2):
            q += F("ds_read_b64_tr_b16 v[%d:%d], v{vw} offset:%d\nds_read_b64_tr_b16 v[%d:%d], v{vw} offset:%d"
                   % (Wr + 4 * pl, Wr + 4 * pl + 1, o + pl * 4096, Wr + 4 * pl + 2, Wr + 4 * pl + 3, o + pl * 4096 + 1024), lds_r=rng, tag="s2r", **k, **e)
    def fwd(D, Z):
        Ar, Ai = V(D, 4), V(D + 4, 4); m = []
        for aa in range(2):
            zr, zi = V(Z(4 * aa), 4), V(Z(8 + 4 * aa), 4)
            m += [mf(zr, C(aa), Ar, None, opt), mf(zr, Sn(aa), Ai, zr, opt), mf(zi, C(aa), Ai, None, opt), mf(zi, N(aa), Ar, zi, opt)]
        return m
    def mul(D, Z, Wr):
        v = []
        for i in range(0, 8, 2):
            v += F("""v_lshlrev_b32 v{t3}, 16, v{wi}
v_and_b32 v{wi}, 0xffff0000, v{wi}
v_lshlrev_b32 v{t2}, 16, v{wr}
v_and_b32 v{wr}, 0xffff0000, v{wr}
v_mul_f32 v{t0}, v{zi}, v{t3}
v_mul_f32 v{t1}, v{yi}, v{wi}
v_mul_f32 v{t3}, v{zr}, v{t3}
v_mul_f32 v{wi}, v{yr}, v{wi}
v_fma_f32 v{zr}, v{zr}, v{t2}, -v{t0}
v_fma_f32 v{yr}, v{yr}, v{wr}, -v{t1}
v_fma_f32 v{zi}, v{zi}, v{t2}, v{t3}
v_fma_f32 v{yi}, v{yi}, v{wr}, v{wi}""", zr=Z(i), zi=Z(8 + i), yr=Z(i + 1), yi=Z(9 + i), wr=Wr + i // 2, wi=Wr + 4 + i // 2, **k, **e)
        for pl in range(2):
            for d in range(4): v += L("v_cvt_pk_bf16_f32 v%d, v%d, v%d" % (D + 4 * pl + d, Z(8 * pl + 2 * d), Z(8 * pl + 2 * d + 1)), **k)
        return v
    def inv(D, Z):
        Ar, Ai = V(D, 4), V(D + 4, 4); m = []
        for aa in range(2):
            br = V(Z(4 * aa), 4); m += [mf(br, Ar, C(aa), None, opt), mf(br, Ai, N(aa), br, opt)]
        for aa in range(2):
            bi = V(Z(8 + 4 * aa), 4); m += [mf(bi, Ai, C(aa), None, opt), mf(bi, Ar, Sn(aa), bi, opt)]
        return m
    def outw(n, Z, Wr):
        v = []; o = n * 16384
        for pl in range(2):
            for aa in range(2):
                r = Wr + 4 * pl + 2 * aa; z = Z(8 * pl + 4 * aa)
                v += L("v_cvt_pk_bf16_f32 v%d, v%d, v%d\nv_cvt_pk_bf16_f32 v%d, v%d, v%d" % (r, z, z + 1, r + 1, z + 2, z + 3), **k)
                v += L("ds_write_b64 v%d, v[%d:%d] offset:%d" % (T + 3 + pl, r, r + 1, o + aa * 2048), lds_w=(lds_base + o, lds_base + o + 8192), tag="s2", **k)
        return v
    def mix(ms, vs, lead=0):
        out = list(vs[:lead]); vs = vs[lead:]
        for n, m in enumerate(ms):
            out.append(m); out += vs[2 * n:2 * n + 2]
        return out + vs[2 * len(ms):]
    bar2 = lambda: L("s_barrier", need_lgkm=("s2r",), **k)
    if len(R) == 1:
        keep, D, Z, Wr, sa, sb = R[0]
        f = fwd(D, Z); b2 = bar2(); v = mul(D, Z, Wr)
        q += f[:4] + mix(f[4:], []) + b2 + v + inv(D, Z) + outw(0, Z, Wr)
    else:
        (k0, D0, Z0, W0, _, _), (k1, D1, Z1, W1, _, _) = R
        f0 = fwd(D0, Z0); f1 = fwd(D1, Z1); b2 = bar2(); v0 = mul(D0, Z0, W0); i0 = inv(D0, Z0); v1 = mul(D1, Z1, W1); o0 = outw(0, Z0, W0); i1 = inv(D1, Z1); o1 = outw(1, Z1, W1)
        q += f0 + b2 + mix(f1, v0) + mix(i0, v1, 2) + mix(i1, o0, 2) + o1
    q += L("s_barrier", need_lgkm=("s2",), **k)
    for n, (keep, D, Z, Wr, sa, sb) in enumerate(R):
        o = n * 16384
        q += F("ds_read_b128 v[%d:%d], v{vb} offset:%d\nds_read_b128 v[%d:%d], v{vb} offset:%d" % (D, D + 3, o, D + 4, D + 7, o + 1024), lds_r=(lds_base + o, lds_base + o + 8192), tag="lds", **k, **e)
    for n, (keep, D, Z, Wr, sa, sb) in enumerate(R):
        q += F("buffer_store_dwordx4 v[%d:%d], v{va}, {WS}, %s offen sc1\nbuffer_store_dwordx4 v[%d:%d], v{va}, {WS}, %s offen sc1"
               % (D, D + 3, sa, D + 4, D + 7, sb), tag="pub2", **k, **e)
    return q

def twiddle_D(TW, T):
    vs, vj, vk, c0, c1, s0, s1 = T, T + 1, T + 2, T + 3, T + 4, T + 5, T + 6
    p = F("""s_lshl_b32 {u}, {FH}, 9
s_add_u32 {u}, {u}, {S2}
v_lshlrev_b32 v{vs}, 5, v1
v_add_u32 v{vs}, {u}, v{vs}
v_cvt_f32_u32 v{vs}, v{vs}
v_mul_f32 v{vs}, %s, v{vs}
v_lshlrev_b32 v{vj}, 4, v2
v_cvt_f32_u32 v{vj}, v{vj}
v_add_f32 v{vk}, v{vs}, v{vs}
v_cos_f32 v{vk}, v{vk}""" % f2h(1.0 / 2048), vs=vs, vj=vj, vk=vk)
    for par in range(2):
        p += L("""v_add_f32 v%d, %s, v%d
v_add_f32 v%d, %s, v%d
v_mul_f32 v%d, v%d, v%d
v_mul_f32 v%d, v%d, v%d
v_cos_f32 v%d, v%d
v_cos_f32 v%d, v%d
v_sin_f32 v%d, v%d
v_sin_f32 v%d, v%d""" % (s0, f2h(float(par)), vj, s1, f2h(par + 2.0), vj, s0, s0, vs, s1, s1, vs, c0, s0, c1, s1, s0, s0, s1, s1))
        if par == 0: p += L("v_add_f32 v%d, v%d, v%d" % (vk, vk, vk))
        for jp in range(4):
            if jp:
                p += L("v_fma_f32 v%d, v%d, v%d, -v%d\nv_fma_f32 v%d, v%d, v%d, -v%d\nv_fma_f32 v%d, v%d, v%d, -v%d\nv_fma_f32 v%d, v%d, v%d, -v%d"
                       % (c0, vk, c1, c0, s0, vk, s1, s0, c1, vk, c0, c1, s1, vk, s0, s1))
            p += L("v_cvt_pk_bf16_f32 v%d, v%d, v%d\nv_cvt_pk_bf16_f32 v%d, v%d, v%d" % (TW + par * 8 + jp, c0, c1, TW + par * 8 + 4 + jp, s0, s1))
    return p

def stepD_loads(kb, RAW, opt=False):
    p = F("s_lshl_b32 {a}, {S2}, 12\ns_add_u32 {a}, {a}, %d\ns_lshl_b32 {b}, {kb}, 17\ns_add_u32 {b}, {b}, {a}" % WS_B, kb=kb, opt=opt)
    for i in range(4):
        p += F("buffer_load_dwordx4 v[%d:%d], v%d, {WS}, {b} offen offset:%d sc1" % (RAW + 4 * i, RAW + 4 * i + 3, V_L16, i * 1024), opt=opt)
    return p
def stepD_nyloads(NY, T, opt):
    p = F("s_add_u32 {a}, {a}, %d\nv_and_b32 v{t}, 1, v2\nv_lshlrev_b32 v{t}, 6, v{t}\nv_lshrrev_b32 v{n}, 1, v2\nv_lshl_add_u32 v{t}, v{n}, 17, v{t}" % (18 * KB_STRIDE), opt=opt, t=T, n=NY)
    for par in range(2):
        for pl in range(2):
            r = NY + (par * 2 + pl) * 4
            p += F("buffer_load_dwordx4 v[%d:%d], v%d, {WS}, {a} offen offset:%d sc1" % (r, r + 3, T, pl * 32 + par * 16), opt=opt)
    return p

def stepD_parts(RAW, NY, NB, TW, ACC, T, stage_base, kb, so, opt=False):
    k = dict(opt=opt)
    e = dict(vl=T, vr=T + 1, t0=T + 2, so=so, kb=kb)
    rng = (stage_base, stage_base + 16384)
    p = F("s_lshl_b32 {so}, {W}, 12\ns_add_u32 {so}, {so}, %d\nv_add_u32 v{vl}, {so}, v%d" % (stage_base, V_L16), **k, **e)
    p += F("""v_lshrrev_b32 v{vr}, 2, v1
v_lshl_add_u32 v{vr}, v2, 3, v{vr}
v_lshlrev_b32 v{vr}, 7, v{vr}
v_and_b32 v{t0}, 3, v1
v_lshl_add_u32 v{vr}, v{t0}, 3, v{vr}
v_add_u32 v{vr}, {so}, v{vr}""", **k, **e)
    for i in range(4):
        p += F("ds_write_b128 v{vl}, v[%d:%d] offset:%d" % (RAW + 4 * i, RAW + 4 * i + 3, i * 1024), lds_w=rng, priv=True, tag="lds", **k, **e)
    for par in range(2):
        for pl in range(2):
            r = RAW + (par * 2 + pl) * 4; o = par * 64 + pl * 32
            p += F("ds_read_b64_tr_b16 v[%d:%d], v{vr} offset:%d\nds_read_b64_tr_b16 v[%d:%d], v{vr} offset:%d" % (r, r + 1, o, r + 2, r + 3, o + 512),
                   lds_r=rng, priv=True, tag="lds", **k, **e)
    p += F("s_lshl_b32 {so}, {S2}, 1\ns_mul_i32 {so}, {so}, 18\ns_add_u32 {so}, {so}, {kb}\ns_lshl_b32 {so}, {so}, 1\ns_add_u32 {so}, {so}, {FH}\ns_lshl_b32 {so}, {so}, 10\ns_add_u32 {so}, {so}, %d" % WS_Y, **k, **e)
    ng = []
    for par in range(2):
        for d in range(4): ng += L("v_xor_b32 v%d, 0x80008000, v%d" % (NB + 4 * par + d, RAW + par * 8 + 4 + d), **k)
    mr = []
    for par in range(2):
        er = V(ACC + 8 * par, 4)
        mr += [mf(er, V(RAW + 8 * par, 4), V(TW + 8 * par, 4), None, opt), mf(er, V(NB + 4 * par, 4), V(TW + 8 * par + 4, 4), er, opt)]
    pt = []
    if not opt:
        pt = F("s_cmp_lg_u32 {C}, 0\ns_cbranch_scc1 L_nyd_KN") + L("v_cmp_eq_u32 vcc, 0, v1", opt="nyd")
        for par in range(2):
            for d in range(4):
                br, bi, nr, ni = RAW + 8 * par + d, RAW + 8 * par + 4 + d, NY + 8 * par + d, NY + 8 * par + 4 + d
                pt += L("v_xor_b32 v%d, 0x80008000, v%d\nv_cndmask_b32 v%d, v%d, v%d, vcc\nv_cndmask_b32 v%d, v%d, v%d, vcc" % (ni, ni, bi, bi, nr, br, br, ni), opt="nyd")
        pt += L("L_nyd_KN:")
    mi_ = []
    for par in range(2):
        ei = V(ACC + 8 * par + 4, 4)
        mi_ += [mf(ei, V(RAW + 8 * par + 4, 4), V(TW + 8 * par, 4), None, opt), mf(ei, V(RAW + 8 * par, 4), V(TW + 8 * par + 4, 4), ei, opt)]
    f = []
    for r in range(8):
        f += L("v_add_f32 v%d, v%d, v%d\nv_sub_f32 v%d, v%d, v%d" % (RAW + r, ACC + r, ACC + 8 + r, RAW + 8 + r, ACC + r, ACC + 8 + r), **k)
    for u in range(2):
        for d in range(4): f += L("v_cvt_pk_bf16_f32 v%d, v%d, v%d" % (RAW + 8 * u + d, RAW + 8 * u + 2 * d, RAW + 8 * u + 2 * d + 1), **k)
        f += F("buffer_store_dwordx4 v[%d:%d], v%d, {WS}, {so} offen sc1" % (RAW + 8 * u, RAW + 8 * u + 3, V_L16), tag="p8", **k, **e)
        if u == 0: f += F("s_add_u32 {so}, {so}, 36864", **k, **e)
    return p, ng, mr, pt, mi_, f

V_M0, V_ONE = 222, 3
SPINS = []
def signal(so):
    return F("buffer_atomic_add v%d, v%d, {WS}, %s offen sc1" % (V_ONE, V_M0, so))
def poll(vr, so, srdn="WS"):
    return F("buffer_load_dword v%d, v%d, {%s}, %s offen sc1" % (vr, V_M0, srdn, so))
def check(name, vr, so, exp, srdn="WS", sidx=None):
    p = F("v_readfirstlane_b32 {SP}, v%d\ns_cmp_ge_u32 {SP}, %s\ns_cbranch_scc0 L_sp%s_KN\nL_bk%s_KN:" % (vr, exp, name, name))
    st = ""
    if OPT['stamps'] and sidx is not None and OPT.get('diag') != 11: st = "v_writelane_b32 v%d, s5, %d\n" % (VST[0], sidx)
    SPINS.append(("""L_sp{n}_KN:
s_mov_b32 s5, 0
L_sq{n}_KN:
s_sleep 1
buffer_load_dword v%d, v%d, {%s}, %s offen sc1
s_add_u32 s5, s5, 1
s_waitcnt vmcnt(0)
v_readfirstlane_b32 {SP}, v%d
%ss_cmp_ge_u32 s5, 0x80000
s_cbranch_scc1 L_bk{n}_KN
s_cmp_ge_u32 {SP}, %s
s_cbranch_scc0 L_sq{n}_KN
s_branch L_bk{n}_KN""" % (vr, V_M0, srdn, so, vr, st, exp)).format(n=name, **ENV))
    return p

def kernel_main(a):
    name = NAME + "_kernel"
    BI = OPT['BI']
    t0, t1 = SET[0], SET[0] + 1
    e = dict(t0=t0, t1=t1, DX=V_DX, DW=V_DW, DH=V_DH, DD=V_DD, RW=V_RW, RX=V_RX, RW1=V_RW + 3, RX1=V_RX + 3, HW=V_HW, HH=V_HH, L16=V_L16, L16B=V_L16B, VST_=V_ST)
    VPF, VDM = V_HH, V_ST
    def vaddr64(q):
        for i in q:
            if i.op == "v_add_co_u32": i.wr.append(('s', 'vcc')); i.rd = [r for r in i.rd if r != ('s', 'vcc')]
            if i.op == "v_addc_co_u32": i.wr.append(('s', 'vcc'))
        return q
    G = []
    def grp(kind, nm, need, **kw):
        d = dict(kind=kind, nm=nm, need=need, bar=False, xr=None, rate=2); d.update(kw); G.append(d); return d
    for sg in range(9):
        for tau in range(4):
            mat = 'G' if tau < 2 else 'U'
            g = grp('SB', 16 if tau == (3 if sg < 8 else 0) else 8, [(mat, 0, 2 * sg), (mat, 0, 2 * sg + 1)], sg=sg, tau=tau, rate=[int(x) for x in str(OPT.get('sbr', 2225) if sg < 8 else OPT.get('sbl', 3111))][tau])
            if tau == 2 or (sg == 0 and tau == 0): g['bar'] = True
            if sg < 8 and tau in (2, 3): g['xr'] = (sg + 1, tau - 2)
    PS = {}
    for mat, b, st in [('G', 1, 3), ('U', 1, 2), ('G', 2, 0), ('U', 2, 1), ('G', 3, 3), ('U', 3, 2)]:
        PS[mat + str(b)] = len(G)
        for sl in range(6):
            for ap in range(2):
                g = grp('P1', 12, [(mat, b, 3 * sl + e_) for e_ in range(3)], st=st, sl=sl, ap=ap, ps=mat + str(b))
                if ap == 0 and (sl % BI == BI - 1): g['bar'] = True
    for hf, mat in enumerate(('HG', 'HU')):
        PS[mat] = len(G)
        for gi in range(6):
            g = grp('PH', 12, [(mat, (3 * gi + e_) >> 1) for e_ in range(3)], gi=gi, ps=mat, half=hf)
            if gi % 2 == 0: g['bar'] = True
    P2 = len(G); HU = PS['HU']; IL = OPT.get('il', 0)
    seq = [(0, 0), (1, 0), (0, 1), (1, 1), (0, 2), (1, 2)] + [(u, gi) for u in range(2, 5) for gi in range(3)] + ([(5, 0), (6, 0), (5, 1), (6, 1), (5, 2), (6, 2)] if IL else [(5, 0), (6, 0), (5, 1), (5, 2), (6, 1), (6, 2)]) + [(u, gi) for u in range(7, 9) for gi in range(3)]
    for u, gi in seq:
        grp('P2', 24, [('D', u, 3 * gi + e_) for e_ in range(3)], cb=u, gi=gi, rate=OPT.get('r2', 4), bar=True)
    NG = len(G)
    for x in str(OPT.get('nb', '')).split(','):
        if x: G[P2 + int(x)]['bar'] = False
    G[P2 - 1]['bar'] = True
    def rdg(n): return n - 1 if n > P2 else n - 2
    iv = []; n = 0
    for g in G:
        if g['bar']: n += 1
        iv.append(n)
    def free_iv(gr):
        for k in range(gr, NG):
            if G[k]['bar']: return iv[k]
        return 10 ** 6
    def next_bar(gi):
        while not G[gi]['bar']: gi += 1
        return gi
    first = {}; fre = {}; order = []
    def use(key, rg_, done_g):
        if key not in first: first[key] = iv[rg_] if rg_ >= 0 else 0; order.append(key)
        fre[key] = max(fre.get(key, 0), free_iv(done_g))
    for q in range(4): use(('x', 0, q), -1, 1)
    ev = []
    for gi, g in enumerate(G):
        for k in g['need']: ev.append((rdg(gi), 0, k, gi))
        if g['xr']:
            for q in range(4): ev.append((gi, 1, ('x', g['xr'][0], q), 4 * g['xr'][0] + 1))
    ev.sort(key=lambda x: (x[0], x[1]))
    for r_, _, k, d_ in ev: use(k, r_, d_)
    order.sort(key=lambda k: first[k])
    fixed = {}
    for sg in range(9):
        s = 8 * (sg % 5)
        for e_ in range(2):
            fixed[('G', 0, 2 * sg + e_)] = s + e_; fixed[('U', 0, 2 * sg + e_)] = s + 2 + e_
        for q in range(4): fixed[('x', sg, q)] = s + 4 + q
    gS2 = PS['U2'] + 11
    gSD = P2 + OPT.get('sdat', 4); gQ = P2 + 18
    gar = next_bar(PS['G1'] + 5); ga1 = next_bar(PS['U1'] + OPT.get('a1at', 2)); gc1 = next_bar(PS['U2'] + 2); ga2 = next_bar(gS2 + OPT.get('a2at', 9)); gc2 = HU + 2
    gh1 = next_bar(PS['HG'] + OPT.get('h1at', 2)); gq1 = P2 + OPT.get('q1at', 1); gh2 = P2 + OPT.get('h2at', 7); gq2 = P2 + OPT.get('q2at', 12); gf8 = P2 + OPT.get('f8at', 11); gY = P2 + OPT.get('yat', 17); gfa = P2 + OPT.get('faat', 25)
    QP = OPT.get('qp', 0); gq0 = next_bar(PS['U3'] + OPT.get('q0at', 8))
    res = [(0, 4, PS['G1'] - 1, NG - 1), (4, 1, PS['G1'] - 1, PS['G1']), (8, 8, gS2, gS2 + 1), (4, 4, PS['G2'], NG - 1), (8, 4, PS['G3'], gQ), (8, 3, gQ, NG - 1),
           (12, 4, PS['HG'], gQ + 1), (16, 2, P2, gQ + 1), (18, 4, gSD, gSD + 4)]
    resv = {pg: [] for pg in range(40)}
    for f_, npg, ga, gb in res:
        for pg in range(f_, f_ + npg): resv[pg].append((iv[ga], free_iv(gb + 1)))
    free_at = [-1] * 40; phys = {}; issue_grp = {}; qi = 0
    def ioff(k):
        if k[0] == 'D': return 0 if k[1] == 0 else ((k[1] - 1) & 3) * 128
        return k[1] * 128 if k[0] in 'GU' else 0
    def try_alloc(k, cur):
        for pg in ([fixed[k]] if k in fixed else range(39, -1, -1)):
            if free_at[pg] > cur or (pg == 0 and ioff(k) > 0): continue
            if any(not (fre[k] <= a_ or cur >= b_) for a_, b_ in resv[pg]): continue
            return pg
        return None
    cum = [0]
    for g in G: cum.append(cum[-1] + g['nm'])
    bar_grp = {iv[gi]: gi for gi, g in enumerate(G) if g['bar']}; bar_grp[0] = 0
    vt = {}; cnt_iv = {}
    for k in order:
        n_ = cnt_iv.get(first[k], 0); cnt_iv[first[k]] = n_ + 1
        vt[k] = cum[bar_grp[first[k]]] + n_ * (5 if k in fixed else 8)
    LA = lambda k: OPT.get('la0', 120) if k in fixed else OPT.get('la1', 400)
    NPRO = OPT.get('npro', 16)
    while qi < NPRO:
        k = order[qi]; phys[k] = try_alloc(k, -1); free_at[phys[k]] = fre[k]; issue_grp[k] = -1; qi += 1
    hole_end = -1; hole_left = 0
    for gi, g in enumerate(G):
        g['dma'] = []
        if g['kind'] in ('P1', 'PH') and OPT.get('hole'): g['rate'] = OPT.get('hr', 3)
        while qi < len(order) and len(g['dma']) < g['rate']:
            k = order[qi]
            if vt[k] - cum[gi] > LA(k): break
            if cum[gi] < hole_end and hole_left <= 0 and vt[k] - cum[gi] > OPT.get('hmin', 70): break
            pg = try_alloc(k, iv[gi])
            if pg is None: break
            assert iv[gi] < first[k], ("late DMA", k, gi)
            phys[k] = pg; free_at[pg] = fre[k]; issue_grp[k] = gi; g['dma'].append(k); qi += 1
            hole_left -= 2 if k[0] in ('HG', 'HU') else 1
            if OPT.get('hole') and k not in fixed and k[0] != 'D' and k[-1] == 0: hole_end = cum[gi] + OPT['hole']; hole_left = OPT.get('hn', 6)
    assert qi == len(order), order[qi]
    print("dma per group:", "".join(str(len(g['dma'])) for g in G), file=sys.stderr)
    slk = {}
    for k in order:
        if issue_grp[k] >= 0:
            kk_ = k[:2] if k[0] in 'GUD' else k[:1]
            slk[kk_] = min(slk.get(kk_, 9999), cum[bar_grp[first[k]]] - cum[issue_grp[k] + 1])
    print("min DMA slack (mfmas):", slk, file=sys.stderr)
    V_D8 = TMP + 25
    MG = {k[0] + (str(k[1]) if len(k) == 3 else ""): issue_grp[k] for k in order if k[0] != 'x' and k[0] != 'D' and k[-1] == 0}
    print("miss groups", MG, PS, file=sys.stderr)
    def mkdma(k):
        tag = "pg%d" % first[k]; pb = phys[k] * 4096
        if k[0] == 'x':
            pre = []
            if k[2] == 0 and k[1] > 0:
                pre = F("s_cmp_eq_u32 {ROT}, %d\ns_cselect_b32 {SP}, -8, 1\nv_lshl_add_u32 v%d, {SP}, 7, v%d" % (9 - k[1], V_DX, V_DX))
            m_, d_ = dma(V_DX, 'X', S_XQ + k[2], pb, 0, tag)
            return (pre + [m_], d_) if pre else (m_, d_)
        if k[0] == 'G': return dma(V_DW, 'WG', S_KK + k[2], pb, ioff(k), tag)
        if k[0] == 'U': return dma(V_DW, 'WU', S_KK + k[2], pb, ioff(k), tag)
        if k[0] == 'HG': return dma(V_DH, 'WG', S_KK + 2 * k[1], pb, 0, tag)
        if k[0] == 'HU': return dma(V_DH, 'WU', S_KK + 2 * k[1], pb, 0, tag)
        return dma(V_DD if k[1] else V_D8, 'WD', (S_DK if k[1] < 5 else S_KK) + k[2], pb, ioff(k), tag)
    def mkx(kind, pg, va):
        m_ = F("s_add_u32 m0, {W1K}, %d" % (pg * 4096))[0]
        d_ = F("buffer_load_dwordx4 v%d, {WS}, m0 offen sc1 lds" % va, tag=kind, lds_w=(pg * 4096, pg * 4096 + 4096))[0]
        return m_, d_
    MP = OPT.get('map', 1)
    IDS = """s_and_b32 {C}, s2, 3
s_lshl_b32 {C}, {C}, 2
s_bfe_u32 {a}, s2, 0x20003
s_add_u32 {C}, {C}, {a}
s_lshr_b32 {ROT}, s2, 5
s_lshl_b32 {T}, {ROT}, 1
s_bfe_u32 {b}, s2, 0x10002
s_add_u32 {T}, {T}, {b}
s_lshl_b32 {a}, {a}, 1
s_add_u32 {ROT}, {ROT}, {a}
s_cmp_ge_u32 {ROT}, 9
s_cselect_b32 {a}, 9, 0
s_sub_u32 {ROT}, {ROT}, {a}
""" if MP == 1 else """s_and_b32 {C}, s2, 7
s_lshl_b32 {C}, {C}, 1
s_bfe_u32 {a}, s2, 0x10003
s_add_u32 {C}, {C}, {a}
s_lshr_b32 {T}, s2, 4
s_lshl_b32 {a}, {a}, 2
s_add_u32 {ROT}, {T}, {a}
s_cmp_ge_u32 {ROT}, 9
s_cselect_b32 {a}, 9, 0
s_sub_u32 {ROT}, {ROT}, {a}
s_cmp_ge_u32 {ROT}, 9
s_cselect_b32 {a}, 9, 0
s_sub_u32 {ROT}, {ROT}, {a}
"""
    NEV = OPT.get('nev', 3)
    NPF = -(-(81 if MP == 1 else 41) // NEV)
    RV = OPT.get('rv', 0)
    if RV == 1: IDS += "s_mul_i32 {a}, {ROT}, 11\ns_lshr_b32 {a}, {a}, 5\ns_mul_i32 {a}, {a}, 3\ns_sub_u32 {ROT}, {ROT}, {a}\ns_mul_i32 {ROT}, {ROT}, 3\n"
    if RV == 2: IDS += "s_and_b32 {ROT}, {ROT}, 14\n"
    p = L("s_cmp_ge_u32 s2, 256\ns_cbranch_scc1 L_end_KN")
    if OPT['stamps']: p += L("v_mov_b32 v%d, 0" % VST[0])
    p += stamp(0)
    p += L("s_load_dwordx16 s[52:67], s[0:1], 0\ns_load_dwordx4 s[68:71], s[0:1], 64\ns_load_dwordx2 s[72:73], s[0:1], 80")
    p += vaddr64(L("s_getpc_b64 s[6:7]\nv_lshlrev_b32 v34, 5, v0\nv_mov_b32 v35, s7\nv_add_co_u32 v34, vcc, s6, v34\nv_addc_co_u32 v35, vcc, 0, v35, vcc"))
    p += [Ins("global_load_dword v%d, v[34:35], off" % VDM, 'vmem', V(34, 2), [])]
    p += F("""v_lshrrev_b32 v1, 6, v0
v_and_b32 v0, 63, v0
v_readfirstlane_b32 {W}, v1
v_and_b32 v1, 15, v0
v_lshrrev_b32 v2, 4, v0
IDSs_lshr_b32 {RG}, {W}, 1
s_and_b32 {FH}, {W}, 1
s_lshl_b32 {W1K}, {W}, 10
v_lshrrev_b32 v{DD}, 3, v0
s_lshl_b32 {a}, {W}, 3
v_add_u32 v{DD}, {a}, v{DD}
v_mul_u32_u24 v{DX}, %d, v{DD}
s_lshl_b32 {a}, {FH}, 2
v_add_u32 v{t0}, {a}, v2
v_xor_b32 v{t0}, v0, v{t0}
v_and_b32 v{t0}, 7, v{t0}
v_lshl_add_u32 v{DX}, v{t0}, 4, v{DX}
s_mul_i32 {a}, {T}, 2304
s_lshl_b32 {b}, {ROT}, 7
s_add_u32 {a}, {a}, {b}
v_add_u32 v{DX}, {a}, v{DX}
v_mul_u32_u24 v{DW}, 9216, v{DD}
v_bfe_u32 v{t0}, v0, 1, 2
v_and_b32 v{t1}, 1, v2
s_lshl_b32 {a}, {FH}, 1
v_or_b32 v{t1}, {a}, v{t1}
v_xor_b32 v{t1}, v{t1}, v{t0}
v_lshl_add_u32 v{DW}, v{t1}, 5, v{DW}
v_and_b32 v{t1}, 1, v0
v_lshl_add_u32 v{DW}, v{t1}, 4, v{DW}
s_mul_i32 {d}, {C}, 576
s_and_b32 {e}, {C}, 1
s_lshl_b32 {c}, {e}, 6
s_add_u32 {c}, {c}, {d}
v_add_u32 v{DW}, {c}, v{DW}""".replace("IDS", IDS) % (32 * 1152), **e)
    for q in range(4): p += L("s_mov_b32 s%d, %d" % (S_XQ + q, (1024 * (q & 1) + (q >> 1)) * 1152))
    def skk(m):
        KS = 32 * 9216
        if m == 0: q = F("s_mul_i32 s%d, {ROT}, %d" % (S_KK, 2 * KS))
        else: q = F("s_add_u32 s%d, s%d, %d\ns_cmp_eq_u32 {ROT}, %d\ns_cselect_b32 s%d, 0, s%d" % (S_KK + 2 * m, S_KK + 2 * m - 2, 2 * KS, 9 - m, S_KK + 2 * m, S_KK + 2 * m))
        return q + L("s_add_u32 s%d, s%d, %d" % (S_KK + 2 * m + 1, S_KK + 2 * m, KS))
    p += skk(0) + skk(1)
    for d_, n_ in ((8, 2048 * 1152), (12, 576 * 9216), (16, 576 * 9216)): p += L("s_mov_b32 s%d, 0x%x\ns_mov_b32 s%d, 0x20000" % (d_ + 2, n_, d_ + 3))
    p += L("s_waitcnt lgkmcnt(0)")
    pro = [k for k in order if issue_grp[k] < 0]
    p += L("s_mov_b32 s8, s52\ns_and_b32 s9, s53, 0xffff")
    for k in pro[:4]: p += flat(mkdma(k))
    p += L("s_mov_b32 s12, s60\ns_and_b32 s13, s61, 0xffff\ns_mov_b32 s16, s62\ns_and_b32 s17, s63, 0xffff")
    for k in pro[4:8]: p += flat(mkdma(k))
    p += F("s_cmp_eq_u32 {RG}, 0\ns_cselect_b32 s54, s54, s56\ns_cselect_b32 s55, s55, s57")
    p += srd(32, 54, 2048 * 578) + srd(20, 64, 4608 * 1152) + srd(40, 66, 1152) + srd(28, 70, 256) + srd(24, 72, WS_BYTES)
    p += vaddr64(F("""s_lshr_b32 {a}, s2, 3
s_lshl_b32 {a}, {a}, 2
s_add_u32 {a}, {a}, {W}
s_lshl_b32 {a}, {a}, 9
s_add_u32 {a}, {a}, 8192
v_lshlrev_b32 v34, 3, v0
v_add_u32 v34, {a}, v34
v_mov_b32 v35, s7
v_add_co_u32 v34, vcc, s6, v34
v_addc_co_u32 v35, vcc, 0, v35, vcc"""))
    p += [Ins("global_load_dword v%d, v[34:35], off" % VDM, 'vmem', V(34, 2), [])]
    g1, g2 = gate_code(SET[2] + 16, SET[2] + 24, [FB + 8, FB + 9, FB + 10, FB + 11, FB + 20, FB + 21, FB + 22, FB + 23])
    p += g1 + srd(40, 68, 2048 * 1152)
    p += F("s_cmp_lg_u32 {C}, 0\ns_cbranch_scc1 L_nw_KN") + nyw_load(TMP + 24, "nw") + L("L_nw_KN:")
    p += F("s_cmp_lg_u32 s2, 0\ns_cbranch_scc1 L_z_KN")
    p += F("v_mov_b32 v36, 0\nv_mov_b32 v37, 0\nv_mov_b32 v38, 0\nv_mov_b32 v39, 0\nv_lshlrev_b32 v40, 4, v0\ns_lshl_b32 {a}, {W}, 12\ns_add_u32 {a}, {a}, %d" % WS_C, opt="z")
    for i in range(4): p += F("buffer_store_dwordx4 v[36:39], v40, {WS}, {a} offen offset:%d sc1" % (i * 1024), opt="z", tag="zero")
    p += L("L_z_KN:")
    for m in range(2, 9): p += skk(m)
    w = F("""s_lshl_b32 {S2}, {T}, 1
s_add_u32 {S2}, {S2}, {RG}
v_lshrrev_b32 v{RW}, 2, v1
v_lshlrev_b32 v{RW}, 7, v{RW}
v_lshl_add_u32 v{RW}, v2, 10, v{RW}
v_and_b32 v{t0}, 3, v1
v_lshl_add_u32 v{RW}, v{t0}, 3, v{RW}
v_bfe_u32 v{t0}, v1, 3, 1
v_and_b32 v{t1}, 1, v2
v_lshl_add_u32 v{t0}, v{t1}, 1, v{t0}
s_lshl_b32 {a}, {FH}, 1
v_xor_b32 v{t0}, {a}, v{t0}
v_lshl_add_u32 v{RW}, v{t0}, 5, v{RW}
v_xor_b32 v{RW1}, 32, v{RW}
v_lshrrev_b32 v{t0}, 1, v1
v_xor_b32 v{t0}, v{t0}, v2
v_lshlrev_b32 v{t0}, 4, v{t0}
v_lshl_add_u32 v{RX}, v1, 7, v{t0}
s_lshl_b32 {a}, {RG}, 13
v_add_u32 v{RX}, {a}, v{RX}
v_xor_b32 v{RX1}, 64, v{RX}""", **e)
    for b in (V_RW, V_RW + 3, V_RX, V_RX + 3):
        w += L("v_add_u32 v%d, 0x10000, v%d\nv_add_u32 v%d, 0x20000, v%d" % (b + 1, b, b + 2, b))
    w += F("""v_or_b32 v{m}, {W}, v0
v_min_u32 v{m}, 1, v{m}
v_lshlrev_b32 v{m}, 31, v{m}
v_mul_u32_u24 v{DD}, 1152, v{DD}
v_bfe_u32 v{t0}, v0, 1, 2
v_xor_b32 v{t0}, v{t0}, v2
v_lshl_add_u32 v{DD}, v{t0}, 5, v{DD}
v_and_b32 v{t1}, 1, v0
v_lshl_add_u32 v{DD}, v{t1}, 4, v{DD}
v_lshrrev_b32 v{DH}, 2, v0
s_lshl_b32 {a}, {W}, 4
v_add_u32 v{DH}, {a}, v{DH}
v_mul_u32_u24 v{DH}, 9216, v{DH}
v_lshl_add_u32 v{DH}, v{t1}, 4, v{DH}
v_bfe_u32 v{t0}, v0, 1, 1
v_lshrrev_b32 v{t1}, 5, v0
v_xor_b32 v{t0}, v{t0}, v{t1}
v_lshl_add_u32 v{DH}, v{t0}, 5, v{DH}
s_cmp_eq_u32 {e}, 0
s_cselect_b32 {a}, 512, 0
s_add_u32 {a}, {a}, {d}
v_add_u32 v{DH}, {a}, v{DH}
v_lshlrev_b32 v{L16}, 4, v0
v_add_u32 v{L16B}, 0x10000, v{L16}
s_lshl_b32 {a}, {FH}, 13
s_lshl_b32 {b}, {RG}, 12
s_add_u32 {a}, {a}, {b}
v_add_u32 v{HW}, {a}, v{L16}
s_lshl_b32 {HB}, {T}, 4
s_add_u32 {HB}, {HB}, {C}
s_mul_i32 {HB}, {HB}, 73728
s_add_u32 {HB}, {HB}, %d
s_mov_b32 {Q}, 0x3e800000
s_mov_b32 {NL}, %s
s_add_u32 {KB1}, {C}, 2
s_add_u32 {KB3}, {C}, 4
s_cmp_lt_u32 {KB3}, 18
s_cselect_b32 {KB3}, {KB3}, 0
s_sub_u32 {GA}, 11, {C}
s_lshl_b32 {GA}, {GA}, 4
s_add_u32 {GA}, {GA}, {T}
s_cmp_lt_u32 {C}, 12
s_cselect_b32 {GA}, {GA}, 0x1000
s_add_u32 {GB}, {GA}, 192
s_mul_i32 {a}, {C}, %d
s_mul_i32 {c}, {e}, %d
s_add_u32 s%d, {a}, {c}
s_cmp_eq_u32 {e}, 0
s_cselect_b32 {c}, %d, 0
s_add_u32 s%d, {a}, {c}
s_lshr_b32 {b}, {T}, {mp}
s_mul_i32 {b}, {b}, %d
s_add_u32 {a}, {a}, {b}
s_mul_i32 {b}, {W}, %d
s_add_u32 {a}, {a}, {b}
v_lshlrev_b32 v{pf}, 7, v0
v_add_u32 v{pf}, {a}, v{pf}
v_cmp_gt_u32 vcc, {npf}, v0
v_bfrev_b32 v{t0}, 1
s_lshl_b32 {S8}, {T}, 18
s_lshl_b32 {b}, {W}, 16
v_cndmask_b32 v{pf}, v{t0}, v{pf}, vcc
s_add_u32 {S8}, {S8}, {b}
s_lshl_b32 {b}, {C}, 10
s_add_u32 {S8}, {S8}, {b}""" % (WS_H, f2h(-math.log2(math.e)), 288 * 1152, 32 * 1152, S_DK, 256 * 1152, S_DK + 8, (36 if MP else 18) * 1152, (81 if MP else 41) * 128), m=V_M0, pf=VPF, mp=MP, npf=NPF, **e)
    for ks in range(1, 8): w += L("s_add_u32 s%d, s%d, %d" % (S_DK + ks, S_DK, ks * 32 * 1152))
    w += s2_scalars(ENV['GA'], ENV['WA'], ENV['SA']) + s2_scalars(ENV['GB'], ENV['WB'], ENV['SB'])
    TP = V_SIL
    TF = lambda kk: (SET[3] + 4 * kk) if kk < 8 else FB + 32
    TWA = lambda a_: (TMP + 8 * a_) if a_ < 3 else SET[3]
    def clears(r):
        n0 = OPT.get('cl0', 2)
        q0 = F("""s_lshl_b32 {g}, {T}, 1
s_and_b32 {SM_}, {C}, 1
s_add_u32 {g}, {g}, {SM_}
s_lshl_b32 {g}, {g}, 19
s_lshl_b32 {SM_}, {W}, 15
s_add_u32 {g}, {g}, {SM_}
s_lshr_b32 {SM_}, {C}, 1
s_lshl_b32 {SM_}, {SM_}, 10
s_add_u32 {g}, {g}, {SM_}
s_add_u32 {g}, {g}, %d""" % (WS_P + n0 * 131072))
        for i in range(4): q0 += L("v_mov_b32 v%d, -1" % (r + i))
        q1 = []
        for i in range(4 * (4 - n0)):
            q1 += F("buffer_store_dwordx4 v[%d:%d], v%d, {WS}, {g} offen sc1" % (r, r + 3, V_L16), tag="p8")
            q1 += F("s_add_u32 {g}, {g}, %d" % (8192 if i % 4 != 3 else 131072 - 3 * 8192))
        return q0, q1
    if OPT.get('sent') and OPT.get('clat', -1) < 0:
        q0, q1 = clears(SET[0] + 12); w += q0 + q1
    w += t_setup(TP, ENV['C'])
    p += w
    parts = [(lambda kk=kk: t_frag(kk, TF(kk), SET[1], TP)) for kk in range(9)] + [lambda: twiddle_A(TWA, SET[0], range(OPT.get('ntw', 3)))]
    dstart = OPT.get('dst', 0); rest = pro[8:]
    for n_, f_ in enumerate(parts):
        p += f_()
        if n_ >= dstart and rest: p += flat(mkdma(rest.pop(0)))
    for k in rest: p += flat(mkdma(k))
    sec = Sec2(); sec.smooth = bool(OPT.get('smooth', 1)); sec.hor = OPT.get('hor', 200)
    def FBUF(gi): return FB + 12 * (gi % 3) if gi <= P2 else FB + 12 * ((gi - P2) & 1)
    assert P2 % 3 == 0
    def frag_reads(gi):
        g = G[gi]; out = []
        for e_, k in enumerate(g['need']):
            pb = phys[k] * 4096
            if k[0] in 'GU':
                ap = g['tau'] & 1 if g['kind'] == 'SB' else g['ap']
                base, o, d2 = V_RW + 3 * ap, pb, 512
            elif k[0] in ('HG', 'HU'): base, o, d2 = V_RX, pb + ((3 * g['gi'] + e_) & 1) * 2048, 256
            else: base, o, d2 = V_RX + 3, pb, 2048
            r = FBUF(gi) + 4 * e_
            out.append(L("ds_read_b64_tr_b16 v[%d:%d], v%d offset:%d\nds_read_b64_tr_b16 v[%d:%d], v%d offset:%d"
                         % (r, r + 1, base + (o >> 16), o & 0xffff, r + 2, r + 3, base + (o >> 16), (o & 0xffff) + d2), lds_r=(pb, pb + 4096), tag="f%d" % gi))
        return out
    def x_reads(sg, e_):
        kk = 2 * sg + e_; out = []; pb = phys[('x', sg, 0)] * 4096
        for mi in range(4):
            o = pb + mi * 2048
            out += L("ds_read_b128 %s, v%d offset:%d" % (rs(XF(mi, kk)), V_RX + 3 * e_ + (o >> 16), o & 0xffff), lds_r=(pb, pb + 16384), tag="x%d" % sg)
        return [out[0:2], out[2:4]]
    def h_read(n_, tag):
        o = (n_ >> 3) * 8192 + (n_ & 7) * 1024
        return L("ds_read_b128 %s, v%d offset:%d" % (rs(HF(n_ & 7, n_ >> 3)), V_L16B if o >> 16 else V_L16, o & 0xffff), lds_r=(o, o + 1024), tag=tag)[0]
    def silu_a(st, n_=32):
        out = []
        for i in range(0, n_, 4):
            T = V_SIL + (i & 4); rr = range(st + i, st + i + 4)
            out += [F("v_mul_f32 v%d, {NL}, v%d" % (T + j, r))[0] for j, r in enumerate(rr)]
            out += [I("v_exp_f32 v%d, v%d" % (T + j, T + j)) for j in range(4)]
            out += [I("v_add_f32 v%d, 1.0, v%d" % (T + j, T + j)) for j in range(4)]
            out += [I("v_rcp_f32 v%d, v%d" % (T + j, T + j)) for j in range(4)]
            out += [I("v_mul_f32 v%d, v%d, v%d" % (r, r, T + j)) for j, r in enumerate(rr)]
        return out
    def silu_b(sm, sp, b):
        out = []
        for mi in range(4):
            d = sp + 4 * mi
            for ap in range(2):
                o = (ap * 4 + mi) * 4
                out += [I("v_mul_f32 v%d, v%d, v%d" % (sm + o + r, sm + o + r, sp + o + r)) for r in range(4)]
            for ap in range(2):
                q = sm + (ap * 4 + mi) * 4
                out += [I("v_cvt_pk_bf16_f32 v%d, v%d, v%d" % (d + 2 * ap + h, q + 2 * h, q + 2 * h + 1)) for h in range(2)]
            out += L("ds_write_b128 v%d, v[%d:%d] offset:%d" % (V_HW, d, d + 3, b * 16384 + mi * 1024), lds_w=(b * 16384, b * 16384 + 16384), tag="hw%d" % b)
        return out
    def h_out(sp, b):
        out = F("s_add_u32 {HT}, {HB}, %d" % (b * 16384))
        for mi in range(4):
            out += F("buffer_store_dwordx4 v[%d:%d], v%d, {WS}, {HT} offen offset:%d sc1" % (sp + 4 * mi, sp + 4 * mi + 3, V_HW, mi * 1024), tag="gh0" if b < 2 else "gh1" if b < 3 else "gh2")
        return out
    def silu_bH(st):
        out = []
        for mi in range(4):
            gq, uq = st + 4 * mi, st + 16 + 4 * mi
            out += [I("v_mul_f32 v%d, v%d, v%d" % (gq + r, gq + r, uq + r)) for r in range(4)]
            out += [I("v_cvt_pk_bf16_f32 v%d, v%d, v%d" % (uq + h, gq + 2 * h, gq + 2 * h + 1)) for h in range(2)]
            out += L("ds_write_b64 v%d, v[%d:%d] offset:%d" % (V_HH, uq, uq + 1, mi * 1024), lds_w=(65536, 65536 + 8192), tag="hw4")
        return out
    PACC = [SET[1], SET[2], SET[1], SET[3], SET[0], SET[2], SET[1], SET[3], SET[0]]
    def out_ops(cb, ips=range(4)):
        acc = PACC[cb]; out = []
        for ip in ips:
            b = acc + 8 * ip
            if cb == 0: out += F("s_add_u32 {ST}, {S8}, 0x%x" % (WS_8 + ip * 16384))
            else: out += F("s_mov_b32 {ST}, 0x%x" % (WS_P + (cb - 5) * 131072 + ip * 8192))
            out += [I("v_cvt_pk_bf16_f32 v%d, v%d, v%d" % (b + d, b + 2 * d, b + 2 * d + 1)) for d in range(4)]
            if cb >= 7 and OPT.get('sent'): out += [I("v_min_u32 v%d, -2, v%d" % (b + d, b + d)) for d in range(4)]
            out += F("buffer_store_dwordx4 v[%d:%d], v%d, {WS}, {ST} offen sc1" % (b, b + 3, V_ST if cb else V_L16), tag="p8" if cb == 0 else "pA" if cb < 7 else "pB")
        return out
    p += stamp(1) + L("s_barrier", need_vm=("pg0",)) + stamp(2)
    xa, xb = x_reads(0, 0), x_reads(0, 1)
    for r_ in [xa[0], xb[0]] + frag_reads(0) + [xa[1], xb[1]] + frag_reads(1): p += r_
    q = g2()
    sec.stream(q[:98], 30, 188, "gate0")
    sec.stream(q[98:], 30, 300, "gate", "gate0")
    VP = TMP + 22
    HSP = OPT.get('hsp', 30)
    hq = {HU + 2: range(0, 6), HU + 3: range(6, 12), HU + 4: range(12, 18), HU + 5: range(18, 24), P2: range(24, 36), P2 + 1: range(36, 48), P2 + 2: range(48, 64), P2 + 3: range(64, 72)}
    qq = {P2 + 13 + i: range(12 * i, 12 * i + 12) for i in range(6)} if IL else {P2 + 13: range(0, 12), P2 + 14: range(12, 28), P2 + 15: range(28, 44), P2 + 16: range(44, 58), P2 + 17: range(58, 72)}
    VQ, VY = V_DW, V_DH
    xd = {}
    for i in range(12): xd.setdefault(gq1 + (i * (P2 + OPT.get('qe', 11) - gq1)) // 12, []).append(('q%d' % (i // 6), i, VQ))
    for i in range(12, 18): xd.setdefault(gq2 + (i - 12) // 3, []).append(('q2', i, VQ))
    for i in range(9): xd.setdefault(max(gY + 1 + i // OPT.get('yr', 3), P2 + 18 if i >= 6 else 0), []).append(('y', i, VY))
    S2D = [SET[2] + 16, SET[2] + 24]; S2W = [TMP, TMP + 8]
    M2, Z2, S2T, S2L = SET[3], SET[2], SET[3] + 24, 8 * 4096
    def pfw(it):
        i = F("buffer_load_dword v%d, v%d, {WD}, 0 offen" % (VDM, VPF))[0]
        if it < NEV - 1: i.wr = []
        return [i] + L("v_add_u32 v%d, %d, v%d" % (VPF, NPF * 128, VPF))
    KBX = "s_lshr_b32 {x}, {y}, 5\ns_cmp_eq_u32 {x}, 9\ns_cselect_b32 {x}, 0, {x}\ns_add_u32 {x}, {x}, {o}\ns_add_u32 {XA}, {T}, 34\ns_cmp_gt_u32 {y}, 288\ns_cselect_b32 {x}, {XA}, {x}\ns_lshl_b32 {x}, {x}, 7\ns_add_u32 {x}, {x}, %d\n" % WS_C
    kbx = lambda x, y, o: KBX.replace("{x}", "{%s}" % x).replace("{y}", "{%s}" % y).replace("{o}", str(o))
    W0 = "s_cmp_eq_u32 {W}, 0\ns_cselect_b32 {PE1}, {PE1}, 0\ns_cselect_b32 {PE2}, {PE2}, 0"
    CPF = {int(x): TMP + 20 for x in str(OPT.get('cpf', '0')).split(',') if x != '0'}
    RAW, RA2, NB, SDT = TMP, SET[3] + 16, FB + 24, FB + 32
    for gi, g in enumerate(G):
        base = sec.n(); fb = FBUF(gi); ms = []
        if g['kind'] == 'SB':
            st = SET[0] if g['tau'] < 2 else SET[1]
            for mi in range(4):
                for e_ in range(2):
                    acc = V(st + ((g['tau'] & 1) * 4 + mi) * 4, 4); kk = 2 * g['sg'] + e_
                    ms.append(mf(acc, V(fb + 4 * e_, 4), XF(mi, kk), acc if kk else None))
            if g['nm'] == 16:
                tm = []
                for mi in range(4):
                    for e_ in range(2):
                        kk = 2 * g['sg'] + e_
                        acc = V(SET[2] + 16 * (kk // 9) + 4 * mi, 4)
                        tm.append(mf(acc, XF(mi, kk), V(TF(kk % 9), 4), acc if kk % 9 else None))
                ms = ms + tm if g['sg'] < 8 else tm + ms
        elif g['kind'] in ('P1', 'PH'):
            st = SET[g['st']] + 16 * g['ap'] if g['kind'] == 'P1' else SET[0] + 16 * g['half']
            k0 = 3 * (g['sl'] if g['kind'] == 'P1' else g['gi'])
            for mi in range(4):
                for e_ in range(3):
                    acc = V(st + 4 * mi, 4)
                    ms.append(mf(acc, V(fb + 4 * e_, 4), XF(mi, k0 + e_), acc if k0 + e_ else None))
        else:
            for mi in range(8):
                for e_ in range(3):
                    acc = V(PACC[g['cb']] + 4 * mi, 4)
                    ms.append(mf(acc, V(fb + 4 * e_, 4), HF(mi, 3 * g['gi'] + e_), acc if (g['gi'] or e_ or g['cb'] >= 5) else None))
        lg = ["f%d" % gi]; vm = []
        if g['kind'] == 'SB' and g['tau'] == 0: lg.append("x%d" % g['sg'])
        if g['kind'] == 'P2' and g['cb'] == 0: lg.append("h%d" % g['gi'])
        if g['kind'] == 'P2' and g['cb'] == 5: lg.append("r%d" % g['gi'])
        if g['bar']:
            vm.append("pg%d" % iv[gi])
            for gx, tg in ((gar, "sa"), (P2 + 2, "hw3"), (P2 + 3, "hw4")):
                if gi == gx: lg.append(tg)
            for gx, tg in ((6, "zero"), (ga1, "pub1"), (ga2, "pub2"), (gfa, "pA"), (NG - 1, "y"), (ga2, "gh0"), (gh1, "gh1"), (gh2, "gh2"), (gf8, "p8"), (P2 + 13, "q0"), (P2 + 15 if IL else P2 + 14, "q1"), (P2 + 17 if IL else P2 + 16, "q2")):
                if gi == gx: vm.append(tg)
        if gi == ga1: sec.block(base - 1, check("0", VP, "0", ENV['PE1'], "DBG", 27))
        if gi in (gc1, gc2):
            n_ = "1" if gi == gc1 else "2"
            sec.block(base - 1, check(n_ + "a", VP, ENV['PO1'], ENV['PE1'], sidx=28 if gi == gc1 else 29) + check(n_ + "b", VP + 1, ENV['PO2'], ENV['PE2']))
        if gi == gq0 and QP: sec.block(base - 1, check("q0", VP + 2, ENV['SB'], ENV['SM_']))
        if gi == gq1: sec.block(base - 1, check("q1", VP + 2, ENV['SB'], ENV['SM_'], sidx=22))
        if gi == gq2: sec.block(base - 1, check("q2", VP + 2, ENV['SB'], ENV['SM_'], sidx=23))
        if gi == gY: sec.block(base - 1, check("8", VP, ENV['PO1'], ENV['PE1'], sidx=26))
        if gi:
            if sec.blk.get(base - 1): sec.block(base - 1, [Need(vm, lg)])
            else: sec.at(base - 1, Need(vm, lg))
        for m_ in ms: sec.mfma(m_)
        nm = g['nm']; end = sec.n()
        sidx = None
        if g['kind'] in ('P1', 'PH') and PS[g['ps']] == gi: sidx = 3 + list(PS).index(g['ps'])
        if g['kind'] == 'P2' and (gi - P2) % 3 == 0: sidx = 11 + (gi - P2) // 3
        if OPT.get('diag') == 7:
            g0 = OPT.get('g0', 36); sp = OPT.get('gs', 4)
            sidx = 3 + (gi - g0) // sp if (g0 <= gi < g0 + 17 * sp and (gi - g0) % sp == 0) else None
        if OPT.get('diag') in (8, 11): sidx = None
        gap = 0
        if g['bar']:
            sec.at(base, L("s_barrier", need_vm=tuple(vm), need_lgkm=tuple(lg))); gap = 1
        if sidx is not None and OPT['stamps']: sec.block(base, stamp(sidx))
        pairs = []
        for n_ in range(gi + 1, min(NG, gi + 3)):
            if rdg(n_) == gi: pairs += frag_reads(n_)
        hr = []
        if g['xr'] and g['tau'] == 2:
            xa_, xb_ = x_reads(g['xr'][0], 0), x_reads(g['xr'][0], 1)
            sec.stream(flat([xa_[0], xb_[0], xa_[1], xb_[1]]), base + 1, end + 10, "", None, OPT.get('xsp', 2))
        hr += [h_read(n_, "h%d" % (n_ // 24)) for n_ in hq.get(gi, [])] + [h_read(n_, "r%d" % (n_ // 24)) for n_ in qq.get(gi, [])]
        dm = [mkdma(k) for k in g['dma']] + [mkx(*k) for k in xd.get(gi, [])]
        lo, hi = gap + 1, nm - 2
        dpos = [lo + ((2 * k_ + 1) * (hi - lo + 1)) // (2 * len(dm)) for k_ in range(len(dm))]
        for k_ in range(1, len(dm)): dpos[k_] = max(dpos[k_], dpos[k_ - 1] + 2)
        for k_ in range(len(dm) - 1, -1, -1): dpos[k_] = min(dpos[k_], hi if k_ == len(dm) - 1 else dpos[k_ + 1] - 2)
        assert not dm or dpos[0] >= lo, (gi, dpos)
        for ps_, it in zip(dpos, dm):
            if isinstance(it[0], list): sec.block(base + ps_ - 1, it[0])
            else: sec.at(base + ps_ - 1, it[0])
            sec.at(base + ps_, it[1])
        fr = [x for x in range(gap, nm) if x not in dpos]
        if g['kind'] == 'P2': sel = fr[0:2 * len(pairs):2]
        else: sel = [fr[(k_ * len(fr)) // len(pairs)] for k_ in range(len(pairs))] if pairs else []
        for ps_, it in zip(sel, pairs): sec.at(base + ps_, it)
        if hr: sec.stream(hr, base + gap, end - (5 if nm > 12 else 1), "", None, 1)
        if OPT.get('diag') == 11:
            g0 = OPT.get('g0', 0); sp = OPT.get('gs', 3)
            li = (gi - g0) // sp
            if gi >= g0 and (gi - g0) % sp == 0 and li < 58:
                li = 3 + li if li < 17 else 16 + li + (2 if li >= 17 else 0)
                fg = [x for x in fr if not sec.sc.get(base + x) and x < nm - 3][0]
                if li < 63 and li not in (52, 53):
                    sec.at(base + fg, Ins("s_memtime s[4:5]", 'salu', [], S(4, 2)))
                    sec.block(base + nm - 2, L("v_writelane_b32 v%d, s4, %d" % (VST[0], li)))
                    print("light", li, gi, base + fg, file=sys.stderr)
        if gi == 6:
            q = F("s_cmp_lg_u32 s2, 0\ns_cbranch_scc1 L_zf_KN") + L("v_mov_b32 v31, 1", opt="zf")
            sec.block(end - 1, q + F("buffer_store_dword v31, v%d, {DBG}, 0 offen sc1" % V_M0, opt="zf") + L("L_zf_KN:"))
        if gi == 19: sec.block(end - 1, F("s_cmp_lg_u32 {C}, 0\ns_cbranch_scc1 L_nw2_KN") + nyw_store(TMP + 24, TMP + 25, 31, "nw2") + L("L_nw2_KN:"))
        if gi == OPT.get('clat', -1):
            q0, q1 = clears(V_SIL if gi < 0 else TMP + 16)
            sec.stream(q0, end, end + 30, "cl0")
            sec.stream(q1, end, end + 400, "cl1", "cl0", OPT.get('csp', 30))
        if gi == 27: sec.stream(twiddle_A(TWA, SET[3] + 8, range(OPT.get('ntw', 3), 4)), end, end + 46, "twA")
        if gi == 32: sec.stream(sA_front(SET[2], SET[3] + 8, TP) + L("v_mov_b32 v%d, v%d" % (TMP + 24, TP + 4)) + sA_dest(ENV['g'], ENV['C'], None), base + 10, base + 37, "sAf", "twA")
        if gi == PS['G1'] - 1:
            e2 = dict(e); e2.update(t0=TMP + 20, t1=TMP + 21)
            sw = F("""v_lshrrev_b32 v{RX}, 2, v1
v_lshl_add_u32 v{RX}, v2, 3, v{RX}
v_lshlrev_b32 v{RX}, 6, v{RX}
v_and_b32 v{t0}, 3, v1
v_lshl_add_u32 v{RX}, v{t0}, 3, v{RX}
v_and_b32 v{t1}, 1, v2
v_xor_b32 v{t1}, {FH}, v{t1}
v_lshl_add_u32 v{RX}, v{t1}, 5, v{RX}
v_lshrrev_b32 v{RX1}, 2, v1
v_lshl_add_u32 v{RX1}, v2, 2, v{RX1}
v_bfe_u32 v{t1}, v{RX1}, 1, 2
v_xor_b32 v{t1}, {W}, v{t1}
v_lshlrev_b32 v{RX1}, 7, v{RX1}
v_lshl_add_u32 v{RX1}, v{t1}, 5, v{RX1}
v_lshl_add_u32 v{RX1}, v{t0}, 3, v{RX1}
v_add_u32 v{d8}, 0x400, v{DD}
s_and_b32 {u}, {C}, 1
v_lshl_add_u32 v{DD}, {u}, 9, v{DD}
v_mov_b32 v{one}, 1""", d8=V_D8, one=V_ONE, **e2)
            for b in (V_RX, V_RX + 3): sw += L("v_add_u32 v%d, 0x10000, v%d\nv_add_u32 v%d, 0x20000, v%d" % (b + 1, b, b + 2, b))
            sw += F("s_cmp_eq_u32 {W}, 0\ns_cselect_b32 {PE1}, 1, 0\ns_lshr_b32 {PO1}, {C}, 1\ns_lshl_b32 {PO1}, {PO1}, 7\ns_add_u32 {PO1}, {PO1}, %d\ns_add_u32 {PO2}, {T}, 34\ns_cmp_lt_u32 {KB1}, 16\ns_cselect_b32 {PO2}, {PO2}, 8\ns_lshl_b32 {PO2}, {PO2}, 7\ns_add_u32 {PO2}, {PO2}, %d" % (WS_C, WS_C))
            for m_ in sA_mfma(SET[2], TWA, SET[3] + 8): sec.mfma(m_)
            end = sec.n()
            blk = F("s_cmp_lt_u32 {KB1}, 16\ns_cbranch_scc1 L_x1_KN")
            o = "x1"; s1 = Sec2(); XS = SET[3] + 8; XFr = SET[3] + 24; XD = FBUF(gi)
            s1.pre = t_setup(TP, ENV['KB1'], opt=o) + sA_back(SET[2], XD, TMP + 24, XD + 8, 8704, ENV['a'], ENV['b'], opt=o) + t_frag(0, XFr, XS, TP, opt=o)
            for kk in range(9):
                b0 = s1.n()
                for hh in range(2):
                    for mi in range(4):
                        acc = V(SET[2] + 16 * hh + 4 * mi, 4)
                        s1.mfma(mf(acc, XF(mi, kk + 9 * hh), V(XFr + 4 * (kk & 1), 4), acc if kk else None, o))
                if kk < 8: s1.stream(t_frag(kk + 1, XFr + 4 * ((kk + 1) & 1), XS, TP, opt=o), b0, b0 + 6)
                if kk == 2: s1.at(b0 + 7, L("s_barrier", need_lgkm=("sa",), opt=o))
                if kk == 3: s1.at(b0 + 7, sA_read(XD, XD + 8, 8704, opt=o))
                if kk == 8: s1.stream(sA_store(XD, ENV['g'], opt=o) + sA_dest(ENV['g'], ENV['KB1'], None, opt=o), b0, b0 + 7)
            blk += s1.flatten() + sA_front(SET[2], SET[3] + 8, TP, opt=o) + sA_mfma(SET[2], TWA, SET[3] + 8, opt=o) + L("L_x1_KN:")
            sec.block(end - 1, blk)
            sec.block(end + 4, sA_ny(SET[2], TMP + 10))
            sec.stream(sA_back(SET[2], TMP, TMP + 24, TMP + 8, 0, ENV['u'], ENV['w']), end + 5, end + 56, "sAb")
            sec.stream(sA_read(TMP, TMP + 8, 0), end + 12 * (gar - gi - 1) + 1, end + 12 * (gar - gi - 1) + 6, "sAr", "sAb")
            sec.stream(sA_store(TMP, ENV['g']), end + 12 * (gar - gi - 1) + 14, end + 12 * (gar - gi - 1) + 26, "sAs", "sAr")
            for i in sw: Ins.seq += 1; i.id = Ins.seq
            sec.stream(sw, end + 5, end + 130, "sw", "sAb")
            sec.stream(poll(VP, "0", "DBG"), end, end + 12, "p0")
            sec.stream(silu_a(SET[0]), end, end + 200, "a0")
            sec.stream(silu_b(SET[0], SET[1], 0), end + 145, end + 286, "b0", "a0")
            sec.stream(h_out(SET[1], 0), end + 12 * (OPT.get('o0at', 48) - 36), end + 428, "o0", "b0", HSP)
        if g['kind'] == 'P1' and g['sl'] == 5 and g['ap'] == 1:
            ps = g['ps']
            if ps == 'G1': sec.stream(silu_a(SET[3]), end + 2, end + 287 + 12 * (gc1 - PS['U2']) - 40, "a1", "a0")
            if ps == 'U1':
                sec.stream(silu_b(SET[3], SET[2], 1), end + 2, end + 143 + 12 * (gc1 - PS['U2']), "b1", "a1")
                sec.stream(h_out(SET[2], 1), end + 12 * (OPT.get('o1at', 82) - 60), end + 284, "o1", "b1,o0", HSP)
            if ps == 'G2': sec.stream(silu_a(SET[0]), end + 2, end + 380, "a2", "a1")
            if ps == 'U2':
                sec.stream(silu_b(SET[0], SET[1], 2), end + 2, end + 286, "b2", "a2")
                sec.stream(h_out(SET[1], 2), end + 12 * (OPT.get('o2at', 84) - 84), end + 260, "o2", "b2", min(20, HSP))
            if ps == 'G3': sec.stream(silu_a(SET[3]), end + 2, end + 144 + OPT.get('a3e', 100), "a3", "a2")
            if ps == 'U3':
                sec.stream(silu_b(SET[2], SET[3], 3), end + 2, end + 144 + 22, "b3", "a3")
                sec.stream(h_out(SET[3], 3), end + 2, end + 144 + 100, "o3", "b3,o2", min(16, HSP))
        if g['kind'] == 'PH' and g['gi'] == 5:
            if g['half'] == 0: sec.stream(silu_a(SET[0], 16), end + 2, end + 72 + 46, "aH", "a3")
            else: sec.stream(silu_bH(SET[0]), end + 2, end + 62, "bH", "aH")
        for it in range(NEV):
            if gi == PS['G1'] + OPT.get('pfd0', 8) + (it * OPT.get('pfs', 36)) // NEV: sec.stream(pfw(it), base, base + 10, "pf%d" % it)
        if gi == PS['G3'] + OPT.get('pfh', 1):
            q = F("""s_lshr_b32 {f}, {T}, 1
s_lshl_b32 {g}, {W}, 3
s_add_u32 {f}, {f}, {g}
v_lshl_add_u32 v{r}, v0, 5, {f}
v_mul_u32_u24 v{r}, 9216, v{r}
s_or_b32 {f}, {C}, 1
s_mul_i32 {f}, {f}, 576
s_and_b32 {g}, {C}, 1
s_cmp_eq_u32 {g}, 0
s_cselect_b32 s8, s12, s16
s_cselect_b32 s9, s13, s17
s_mov_b32 s10, %d
s_mov_b32 s11, 0x20000
buffer_load_dword v{r}, v{r}, s[8:11], {f} offen""" % (576 * 9216), r=TMP + 16)
            sec.stream(q, base, base + 30, "pfh")
        if gi in CPF:
            r = CPF[gi]
            q = vaddr64(F("""s_lshr_b32 {c}, s2, 3
s_lshl_b32 {c}, {c}, 2
s_add_u32 {c}, {c}, {W}
s_lshl_b32 {c}, {c}, %d
v_lshl_add_u32 v{r}, v0, %d, {c}
s_getpc_b64 s[84:85]
v_mov_b32 v{r1}, s85
v_add_co_u32 v{r}, vcc, s84, v{r}
v_addc_co_u32 v{r1}, vcc, 0, v{r1}, vcc""" % ((8, 2) if OPT.get('cw', 1) else (7, 1)), r=r, r1=r + 1))
            q.append(Ins("global_load_ubyte v%d, v[%d:%d], off" % (r, r, r + 1), 'vmem', V(r, 2), V(r, 1)))
            sec.stream(q, base + 2, base + 22, "cp%d" % gi)
        if gi == ga1: sec.stream(signal(ENV['PO1']) + signal(ENV['PO2']), base + 1, base + 11, "ar1")
        for r_, (gam, wo) in enumerate((('GA', 'WA'), ('GB', 'WB'))):
            if gi == PS['U1'] + OPT.get('w%dat' % r_, 1 + 12 * r_): sec.stream(s2_wloads(ENV[gam], ENV[wo], S2W[r_], TMP + 16, TMP + 17), base, base + 22, "w%d" % r_)
        if gi == gc1 - 6:
            q = F(kbx('PO1', 'GA', 0) + kbx('PO2', 'GB', 0)) + poll(VP, ENV['PO1']) + poll(VP + 1, ENV['PO2'])
            q += F("s_cmp_gt_u32 {GA}, 288\ns_cselect_b32 {PE1}, 0, 32\ns_cmp_gt_u32 {GB}, 288\ns_cselect_b32 {PE2}, 0, 32\n" + W0)
            sec.stream(q[:18], base - 50, base - 4, "p1a")
            sec.stream(q[18:20], base + OPT.get('p1d', 0), base + OPT.get('p1d', 0) + 8, "p1", "p1a")
            sec.stream(q[20:], base - 50, base + 60, "p1b", "p1")
        if gi == gc1:
            sec.block(base, F("s_cmp_lg_u32 {GB}, 288\ns_cbranch_scc1 L_s2n_KN") + s2_wspecial(S2W[1], TMP + 16, TMP + 17, "s2n") + L("L_s2n_KN:"))
            q = s2_gaddr(S2T + 6, S2T + 7, False) + s2_dloads(ENV['GA'], ENV['SA'], S2D[0], S2T + 6, S2T + 7) + s2_dloads(ENV['GB'], ENV['SB'], S2D[1], S2T + 6, S2T + 7)
            sec.stream(q, base + 1, base + 30, "dl", "b1")
            sec.stream(dft32(M2, TMP + 16, False) + s2_addr(S2T, S2L, False), base + 2, base + 12 * (gS2 - gi) + 10, "s2pre", "dl")
        if gi == gS2:
            R0 = (ENV['SA'], S2D[0], lambda i: Z2 + i, S2W[0], ENV['a'], ENV['b'])
            R1 = (ENV['SB'], S2D[1], lambda i: fb + i if i < 12 else TMP + 8 + i, S2W[1], ENV['c'], ENV['d'])
            blk = F("s_cmp_gt_u32 {GA}, 288\ns_cbranch_scc1 L_s2e_KN\ns_cmp_gt_u32 {GB}, 288\ns_cbranch_scc0 L_s2d_KN")
            blk += s2_compute([R0], M2, S2T, TMP + 16, S2L, "ex1") + L("s_branch L_s2e_KN", opt="ex1") + L("L_s2d_KN:")
            blk += s2_compute([R0, R1], M2, S2T, TMP + 16, S2L, "ex2") + L("L_s2e_KN:")
            sec.block(end - 1, blk)
            q = F(kbx('PO1', 'GA', 9) + kbx('PO2', 'GB', 9))
            q += F("""s_lshl_b32 {u}, {FH}, 3
s_lshl_b32 {w}, {RG}, 12
s_add_u32 {u}, {u}, {w}
v_add_u32 v{HH}, {u}, v{L16B}
s_lshl_b32 {u}, {T}, 1
s_and_b32 {w}, {C}, 1
s_add_u32 {u}, {u}, {w}
s_lshl_b32 {u}, {u}, 19
s_lshl_b32 {w}, {W}, 15
s_add_u32 {u}, {u}, {w}
s_lshr_b32 {w}, {C}, 1
s_lshl_b32 {w}, {w}, 10
s_add_u32 {u}, {u}, {w}
v_add_u32 v{VST_}, {u}, v{L16}
s_lshl_b32 {XA}, {T}, 7
s_lshl_b32 {SB}, {C}, 2
s_add_u32 {XA}, {XA}, {SB}
s_add_u32 {XA}, {XA}, %d
s_xor_b32 {SB}, {XA}, 4
s_cmp_eq_u32 {W}, 0
s_cselect_b32 {SM_}, 1, 0""" % CL(50), **e)
            sec.stream(q[:18], end, end + 12 * (ga2 - gi - 1) - 2, "a2s")
            sec.stream(q[18:], end + 90, end + 200, "a2t", "a2s")
        if gi == ga2: sec.stream(signal(ENV['PO1']) + signal(ENV['PO2']) + (signal(ENV['XA']) if QP else []), base + 1, base + 14, "ar2")
        if gi == gq0 - 6 and QP:
            q = poll(VP + 2, ENV['SB']) + F("""s_xor_b32 {u}, {C}, 1
s_sub_u32 {w}, {u}, {C}
s_mul_i32 {w}, {w}, 73728
s_add_u32 {w}, {w}, {HB}
s_lshl_b32 {u}, {W}, 12
s_add_u32 {w}, {w}, {u}
v_and_b32 v{r}, 31, v0
v_lshlrev_b32 v{r}, 7, v{r}
v_add_u32 v{r}, {w}, v{r}
s_movk_i32 {u}, 0x4000""", r=TMP + 17)
            sec.stream(q, base, base + 60, "pq00")
        if gi == gq0 and QP:
            sec.stream(F("buffer_load_dword v%d, v%d, {WS}, 0 offen sc1" % (TMP + 18, TMP + 17)), base + 1, base + 10, "qpa")
            sec.stream(F("buffer_load_dword v%d, v%d, {WS}, {u} offen sc1\ns_lshl_b32 {SM_}, {SM_}, 1" % (TMP + 19, TMP + 17)), base + 1 + OPT.get('qpd', 48), base + 12 + OPT.get('qpd', 48), "qpb")
        if gi == gc2 - OPT.get('p2d', 8):
            q = F("s_lshr_b32 {PO1}, {C}, 1\ns_lshl_b32 {PO1}, {PO1}, 7\ns_add_u32 {PO1}, {PO1}, %d\ns_mov_b32 {PO2}, %d" % (CL(9), CL(17))) + poll(VP, ENV['PO1']) + poll(VP + 1, ENV['PO2'])
            q += F("s_cmp_lt_u32 {C}, 2\ns_cselect_b32 {PE1}, 33, 32\ns_cmp_lt_u32 {KB3}, 16\ns_cselect_b32 {PE2}, 0, 32\n" + W0)
            sec.stream(q, base - 6, base + 30, "p2")
        if gi in (gh1, gh2): sec.stream(signal(ENV['XA']), base + 1, base + 10, "sh%d" % gi)
        if gi == gc2:
            q = stepD_loads(ENV['C'], RAW)
            for i in q:
                i.text = i.text.replace(ENV['a'], ENV['f']).replace(ENV['b'], ENV['g'])
                fx = lambda lst: [('s', 38) if r == ('s', 84) else ('s', 39) if r == ('s', 85) else r for r in lst]
                i.rd = fx(i.rd); i.wr = fx(i.wr)
            sec.stream(q, base + 1, base + 40, "sdl")
        if gi == HU + 3:
            q = poll(VP + 2, ENV['SB'])
            q += F("""s_xor_b32 {u}, {C}, 1
s_sub_u32 {w}, {u}, {C}
s_mul_i32 {w}, {w}, 73728
s_add_u32 {w}, {w}, {HB}
v_add_u32 v%d, {w}, v%d
s_and_b32 {w}, {u}, 1
s_mul_i32 {u}, {u}, %d
s_mul_i32 s%d, {w}, %d
s_add_u32 s%d, s%d, {u}
s_xor_b32 {w}, {w}, 1
s_mul_i32 {w}, {w}, %d
s_add_u32 s%d, {u}, {w}""" % (VQ, V_L16, 288 * 1152, S_KK, 32 * 1152, S_KK, S_KK, 256 * 1152, S_KK + 8))
            for ks in range(1, 8): q += L("s_add_u32 s%d, s%d, %d" % (S_KK + ks, S_KK, ks * 32 * 1152))
            sec.stream(q[:6], base - 6, base + 20, "pq0")
            sec.stream(q[6:], base + 6, base + 130, "pq1", "pq0")
        if gi == P2 + 1:
            blk = F("s_lshl_b32 {a}, {S2}, 12\ns_add_u32 {a}, {a}, %d\ns_cmp_lg_u32 {C}, 0\ns_cbranch_scc1 L_nyl_KN" % WS_B) + stepD_nyloads(RA2, SDT, "nyl") + L("L_nyl_KN:")
            blk += F("s_cmp_lt_u32 {KB3}, 16\ns_cbranch_scc1 L_d2l_KN") + stepD_loads(ENV['KB3'], RA2, opt="d2l") + L("L_d2l_KN:")
            sec.block(base, blk)
        if gi == P2 + 3:
            q = F("s_lshl_b32 {d}, {W}, 11\nv_add_u32 v%d, {d}, v%d" % (V_HH, V_L16B))
            q += L("ds_read_b128 v[%d:%d], v%d\nds_read_b128 v[%d:%d], v%d offset:1024" % (V_SIL, V_SIL + 3, V_HH, V_SIL + 4, V_SIL + 7, V_HH), lds_r=(65536, 73728), tag="lds")
            sec.stream(q, base + 1, base + 16, "hh1", "bH")
            q = F("buffer_store_dwordx4 v[%d:%d], v%d, {WS}, {HB} offen sc1\nbuffer_store_dwordx4 v[%d:%d], v%d, {WS}, {HB} offen offset:1024 sc1"
                  % (V_SIL, V_SIL + 3, V_HH, V_SIL + 4, V_SIL + 7, V_HH), tag="gh2")
            sec.stream(q, base + 20, base + 34, "hh2", "hh1")
            sec.stream(twiddle_D(SET[0], SET[0] + 16), base, base + 24 * (gSD - gi) + 68, "twD", "pq1,bH")
        if gi == gSD:
            SD = stepD_parts(RAW, RA2, NB, SET[0], SET[0] + 16, SDT, 18 * 4096, ENV['C'], ENV['SA'])
            sec.stream(SD[0], base + 1, base + 54, "sd0")
            sec.stream(SD[1], base + 60, base + 69, "sd1", "sd0")
        if gi == gSD + 2:
            for m_ in SD[2]: sec.mfma(m_)
            sec.block(sec.n() - 1, SD[3])
            for m_ in SD[4]: sec.mfma(m_)
            sec.stream(SD[5], sec.n() + 2, sec.n() + 44, "sd5")
        if gi == gSD + 4:
            blk = F("s_cmp_lt_u32 {KB3}, 16\ns_cbranch_scc1 L_d2_KN")
            for part in stepD_parts(RA2, None, NB, SET[0], SET[0] + 16, SDT, 18 * 4096, ENV['KB3'], ENV['SA'], opt="d2"): blk += part
            sec.block(end - 1, blk + L("L_d2_KN:"))
        if gi == gq2 - 2: sec.stream(F("s_lshr_b32 {SM_}, {SM_}, 1\ns_mul_i32 {SM_}, {SM_}, 3" if QP else "s_lshl_b32 {SM_}, {SM_}, 1") + poll(VP + 2, ENV['SB']), base + 1, base + 8, "pq2")
        if gi == gf8 - 1:
            q = F("""s_lshl_b32 {PO1}, {T}, 7
s_add_u32 {PO1}, {PO1}, %d
s_cmp_eq_u32 {W}, 0
s_cselect_b32 {PE1}, 16, 0
s_lshr_b32 {PE2}, {C}, 2
s_lshl_b32 {u}, {T}, 2
s_add_u32 {u}, {u}, {PE2}
s_mul_i32 {u}, {u}, 36864
s_add_u32 {u}, {u}, %d
v_add_u32 v%d, {u}, v%d""" % (CL(18), WS_Y, VY, V_L16))
            sec.stream(q, base - 20, base + 22, "f8s")
        if gi == gf8: sec.stream(signal(ENV['PO1']), base + 1, base + 12, "f8")
        if gi == gY - 3: sec.stream(poll(VP, ENV['PO1']), base + 1, base + 12, "p8")
        if gi == gY + OPT.get('l8d', 0):
            q = F("""s_and_b32 {u}, {C}, 3
s_lshl_b32 {u}, {u}, 2
s_add_u32 {u}, {u}, {PE2}
s_lshl_b32 {w}, {T}, 4
s_add_u32 {u}, {u}, {w}
s_lshl_b32 {u}, {u}, 2
s_add_u32 {u}, {u}, {W}
s_lshl_b32 {u}, {u}, 12
s_add_u32 {u}, {u}, %d""" % WS_8)
            for i in range(4): q += F("buffer_load_dwordx4 v[%d:%d], v%d, {WS}, {u} offen offset:%d sc1" % (TMP + 4 * i, TMP + 4 * i + 3, V_L16, i * 1024))
            q += F("""s_lshl_b32 {u}, {T}, 1
s_and_b32 {w}, {C}, 1
s_add_u32 {u}, {u}, {w}
s_lshl_b32 {PO1}, {u}, 7
s_add_u32 {PO1}, {PO1}, %d
s_lshr_b32 {PE1}, {PE1}, 1
s_lshl_b32 {XA}, {u}, 2
s_add_u32 {XA}, {XA}, {RG}
s_lshl_b32 {XA}, {XA}, 2
s_and_b32 {w}, {C}, 2
s_add_u32 {XA}, {XA}, {w}
s_add_u32 {XA}, {XA}, {FH}
s_lshl_b32 {XA}, {XA}, 2
s_add_u32 {XA}, {XA}, {PE2}
s_lshl_b32 {XA}, {XA}, 13
s_add_u32 {XA}, {XA}, %d""" % (CL(66), WS_P))
            sec.stream(q[:9], base - 20, base + 4, "l8a", "f8s")
            sec.stream(q[9:13], base + 1, base + 40, "l8b", "l8a", OPT.get('lsp', 6))
            sec.stream(q[13:], base, base + 120, "l8", "l8b")
        if gi == gfa: sec.stream(signal(ENV['PO1']), base + 1, base + 8, "fa")
        if gi == NG - 1 and OPT.get('pae'): sec.stream(poll(VP, ENV['PO1']), base + 4, base + 7, "pA", "fa")
        if g['kind'] == 'P2' and g['gi'] == 2 and g['cb'] in (0, 5, 6, 7, 8):
            cb = g['cb']
            for ip in range(4 if cb < 8 else 3):
                osp = OPT.get('osp', 12)
                st0 = base + 6 * ip + 8 if cb in (0, 8) else base + 8 + osp * ip + (4 * osp - 24 if cb == 6 and IL else 0)
                sec.stream(out_ops(cb, [ip]), st0, min(end - 1, st0 + 6) if cb == 8 else st0 + OPT.get('ow', 12), "out%d%s" % (cb, "" if ip == 3 else "abc"[ip]), ("out%d%s" % (cb, "abc"[ip - 1])) if ip else "out%d" % (cb - 1))
            if cb == 5: sec.stream(TL.pre1(), end, end + 130, "tp1", "out5,tp0")
            if cb == 6: sec.stream(TL.pre2(), end, end + 130, "tp2", "out6,tp1,l8,gl")
        if gi == P2 + 9: TL = Tail(out_ops, 0, VP); sec.stream(TL.pre0(), base, base + 180, "tp0")
        if gi == gY: sec.stream(TL.gl(), base + 1, base + 60, "gl", "tp0")
    p += sec.flatten(verbose=True)
    p += ([] if OPT.get('diag') == 8 else stamp(20)) + TL.main()
    p += stamp_out(2)
    emit(a, name, p, 512, accum=256)

class Tail:
    def __init__(self, out_ops, YB, VP):
        self.out_ops, self.YB, self.VP = out_ops, YB, VP
        self.ST = [SET[2], SET[2] + 16, SET[1]]
        self.FR = [SET[1] + 16, SET[1] + 24, FB + 24]
        self.CO, self.KD, self.VG4, self.G8, self.VS, self.SEL = [7, 8, 9], [10, 11, 12], 13, 14, 15, 24
        self.GV, self.VO, self.V8, self.VO8 = TMP + 16, 30, 31, 19
    def seeds(self, pc, n):
        cur = self.ST[pc] + 8 * n; g4 = self.G8 if pc == 2 else self.VG4; q = []
        for j in range(4): q += L("v_add_f32 v%d, %s, v%d" % (cur + j, f2h(16.0 * n + j), g4))
        for j in range(4): q += F("v_fma_f32 v%d, v%d, v%d, {Q}\nv_mul_f32 v%d, v%d, v%d" % (cur + 4 + j, cur + j, self.KD[pc], cur + j, cur + j, self.KD[pc]))
        for j in range(8): q += L("v_cos_f32 v%d, v%d" % (cur + j, cur + j))
        return q
    def frag(self, pc, n):
        cur = self.ST[pc] + 8 * (n & 1); prv = self.ST[pc] + 8 * ((n + 1) & 1); f = self.FR[pc] + 4 * (n & 1); q = []
        if n >= 2:
            for j in range(8): q += L("v_fma_f32 v%d, v%d, v%d, -v%d" % (cur + j, self.CO[pc], prv + j, cur + j))
        if n == 0:
            q += L("v_cmp_eq_f32 vcc, 0, v%d" % (self.G8 if pc == 2 else self.VG4))
            q += L("v_cvt_pk_bf16_f32 v%d, v%d, v%d\nv_cvt_pk_bf16_f32 v%d, v%d, v%d" % (f + 1, cur + 2, cur + 3, f + 3, cur + 6, cur + 7))
            q += L("v_cndmask_b32 v%d, v%d, 0.5, vcc\nv_cndmask_b32 v%d, v%d, v%d, vcc" % (f, cur, f + 2, cur + 4, self.VS))
            q += L("v_cvt_pk_bf16_f32 v%d, v%d, v%d\nv_cvt_pk_bf16_f32 v%d, v%d, v%d" % (f, f, cur + 1, f + 2, f + 2, cur + 5))
        else:
            for jp in range(4): q += L("v_cvt_pk_bf16_f32 v%d, v%d, v%d" % (f + jp, cur + 2 * jp, cur + 2 * jp + 1))
        return q
    def pre0(self):
        KD, CO, SEL, GV = self.KD, self.CO, self.SEL, self.GV
        p = F("""s_and_b32 {d}, {C}, 3
s_lshl_b32 {d}, {d}, 4
s_and_b32 {e}, {C}, 1
s_lshl_b32 {e}, {e}, 2
s_add_u32 {e}, {e}, {RG}
s_lshl_b32 {e}, {e}, 2
s_and_b32 {a}, {C}, 2
s_add_u32 {e}, {e}, {a}
s_add_u32 {e}, {e}, {FH}
s_lshl_b32 {e}, {e}, 4
v_add_u32 v{ka}, {e}, v1
v_add_u32 v{kb_}, 0x80, v{ka}
v_add_u32 v{kc}, {d}, v1
v_add_u32 v{kc}, 0x200, v{kc}
v_and_b32 v{vs}, 1, v1
v_lshlrev_b32 v{vs}, 31, v{vs}
v_or_b32 v{vs}, 0.5, v{vs}
v_lshlrev_b32 v{g4}, 2, v2
v_cvt_f32_u32 v{g4}, v{g4}
s_mul_i32 {a}, {W}, 80
v_cvt_f32_u32 v{g8}, {a}
v_add_f32 v{g8}, v{g8}, v{g4}""", ka=KD[0], kb_=KD[1], kc=KD[2], vs=self.VS, g4=self.VG4, g8=self.G8)
        for i in range(3): p += L("v_cvt_f32_u32 v%d, v%d\nv_mul_f32 v%d, %s, v%d" % (KD[i], KD[i], CO[i], f2h(1.0 / 36), KD[i]))
        for i in range(3): p += L("v_cos_f32 v%d, v%d" % (CO[i], CO[i]))
        for i in range(3): p += L("v_mul_f32 v%d, %s, v%d\nv_add_f32 v%d, v%d, v%d" % (KD[i], f2h(1.0 / 576), KD[i], CO[i], CO[i], CO[i]))
        p += L("""v_lshrrev_b32 v{a}, 2, v1
v_cmp_eq_u32 vcc, v{a}, v2
v_and_b32 v{b}, 1, v1
v_lshlrev_b32 v{b}, 4, v{b}
v_mov_b32 v{a}, 0x3f80
v_lshlrev_b32 v{b}, v{b}, v{a}
v_cndmask_b32 v{b}, 0, v{b}, vcc
v_and_b32 v{a}, 2, v1
v_cmp_eq_u32 vcc, 0, v{a}
v_mov_b32 v{s0}, 0
v_mov_b32 v{s1}, 0
v_cndmask_b32 v{s2}, 0, v{b}, vcc
v_cndmask_b32 v{s3}, v{b}, 0, vcc
v_mov_b32 v{s4}, 0
v_mov_b32 v{s5}, 0""".format(a=SEL + 4, b=SEL + 5, s0=SEL, s1=SEL + 1, s2=SEL + 2, s3=SEL + 3, s4=SEL + 4, s5=SEL + 5))
        return p
    def gl(self):
        GV = self.GV
        return F("""s_lshl_b32 {a}, {T}, 9
s_lshl_b32 {b}, {PE2}, 7
s_add_u32 {a}, {a}, {b}
s_add_u32 {a}, {a}, %d
s_add_u32 {b}, {a}, %d
v_lshlrev_b32 v{t}, 2, v1
buffer_load_dword v{g}, v{t}, {WS}, {a} offen sc1
buffer_load_dword v{g1}, v{t}, {WS}, {a} offen offset:64 sc1
buffer_load_dword v{g2}, v{t}, {WS}, {b} offen sc1
buffer_load_dword v{g3}, v{t}, {WS}, {b} offen offset:64 sc1""" % (WS_G, WS_O - WS_G), t=self.VO, g=GV, g1=GV + 1, g2=GV + 2, g3=GV + 3)
    def pre1(self):
        return self.seeds(0, 0) + self.seeds(0, 1) + self.seeds(1, 0) + self.seeds(1, 1)
    def pre2(self):
        p = self.seeds(2, 0) + self.seeds(2, 1)
        for pc in range(3): p += self.frag(pc, 0) + self.frag(pc, 1)
        sc_ = f2h(2.0 / (2048 * 576))
        p += F("""v_mul_f32 v{g}, %s, v{g}
v_mul_f32 v{g1}, %s, v{g1}
v_and_b32 v{o}, 31, v0
v_mul_u32_u24 v{o}, %d, v{o}
v_lshrrev_b32 v{t}, 5, v0
v_lshl_add_u32 v{o}, v{t}, 4, v{o}
s_and_b32 {a}, {PE2}, 1
s_lshl_b32 {a}, {a}, 10
s_lshr_b32 {b}, {PE2}, 1
s_add_u32 {a}, {a}, {b}
s_lshl_b32 {b}, {T}, 1
s_add_u32 {a}, {a}, {b}
s_mul_i32 {a}, {a}, 1152
s_lshl_b32 {d}, {d}, 1
s_add_u32 {d}, {d}, {a}
s_lshl_b32 {e}, {e}, 1
s_add_u32 {e}, {e}, {a}
s_mul_i32 {a}, {W}, 10240
v_add_u32 v{t}, {a}, v{l}
s_cmp_eq_u32 {W}, 0
s_cselect_b32 {a}, 0, 0x80000000
v_or_b32 v{o8}, {a}, v{o}
s_add_u32 {SA}, {XA}, 262144
s_add_u32 {SB}, {XA}, 266240""" % (sc_, sc_, 32 * 1152), g=self.GV, g1=self.GV + 1, o=self.VO, t=self.V8, l=V_L16, o8=self.VO8)
        return p
    def main(self):
        YB, VP, FR, SEL, GV, V8 = self.YB, self.VP, self.FR, self.SEL, self.GV, self.V8
        SENT = OPT.get('sent')
        YF = 224; AC = [240, 248, SET[3]]
        SMQ = lambda pc, h: SET[3] + 8 + 8 * pc + 4 * h
        PAr = lambda i: A(4 * i, 4)
        PBr = lambda i: V(FB + 4 * i, 4) if i < 6 else V(TMP + 4 * (i - 6), 4)
        P8r = lambda i: V(TMP + 4 * i, 4)
        yr = (YB, YB + 36864)
        def yrd(n, va, o):
            r = YF + 8 * (n & 1)
            return L("ds_read_b128 v[%d:%d], v%d offset:%d\nds_read_b128 v[%d:%d], v%d offset:%d" % (r, r + 3, va, o, r + 4, r + 7, va, o + 1024), lds_r=yr)
        def pload(regs, i):
            q = F("buffer_load_dwordx4 %s, v%d, {WS}, {XA} offen offset:%d sc1" % (rs(regs), V_L16, (i % 4) * 1024))
            return q + (F("s_add_u32 {XA}, {XA}, 4096") if i % 4 == 3 else [])
        def summ(pc, regs, first):
            return [mf(V(SMQ(pc, h), 4), V(SEL + 2 - 2 * h, 4), regs, None if first else V(SMQ(pc, h), 4)) for h in range(2)]
        def combine(pc): return [I("v_mul_f32 v%d, v%d, v%d" % (AC[pc] + r, AC[pc] + r, GV + (r >> 2))) for r in range(8)]
        def combine2(pc): return [I("v_fma_f32 v%d, v%d, v%d, v%d" % (AC[pc] + r, SMQ(pc, r >> 2) + (r & 3), GV + 2 + (r >> 2), AC[pc] + r)) for r in range(8)]
        def store(b, so, off, va):
            q = []
            for d in range(4): q += L("v_cvt_pk_bf16_f32 v%d, v%d, v%d" % (b + d, b + 2 * d, b + 2 * d + 1))
            q += L("v_permlane16_swap_b32 v%d, v%d\nv_permlane16_swap_b32 v%d, v%d" % (b, b + 2, b + 1, b + 3))
            return q + F("buffer_store_dwordx4 v[%d:%d], v%d, {OUT}, %s offen offset:%d%s" % (b, b + 3, va, so, off, OPT.get('ofl', "")))
        p = ts(3) + yrd(0, V8, YB) + yrd(1, V8, YB + 2048) + self.out_ops(8, [3]) + ([] if OPT.get('pae') else poll(VP, ENV['PO1'])) + ts(4)
        for i in range(4): p += summ(2, P8r(i), i == 0)
        for n in range(5):
            o = "q8" if n >= 3 else False
            if n == 3: p += F("s_cmp_eq_u32 {W}, 3\ns_cbranch_scc1 L_q8_KN")
            q = []
            if n == 3: q += yrd(3, V8, YB + 3 * 2048) + yrd(4, V8, YB + 4 * 2048) + self.frag(2, 3)
            for h in range(2):
                acc = V(AC[2] + 4 * h, 4)
                q.append(mf(acc, V(FR[2] + 4 * (n & 1), 4), V(YF + 8 * (n & 1) + 4 * h, 4), acc if n else None))
            if n == 0: q += yrd(2, V8, YB + 2 * 2048) + self.frag(2, 2)
            if n == 3: q += self.frag(2, 4)
            for i in q: i.opt = o
            p += q
        p += L("L_q8_KN:") + yrd(0, V_L16, YB)
        XB = 9 * 4096
        p += F("s_lshl_b32 {a}, {W}, 11\nv_add_u32 v%d, {a}, v%d" % (V8, V_L16)) + combine(2) + combine2(2)
        p += L("ds_write_b128 v%d, v[%d:%d] offset:%d\nds_write_b128 v%d, v[%d:%d] offset:%d" % (V8, AC[2], AC[2] + 3, XB, V8, AC[2] + 4, AC[2] + 7, XB + 1024), lds_w=(XB, XB + 8192), tag="r8")
        bl = lambda i: "buffer_load_dwordx4 %s, v%d, {WS}, {%s} offen offset:%d sc1" % (rs(PBr(i)), V_L16, "SA" if i < 4 else "SB", (i % 4) * 1024)
        sec = Sec2()
        ksB, kcB = OPT.get('ksb', 6), OPT.get('kcb', 13)
        R8 = SET[0]
        for kb in range(18):
            b0 = sec.n()
            for pc in range(2):
                for h in range(2):
                    acc = V(AC[pc] + 4 * h, 4)
                    sec.mfma(mf(acc, V(FR[pc] + 4 * (kb & 1), 4), V(YF + 8 * (kb & 1) + 4 * h, 4), acc if kb else None))
            if kb >= 14:
                for i in (2 * (kb - 14), 2 * (kb - 14) + 1):
                    for m_ in summ(0, PAr(i), i == 0): sec.mfma(m_)
            e0 = sec.n() - 1
            if kb < 17: sec.at(b0, yrd(kb + 1, V_L16, YB + (kb + 1) * 2048))
            if 1 <= kb < 17: sec.stream(self.frag(0, kb + 1) + self.frag(1, kb + 1), b0, e0)
            blk = []
            if kb == ksB:
                blk += ts(5) + check("A", VP, ENV['PO1'], ENV['PE1'], sidx=24) + ts(6) + L("s_barrier", need_vm=() if SENT else ("pB",), need_lgkm=("r8",))
                if not SENT: blk += F("s_add_u32 {PO2}, {PO1}, 4") + signal(ENV['PO2']) + poll(VP + 1, ENV['PO2'])
                blk += ts(7)
                if not OPT.get('ai', 1):
                    for i in range(8): blk += pload(PAr(i), i)
                for i in range(8): blk += L("ds_read_b128 v[%d:%d], v%d offset:%d" % (R8 + 4 * i, R8 + 4 * i + 3, V_L16, XB + i * 1024), lds_r=(XB, XB + 8192))
                blk += ts(8)
            if OPT.get('ai', 1) and ksB < kb <= ksB + 4: blk += pload(PAr(2 * (kb - ksB - 1)), 2 * (kb - ksB - 1)) + pload(PAr(2 * (kb - ksB) - 1), 2 * (kb - ksB) - 1)
            if kb == kcB:
                if not SENT: blk += check("B", VP + 1, ENV['PO2'], ENV['PE1'], sidx=25) + L("s_barrier")
                for i in range(8): blk += F(bl(i))
                blk += ts(9)
            if blk: sec.block(e0, blk)
        p += sec.flatten() + ts(12)
        for r in range(8): p += L("v_add_f32 v%d, v%d, v%d\nv_add_f32 v%d, v%d, v%d\nv_add_f32 v%d, v%d, v%d" % (R8 + r, R8 + r, R8 + 8 + r, R8 + 16 + r, R8 + 16 + r, R8 + 24 + r, R8 + r, R8 + r, R8 + 16 + r))
        p += store(R8, ENV['d'], 1024, self.VO8)
        p += combine(0) + combine2(0) + store(AC[0], ENV['e'], 0, self.VO) + combine(1)
        MX = 4
        def mx(i, acc):
            r = PBr(i)[0][1]
            if acc: return "v_max3_u32 v%d, v%d, v%d, v%d\nv_max3_u32 v%d, v%d, v%d, v%d" % (MX, MX, r, r + 1, MX, MX, r + 2, r + 3)
            return "v_max3_u32 v%d, v%d, v%d, v%d\nv_max_u32 v%d, v%d, v%d" % (MX, r, r + 1, r + 2, MX, MX, r + 3)
        for i in range(8 if SENT else 0): p += L(mx(i, i > 0))
        if SENT: p += L("v_cmp_eq_u32 vcc, -1, v%d\ns_nop 4\ns_cbranch_vccnz L_rt_KN\nL_rb_KN:" % MX)
        o = "L_rt_KN:\ns_mov_b32 s5, 0\nL_rl_KN:\ns_mov_b32 s4, 0\n"
        for i in range(8):
            o += mx(i, False) + "\nv_cmp_eq_u32 vcc, -1, v%d\ns_nop 4\ns_cbranch_vccz L_rs%d_KN\n" % (MX, i) + bl(i).format(**ENV) + "\ns_mov_b32 s4, 1\nL_rs%d_KN:\n" % i
        o += "s_add_u32 s5, s5, 1\n"
        if OPT['stamps']: o += "v_writelane_b32 v%d, s5, 25\n" % VST[0]
        o += "s_cmp_eq_u32 s4, 0\ns_cbranch_scc1 L_rb_KN\ns_waitcnt vmcnt(0)\ns_cmp_lt_u32 s5, 0x40000\ns_cbranch_scc1 L_rl_KN\ns_branch L_rb_KN"
        if SENT: SPINS.append(o)
        p += stamp(21)
        for i in range(8): p += summ(1, PBr(i), i == 0)
        p += combine2(1) + store(AC[1], ENV['e'], 256, self.VO)
        return p

if __name__ == "__main__":
    for x in sys.argv[2:]:
        k, v = x.split("=")
        OPT[k] = int(v) if v.lstrip("-").isdigit() else v.replace("_", " ")
    a = Asm()
    kernel_main(a)
    a.launches = ['; @launch grid=(256,1,1) block=(256,1,1) lds=163840']
    a(".fill 4608, 4, 0xbf800000")
    open(sys.argv[1], "w").write(a.text())
```

```python
import sys, math, struct
from asmlib import *
from fw import *

WS_A = 0x000000
WS_B = 0x300000
WS_Y = 0x3000000
WS_G = 0x600000
WS_O = 0x602000
WS_P = 0x800000
WS_C = 0x620000
WS_8 = 0x1c00000
WS_H = 0x3400000
CL = lambda n: WS_C + 128 * n
WS_N = 0x610000
KB_STRIDE = 131072
MF = "v_mfma_f32_16x16x32_bf16"
def f2h(x): return "0x%08x" % struct.unpack("<I", struct.pack("<f", x))[0]
def mf(d, a, b, c, opt=False):
    return I("%s %s, %s, %s, %s" % (MF, rs(d), rs(a), rs(b), rs(c) if c else "0"), opt=opt)
def F(text, opt=False, tag=None, **env):
    e = dict(ENV); e.update(env)
    kw = {}
    for k in ("lds_r", "lds_w", "priv", "need_vm", "need_lgkm"):
        if k in env: kw[k] = env[k]
    return L(text.format(**e), opt=opt, tag=tag, **kw)

ENV = dict(X="s[8:11]", WG="s[12:15]", WU="s[16:19]", WD="s[20:23]", WS="s[24:27]", DBG="s[28:31]", WP="s[32:35]", WA="s36", WB="s37", f="s38", g="s39", GW="s[40:43]", OUT="s[40:43]", PO1="s75", PO2="s76", PE1="s77", PE2="s78", XA="s83", HB="s46", HT="s47", S8="s44", SM_="s45",
           T="s79", C="s80", W="s81", W1K="s82", KB="s83", RG="s87", FH="s88", S2="s89", a="s84", b="s85", c="s86", d="s92", e="s93",
           Q="s94", KB3="s95", NL="s96", KB1="s97", GA="s98", GB="s99", SA="s100", SB="s101", ST="s90", SP="s91", u="s6", w="s7", ROT="s3")
S_KK, S_DK, S_XQ = 48, 66, 75
OPT = dict(stamps=False, BI=2, sc1p=True)
VST = [223]
def stamp(idx):
    if not OPT['stamps']: return []
    return L("s_memrealtime s[4:5]\ns_waitcnt lgkmcnt(0)\nv_writelane_b32 v%d, s4, %d\ns_memtime s[4:5]\ns_waitcnt lgkmcnt(0)\nv_writelane_b32 v%d, s4, %d" % (VST[0], idx, VST[0], 32 + idx))
def ts(idx):
    return stamp(idx) if OPT.get('diag') == 8 else []
def tp(idx):
    return stamp(idx) if OPT.get('diag') == 10 else []
def diag(n, idx):
    if OPT.get('diag', 0) != n: return []
    return L("s_waitcnt vmcnt(0)") + stamp(idx)
def stamp_out(kidx):
    if not OPT['stamps']: return []
    p = L("s_waitcnt vmcnt(0)") + stamp(31)
    p += F("s_cmp_lg_u32 {W}, 0\ns_cbranch_scc1 L_end_KN\ns_lshl_b32 s4, s2, 8\ns_add_u32 s4, s4, 0x%x\nv_lshlrev_b32 v0, 2, v0" % (STAMP_OFF + kidx * 262144))
    p += F("buffer_store_dword v%d, v0, {WS}, s4 offen" % VST[0])
    if OPT.get('lb') is not None:
        p += F("""s_cmp_lg_u32 s2, %d
s_cbranch_scc1 L_end_KN
v_readlane_b32 {a}, v%d, %d
v_readlane_b32 {b}, v%d, %d
s_nop 4
s_sub_u32 {a}, {b}, {a}
s_mul_i32 {a}, {a}, 10
s_min_u32 {a}, {a}, 200000
s_memrealtime s[4:5]
s_waitcnt lgkmcnt(0)
s_mov_b32 {b}, s4
L_leak_KN:
s_memrealtime s[4:5]
s_waitcnt lgkmcnt(0)
s_sub_u32 {c}, s4, {b}
s_cmp_lt_u32 {c}, {a}
s_cbranch_scc1 L_leak_KN""" % (OPT.get('lw', 5), VST[0], OPT['la'], VST[0], OPT['lb']))
    return p
def srd(d, b, n):
    return L("s_mov_b32 s%d, s%d\ns_and_b32 s%d, s%d, 0xffff\ns_mov_b32 s%d, 0x%x\ns_mov_b32 s%d, 0x20000" % (d, b, d + 1, b + 1, d + 2, n, d + 3))
def emit(a, name, prog, vg, accum=None):
    p = finish(prog)
    dr = OPT.get('drop', "")
    if 'd' in dr: p = [i for i in p if i.kind != 'dma']
    if 'b' in dr: p = [i for i in p if i.kind != 'bar']
    if 't' in dr: p = [i for i in p if not (i.kind == 'ds' and i.tag and i.tag.startswith('f'))]
    if 'v' in dr: p = [i for i in p if not getattr(i, 'silu', False)]
    if 'q' in dr: p = [i for i in p if not (i.kind == 'dma' and i.tag in ('q0', 'q1', 'q2'))]
    if 'y' in dr: p = [i for i in p if not (i.kind == 'dma' and i.tag == 'y')]
    if 'h' in dr: p = [i for i in p if i.tag not in ('gh0', 'gh1', 'gh2')]
    if '8' in dr: p = [i for i in p if i.tag != 'p8']
    if 'w' in dr: p = [i for i in p if not (i.kind == 'vmem' and 'dwordx4' in i.text and 's[32:35]' in i.text)]
    if 'P' in dr: p = [i for i in p if i.tag not in ('pA', 'pB')]
    if 'B' in dr: p = [i for i in p if i.tag not in ('pub1', 'pub2')]
    if 'L' in dr: p = [i for i in p if not (i.kind == 'vmem' and i.op == 'buffer_load_dwordx4' and 'sc1' in i.text)]
    if 'x' in dr:
        for i in p:
            if i.tag in ('gh1', 'gh2', 'pA', 'pB', 'p8', 'pub1', 'pub2'): i.text = i.text.replace(' sc1', '')
    if '1' in dr: p = [i for i in p if i.opt != 'x1']
    if '2' in dr: p = [i for i in p if i.opt != 'ex2' and not (i.kind == 'vmem' and 's37' in i.text)]
    if '3' in dr: p = [i for i in p if i.opt not in ('ex1',) or i.kind == 'br']
    if 's' in dr: p = [i for i in p if not (i.kind == 'vmem' and 's90' in i.text)]
    OOL = ("x1" if OPT.get("x1o", 1) else "", "zf", "nw2", "ny", "s2n", "nyl", "nyd", "d2l", "d2", "ex1")
    q = []; k = 0
    while k < len(p):
        i = p[k]
        if i.kind == 'br' and k + 1 < len(p) and p[k + 1].opt in OOL and not i.opt and OPT.get('ool', 1):
            o = p[k + 1].opt; j = k + 1
            while p[j].opt == o: j += 1
            op, lab = i.text.split()
            assert p[j].text == lab + ":", (p[j].text, lab)
            inv = {"s_cbranch_scc1": "s_cbranch_scc0", "s_cbranch_scc0": "s_cbranch_scc1"}[op]
            i.text = "%s L_o%s_KN" % (inv, o); q.append(i)
            body = [x.text for x in p[k + 1:j]]
            if not body[-1].startswith("s_branch"): body.append("s_branch " + lab)
            SPINS.append("L_o%s_KN:\n" % o + "\n".join(body))
            k = j
        else: q.append(i); k += 1
    p = q
    a.begin(name)
    for i in p: a(i.text.replace("KN", name))
    a("L_end_%s:\ns_endpgm" % name)
    for t in SPINS: a(t.replace("KN", name))
    a("L_last_%s:\ns_endpgm" % name)
    a.end(name, vg, accum=accum)
    print(name, stats(p), file=sys.stderr)

def PL(): return (16384, 1024, 147456) if OPT.get('lay', 0) else (262144, 16384, 1024)
def WSP(): return OPT.get('wsp', WS_P)
def flat(t):
    o = []
    for x in t: o += x if isinstance(x, list) else [x]
    return o
def XF(mi, kk):
    n = kk * 4 + mi
    return A(4 * n, 4) if n < 64 else V(224 + 4 * (n - 64), 4)
def HF(mi, ks):
    n = ks * 8 + mi
    return XF(n & 3, n >> 2)
SET = [32, 64, 96, 128]
FB = 160
TMP = 196
V_DX, V_DW, V_DH, V_DD, V_RW, V_RX = 3, 4, 5, 6, 7, 13
V_HW, V_HH, V_L16, V_L16B, V_ST, V_SIL = 19, 20, 21, 22, 23, 24

def dma(vo, srdn, soff, pb, ioff, tag):
    assert pb - ioff >= 0
    m = F("s_add_u32 m0, {W1K}, %d" % (pb - ioff))[0]
    d = F("buffer_load_dwordx4 v%d, {%s}, s%d offen%s%s lds" % (vo, srdn, soff, (" offset:%d" % ioff) if ioff else "", OPT.get('xfl', "") if srdn == 'X' else OPT.get('wfl', "")), tag=tag, lds_w=(pb, pb + 4096))[0]
    return m, d

def gate_code(XQ, GQ, R):
    e = dict(va=R[2], vo=R[3], t0=R[4], t1=R[5], t2=R[6], t3=R[7])
    p = F("""v_lshrrev_b32 v{vo}, 5, v0
s_lshl_b32 {a}, {C}, 3
s_lshl_b32 {b}, {W}, 1
s_add_u32 {a}, {a}, {b}
v_add_u32 v{vo}, {a}, v{vo}
v_and_b32 v{t0}, 63, v{vo}
v_lshlrev_b32 v{t0}, 5, v{t0}
v_lshrrev_b32 v{t1}, 6, v{vo}
v_add_u32 v{t0}, v{t0}, v{t1}
s_lshl_b32 {a}, {T}, 1
v_add_u32 v{t0}, {a}, v{t0}
v_mul_u32_u24 v{t0}, 1152, v{t0}
v_and_b32 v{t1}, 31, v0
v_mul_u32_u24 v{t1}, 36, v{t1}
v_add_u32 v{t0}, v{t0}, v{t1}""", **e)
    for b_, s_, ad, sr in ((XQ, R[0], "t0", "X"), (GQ, R[1], "t1", "GW")):
        p += F("buffer_load_dwordx4 v[%d:%d], v{%s}, {%s}, 0 offen\nbuffer_load_dwordx4 v[%d:%d], v{%s}, {%s}, 0 offen offset:16\nbuffer_load_dword v%d, v{%s}, {%s}, 0 offen offset:32"
               % (b_, b_ + 3, ad, sr, b_ + 4, b_ + 7, ad, sr, s_, ad, sr), **e)
    def rest():
        q = []
        for n in range(9):
            q += F("""v_lshlrev_b32 v{t0}, 16, v{x}
v_lshlrev_b32 v{t1}, 16, v{y}
v_and_b32 v{t2}, 0xffff0000, v{x}
v_and_b32 v{t3}, 0xffff0000, v{y}
v_mul_f32 v{t0}, v{t0}, v{t1}
v_mul_f32 v{t2}, v{t2}, v{t3}
v_cvt_pk_bf16_f32 v{t0}, v{t0}, v{t2}
v_lshlrev_b32 v{t1}, 16, v{t0}
v_and_b32 v{t0}, 0xffff0000, v{t0}""", x=XQ + n if n < 8 else R[0], y=GQ + n if n < 8 else R[1], **e)
            q += F("v_add_f32 v{va}, v{t1}, v{t0}" if n == 0 else "v_add_f32 v{va}, v{va}, v{t1}\nv_add_f32 v{va}, v{va}, v{t0}", **e)
        for sh in (8, 4, 2, 1):
            q += F("v_add_f32_dpp v{va}, v{va}, v{va} row_ror:%d row_mask:0xf bank_mask:0xf" % sh, **e)
        q += F("""v_mov_b32 v{t0}, v{va}
v_and_b32 v{t1}, 31, v0
v_cmp_eq_u32 vcc, 0, v{t1}
v_permlane16_swap_b32 v{va}, v{t0}
v_add_f32 v{va}, v{va}, v{t0}
v_cvt_pk_bf16_f32 v{va}, v{va}, v{va}
v_lshlrev_b32 v{va}, 16, v{va}
v_mul_f32 v{va}, {NL}, v{va}
v_exp_f32 v{va}, v{va}
v_lshlrev_b32 v{vo}, 2, v{vo}
v_add_f32 v{va}, 1.0, v{va}
v_rcp_f32 v{va}, v{va}
v_bfrev_b32 v{t1}, 1
v_cvt_pk_bf16_f32 v{va}, v{va}, v{va}
v_lshlrev_b32 v{va}, 16, v{va}
v_sub_f32 v{t0}, 1.0, v{va}
v_cvt_pk_bf16_f32 v{t0}, v{t0}, v{t0}
v_lshlrev_b32 v{t0}, 16, v{t0}
v_cndmask_b32 v{vo}, v{t1}, v{vo}, vcc
s_lshl_b32 {u}, {T}, 9
s_add_u32 {u}, {u}, %d
s_add_u32 {w}, {u}, %d""" % (WS_G, WS_O - WS_G), **e)
        q += F("buffer_store_dword v{va}, v{vo}, {WS}, {u} offen sc1\nbuffer_store_dword v{t0}, v{vo}, {WS}, {w} offen sc1", tag="pub1", **e)
        return q
    return p, rest

def t_setup(P, kb, opt=False):
    e = dict(vk=P, vphi=P + 1, vco=P + 2, vd=P + 3, vmu=P + 4, vsg=P + 5, t=P + 6, kb=kb)
    return F("""v_lshrrev_b32 v{vk}, 2, v1
v_lshlrev_b32 v{vk}, 1, v{vk}
v_and_b32 v{t}, 1, v1
v_add_u32 v{vk}, v{vk}, v{t}
v_lshlrev_b32 v{vsg}, 31, v{t}
v_or_b32 v{vsg}, 1.0, v{vsg}
s_lshl_b32 {a}, {kb}, 4
s_lshl_b32 {b}, {FH}, 3
s_add_u32 {a}, {a}, {b}
v_add_u32 v{vk}, {a}, v{vk}
v_bfe_u32 v{vphi}, v1, 1, 1
v_cvt_f32_u32 v{vphi}, v{vphi}
v_mul_f32 v{vphi}, 0x3e800000, v{vphi}
v_add_u32 v{t}, {a}, v1
v_cmp_eq_u32 vcc, 2, v{t}
v_mov_b32 v{t}, 0x120
v_lshlrev_b32 v{vd}, 3, v2
v_cndmask_b32 v{vk}, v{vk}, v{t}, vcc
v_cndmask_b32 v{vphi}, v{vphi}, 0, vcc
v_mul_u32_u24 v{t}, {ROT}, v{vk}
v_mul_u32_u24 v{vco}, 7282, v{t}
v_lshrrev_b32 v{vco}, 16, v{vco}
v_mul_u32_u24 v{vco}, 9, v{vco}
v_sub_u32 v{t}, v{t}, v{vco}
v_cvt_f32_u32 v{t}, v{t}
v_fmac_f32 v{vphi}, 0x3de38e39, v{t}
v_cvt_f32_u32 v{vk}, v{vk}
v_mul_f32 v{vco}, %s, v{vk}
v_mul_f32 v{vk}, %s, v{vk}
v_cos_f32 v{vco}, v{vco}
v_add_u32 v{t}, {a}, v2
v_cmp_eq_u32 vcc, 0, v{t}
v_cvt_f32_u32 v{vd}, v{vd}
v_add_f32 v{vco}, v{vco}, v{vco}
v_cndmask_b32 v{vmu}, 1.0, 0, vcc""" % (f2h(1.0 / 18), f2h(1.0 / 576)), opt=opt, **e)

def t_frag(kk, f, ST, P, opt=False):
    cur = ST + 8 * (kk & 1); prv = ST + 8 * ((kk + 1) & 1); ops = []
    if kk < 2:
        for j in range(8): ops += L("v_add_f32 v%d, %s, v%d" % (cur + j, f2h(32.0 * kk + j), P + 3), opt=opt)
        for j in range(8): ops += L("v_fma_f32 v%d, v%d, v%d, v%d" % (cur + j, cur + j, P, P + 1), opt=opt)
        for j in range(8): ops += L("v_cos_f32 v%d, v%d" % (cur + j, cur + j), opt=opt)
    else:
        for j in range(8): ops += L("v_fma_f32 v%d, v%d, v%d, -v%d" % (cur + j, P + 2, prv + j, cur + j), opt=opt)
    for jp in range(4): ops += L("v_cvt_pk_bf16_f32 v%d, v%d, v%d" % (f + jp, cur + 2 * jp, cur + 2 * jp + 1), opt=opt)
    return ops

def twiddle_A(TW, T, tiles):
    vs, vj, p0, p1, c0, c1 = T, T + 4, T + 5, T + 6, T + 7, T + 8
    p = F("v_lshlrev_b32 v{vs}, 7, v2\nv_add_u32 v{vs}, {S2}, v{vs}\nv_cvt_f32_u32 v{vs}, v{vs}", vs=vs)
    for j in range(1, 4): p += L("v_add_f32 v%d, %s, v%d" % (vs + j, f2h(32.0 * j), vs))
    for a in tiles:
        p += L("v_lshl_add_u32 v%d, v1, 2, %d\nv_cvt_f32_u32 v%d, v%d\nv_mul_f32 v%d, %s, v%d" % (vj, a, vj, vj, vj, f2h(1.0 / 2048), vj))
        b = TW(a)
        for jp in range(2):
            p += L("""v_mul_f32 v%d, v%d, v%d
v_mul_f32 v%d, v%d, v%d
v_cos_f32 v%d, v%d
v_cos_f32 v%d, v%d
v_sin_f32 v%d, v%d
v_sin_f32 v%d, v%d
v_cvt_pk_bf16_f32 v%d, v%d, v%d
v_cvt_pk_bf16_f32 v%d, v%d, v%d""" % (p0, vs + 2 * jp, vj, p1, vs + 2 * jp + 1, vj, c0, p0, c1, p1, p0, p0, p1, p1, b + jp, c0, c1, b + 4 + jp, p0, p1))
            C = "v%d, v%d" % (c0, c1); nC = "-v%d, -v%d" % (c0, c1); Sn = "v%d, v%d" % (p0, p1); nS = "-v%d, -v%d" % (p0, p1)
            cc, ss = [(C, Sn), (nS, C), (nC, nS), (Sn, nC)][a]
            p += L("v_cvt_pk_bf16_f32 v%d, %s\nv_cvt_pk_bf16_f32 v%d, %s" % (b + 2 + jp, cc, b + 6 + jp, ss))
    return p

def sA_front(ACC, DF, P, opt=False):
    k = dict(opt=opt); p = []
    for i in range(16): p += L("v_fma_f32 v%d, v%d, v%d, v%d" % (ACC + i, P + 5, ACC + 16 + i, ACC + i), **k)
    for i in range(8):
        p += L("v_add_f32 v%d, v%d, v%d\nv_sub_f32 v%d, v%d, v%d" % (ACC + 16 + i, ACC + i, ACC + 8 + i, ACC + 24 + i, ACC + i, ACC + 8 + i), **k)
    for i in range(8): p += L("v_cvt_pk_bf16_f32 v%d, v%d, v%d" % (DF + i, ACC + 16 + 2 * i, ACC + 17 + 2 * i), **k)
    return p
def sA_mfma(ACC, TW, DF, opt=False):
    return [mf(V(ACC + 16 * cs + 4 * a, 4), V(DF + 4 * (a & 1), 4), V(TW(a) + 4 * cs, 4), None, opt) for a in range(4) for cs in range(2)]
def sA_dest(so, kb, t, opt=False):
    return F("s_lshl_b32 {so}, {kb}, 4\ns_add_u32 {so}, {so}, {T}\ns_lshl_b32 {so}, {so}, 2\ns_add_u32 {so}, {so}, {W}\ns_lshl_b32 {so}, {so}, 11", so=so, kb=kb, opt=opt)
def sA_back(ACC, D, mu, va, stg, s0, s1, opt=False):
    k = dict(opt=opt)
    p = F("""s_mul_i32 {x}, {RG}, 4352
s_lshl_b32 {y}, {FH}, 4
s_add_u32 {x}, {x}, {y}
s_add_u32 {x}, {x}, %d
v_mul_u32_u24 v{va}, 272, v1
v_lshl_add_u32 v{va}, v2, 2, v{va}
v_add_u32 v{va}, {x}, v{va}""" % stg, va=va, x=s0, y=s1, **k)
    T1, T2 = ACC, ACC + 16; rng = (stg, stg + 8704)
    for a in range(4):
        x, y = T1 + 4 * a, T2 + 4 * a
        p += L("""v_fma_f32 v%d, v%d, v%d, v%d
v_add_f32 v%d, v%d, v%d
v_fma_f32 v%d, v%d, v%d, -v%d
v_sub_f32 v%d, v%d, v%d
v_cvt_pk_bf16_f32 v%d, v%d, v%d
v_cvt_pk_bf16_f32 v%d, v%d, v%d""" % (x, mu, y + 2, x, x + 1, x + 1, y + 3, y, mu, x + 2, y, y + 1, x + 3, y + 1, D + 2 * a, x, x + 1, D + 2 * a + 1, y, y + 1), **k)
        p += L("ds_write2_b32 v%d, v%d, v%d offset0:%d offset1:%d" % (va, D + 2 * a, D + 2 * a + 1, 16 * a, 16 * a + 8), lds_w=rng, tag="sa", **k)
    p += F("s_mul_i32 {x}, {W}, 2176\ns_add_u32 {x}, {x}, %d\nv_lshl_add_u32 v{va}, v2, 4, v%d\nv_add_u32 v{va}, {x}, v{va}" % (stg, V_L16), va=va, x=s0, **k)
    return p
def sA_read(D, va, stg, opt=False):
    return L("ds_read_b128 v[%d:%d], v%d\nds_read_b128 v[%d:%d], v%d offset:1088" % (D, D + 3, va, D + 4, D + 7, va), lds_r=(stg, stg + 8704), tag="lds", opt=opt)
def sA_store(D, so, opt=False):
    return F("buffer_store_dwordx4 v[%d:%d], v%d, {WS}, %s offen sc1\nbuffer_store_dwordx4 v[%d:%d], v%d, {WS}, %s offen offset:1024 sc1"
             % (D, D + 3, V_L16, so, D + 4, D + 7, V_L16, so), tag="pub1", opt=opt)
def sA_ny(ACC, R):
    T1, T2 = ACC, ACC + 16; o = "ny"; va, t0 = R + 4, R + 5
    p = F("s_or_b32 {c}, {C}, {FH}\ns_cmp_lg_u32 {c}, 0\ns_cbranch_scc1 L_ny_KN")
    q = F("""s_lshl_b32 {a}, {S2}, 12
s_add_u32 {a}, {a}, %d
v_bfe_u32 v{va}, v1, 2, 1
v_lshlrev_b32 v{va}, 6, v{va}
v_lshrrev_b32 v{t0}, 3, v1
v_lshl_add_u32 v{va}, v{t0}, 17, v{va}
v_and_b32 v{t0}, 3, v1
v_lshl_add_u32 v{va}, v{t0}, 2, v{va}
v_lshl_add_u32 v{va}, v2, 28, v{va}""" % (18 * KB_STRIDE), opt=o, va=va, t0=t0)
    for par in range(2):
        q += L("v_cvt_pk_bf16_f32 v%d, v%d, v%d\nv_cvt_pk_bf16_f32 v%d, -v%d, -v%d"
               % (R + par, T1 + 4 * par + 2, T1 + 4 * par + 10, R + 2 + par, T2 + 4 * par + 2, T2 + 4 * par + 10), opt=o)
    for par in range(2):
        q += F("buffer_store_dword v%d, v{va}, {WS}, {a} offen offset:%d sc1\nbuffer_store_dword v%d, v{va}, {WS}, {a} offen offset:%d sc1"
               % (R + par, par * 16, R + 2 + par, 32 + par * 16), opt=o, tag="pub1", va=va)
    return p + q + L("L_ny_KN:")

def dft32(M, T, opt):
    vi, vg, p0, p1, c0, c1 = T, T + 1, T + 2, T + 3, T + 4, T + 5
    k = dict(opt=opt)
    p = L("v_cvt_f32_u32 v%d, v1\nv_lshlrev_b32 v%d, 2, v2\nv_mul_f32 v%d, %s, v%d\nv_cvt_f32_u32 v%d, v%d" % (vi, vg, vi, f2h(1.0 / 32), vi, vg, vg), **k)
    for jp in range(2):
        p += L("""v_add_f32 v%d, %s, v%d
v_add_f32 v%d, %s, v%d
v_mul_f32 v%d, v%d, v%d
v_mul_f32 v%d, v%d, v%d
v_cos_f32 v%d, v%d
v_cos_f32 v%d, v%d
v_sin_f32 v%d, v%d
v_sin_f32 v%d, v%d
v_cvt_pk_bf16_f32 v%d, v%d, v%d
v_cvt_pk_bf16_f32 v%d, v%d, v%d""" % (p0, f2h(2.0 * jp), vg, p1, f2h(2.0 * jp + 1), vg, p0, p0, vi, p1, p1, vi, c0, p0, c1, p1, p0, p0, p1, p1, M + jp, c0, c1, M + 4 + jp, p0, p1), **k)
    p += L("v_and_b32 v%d, 1, v1\nv_mul_u32_u24 v%d, 0x8000, v%d\nv_lshl_add_u32 v%d, v%d, 16, v%d" % (vi, vi, vi, vi, vi, vi), **k)
    for b in (M, M + 4):
        for jp in range(2): p += L("v_xor_b32 v%d, v%d, v%d" % (b + 2 + jp, vi, b + jp), **k)
    for d in range(4):
        p += L("v_xor_b32 v%d, 0x80008000, v%d\nv_xor_b32 v%d, 0x80000000, v%d\nv_xor_b32 v%d, 0x80000000, v%d\nv_xor_b32 v%d, 0x8000, v%d"
               % (M + 8 + d, M + 4 + d, M + 12 + d, M + d, M + 16 + d, M + 4 + d, M + 20 + d, M + 4 + d), **k)
    return p

def nyw_load(r, o):
    return F("""s_lshl_b32 {a}, {T}, 7
s_lshl_b32 {b}, {FH}, 6
s_add_u32 {a}, {a}, {b}
v_add_u32 v{r}, {a}, v0
v_mul_u32_u24 v{r}, 578, v{r}
buffer_load_ushort v{r}, v{r}, {WP}, 0 offen offset:576""", opt=o, r=r)
def nyw_store(r, j, t, o):
    return F("""s_lshl_b32 {a}, {RG}, 12
s_lshl_b32 {b}, {T}, 8
s_add_u32 {a}, {a}, {b}
s_lshl_b32 {b}, {FH}, 7
s_add_u32 {a}, {a}, {b}
s_add_u32 {a}, {a}, %d
v_and_b32 v{j}, 14, v0
v_and_b32 v{t}, 1, v0
v_lshl_add_u32 v{j}, v{t}, 4, v{j}
v_and_b32 v{t}, 1, v2
v_lshl_add_u32 v{j}, v{t}, 6, v{j}
v_lshrrev_b32 v{t}, 1, v2
v_lshl_add_u32 v{j}, v{t}, 5, v{j}""" % WS_N, opt=o, j=j, t=t) + F("buffer_store_short v%d, v%d, {WS}, {a} offen sc1" % (r, j), opt=o, tag="pub1")

def s2_scalars(gam, wo, keep):
    return F("""s_and_b32 {b}, {gam}, 31
s_lshl_b32 {keep}, {b}, 7
s_lshl_b32 {b}, {b}, 1
s_add_u32 {b}, {b}, {FH}
s_mul_i32 {b}, {b}, 578
s_lshr_b32 {a}, {gam}, 5
s_lshl_b32 {wo}, {a}, 6
s_add_u32 {wo}, {wo}, {b}
s_lshl_b32 {a}, {a}, 18
s_add_u32 {keep}, {keep}, {a}
s_lshl_b32 {b}, {W}, 15
s_add_u32 {keep}, {keep}, {b}""", gam=gam, wo=wo, keep=keep)
def s2_wloads(gam, wo, Wr, vw, t0):
    return F("""v_lshrrev_b32 v{vw}, 2, v0
v_mul_u32_u24 v{vw}, 36992, v{vw}
v_and_b32 v{t0}, 3, v0
v_lshl_add_u32 v{vw}, v{t0}, 4, v{vw}
s_cmp_lt_u32 {gam}, 288
s_cselect_b32 {f}, 0, 0x80000000
v_or_b32 v{vw}, {f}, v{vw}
s_add_u32 {f}, {wo}, %d
buffer_load_dwordx4 v[%d:%d], v{vw}, {WP}, {wo} offen
buffer_load_dwordx4 v[%d:%d], v{vw}, {WP}, {f} offen""" % (16 * 36992, Wr, Wr + 3, Wr + 4, Wr + 7), gam=gam, wo=wo, vw=vw, t0=t0)
def s2_wspecial(Wr, vw, t0, opt):
    return F("""s_lshl_b32 {a}, {RG}, 12
s_lshl_b32 {b}, {FH}, 6
s_add_u32 {a}, {a}, {b}
s_add_u32 {a}, {a}, %d
v_lshrrev_b32 v{vw}, 2, v0
v_lshlrev_b32 v{vw}, 7, v{vw}
v_and_b32 v{t0}, 3, v0
v_lshl_add_u32 v{vw}, v{t0}, 4, v{vw}
buffer_load_dwordx4 v[%d:%d], v{vw}, {WS}, {a} offen sc1
buffer_load_dwordx4 v[%d:%d], v{vw}, {WS}, {a} offen offset:2048 sc1""" % (WS_N, Wr, Wr + 3, Wr + 4, Wr + 7), opt=opt, vw=vw, t0=t0)
def s2_gaddr(va, t0, opt):
    return F("v_lshrrev_b32 v{va}, 3, v0\nv_lshlrev_b32 v{va}, 12, v{va}\nv_and_b32 v{t0}, 7, v0\nv_lshl_add_u32 v{va}, v{t0}, 4, v{va}", opt=opt, va=va, t0=t0)
def s2_dloads(gam, keep, D, va, vm):
    return F("""s_cmp_le_u32 {gam}, 288
s_cselect_b32 {f}, 0, 0x80000000
v_or_b32 v{vm}, {f}, v{va}
s_add_u32 {f}, {keep}, 0x8000
buffer_load_dwordx4 v[%d:%d], v{vm}, {WS}, {keep} offen sc1
buffer_load_dwordx4 v[%d:%d], v{vm}, {WS}, {f} offen sc1""" % (D, D + 3, D + 4, D + 7), keep=keep, gam=gam, va=va, vm=vm)

def s2_addr(T, lds_base, opt):
    e = dict(vl=T, vr=T + 1, vw=T + 2, vo=T + 3, vp=T + 4, vb=T + 5, t0=T + 7, L16=V_L16)
    return F("""s_lshl_b32 {u}, {W}, 11
s_add_u32 {u}, {u}, %d
v_add_u32 v{vl}, {u}, v{L16}
v_lshrrev_b32 v{t0}, 3, v0
v_lshlrev_b32 v{t0}, 4, v{t0}
v_subrev_u32 v{vb}, {W1K}, v{vl}
v_xor_b32 v{vb}, v{vb}, v{t0}
v_lshrrev_b32 v{vr}, 2, v1
v_lshl_add_u32 v{vr}, v2, 2, v{vr}
v_lshlrev_b32 v{vw}, 6, v{vr}
v_lshlrev_b32 v{vr}, 7, v{vr}
v_and_b32 v{t0}, 3, v1
v_lshl_add_u32 v{vr}, v{t0}, 3, v{vr}
v_lshl_add_u32 v{vw}, v{t0}, 3, v{vw}
s_lshl_b32 {u}, {RG}, 12
s_lshl_b32 {w}, {FH}, 6
s_add_u32 {u}, {u}, {w}
s_add_u32 {u}, {u}, %d
v_add_u32 v{vr}, {u}, v{vr}
v_lshlrev_b32 v{vo}, 7, v1
v_lshl_add_u32 v{vo}, v2, 3, v{vo}
v_add_u32 v{vo}, {u}, v{vo}
v_and_b32 v{t0}, 7, v1
v_lshlrev_b32 v{t0}, 4, v{t0}
v_xor_b32 v{vo}, v{vo}, v{t0}
v_xor_b32 v{vp}, 32, v{vo}
s_lshl_b32 {u}, {FH}, 11
s_lshl_b32 {w}, {RG}, 5
s_add_u32 {u}, {u}, {w}
s_add_u32 {u}, {u}, %d
v_add_u32 v{vw}, {u}, v{vw}""" % (lds_base, lds_base, lds_base + 8192), opt=opt, **e)

def s2_compute(R, M, T, X, lds_base, opt, ZT=None, VA=None):
    k = dict(opt=opt)
    e = dict(vl=T, vr=T + 1, vw=T + 2, vb=T + 5, va=VA, t0=X, t1=X + 1, t2=X + 2, t3=X + 3)
    C = lambda a: V(M + (a * 3) * 4, 4)
    Sn = lambda a: V(M + (a * 3 + 1) * 4, 4)
    N = lambda a: V(M + (a * 3 + 2) * 4, 4)
    q = []
    for n, (keep, D, Z, Wr, sa, sb) in enumerate(R):
        o = n * 16384; rng = (lds_base + o, lds_base + o + 16384)
        q += F("ds_write_b128 v{vl}, v[%d:%d] offset:%d\nds_write_b128 v{vl}, v[%d:%d] offset:%d"
               % (Wr, Wr + 3, o + 8192, Wr + 4, Wr + 7, o + 9216), lds_w=(rng[0] + 8192, rng[1]), tag="s2", **k, **e)
        q += L("s_add_u32 %s, %s, %d\ns_add_u32 %s, %s, %d" % (sa, keep, WS_B, sb, sa, KB_STRIDE), **k)
    d32 = dft32(M, ZT, opt) if ZT is not None else []
    q += d32[:24] + L("s_barrier", need_lgkm=("s2",), **k)
    for n, (keep, D, Z, Wr, sa, sb) in enumerate(R):
        o = n * 16384; rng = (lds_base + o, lds_base + o + 16384)
        for pl in range(2):
            q += F("ds_read_b64_tr_b16 v[%d:%d], v{vr} offset:%d\nds_read_b64_tr_b16 v[%d:%d], v{vr} offset:%d"
                   % (D + 4 * pl, D + 4 * pl + 1, o + pl * 32, D + 4 * pl + 2, D + 4 * pl + 3, o + pl * 32 + 2048), lds_r=rng, tag="s2r", **k, **e)
    for n, (keep, D, Z, Wr, sa, sb) in enumerate(R):
        o = n * 16384; rng = (lds_base + o, lds_base + o + 16384)
        for pl in range(2):
            q += F("ds_read_b64_tr_b16 v[%d:%d], v{vw} offset:%d\nds_read_b64_tr_b16 v[%d:%d], v{vw} offset:%d"
                   % (Wr + 4 * pl, Wr + 4 * pl + 1, o + pl * 4096, Wr + 4 * pl + 2, Wr + 4 * pl + 3, o + pl * 4096 + 1024), lds_r=rng, tag="s2r", **k, **e)
    q += d32[24:]
    def fwd(D, Z):
        Ar, Ai = V(D, 4), V(D + 4, 4); m = []
        for aa in range(2):
            zr, zi = V(Z(4 * aa), 4), V(Z(8 + 4 * aa), 4)
            m += [mf(zr, C(aa), Ar, None, opt), mf(zr, Sn(aa), Ai, zr, opt), mf(zi, C(aa), Ai, None, opt), mf(zi, N(aa), Ar, zi, opt)]
        return m
    def mul(D, Z, Wr):
        v = []
        for i in range(0, 8, 2):
            v += F("""v_lshlrev_b32 v{t3}, 16, v{wi}
v_and_b32 v{wi}, 0xffff0000, v{wi}
v_lshlrev_b32 v{t2}, 16, v{wr}
v_and_b32 v{wr}, 0xffff0000, v{wr}
v_mul_f32 v{t0}, v{zi}, v{t3}
v_mul_f32 v{t1}, v{yi}, v{wi}
v_mul_f32 v{t3}, v{zr}, v{t3}
v_mul_f32 v{wi}, v{yr}, v{wi}
v_fma_f32 v{zr}, v{zr}, v{t2}, -v{t0}
v_fma_f32 v{yr}, v{yr}, v{wr}, -v{t1}
v_fma_f32 v{zi}, v{zi}, v{t2}, v{t3}
v_fma_f32 v{yi}, v{yi}, v{wr}, v{wi}""", zr=Z(i), zi=Z(8 + i), yr=Z(i + 1), yi=Z(9 + i), wr=Wr + i // 2, wi=Wr + 4 + i // 2, **k, **e)
        for pl in range(2):
            for d in range(4): v += L("v_cvt_pk_bf16_f32 v%d, v%d, v%d" % (D + 4 * pl + d, Z(8 * pl + 2 * d), Z(8 * pl + 2 * d + 1)), **k)
        return v
    def inv(D, Z):
        Ar, Ai = V(D, 4), V(D + 4, 4); m = []
        for aa in range(2):
            br = V(Z(4 * aa), 4); m += [mf(br, Ar, C(aa), None, opt), mf(br, Ai, N(aa), br, opt)]
        for aa in range(2):
            bi = V(Z(8 + 4 * aa), 4); m += [mf(bi, Ai, C(aa), None, opt), mf(bi, Ar, Sn(aa), bi, opt)]
        return m
    def outw(n, Z, Wr):
        v = []; o = n * 16384
        for pl in range(2):
            for aa in range(2):
                r = Wr + 4 * pl + 2 * aa; z = Z(8 * pl + 4 * aa)
                v += L("v_cvt_pk_bf16_f32 v%d, v%d, v%d\nv_cvt_pk_bf16_f32 v%d, v%d, v%d" % (r, z, z + 1, r + 1, z + 2, z + 3), **k)
                v += L("ds_write_b64 v%d, v[%d:%d] offset:%d" % (T + 3 + pl, r, r + 1, o + aa * 2048), lds_w=(lds_base + o, lds_base + o + 8192), tag="s2", **k)
        return v
    def mix(ms, vs, lead=0):
        out = list(vs[:lead]); vs = vs[lead:]
        for n, m in enumerate(ms):
            out.append(m); out += vs[2 * n:2 * n + 2]
        return out + vs[2 * len(ms):]
    bar2 = lambda: L("s_barrier", need_lgkm=("s2r",), **k)
    if len(R) == 1:
        keep, D, Z, Wr, sa, sb = R[0]
        f = fwd(D, Z); b2 = bar2(); v = mul(D, Z, Wr)
        q += f[:4] + mix(f[4:], []) + b2 + v + inv(D, Z) + outw(0, Z, Wr)
    else:
        (k0, D0, Z0, W0, _, _), (k1, D1, Z1, W1, _, _) = R
        f0 = fwd(D0, Z0); f1 = fwd(D1, Z1); b2 = bar2(); v0 = mul(D0, Z0, W0); i0 = inv(D0, Z0); v1 = mul(D1, Z1, W1); o0 = outw(0, Z0, W0); i1 = inv(D1, Z1); o1 = outw(1, Z1, W1)
        q += f0 + b2 + mix(f1, v0) + mix(i0, v1, 2) + mix(i1, o0, 2) + o1
    q += L("s_barrier", need_lgkm=("s2",), **k)
    for n, (keep, D, Z, Wr, sa, sb) in enumerate(R):
        o = n * 16384
        q += F("ds_read_b128 v[%d:%d], v{vb} offset:%d\nds_read_b128 v[%d:%d], v{vb} offset:%d" % (D, D + 3, o, D + 4, D + 7, o + 4096), lds_r=(lds_base + o, lds_base + o + 8192), tag="lds", **k, **e)
    for n, (keep, D, Z, Wr, sa, sb) in enumerate(R):
        q += F("buffer_store_dwordx4 v[%d:%d], v{va}, {WS}, %s offen sc1\nbuffer_store_dwordx4 v[%d:%d], v{va}, {WS}, %s offen sc1"
               % (D, D + 3, sa, D + 4, D + 7, sb), tag="pub2", **k, **e)
    return q

def twiddle_D(TW, T):
    vs, vj, vk, c0, c1, s0, s1 = T, T + 1, T + 2, T + 3, T + 4, T + 5, T + 6
    p = F("""s_lshl_b32 {u}, {FH}, 9
s_add_u32 {u}, {u}, {S2}
v_lshlrev_b32 v{vs}, 5, v1
v_add_u32 v{vs}, {u}, v{vs}
v_cvt_f32_u32 v{vs}, v{vs}
v_mul_f32 v{vs}, %s, v{vs}
v_lshlrev_b32 v{vj}, 4, v2
v_cvt_f32_u32 v{vj}, v{vj}
v_add_f32 v{vk}, v{vs}, v{vs}
v_cos_f32 v{vk}, v{vk}""" % f2h(1.0 / 2048), vs=vs, vj=vj, vk=vk)
    for par in range(2):
        p += L("""v_add_f32 v%d, %s, v%d
v_add_f32 v%d, %s, v%d
v_mul_f32 v%d, v%d, v%d
v_mul_f32 v%d, v%d, v%d
v_cos_f32 v%d, v%d
v_cos_f32 v%d, v%d
v_sin_f32 v%d, v%d
v_sin_f32 v%d, v%d""" % (s0, f2h(float(par)), vj, s1, f2h(par + 2.0), vj, s0, s0, vs, s1, s1, vs, c0, s0, c1, s1, s0, s0, s1, s1))
        if par == 0: p += L("v_add_f32 v%d, v%d, v%d" % (vk, vk, vk))
        for jp in range(4):
            if jp:
                p += L("v_fma_f32 v%d, v%d, v%d, -v%d\nv_fma_f32 v%d, v%d, v%d, -v%d\nv_fma_f32 v%d, v%d, v%d, -v%d\nv_fma_f32 v%d, v%d, v%d, -v%d"
                       % (c0, vk, c1, c0, s0, vk, s1, s0, c1, vk, c0, c1, s1, vk, s0, s1))
            p += L("v_cvt_pk_bf16_f32 v%d, v%d, v%d\nv_cvt_pk_bf16_f32 v%d, v%d, v%d" % (TW + par * 8 + jp, c0, c1, TW + par * 8 + 4 + jp, s0, s1))
    return p

def stepD_loads(kb, RAW, opt=False):
    p = F("s_lshl_b32 {a}, {S2}, 12\ns_add_u32 {a}, {a}, %d\ns_lshl_b32 {b}, {kb}, 17\ns_add_u32 {b}, {b}, {a}" % WS_B, kb=kb, opt=opt)
    for i in range(4):
        p += F("buffer_load_dwordx4 v[%d:%d], v%d, {WS}, {b} offen offset:%d sc1" % (RAW + 4 * i, RAW + 4 * i + 3, V_L16, i * 1024), opt=opt)
    return p
def stepD_nyloads(NY, T, opt):
    p = F("s_add_u32 {a}, {a}, %d\nv_and_b32 v{t}, 1, v2\nv_lshlrev_b32 v{t}, 6, v{t}\nv_lshrrev_b32 v{n}, 1, v2\nv_lshl_add_u32 v{t}, v{n}, 17, v{t}" % (18 * KB_STRIDE), opt=opt, t=T, n=NY)
    for par in range(2):
        for pl in range(2):
            r = NY + (par * 2 + pl) * 4
            p += F("buffer_load_dwordx4 v[%d:%d], v%d, {WS}, {a} offen offset:%d sc1" % (r, r + 3, T, pl * 32 + par * 16), opt=opt)
    return p

def stepD_parts(RAW, NY, NB, TW, ACC, T, stage_base, kb, so, opt=False):
    k = dict(opt=opt)
    e = dict(vl=T, vr=T + 1, t0=T + 2, so=so, kb=kb)
    rng = (stage_base, stage_base + 16384)
    p = F("s_lshl_b32 {so}, {W}, 12\ns_add_u32 {so}, {so}, %d\nv_add_u32 v{vl}, {so}, v%d" % (stage_base, V_L16), **k, **e)
    p += F("""v_lshrrev_b32 v{vr}, 2, v1
v_lshl_add_u32 v{vr}, v2, 3, v{vr}
v_lshlrev_b32 v{vr}, 7, v{vr}
v_and_b32 v{t0}, 3, v1
v_lshl_add_u32 v{vr}, v{t0}, 3, v{vr}
v_add_u32 v{vr}, {so}, v{vr}""", **k, **e)
    for i in range(4):
        p += F("ds_write_b128 v{vl}, v[%d:%d] offset:%d" % (RAW + 4 * i, RAW + 4 * i + 3, i * 1024), lds_w=rng, priv=True, tag="lds", **k, **e)
    for par in range(2):
        for pl in range(2):
            r = RAW + (par * 2 + pl) * 4; o = par * 64 + pl * 32
            p += F("ds_read_b64_tr_b16 v[%d:%d], v{vr} offset:%d\nds_read_b64_tr_b16 v[%d:%d], v{vr} offset:%d" % (r, r + 1, o, r + 2, r + 3, o + 512),
                   lds_r=rng, priv=True, tag="lds", **k, **e)
    p += F("s_lshl_b32 {so}, {S2}, 1\ns_mul_i32 {so}, {so}, 18\ns_add_u32 {so}, {so}, {kb}\ns_lshl_b32 {so}, {so}, 1\ns_add_u32 {so}, {so}, {FH}\ns_lshl_b32 {so}, {so}, 10\ns_add_u32 {so}, {so}, %d" % WS_Y, **k, **e)
    ng = []
    for par in range(2):
        for d in range(4): ng += L("v_xor_b32 v%d, 0x80008000, v%d" % (NB + 4 * par + d, RAW + par * 8 + 4 + d), **k)
    mr = []
    for par in range(2):
        er = V(ACC + 8 * par, 4)
        mr += [mf(er, V(RAW + 8 * par, 4), V(TW + 8 * par, 4), None, opt), mf(er, V(NB + 4 * par, 4), V(TW + 8 * par + 4, 4), er, opt)]
    pt = []
    if not opt:
        pt = F("s_cmp_lg_u32 {C}, 0\ns_cbranch_scc1 L_nyd_KN") + L("v_cmp_eq_u32 vcc, 0, v1", opt="nyd")
        for par in range(2):
            for d in range(4):
                br, bi, nr, ni = RAW + 8 * par + d, RAW + 8 * par + 4 + d, NY + 8 * par + d, NY + 8 * par + 4 + d
                pt += L("v_xor_b32 v%d, 0x80008000, v%d\nv_cndmask_b32 v%d, v%d, v%d, vcc\nv_cndmask_b32 v%d, v%d, v%d, vcc" % (ni, ni, bi, bi, nr, br, br, ni), opt="nyd")
        pt += L("L_nyd_KN:")
    mi_ = []
    for par in range(2):
        ei = V(ACC + 8 * par + 4, 4)
        mi_ += [mf(ei, V(RAW + 8 * par + 4, 4), V(TW + 8 * par, 4), None, opt), mf(ei, V(RAW + 8 * par, 4), V(TW + 8 * par + 4, 4), ei, opt)]
    f = []
    for r in range(8):
        f += L("v_add_f32 v%d, v%d, v%d\nv_sub_f32 v%d, v%d, v%d" % (RAW + r, ACC + r, ACC + 8 + r, RAW + 8 + r, ACC + r, ACC + 8 + r), **k)
    for u in range(2):
        for d in range(4): f += L("v_cvt_pk_bf16_f32 v%d, v%d, v%d" % (RAW + 8 * u + d, RAW + 8 * u + 2 * d, RAW + 8 * u + 2 * d + 1), **k)
        f += F("buffer_store_dwordx4 v[%d:%d], v%d, {WS}, {so} offen sc1" % (RAW + 8 * u, RAW + 8 * u + 3, V_L16), tag="p8", **k, **e)
        if u == 0: f += F("s_add_u32 {so}, {so}, 36864", **k, **e)
    return p, ng, mr, pt, mi_, f

V_M0, V_ONE = 222, 3
SPINS = []
def signal(so):
    return F("buffer_atomic_add v%d, v%d, {WS}, %s offen sc1" % (V_ONE, V_M0, so))
def poll(vr, so, srdn="WS"):
    return F("buffer_load_dword v%d, v%d, {%s}, %s offen sc1" % (vr, V_M0, srdn, so))
def check(name, vr, so, exp, srdn="WS", sidx=None):
    p = F("v_readfirstlane_b32 {SP}, v%d\ns_cmp_ge_u32 {SP}, %s\ns_cbranch_scc0 L_sp%s_KN\nL_bk%s_KN:" % (vr, exp, name, name))
    st = ""
    if OPT['stamps'] and sidx is not None and OPT.get('diag') != 11: st = "v_writelane_b32 v%d, s5, %d\n" % (VST[0], sidx)
    SPINS.append(("""L_sp{n}_KN:
s_mov_b32 s5, 0
L_sq{n}_KN:
s_sleep 1
buffer_load_dword v%d, v%d, {%s}, %s offen sc1
s_add_u32 s5, s5, 1
s_waitcnt vmcnt(0)
v_readfirstlane_b32 {SP}, v%d
%ss_cmp_ge_u32 s5, 0x80000
s_cbranch_scc1 L_bk{n}_KN
s_cmp_ge_u32 {SP}, %s
s_cbranch_scc0 L_sq{n}_KN
s_branch L_bk{n}_KN""" % (vr, V_M0, srdn, so, vr, st, exp)).format(n=name, **ENV))
    return p

def kernel_main(a):
    name = NAME + "_kernel"
    BI = OPT['BI']
    t0, t1 = SET[0], SET[0] + 1
    e = dict(t0=t0, t1=t1, DX=V_DX, DW=V_DW, DH=V_DH, DD=V_DD, RW=V_RW, RX=V_RX, RW1=V_RW + 3, RX1=V_RX + 3, HW=V_HW, HH=V_HH, L16=V_L16, L16B=V_L16B, VST_=V_ST)
    VPF, VDM = V_HH, V_ST
    def vaddr64(q):
        for i in q:
            if i.op == "v_add_co_u32": i.wr.append(('s', 'vcc')); i.rd = [r for r in i.rd if r != ('s', 'vcc')]
            if i.op == "v_addc_co_u32": i.wr.append(('s', 'vcc'))
        return q
    G = []
    def grp(kind, nm, need, **kw):
        d = dict(kind=kind, nm=nm, need=need, bar=False, xr=None, rate=2); d.update(kw); G.append(d); return d
    for sg in range(9):
        for tau in range(4):
            mat = 'G' if tau < 2 else 'U'
            g = grp('SB', 16 if tau == (3 if sg < 8 else 0) else 8, [(mat, 0, 2 * sg), (mat, 0, 2 * sg + 1)], sg=sg, tau=tau, rate=[int(x) for x in str(OPT.get('sbr', 2225) if sg < 8 else OPT.get('sbl', 3111))][tau])
            if tau == 2 or (sg == 0 and tau == 0): g['bar'] = True
            if sg < 8 and tau in (2, 3): g['xr'] = (sg + 1, tau - 2)
    PS = {}
    for mat, b, st in [('G', 1, 3), ('U', 1, 2), ('G', 2, 0), ('U', 2, 1), ('G', 3, 3), ('U', 3, 2)]:
        PS[mat + str(b)] = len(G)
        for sl in range(6):
            for ap in range(2):
                g = grp('P1', 12, [(mat, b, 3 * sl + e_) for e_ in range(3)], st=st, sl=sl, ap=ap, ps=mat + str(b))
                if ap == 0 and (sl % BI == BI - 1): g['bar'] = True
    for hf, mat in enumerate(('HG', 'HU')):
        PS[mat] = len(G)
        for gi in range(6):
            g = grp('PH', 12, [(mat, (3 * gi + e_) >> 1) for e_ in range(3)], gi=gi, ps=mat, half=hf)
            if gi % 2 == 0: g['bar'] = True
    P2 = len(G); HU = PS['HU']; IL = OPT.get('il', 0)
    seq = [(0, 0), (1, 0), (0, 1), (1, 1), (0, 2), (1, 2)] + [(u, gi) for u in range(2, 5) for gi in range(3)] + ([(5, 0), (6, 0), (5, 1), (6, 1), (5, 2), (6, 2)] if IL else [(5, 0), (6, 0), (5, 1), (5, 2), (6, 1), (6, 2)]) + [(u, gi) for u in range(7, 9) for gi in range(3)]
    for u, gi in seq:
        grp('P2', 24, [('D', u, 3 * gi + e_) for e_ in range(3)], cb=u, gi=gi, rate=OPT.get('r2', 4), bar=True)
    NG = len(G)
    for x in str(OPT.get('nb', '')).split(','):
        if x: G[P2 + int(x)]['bar'] = False
    G[P2 - 1]['bar'] = True
    def rdg(n): return n - 1 if n > P2 else n - 2
    iv = []; n = 0
    for g in G:
        if g['bar']: n += 1
        iv.append(n)
    def free_iv(gr):
        for k in range(gr, NG):
            if G[k]['bar']: return iv[k]
        return 10 ** 6
    def next_bar(gi):
        while not G[gi]['bar']: gi += 1
        return gi
    first = {}; fre = {}; order = []
    def use(key, rg_, done_g):
        if key not in first: first[key] = iv[rg_] if rg_ >= 0 else 0; order.append(key)
        fre[key] = max(fre.get(key, 0), free_iv(done_g))
    for q in range(4): use(('x', 0, q), -1, 1)
    ev = []
    for gi, g in enumerate(G):
        for k in g['need']: ev.append((rdg(gi), 0, k, gi))
        if g['xr']:
            for q in range(4): ev.append((gi, 1, ('x', g['xr'][0], q), 4 * g['xr'][0] + 1))
    ev.sort(key=lambda x: (x[0], x[1]))
    for r_, _, k, d_ in ev: use(k, r_, d_)
    order.sort(key=lambda k: first[k])
    fixed = {}
    for sg in range(9):
        s = 8 * (sg % 5)
        for e_ in range(2):
            fixed[('G', 0, 2 * sg + e_)] = s + e_; fixed[('U', 0, 2 * sg + e_)] = s + 2 + e_
        for q in range(4): fixed[('x', sg, q)] = s + 4 + q
    gS2 = PS['U2'] + 11
    gSD = P2 + OPT.get('sdat', 4); gQ = P2 + 18
    gar = next_bar(PS['G1'] + 5); ga1 = next_bar(PS['U1'] + OPT.get('a1at', 2)); gc1 = next_bar(PS['U2'] + 2); ga2 = next_bar(gS2 + OPT.get('a2at', 9)); gc2 = HU + 2
    gh1 = next_bar(PS['HG'] + OPT.get('h1at', 2)); gq1 = P2 + OPT.get('q1at', 1); gh2 = P2 + OPT.get('h2at', 7); gq2 = P2 + OPT.get('q2at', 12); gf8 = P2 + OPT.get('f8at', 11); gY = P2 + OPT.get('yat', 17); gfa = P2 + OPT.get('faat', 25)
    QP = OPT.get('qp', 0); gq0 = next_bar(PS['U3'] + OPT.get('q0at', 8))
    res = [(0, 4, PS['G1'] - 1, NG - 1), (4, 1, PS['G1'] - 1, PS['G1']), (8, 8, gS2, gS2 + 1), (8, 2, gc1, gS2), (12, 2, gc1, gS2), (4, 4, PS['G2'], NG - 1), (8, 4, PS['G3'], gQ), (8, 3, gQ, NG - 1),
           (12, 4, PS['HG'], gQ + 1), (16, 2, P2, gQ + 1), (18, 4, gSD, gSD + 4)]
    resv = {pg: [] for pg in range(40)}
    for f_, npg, ga, gb in res:
        for pg in range(f_, f_ + npg): resv[pg].append((iv[ga], free_iv(gb + 1)))
    free_at = [-1] * 40; phys = {}; issue_grp = {}; qi = 0
    def ioff(k):
        if k[0] == 'D': return 0 if k[1] == 0 else ((k[1] - 1) & 3) * 128
        return k[1] * 128 if k[0] in 'GU' else 0
    def try_alloc(k, cur):
        for pg in ([fixed[k]] if k in fixed else range(39, -1, -1)):
            if free_at[pg] > cur or (pg == 0 and ioff(k) > 0): continue
            if any(not (fre[k] <= a_ or cur >= b_) for a_, b_ in resv[pg]): continue
            return pg
        return None
    cum = [0]
    for g in G: cum.append(cum[-1] + g['nm'])
    bar_grp = {iv[gi]: gi for gi, g in enumerate(G) if g['bar']}; bar_grp[0] = 0
    vt = {}; cnt_iv = {}
    for k in order:
        n_ = cnt_iv.get(first[k], 0); cnt_iv[first[k]] = n_ + 1
        vt[k] = cum[bar_grp[first[k]]] + n_ * (5 if k in fixed else 8)
    LA = lambda k: OPT.get('la0', 120) if k in fixed else OPT.get('la1', 400)
    NPRO = OPT.get('npro', 16)
    while qi < NPRO:
        k = order[qi]; phys[k] = try_alloc(k, -1); free_at[phys[k]] = fre[k]; issue_grp[k] = -1; qi += 1
    hole_end = -1; hole_left = 0
    for gi, g in enumerate(G):
        g['dma'] = []
        if g['kind'] in ('P1', 'PH') and OPT.get('hole'): g['rate'] = OPT.get('hr', 3)
        while qi < len(order) and len(g['dma']) < g['rate']:
            k = order[qi]
            if vt[k] - cum[gi] > LA(k): break
            if cum[gi] < hole_end and hole_left <= 0 and vt[k] - cum[gi] > OPT.get('hmin', 70): break
            pg = try_alloc(k, iv[gi])
            if pg is None: break
            assert iv[gi] < first[k], ("late DMA", k, gi)
            phys[k] = pg; free_at[pg] = fre[k]; issue_grp[k] = gi; g['dma'].append(k); qi += 1
            hole_left -= 2 if k[0] in ('HG', 'HU') else 1
            if OPT.get('hole') and k not in fixed and k[0] != 'D' and k[-1] == 0: hole_end = cum[gi] + OPT['hole']; hole_left = OPT.get('hn', 6)
    assert qi == len(order), order[qi]
    print("dma per group:", "".join(str(len(g['dma'])) for g in G), file=sys.stderr)
    slk = {}
    for k in order:
        if issue_grp[k] >= 0:
            kk_ = k[:2] if k[0] in 'GUD' else k[:1]
            slk[kk_] = min(slk.get(kk_, 9999), cum[bar_grp[first[k]]] - cum[issue_grp[k] + 1])
    print("min DMA slack (mfmas):", slk, file=sys.stderr)
    V_D8 = TMP + 25
    MG = {k[0] + (str(k[1]) if len(k) == 3 else ""): issue_grp[k] for k in order if k[0] != 'x' and k[0] != 'D' and k[-1] == 0}
    print("miss groups", MG, PS, file=sys.stderr)
    def mkdma(k):
        tag = "pg%d" % first[k]; pb = phys[k] * 4096
        if k[0] == 'x':
            pre = []
            if k[2] == 0 and k[1] > 0:
                pre = F("s_cmp_eq_u32 {ROT}, %d\ns_cselect_b32 {SP}, -8, 1\nv_lshl_add_u32 v%d, {SP}, 7, v%d" % (9 - k[1], V_DX, V_DX))
            m_, d_ = dma(V_DX, 'X', S_XQ + k[2], pb, 0, tag)
            return (pre + [m_], d_) if pre else (m_, d_)
        if k[0] == 'G': return dma(V_DW, 'WG', S_KK + k[2], pb, ioff(k), tag)
        if k[0] == 'U': return dma(V_DW, 'WU', S_KK + k[2], pb, ioff(k), tag)
        if k[0] == 'HG': return dma(V_DH, 'WG', S_KK + 2 * k[1], pb, 0, tag)
        if k[0] == 'HU': return dma(V_DH, 'WU', S_KK + 2 * k[1], pb, 0, tag)
        return dma(V_DD if k[1] else V_D8, 'WD', (S_DK if k[1] < 5 else S_KK) + k[2], pb, ioff(k), tag)
    def mkx(kind, pg, va, so="m0"):
        m_ = F("s_add_u32 m0, {W1K}, %d" % (pg * 4096))[0]
        d_ = F("buffer_load_dwordx4 v%d, {WS}, %s offen sc1 lds" % (va, so), tag=kind, lds_w=(pg * 4096, pg * 4096 + 4096))[0]
        return m_, d_
    MP = OPT.get('map', 1)
    IDS = """s_and_b32 {C}, s2, 3
s_lshl_b32 {C}, {C}, 2
s_bfe_u32 {a}, s2, 0x20003
s_add_u32 {C}, {C}, {a}
s_lshr_b32 {ROT}, s2, 5
s_lshl_b32 {T}, {ROT}, 1
s_bfe_u32 {b}, s2, 0x10002
s_add_u32 {T}, {T}, {b}
s_lshl_b32 {a}, {a}, 1
s_add_u32 {ROT}, {ROT}, {a}
s_cmp_ge_u32 {ROT}, 9
s_cselect_b32 {a}, 9, 0
s_sub_u32 {ROT}, {ROT}, {a}
""" if MP == 1 else """s_and_b32 {C}, s2, 7
s_lshl_b32 {C}, {C}, 1
s_bfe_u32 {a}, s2, 0x10003
s_add_u32 {C}, {C}, {a}
s_lshr_b32 {T}, s2, 4
s_lshl_b32 {a}, {a}, 2
s_add_u32 {ROT}, {T}, {a}
s_cmp_ge_u32 {ROT}, 9
s_cselect_b32 {a}, 9, 0
s_sub_u32 {ROT}, {ROT}, {a}
s_cmp_ge_u32 {ROT}, 9
s_cselect_b32 {a}, 9, 0
s_sub_u32 {ROT}, {ROT}, {a}
"""
    NEV = OPT.get('nev', 3)
    NPF = -(-(81 if MP == 1 else 41) // NEV)
    ROLES = """s_sub_u32 {GA}, 11, {C}
s_lshl_b32 {GA}, {GA}, 4
s_add_u32 {GA}, {GA}, {T}
s_cmp_lt_u32 {C}, 12
s_cselect_b32 {GA}, {GA}, 0x1000
s_add_u32 {GB}, {GA}, 192
""" if OPT.get('rol', 1) == 0 else """s_lshl_b32 {GA}, {C}, 4
s_add_u32 {GA}, {GA}, {T}
s_movk_i32 {GB}, 0x1000
s_cmp_eq_u32 {GA}, 80
s_cselect_b32 {GB}, 288, {GB}
s_lshr_b32 {a}, {C}, 2
s_lshl_b32 {b}, {a}, 4
s_add_u32 {b}, {b}, {T}
s_add_u32 {b}, {b}, 224
s_and_b32 {c}, {C}, 3
s_cmp_eq_u32 {c}, 2
s_cselect_b32 {GB}, {b}, {GB}
s_mul_i32 {b}, {T}, 11
s_lshr_b32 {b}, {b}, 5
s_mul_i32 {b}, {b}, 3
s_sub_u32 {b}, {T}, {b}
s_lshl_b32 {b}, {b}, 2
s_add_u32 {b}, {b}, 3
s_add_u32 {a}, {T}, 272
s_cmp_eq_u32 {b}, {C}
s_cselect_b32 {GB}, {a}, {GB}
s_cmp_lt_u32 {C}, 14
s_cselect_b32 {GA}, {GA}, 0x1000
s_cselect_b32 {GB}, {GB}, 0x1000
"""
    RV = OPT.get('rv', 0)
    if RV == 1: IDS += "s_mul_i32 {a}, {ROT}, 11\ns_lshr_b32 {a}, {a}, 5\ns_mul_i32 {a}, {a}, 3\ns_sub_u32 {ROT}, {ROT}, {a}\ns_mul_i32 {ROT}, {ROT}, 3\n"
    if RV == 2: IDS += "s_and_b32 {ROT}, {ROT}, 14\n"
    p = L("s_cmp_ge_u32 s2, 256\ns_cbranch_scc1 L_end_KN")
    if OPT['stamps']: p += L("v_mov_b32 v%d, 0" % VST[0])
    p += stamp(0)
    p += L("s_load_dwordx16 s[52:67], s[0:1], 0\ns_load_dwordx4 s[68:71], s[0:1], 64\ns_load_dwordx2 s[72:73], s[0:1], 80")
    p += vaddr64(L("s_getpc_b64 s[6:7]\nL_pc_KN:\nv_lshlrev_b32 v34, 5, v0\nv_mov_b32 v35, s7\nv_add_co_u32 v34, vcc, s6, v34\nv_addc_co_u32 v35, vcc, 0, v35, vcc"))
    p += [Ins("global_load_dword v%d, v[34:35], off" % VDM, 'vmem', V(34, 2), [])]
    p += F("""v_lshrrev_b32 v1, 6, v0
v_and_b32 v0, 63, v0
v_readfirstlane_b32 {W}, v1
v_and_b32 v1, 15, v0
v_lshrrev_b32 v2, 4, v0
IDSs_lshr_b32 {RG}, {W}, 1
s_and_b32 {FH}, {W}, 1
s_lshl_b32 {W1K}, {W}, 10
v_lshrrev_b32 v{DD}, 3, v0
s_lshl_b32 {a}, {W}, 3
v_add_u32 v{DD}, {a}, v{DD}
v_mul_u32_u24 v{DX}, %d, v{DD}
s_lshl_b32 {a}, {FH}, 2
v_add_u32 v{t0}, {a}, v2
v_xor_b32 v{t0}, v0, v{t0}
v_and_b32 v{t0}, 7, v{t0}
v_lshl_add_u32 v{DX}, v{t0}, 4, v{DX}
s_mul_i32 {a}, {T}, 2304
s_lshl_b32 {b}, {ROT}, 7
s_add_u32 {a}, {a}, {b}
v_add_u32 v{DX}, {a}, v{DX}
v_mul_u32_u24 v{DW}, 9216, v{DD}
v_bfe_u32 v{t0}, v0, 1, 2
v_and_b32 v{t1}, 1, v2
s_lshl_b32 {a}, {FH}, 1
v_or_b32 v{t1}, {a}, v{t1}
v_xor_b32 v{t1}, v{t1}, v{t0}
v_lshl_add_u32 v{DW}, v{t1}, 5, v{DW}
v_and_b32 v{t1}, 1, v0
v_lshl_add_u32 v{DW}, v{t1}, 4, v{DW}
s_mul_i32 {d}, {C}, 576
s_and_b32 {e}, {C}, 1
s_lshl_b32 {c}, {e}, 6
s_add_u32 {c}, {c}, {d}
v_add_u32 v{DW}, {c}, v{DW}""".replace("IDS", IDS) % (32 * 1152), **e)
    for q in range(4): p += L("s_mov_b32 s%d, %d" % (S_XQ + q, (1024 * (q & 1) + (q >> 1)) * 1152))
    def skk(m):
        KS = 32 * 9216
        if m == 0: q = F("s_mul_i32 s%d, {ROT}, %d" % (S_KK, 2 * KS))
        else: q = F("s_add_u32 s%d, s%d, %d\ns_cmp_eq_u32 {ROT}, %d\ns_cselect_b32 s%d, 0, s%d" % (S_KK + 2 * m, S_KK + 2 * m - 2, 2 * KS, 9 - m, S_KK + 2 * m, S_KK + 2 * m))
        return q + L("s_add_u32 s%d, s%d, %d" % (S_KK + 2 * m + 1, S_KK + 2 * m, KS))
    p += skk(0) + skk(1)
    for d_, n_ in ((8, 2048 * 1152), (12, 576 * 9216), (16, 576 * 9216)): p += L("s_mov_b32 s%d, 0x%x\ns_mov_b32 s%d, 0x20000" % (d_ + 2, n_, d_ + 3))
    p += L("s_waitcnt lgkmcnt(0)")
    pro = [k for k in order if issue_grp[k] < 0]
    p += L("s_mov_b32 s8, s52\ns_and_b32 s9, s53, 0xffff")
    for k in pro[:4]: p += flat(mkdma(k))
    p += L("s_mov_b32 s12, s60\ns_and_b32 s13, s61, 0xffff\ns_mov_b32 s16, s62\ns_and_b32 s17, s63, 0xffff")
    for k in pro[4:8]: p += flat(mkdma(k))
    p += F("s_cmp_eq_u32 {RG}, 0\ns_cselect_b32 s54, s54, s56\ns_cselect_b32 s55, s55, s57")
    p += srd(32, 54, 2048 * 578) + srd(20, 64, 4608 * 1152) + srd(40, 66, 1152) + srd(28, 70, 256) + srd(24, 72, WS_BYTES)
    p += vaddr64(F("""s_lshr_b32 {a}, s2, 3
s_lshl_b32 {a}, {a}, 2
s_add_u32 {a}, {a}, {W}
s_lshl_b32 {a}, {a}, 9
s_add_u32 {a}, {a}, 8192
v_lshlrev_b32 v34, 3, v0
v_add_u32 v34, {a}, v34
v_min_u32 v34, L_last_KN-L_pc_KN, v34
v_mov_b32 v35, s7
v_add_co_u32 v34, vcc, s6, v34
v_addc_co_u32 v35, vcc, 0, v35, vcc"""))
    p += [Ins("global_load_dword v%d, v[34:35], off" % VDM, 'vmem', V(34, 2), [])]
    g1, g2 = gate_code(SET[2] + 16, SET[2] + 24, [FB + 8, FB + 9, FB + 10, FB + 11, FB + 20, FB + 21, FB + 22, FB + 23])
    p += g1 + srd(40, 68, 2048 * 1152)
    p += F("s_cmp_lg_u32 {C}, 0\ns_cbranch_scc1 L_nw_KN") + nyw_load(TMP + 24, "nw") + L("L_nw_KN:")
    p += F("s_cmp_lg_u32 s2, 0\ns_cbranch_scc1 L_z_KN")
    p += F("v_mov_b32 v36, 0\nv_mov_b32 v37, 0\nv_mov_b32 v38, 0\nv_mov_b32 v39, 0\nv_lshlrev_b32 v40, 4, v0\ns_lshl_b32 {a}, {W}, 12\ns_add_u32 {a}, {a}, %d" % WS_C, opt="z")
    for i in range(4): p += F("buffer_store_dwordx4 v[36:39], v40, {WS}, {a} offen offset:%d sc1" % (i * 1024), opt="z", tag="zero")
    p += L("L_z_KN:")
    for m in range(2, 9): p += skk(m)
    w = F("""s_lshl_b32 {S2}, {T}, 1
s_add_u32 {S2}, {S2}, {RG}
v_lshrrev_b32 v{RW}, 2, v1
v_lshlrev_b32 v{RW}, 7, v{RW}
v_lshl_add_u32 v{RW}, v2, 10, v{RW}
v_and_b32 v{t0}, 3, v1
v_lshl_add_u32 v{RW}, v{t0}, 3, v{RW}
v_bfe_u32 v{t0}, v1, 3, 1
v_and_b32 v{t1}, 1, v2
v_lshl_add_u32 v{t0}, v{t1}, 1, v{t0}
s_lshl_b32 {a}, {FH}, 1
v_xor_b32 v{t0}, {a}, v{t0}
v_lshl_add_u32 v{RW}, v{t0}, 5, v{RW}
v_xor_b32 v{RW1}, 32, v{RW}
v_lshrrev_b32 v{t0}, 1, v1
v_xor_b32 v{t0}, v{t0}, v2
v_lshlrev_b32 v{t0}, 4, v{t0}
v_lshl_add_u32 v{RX}, v1, 7, v{t0}
s_lshl_b32 {a}, {RG}, 13
v_add_u32 v{RX}, {a}, v{RX}
v_xor_b32 v{RX1}, 64, v{RX}""", **e)
    for b in (V_RW, V_RW + 3, V_RX, V_RX + 3):
        w += L("v_add_u32 v%d, 0x10000, v%d\nv_add_u32 v%d, 0x20000, v%d" % (b + 1, b, b + 2, b))
    w += F("""v_or_b32 v{m}, {W}, v0
v_min_u32 v{m}, 1, v{m}
v_lshlrev_b32 v{m}, 31, v{m}
v_mul_u32_u24 v{DD}, 1152, v{DD}
v_bfe_u32 v{t0}, v0, 1, 2
v_xor_b32 v{t0}, v{t0}, v2
v_lshl_add_u32 v{DD}, v{t0}, 5, v{DD}
v_and_b32 v{t1}, 1, v0
v_lshl_add_u32 v{DD}, v{t1}, 4, v{DD}
v_lshrrev_b32 v{DH}, 2, v0
s_lshl_b32 {a}, {W}, 4
v_add_u32 v{DH}, {a}, v{DH}
v_mul_u32_u24 v{DH}, 9216, v{DH}
v_lshl_add_u32 v{DH}, v{t1}, 4, v{DH}
v_bfe_u32 v{t0}, v0, 1, 1
v_lshrrev_b32 v{t1}, 5, v0
v_xor_b32 v{t0}, v{t0}, v{t1}
v_lshl_add_u32 v{DH}, v{t0}, 5, v{DH}
s_cmp_eq_u32 {e}, 0
s_cselect_b32 {a}, 512, 0
s_add_u32 {a}, {a}, {d}
v_add_u32 v{DH}, {a}, v{DH}
v_lshlrev_b32 v{L16}, 4, v0
v_add_u32 v{L16B}, 0x10000, v{L16}
s_lshl_b32 {a}, {FH}, 13
s_lshl_b32 {b}, {RG}, 12
s_add_u32 {a}, {a}, {b}
v_add_u32 v{HW}, {a}, v{L16}
s_lshl_b32 {HB}, {T}, 4
s_add_u32 {HB}, {HB}, {C}
s_mul_i32 {HB}, {HB}, 73728
s_add_u32 {HB}, {HB}, %d
s_mov_b32 {Q}, 0x3e800000
s_mov_b32 {NL}, %s
s_add_u32 {KB1}, {C}, 2
s_add_u32 {KB3}, {C}, 4
s_cmp_lt_u32 {KB3}, 18
s_cselect_b32 {KB3}, {KB3}, 0
ROLESs_mul_i32 {a}, {C}, %d
s_mul_i32 {c}, {e}, %d
s_add_u32 s%d, {a}, {c}
s_cmp_eq_u32 {e}, 0
s_cselect_b32 {c}, %d, 0
s_add_u32 s%d, {a}, {c}
s_lshr_b32 {b}, {T}, {mp}
s_mul_i32 {b}, {b}, %d
s_add_u32 {a}, {a}, {b}
s_mul_i32 {b}, {W}, %d
s_add_u32 {a}, {a}, {b}
v_lshlrev_b32 v{pf}, 7, v0
v_add_u32 v{pf}, {a}, v{pf}
v_cmp_gt_u32 vcc, {npf}, v0
v_bfrev_b32 v{t0}, 2
s_lshl_b32 {S8}, {T}, 18
s_lshl_b32 {b}, {W}, 16
v_cndmask_b32 v{pf}, v{t0}, v{pf}, vcc
STAGs_add_u32 {S8}, {S8}, {b}
s_lshl_b32 {b}, {C}, 10
s_add_u32 {S8}, {S8}, {b}""".replace("ROLES", ROLES).replace("STAG", "s_lshr_b32 {a}, s2, %d\ns_lshl_b32 {a}, {a}, 31\nv_or_b32 v{pf}, {a}, v{pf}\n" % OPT.get('stb', 5) if OPT.get('stag') else "") % (WS_H, f2h(-math.log2(math.e)), 288 * 1152, 32 * 1152, S_DK, 256 * 1152, S_DK + 8, (36 if MP else 18) * 1152, (81 if MP else 41) * 128), m=V_M0, pf=VPF, mp=MP, npf=NPF, **e)
    for ks in range(1, 8): w += L("s_add_u32 s%d, s%d, %d" % (S_DK + ks, S_DK, ks * 32 * 1152))
    w += s2_scalars(ENV['GA'], ENV['WA'], ENV['SA']) + s2_scalars(ENV['GB'], ENV['WB'], ENV['SB'])
    TP = V_SIL
    TF = lambda kk: (SET[3] + 4 * kk) if kk < 8 else FB + 32
    TWA = lambda a_: (TMP + 8 * a_) if a_ < 3 else SET[3]
    def clears(r):
        n0 = OPT.get('cl0', 2)
        q0 = F("""s_lshl_b32 {g}, {T}, 1
s_and_b32 {SM_}, {C}, 1
s_add_u32 {g}, {g}, {SM_}
s_lshl_b32 {g}, {g}, 19
s_lshl_b32 {SM_}, {W}, 15
s_add_u32 {g}, {g}, {SM_}
s_lshr_b32 {SM_}, {C}, 1
s_lshl_b32 {SM_}, {SM_}, 10
s_add_u32 {g}, {g}, {SM_}
s_add_u32 {g}, {g}, %d""" % (WS_P + n0 * 131072))
        for i in range(4): q0 += L("v_mov_b32 v%d, -1" % (r + i))
        q1 = []
        for i in range(4 * (4 - n0)):
            q1 += F("buffer_store_dwordx4 v[%d:%d], v%d, {WS}, {g} offen sc1" % (r, r + 3, V_L16), tag="p8")
            q1 += F("s_add_u32 {g}, {g}, %d" % (8192 if i % 4 != 3 else 131072 - 3 * 8192))
        return q0, q1
    if OPT.get('sent') and OPT.get('clat', -1) < 0:
        q0, q1 = clears(SET[0] + 12); w += q0 + q1
    w += t_setup(TP, ENV['C'])
    p += w
    parts = [(lambda kk=kk: t_frag(kk, TF(kk), SET[1], TP)) for kk in range(9)] + [lambda: twiddle_A(TWA, SET[0], range(OPT.get('ntw', 3)))]
    dstart = OPT.get('dst', 0); rest = pro[8:]
    for n_, f_ in enumerate(parts):
        p += f_()
        if n_ >= dstart and rest: p += flat(mkdma(rest.pop(0)))
    for k in rest: p += flat(mkdma(k))
    sec = Sec2(); sec.smooth = bool(OPT.get('smooth', 1)); sec.hor = OPT.get('hor', 200); sec.eff = OPT.get('eff', 100) / 100.0; sec.sm0 = OPT.get('sm0', 320)
    def FBUF(gi): return FB + 12 * (gi % 3) if gi <= P2 else FB + 12 * ((gi - P2) & 1)
    assert P2 % 3 == 0
    def frag_reads(gi):
        g = G[gi]; out = []
        for e_, k in enumerate(g['need']):
            pb = phys[k] * 4096
            if k[0] in 'GU':
                ap = g['tau'] & 1 if g['kind'] == 'SB' else g['ap']
                base, o, d2 = V_RW + 3 * ap, pb, 512
            elif k[0] in ('HG', 'HU'): base, o, d2 = V_RX, pb + ((3 * g['gi'] + e_) & 1) * 2048, 256
            else: base, o, d2 = V_RX + 3, pb, 2048
            r = FBUF(gi) + 4 * e_
            out.append(L("ds_read_b64_tr_b16 v[%d:%d], v%d offset:%d\nds_read_b64_tr_b16 v[%d:%d], v%d offset:%d"
                         % (r, r + 1, base + (o >> 16), o & 0xffff, r + 2, r + 3, base + (o >> 16), (o & 0xffff) + d2), lds_r=(pb, pb + 4096), tag="f%d" % gi))
        return out
    def x_reads(sg, e_):
        kk = 2 * sg + e_; out = []; pb = phys[('x', sg, 0)] * 4096
        for mi in range(4):
            o = pb + mi * 2048
            out += L("ds_read_b128 %s, v%d offset:%d" % (rs(XF(mi, kk)), V_RX + 3 * e_ + (o >> 16), o & 0xffff), lds_r=(pb, pb + 16384), tag="x%d" % sg)
        return [out[0:2], out[2:4]]
    def h_read(n_, tag):
        o = (n_ >> 3) * 8192 + (n_ & 7) * 1024
        return L("ds_read_b128 %s, v%d offset:%d" % (rs(HF(n_ & 7, n_ >> 3)), V_L16B if o >> 16 else V_L16, o & 0xffff), lds_r=(o, o + 1024), tag=tag)[0]
    def silu_a(st, n_=32):
        out = []
        for i in range(0, n_, 4):
            T = V_SIL + (i & 4); rr = range(st + i, st + i + 4)
            out += [F("v_mul_f32 v%d, {NL}, v%d" % (T + j, r))[0] for j, r in enumerate(rr)]
            out += [I("v_exp_f32 v%d, v%d" % (T + j, T + j)) for j in range(4)]
            out += [I("v_add_f32 v%d, 1.0, v%d" % (T + j, T + j)) for j in range(4)]
            out += [I("v_rcp_f32 v%d, v%d" % (T + j, T + j)) for j in range(4)]
            out += [I("v_mul_f32 v%d, v%d, v%d" % (r, r, T + j)) for j, r in enumerate(rr)]
        return out
    def silu_b(sm, sp, b):
        out = []
        for mi in range(4):
            d = sp + 4 * mi
            for ap in range(2):
                o = (ap * 4 + mi) * 4
                out += [I("v_mul_f32 v%d, v%d, v%d" % (sm + o + r, sm + o + r, sp + o + r)) for r in range(4)]
            for ap in range(2):
                q = sm + (ap * 4 + mi) * 4
                out += [I("v_cvt_pk_bf16_f32 v%d, v%d, v%d" % (d + 2 * ap + h, q + 2 * h, q + 2 * h + 1)) for h in range(2)]
            out += L("ds_write_b128 v%d, v[%d:%d] offset:%d" % (V_HW, d, d + 3, b * 16384 + mi * 1024), lds_w=(b * 16384, b * 16384 + 16384), tag="hw%d" % b)
        return out
    def h_out(sp, b):
        out = F("s_add_u32 {HT}, {HB}, %d" % (b * 16384))
        for mi in range(4):
            out += F("buffer_store_dwordx4 v[%d:%d], v%d, {WS}, {HT} offen offset:%d sc1" % (sp + 4 * mi, sp + 4 * mi + 3, V_HW, mi * 1024), tag="gh0" if b < 2 else "gh1" if b < 3 else "gh2")
        return out
    def silu_bH(st):
        out = []
        for mi in range(4):
            gq, uq = st + 4 * mi, st + 16 + 4 * mi
            out += [I("v_mul_f32 v%d, v%d, v%d" % (gq + r, gq + r, uq + r)) for r in range(4)]
            out += [I("v_cvt_pk_bf16_f32 v%d, v%d, v%d" % (uq + h, gq + 2 * h, gq + 2 * h + 1)) for h in range(2)]
            out += L("ds_write_b64 v%d, v[%d:%d] offset:%d" % (V_HH, uq, uq + 1, mi * 1024), lds_w=(65536, 65536 + 8192), tag="hw4")
        return out
    PACC = [SET[1], SET[2], SET[1], SET[3], SET[0], SET[2], SET[1], SET[3], SET[0]]
    def out_ops(cb, ips=range(4)):
        acc = PACC[cb]; out = []
        for ip in ips:
            b = acc + 8 * ip
            if cb == 0: out += F("s_add_u32 {ST}, {S8}, 0x%x" % (WS_8 + ip * 16384))
            else: out += F("s_mov_b32 {ST}, 0x%x" % (WS_P + (cb - 5) * 131072 + ip * 8192))
            out += [I("v_cvt_pk_bf16_f32 v%d, v%d, v%d" % (b + d, b + 2 * d, b + 2 * d + 1)) for d in range(4)]
            if cb >= 7 and OPT.get('sent'): out += [I("v_min_u32 v%d, -2, v%d" % (b + d, b + d)) for d in range(4)]
            out += F("buffer_store_dwordx4 v[%d:%d], v%d, {WS}, {ST} offen sc1" % (b, b + 3, V_ST if cb else V_L16), tag="p8" if cb == 0 else "pA" if cb < 7 else "pB")
        return out
    p += stamp(1) + L("s_barrier", need_vm=("pg0",)) + stamp(2)
    xa, xb = x_reads(0, 0), x_reads(0, 1)
    for r_ in [xa[0], xb[0]] + frag_reads(0) + [xa[1], xb[1]] + frag_reads(1): p += r_
    q = g2()
    sec.stream(q[:98], 30, 188, "gate0")
    sec.stream(q[98:], 30, 300, "gate", "gate0")
    VP = TMP + 22
    HSP = OPT.get('hsp', 30)
    hq = {HU + 2: range(0, 6), HU + 3: range(6, 12), HU + 4: range(12, 18), HU + 5: range(18, 24), P2: range(24, 36), P2 + 1: range(36, 48), P2 + 2: range(48, 64), P2 + 3: range(64, 72)}
    qq = {P2 + 13 + i: range(12 * i, 12 * i + 12) for i in range(6)} if IL else {P2 + 13: range(0, 12), P2 + 14: range(12, 28), P2 + 15: range(28, 44), P2 + 16: range(44, 58), P2 + 17: range(58, 72)}
    VQ, VY = V_DW, V_DH
    xd = {}
    for i in range(12): xd.setdefault(gq1 + (i * (P2 + OPT.get('qe', 11) - gq1)) // 12, []).append(('q%d' % (i // 6), i, VQ))
    for i in range(12, 18): xd.setdefault(gq2 + (i - 12) // 3, []).append(('q2', i, VQ))
    for i in range(9): xd.setdefault(max(gY + 1 + i // OPT.get('yr', 3), P2 + 18 if i >= 6 else 0), []).append(('y', i, VY))
    S2D = [SET[2] + 16, SET[2] + 24]; S2W = [TMP, TMP + 8]
    M2, Z2, S2T, S2L = SET[3], SET[2], SET[3] + 24, 8 * 4096
    VS2 = TMP + 24
    for i, (va_, so_) in enumerate(((VS2, 'SA'), (VS2, 'WA'), (VS2 + 1, 'SB'), (VS2 + 1, 'WB'))): xd.setdefault(gc1 + i // 2, []).append(('ad', 8 + 4 * (i // 2) + (i & 1), va_, ENV[so_]))
    def pfw(it):
        i = F("buffer_load_dword v%d, v%d, {WD}, 0 offen" % (VDM, VPF))[0]
        if it < NEV - 1: i.wr = []
        return [i] + L("v_add_u32 v%d, %d, v%d" % (VPF, NPF * 128, VPF))
    KBX = "s_lshr_b32 {x}, {y}, 5\ns_cmp_eq_u32 {x}, 9\ns_cselect_b32 {x}, 0, {x}\ns_add_u32 {x}, {x}, {o}\ns_add_u32 {XA}, {T}, 34\ns_cmp_gt_u32 {y}, 288\ns_cselect_b32 {x}, {XA}, {x}\ns_lshl_b32 {x}, {x}, 7\ns_add_u32 {x}, {x}, %d\n" % WS_C
    kbx = lambda x, y, o: KBX.replace("{x}", "{%s}" % x).replace("{y}", "{%s}" % y).replace("{o}", str(o))
    W0 = "s_cmp_eq_u32 {W}, 0\ns_cselect_b32 {PE1}, {PE1}, 0\ns_cselect_b32 {PE2}, {PE2}, 0"
    CPF = {int(x): TMP + 20 for x in str(OPT.get('cpf', '0')).split(',') if x != '0'}
    RAW, RA2, NB, SDT = TMP, SET[3] + 16, FB + 24, FB + 32
    for gi, g in enumerate(G):
        base = sec.n(); fb = FBUF(gi); ms = []
        if g['kind'] == 'SB':
            st = SET[0] if g['tau'] < 2 else SET[1]
            for mi in range(4):
                for e_ in range(2):
                    acc = V(st + ((g['tau'] & 1) * 4 + mi) * 4, 4); kk = 2 * g['sg'] + e_
                    ms.append(mf(acc, V(fb + 4 * e_, 4), XF(mi, kk), acc if kk else None))
            if g['nm'] == 16:
                tm = []
                for mi in range(4):
                    for e_ in range(2):
                        kk = 2 * g['sg'] + e_
                        acc = V(SET[2] + 16 * (kk // 9) + 4 * mi, 4)
                        tm.append(mf(acc, XF(mi, kk), V(TF(kk % 9), 4), acc if kk % 9 else None))
                ms = ms + tm if g['sg'] < 8 else tm + ms
        elif g['kind'] in ('P1', 'PH'):
            st = SET[g['st']] + 16 * g['ap'] if g['kind'] == 'P1' else SET[0] + 16 * g['half']
            k0 = 3 * (g['sl'] if g['kind'] == 'P1' else g['gi'])
            for mi in range(4):
                for e_ in range(3):
                    acc = V(st + 4 * mi, 4)
                    ms.append(mf(acc, V(fb + 4 * e_, 4), XF(mi, k0 + e_), acc if k0 + e_ else None))
        else:
            for mi in range(8):
                for e_ in range(3):
                    acc = V(PACC[g['cb']] + 4 * mi, 4)
                    ms.append(mf(acc, V(fb + 4 * e_, 4), HF(mi, 3 * g['gi'] + e_), acc if (g['gi'] or e_ or g['cb'] >= 5) else None))
        lg = ["f%d" % gi]; vm = []
        if g['kind'] == 'SB' and g['tau'] == 0: lg.append("x%d" % g['sg'])
        if g['kind'] == 'P2' and g['cb'] == 0: lg.append("h%d" % g['gi'])
        if g['kind'] == 'P2' and g['cb'] == 5: lg.append("r%d" % g['gi'])
        if g['bar']:
            vm.append("pg%d" % iv[gi])
            for gx, tg in ((gar, "sa"), (P2 + 2, "hw3"), (P2 + 3, "hw4")):
                if gi == gx: lg.append(tg)
            for gx, tg in ((6, "zero"), (ga1, "pub1"), (gS2 - 1, "ad"), (ga2, "pub2"), (gfa, "pA"), (NG - 1, "y"), (ga2, "gh0"), (gh1, "gh1"), (gh2, "gh2"), (gf8, "p8"), (P2 + 13, "q0"), (P2 + 15 if IL else P2 + 14, "q1"), (P2 + 17 if IL else P2 + 16, "q2")):
                if gi == gx: vm.append(tg)
        if gi == ga1: sec.block(base - 1, check("0", VP, "0", ENV['PE1'], "DBG", 27))
        if gi in (gc1, gc2):
            n_ = "1" if gi == gc1 else "2"
            sec.block(base - 1, check(n_ + "a", VP, ENV['PO1'], ENV['PE1'], sidx=28 if gi == gc1 else 29) + check(n_ + "b", VP + 1, ENV['PO2'], ENV['PE2']))
        if gi == gq0 and QP: sec.block(base - 1, check("q0", VP + 2, ENV['SB'], ENV['SM_']))
        if gi == gq1: sec.block(base - 1, check("q1", VP + 2, ENV['SB'], ENV['SM_'], sidx=22))
        if gi == gq2: sec.block(base - 1, check("q2", VP + 2, ENV['SB'], ENV['SM_'], sidx=23))
        if gi == gY: sec.block(base - 1, check("8", VP, ENV['PO1'], ENV['PE1'], sidx=26))
        if gi:
            if sec.blk.get(base - 1): sec.block(base - 1, [Need(vm, lg)])
            else: sec.at(base - 1, Need(vm, lg))
        for m_ in ms: sec.mfma(m_)
        nm = g['nm']; end = sec.n()
        sidx = None
        if g['kind'] in ('P1', 'PH') and PS[g['ps']] == gi: sidx = 3 + list(PS).index(g['ps'])
        if g['kind'] == 'P2' and (gi - P2) % 3 == 0: sidx = 11 + (gi - P2) // 3
        if OPT.get('diag') == 7:
            g0 = OPT.get('g0', 36); sp = OPT.get('gs', 4)
            sidx = 3 + (gi - g0) // sp if (g0 <= gi < g0 + 17 * sp and (gi - g0) % sp == 0) else None
        if OPT.get('diag') in (8, 11): sidx = None
        gap = 0
        if g['bar']:
            sec.at(base, L("s_barrier", need_vm=tuple(vm), need_lgkm=tuple(lg))); gap = 1
        if sidx is not None and OPT['stamps']: sec.block(base, stamp(sidx))
        pairs = []
        for n_ in range(gi + 1, min(NG, gi + 3)):
            if rdg(n_) == gi: pairs += frag_reads(n_)
        hr = []
        if g['xr'] and g['tau'] == 2:
            xa_, xb_ = x_reads(g['xr'][0], 0), x_reads(g['xr'][0], 1)
            sec.stream(flat([xa_[0], xb_[0], xa_[1], xb_[1]]), base + 1, end + 10, "", None, OPT.get('xsp', 2))
        hr += [h_read(n_, "h%d" % (n_ // 24)) for n_ in hq.get(gi, [])] + [h_read(n_, "r%d" % (n_ // 24)) for n_ in qq.get(gi, [])]
        dm = [mkdma(k) for k in g['dma']] + [mkx(*k) for k in xd.get(gi, [])]
        lo, hi = gap + 1, nm - 2
        dpos = [lo + ((2 * k_ + 1) * (hi - lo + 1)) // (2 * len(dm)) for k_ in range(len(dm))]
        for k_ in range(1, len(dm)): dpos[k_] = max(dpos[k_], dpos[k_ - 1] + 2)
        for k_ in range(len(dm) - 1, -1, -1): dpos[k_] = min(dpos[k_], hi if k_ == len(dm) - 1 else dpos[k_ + 1] - 2)
        assert not dm or dpos[0] >= lo, (gi, dpos)
        for ps_, it in zip(dpos, dm):
            if isinstance(it[0], list): sec.block(base + ps_ - 1, it[0])
            else: sec.at(base + ps_ - 1, it[0])
            sec.at(base + ps_, it[1])
        fr = [x for x in range(gap, nm) if x not in dpos]
        if g['kind'] == 'P2': sel = fr[0:2 * len(pairs):2]
        else: sel = [fr[(k_ * len(fr)) // len(pairs)] for k_ in range(len(pairs))] if pairs else []
        for ps_, it in zip(sel, pairs): sec.at(base + ps_, it)
        if hr: sec.stream(hr, base + gap, end - (5 if nm > 12 else 1), "", None, 1)
        if OPT.get('diag') == 11:
            g0 = OPT.get('g0', 0); sp = OPT.get('gs', 3)
            li = (gi - g0) // sp
            if gi >= g0 and (gi - g0) % sp == 0 and li < 58:
                li = 3 + li if li < 17 else 16 + li + (2 if li >= 17 else 0)
                fg = [x for x in fr if not sec.sc.get(base + x) and x < nm - 3][0]
                if li < 63 and li not in (52, 53):
                    sec.at(base + fg, Ins("s_memtime s[4:5]", 'salu', [], S(4, 2)))
                    sec.block(base + nm - 2, L("v_writelane_b32 v%d, s4, %d" % (VST[0], li)))
                    print("light", li, gi, base + fg, file=sys.stderr)
        if gi == 6:
            q = F("s_cmp_lg_u32 s2, 0\ns_cbranch_scc1 L_zf_KN") + L("v_mov_b32 v31, 1", opt="zf")
            sec.block(end - 1, q + F("buffer_store_dword v31, v%d, {DBG}, 0 offen sc1" % V_M0, opt="zf") + L("L_zf_KN:"))
        if gi == 19: sec.block(end - 1, F("s_cmp_lg_u32 {C}, 0\ns_cbranch_scc1 L_nw2_KN") + nyw_store(TMP + 24, TMP + 25, 31, "nw2") + L("L_nw2_KN:"))
        if gi == OPT.get('clat', -1):
            q0, q1 = clears(V_SIL if gi < 0 else TMP + 16)
            sec.stream(q0, end, end + 30, "cl0")
            sec.stream(q1, end, end + 400, "cl1", "cl0", OPT.get('csp', 30))
        if gi == 27: sec.stream(twiddle_A(TWA, SET[3] + 8, range(OPT.get('ntw', 3), 4)), end, end + 46, "twA")
        if gi == 32: sec.stream(sA_front(SET[2], SET[3] + 8, TP) + L("v_mov_b32 v%d, v%d" % (TMP + 24, TP + 4)) + sA_dest(ENV['g'], ENV['C'], None), base + 10, base + 37, "sAf", "twA")
        if gi == PS['G1'] - 1:
            e2 = dict(e); e2.update(t0=TMP + 20, t1=TMP + 21)
            sw = F("""v_lshrrev_b32 v{RX}, 2, v1
v_lshl_add_u32 v{RX}, v2, 3, v{RX}
v_lshlrev_b32 v{RX}, 6, v{RX}
v_and_b32 v{t0}, 3, v1
v_lshl_add_u32 v{RX}, v{t0}, 3, v{RX}
v_and_b32 v{t1}, 1, v2
v_xor_b32 v{t1}, {FH}, v{t1}
v_lshl_add_u32 v{RX}, v{t1}, 5, v{RX}
v_lshrrev_b32 v{RX1}, 2, v1
v_lshl_add_u32 v{RX1}, v2, 2, v{RX1}
v_bfe_u32 v{t1}, v{RX1}, 1, 2
v_xor_b32 v{t1}, {W}, v{t1}
v_lshlrev_b32 v{RX1}, 7, v{RX1}
v_lshl_add_u32 v{RX1}, v{t1}, 5, v{RX1}
v_lshl_add_u32 v{RX1}, v{t0}, 3, v{RX1}
v_mov_b32 v{one}, 1""", d8=V_D8, one=V_ONE, **e2)
            for b in (V_RX, V_RX + 3): sw += L("v_add_u32 v%d, 0x10000, v%d\nv_add_u32 v%d, 0x20000, v%d" % (b + 1, b, b + 2, b))
            sw += F("s_cmp_eq_u32 {W}, 0\ns_cselect_b32 {PE1}, 1, 0\ns_lshr_b32 {PO1}, {C}, 1\ns_lshl_b32 {PO1}, {PO1}, 7\ns_add_u32 {PO1}, {PO1}, %d\ns_add_u32 {PO2}, {T}, 34\ns_cmp_lt_u32 {KB1}, 16\ns_cselect_b32 {PO2}, {PO2}, 8\ns_lshl_b32 {PO2}, {PO2}, 7\ns_add_u32 {PO2}, {PO2}, %d" % (WS_C, WS_C))
            for m_ in sA_mfma(SET[2], TWA, SET[3] + 8): sec.mfma(m_)
            end = sec.n()
            blk = F("s_cmp_lt_u32 {KB1}, 16\ns_cbranch_scc1 L_x1_KN")
            o = "x1"; s1 = Sec2(); XS = SET[3] + 8; XFr = SET[3] + 24; XD = FBUF(gi)
            s1.pre = t_setup(TP, ENV['KB1'], opt=o) + sA_back(SET[2], XD, TMP + 24, XD + 8, 8704, ENV['a'], ENV['b'], opt=o) + t_frag(0, XFr, XS, TP, opt=o)
            for kk in range(9):
                b0 = s1.n()
                for hh in range(2):
                    for mi in range(4):
                        acc = V(SET[2] + 16 * hh + 4 * mi, 4)
                        s1.mfma(mf(acc, XF(mi, kk + 9 * hh), V(XFr + 4 * (kk & 1), 4), acc if kk else None, o))
                if kk < 8: s1.stream(t_frag(kk + 1, XFr + 4 * ((kk + 1) & 1), XS, TP, opt=o), b0, b0 + 6)
                if kk == 2: s1.at(b0 + 7, L("s_barrier", need_lgkm=("sa",), opt=o))
                if kk == 3: s1.at(b0 + 7, sA_read(XD, XD + 8, 8704, opt=o))
                if kk == 8: s1.stream(sA_store(XD, ENV['g'], opt=o) + sA_dest(ENV['g'], ENV['KB1'], None, opt=o), b0, b0 + 7)
            blk += s1.flatten() + sA_front(SET[2], SET[3] + 8, TP, opt=o) + sA_mfma(SET[2], TWA, SET[3] + 8, opt=o) + L("L_x1_KN:")
            sec.block(end - 1, blk)
            sec.block(end + 4, sA_ny(SET[2], TMP + 10))
            sec.stream(sA_back(SET[2], TMP, TMP + 24, TMP + 8, 0, ENV['u'], ENV['w']), end + 5, end + 56, "sAb")
            sec.stream(sA_read(TMP, TMP + 8, 0), end + 12 * (gar - gi - 1) + 1, end + 12 * (gar - gi - 1) + 6, "sAr", "sAb")
            sec.stream(sA_store(TMP, ENV['g']), end + 12 * (gar - gi - 1) + 14, end + 12 * (gar - gi - 1) + 26, "sAs", "sAr")
            for i in sw: Ins.seq += 1; i.id = Ins.seq
            sec.stream(sw, end + 5, end + 130, "sw", "sAb")
            sec.stream(poll(VP, "0", "DBG"), end, end + 12, "p0")
            sec.stream(silu_a(SET[0]), end, end + 245, "a0")
            sec.stream(silu_b(SET[0], SET[1], 0), end + 145, end + 286, "b0", "a0")
            sec.stream(h_out(SET[1], 0), end + 12 * (OPT.get('o0at', 48) - 36), end + 428, "o0", "b0", HSP)
        if g['kind'] == 'P1' and g['sl'] == 5 and g['ap'] == 1:
            ps = g['ps']
            if ps == 'G1': sec.stream(silu_a(SET[3]), end + 2, end + 287 + OPT.get('b1e', 96) - 40, "a1", "a0")
            if ps == 'U1':
                sec.stream(silu_b(SET[3], SET[2], 1), end + 2, end + 143 + OPT.get('b1e', 96), "b1", "a1")
                sec.stream(h_out(SET[2], 1), end + 12 * (OPT.get('o1at', 82) - 60), end + 284, "o1", "b1,o0", HSP)
            if ps == 'G2': sec.stream(silu_a(SET[0]), end + 2, end + 380, "a2", "a1")
            if ps == 'U2':
                sec.stream(silu_b(SET[0], SET[1], 2), end + 2, end + 286, "b2", "a2")
                sec.stream(h_out(SET[1], 2), end + 12 * (OPT.get('o2at', 84) - 84), end + 260, "o2", "b2", min(20, HSP))
            if ps == 'G3': sec.stream(silu_a(SET[3]), end + 2, end + 144 + OPT.get('a3e', 100), "a3", "a2")
            if ps == 'U3':
                sec.stream(silu_b(SET[2], SET[3], 3), end + 2, end + 144 + 22, "b3", "a3")
                sec.stream(h_out(SET[3], 3), end + 2, end + 144 + 100, "o3", "b3,o2", min(16, HSP))
        if g['kind'] == 'PH' and g['gi'] == 5:
            if g['half'] == 0: sec.stream(silu_a(SET[0], 16), end + 2, end + 72 + 46, "aH", "a3")
            else: sec.stream(silu_bH(SET[0]), end + 2, end + 62, "bH", "aH")
        for it in range(NEV):
            g_ = PS['G1'] + OPT.get('pfd0', 8) + (it * OPT.get('pfs', 36)) // NEV
            tg = L("v_xor_b32 v%d, 0x80000000, v%d" % (VPF, VPF)) if OPT.get('stag') and gi in (g_, g_ - OPT['stag']) else []
            if OPT.get('stag') and gi == g_ - OPT['stag']:
                q = pfw(-1)[:1]; Ins.seq += 1; tg[0].id = Ins.seq
                sec.stream(q + tg, base, base + 10, "pe%d" % it)
            if gi == g_:
                q = pfw(it)
                if tg: Ins.seq += 1; tg[0].id = Ins.seq
                sec.stream(q + tg, base, base + 10, "pf%d" % it)
        if gi == PS['G3'] + OPT.get('pfh', 1):
            q = F("""s_lshr_b32 {f}, {T}, 1
s_lshl_b32 {g}, {W}, 3
s_add_u32 {f}, {f}, {g}
v_lshl_add_u32 v{r}, v0, 5, {f}
v_mul_u32_u24 v{r}, 9216, v{r}
s_or_b32 {f}, {C}, 1
s_mul_i32 {f}, {f}, 576
s_and_b32 {g}, {C}, 1
s_cmp_eq_u32 {g}, 0
s_cselect_b32 s8, s12, s16
s_cselect_b32 s9, s13, s17
s_mov_b32 s10, %d
s_mov_b32 s11, 0x20000
buffer_load_dword v{r}, v{r}, s[8:11], {f} offen""" % (576 * 9216), r=TMP + 16)
            sec.stream(q, base, base + 30, "pfh")
        for x in str(OPT.get('pgu', 'U367')).split(','):
            if x and gi == int(x[2:]):
                q = F("""s_lshr_b32 {d}, {T}, 1
s_lshl_b32 {e}, {W}, 3
s_add_u32 {d}, {d}, {e}
v_lshl_add_u32 v{r}, v0, 5, {d}
v_mul_u32_u24 v{r}, 9216, v{r}
s_mul_i32 {d}, {C}, 576
s_and_b32 {e}, {C}, 1
s_lshl_b32 {e}, {e}, 6
s_add_u32 {d}, {d}, {e}""", r=TMP + 18)
                for ch in {'G': ['WG'], 'U': ['WU'], 'B': ['WG', 'WU']}[x[0]]:
                    q += F("buffer_load_dword v%d, v%d, {%s}, {d} offen offset:%d" % (TMP + (19 if ch == 'WG' else 20), TMP + 18, ch, 128 * int(x[1])))
                sec.stream(q, base, base + 22, "pg" + x)
        if OPT.get('idle') and g['kind'] == 'P1' and gi % OPT.get('idm', 12) == 5: sec.block(base + 3, L('s_sleep %d' % OPT['idle']))
        if gi in CPF:
            r = CPF[gi]
            q = vaddr64(F("""s_lshr_b32 {c}, s2, 3
s_lshl_b32 {c}, {c}, 2
s_add_u32 {c}, {c}, {W}
s_lshl_b32 {c}, {c}, %d
v_lshl_add_u32 v{r}, v0, %d, {c}
s_getpc_b64 s[84:85]
v_mov_b32 v{r1}, s85
v_add_co_u32 v{r}, vcc, s84, v{r}
v_addc_co_u32 v{r1}, vcc, 0, v{r1}, vcc""" % ((8, 2) if OPT.get('cw', 1) else (7, 1)), r=r, r1=r + 1))
            q.append(Ins("global_load_ubyte v%d, v[%d:%d], off" % (r, r, r + 1), 'vmem', V(r, 2), V(r, 1)))
            sec.stream(q, base + 2, base + 22, "cp%d" % gi)
        if gi == ga1: sec.stream(signal(ENV['PO1']) + signal(ENV['PO2']), base + 1, base + 11, "ar1")
        for r_, (gam, wo) in enumerate((('GA', 'WA'), ('GB', 'WB'))):
            if gi == PS['U1'] + OPT.get('w%dat' % r_, 1 + 12 * r_): sec.stream(s2_wloads(ENV[gam], ENV[wo], S2W[r_], TMP + 16, TMP + 17), base, base + 22, "w%d" % r_)
        if gi == gc1 - 6:
            q = F(kbx('PO1', 'GA', 0) + kbx('PO2', 'GB', 0)) + poll(VP, ENV['PO1']) + poll(VP + 1, ENV['PO2'])
            q += F("s_cmp_gt_u32 {GA}, 288\ns_cselect_b32 {PE1}, 0, 32\ns_cmp_gt_u32 {GB}, 288\ns_cselect_b32 {PE2}, 0, 32\n" + W0)
            sec.stream(q[:18], base - 50, base - 4, "p1a")
            sec.stream(q[18:20], base + OPT.get('p1d', 0), base + OPT.get('p1d', 0) + 8, "p1", "p1a")
            sec.stream(q[20:], base - 50, base + 60, "p1b", "p1")
        if gi == gc1:
            sec.block(base, F("s_cmp_lg_u32 {GB}, 288\ns_cbranch_scc1 L_s2n_KN") + s2_wspecial(S2W[1], TMP + 16, TMP + 17, "s2n") + L("L_s2n_KN:"))
            sec.stream(s2_addr(S2T, S2L, False), base + 2, base + 12 * (gS2 - gi) + 10, "s2pre", "b1")
        if gi == gc1 - 2:
            q = s2_gaddr(VS2, VS2 + 1, False) + F("""s_cmp_le_u32 {GB}, 288
s_cselect_b32 {f}, 0, 0x80000000
v_or_b32 v{y}, {f}, v{x}
s_cmp_le_u32 {GA}, 288
s_cselect_b32 {f}, 0, 0x80000000
v_or_b32 v{x}, {f}, v{x}
s_add_u32 {WA}, {SA}, %d
s_add_u32 {WB}, {SB}, %d""" % (KB_STRIDE, KB_STRIDE), x=VS2, y=VS2 + 1)
            sec.stream(q, base - 12, base + 22, "dl")
        if gi == gS2:
            R0 = (ENV['SA'], S2D[0], lambda i: Z2 + i, S2W[0], ENV['a'], ENV['b'])
            R1 = (ENV['SB'], S2D[1], lambda i: fb + i if i < 12 else TMP + 8 + i, S2W[1], ENV['c'], ENV['d'])
            blk = F("s_cmp_gt_u32 {GA}, 288\ns_cbranch_scc1 L_s2e_KN\ns_cmp_gt_u32 {GB}, 288\ns_cbranch_scc0 L_s2d_KN")
            blk += s2_compute([R0], M2, S2T, TMP + 16, S2L, "ex1", Z2, VS2) + L("s_branch L_s2e_KN", opt="ex1") + L("L_s2d_KN:")
            blk += s2_compute([R0, R1], M2, S2T, TMP + 16, S2L, "ex2", Z2, VS2) + L("L_s2e_KN:")
            sec.block(end - 1, blk)
            q = F(kbx('PO1', 'GA', 9) + kbx('PO2', 'GB', 9))
            q += F("""s_lshl_b32 {u}, {FH}, 3
s_lshl_b32 {w}, {RG}, 12
s_add_u32 {u}, {u}, {w}
v_add_u32 v{HH}, {u}, v{L16B}
s_lshl_b32 {u}, {T}, 1
s_and_b32 {w}, {C}, 1
s_add_u32 {u}, {u}, {w}
s_lshl_b32 {u}, {u}, 19
s_lshl_b32 {w}, {W}, 15
s_add_u32 {u}, {u}, {w}
s_lshr_b32 {w}, {C}, 1
s_lshl_b32 {w}, {w}, 10
s_add_u32 {u}, {u}, {w}
v_add_u32 v{VST_}, {u}, v{L16}
v_add_u32 v{d8}, 0x400, v{DD}
s_and_b32 {u}, {C}, 1
v_lshl_add_u32 v{DD}, {u}, 9, v{DD}
s_lshl_b32 {XA}, {T}, 7
s_lshl_b32 {SB}, {C}, 2
s_add_u32 {XA}, {XA}, {SB}
s_add_u32 {XA}, {XA}, %d
s_xor_b32 {SB}, {XA}, 4
s_cmp_eq_u32 {W}, 0
s_cselect_b32 {SM_}, 1, 0""" % CL(50), d8=V_D8, **e)
            sec.stream(q[:18], end, end + 12 * (ga2 - gi - 1) - 2, "a2s")
            sec.stream(q[18:], end + 90, end + 200, "a2t", "a2s")
        if gi == ga2: sec.stream(signal(ENV['PO1']) + signal(ENV['PO2']) + (signal(ENV['XA']) if QP else []), base + 1, base + 14, "ar2")
        if gi == gq0 - 6 and QP:
            q = poll(VP + 2, ENV['SB']) + F("""s_xor_b32 {u}, {C}, 1
s_sub_u32 {w}, {u}, {C}
s_mul_i32 {w}, {w}, 73728
s_add_u32 {w}, {w}, {HB}
s_lshl_b32 {u}, {W}, 12
s_add_u32 {w}, {w}, {u}
v_and_b32 v{r}, 31, v0
v_lshlrev_b32 v{r}, 7, v{r}
v_add_u32 v{r}, {w}, v{r}
s_movk_i32 {u}, 0x4000""", r=TMP + 17)
            sec.stream(q, base, base + 60, "pq00")
        if gi == gq0 and QP:
            sec.stream(F("buffer_load_dword v%d, v%d, {WS}, 0 offen sc1" % (TMP + 18, TMP + 17)), base + 1, base + 10, "qpa")
            sec.stream(F("buffer_load_dword v%d, v%d, {WS}, {u} offen sc1\ns_lshl_b32 {SM_}, {SM_}, 1" % (TMP + 19, TMP + 17)), base + 1 + OPT.get('qpd', 48), base + 12 + OPT.get('qpd', 48), "qpb")
        if gi == gc2 - OPT.get('p2d', 8):
            q = F("s_lshr_b32 {PO1}, {C}, 1\ns_lshl_b32 {PO1}, {PO1}, 7\ns_add_u32 {PO1}, {PO1}, %d\ns_mov_b32 {PO2}, %d" % (CL(9), CL(17))) + poll(VP, ENV['PO1']) + poll(VP + 1, ENV['PO2'])
            q += F("s_cmp_lt_u32 {C}, 2\ns_cselect_b32 {PE1}, 33, 32\ns_cmp_lt_u32 {KB3}, 16\ns_cselect_b32 {PE2}, 0, 32\n" + W0)
            sec.stream(q, base - 6, base + 30, "p2")
        if gi in (gh1, gh2): sec.stream(signal(ENV['XA']), base + 1, base + 10, "sh%d" % gi)
        if gi == gc2:
            q = stepD_loads(ENV['C'], RAW)
            for i in q:
                i.text = i.text.replace(ENV['a'], ENV['f']).replace(ENV['b'], ENV['g'])
                fx = lambda lst: [('s', 38) if r == ('s', 84) else ('s', 39) if r == ('s', 85) else r for r in lst]
                i.rd = fx(i.rd); i.wr = fx(i.wr)
            sec.stream(q, base + 1, base + 40, "sdl")
        if gi == HU + 3:
            q = poll(VP + 2, ENV['SB'])
            q += F("""s_xor_b32 {u}, {C}, 1
s_sub_u32 {w}, {u}, {C}
s_mul_i32 {w}, {w}, 73728
s_add_u32 {w}, {w}, {HB}
v_add_u32 v%d, {w}, v%d
s_and_b32 {w}, {u}, 1
s_mul_i32 {u}, {u}, %d
s_mul_i32 s%d, {w}, %d
s_add_u32 s%d, s%d, {u}
s_xor_b32 {w}, {w}, 1
s_mul_i32 {w}, {w}, %d
s_add_u32 s%d, {u}, {w}""" % (VQ, V_L16, 288 * 1152, S_KK, 32 * 1152, S_KK, S_KK, 256 * 1152, S_KK + 8))
            for ks in range(1, 8): q += L("s_add_u32 s%d, s%d, %d" % (S_KK + ks, S_KK, ks * 32 * 1152))
            sec.stream(q[:6], base - 6, base + 20, "pq0")
            sec.stream(q[6:], base + 6, base + 130, "pq1", "pq0")
        if gi == P2 + 1:
            blk = F("s_lshl_b32 {a}, {S2}, 12\ns_add_u32 {a}, {a}, %d\ns_cmp_lg_u32 {C}, 0\ns_cbranch_scc1 L_nyl_KN" % WS_B) + stepD_nyloads(RA2, SDT, "nyl") + L("L_nyl_KN:")
            blk += F("s_cmp_lt_u32 {KB3}, 16\ns_cbranch_scc1 L_d2l_KN") + stepD_loads(ENV['KB3'], RA2, opt="d2l") + L("L_d2l_KN:")
            sec.block(base, blk)
        if gi == P2 + 3:
            q = F("s_lshl_b32 {d}, {W}, 11\nv_add_u32 v%d, {d}, v%d" % (V_HH, V_L16B))
            q += L("ds_read_b128 v[%d:%d], v%d\nds_read_b128 v[%d:%d], v%d offset:1024" % (V_SIL, V_SIL + 3, V_HH, V_SIL + 4, V_SIL + 7, V_HH), lds_r=(65536, 73728), tag="lds")
            sec.stream(q, base + 1, base + 16, "hh1", "bH")
            q = F("buffer_store_dwordx4 v[%d:%d], v%d, {WS}, {HB} offen sc1\nbuffer_store_dwordx4 v[%d:%d], v%d, {WS}, {HB} offen offset:1024 sc1"
                  % (V_SIL, V_SIL + 3, V_HH, V_SIL + 4, V_SIL + 7, V_HH), tag="gh2")
            sec.stream(q, base + 20, base + 34, "hh2", "hh1")
            sec.stream(twiddle_D(SET[0], SET[0] + 16), base, base + 24 * (gSD - gi) + 68, "twD", "pq1,bH")
        if gi == gSD:
            SD = stepD_parts(RAW, RA2, NB, SET[0], SET[0] + 16, SDT, 18 * 4096, ENV['C'], ENV['SA'])
            sec.stream(SD[0], base + 1, base + 54, "sd0")
            sec.stream(SD[1], base + 60, base + 69, "sd1", "sd0")
        if gi == gSD + 2:
            for m_ in SD[2]: sec.mfma(m_)
            sec.block(sec.n() - 1, SD[3])
            for m_ in SD[4]: sec.mfma(m_)
            sec.stream(SD[5], sec.n() + 2, sec.n() + 44, "sd5")
        if gi == gSD + 4:
            blk = F("s_cmp_lt_u32 {KB3}, 16\ns_cbranch_scc1 L_d2_KN")
            for part in stepD_parts(RA2, None, NB, SET[0], SET[0] + 16, SDT, 18 * 4096, ENV['KB3'], ENV['SA'], opt="d2"): blk += part
            sec.block(end - 1, blk + L("L_d2_KN:"))
        if gi == gq2 - 2: sec.stream(F("s_lshr_b32 {SM_}, {SM_}, 1\ns_mul_i32 {SM_}, {SM_}, 3" if QP else "s_lshl_b32 {SM_}, {SM_}, 1") + poll(VP + 2, ENV['SB']), base + 1, base + 8, "pq2")
        if gi == gf8 - 1:
            q = F("""s_lshl_b32 {PO1}, {T}, 7
s_add_u32 {PO1}, {PO1}, %d
s_cmp_eq_u32 {W}, 0
s_cselect_b32 {PE1}, 16, 0
s_lshr_b32 {PE2}, {C}, 2
s_lshl_b32 {u}, {T}, 2
s_add_u32 {u}, {u}, {PE2}
s_mul_i32 {u}, {u}, 36864
s_add_u32 {u}, {u}, %d
v_add_u32 v%d, {u}, v%d""" % (CL(18), WS_Y, VY, V_L16))
            sec.stream(q, base - 20, base + 22, "f8s")
        if gi == gf8: sec.stream(signal(ENV['PO1']), base + 1, base + 12, "f8")
        if gi == gY - 3: sec.stream(poll(VP, ENV['PO1']), base + 1, base + 12, "p8")
        if gi == gY + OPT.get('l8d', 0):
            q = F("""s_and_b32 {u}, {C}, 3
s_lshl_b32 {u}, {u}, 2
s_add_u32 {u}, {u}, {PE2}
s_lshl_b32 {w}, {T}, 4
s_add_u32 {u}, {u}, {w}
s_lshl_b32 {u}, {u}, 2
s_add_u32 {u}, {u}, {W}
s_lshl_b32 {u}, {u}, 12
s_add_u32 {u}, {u}, %d""" % WS_8)
            for i in range(4): q += F("buffer_load_dwordx4 v[%d:%d], v%d, {WS}, {u} offen offset:%d sc1" % (TMP + 4 * i, TMP + 4 * i + 3, V_L16, i * 1024))
            q += F("""s_lshl_b32 {u}, {T}, 1
s_and_b32 {w}, {C}, 1
s_add_u32 {u}, {u}, {w}
s_lshl_b32 {PO1}, {u}, 7
s_add_u32 {PO1}, {PO1}, %d
s_lshr_b32 {PE1}, {PE1}, 1
s_lshl_b32 {XA}, {u}, 2
s_add_u32 {XA}, {XA}, {RG}
s_lshl_b32 {XA}, {XA}, 2
s_and_b32 {w}, {C}, 2
s_add_u32 {XA}, {XA}, {w}
s_add_u32 {XA}, {XA}, {FH}
s_lshl_b32 {XA}, {XA}, 2
s_add_u32 {XA}, {XA}, {PE2}
s_lshl_b32 {XA}, {XA}, 13
s_add_u32 {XA}, {XA}, %d""" % (CL(66), WS_P))
            sec.stream(q[:9], base - 20, base + 4, "l8a", "f8s")
            sec.stream(q[9:13], base + 1, base + 40, "l8b", "l8a", OPT.get('lsp', 6))
            sec.stream(q[13:], base, base + 120, "l8", "l8b")
        if gi == gfa: sec.stream(signal(ENV['PO1']), base + 1, base + 8, "fa")
        if gi == NG - 1 and OPT.get('pae'): sec.stream(poll(VP, ENV['PO1']), base + 4, base + 7, "pA", "fa")
        if g['kind'] == 'P2' and g['gi'] == 2 and g['cb'] in (0, 5, 6, 7, 8):
            cb = g['cb']
            for ip in range(4 if cb < 8 else 3):
                osp = OPT.get('osp', 12)
                st0 = base + 6 * ip + 8 if cb in (0, 8) else base + 8 + osp * ip + (4 * osp - 24 if cb == 6 and IL else 0)
                sec.stream(out_ops(cb, [ip]), st0, min(end - 1, st0 + 6) if cb == 8 else st0 + OPT.get('ow', 12), "out%d%s" % (cb, "" if ip == 3 else "abc"[ip]), ("out%d%s" % (cb, "abc"[ip - 1])) if ip else "out%d" % (cb - 1))
            if cb == 5: sec.stream(TL.pre1(), end, end + 130, "tp1", "out5,tp0")
            if cb == 6: sec.stream(TL.pre2(), end, end + 130, "tp2", "out6,tp1,l8,gl")
        if gi == P2 + 9: TL = Tail(out_ops, 0, VP); sec.stream(TL.pre0(), base, base + 180, "tp0")
        if gi == gY: sec.stream(TL.gl(), base + 1, base + 60, "gl", "tp0")
    p += sec.flatten(verbose=True)
    p += ([] if OPT.get('diag') == 8 else stamp(20)) + TL.main()
    p += stamp_out(2)
    emit(a, name, p, 512, accum=256)

class Tail:
    def __init__(self, out_ops, YB, VP):
        self.out_ops, self.YB, self.VP = out_ops, YB, VP
        self.ST = [SET[2], SET[2] + 16, SET[1]]
        self.FR = [SET[1] + 16, SET[1] + 24, FB + 24]
        self.CO, self.KD, self.VG4, self.G8, self.VS, self.SEL = [7, 8, 9], [10, 11, 12], 13, 14, 15, 24
        self.GV, self.VO, self.V8, self.VO8 = TMP + 16, 30, 31, 19
    def seeds(self, pc, n):
        cur = self.ST[pc] + 8 * n; g4 = self.G8 if pc == 2 else self.VG4; q = []
        for j in range(4): q += L("v_add_f32 v%d, %s, v%d" % (cur + j, f2h(16.0 * n + j), g4))
        for j in range(4): q += F("v_fma_f32 v%d, v%d, v%d, {Q}\nv_mul_f32 v%d, v%d, v%d" % (cur + 4 + j, cur + j, self.KD[pc], cur + j, cur + j, self.KD[pc]))
        for j in range(8): q += L("v_cos_f32 v%d, v%d" % (cur + j, cur + j))
        return q
    def frag(self, pc, n):
        cur = self.ST[pc] + 8 * (n & 1); prv = self.ST[pc] + 8 * ((n + 1) & 1); f = self.FR[pc] + 4 * (n & 1); q = []
        if n >= 2:
            for j in range(8): q += L("v_fma_f32 v%d, v%d, v%d, -v%d" % (cur + j, self.CO[pc], prv + j, cur + j))
        if n == 0:
            q += L("v_cmp_eq_f32 vcc, 0, v%d" % (self.G8 if pc == 2 else self.VG4))
            q += L("v_cvt_pk_bf16_f32 v%d, v%d, v%d\nv_cvt_pk_bf16_f32 v%d, v%d, v%d" % (f + 1, cur + 2, cur + 3, f + 3, cur + 6, cur + 7))
            q += L("v_cndmask_b32 v%d, v%d, 0.5, vcc\nv_cndmask_b32 v%d, v%d, v%d, vcc" % (f, cur, f + 2, cur + 4, self.VS))
            q += L("v_cvt_pk_bf16_f32 v%d, v%d, v%d\nv_cvt_pk_bf16_f32 v%d, v%d, v%d" % (f, f, cur + 1, f + 2, f + 2, cur + 5))
        else:
            for jp in range(4): q += L("v_cvt_pk_bf16_f32 v%d, v%d, v%d" % (f + jp, cur + 2 * jp, cur + 2 * jp + 1))
        return q
    def pre0(self):
        KD, CO, SEL, GV = self.KD, self.CO, self.SEL, self.GV
        p = F("""s_and_b32 {d}, {C}, 3
s_lshl_b32 {d}, {d}, 4
s_and_b32 {e}, {C}, 1
s_lshl_b32 {e}, {e}, 2
s_add_u32 {e}, {e}, {RG}
s_lshl_b32 {e}, {e}, 2
s_and_b32 {a}, {C}, 2
s_add_u32 {e}, {e}, {a}
s_add_u32 {e}, {e}, {FH}
s_lshl_b32 {e}, {e}, 4
v_add_u32 v{ka}, {e}, v1
v_add_u32 v{kb_}, 0x80, v{ka}
v_add_u32 v{kc}, {d}, v1
v_add_u32 v{kc}, 0x200, v{kc}
v_and_b32 v{vs}, 1, v1
v_lshlrev_b32 v{vs}, 31, v{vs}
v_or_b32 v{vs}, 0.5, v{vs}
v_lshlrev_b32 v{g4}, 2, v2
v_cvt_f32_u32 v{g4}, v{g4}
s_mul_i32 {a}, {W}, 80
v_cvt_f32_u32 v{g8}, {a}
v_add_f32 v{g8}, v{g8}, v{g4}""", ka=KD[0], kb_=KD[1], kc=KD[2], vs=self.VS, g4=self.VG4, g8=self.G8)
        for i in range(3): p += L("v_cvt_f32_u32 v%d, v%d\nv_mul_f32 v%d, %s, v%d" % (KD[i], KD[i], CO[i], f2h(1.0 / 36), KD[i]))
        for i in range(3): p += L("v_cos_f32 v%d, v%d" % (CO[i], CO[i]))
        for i in range(3): p += L("v_mul_f32 v%d, %s, v%d\nv_add_f32 v%d, v%d, v%d" % (KD[i], f2h(1.0 / 576), KD[i], CO[i], CO[i], CO[i]))
        p += L("""v_lshrrev_b32 v{a}, 2, v1
v_cmp_eq_u32 vcc, v{a}, v2
v_and_b32 v{b}, 1, v1
v_lshlrev_b32 v{b}, 4, v{b}
v_mov_b32 v{a}, 0x3f80
v_lshlrev_b32 v{b}, v{b}, v{a}
v_cndmask_b32 v{b}, 0, v{b}, vcc
v_and_b32 v{a}, 2, v1
v_cmp_eq_u32 vcc, 0, v{a}
v_mov_b32 v{s0}, 0
v_mov_b32 v{s1}, 0
v_cndmask_b32 v{s2}, 0, v{b}, vcc
v_cndmask_b32 v{s3}, v{b}, 0, vcc
v_mov_b32 v{s4}, 0
v_mov_b32 v{s5}, 0""".format(a=SEL + 4, b=SEL + 5, s0=SEL, s1=SEL + 1, s2=SEL + 2, s3=SEL + 3, s4=SEL + 4, s5=SEL + 5))
        return p
    def gl(self):
        GV = self.GV
        return F("""s_lshl_b32 {a}, {T}, 9
s_lshl_b32 {b}, {PE2}, 7
s_add_u32 {a}, {a}, {b}
s_add_u32 {a}, {a}, %d
s_add_u32 {b}, {a}, %d
v_lshlrev_b32 v{t}, 2, v1
buffer_load_dword v{g}, v{t}, {WS}, {a} offen sc1
buffer_load_dword v{g1}, v{t}, {WS}, {a} offen offset:64 sc1
buffer_load_dword v{g2}, v{t}, {WS}, {b} offen sc1
buffer_load_dword v{g3}, v{t}, {WS}, {b} offen offset:64 sc1""" % (WS_G, WS_O - WS_G), t=self.VO, g=GV, g1=GV + 1, g2=GV + 2, g3=GV + 3)
    def pre1(self):
        return self.seeds(0, 0) + self.seeds(0, 1) + self.seeds(1, 0) + self.seeds(1, 1)
    def pre2(self):
        p = self.seeds(2, 0) + self.seeds(2, 1)
        for pc in range(3): p += self.frag(pc, 0) + self.frag(pc, 1)
        sc_ = f2h(2.0 / (2048 * 576))
        p += F("""v_mul_f32 v{g}, %s, v{g}
v_mul_f32 v{g1}, %s, v{g1}
v_and_b32 v{o}, 31, v0
v_mul_u32_u24 v{o}, %d, v{o}
v_lshrrev_b32 v{t}, 5, v0
v_lshl_add_u32 v{o}, v{t}, 4, v{o}
s_and_b32 {a}, {PE2}, 1
s_lshl_b32 {a}, {a}, 10
s_lshr_b32 {b}, {PE2}, 1
s_add_u32 {a}, {a}, {b}
s_lshl_b32 {b}, {T}, 1
s_add_u32 {a}, {a}, {b}
s_mul_i32 {a}, {a}, 1152
s_lshl_b32 {d}, {d}, 1
s_add_u32 {d}, {d}, {a}
s_lshl_b32 {e}, {e}, 1
s_add_u32 {e}, {e}, {a}
s_mul_i32 {a}, {W}, 10240
v_add_u32 v{t}, {a}, v{l}
s_cmp_eq_u32 {W}, 0
s_cselect_b32 {a}, 0, 0x80000000
v_or_b32 v{o8}, {a}, v{o}
s_add_u32 {SA}, {XA}, 262144
s_add_u32 {SB}, {XA}, 266240""" % (sc_, sc_, 32 * 1152), g=self.GV, g1=self.GV + 1, o=self.VO, t=self.V8, l=V_L16, o8=self.VO8)
        return p
    def main(self):
        YB, VP, FR, SEL, GV, V8 = self.YB, self.VP, self.FR, self.SEL, self.GV, self.V8
        SENT = OPT.get('sent')
        YF = 224; AC = [240, 248, SET[3]]
        SMQ = lambda pc, h: SET[3] + 8 + 8 * pc + 4 * h
        PAr = lambda i: A(4 * i, 4)
        PBr = lambda i: V(FB + 4 * i, 4) if i < 6 else V(TMP + 4 * (i - 6), 4)
        P8r = lambda i: V(TMP + 4 * i, 4)
        yr = (YB, YB + 36864)
        def yrd(n, va, o):
            r = YF + 8 * (n & 1)
            return L("ds_read_b128 v[%d:%d], v%d offset:%d\nds_read_b128 v[%d:%d], v%d offset:%d" % (r, r + 3, va, o, r + 4, r + 7, va, o + 1024), lds_r=yr)
        def pload(regs, i):
            q = F("buffer_load_dwordx4 %s, v%d, {WS}, {XA} offen offset:%d sc1" % (rs(regs), V_L16, (i % 4) * 1024))
            return q + (F("s_add_u32 {XA}, {XA}, 4096") if i % 4 == 3 else [])
        def summ(pc, regs, first):
            return [mf(V(SMQ(pc, h), 4), V(SEL + 2 - 2 * h, 4), regs, None if first else V(SMQ(pc, h), 4)) for h in range(2)]
        def combine(pc): return [I("v_mul_f32 v%d, v%d, v%d" % (AC[pc] + r, AC[pc] + r, GV + (r >> 2))) for r in range(8)]
        def combine2(pc): return [I("v_fma_f32 v%d, v%d, v%d, v%d" % (AC[pc] + r, SMQ(pc, r >> 2) + (r & 3), GV + 2 + (r >> 2), AC[pc] + r)) for r in range(8)]
        def store(b, so, off, va):
            q = []
            for d in range(4): q += L("v_cvt_pk_bf16_f32 v%d, v%d, v%d" % (b + d, b + 2 * d, b + 2 * d + 1))
            q += L("v_permlane16_swap_b32 v%d, v%d\nv_permlane16_swap_b32 v%d, v%d" % (b, b + 2, b + 1, b + 3))
            return q + F("buffer_store_dwordx4 v[%d:%d], v%d, {OUT}, %s offen offset:%d%s" % (b, b + 3, va, so, off, OPT.get('ofl', "")))
        p = ts(3) + yrd(0, V8, YB) + yrd(1, V8, YB + 2048) + self.out_ops(8, [3]) + ([] if OPT.get('pae') else poll(VP, ENV['PO1'])) + ts(4)
        for i in range(4): p += summ(2, P8r(i), i == 0)
        for n in range(5):
            o = "q8" if n >= 3 else False
            if n == 3: p += F("s_cmp_eq_u32 {W}, 3\ns_cbranch_scc1 L_q8_KN")
            q = []
            if n == 3: q += yrd(3, V8, YB + 3 * 2048) + yrd(4, V8, YB + 4 * 2048) + self.frag(2, 3)
            for h in range(2):
                acc = V(AC[2] + 4 * h, 4)
                q.append(mf(acc, V(FR[2] + 4 * (n & 1), 4), V(YF + 8 * (n & 1) + 4 * h, 4), acc if n else None))
            if n == 0: q += yrd(2, V8, YB + 2 * 2048) + self.frag(2, 2)
            if n == 3: q += self.frag(2, 4)
            for i in q: i.opt = o
            p += q
        p += L("L_q8_KN:") + yrd(0, V_L16, YB)
        XB = 9 * 4096
        p += F("s_lshl_b32 {a}, {W}, 11\nv_add_u32 v%d, {a}, v%d" % (V8, V_L16)) + combine(2) + combine2(2)
        p += L("ds_write_b128 v%d, v[%d:%d] offset:%d\nds_write_b128 v%d, v[%d:%d] offset:%d" % (V8, AC[2], AC[2] + 3, XB, V8, AC[2] + 4, AC[2] + 7, XB + 1024), lds_w=(XB, XB + 8192), tag="r8")
        bl = lambda i: "buffer_load_dwordx4 %s, v%d, {WS}, {%s} offen offset:%d sc1" % (rs(PBr(i)), V_L16, "SA" if i < 4 else "SB", (i % 4) * 1024)
        sec = Sec2()
        ksB, kcB = OPT.get('ksb', 6), OPT.get('kcb', 13)
        R8 = SET[0]
        for kb in range(18):
            b0 = sec.n()
            for pc in range(2):
                for h in range(2):
                    acc = V(AC[pc] + 4 * h, 4)
                    sec.mfma(mf(acc, V(FR[pc] + 4 * (kb & 1), 4), V(YF + 8 * (kb & 1) + 4 * h, 4), acc if kb else None))
            if kb >= 14:
                for i in (2 * (kb - 14), 2 * (kb - 14) + 1):
                    for m_ in summ(0, PAr(i), i == 0): sec.mfma(m_)
            e0 = sec.n() - 1
            if kb < 17: sec.at(b0, yrd(kb + 1, V_L16, YB + (kb + 1) * 2048))
            if 1 <= kb < 17: sec.stream(self.frag(0, kb + 1) + self.frag(1, kb + 1), b0, e0)
            blk = []
            kaB = OPT.get('kab', ksB); kpB = OPT.get('kpb', kaB + 4); na = OPT.get('na', 2)
            if kb == ksB:
                blk += ts(5) + L("s_barrier", need_vm=("pB",), need_lgkm=("r8",)) + F("s_add_u32 {PO2}, {PO1}, 4") + signal(ENV['PO2']) + ts(6)
                for i in range(8): blk += L("ds_read_b128 v[%d:%d], v%d offset:%d" % (R8 + 4 * i, R8 + 4 * i + 3, V_L16, XB + i * 1024), lds_r=(XB, XB + 8192))
            if kb == kaB: blk += check("A", VP, ENV['PO1'], ENV['PE1'], sidx=24) + L("s_barrier") + ts(7)
            if kb == kpB and OPT.get('pbf', 1): blk += poll(VP + 1, ENV['PO2'])
            if kaB <= kb:
                for i in range(na * (kb - kaB), min(8, na * (kb - kaB + 1))): blk += pload(PAr(i), i)
            if kb == kpB and not OPT.get('pbf', 1): blk += poll(VP + 1, ENV['PO2'])
            if kb == kcB:
                if not SENT: blk += check("B", VP + 1, ENV['PO2'], ENV['PE1'], sidx=25) + L("s_barrier")
                for i in range(8): blk += F(bl(i))
                blk += ts(9)
            if blk: sec.block(e0, blk)
        p += sec.flatten() + ts(12)
        for r in range(8): p += L("v_add_f32 v%d, v%d, v%d\nv_add_f32 v%d, v%d, v%d\nv_add_f32 v%d, v%d, v%d" % (R8 + r, R8 + r, R8 + 8 + r, R8 + 16 + r, R8 + 16 + r, R8 + 24 + r, R8 + r, R8 + r, R8 + 16 + r))
        p += store(R8, ENV['d'], 1024, self.VO8)
        p += combine(0) + combine2(0) + store(AC[0], ENV['e'], 0, self.VO) + combine(1)
        MX = 4
        def mx(i, acc):
            r = PBr(i)[0][1]
            if acc: return "v_max3_u32 v%d, v%d, v%d, v%d\nv_max3_u32 v%d, v%d, v%d, v%d" % (MX, MX, r, r + 1, MX, MX, r + 2, r + 3)
            return "v_max3_u32 v%d, v%d, v%d, v%d\nv_max_u32 v%d, v%d, v%d" % (MX, r, r + 1, r + 2, MX, MX, r + 3)
        for i in range(8 if SENT else 0): p += L(mx(i, i > 0))
        if SENT: p += L("v_cmp_eq_u32 vcc, -1, v%d\ns_nop 4\ns_cbranch_vccnz L_rt_KN\nL_rb_KN:" % MX)
        o = "L_rt_KN:\ns_mov_b32 s5, 0\nL_rl_KN:\ns_mov_b32 s4, 0\n"
        for i in range(8):
            o += mx(i, False) + "\nv_cmp_eq_u32 vcc, -1, v%d\ns_nop 4\ns_cbranch_vccz L_rs%d_KN\n" % (MX, i) + bl(i).format(**ENV) + "\ns_mov_b32 s4, 1\nL_rs%d_KN:\n" % i
        o += "s_add_u32 s5, s5, 1\n"
        if OPT['stamps']: o += "v_writelane_b32 v%d, s5, 25\n" % VST[0]
        o += "s_cmp_eq_u32 s4, 0\ns_cbranch_scc1 L_rb_KN\ns_waitcnt vmcnt(0)\ns_cmp_lt_u32 s5, 0x40000\ns_cbranch_scc1 L_rl_KN\ns_branch L_rb_KN"
        if SENT: SPINS.append(o)
        p += stamp(21)
        for i in range(8): p += summ(1, PBr(i), i == 0)
        p += combine2(1) + store(AC[1], ENV['e'], 256, self.VO)
        return p

if __name__ == "__main__":
    for x in sys.argv[2:]:
        k, v = x.split("=")
        OPT[k] = int(v) if v.lstrip("-").isdigit() else v.replace("_", " ")
    a = Asm()
    kernel_main(a)
    a.launches = ['; @launch grid=(256,1,1) block=(256,1,1) lds=163840']
    open(sys.argv[1], "w").write(a.text())
```
